```python
import torch

def _softmax(x, axis=-1):
    return torch.softmax(x, dim=axis)
def _gelu(x):
    return torch.nn.functional.gelu(x, approximate="tanh")
def _silu(x):
    return torch.nn.functional.silu(x)
def _sigmoid(x):
    return torch.sigmoid(x)
def _layernorm(x, axis=-1, eps=1e-5):
    m = x.mean(dim=axis, keepdim=True)
    v = x.var(dim=axis, keepdim=True, unbiased=False)
    return (x - m) / torch.sqrt(v + eps)
def _scatter_add(tgt, idx, src, axis=0):
    return tgt.clone().index_add_(axis, idx, src)
def _segment_sum(src, seg, n):
    out = torch.zeros((n,) + src.shape[1:], dtype=src.dtype)
    return out.index_add_(0, seg, src)
def _pad(x, pw):
    flat = tuple(v for pair in reversed(pw) for v in pair)
    return torch.nn.functional.pad(x, flat)

kernel_name = 'interleave_layers__sliding_local_dilated__dense_activation_mish__prompt'

def setup_inputs():

    _w = (lambda a: (lambda t: t.to(torch.bfloat16) if t.is_floating_point() else t)(torch.as_tensor(a)))
    def _A_setup():
        B, S, D = 1, 2048, 512
        return {
            "x": _w((lambda *s: torch.randn(*s, dtype=torch.bfloat16) * 0.05)(B, S, D)),
            "wqkv": _w((lambda *s: torch.randn(*s, dtype=torch.bfloat16) * 0.05)(D, 3 * D)),
            "wo": _w((lambda *s: torch.randn(*s, dtype=torch.bfloat16) * 0.05)(D, D)),
        }
    _A_in = _A_setup()

    def _B_setup():
        B, S, D, F = 1, 2048, 512, 1792
        return {
            "x": _w((lambda *s: torch.randn(*s, dtype=torch.bfloat16) * 0.05)(B, S, D)),
            "w1": _w((lambda *s: torch.randn(*s, dtype=torch.bfloat16) * 0.8)(D, F) * (D ** -0.5)),
            "b1": _w((lambda *s: torch.randn(*s, dtype=torch.bfloat16) * 0.8)(F)),
            "w2": _w((lambda *s: torch.randn(*s, dtype=torch.bfloat16) * 0.8)(F, D) * (F ** -0.5)),
        }
    _B_in = _B_setup()

    return {
        "A_x": _A_in["x"],
        "A_wqkv": _A_in["wqkv"],
        "A_wo": _A_in["wo"],
        "B_x": _B_in["x"],
        "B_w1": _B_in["w1"],
        "B_b1": _B_in["b1"],
        "B_w2": _B_in["w2"],
    }

def reference(A_x, A_wqkv, A_wo, B_x, B_w1, B_b1, B_w2):
    def _A_ref(x, wqkv, wo):
        B, S, D = x.shape
        H = 32; Dh = D // H
        W, dil = 8, 2
        qkv = (lambda x, *d: x.permute(*d))((x @ wqkv).reshape(B, S, 3, H, Dh), 2, 0, 3, 1, 4)
        q, k, v = qkv[0], qkv[1], qkv[2]
        scale = Dh ** -0.5
        pos = torch.arange(S)
        off = torch.arange(W) * dil
        idx = pos[:, None] - off[None, :]
        mask = idx >= 0
        idx_c = torch.where(mask, idx, 0).reshape(-1)
        kg = k[:, :, idx_c, :].reshape(B, H, S, W, Dh)
        vg = v[:, :, idx_c, :].reshape(B, H, S, W, Dh)
        logits = torch.einsum("bhsd,bhswd->bhsw", q, kg) * scale
        logits = torch.where(mask[None, None, :, :], logits, -1e9)
        attn = _softmax(logits, axis=-1)
        o = torch.einsum("bhsw,bhswd->bhsd", attn, vg)
        return (lambda x, *d: x.permute(*d))(o, 0, 2, 1, 3).reshape(B, S, D) @ wo

    def _B_ref(x, w1, b1, w2):
        h = torch.einsum("bsd,df->bsf", x, w1) + b1
        sp = torch.log1p(torch.exp(-torch.abs(h))) + torch.where(h > 0, h, torch.zeros_like(h))
        act = h * torch.tanh(sp)
        return torch.einsum("bsf,fd->bsd", act, w2)

    x = A_x
    x = x + _A_ref(_layernorm(x, axis=-1), A_wqkv, A_wo)
    x = x + _B_ref(_layernorm(x, axis=-1), B_w1, B_b1, B_w2)
    x = x + _A_ref(_layernorm(x, axis=-1), A_wqkv, A_wo)
    x = x + _B_ref(_layernorm(x, axis=-1), B_w1, B_b1, B_w2)
    return x
```

```python
import re

TRANS = ('v_exp_f32', 'v_log_f32', 'v_rcp_f32', 'v_rsq_f32', 'v_sqrt_f32', 'v_sin_f32', 'v_cos_f32')


class Op:
    __slots__ = ('text', 'kind', 'tag', 'waits', 'comment')

    def __init__(self, text, kind='p', tag=None, waits=None):
        self.text = text
        self.kind = kind
        self.tag = tag
        self.waits = waits


_tagctr = [0]


def newtag(prefix='t'):
    _tagctr[0] += 1
    return '%s%d' % (prefix, _tagctr[0])


def P(text):
    return Op(text, 'p')


def VM(text, tag=None):
    return Op(text, 'vm', tag or newtag('vm'))


def LG(text, tag=None):
    return Op(text, 'lg', tag or newtag('lg'))


def W(*tags):
    flat = []
    for t in tags:
        if t is None:
            continue
        if isinstance(t, (list, tuple)):
            flat.extend(t)
        else:
            flat.append(t)
    return Op(None, 'w', waits=flat)


def WALL(vm=True, lg=True):
    return Op(None, 'wall', waits=(vm, lg))


def LAB(name):
    return Op(name + ':', 'lab')


def vr(a, n=1, k='v'):
    return '%s%d' % (k, a) if n == 1 else '%s[%d:%d]' % (k, a, a + n - 1)


def ar(a, n=1):
    return vr(a, n, 'a')


def sr(a, n=1):
    return vr(a, n, 's')


_reg_re = re.compile(r'^(-|\|)?\|?([vas])(\d+)\|?$')
_rng_re = re.compile(r'^(-)?([vas])\[(\d+):(\d+)\]$')


def regs_of(opnd):
    o = opnd.strip()
    if o.startswith('abs(') or o.startswith('neg('):
        o = o[4:-1]
    m = _reg_re.match(o)
    if m:
        return {(m.group(2), int(m.group(3)))}
    m = _rng_re.match(o)
    if m:
        return {(m.group(2), i) for i in range(int(m.group(3)), int(m.group(4)) + 1)}
    if o == 'vcc':
        return {('s', 'vcc_lo'), ('s', 'vcc_hi')}
    if o in ('vcc_lo', 'vcc_hi'):
        return {('s', o)}
    if o == 'm0':
        return {('s', 'm0')}
    if o == 'exec':
        return {('s', 'exec_lo'), ('s', 'exec_hi')}
    return set()


def split_ops(text):
    t = text.split(';')[0].strip()
    parts = t.split(None, 1)
    mn = parts[0]
    if len(parts) == 1:
        return mn, []
    rest = parts[1]
    ops = []
    depth = 0
    cur = ''
    for ch in rest:
        if ch in '[(':
            depth += 1
        elif ch in '])':
            depth -= 1
        if ch == ',' and depth == 0:
            ops.append(cur.strip())
            cur = ''
        else:
            cur += ch
    ops.append(cur.strip())
    last = ops[-1].split()
    if last:
        ops[-1] = last[0]
        mods = last[1:]
    else:
        mods = []
    return mn, ops, mods


class Info:
    __slots__ = ('mn', 'cls', 'wr', 'rd', 'mfA', 'mfB', 'mfC', 'trans', 'dot', 'dpp', 'perm', 'rlane', 'lds_dma',
                 'store_data', 'states', 'branch', 'wide_store', 'cmask')

    def __init__(self):
        self.wr = set(); self.rd = set()
        self.mfA = self.mfB = self.mfC = set()
        self.trans = self.dot = self.dpp = self.perm = self.rlane = self.lds_dma = False
        self.store_data = set(); self.states = 1; self.branch = False; self.wide_store = False
        self.cls = 'other'; self.cmask = set()


def analyze(text):
    r = split_ops(text)
    inf = Info()
    mn = r[0]
    inf.mn = mn
    ops = r[1] if len(r) > 1 else []
    mods = r[2] if len(r) > 2 else []
    R = [regs_of(o) for o in ops]
    base = re.sub(r'_(e32|e64|dpp|sdwa)$', '', mn)
    if mn == 's_nop':
        inf.cls = 'salu'
        inf.states = int(ops[0], 0) + 1
        return inf
    if mn.startswith('s_cbranch') or mn == 's_branch' or mn.startswith('s_setpc') or mn == 's_endpgm':
        inf.cls = 'salu'; inf.branch = True
        return inf
    if mn.startswith('v_mfma'):
        inf.cls = 'mfma'
        inf.wr = R[0]; inf.mfA = R[1]; inf.mfB = R[2]; inf.mfC = R[3]
        inf.rd = R[1] | R[2] | R[3]
        return inf
    if mn.startswith('v_'):
        inf.cls = 'valu'
        inf.trans = base in TRANS
        inf.dot = base.startswith('v_dot')
        inf.dpp = mn.endswith('_dpp') or any(m.startswith('row_') or m.startswith('quad_perm') for m in mods)
        if base.startswith('v_permlane'):
            inf.perm = True
            inf.wr = R[0] | R[1]; inf.rd = R[0] | R[1]
            return inf
        if base in ('v_readfirstlane_b32', 'v_readlane_b32'):
            inf.rlane = True
            inf.wr = R[0]; inf.rd = set().union(*R[1:])
            return inf
        if base.startswith('v_cmp'):
            inf.wr = R[0]; inf.rd = set().union(*R[1:])
            return inf
        if base == 'v_cndmask_b32':
            inf.wr = R[0]; inf.rd = R[1] | R[2]
            inf.cmask = R[3] if len(R) > 3 else regs_of('vcc')
            inf.rd |= inf.cmask
            return inf
        if base in ('v_add_co_u32', 'v_sub_co_u32', 'v_addc_co_u32', 'v_subb_co_u32'):
            inf.wr = R[0] | R[1]; inf.rd = set().union(*R[2:])
            return inf
        inf.wr = R[0]
        inf.rd = set().union(*R[1:]) if len(R) > 1 else set()
        if base in ('v_fmac_f32', 'v_dot2c_f32_bf16', 'v_fmac_f16', 'v_pk_fmac_f16'):
            inf.rd |= R[0]
        return inf
    if mn.startswith('ds_'):
        inf.cls = 'ds'
        if mn.startswith('ds_read') or mn.startswith('ds_bpermute') or mn.startswith('ds_permute') or mn.startswith('ds_swizzle'):
            inf.wr = R[0]; inf.rd = set().union(*R[1:])
        else:
            inf.rd = set().union(*R)
            inf.store_data = set().union(*R[1:]) if len(R) > 1 else set()
        return inf
    if mn.startswith('buffer_') or mn.startswith('global_'):
        inf.cls = 'vmem'
        lds = 'lds' in mods or (ops and ops[-1] == 'lds')
        if mn.startswith('buffer_load') and lds:
            inf.lds_dma = True
            inf.rd = set().union(*R) | {('s', 'm0')}
        elif 'load' in mn:
            inf.wr = R[0]; inf.rd = set().union(*R[1:])
        elif 'atomic' in mn:
            inf.rd = set().union(*R)
            if 'sc0' in mods:
                inf.wr = R[0]
        else:
            inf.rd = set().union(*R)
            inf.store_data = R[0] if mn.startswith('buffer') else R[1]
            inf.wide_store = mn.endswith('x4') or mn.endswith('x3')
        return inf
    if mn.startswith('s_'):
        inf.cls = 'salu'
        if mn.startswith('s_cmp') or mn in ('s_waitcnt', 's_barrier', 's_sleep', 's_setprio', 's_bitcmp0_b32', 's_bitcmp1_b32'):
            inf.rd = set().union(*R) if R else set()
        else:
            inf.wr = R[0] if R else set()
            inf.rd = set().union(*R[1:]) if len(R) > 1 else set()
        return inf
    raise ValueError('cannot analyze: ' + text)


def _isv(regs):
    return {r for r in regs if r[0] in 'va'}


def _iss(regs):
    return {r for r in regs if r[0] == 's'}


def mfma_passes(mn):
    if '32x32' in mn:
        return 8
    return 4


def need_states(prod, cons):
    n = 0
    if prod.cls == 'valu':
        wv = _isv(prod.wr); ws_ = _iss(prod.wr)
        if cons.cls == 'mfma' and (wv & cons.rd):
            n = max(n, 2)
        if cons.cls == 'valu':
            if prod.trans and not cons.trans and (wv & cons.rd):
                n = max(n, 1)
            if prod.trans and cons.trans and (wv & cons.rd):
                n = max(n, 1)
            if cons.perm and (wv & cons.rd):
                n = max(n, 2)
            if cons.dpp and (wv & cons.rd):
                n = max(n, 2)
            if cons.rlane and (wv & cons.rd):
                n = max(n, 1)
            if ws_ & cons.rd:
                n = max(n, 4 if cons.rlane else 2)
            if prod.dot and (wv & (cons.rd | cons.wr)) and not (cons.dot and cons.mn == prod.mn and not (wv & (cons.rd - cons.wr))):
                n = max(n, 3)
        if prod.dot and cons.cls in ('ds', 'vmem', 'mfma') and (wv & cons.rd):
            n = max(n, 3)
        if cons.cls == 'vmem' and (ws_ & cons.rd):
            n = max(n, 5)
        if cons.cls == 'salu' and (ws_ & cons.rd):
            n = max(n, 4)
    if prod.cls == 'mfma':
        p = mfma_passes(prod.mn)
        d = prod.wr
        big = 8 if p == 4 else 12
        ovl = 6 if p == 4 else 10
        if cons.cls == 'mfma':
            if d & (cons.mfA | cons.mfB):
                n = max(n, big)
            if d & cons.mfC:
                if not (cons.mfC == d and mfma_passes(cons.mn) == p):
                    n = max(n, ovl)
            if (d & cons.wr) and not (d & cons.mfC):
                n = max(n, big)
        elif cons.cls in ('valu', 'ds', 'vmem'):
            if d & (cons.rd | cons.wr):
                n = max(n, big)
        if cons.cls == 'valu' and (prod.mfC & cons.wr):
            n = max(n, 3 if p == 4 else 7)
        if cons.cls in ('ds', 'vmem') and (prod.mfC & cons.wr):
            n = max(n, 3 if p == 4 else 7)
    if prod.cls == 'salu' and ('s', 'm0') in prod.wr and cons.lds_dma:
        n = max(n, 1)
    if prod.cls == 'vmem' and prod.wide_store and (prod.store_data & cons.wr):
        n = max(n, 2)
    if prod.cls == 'ds' and prod.store_data and (prod.store_data & cons.wr) and cons.cls == 'valu':
        n = max(n, 1)
    return n


class Prog:
    def __init__(self):
        self.ops = []

    def add(self, *items):
        for it in items:
            if it is None:
                continue
            if isinstance(it, (list, tuple)):
                self.add(*it)
            elif isinstance(it, str):
                self.ops.append(P(it))
            else:
                self.ops.append(it)

    def resolve(self):
        out = []
        vm_idx = {}; lg_idx = {}
        vm_n = 0; lg_n = 0
        vm_done = -1; lg_done = -1
        for op in self.ops:
            if op.kind == 'vm':
                vm_idx[op.tag] = vm_n; vm_n += 1
                out.append(op.text)
            elif op.kind == 'lg':
                lg_idx[op.tag] = lg_n; lg_n += 1
                out.append(op.text)
            elif op.kind == 'w':
                nv = None; nl = None
                for t in op.waits:
                    if t in vm_idx:
                        i = vm_idx[t]
                        if i > vm_done:
                            c = vm_n - 1 - i
                            nv = c if nv is None else min(nv, c)
                    elif t in lg_idx:
                        i = lg_idx[t]
                        if i > lg_done:
                            c = lg_n - 1 - i
                            nl = c if nl is None else min(nl, c)
                    else:
                        raise KeyError('wait on unknown tag %s' % t)
                parts = []
                if nv is not None:
                    nv = min(nv, 63)
                    parts.append('vmcnt(%d)' % nv)
                    vm_done = max(vm_done, vm_n - 1 - nv)
                if nl is not None:
                    nl = min(nl, 15)
                    parts.append('lgkmcnt(%d)' % nl)
                    lg_done = max(lg_done, lg_n - 1 - nl)
                if parts:
                    out.append('s_waitcnt ' + ' '.join(parts))
            elif op.kind == 'wall':
                vm, lg = op.waits
                parts = []
                if vm:
                    parts.append('vmcnt(0)'); vm_done = vm_n - 1
                if lg:
                    parts.append('lgkmcnt(0)'); lg_done = lg_n - 1
                out.append('s_waitcnt ' + ' '.join(parts))
            elif op.kind == 'reset':
                vm_done = min(vm_done, op.waits[0]) if op.waits else vm_done
                out.append('; merge')
            else:
                out.append(op.text)
        return out

    def hazard_pad(self, lines):
        out = []
        hist = []
        npad = 0
        for ln in lines:
            s = ln.strip()
            if not s or s.startswith(';') or s.endswith(':') or s.startswith('.'):
                out.append(ln)
                continue
            inf = analyze(s)
            need = 0
            dist = 0
            for prev in reversed(hist):
                if dist >= 13:
                    break
                if inf.branch:
                    req = 0
                    if prev.cls == 'mfma':
                        req = 8 if mfma_passes(prev.mn) == 4 else 12
                    elif prev.cls == 'valu':
                        req = 5 if _iss(prev.wr) else (3 if prev.dot else 2)
                    elif prev.cls == 'vmem' and prev.wide_store:
                        req = 2
                else:
                    req = need_states(prev, inf)
                if req > dist:
                    need = max(need, req - dist)
                dist += prev.states
            while need > 0:
                k = min(need, 16)
                nop = 's_nop %d' % (k - 1)
                out.append('  ' + nop)
                hist.append(analyze(nop))
                need -= k
                npad += 1
            out.append(ln)
            hist.append(inf)
            if len(hist) > 32:
                hist = hist[-32:]
        self.npad = npad
        return out

    def render(self):
        lines = self.resolve()
        lines = [(l if (l.endswith(':') or l.startswith('.') or l.startswith(';')) else '  ' + l) for l in lines]
        return self.hazard_pad(lines)


def interleave(main, extra, start=0, every=1, per=1):
    out = []
    extra = list(extra)
    for i, op in enumerate(main):
        out.append(op)
        if i >= start and (i - start) % every == every - 1:
            for _ in range(per):
                if extra:
                    out.append(extra.pop(0))
    out.extend(extra)
    return out
```

```python
import sys, math
from asmlib import *

KNAME = 'interleave_layers__sliding_local_dilated__dense_activation_mish__prompt_kernel'

WS_FLG = 0x0000
WS_HFL = 0x1000
WS_TS = 0x2000
WS_ST = 0x10000
WS_HST = 0x80000
WS_HF = 0x90000
WS_XF = 0x100000
WS_OF = 0x800000
WS_AF = 0x1000000
WS_SIZE = 0x2000000
ST_K = 0x20000; XF_K = 0x200000; OF_R = 0x200000; AF_R = 0x800000

L_CSQ = 0
L_CS1 = 384
L_BB1 = 832
L_W = 2048
L_HALO = 100352
L_RING = 116736
L_EX = 116736
L_EXK = L_EX + 9216
L_W1P = [135168, 77824, 106496, 49152]
L_EXB2 = 2048
L_EXB4 = 100352
LDS_BYTES = 163840

LOG2E = 1.4426950408889634
LN2 = 0.6931471805599453


def f32(x):
    import struct
    return '0x%08x' % struct.unpack('<I', struct.pack('<f', x))[0]


sRND = 3; sG = 4; sM = 5; sW = 6; sMODE = 7
SRD_X = 8; SRD_WQ = 12; SRD_WO = 16; SRD_W1 = 20; SRD_W2 = 24; SRD_WS = 28; SRD_OUT = 32; SRD_DBG = 36; SRD_B1 = 40
sXCC = 44
sWQ_SRC = 45
sW1K = 46
sWO_SRC = 47
sW1_SRC = 48
sW1_M = 49
sB0 = 50; sB1 = 51
sT0 = 52; sT1 = 53; sT2 = 54; sT3 = 55
sFLGOFF = 56
sGFLG = 57
sST = 58
sTH = 59; sCT = 60
sONE = 62
sM2L = 64
sUP = 66
sMA = 68; sMB = 70; sMC = 72; sMD = 74
sIT = 76; sTMO = 77; sTGT = 78; sA = 79; sB = 80; sC = 81; sD = 82
sXR0 = 83; sXR1 = 84
sHSRC = 85
sTB = 86
sGBASE = 87
sTS = 88
sTSO = 90
sXL0 = 92; sXL1 = 93

vLANE = 0; vL16 = 1
vR = 2
vONES = 10
vWQA = 14
vE1 = 18; vE2 = 19
vW1A = 20
vW2A = 23
vDQ = 35; vDO = 36; vD1 = 37
vCS = 44
vCCUR = 46; vCPREV = 50; vCPA = 54
vEXV = 58; vEXK = 59; vEXH = 60; vRVP = 61; vRV = 62; vRK = 63
vLN2 = 64
vEXBW = 66; vEXBR = 67
vSTO = 68
vHOF = 69
vHST = 70
vOUT = 71
vAF = 72
NAF = 8
vACC = 104
vT = 168
vTA = 254; vTB = 255
vDX = 240; vDH = 241; vXA = 242; vXB = 243; vHXA = 244; vHXB = 245


class Gen:
    def __init__(self, cfg):
        self.cfg = cfg
        self.p = Prog()
        self.lbl = 0

    def L(self, name):
        self.lbl += 1
        return '%s_%d' % (name, self.lbl)

    def add(self, *a):
        self.p.add(*a)

    def ts(self, idx):
        if not self.cfg.get('ts'):
            return []
        return [P('s_memrealtime s[88:89]'), P('s_waitcnt lgkmcnt(0)'),
                P('v_mov_b32 v252, s88'), P('v_mov_b32 v253, s89'),
                P('v_mov_b32 v254, 0'),
                P('s_lshl_b32 s91, s%d, 7' % sRND), P('s_add_u32 s91, s91, s90'), P('s_add_u32 s91, s91, %d' % (idx * 8)),
                P('s_mov_b64 exec, 1'),
                VM('buffer_store_dwordx2 v[252:253], v254, s[28:31], s91 offen'),
                P('s_mov_b64 exec, -1')]

    def dma(self, srd, voff, src_s, src_imm, lds_s, lds_imm, tag=None, st=None):
        st = st if st is not None else sT0
        ops = []
        if lds_s is None:
            ops.append(P('s_mov_b32 m0, %d' % lds_imm))
        else:
            ops.append(P('s_add_u32 m0, s%d, %d' % (lds_s, lds_imm)))
        if src_s is None:
            ops.append(P('s_mov_b32 s%d, %d' % (st, src_imm)))
        else:
            ops.append(P('s_add_u32 s%d, s%d, %d' % (st, src_s, src_imm)))
        ops.append(VM('buffer_load_dwordx4 v%d, s[%d:%d], s%d offen lds' % (voff, srd, srd + 3, st), tag))
        return ops

    def dma_wq_quarter(self, qd):
        out = []
        for a in range(2):
            for p in range(3):
                rg = 8 * qd + 4 * a
                out.append(self.dma(SRD_WQ, vDQ, sWQ_SRC, rg * 49152 + p * 1024, sW1K, L_W + p * 32768 + rg * 1024))
        return out

    def dma_wo_slot(self, srd, nk, t, kh, pos):
        js = kh * nk + t
        return self.dma(srd, vDO, sWO_SRC, js * 32768, sW1K, L_W + (2 * pos + kh) * 4096)

    def dma_w1_group(self, a):
        out = []
        for u in range(7):
            out.append(self.dma(SRD_W1, vD1 + u, sW1_SRC, a * 4 * 32 * 3584, sW1_M, L_W1P[a] + u * 1024))
        return out

    def window_loop(self, n0, n1, srd, srcA_s, srcA_imm, srcB, ldsC, ldsD, subs):
        lab = self.L('win'); end = self.L('winend')
        o = [P('s_add_u32 s%d, s%d, %d' % (sIT, sW, n0 - 1)),
             P('s_cmp_ge_u32 s%d, %d' % (sIT, n1)),
             P('s_cbranch_scc1 %s' % end),
             LAB(lab),
             P('s_mul_i32 s%d, s%d, %d' % (sA, sIT, srcB))]
        if srcA_s is not None:
            o.append(P('s_add_u32 s%d, s%d, s%d' % (sA, sA, srcA_s)))
        o.append(P('s_add_u32 s%d, s%d, %d' % (sA, sA, srcA_imm)))
        o.append(P('s_mul_i32 s%d, s%d, %d' % (sB, sIT, ldsD)))
        for (voff, so, lo) in subs:
            o.append(P('s_add_u32 m0, s%d, %d' % (sB, ldsC + lo)))
            o.append(P('s_add_u32 s%d, s%d, %d' % (sT0, sA, so)))
            o.append(P('buffer_load_dwordx4 v%d, s[%d:%d], s%d offen lds' % (voff, srd, srd + 3, sT0)))
        o += [P('s_add_u32 s%d, s%d, 3' % (sIT, sIT)),
              P('s_cmp_lt_u32 s%d, %d' % (sIT, n1)),
              P('s_cbranch_scc1 %s' % lab),
              LAB(end)]
        return o

    def win_wq(self, rg0, rg1):
        return [P('s_lshl_b32 s%d, s%d, 6' % (sC, sM))] + self.window_loop(
            rg0, rg1, SRD_WQ, sC, 0, 49152, L_W, 1024, [(vDQ, p * 1024, p * 32768) for p in range(3)])

    def win_wo(self, srd, nk, t0, t1, pos0=None):
        subs = []
        for kh in range(2):
            for q in range(4):
                subs.append((vDO, kh * nk * 32768 + q * 8192, kh * 4096 + q * 1024))
        return [P('s_lshl_b32 s%d, s%d, 7' % (sC, sCT))] + self.window_loop(
            t0, t1, srd, sC, 0, 32768, L_W, 8192, subs)

    def win_w1(self, j0, j1):
        a = j0 // 4
        base = L_W1P[a] - j0 * 7168
        for j in range(j0, j1):
            assert L_W1P[j // 4] + (j % 4) * 7168 == base + j * 7168
        return [P('s_mul_i32 s%d, s%d, 224' % (sC, sM))] + self.window_loop(
            j0, j1, SRD_W1, sC, 0, 32 * 3584, base, 7168, [(vD1 + u, 0, u * 1024) for u in range(7)])

    def gemm_loop(self, groups, LA, extras):
        out = []
        n = len(groups)
        for k in range(min(LA, n)):
            out += groups[k].get('pre', []) + groups[k]['reads']
        flat = []
        for gi, g in enumerate(groups):
            rq = []
            if gi + LA < n:
                rq = list(groups[gi + LA].get('pre', [])) + list(groups[gi + LA]['reads'])
            nm = len(g['mf'])
            chunks = [[] for _ in range(nm)]
            reads_total = sum(1 for x in rq if x.kind == 'lg')
            per = max(1, -(-reads_total // nm))
            c = 0; cnt = 0
            for x in rq:
                chunks[min(c, nm - 1)].append(x)
                if x.kind == 'lg':
                    cnt += 1
                    if cnt == per:
                        cnt = 0; c += 1
            for k, (text, waits) in enumerate(g['mf']):
                w = list(waits)
                if k == 0:
                    w += [x.tag for x in g['reads']]
                flat.append((text, w, g.get('premf', []) if k == 0 else [], chunks[k]))
        extras = sorted(extras, key=lambda e: e[0])
        ei = 0
        for idx, (text, w, premf, chunk) in enumerate(flat):
            if idx == 0:
                out += premf + [W(w)]
            out.append(P(text))
            if idx + 1 < len(flat):
                out += flat[idx + 1][2]
                out.append(W(flat[idx + 1][1]))
            out += chunk
            k = 0
            while ei < len(extras) and extras[ei][0] <= idx and k < self.cfg.get('extra_per', 1):
                out += extras[ei][1]
                ei += 1; k += 1
        while ei < len(extras):
            out += extras[ei][1]; ei += 1
        return out

    def afrag(self, n):
        return vAF + (n % NAF) * 4

    def prologue(self):
        cfg = self.cfg
        o = self.add
        o(P('s_cmp_ge_u32 s2, 256'), P('s_cbranch_scc1 L_END'))
        o(P('s_load_dwordx16 s[72:87], s[0:1], 0'), P('s_load_dwordx4 s[88:91], s[0:1], 64'))
        o(P('s_getreg_b32 s%d, hwreg(HW_REG_XCC_ID, 0, 4)' % sXCC))
        o(P('s_and_b32 s52, s2, 7'), P('s_lshr_b32 s53, s2, 3'), P('s_lshr_b32 s54, s53, 4'),
          P('s_lshl_b32 s%d, s52, 1' % sG), P('s_add_u32 s%d, s%d, s54' % (sG, sG)),
          P('s_and_b32 s%d, s53, 15' % sM))
        if cfg.get('cross_groups'):
            o(P('s_lshr_b32 s%d, s2, 4' % sG), P('s_and_b32 s%d, s2, 15' % sM))
        o(P('v_lshrrev_b32 v252, 6, v0'), P('s_nop 0'), P('v_readfirstlane_b32 s%d, v252' % sW),
          P('v_and_b32 v%d, 63, v0' % vLANE))
        o(P('s_lshr_b32 s%d, s%d, 3' % (sTH, sM)), P('s_and_b32 s%d, s%d, 7' % (sCT, sM)))
        o(P('s_mov_b32 s%d, 0' % sRND), P('s_mov_b32 s%d, 0' % sMODE))
        I = 250; Gq = 251; RR = 249; I3 = 248; t0 = 252; t1 = 253; t2 = 254; t3 = 255
        o(P('v_lshlrev_b32 v%d, 4, v%d' % (vL16, vLANE)),
          P('v_and_b32 v%d, 15, v%d' % (I, vLANE)), P('v_lshrrev_b32 v%d, 4, v%d' % (Gq, vLANE)),
          P('v_lshrrev_b32 v%d, 2, v%d' % (t0, I)), P('v_lshl_add_u32 v%d, v%d, 2, v%d' % (RR, Gq, t0)),
          P('v_and_b32 v%d, 3, v%d' % (I3, I)))
        o(P('s_waitcnt lgkmcnt(0)'))
        def srd(dst, src, size):
            return [P('s_mov_b32 s%d, s%d' % (dst, src)), P('s_and_b32 s%d, s%d, 0xffff' % (dst + 1, src + 1)),
                    P('s_mov_b32 s%d, 0x%x' % (dst + 2, size)), P('s_mov_b32 s%d, 0x20000' % (dst + 3))]
        o(srd(SRD_X, 72, 2097152), srd(SRD_WQ, 74, 512 * 3072), srd(SRD_WO, 76, 524288), srd(SRD_W1, 80, 512 * 3584),
          srd(SRD_B1, 82, 3584), srd(SRD_W2, 84, 1792 * 1024), srd(SRD_OUT, 86, 2097152),
          srd(SRD_DBG, 88, 256), srd(SRD_WS, 90, WS_SIZE))
        o(P('s_mul_i32 s%d, s%d, 49152' % (sWQ_SRC, sW)), P('s_lshl_b32 s52, s%d, 6' % sM),
          P('s_add_u32 s%d, s%d, s52' % (sWQ_SRC, sWQ_SRC)),
          P('s_lshl_b32 s%d, s%d, 10' % (sW1K, sW)),
          P('s_lshl_b32 s%d, s%d, 13' % (sWO_SRC, sW)), P('s_lshl_b32 s52, s%d, 7' % sCT),
          P('s_add_u32 s%d, s%d, s52' % (sWO_SRC, sWO_SRC)),
          P('s_mul_i32 s%d, s%d, %d' % (sW1_SRC, sW, 32 * 3584)), P('s_mul_i32 s52, s%d, 224' % sM),
          P('s_add_u32 s%d, s%d, s52' % (sW1_SRC, sW1_SRC)),
          P('s_mul_i32 s%d, s%d, 7168' % (sW1_M, sW)),
          P('s_lshl_b32 s%d, s%d, 17' % (sGBASE, sG)),
          P('s_lshl_b32 s%d, s%d, 8' % (sGFLG, sG)),
          P('s_lshl_b32 s52, s%d, 2' % sM), P('s_add_u32 s52, s52, s%d' % sW), P('s_lshl_b32 s52, s52, 2'),
          P('s_add_u32 s%d, s%d, s52' % (sFLGOFF, sGFLG)),
          P('s_lshl_b32 s52, s%d, 2' % sTH), P('s_add_u32 s%d, s52, s%d' % (sTB, sW)))
        if cfg.get('ts'):
            o(P('s_lshl_b32 s52, s2, 2'), P('s_add_u32 s52, s52, s%d' % sW), P('s_lshl_b32 s52, s52, 8'),
              P('s_add_u32 s%d, s52, %d' % (sTSO, 0x1F80000)))
        o(P('v_lshrrev_b32 v%d, 2, v%d' % (t0, vLANE)), P('v_lshrrev_b32 v%d, 2, v%d' % (t1, t0)),
          P('v_xor_b32 v%d, v%d, v%d' % (t1, t1, vLANE)), P('v_and_b32 v%d, 3, v%d' % (t1, t1)),
          P('v_lshlrev_b32 v%d, 4, v%d' % (t1, t1)),
          P('v_lshl_add_u32 v%d, v%d, 11, v%d' % (vDX, t0, t1)))
        o(P('v_lshlrev_b32 v%d, 1, v%d' % (t2, t0)), P('v_add_u32 v%d, 16, v%d' % (t3, t2)), P('v_add_u32 v%d, 1, v%d' % (t2, t2)),
          P('v_cmp_gt_u32 vcc, 8, v%d' % t0), P('v_cndmask_b32 v%d, v%d, v%d, vcc' % (t2, t2, t3)),
          P('v_lshl_add_u32 v%d, v%d, 10, v%d' % (vDH, t2, t1)))
        o(P('s_lshl_b32 s52, s%d, 7' % sG),
          P('s_sub_u32 s53, s52, 32'), P('s_lshl_b32 s%d, s53, 10' % sHSRC),
          P('s_cmp_eq_u32 s%d, 0' % sG), P('s_cselect_b32 s%d, 0, s%d' % (sHSRC, sHSRC)),
          P('s_cselect_b32 s53, 0x40000000, 0'), P('v_or_b32 v%d, s53, v%d' % (vDH, vDH)))
        for b in range(2):
            o(P('s_lshl_b32 s53, s%d, 1' % sW), P('s_add_u32 s53, s53, %d' % b), P('s_and_b32 s53, s53, 3'),
              P('s_lshl_b32 s53, s53, 5'), P('s_add_u32 s53, s53, s52'), P('s_lshr_b32 s54, s%d, 1' % sW),
              P('s_add_u32 s53, s53, s54'), P('s_lshl_b32 s%d, s53, 10' % (sXR0 + b)))
        o(P('v_lshrrev_b32 v%d, 4, v%d' % (t1, vLANE)), P('v_lshrrev_b32 v%d, 1, v%d' % (t2, vLANE)),
          P('v_xor_b32 v%d, v%d, v%d' % (t1, t1, t2)), P('v_and_b32 v%d, 1, v%d' % (t1, t1)),
          P('v_lshlrev_b32 v%d, 5, v%d' % (t1, t1)), P('v_and_b32 v%d, 1, v%d' % (t2, vLANE)),
          P('v_lshl_add_u32 v%d, v%d, 4, v%d' % (t1, t2, t1)),
          P('v_mul_u32_u24 v%d, 3072, v%d' % (t2, t0)), P('v_add_u32 v%d, v%d, v%d' % (vDQ, t1, t2)))
        self.tag_init = newtag('init')
        o(P('v_mov_b32 v%d, 0' % t1), P('s_mov_b64 exec, 1'),
          VM('buffer_store_dword v%d, v%d, s[28:31], s%d offen sc1' % (t1, t1, sFLGOFF), self.tag_init),
          P('s_mov_b64 exec, -1'))
        o(P('s_lshl_b32 s%d, s%d, 11' % (sD, sW)))
        self.xslot = {}
        for j in range(5):
            self.xslot[j] = self.x_ring_dma(j)
            o(self.xslot[j])
        self.wq_q = {}
        self.wq_q[0] = self.dma_wq_quarter(0); o(self.wq_q[0])
        self.halo_dma = []
        for a in range(4):
            d = [P('s_lshl_b32 s53, s%d, 6' % sW), P('s_add_u32 s53, s53, s%d' % sHSRC)] + \
                self.dma(SRD_X, vDH, 53, a * 256, sW1K, L_HALO + a * 4096)
            self.halo_dma.append(d); o(d)
        self.wq_q[1] = self.dma_wq_quarter(1); o(self.wq_q[1])
        o(P('s_lshl_b32 s52, s%d, 7' % sG), P('s_lshl_b32 s53, s%d, 5' % sW), P('s_add_u32 s53, s53, s52'), P('s_add_u32 s53, s53, s%d' % sTH),
          P('s_lshl_b32 s53, s53, 10'), P('s_lshl_b32 s54, s%d, 7' % sCT), P('s_add_u32 s53, s53, s54'),
          P('v_lshlrev_b32 v%d, 11, v%d' % (t1, I)), P('v_lshl_add_u32 v%d, v%d, 3, v%d' % (t1, Gq, t1)))
        self.tag_res = []
        for fb in range(4):
            t = newtag('res'); self.tag_res.append(t)
            o(VM('buffer_load_dwordx2 v[%d:%d], v%d, s[8:11], s53 offen offset:%d' % (vR + 2 * fb, vR + 2 * fb + 1, t1, fb * 32), t))
        o(P('v_and_b32 v%d, 1, v%d' % (t2, Gq)), P('v_lshlrev_b32 v%d, 5, v%d' % (t2, t2)),
          P('v_lshrrev_b32 v%d, 1, v%d' % (t3, Gq)), P('v_lshl_add_u32 v%d, v%d, 4, v%d' % (t2, t3, t2)),
          P('v_lshl_add_u32 v%d, v%d, 11, v%d' % (vOUT, I, t2)),
          P('s_mov_b32 s%d, s53' % 61))
        self.tag_b1 = newtag('b1')
        o(P('v_lshlrev_b32 v%d, 2, v%d' % (t1, vLANE)), P('s_mul_i32 s53, s%d, 224' % sM),
          VM('buffer_load_dword v%d, v%d, s[40:43], s53 offen' % (247, t1), self.tag_b1))
        for k in range(4):
            o(P('v_mov_b32 v%d, 0x3f803f80' % (vONES + k)))
        o(P('s_mov_b32 s%d, 1.0' % sONE), P('s_mov_b32 s%d, 1.0' % (sONE + 1)),
          P('s_mov_b32 s%d, %s' % (sM2L, f32(-2 * LN2))), P('s_mov_b32 s%d, %s' % (sM2L + 1, f32(-2 * LN2))),
          P('v_mov_b32 v%d, %s' % (vLN2, f32(LN2))), P('v_mov_b32 v%d, %s' % (vLN2 + 1, f32(LN2))))
        o(P('v_lshlrev_b32 v%d, 6, v%d' % (t0, RR)), P('v_lshl_add_u32 v%d, v%d, 3, v%d' % (t0, I3, t0)),
          P('v_add_u32 v%d, %d, v%d' % (t0, L_W, t0)),
          P('v_and_b32 v%d, 1, v%d' % (t1, Gq)), P('v_lshlrev_b32 v%d, 5, v%d' % (t1, t1)),
          P('v_add_u32 v%d, v%d, v%d' % (vWQA, t0, t1)),
          P('v_xor_b32 v%d, 32, v%d' % (t2, t1)), P('v_add_u32 v%d, v%d, v%d' % (vWQA + 1, t0, t2)),
          P('v_add_u32 v%d, 0x10000, v%d' % (vWQA + 2, vWQA)), P('v_add_u32 v%d, 0x10000, v%d' % (vWQA + 3, vWQA + 1)))
        o(P('s_and_b32 s53, s%d, 1' % sW), P('s_lshl_b32 s53, s53, 5'), P('v_xor_b32 v%d, s53, v%d' % (t2, t1)),
          P('v_add_u32 v%d, v%d, v%d' % (vE2, t0, t2)),
          P('s_lshr_b32 s53, s%d, 1' % sW), P('s_add_u32 s53, s53, 1'), P('s_lshl_b32 s53, s53, 15'),
          P('v_add_u32 v%d, s53, v%d' % (vE1, vE2)))
        o(P('v_lshrrev_b32 v%d, 1, v%d' % (t0, Gq)), P('v_lshrrev_b32 v%d, 2, v%d' % (t1, I)),
          P('v_xor_b32 v%d, v%d, v%d' % (t0, t0, t1)), P('v_lshlrev_b32 v%d, 4, v%d' % (t0, t0)),
          P('v_lshl_add_u32 v%d, v%d, 6, v%d' % (t0, I, t0)),
          P('v_and_b32 v%d, 1, v%d' % (t1, Gq)), P('v_lshl_add_u32 v%d, v%d, 3, v%d' % (t0, t1, t0)),
          P('v_add_u32 v%d, %d, v%d' % (vHXA, L_HALO, t0)), P('v_xor_b32 v%d, 32, v%d' % (vHXB, vHXA)),
          P('s_lshl_b32 s53, s%d, 11' % sW), P('s_add_u32 s53, s53, %d' % L_RING),
          P('v_add_u32 v%d, s53, v%d' % (vXA, t0)), P('v_xor_b32 v%d, 32, v%d' % (vXB, vXA)))
        o(P('v_mul_u32_u24 v%d, 224, v%d' % (t0, RR)), P('v_lshl_add_u32 v%d, v%d, 3, v%d' % (vW1A, I3, t0)),
          P('v_add_u32 v%d, 0x10000, v%d' % (vW1A + 1, vW1A)), P('v_add_u32 v%d, 0x20000, v%d' % (vW1A + 2, vW1A)))
        o(P('v_lshlrev_b32 v%d, 7, v%d' % (t0, RR)), P('v_lshl_add_u32 v%d, v%d, 3, v%d' % (t0, I3, t0)),
          P('s_and_b32 s53, s%d, 1' % sW), P('s_lshl_b32 s53, s53, 12'), P('s_add_u32 s53, s53, %d' % L_W),
          P('v_add_u32 v%d, s53, v%d' % (t0, t0)),
          P('v_lshrrev_b32 v%d, 1, v%d' % (t1, RR)), P('v_and_b32 v%d, 3, v%d' % (t1, t1)))
        for fb in range(4):
            o(P('v_xor_b32 v%d, %d, v%d' % (t2, fb, t1)), P('v_lshl_add_u32 v%d, v%d, 5, v%d' % (vW2A + fb * 3, t2, t0)),
              P('v_add_u32 v%d, 0x10000, v%d' % (vW2A + fb * 3 + 1, vW2A + fb * 3)),
              P('v_add_u32 v%d, 0x20000, v%d' % (vW2A + fb * 3 + 2, vW2A + fb * 3)))
        o(P('v_lshrrev_b32 v%d, 3, v%d' % (t0, vLANE)), P('v_lshrrev_b32 v%d, 1, v%d' % (t1, t0)),
          P('v_lshrrev_b32 v%d, 1, v%d' % (t2, vLANE)), P('v_xor_b32 v%d, v%d, v%d' % (t1, t1, t2)),
          P('v_and_b32 v%d, 3, v%d' % (t1, t1)), P('v_lshlrev_b32 v%d, 5, v%d' % (t1, t1)),
          P('v_and_b32 v%d, 1, v%d' % (t2, vLANE)), P('v_lshl_add_u32 v%d, v%d, 4, v%d' % (t1, t2, t1)),
          P('v_lshl_add_u32 v%d, v%d, 10, v%d' % (vDO, t0, t1)))
        for c in range(448):
            assert (c * 4682) >> 16 == c // 14
        for u in range(7):
            o(P('v_add_u32 v%d, %d, v%d' % (t0, 64 * u, vLANE)), P('v_mul_u32_u24 v%d, 4682, v%d' % (t1, t0)),
              P('v_lshrrev_b32 v%d, 16, v%d' % (t1, t1)), P('v_mul_u32_u24 v%d, 14, v%d' % (t2, t1)),
              P('v_sub_u32 v%d, v%d, v%d' % (t2, t0, t2)), P('v_lshlrev_b32 v%d, 4, v%d' % (t2, t2)),
              P('v_mul_u32_u24 v%d, 3584, v%d' % (t1, t1)), P('v_add_u32 v%d, v%d, v%d' % (vD1 + u, t1, t2)))
        o(P('v_lshlrev_b32 v%d, 4, v%d' % (vCS, Gq)))
        NEG = f32(-1e30)
        o(P('v_mov_b32 v%d, %s' % (t3, NEG)))
        for r in range(4):
            o(P('v_lshl_add_u32 v%d, v%d, 2, %d' % (t0, Gq, r)),
              P('v_sub_u32 v%d, v%d, v%d' % (t1, I, t0)), P('v_cmp_gt_u32 vcc, 8, v%d' % t1),
              P('v_cndmask_b32 v%d, v%d, 0, vcc' % (vCCUR + r, t3)) if False else None,
              P('v_cndmask_b32_e64 v%d, v%d, 0, vcc' % (vCCUR + r, t3)),
              P('v_add_u32 v%d, 9, v%d' % (t1, I)), P('v_cmp_ge_u32 vcc, v%d, v%d' % (t0, t1)),
              P('v_cndmask_b32_e64 v%d, v%d, 0, vcc' % (vCPREV + r, t3)))
        o(P('s_and_b32 s53, s%d, 1' % sW), P('s_or_b32 s53, s53, s%d' % sG), P('s_cmp_eq_u32 s53, 0'),
          P('s_cselect_b64 vcc, -1, 0'))
        for r in range(4):
            o(P('v_cndmask_b32 v%d, v%d, v%d, vcc' % (vCPA + r, vCPREV + r, t3)))
        o(P('v_lshlrev_b32 v%d, 2, v%d' % (t0, Gq)), P('v_add_u32 v%d, 6, v%d' % (t1, I)),
          P('v_cmp_ge_u32 s[%d:%d], v%d, v%d' % (sUP, sUP + 1, t0, t1)))
        o(P('v_cmp_eq_u32 s[%d:%d], 1, v%d' % (sMA, sMA + 1, I3)), P('v_cmp_eq_u32 s[%d:%d], 2, v%d' % (sMB, sMB + 1, I3)),
          P('v_cmp_eq_u32 s[%d:%d], 3, v%d' % (sMC, sMC + 1, I3)), P('v_lshrrev_b32 v%d, 2, v%d' % (t0, I)),
          P('v_cmp_eq_u32 s[%d:%d], v%d, v%d' % (sMD, sMD + 1, t0, Gq)))
        o(P('v_lshlrev_b32 v%d, 5, v%d' % (t0, I)), P('v_lshl_add_u32 v%d, v%d, 3, v%d' % (t0, Gq, t0)),
          P('s_lshl_b32 s53, s%d, 11' % sW), P('s_add_u32 s53, s53, %d' % L_EX),
          P('v_add_u32 v%d, s53, v%d' % (vEXV, t0)))
        o(P('s_lshr_b32 s53, s%d, 1' % sW), P('s_add_u32 s54, s53, 3'), P('s_bitcmp1_b32 s%d, 0' % sW),
          P('s_cselect_b32 s53, s54, s53'), P('s_lshl_b32 s53, s53, 10'), P('s_add_u32 s53, s53, %d' % L_EXK),
          P('v_lshlrev_b32 v%d, 3, v%d' % (t1, vLANE)), P('v_add_u32 v%d, s53, v%d' % (vEXK, t1)))
        o(P('s_and_b32 s53, s%d, 1' % sW), P('s_lshl_b32 s53, s53, 9'),
          P('s_add_u32 s54, s53, %d' % (L_EXK + 2048)), P('v_add_u32 v%d, s54, v%d' % (t2, t1)),
          P('s_add_u32 s54, s53, %d' % (L_EX + 8192)), P('v_add_u32 v%d, s54, v%d' % (t3, t0)),
          P('s_cmp_ge_u32 s%d, 2' % sW), P('s_cselect_b64 vcc, -1, 0'),
          P('v_cndmask_b32 v%d, v%d, v%d, vcc' % (vEXH, t2, t3)))
        o(P('v_lshlrev_b32 v%d, 5, v%d' % (t0, RR)), P('v_lshl_add_u32 v%d, v%d, 3, v%d' % (t0, I3, t0)),
          P('s_lshl_b32 s53, s%d, 11' % sW), P('s_add_u32 s53, s53, %d' % L_EX), P('v_add_u32 v%d, s53, v%d' % (vRV, t0)))
        o(P('v_subrev_u32 v%d, 1024, v%d' % (t1, vRV)),
          P('v_add_u32 v%d, %d, v%d' % (t2, L_EX + 8192, t0)),
          P('v_subrev_u32 v%d, 256, v%d' % (t3, t2)),
          P('v_cmp_le_u32 vcc, 8, v%d' % RR), P('v_cndmask_b32 v%d, v%d, v%d, vcc' % (t3, t2, t3)),
          P('s_cmp_eq_u32 s%d, 0' % sW), P('s_cselect_b64 vcc, -1, 0'), P('v_cndmask_b32 v%d, v%d, v%d, vcc' % (t2, t2, t3)),
          P('s_bitcmp1_b32 s%d, 0' % sW), P('s_cselect_b64 vcc, -1, 0'), P('v_cndmask_b32 v%d, v%d, v%d, vcc' % (vRVP, t2, t1)))
        o(P('v_lshlrev_b32 v%d, 3, v%d' % (t0, vLANE)),
          P('s_lshr_b32 s53, s%d, 1' % sW), P('s_bitcmp1_b32 s%d, 0' % sW), P('s_cselect_b32 s53, s53, 2'),
          P('s_lshl_b32 s53, s53, 10'), P('s_add_u32 s53, s53, %d' % L_EXK), P('v_add_u32 v%d, s53, v%d' % (t0, t0)),
          P('v_subrev_u32 v%d, 64, v%d' % (t1, t0)), P('v_cmp_le_u32 vcc, 8, v%d' % I),
          P('v_cndmask_b32 v%d, v%d, v%d, vcc' % (t1, t0, t1)),
          P('s_cmp_eq_u32 s%d, 0' % sW), P('s_cselect_b64 vcc, -1, 0'), P('v_cndmask_b32 v%d, v%d, v%d, vcc' % (vRK, t0, t1)))
        o(P('s_lshl_b32 s53, s%d, 12' % sW), P('v_add_u32 v%d, s53, v%d' % (vEXBW, vL16)),
          P('v_xor_b32 v%d, 0x1000, v%d' % (vEXBR, vEXBW)))
        o(P('s_lshr_b32 s53, s%d, 1' % sCT), P('s_lshl_b32 s53, s53, 8'), P('s_and_b32 s54, s%d, 1' % sCT),
          P('s_lshl_b32 s54, s54, 3'), P('s_add_u32 s53, s53, s54'),
          P('v_lshlrev_b32 v%d, 4, v%d' % (t0, I)), P('v_add_u32 v%d, s53, v%d' % (vSTO, t0)))
        o(P('s_cmp_eq_u32 s%d, 0' % sTH), P('s_cselect_b32 s54, 8, 0'),
          P('v_subrev_u32 v%d, s54, v%d' % (t0, I)),
          P('v_lshl_add_u32 v%d, v%d, 4, v%d' % (t1, Gq, t0)), P('v_lshlrev_b32 v%d, 4, v%d' % (t1, t1)),
          P('v_lshlrev_b32 v%d, 4, v%d' % (t2, t0)), P('v_add_u32 v%d, s53, v%d' % (t2, t2)),
          P('s_cmp_eq_u32 s%d, 3' % sW), P('s_cselect_b32 s53, 0, 0x40000000'),
          P('s_cmp_eq_u32 s%d, 15' % sG), P('s_cselect_b32 s53, 0x40000000, s53'),
          P('v_mov_b32 v%d, 0x40000000' % t3), P('v_cmp_le_u32 vcc, 8, v%d' % I),
          P('v_cndmask_b32 v%d, v%d, v%d, vcc' % (t1, t3, t1)), P('v_cndmask_b32 v%d, v%d, v%d, vcc' % (t2, t3, t2)),
          P('v_or_b32 v%d, s53, v%d' % (vHOF, t1)), P('v_or_b32 v%d, s53, v%d' % (vHST, t2)))
        o(P('s_mul_i32 s53, s%d, s%d' % (sXCC, sXCC)), P('s_lshl_b32 s53, s53, 13'), P('s_lshl_b32 s54, s%d, 5' % sXCC),
          P('s_add_u32 s53, s53, s54'), P('s_add_u32 s53, s53, 1'), P('s_mov_b32 s%d, s53' % sB),
          P('s_lshr_b32 s53, s%d, 1' % sG), P('s_lshl_b32 s53, s53, 5'), P('s_and_b32 s54, s%d, 1' % sG),
          P('s_lshl_b32 s54, s54, 2'), P('s_add_u32 s%d, s53, s54' % sC))

    def x_ring_dma(self, j):
        out = []
        for b in range(2):
            out.append(self.dma(SRD_X, vDX, sXR0 + b, j * 64, sD, L_RING + (j % 5) * 8192 + b * 1024))
        return out

    @staticmethod
    def vmtags(ops):
        t = []
        for x in ops:
            if isinstance(x, (list, tuple)):
                t += Gen.vmtags(x)
            elif x is not None and not isinstance(x, str) and x.kind == 'vm':
                t.append(x.tag)
        return t

    def finish_stats(self, s1, s2, pair_kv, pair_q=None, scale=None):
        t = vT + 80
        o = [P('v_mul_f32 v%d, %s, v%d' % (t, f32(1 / 512), s1)),
             P('v_mul_f32 v%d, %s, v%d' % (t + 1, f32(1 / 512), s2)),
             P('v_fma_f32 v%d, -v%d, v%d, v%d' % (t + 1, t, t, t + 1)),
             P('v_max_f32 v%d, 0, v%d' % (t + 1, t + 1)),
             P('v_add_f32 v%d, %s, v%d' % (t + 1, f32(1e-5), t + 1)),
             P('v_rsq_f32 v%d, v%d' % (pair_kv, t + 1))]
        if scale is not None:
            o.append(P('v_mul_f32 v%d, %s, v%d' % (pair_kv, f32(scale), pair_kv)))
        o.append(P('v_mul_f32 v%d, -v%d, v%d' % (pair_kv + 1, t, pair_kv)))
        if pair_q is not None:
            qs = f32(0.25 * LOG2E)
            o += [P('v_mul_f32 v%d, %s, v%d' % (pair_q, qs, pair_kv)), P('v_mul_f32 v%d, %s, v%d' % (pair_q + 1, qs, pair_kv + 1))]
        return o

    def reduce_g2(self, a, b):
        t = vT + 84
        return [P('v_permlane32_swap_b32 v%d, v%d' % (a, b)), P('v_add_f32 v%d, v%d, v%d' % (a, a, b)),
                P('v_mov_b32 v%d, v%d' % (t, a)), P('v_permlane16_swap_b32 v%d, v%d' % (a, t)),
                P('v_add_f32 v%d, v%d, v%d' % (a, a, t)), P('v_mov_b32 v%d, v%d' % (b, a)),
                P('v_permlane32_swap_b32 v%d, v%d' % (a, b))]

    def stats_from_st(self, regs, pair_kv, pair_q=None, scale=None):
        return [P('v_add_f32 v%d, v%d, v%d' % (regs, regs, regs + 2)), P('v_add_f32 v%d, v%d, v%d' % (regs + 1, regs + 1, regs + 3))] + \
            self.reduce_g2(regs, regs + 1) + self.finish_stats(regs, regs + 1, pair_kv, pair_q, scale)

    def accP1(self, blk, tb):
        return vACC + (blk * 2 + tb) * 4
    ACC_H = vACC + 48
    ACC_CS1 = vACC + 52
    ACC_CS2 = vACC + 56
    PKV = [vT + 0, vT + 2]; PQ = [vT + 4, vT + 6]; PH = vT + 8

    def wq_read(self, blk, j, part, dst):
        p = blk // 2; h = blk % 2
        if p < 2:
            return LG('ds_read_b64_tr_b16 v[%d:%d], v%d offset:%d' % (dst + 2 * part, dst + 2 * part + 1, vWQA + h, p * 32768 + j * 2048 + part * 1024))
        return LG('ds_read_b64_tr_b16 v[%d:%d], v%d offset:%d' % (dst + 2 * part, dst + 2 * part + 1, vWQA + 2 + h, j * 2048 + part * 1024))

    def p1a(self):
        o = self.add
        XB = vT + 12
        S1 = vT + 36
        S2 = vT + 48
        def xb(j, b): return XB + (j & 1) * 12 + b * 4
        xr_tags = {}
        def xreads(j):
            ops = []
            for b in range(2):
                ops.append(LG('ds_read_b64 v[%d:%d], v%d offset:%d' % (xb(j, b), xb(j, b) + 1, vXA, (j % 5) * 8192 + b * 1024)))
                ops.append(LG('ds_read_b64 v[%d:%d], v%d offset:%d' % (xb(j, b) + 2, xb(j, b) + 3, vXB, (j % 5) * 8192 + b * 1024)))
            ops.append(LG('ds_read_b64 v[%d:%d], v%d offset:%d' % (xb(j, 2), xb(j, 2) + 1, vHXA, j * 1024)))
            ops.append(LG('ds_read_b64 v[%d:%d], v%d offset:%d' % (xb(j, 2) + 2, xb(j, 2) + 3, vHXB, j * 1024)))
            xr_tags[j] = [x.tag for x in ops]
            return ops
        groups = []
        n = 0
        extras = []
        for j in range(5, 16):
            self.xslot[j] = self.x_ring_dma(j)
        for q in (2, 3):
            self.wq_q[q] = self.dma_wq_quarter(q)
        mfidx = 0
        first_idx = {}
        for j in range(16):
            first_idx[j] = mfidx
            z = (j == 0)
            for blk in range(8):
                dst = self.afrag(n); n += 1
                g = dict(pre=[], reads=[], mf=[])
                if blk == 0:
                    if j % 4 == 0:
                        q = j // 4
                        wt = self.vmtags(self.wq_q[q])
                        if j == 0:
                            wt += self.vmtags(self.halo_dma)
                        g['pre'] += [W(wt), P('s_barrier')]
                    g['pre'] += [W(self.vmtags(self.xslot[j]))]
                    g['reads'] += xreads(j)
                if blk < 6:
                    g['reads'] += [self.wq_read(blk, j, 0, dst), self.wq_read(blk, j, 1, dst)]
                    for tb in range(2):
                        acc = self.accP1(blk, tb)
                        c = '0' if z else vr(acc, 4)
                        g['mf'].append(('v_mfma_f32_16x16x32_bf16 %s, %s, %s, %s' % (vr(acc, 4), vr(dst, 4), vr(xb(j, tb), 4), c), []))
                    if blk in (1, 3, 5):
                        b = blk // 2
                        for (accb, A) in ((S1 + b * 4, vONES), (S2 + b * 4, xb(j, b))):
                            c = '0' if z else vr(accb, 4)
                            g['mf'].append(('v_mfma_f32_16x16x32_bf16 %s, %s, %s, %s' % (vr(accb, 4), vr(A, 4), vr(xb(j, b), 4), c), []))
                else:
                    base = vE1 if blk == 6 else vE2
                    g['reads'] += [LG('ds_read_b64_tr_b16 v[%d:%d], v%d offset:%d' % (dst + 2 * part, dst + 2 * part + 1, base, j * 2048 + part * 1024)) for part in range(2)]
                    if blk == 6:
                        c = '0' if z else vr(self.ACC_H, 4)
                        g['mf'].append(('v_mfma_f32_16x16x32_bf16 %s, %s, %s, %s' % (vr(self.ACC_H, 4), vr(dst, 4), vr(xb(j, 2), 4), c), []))
                        c = '0' if z else vr(self.ACC_CS1, 4)
                        g['mf'].append(('v_mfma_f32_16x16x32_bf16 %s, %s, %s, %s' % (vr(self.ACC_CS1, 4), vr(dst, 4), vr(vONES, 4), c), []))
                    else:
                        c = '0' if z else vr(self.ACC_CS2, 4)
                        g['mf'].append(('v_mfma_f32_16x16x32_bf16 %s, %s, %s, %s' % (vr(self.ACC_CS2, 4), vr(dst, 4), vr(vONES, 4), c), []))
                mfidx += len(g['mf'])
                groups.append(g)
        for j in range(11):
            for b, d in enumerate(self.xslot[j + 5]):
                extras.append((first_idx[j] + 2 + 2 * b, d))
        for k, d in enumerate(self.wq_q[2]):
            extras.append((first_idx[k // 2] + 8 + 4 * (k % 2), d))
        for k, d in enumerate(self.wq_q[3]):
            extras.append((first_idx[3 + k // 2] + 8 + 4 * (k % 2), d))
        reg = [W(self.tag_init), P('v_mov_b32 v%d, s%d' % (vTA, sB)), P('v_mov_b32 v%d, s%d' % (vTB, sC)),
               P('s_cmp_eq_u32 s%d, 0' % sW), P('s_cselect_b32 s53, 0, 0x40000000'),
               P('v_or_b32 v%d, s53, v%d' % (vTB, vTB)),
               P('s_mov_b64 exec, 1'),
               VM('buffer_atomic_add v%d, v%d, s[36:39], 0 offen' % (vTA, vTB)),
               P('s_mov_b64 exec, -1')]
        extras.append((first_idx[4] + 3, reg))
        groups[8 * 4]['pre'] = [W(self.tag_init)] + groups[8 * 4]['pre']
        o(self.gemm_loop(groups, self.cfg.get('la_p1a', 3), extras))
        t0 = 252; t1 = 253
        o(W(self.tag_b1), P('v_lshlrev_b32 v%d, 16, v247' % t0), P('v_and_b32 v%d, 0xffff0000, v247' % t1),
          P('v_mul_f32 v%d, %s, v%d' % (t0, f32(LOG2E), t0)), P('v_mul_f32 v%d, %s, v%d' % (t1, f32(LOG2E), t1)),
          P('v_lshlrev_b32 v%d, 3, v%d' % (vTA, vLANE)),
          P('s_mov_b32 exec_hi, 0x00ffffff'),
          LG('ds_write_b64 v%d, v[%d:%d] offset:%d' % (vTA, t0, t1, L_BB1)),
          P('s_mov_b64 exec, -1'))
        o(P('s_add_u32 s53, s%d, 2' % sW), P('s_lshl_b32 s53, s53, 6'), P('v_add_u32 v%d, s53, v%d' % (vTA, vCS)),
          P('s_and_b32 s53, s%d, 1' % sW), P('s_lshl_b32 s53, s53, 6'), P('v_add_u32 v%d, s53, v%d' % (vTB, vCS)),
          P('s_mov_b32 s52, 0x00010001'), P('s_mov_b32 s53, 0x00010001'), P('s_mov_b64 exec, s[52:53]'),
          LG('ds_write_b128 v%d, %s offset:%d' % (vTA, vr(self.ACC_CS1, 4), L_CSQ)),
          LG('ds_write_b128 v%d, %s offset:%d' % (vTB, vr(self.ACC_CS2, 4), L_CSQ)),
          P('s_mov_b64 exec, -1'))
        for b in range(3):
            s2 = S2 + b * 4
            o(P('v_cndmask_b32_e64 v%d, v%d, v%d, s[%d:%d]' % (s2, s2, s2 + 1, sMA, sMA + 1)),
              P('v_cndmask_b32_e64 v%d, v%d, v%d, s[%d:%d]' % (s2, s2, s2 + 2, sMB, sMB + 1)),
              P('v_cndmask_b32_e64 v%d, v%d, v%d, s[%d:%d]' % (s2, s2, s2 + 3, sMC, sMC + 1)),
              P('v_cndmask_b32_e64 v%d, 0, v%d, s[%d:%d]' % (s2, s2, sMD, sMD + 1)))
            t = s2 + 1
            o(P('v_mov_b32 v%d, v%d' % (t, s2)), P('v_permlane32_swap_b32 v%d, v%d' % (s2, t)),
              P('v_add_f32 v%d, v%d, v%d' % (s2, s2, t)), P('v_mov_b32 v%d, v%d' % (t, s2)),
              P('v_permlane16_swap_b32 v%d, v%d' % (s2, t)), P('v_add_f32 v%d, v%d, v%d' % (s2, s2, t)))
            if b < 2:
                o(self.finish_stats(S1 + b * 4, s2, self.PKV[b], self.PQ[b]))
            else:
                o(self.finish_stats(S1 + b * 4, s2, self.PH))
        o(WALL(False, True), P('s_barrier'))

    def p1b(self):
        o = self.add
        for b in range(2):
            o(P('s_lshl_b32 s53, s%d, 1' % sW), P('s_add_u32 s53, s53, %d' % b), P('s_lshl_b32 s53, s53, 14'),
              P('s_add_u32 s53, s53, s%d' % sGBASE), P('s_add_u32 s%d, s53, %d' % (sB0 + b, WS_XF + 1 * XF_K)))
        stt = []
        STR = vT + 12
        for b in range(2):
            t = newtag('st'); stt.append(t)
            o(P('s_lshl_b32 s53, s%d, 13' % sG), P('s_lshl_b32 s54, s%d, 11' % sW), P('s_add_u32 s53, s53, s54'),
              P('s_add_u32 s53, s53, %d' % (WS_ST + 1 * ST_K + b * 1024)),
              VM('buffer_load_dwordx4 %s, v%d, s[28:31], s53 offen sc1' % (vr(STR + 4 * b, 4), vL16), t))
        xl = self.x_loads(16)
        pro = self.cfg.get('x_pro', 4)
        for j in range(pro):
            o(xl[j])
        o(W(stt))
        for b in range(2):
            o(self.stats_from_st(STR + 4 * b, self.PKV[b], self.PQ[b]))
        groups = []; n = 0; first_idx = {}; mfidx = 0
        for j in range(16):
            first_idx[j] = mfidx
            for blk in range(6):
                dst = self.afrag(n); n += 1
                g = dict(pre=[], reads=[self.wq_read(blk, j, 0, dst), self.wq_read(blk, j, 1, dst)], mf=[])
                for tb in range(2):
                    acc = self.accP1(blk, tb)
                    c = '0' if j == 0 else vr(acc, 4)
                    wt = self.vmtags(xl[j][tb]) if blk == 0 else []
                    g['mf'].append(('v_mfma_f32_16x16x32_bf16 %s, %s, %s, %s' % (vr(acc, 4), vr(dst, 4), ar((j * 2 + tb) * 4, 4), c), wt))
                mfidx += 2
                groups.append(g)
        extras = []
        k = 0
        for j in range(pro, 16):
            for b in range(2):
                extras.append((first_idx[k // 3] + 1 + 4 * (k % 3), xl[j][b])); k += 1
        hp = [W(self.halo_store_tags), P('v_mov_b32 v%d, 1' % vTA),
              P('s_cmp_eq_u32 s%d, 3' % sW), P('s_cselect_b32 s53, 0, 0x40000000'),
              P('s_cmp_eq_u32 s%d, 15' % sG), P('s_cselect_b32 s53, 0x40000000, s53'),
              P('s_add_u32 s54, s%d, 1' % sG), P('s_lshr_b32 s52, s54, 1'), P('s_lshl_b32 s52, s52, 5'),
              P('s_and_b32 s54, s54, 1'), P('s_lshl_b32 s54, s54, 2'), P('s_add_u32 s52, s52, s54'),
              P('s_add_u32 s52, s52, 8'), P('s_or_b32 s53, s53, s52'),
              P('v_mov_b32 v%d, s53' % vTB),
              P('s_mov_b64 exec, 1'),
              VM('buffer_atomic_add v%d, v%d, s[36:39], 0 offen' % (vTA, vTB)),
              P('s_mov_b64 exec, -1')]
        extras.append((first_idx[1] + 2, hp))
        HB = vT + 40
        HS = vT + 56
        spin = self.L('hsp'); hok = self.L('hok')
        htags = [newtag('h') for _ in range(5)]
        hl = [P('s_cmp_eq_u32 s%d, 0' % sG), P('s_cbranch_scc1 %s' % hok),
              P('v_mov_b32 v%d, 0' % vTB),
              P('s_lshr_b32 s54, s%d, 1' % sG), P('s_lshl_b32 s54, s54, 5'), P('s_and_b32 s53, s%d, 1' % sG),
              P('s_lshl_b32 s53, s53, 2'), P('s_add_u32 s54, s54, s53'), P('s_add_u32 s54, s54, 8'),
              P('s_mov_b32 s%d, 0' % sTMO),
              LAB(spin),
              P('buffer_load_dword v%d, v%d, s[36:39], s54 offen sc1' % (vTA, vTB)),
              P('s_add_u32 s%d, s%d, 1' % (sTMO, sTMO)),
              P('s_waitcnt vmcnt(0)'),
              P('v_cmp_ne_u32 vcc, 16, v%d' % vTA),
              P('s_cbranch_vccz %s' % hok),
              P('s_cmp_lt_u32 s%d, 0x100000' % sTMO), P('s_cbranch_scc1 %s' % spin),
              P('s_endpgm'),
              LAB(hok),
              P('s_cmp_eq_u32 s%d, 0' % sG), P('s_cselect_b32 s53, 0x40000000, 0'),
              P('v_or_b32 v%d, s53, v%d' % (vTB, vL16)),
              P('s_lshl_b32 s53, s%d, 14' % sG), P('s_lshl_b32 s54, s%d, 12' % sW), P('s_add_u32 s53, s53, s54'),
              P('s_add_u32 s53, s53, %d' % WS_HF)]
        for a in range(4):
            hl.append(VM('buffer_load_dwordx4 %s, v%d, s[28:31], s53 offen offset:%d sc1' % (vr(HB + 4 * a, 4), vTB, a * 1024), htags[a]))
        hl += [P('s_lshl_b32 s53, s%d, 10' % sG), P('s_add_u32 s53, s53, %d' % WS_HST),
               VM('buffer_load_dwordx4 %s, v%d, s[28:31], s53 offen sc1' % (vr(HS, 4), vTB), htags[4])]
        extras.append((first_idx[self.cfg.get('halo_k', 11)], hl))
        o(self.gemm_loop(groups, self.cfg.get('la', 3), extras))
        o(W(htags[:4]), P('s_lshl_b32 s53, s%d, 12' % sW), P('v_add_u32 v%d, s53, v%d' % (vTB, vL16)),
          P('v_add_u32 v%d, %d, v%d' % (vTB, L_HALO, vTB)))
        for a in range(4):
            o(LG('ds_write_b128 v%d, %s offset:%d' % (vTB, vr(HB + 4 * a, 4), a * 1024)))
        o(W(htags[4]), self.stats_from_st(HS, self.PH))
        o(WALL(False, True), P('s_barrier'))
        o(P('v_add_u32 v%d, %d, v%d' % (vTB, L_HALO, vL16)))
        groups = []
        for j in range(16):
            dst = self.afrag(j); xb = vT + 12 + (j % 4) * 4
            g = dict(pre=[], reads=[LG('ds_read_b128 %s, v%d offset:%d' % (vr(xb, 4), vTB, j * 1024))] +
                     [LG('ds_read_b64_tr_b16 v[%d:%d], v%d offset:%d' % (dst + 2 * part, dst + 2 * part + 1, vE1, j * 2048 + part * 1024)) for part in range(2)], mf=[])
            c = '0' if j == 0 else vr(self.ACC_H, 4)
            g['mf'].append(('v_mfma_f32_16x16x32_bf16 %s, %s, %s, %s' % (vr(self.ACC_H, 4), vr(dst, 4), vr(xb, 4), c), []))
            groups.append(g)
        o(self.gemm_loop(groups, 3, []))
        o(P('s_barrier'))

    def x_loads(self, nk, ring=None, depth=None):
        xl = []
        for j in range(nk):
            row = []
            for b in range(2):
                slot = j if depth is None else j % depth
                ops = []
                if j % 4 == 0:
                    ops.append(P('s_add_u32 s%d, s%d, %d' % (sXL0 + b, sB0 + b, j * 1024)))
                ops.append(VM('buffer_load_dwordx4 %s, v%d, s[28:31], s%d offen offset:%d sc1' % (ar((slot * 2 + b) * 4, 4), vL16, sXL0 + b, (j % 4) * 1024)))
                row.append(ops)
            xl.append(row)
        return xl

    def dual_store(self, stores):
        pure = self.L('stp'); done = self.L('std')
        o = [P('s_cmp_eq_u32 s%d, 0' % sMODE), P('s_cbranch_scc1 %s' % pure)]
        o += [P(s + ' sc1') for s in stores]
        o += [P('s_branch %s' % done), LAB(pure)]
        o += [P(s) for s in stores]
        o += [LAB(done)]
        cnt = [VM('; counted store') for _ in stores]
        return o + cnt, [c.tag for c in cnt]

    def p1_epi(self, dmas):
        o = []
        CS = vT + 12
        CSH = vT + 36
        Q = vT + 40
        K = vT + 48
        V = vT + 56
        HP = vT + 64
        TT = vT + 66
        cst = []
        for b in range(6):
            x = LG('ds_read_b128 %s, v%d offset:%d' % (vr(CS + 4 * b, 4), vCS, L_CSQ + b * 64)); cst.append(x.tag); o.append(x)
        o += [P('s_add_u32 s53, s%d, 2' % sW), P('s_lshl_b32 s53, s53, 6'), P('v_add_u32 v%d, s53, v%d' % (TT, vCS))]
        x = LG('ds_read_b128 %s, v%d offset:%d' % (vr(CSH, 4), TT, L_CSQ)); csh = x.tag; o.append(x)

        def ln(acc, cs, pair, dst):
            r = []
            for hh in range(2):
                t = TT + 2 * hh
                r.append(P('v_pk_mul_f32 %s, %s, %s op_sel:[0,1] op_sel_hi:[1,1]' % (vr(t, 2), vr(cs + 2 * hh, 2), vr(pair, 2))))
            for hh in range(2):
                t = TT + 2 * hh
                r.append(P('v_pk_fma_f32 %s, %s, %s, %s op_sel_hi:[1,0,1]' % (vr(t, 2), vr(acc + 2 * hh, 2), vr(pair, 2), vr(t, 2))))
            for hh in range(2):
                t = TT + 2 * hh
                r.append(P('v_cvt_pk_bf16_f32 v%d, v%d, v%d' % (dst + hh, t, t + 1)))
            return r
        wtags = []
        for blk in (4, 5, 2, 3, 0, 1):
            o.append(W(cst[blk]))
            for tb in range(2):
                h = blk % 2
                dst = (Q, K, V)[blk // 2] + (tb * 2 + h) * 2
                pair = self.PQ[tb] if blk < 2 else self.PKV[tb]
                o += ln(self.accP1(blk, tb), CS + 4 * blk, pair, dst)
                if blk >= 4:
                    x = LG('ds_write_b64 v%d, %s offset:%d' % (vEXV, vr(dst, 2), tb * 1024 + h * 512)); o.append(x)
                elif blk >= 2 and tb == 1:
                    x = LG('ds_write_b64 v%d, %s offset:%d' % (vEXK, vr(dst, 2), h * 512)); o.append(x)
            if blk == 3:
                o.append(W(csh))
                o += ln(self.ACC_H, CSH, self.PH, HP)
                o.append(LG('ds_write_b64 v%d, %s' % (vEXH, vr(HP, 2))))
        o += [WALL(False, True), P('s_barrier')]
        KP = vT + 70
        VV = vT + 12
        SC = vACC
        SP = vACC + 16
        PB = vACC + 32
        LL = vT + 24
        OO = vACC + 48
        MX = vT + 74
        rk = []; rv = []
        for h in range(2):
            x = LG('ds_read_b64 %s, v%d offset:%d' % (vr(KP + 2 * h, 2), vRK, h * 512)); rk.append(x.tag); o.append(x)
        for h in range(2):
            x = LG('ds_read_b64_tr_b16 %s, v%d offset:%d' % (vr(VV + 6 * h, 2), vRVP, h * 512)); rv.append(x.tag); o.append(x)
            for tb in range(2):
                x = LG('ds_read_b64_tr_b16 %s, v%d offset:%d' % (vr(VV + 6 * h + 2 + 2 * tb, 2), vRV, tb * 1024 + h * 512)); rv.append(x.tag); o.append(x)
        insts = [(tb, h) for tb in range(2) for h in range(2)]
        for n, (tb, h) in enumerate(insts):
            q = Q + (tb * 2 + h) * 2
            o.append(P('v_mfma_f32_16x16x16_bf16 %s, %s, %s, %s' % (vr(SC + 4 * n, 4), vr(K + (tb * 2 + h) * 2, 2), vr(q, 2), vr(vCCUR, 4))))
        for n, (tb, h) in enumerate(insts):
            q = Q + (tb * 2 + h) * 2
            if tb == 0:
                o.append(W(rk[h]))
                o.append(P('v_mfma_f32_16x16x16_bf16 %s, %s, %s, %s' % (vr(SP + 4 * n, 4), vr(KP + 2 * h, 2), vr(q, 2), vr(vCPA, 4))))
            else:
                o.append(P('v_mfma_f32_16x16x16_bf16 %s, %s, %s, %s' % (vr(SP + 4 * n, 4), vr(K + h * 2, 2), vr(q, 2), vr(vCPREV, 4))))
        for n in range(4):
            for r in range(4):
                o.append(P('v_max_f32 v%d, v%d, v%d' % (SC + 4 * n + r, SC + 4 * n + r, SP + 4 * n + r)))
        for n in range(4):
            o.append(P('v_max3_f32 v%d, v%d, v%d, v%d' % (MX + n, SC + 4 * n, SC + 4 * n + 1, SC + 4 * n + 2)))
        for n in range(4):
            o.append(P('v_max_f32 v%d, v%d, v%d' % (MX + n, MX + n, SC + 4 * n + 3)))
        a, b, c, d = MX, MX + 1, MX + 2, MX + 3
        o += [P('v_permlane32_swap_b32 v%d, v%d' % (a, b)), P('v_permlane32_swap_b32 v%d, v%d' % (c, d)),
              P('v_max_f32 v%d, v%d, v%d' % (a, a, b)), P('v_max_f32 v%d, v%d, v%d' % (c, c, d)),
              P('v_permlane16_swap_b32 v%d, v%d' % (a, c)), P('v_max_f32 v%d, v%d, v%d' % (a, a, c)),
              P('v_mov_b32 v%d, v%d' % (c, a)), P('v_permlane16_swap_b32 v%d, v%d' % (a, c)),
              P('v_mov_b32 v%d, v%d' % (b, a)), P('v_mov_b32 v%d, v%d' % (d, c)),
              P('v_permlane32_swap_b32 v%d, v%d' % (a, b)), P('v_permlane32_swap_b32 v%d, v%d' % (c, d))]
        for n in range(4):
            for hh in range(2):
                o.append(P('v_sub_f32 v%d, v%d, v%d' % (SC + 4 * n + 2 * hh, SC + 4 * n + 2 * hh, MX + n)))
                o.append(P('v_sub_f32 v%d, v%d, v%d' % (SC + 4 * n + 2 * hh + 1, SC + 4 * n + 2 * hh + 1, MX + n)))
        for n in range(4):
            for r in range(4):
                o.append(P('v_exp_f32 v%d, v%d' % (SC + 4 * n + r, SC + 4 * n + r)))
        for n in range(4):
            for hh in range(2):
                o.append(P('v_cvt_pk_bf16_f32 v%d, v%d, v%d' % (SP + 4 * n + hh, SC + 4 * n + 2 * hh, SC + 4 * n + 2 * hh + 1)))
        for n in range(4):
            for hh in range(2):
                o.append(P('v_cndmask_b32_e64 v%d, 0, v%d, s[%d:%d]' % (PB + 4 * n + hh, SP + 4 * n + hh, sUP, sUP + 1)))
                o.append(P('v_cndmask_b32_e64 v%d, v%d, 0, s[%d:%d]' % (PB + 4 * n + 2 + hh, SP + 4 * n + hh, sUP, sUP + 1)))
        o.append(W(rv))
        o.append(P('s_barrier'))
        for n, (tb, h) in enumerate(insts):
            o.append(P('v_mfma_f32_16x16x32_bf16 %s, %s, %s, 0' % (vr(LL + 4 * n, 4), vr(vONES, 4), vr(PB + 4 * n, 4))))
            o.append(P('v_mfma_f32_16x16x32_bf16 %s, %s, %s, 0' % (vr(OO + 4 * n, 4), vr(VV + 6 * h + 2 * tb, 4), vr(PB + 4 * n, 4))))
        for n in range(4):
            o.append(P('v_rcp_f32 v%d, v%d' % (LL + 4 * n, LL + 4 * n)))
        OUTR = vT + 40
        for n, (tb, h) in enumerate(insts):
            for hh in range(2):
                o.append(P('v_pk_mul_f32 %s, %s, %s op_sel_hi:[1,0]' % (vr(OO + 4 * n + 2 * hh, 2), vr(OO + 4 * n + 2 * hh, 2), vr(LL + 4 * n, 2))))
        for n, (tb, h) in enumerate(insts):
            for hh in range(2):
                o.append(P('v_cvt_pk_bf16_f32 v%d, v%d, v%d' % (OUTR + (tb * 2 + h) * 2 + hh, OO + 4 * n + 2 * hh, OO + 4 * n + 2 * hh + 1)))
        if dmas:
            k = min(i for i, x in enumerate(o) if x.text == 's_barrier') + 1
            body = interleave(o[k:], dmas, start=0, every=max(1, (len(o) - k) // (len(dmas) + 1)))
            o = o[:k] + body
        o += [P('s_mul_i32 s53, s%d, %d' % (sRND, OF_R)), P('s_add_u32 s53, s53, s%d' % sGBASE),
              P('s_lshl_b32 s54, s%d, 15' % sW), P('s_add_u32 s53, s53, s54'), P('s_lshl_b32 s54, s%d, 10' % sM),
              P('s_add_u32 s53, s53, s54'), P('s_add_u32 s53, s53, %d' % WS_OF), P('s_add_u32 s54, s53, 16384')]
        return o, ['buffer_store_dwordx4 %s, v%d, s[28:31], s%d offen' % (vr(OUTR + 4 * tb, 4), vL16, 53 + tb) for tb in range(2)]

    def mode_check(self):
        spin = self.L('rsp'); ok = self.L('rok')
        return [P('s_lshr_b32 s53, s%d, 1' % sG), P('s_lshl_b32 s53, s53, 5'), P('s_and_b32 s54, s%d, 1' % sG),
                P('s_lshl_b32 s54, s54, 2'), P('s_add_u32 s53, s53, s54'),
                P('v_mov_b32 v%d, 0' % (vTB)), P('s_mov_b32 s%d, 0' % sTMO),
                LAB(spin),
                P('buffer_load_dword v%d, v%d, s[36:39], s53 offen sc1' % (vTA, vTB)),
                P('s_add_u32 s%d, s%d, 1' % (sTMO, sTMO)),
                P('s_waitcnt vmcnt(0)'),
                P('v_readfirstlane_b32 s54, v%d' % (vTA)),
                P('s_nop 4'),
                P('s_and_b32 s52, s54, 31'), P('s_cmp_eq_u32 s52, 16'), P('s_cbranch_scc1 %s' % ok),
                P('s_cmp_lt_u32 s%d, 0x100000' % sTMO), P('s_cbranch_scc1 %s' % spin),
                P('s_endpgm'),
                LAB(ok),
                P('s_lshr_b32 s52, s54, 5'), P('s_and_b32 s52, s52, 255'), P('s_mul_i32 s52, s52, s52'),
                P('s_lshr_b32 s54, s54, 13'), P('s_lshl_b32 s54, s54, 4'),
                P('s_cmp_lg_u32 s52, s54'), P('s_cselect_b32 s%d, 1, 0' % sMODE)] + \
            ([P('s_mov_b32 s%d, 1' % sMODE)] if self.cfg.get('force_mixed') else [])

    def gemmB(self, nk, srdW, src_base, nblk, depth, resident, refill_tags_out, exb, pre_extras=None):
        o = []
        o += [P('s_and_b32 s52, s%d, 1' % sW), P('s_mul_i32 s52, s52, %d' % (nk * 1024)),
              P('s_mul_i32 s53, s%d, %d' % (sG, 8 * nblk * 1024)), P('s_add_u32 s52, s52, s53'),
              P('s_add_u32 s52, s52, s%d' % sST),
              P('s_mul_i32 s53, s%d, %d' % (sTB, nblk * 1024)), P('s_add_u32 s%d, s52, s53' % sB0),
              P('s_xor_b32 s53, s%d, 1' % sTB), P('s_mul_i32 s53, s53, %d' % (nblk * 1024)), P('s_add_u32 s%d, s52, s53' % sB1)]
        xl = self.x_loads(nk, depth=depth)
        pro = min(nk, self.cfg.get('b_pro', 4))
        for t in range(pro):
            o += xl[t][0] + xl[t][1]
        groups = []; n = 0; first_idx = {}; mfidx = 0
        acc = lambda s, fb: vACC + (s * 4 + fb) * 4
        refills = []
        if nk > resident:
            for t in range(resident, nk):
                for kh in range(2):
                    refills.append(self.dma_wo_slot(srdW, nk, t, kh, t - resident))
        for t in range(nk):
            first_idx[t] = mfidx
            pos = t if t < resident else t - resident
            for fb in range(4):
                dst = self.afrag(n); n += 1
                g = dict(pre=[], reads=[], mf=[])
                if fb == 0 and t == resident:
                    g['pre'] += [W(self.vmtags(refills)), P('s_barrier')]
                for part in range(2):
                    a = pos * 8192 + part * 2048
                    win = a >> 16
                    g['reads'].append(LG('ds_read_b64_tr_b16 v[%d:%d], v%d offset:%d' % (dst + 2 * part, dst + 2 * part + 1, vW2A + fb * 3 + win, a & 0xffff)))
                for s in range(2):
                    c = '0' if t == 0 else vr(acc(s, fb), 4)
                    wt = self.vmtags(xl[t][s]) if fb == 0 else []
                    g['mf'].append(('v_mfma_f32_16x16x32_bf16 %s, %s, %s, %s' % (vr(acc(s, fb), 4), vr(dst, 4), ar(((t % depth) * 2 + s) * 4, 4), c), wt))
                mfidx += 2
                groups.append(g)
        extras = []
        last = -1
        for t in range(pro, nk):
            if t < depth:
                at = first_idx[min(nk - 1, (t - pro) // 2)] + 1 + 4 * ((t - pro) % 2)
            else:
                at = first_idx[t - depth] + 7
            at = max(at, last + 1)
            extras.append((at, xl[t][0])); extras.append((at + 1, xl[t][1]))
            last = at + 1
        if refills:
            nfree = nk - resident
            bar_at = first_idx[nfree] - 1
            extras.append((bar_at, [P('s_barrier')]))
            for k, d in enumerate(refills):
                extras.append((first_idx[nfree + k // 3] + 1 + 2 * (k % 3), d))
        if pre_extras:
            extras += pre_extras
        o += self.gemm_loop(groups, self.cfg.get('la', 3), extras)
        o.append(P('s_barrier'))
        o += [P('v_add_u32 v%d, %d, v%d' % (vTA, exb, vEXBW)), P('v_add_u32 v%d, %d, v%d' % (vTB, exb, vEXBR))]
        for fb in range(4):
            o.append(LG('ds_write_b128 v%d, %s offset:%d' % (vTA, vr(acc(1, fb), 4), fb * 1024)))
        o += [WALL(False, True), P('s_barrier')]
        PT = vT
        rt = []
        for fb in range(4):
            x = LG('ds_read_b128 %s, v%d offset:%d' % (vr(PT + 4 * fb, 4), vTB, fb * 1024)); rt.append(x.tag); o.append(x)
        U = vT + 16
        for fb in range(4):
            for hh in range(2):
                r = vR + fb * 2 + hh
                o += [P('v_lshlrev_b32 v%d, 16, v%d' % (U + fb * 4 + hh * 2, r)), P('v_and_b32 v%d, 0xffff0000, v%d' % (U + fb * 4 + hh * 2 + 1, r))]
        for fb in range(4):
            for hh in range(2):
                a = acc(0, fb) + 2 * hh
                o.append(P('v_pk_add_f32 %s, %s, %s' % (vr(a, 2), vr(a, 2), vr(U + fb * 4 + 2 * hh, 2))))
        for fb in range(4):
            o.append(W(rt[fb]))
            for hh in range(2):
                a = acc(0, fb) + 2 * hh
                o.append(P('v_pk_add_f32 %s, %s, %s' % (vr(a, 2), vr(a, 2), vr(PT + fb * 4 + 2 * hh, 2))))
        for fb in range(4):
            for hh in range(2):
                a = acc(0, fb) + 2 * hh
                o.append(P('v_cvt_pk_bf16_f32 v%d, v%d, v%d' % (vR + fb * 2 + hh, a, a + 1)))
        return o

    def row_stats(self):
        s1 = vT + 32; s2 = vT + 33
        o = [P('v_mov_b32 v%d, 0' % s1), P('v_mov_b32 v%d, 0' % s2)]
        for k in range(8):
            o += [P('v_dot2c_f32_bf16 v%d, v%d, v%d' % (s1, vR + k, vONES)), P('v_dot2c_f32_bf16 v%d, v%d, v%d' % (s2, vR + k, vR + k))]
        o += self.reduce_g2(s1, s2)
        return o

    def x_stores(self, k):
        o = [P('s_mul_i32 s53, s%d, 16384' % sTB), P('s_add_u32 s53, s53, s%d' % sGBASE), P('s_lshl_b32 s54, s%d, 11' % sCT),
             P('s_add_u32 s53, s53, s54'), P('s_add_u32 s53, s53, %d' % (WS_XF + k * XF_K)),
             P('s_lshl_b32 s54, s%d, 13' % sG), P('s_lshl_b32 s52, s%d, 10' % sTB), P('s_add_u32 s54, s54, s52'),
             P('s_add_u32 s54, s54, %d' % (WS_ST + k * ST_K))]
        return o

    def x_store_block(self):
        pure = self.L('stp'); done = self.L('std')
        def body(fl):
            return [P('buffer_store_dwordx4 %s, v%d, s[28:31], s53 offen%s' % (vr(vR, 4), vL16, fl)),
                    P('buffer_store_dwordx4 %s, v%d, s[28:31], s53 offen offset:1024%s' % (vr(vR + 4, 4), vL16, fl)),
                    P('s_mov_b64 exec, 0xffff'),
                    P('buffer_store_dwordx2 %s, v%d, s[28:31], s54 offen%s' % (vr(vT + 32, 2), vSTO, fl)),
                    P('s_mov_b64 exec, -1')]
        o = [P('s_cmp_eq_u32 s%d, 0' % sMODE), P('s_cbranch_scc1 %s' % pure)] + body(' sc1') + \
            [P('s_branch %s' % done), LAB(pure)] + body('') + [LAB(done)]
        cnt = [VM('; counted store') for _ in range(3)]
        return o + cnt, [c.tag for c in cnt]

    def p3(self, extras_w2):
        o = []
        for b in range(2):
            o += [P('s_lshl_b32 s53, s%d, 1' % sW), P('s_add_u32 s53, s53, %d' % b), P('s_lshl_b32 s53, s53, 14'),
                  P('s_add_u32 s53, s53, s%d' % sGBASE), P('s_add_u32 s%d, s53, s%d' % (sB0 + b, sST))]
        stt = []
        STR = vT + 12
        PA = [vT + 0, vT + 2]
        for b in range(2):
            t = newtag('st'); stt.append(t)
            o += [P('s_lshl_b32 s53, s%d, 13' % sG), P('s_lshl_b32 s54, s%d, 11' % sW), P('s_add_u32 s53, s53, s54'),
                  P('s_add_u32 s53, s53, s%d' % sA), P('s_add_u32 s53, s53, %d' % (b * 1024)),
                  VM('buffer_load_dwordx4 %s, v%d, s[28:31], s53 offen sc1' % (vr(STR + 4 * b, 4), vL16), t)]
        xl = self.x_loads(16)
        pro = self.cfg.get('x_pro', 4)
        for j in range(pro):
            o += xl[j][0] + xl[j][1]
        skip = self.L('cs1')
        o += [P('s_cmp_lg_u32 s%d, 0' % sRND), P('s_cbranch_scc1 %s' % skip)]
        o += self.cs_w1()
        o += [LAB(skip)]
        o.append(W(stt))
        for b in range(2):
            o += self.stats_from_st(STR + 4 * b, PA[b], scale=LOG2E)
        acc = lambda fb, tb: vACC + (fb * 2 + tb) * 4
        groups = []; n = 0; first_idx = {}; mfidx = 0
        for j in range(16):
            first_idx[j] = mfidx
            base = L_W1P[j // 4] + (j % 4) * 7168
            for fb in range(7):
                dst = self.afrag(n); n += 1
                g = dict(pre=[], reads=[], mf=[])
                for part in range(2):
                    a = base + part * 3584 + fb * 32
                    win = a >> 16
                    g['reads'].append(LG('ds_read_b64_tr_b16 v[%d:%d], v%d offset:%d' % (dst + 2 * part, dst + 2 * part + 1, vW1A + win, a & 0xffff)))
                for tb in range(2):
                    c = '0' if j == 0 else vr(acc(fb, tb), 4)
                    wt = self.vmtags(xl[j][tb]) if fb == 0 else []
                    g['mf'].append(('v_mfma_f32_16x16x32_bf16 %s, %s, %s, %s' % (vr(acc(fb, tb), 4), vr(dst, 4), ar((j * 2 + tb) * 4, 4), c), wt))
                mfidx += 2
                groups.append(g)
        extras = []
        k = 0
        for j in range(pro, 16):
            for b in range(2):
                extras.append((first_idx[k // 3] + 1 + 4 * (k % 3), xl[j][b])); k += 1
        for k, d in enumerate(extras_w2):
            extras.append((first_idx[9 + k // 2] + 1 + 6 * (k % 2), d))
        o += self.gemm_loop(groups, self.cfg.get('la', 3), extras)
        o.append(P('s_barrier'))
        return o, PA

    def cs_w1(self):
        o = []
        A0 = vT + 40; A1 = vT + 44
        ad = vT + 48
        o += [P('s_lshl_b32 s53, s%d, 5' % sW), P('s_add_u32 s54, s%d, 4' % sW), P('s_min_u32 s54, s54, 6'), P('s_lshl_b32 s54, s54, 5')]
        for win in range(3):
            o += [P('v_add_u32 v%d, s53, v%d' % (ad + win, vW1A + win)), P('v_add_u32 v%d, s54, v%d' % (ad + 3 + win, vW1A + win))]
        groups = []; n = 0
        for j in range(16):
            base = L_W1P[j // 4] + (j % 4) * 7168
            for e in range(2):
                dst = self.afrag(n); n += 1
                g = dict(pre=[], reads=[], mf=[])
                for part in range(2):
                    a = base + part * 3584
                    g['reads'].append(LG('ds_read_b64_tr_b16 v[%d:%d], v%d offset:%d' % (dst + 2 * part, dst + 2 * part + 1, ad + 3 * e + (a >> 16), a & 0xffff)))
                accr = A0 if e == 0 else A1
                c = '0' if j == 0 else vr(accr, 4)
                g['mf'].append(('v_mfma_f32_16x16x32_bf16 %s, %s, %s, %s' % (vr(accr, 4), vr(dst, 4), vr(vONES, 4), c), []))
                groups.append(g)
        o += self.gemm_loop(groups, 3, [])
        o += [P('s_lshl_b32 s53, s53, 1'), P('s_lshl_b32 s54, s54, 1'),
              P('v_add_u32 v%d, s53, v%d' % (ad, vCS)), P('v_add_u32 v%d, s54, v%d' % (ad + 1, vCS)),
              P('s_mov_b32 s52, 0x00010001'), P('s_mov_b32 s53, 0x00010001'), P('s_mov_b64 exec, s[52:53]'),
              LG('ds_write_b128 v%d, %s offset:%d' % (ad, vr(A0, 4), L_CS1)),
              LG('ds_write_b128 v%d, %s offset:%d' % (ad + 1, vr(A1, 4), L_CS1)),
              P('s_mov_b64 exec, -1'), WALL(False, True), P('s_barrier')]
        return o

    def p3_epi(self, PA, dmas):
        o = []
        acc = lambda fb, tb: vACC + (fb * 2 + tb) * 4
        CS = vT + 12; BB = vT + 40
        PK = vT + 68
        cst = []
        for fb in range(7):
            x = LG('ds_read_b128 %s, v%d offset:%d' % (vr(CS + 4 * fb, 4), vCS, L_CS1 + fb * 64)); y = LG('ds_read_b128 %s, v%d offset:%d' % (vr(BB + 4 * fb, 4), vCS, L_BB1 + fb * 64))
            cst.append([x.tag, y.tag]); o += [x, y]
        T = vT + 68
        OUTR = lambda tb, fb: vAF + tb * 16 + fb * 2
        body = []
        for fb in range(7):
            body.append(W(cst[fb]))
            prs = [(tb, hh) for tb in range(2) for hh in range(2)]
            E = [T + 2 * k for k in range(4)]; U = [T + 8 + 2 * k for k in range(4)]
            for k, (tb, hh) in enumerate(prs):
                body.append(P('v_pk_fma_f32 %s, %s, %s, %s op_sel:[0,1,0] op_sel_hi:[1,1,1]' % (vr(E[k], 2), vr(CS + 4 * fb + 2 * hh, 2), vr(PA[tb], 2), vr(BB + 4 * fb + 2 * hh, 2))))
            for k, (tb, hh) in enumerate(prs):
                body.append(P('v_pk_fma_f32 %s, %s, %s, %s op_sel_hi:[1,0,1]' % (vr(E[k], 2), vr(acc(fb, tb) + 2 * hh, 2), vr(PA[tb], 2), vr(E[k], 2))))
            for k in range(4):
                body += [P('v_exp_f32 v%d, v%d' % (U[k], E[k])), P('v_exp_f32 v%d, v%d' % (U[k] + 1, E[k] + 1))]
            for k in range(4):
                body.append(P('v_pk_add_f32 %s, %s, s[%d:%d]' % (vr(U[k], 2), vr(U[k], 2), sONE, sONE + 1)))
            for k in range(4):
                body.append(P('v_pk_fma_f32 %s, %s, %s, s[%d:%d]' % (vr(U[k], 2), vr(U[k], 2), vr(U[k], 2), sONE, sONE + 1)))
            for k in range(4):
                body += [P('v_rcp_f32 v%d, v%d' % (U[k], U[k])), P('v_rcp_f32 v%d, v%d' % (U[k] + 1, U[k] + 1))]
            for k in range(4):
                body.append(P('v_pk_fma_f32 %s, %s, s[%d:%d], %s' % (vr(U[k], 2), vr(U[k], 2), sM2L, sM2L + 1, vr(vLN2, 2))))
            for k in range(4):
                body.append(P('v_pk_mul_f32 %s, %s, %s' % (vr(E[k], 2), vr(E[k], 2), vr(U[k], 2))))
            for k, (tb, hh) in enumerate(prs):
                body.append(P('v_cvt_pk_bf16_f32 v%d, v%d, v%d' % (OUTR(tb, fb) + hh, E[k], E[k] + 1)))
        if dmas:
            body = interleave(body, dmas, start=4, every=max(1, (len(body) - 8) // (len(dmas) + 1)))
        o += body
        o += [P('s_lshr_b32 s52, s%d, 1' % sM), P('s_mul_i32 s52, s52, 7168'), P('s_mul_i32 s53, s%d, %d' % (sG, 8 * 57344)),
              P('s_add_u32 s52, s52, s53'), P('s_mul_i32 s53, s%d, %d' % (sW, 2 * 57344)), P('s_add_u32 s52, s52, s53'),
              P('s_mul_i32 s53, s%d, %d' % (sRND, AF_R)), P('s_add_u32 s52, s52, s53'), P('s_add_u32 s52, s52, %d' % WS_AF),
              P('s_add_u32 s53, s52, 57344'), P('s_add_u32 s54, s52, 4096'), P('s_add_u32 s55, s53, 4096')]
        def variant(odd, fl):
            r = []
            for tb in range(2):
                b0 = 52 + tb; b1 = 54 + tb
                if not odd:
                    for u in range(3):
                        r.append(P('buffer_store_dwordx4 %s, v%d, s[28:31], s%d offen offset:%d%s' % (vr(OUTR(tb, 2 * u), 4), vL16, b0, u * 1024, fl)))
                    r.append(P('buffer_store_dwordx2 %s, v%d, s[28:31], s%d offen offset:%d%s' % (vr(OUTR(tb, 6), 2), vL16, b0, 3072, fl)))
                else:
                    r.append(P('buffer_store_dwordx2 %s, v%d, s[28:31], s%d offen offset:%d%s' % (vr(OUTR(tb, 0), 2), vL16, b0, 3072 + 8, fl)))
                    for u in range(3):
                        r.append(P('buffer_store_dwordx4 %s, v%d, s[28:31], s%d offen offset:%d%s' % (vr(OUTR(tb, 2 * u + 1), 4), vL16, b1, u * 1024, fl)))
            return r
        l_odd = self.L('odd'); l_e1 = self.L('e1'); l_o1 = self.L('o1'); done = self.L('dn')
        o += [P('s_bitcmp1_b32 s%d, 0' % sM), P('s_cbranch_scc1 %s' % l_odd),
              P('s_cmp_eq_u32 s%d, 0' % sMODE), P('s_cbranch_scc1 %s' % l_e1)] + variant(False, ' sc1') + [P('s_branch %s' % done), LAB(l_e1)] + \
            variant(False, '') + [P('s_branch %s' % done), LAB(l_odd),
              P('s_cmp_eq_u32 s%d, 0' % sMODE), P('s_cbranch_scc1 %s' % l_o1)] + variant(True, ' sc1') + [P('s_branch %s' % done), LAB(l_o1)] + \
            variant(True, '') + [LAB(done)]
        cnt = [VM('; counted store') for _ in range(8)]
        return o + cnt, [c.tag for c in cnt]

    def build(self):
        cfg = self.cfg
        stop = cfg.get('stop', 99)
        o = self.add
        self.prologue()
        o(self.ts(0))
        self.p1a()
        o(self.ts(1))
        o(W(self.tag_res))
        o(self.mode_check())
        o(WALL(True, True))
        o(LAB('L_P1EPI'))
        wo = [self.dma_wo_slot(SRD_WO, 8, t, kh, t) for t in range(8) for kh in range(2)]
        w1a0 = self.dma_w1_group(0)
        epi, stores = self.p1_epi(wo + w1a0)
        o(epi)
        ds, tags = self.dual_store(stores)
        o(ds)
        o(self.ts(2))
        o(P('s_lshl_b32 s%d, s%d, 2' % (sTGT, sRND)))
        o(self.sync_dyn(1, tags, window=self.win_w1(4, 12)))
        o(self.ts(3))
        if stop == 1:
            o(P('s_branch L_END'))
        o(P('s_mul_i32 s%d, s%d, %d' % (sST, sRND, OF_R)), P('s_add_u32 s%d, s%d, %d' % (sST, sST, WS_OF)))
        o(self.gemmB(8, SRD_WO, None, 16, 8, 8, None, L_EXB2))
        o(self.ts(4))
        o(self.row_stats())
        o(self.x_stores(0), P('s_mul_i32 s52, s%d, %d' % (sRND, 2 * XF_K)), P('s_add_u32 s53, s53, s52'),
          P('s_mul_i32 s52, s%d, %d' % (sRND, 2 * ST_K)), P('s_add_u32 s54, s54, s52'))
        ds, tags = self.x_store_block()
        o(ds)
        o(self.sync_dyn(2, tags, window=self.win_w1(12, 16)))
        o(self.ts(5))
        if stop == 2:
            o(P('s_branch L_END'))
        o(P('s_mul_i32 s%d, s%d, %d' % (sST, sRND, 2 * XF_K)), P('s_add_u32 s%d, s%d, %d' % (sST, sST, WS_XF)),
          P('s_mul_i32 s%d, s%d, %d' % (sA, sRND, 2 * ST_K)), P('s_add_u32 s%d, s%d, %d' % (sA, sA, WS_ST)))
        w2_early = [self.dma_wo_slot(SRD_W2, 28, t, kh, t) for t in range(5) for kh in range(2)]
        body, PA = self.p3(w2_early)
        o(body)
        o(self.ts(6))
        n_epi = cfg.get('w2_epi_t', 15)
        w2_epi = [self.dma_wo_slot(SRD_W2, 28, t, kh, t) for t in range(5, n_epi) for kh in range(2)]
        epi, tags = self.p3_epi(PA, w2_epi)
        o(epi)
        o(self.ts(7))
        o(self.sync_dyn(3, tags, window=self.win_wo(SRD_W2, 28, n_epi, 19)))
        o(self.ts(8))
        if stop == 3:
            o(P('s_branch L_END'))
        o(P('s_mul_i32 s%d, s%d, %d' % (sST, sRND, AF_R)), P('s_add_u32 s%d, s%d, %d' % (sST, sST, WS_AF)))
        o(self.gemmB(28, SRD_W2, None, 56, 16, 19, None, L_EXB4))
        o(self.ts(9))
        o(P('s_cmp_lg_u32 s%d, 0' % sRND), P('s_cbranch_scc1 L_FINAL'))
        o(self.row_stats())
        o(self.x_stores(1))
        ds, tags = self.x_store_block()
        o(ds)
        ht = [newtag('hs') for _ in range(3)]
        o(P('s_add_u32 s52, s%d, 1' % sG), P('s_lshl_b32 s53, s52, 14'), P('s_lshl_b32 s54, s%d, 11' % sCT),
          P('s_add_u32 s53, s53, s54'), P('s_add_u32 s53, s53, %d' % WS_HF),
          P('s_lshl_b32 s54, s52, 10'), P('s_add_u32 s54, s54, %d' % WS_HST),
          VM('buffer_store_dwordx4 %s, v%d, s[28:31], s53 offen sc1' % (vr(vR, 4), vHOF), ht[0]),
          VM('buffer_store_dwordx4 %s, v%d, s[28:31], s53 offen offset:1024 sc1' % (vr(vR + 4, 4), vHOF), ht[1]),
          VM('buffer_store_dwordx2 %s, v%d, s[28:31], s54 offen sc1' % (vr(vT + 32, 2), vHST), ht[2]))
        self.halo_store_tags = ht
        o(self.sync_dyn(4, tags, window=self.win_wq(0, 32)))
        o(self.ts(10))
        if stop == 4:
            o(P('s_branch L_END'))
        o(P('s_mov_b32 s%d, 1' % sRND))
        self.p1b()
        o(self.ts(11))
        o(WALL(True, True))
        o(P('s_branch L_P1EPI'))
        o(LAB('L_FINAL'))
        for u in range(2):
            o(P('v_permlane16_swap_b32 v%d, v%d' % (vR + 4 * u, vR + 4 * u + 2)), P('v_permlane16_swap_b32 v%d, v%d' % (vR + 4 * u + 1, vR + 4 * u + 3)))
        for u in range(2):
            o(VM('buffer_store_dwordx4 %s, v%d, s[32:35], s61 offen offset:%d' % (vr(vR + 4 * u, 4), vOUT, u * 64)))
        o(self.ts(12))
        o(LAB('L_END'), P('s_endpgm'))

    def sync_dyn(self, ph, tags, window=None):
        o = [W(tags)]
        pure = self.L('fp'); done = self.L('fd')
        o += [P('s_add_u32 s52, s%d, %d' % (sTGT, ph)),
              P('v_mov_b32 v%d, s52' % (vTA)), P('v_mov_b32 v%d, 0' % (vTB)),
              P('s_mov_b64 exec, 1'),
              P('s_cmp_eq_u32 s%d, 0' % sMODE), P('s_cbranch_scc1 %s' % pure),
              P('buffer_store_dword v%d, v%d, s[28:31], s%d offen sc1' % (vTA, vTB, sFLGOFF)),
              P('s_branch %s' % done), LAB(pure),
              P('buffer_store_dword v%d, v%d, s[28:31], s%d offen' % (vTA, vTB, sFLGOFF)),
              LAB(done), VM('; flag store counted'),
              P('s_mov_b64 exec, -1')]
        other = self.L('so'); join = self.L('sj'); loop = self.L('sp')
        o += [P('s_cmp_lg_u32 s%d, 0' % sW), P('s_cbranch_scc1 %s' % other),
              P('v_lshlrev_b32 v%d, 2, v%d' % (vTB, vLANE)),
              P('s_mov_b32 s%d, 0' % sTMO),
              LAB(loop),
              P('buffer_load_dword v%d, v%d, s[28:31], s%d offen sc1' % (vTA, vTB, sGFLG)),
              P('s_add_u32 s%d, s%d, 1' % (sTMO, sTMO)),
              P('s_waitcnt vmcnt(0)'),
              P('v_cmp_gt_u32 vcc, s52, v%d' % (vTA)),
              P('s_cbranch_vccz %s' % join),
              P('s_cmp_lt_u32 s%d, 0x100000' % sTMO),
              P('s_cbranch_scc1 %s' % loop),
              P('s_endpgm'),
              LAB(other)]
        if window:
            o += window
        o += [LAB(join)]
        if self.cfg.get('halo_nowait') and ph == 4:
            o += [WALL(True, True)]
        else:
            o += [WALL(True, True)]
        o += [P('s_barrier')]
        return o

    def text(self):
        self.build()
        body = self.p.render()
        body = [l for l in body if not l.strip().startswith('; counted') and not l.strip().startswith('; flag store')]
        hdr = open('interleave_layers__sliding_local_dilated__dense_activation_mish__prompt.s.ref').read().split('\n')
        head = []
        for l in hdr:
            if l.startswith('; Override') or l.startswith('; grid=') or l.startswith('; @launch'):
                continue
            if l.startswith('.amdgcn_target'):
                break
            head.append(l)
        out = head + ['; @launch grid=(256,1,1) block=(256,1,1) lds=%d' % LDS_BYTES,
                      '.amdgcn_target "amdgcn-amd-amdhsa--gfx950"', '.text', '.globl ' + KNAME, '.p2align 8',
                      '.type %s,@function' % KNAME, KNAME + ':']
        out += body
        out += ['.section .rodata,"a"', '.p2align 6', '.amdhsa_kernel ' + KNAME,
                '  .amdhsa_next_free_vgpr 512', '  .amdhsa_next_free_sgpr 102', '  .amdhsa_accum_offset 256',
                '  .amdhsa_group_segment_fixed_size 0', '  .amdhsa_kernarg_size 80', '  .amdhsa_user_sgpr_count 2',
                '  .amdhsa_user_sgpr_kernarg_segment_ptr 1', '  .amdhsa_system_sgpr_workgroup_id_x 1',
                '  .amdhsa_float_denorm_mode_32 3', '.end_amdhsa_kernel', '']
        return '\n'.join(out)


if __name__ == '__main__':
    cfg = {}
    outp = sys.argv[1]
    for a in sys.argv[2:]:
        k, v = a.split('=')
        cfg[k] = int(v)
    g = Gen(cfg)
    t = g.text()
    open(outp, 'w').write(t)
    print('wrote', outp, len(t), 'bytes;', 'nops padded:', g.p.npad)
```

```python
import sys, math
from asmlib import *

KNAME = 'interleave_layers__sliding_local_dilated__dense_activation_mish__prompt_kernel'

WS_FLG = 0x0000
WS_HFL = 0x1000
WS_TS = 0x2000
WS_ST = 0x10000
WS_HST = 0x80000
WS_HF = 0x90000
WS_XF = 0x100000
WS_OF = 0x800000
WS_AF = 0x1000000
WS_ACT = 0x2000000
ACT_G = 0x92000
WS_SIZE = 0x2A00000
ST_K = 0x20000; XF_K = 0x200000; OF_R = 0x200000; AF_R = 0x800000

L_CSQ = 0
L_CS1 = 384
L_BB1 = 832
L_W = 2048
L_HALO = 100352
L_RING = 116736
L_EX = 116736
L_EXK = L_EX + 9216
L_W1P = [135168, 77824, 106496, 49152]
L_EXB2 = 2048
L_EXB4 = 100352
LDS_BYTES = 163840
W2_PA = [12, 13, 14, 15, 16, 17, 18, 3, 7]
W2_PB = [0, 1, 2, 4, 5, 6, 8, 9, 10, 11]
def w2pos(t):
    return W2_PA[t] if t < 9 else (W2_PB[t - 9] if t < 19 else W2_PA[t - 19])
W2_T_AT = {w2pos(t): t for t in range(19)}

LOG2E = 1.4426950408889634
LN2 = 0.6931471805599453


def f32(x):
    import struct
    return '0x%08x' % struct.unpack('<I', struct.pack('<f', x))[0]


sRND = 3; sG = 4; sM = 5; sW = 6; sMODE = 7
SRD_X = 8; SRD_WQ = 12; SRD_WO = 16; SRD_W1 = 20; SRD_W2 = 24; SRD_WS = 28; SRD_OUT = 32; SRD_DBG = 36; SRD_B1 = 40
sXCC = 44
sWQ_SRC = 45
sW1K = 46
sWO_SRC = 47
sW1_SRC = 48
sW1_M = 49
sB0 = 50; sB1 = 51
sT0 = 52; sT1 = 53; sT2 = 54; sT3 = 55
sFLGOFF = 56
sGFLG = 57
sST = 58
sTH = 59; sCT = 60
sONE = 62
sM2L = 64
sUP = 66
sMA = 68; sMB = 70; sMC = 72; sMD = 74
sIT = 76; sTMO = 77; sTGT = 78; sA = 79; sB = 80; sC = 81; sD = 82
sXR0 = 83; sXR1 = 84
sHSRC = 85
sTB = 86
sGBASE = 87
sTS = 88
sTSO = 90
sOF = 94; sAF = 95; sX1 = 96; sS1 = 97; sX2 = 98; sS2 = 99
sTUX = 100; sTUG = 101
dOF = 83; dAF = 84; dX1 = 85; dS1 = 82
sXL0 = 92; sXL1 = 93

vLANE = 0; vL16 = 1
vR = 2
vONES = 10
vWQA = 14
vE1 = 18; vE2 = 19
vW1A = 20
vW2A = 23
vDQ = 35; vDO = 36; vD1 = 37
vCS = 44
vL128 = 45
vDUM = 247
vCCUR = 46; vCPREV = 50; vCPA = 54
vEXV = 58; vEXK = 59; vEXH = 60; vRVP = 61; vRV = 62; vRK = 63
vLN2 = 64
vEXBW = 66; vEXBR = 67
vSTO = 68
vHOF = 69
vHST = 70
vOUT = 71
vAF = 72
NAF = 8
vACC = 104
vT = 168
vTA = 254; vTB = 255
vDUMMY = 246
vDX = 240; vDH = 241; vXA = 242; vXB = 243; vHXA = 244; vHXB = 245


class Gen:
    def __init__(self, cfg):
        self.cfg = cfg
        self.p = Prog()
        self.lbl = 0

    def L(self, name):
        self.lbl += 1
        return '%s_%d' % (name, self.lbl)

    def add(self, *a):
        self.p.add(*a)

    def ts(self, idx):
        if not self.cfg.get('ts'):
            return []
        return [P('s_memrealtime s[88:89]' if self.cfg.get('ts') == 1 else 's_memtime s[88:89]'), P('s_waitcnt lgkmcnt(0)'),
                P('v_mov_b32 v252, s88'), P('v_mov_b32 v253, s89'),
                P('v_mov_b32 v254, 0'),
                P('s_lshl_b32 s91, s%d, 7' % sRND), P('s_add_u32 s91, s91, s90'), P('s_add_u32 s91, s91, %d' % (idx * 8)),
                P('s_mov_b64 exec, 1'),
                VM('buffer_store_dwordx2 v[252:253], v254, s[28:31], s91 offen'),
                P('s_mov_b64 exec, -1')]

    def dma(self, srd, voff, src_s, src_imm, lds_s, lds_imm, tag=None, st=None):
        st = st if st is not None else sT0
        ops = []
        if lds_s is None:
            ops.append(P('s_mov_b32 m0, %d' % lds_imm))
        else:
            ops.append(P('s_add_u32 m0, s%d, %d' % (lds_s, lds_imm)))
        if src_s is None:
            ops.append(P('s_mov_b32 s%d, %d' % (st, src_imm)))
        else:
            ops.append(P('s_add_u32 s%d, s%d, %d' % (st, src_s, src_imm)))
        if self.cfg.get('nodma') and srd in (SRD_WO, SRD_W1, SRD_W2):
            ops.append(P('s_nop 0'))
            return ops
        nt = ' nt' if (self.cfg.get('nt') and srd in (SRD_W1, SRD_W2)) else ''
        ops.append(VM('buffer_load_dwordx4 v%d, s[%d:%d], s%d offen%s lds' % (voff, srd, srd + 3, st, nt), tag))
        return ops

    def touch(self, srd, unit_s, imm, limit=None, only_r1=False):
        ops = []
        if limit is not None:
            ops += [P('s_add_u32 s55, s%d, %d' % (unit_s, imm[0])), P('s_cmp_lt_u32 s%d, %d' % (unit_s, limit)),
                    P('s_cselect_b32 s55, s55, 0x7ff00000')]
            if imm[1] is not None:
                ops.insert(1, P('s_add_u32 s55, s55, s%d' % imm[1]))
        else:
            ops.append(P('s_add_u32 s55, s%d, %d' % (unit_s, imm)))
        if only_r1:
            ops += [P('s_cmp_eq_u32 s%d, 0' % sRND), P('s_cselect_b32 s55, s55, 0x7ff00000')]
        ops.append(VM('buffer_load_dword a255, v%d, s[%d:%d], s55 offen' % (vL128, srd, srd + 3)))
        return ops

    def touch_w(self, name, only_r1=False):
        srd, size = {'wq': (SRD_WQ, 512 * 3072), 'wo': (SRD_WO, 524288), 'w1': (SRD_W1, 512 * 3584), 'w2': (SRD_W2, 1792 * 1024)}[name]
        return [self.touch(srd, sTUX, k * 0x100000, only_r1=only_r1) for k in range((size + 0xfffff) // 0x100000)]

    def touch_act(self, off, nbytes):
        return [self.touch(SRD_WS, sTUG, (WS_ACT + off, sST), limit=nbytes)]

    def touch_range(self, name, lo, hi, rounds='12'):
        srd = {'wq': SRD_WQ, 'wo': SRD_WO, 'w1': SRD_W1, 'w2': SRD_W2}[name]
        unit = -(-(hi - lo) // (128 * 128)) * 128
        assert unit <= 8192
        nl = unit // 128
        ops = [P('s_lshr_b32 s55, s%d, 13' % sTUX), P('s_mul_i32 s55, s55, %d' % unit), P('s_add_u32 s55, s55, %d' % lo)]
        if rounds != '12':
            ops += [P('s_cmp_eq_u32 s%d, %d' % (sRND, 0 if rounds == '1' else 1)), P('s_cselect_b32 s55, s55, 0x7ff00000')]
        if nl < 64:
            m = (1 << nl) - 1
            ops += [P('s_mov_b32 exec_lo, 0x%x' % (m & 0xffffffff)), P('s_mov_b32 exec_hi, 0x%x' % (m >> 32))]
        ops.append(VM('buffer_load_dword a255, v%d, s[%d:%d], s55 offen' % (vL128, srd, srd + 3)))
        if nl < 64:
            ops.append(P('s_mov_b64 exec, -1'))
        return ops

    def sched_touches(self, phase, first_idx):
        out = []
        for e in str(self.cfg.get('tch', '')).split('+'):
            if not e:
                continue
            f = e.split('.')
            if f[0] != phase:
                continue
            k = int(f[1]); name = f[2]
            if name in ('of', 'af', 'xf'):
                ops = self.touch_set(name)[0]
            else:
                ops = self.touch_range(name, int(f[3]) * 1024, int(f[4]) * 1024, f[5] if len(f) > 5 else '12')
            out.append((first_idx[k] + 3, ops))
        return out

    def touch_mall(self):
        o = [P('s_lshl_b32 s54, s2, 2'), P('s_add_u32 s54, s54, s%d' % sW)]
        for srd, first, n in ((SRD_W1, 0, 224), (SRD_W2, 256, 224), (SRD_WO, 512, 64)):
            o += [P('s_sub_u32 s55, s54, %d' % first), P('s_cmp_lt_u32 s55, %d' % n), P('s_cselect_b32 s55, s55, 0x3ff80'),
                  P('s_lshl_b32 s55, s55, 13'),
                  VM('buffer_load_dword a255, v%d, s[%d:%d], s55 offen' % (vL128, srd, srd + 3))]
        return o

    def touch_set(self, spec, only_r1=False):
        out = []
        for name in spec.split(','):
            if not name:
                continue
            if name == 'of':
                out += self.touch_act(0, 131072)
            elif name == 'af':
                out += self.touch_act(0, 458752)
            elif name == 'xf':
                out += self.touch_act(458752, 139264)
            else:
                out += self.touch_w(name, only_r1)
        return out

    def dma_wq_quarter(self, qd, panels=(0, 1, 2), src=None):
        out = []
        for a in range(2):
            for p in panels:
                rg = 8 * qd + 4 * a
                out.append(self.dma(SRD_WQ, vDQ, src if src is not None else sWQ_SRC, rg * 49152 + p * 1024, sW1K, L_W + p * 32768 + rg * 1024))
        return out

    def dma_wo_slot(self, srd, nk, t, kh, pos):
        js = kh * nk + t
        return self.dma(srd, vDO, sWO_SRC, js * 32768, sW1K, L_W + (2 * pos + kh) * 4096)

    def dma_w1_group(self, a):
        out = []
        for u in range(7):
            out.append(self.dma(SRD_W1, vD1 + u, sW1_SRC, a * 4 * 32 * 3584, sW1_M, L_W1P[a] + u * 1024))
        return out

    def window_loop(self, n0, n1, srd, srcA_s, srcA_imm, srcB, ldsC, ldsD, subs):
        lab = self.L('win'); end = self.L('winend')
        o = [P('s_add_u32 s%d, s%d, %d' % (sIT, sW, n0 - 1)),
             P('s_cmp_ge_u32 s%d, %d' % (sIT, n1)),
             P('s_cbranch_scc1 %s' % end),
             LAB(lab),
             P('s_mul_i32 s%d, s%d, %d' % (sA, sIT, srcB))]
        if srcA_s is not None:
            o.append(P('s_add_u32 s%d, s%d, s%d' % (sA, sA, srcA_s)))
        o.append(P('s_add_u32 s%d, s%d, %d' % (sA, sA, srcA_imm)))
        o.append(P('s_mul_i32 s%d, s%d, %d' % (sB, sIT, ldsD)))
        for (voff, so, lo) in subs:
            o.append(P('s_add_u32 m0, s%d, %d' % (sB, ldsC + lo)))
            o.append(P('s_add_u32 s%d, s%d, %d' % (sT0, sA, so)))
            nt = ' nt' if (self.cfg.get('nt') and srd in (SRD_W1, SRD_W2)) else ''
            if self.cfg.get('nodma'):
                o.append(P('s_nop 0'))
            else:
                o.append(P('buffer_load_dwordx4 v%d, s[%d:%d], s%d offen%s lds' % (voff, srd, srd + 3, sT0, nt)))
        o += [P('s_add_u32 s%d, s%d, 3' % (sIT, sIT)),
              P('s_cmp_lt_u32 s%d, %d' % (sIT, n1)),
              P('s_cbranch_scc1 %s' % lab),
              LAB(end)]
        return o

    def win_wq(self, rg0, rg1):
        return [P('s_lshl_b32 s%d, s%d, 6' % (sC, sM))] + self.window_loop(
            rg0, rg1, SRD_WQ, sC, 0, 49152, L_W, 1024, [(vDQ, p * 1024, p * 32768) for p in range(3)])

    def win_wo(self, srd, nk, t0, t1, dpos=0):
        subs = []
        for kh in range(2):
            for q in range(4):
                subs.append((vDO, kh * nk * 32768 + q * 8192, kh * 4096 + q * 1024))
        return [P('s_lshl_b32 s%d, s%d, 7' % (sC, sCT))] + self.window_loop(
            t0, t1, srd, sC, 0, 32768, L_W + dpos * 8192, 8192, subs)

    def win_w1(self, j0, j1):
        a = j0 // 4
        base = L_W1P[a] - j0 * 7168
        for j in range(j0, j1):
            assert L_W1P[j // 4] + (j % 4) * 7168 == base + j * 7168
        return [P('s_mul_i32 s%d, s%d, 224' % (sC, sM))] + self.window_loop(
            j0, j1, SRD_W1, sC, 0, 32 * 3584, base, 7168, [(vD1 + u, 0, u * 1024) for u in range(7)])

    def gemm_loop(self, groups, LA, extras):
        out = []
        n = len(groups)
        for k in range(min(LA, n)):
            out += groups[k].get('pre', []) + groups[k]['reads']
        flat = []
        for gi, g in enumerate(groups):
            rq = []
            if gi + LA < n:
                rq = list(groups[gi + LA].get('pre', [])) + list(groups[gi + LA]['reads'])
            nm = len(g['mf'])
            chunks = [[] for _ in range(nm)]
            reads_total = sum(1 for x in rq if x.kind == 'lg')
            per = max(1, -(-reads_total // nm))
            c = 0; cnt = 0
            for x in rq:
                chunks[min(c, nm - 1)].append(x)
                if x.kind == 'lg':
                    cnt += 1
                    if cnt == per:
                        cnt = 0; c += 1
            for k, (text, waits) in enumerate(g['mf']):
                w = list(waits)
                if k == 0:
                    w += [x.tag for x in g['reads']]
                flat.append((text, w, g.get('premf', []) if k == 0 else [], chunks[k]))
        extras = sorted(extras, key=lambda e: e[0])
        ei = 0
        for idx, (text, w, premf, chunk) in enumerate(flat):
            if idx == 0:
                out += premf + [W(w)]
            out.append(P(text))
            if idx + 1 < len(flat):
                out += flat[idx + 1][2]
                out.append(W(flat[idx + 1][1]))
            out += chunk
            k = 0
            while ei < len(extras) and extras[ei][0] <= idx and k < self.cfg.get('extra_per', 1):
                out += extras[ei][1]
                ei += 1; k += 1
        while ei < len(extras):
            out += extras[ei][1]; ei += 1
        return out

    @staticmethod
    def flat(ops):
        out = []
        for x in ops:
            if x is None:
                continue
            if isinstance(x, (list, tuple)):
                out += Gen.flat(x)
            else:
                out.append(x)
        return out

    def spread(self, ops, start, step=1, nvec=1):
        out = []; cur = []; nv = 0; at = start
        for x in self.flat(ops):
            cur.append(x)
            t = x.text or ''
            if t.startswith('v_') or t.startswith('buffer_') or t.startswith('ds_'):
                nv += 1
                if nv >= nvec:
                    out.append((at, cur)); cur = []; nv = 0; at += step
        if cur:
            out.append((at, cur))
        return out

    def afrag(self, n):
        return vAF + (n % NAF) * 4

    def prologue(self):
        cfg = self.cfg
        o = self.add
        o(P('s_cmp_ge_u32 s2, 256'), P('s_cbranch_scc1 L_END'))
        o(P('s_load_dwordx16 s[72:87], s[0:1], 0'), P('s_load_dwordx4 s[88:91], s[0:1], 64'))
        o(P('s_getreg_b32 s%d, hwreg(HW_REG_XCC_ID, 0, 4)' % sXCC))
        o(P('s_and_b32 s52, s2, 7'), P('s_lshr_b32 s53, s2, 3'), P('s_lshr_b32 s54, s53, 4'),
          P('s_lshl_b32 s%d, s52, 1' % sG), P('s_add_u32 s%d, s%d, s54' % (sG, sG)),
          P('s_and_b32 s%d, s53, 15' % sM))
        if cfg.get('cross_groups'):
            o(P('s_lshr_b32 s%d, s2, 4' % sG), P('s_and_b32 s%d, s2, 15' % sM))
        o(P('v_lshrrev_b32 v252, 6, v0'), P('s_nop 0'), P('v_readfirstlane_b32 s%d, v252' % sW),
          P('v_and_b32 v%d, 63, v0' % vLANE))
        o(P('s_lshr_b32 s%d, s%d, 3' % (sTH, sM)), P('s_and_b32 s%d, s%d, 7' % (sCT, sM)))
        o(P('s_mov_b32 s%d, 0' % sRND), P('s_mov_b32 s%d, 0' % sMODE))
        I = 250; Gq = 251; RR = 249; I3 = 248; t0 = 252; t1 = 253; t2 = 254; t3 = 255
        o(P('v_lshlrev_b32 v%d, 4, v%d' % (vL16, vLANE)),
          P('v_and_b32 v%d, 15, v%d' % (I, vLANE)), P('v_lshrrev_b32 v%d, 4, v%d' % (Gq, vLANE)),
          P('v_lshrrev_b32 v%d, 2, v%d' % (t0, I)), P('v_lshl_add_u32 v%d, v%d, 2, v%d' % (RR, Gq, t0)),
          P('v_and_b32 v%d, 3, v%d' % (I3, I)))
        o(P('s_waitcnt lgkmcnt(0)'))
        def srd(dst, src, size):
            return [P('s_mov_b32 s%d, s%d' % (dst, src)), P('s_and_b32 s%d, s%d, 0xffff' % (dst + 1, src + 1)),
                    P('s_mov_b32 s%d, 0x%x' % (dst + 2, size)), P('s_mov_b32 s%d, 0x20000' % (dst + 3))]
        o(srd(SRD_X, 72, 2097152), srd(SRD_WQ, 74, 512 * 3072), srd(SRD_WO, 76, 524288), srd(SRD_W1, 80, 512 * 3584),
          srd(SRD_B1, 82, 3584), srd(SRD_W2, 84, 1792 * 1024), srd(SRD_OUT, 86, 2097152),
          srd(SRD_DBG, 88, 256), srd(SRD_WS, 90, WS_SIZE))
        o(P('s_mul_i32 s%d, s%d, 49152' % (sWQ_SRC, sW)), P('s_lshl_b32 s52, s%d, 6' % sM),
          P('s_add_u32 s%d, s%d, s52' % (sWQ_SRC, sWQ_SRC)),
          P('s_lshl_b32 s%d, s%d, 10' % (sW1K, sW)),
          P('s_lshl_b32 s%d, s%d, 13' % (sWO_SRC, sW)), P('s_lshl_b32 s52, s%d, 7' % sCT),
          P('s_add_u32 s%d, s%d, s52' % (sWO_SRC, sWO_SRC)),
          P('s_mul_i32 s%d, s%d, %d' % (sW1_SRC, sW, 32 * 3584)), P('s_mul_i32 s52, s%d, 224' % sM),
          P('s_add_u32 s%d, s%d, s52' % (sW1_SRC, sW1_SRC)),
          P('s_mul_i32 s%d, s%d, 7168' % (sW1_M, sW)),
          P('s_lshl_b32 s%d, s%d, 17' % (sGBASE, sG)),
          P('s_lshl_b32 s%d, s%d, 8' % (sGFLG, sG)),
          P('s_lshl_b32 s52, s%d, 2' % sM), P('s_add_u32 s52, s52, s%d' % sW), P('s_lshl_b32 s52, s52, 2'),
          P('s_add_u32 s%d, s%d, s52' % (sFLGOFF, sGFLG)),
          P('s_lshl_b32 s52, s%d, 2' % sTH), P('s_add_u32 s%d, s52, s%d' % (sTB, sW)))
        if cfg.get('ts'):
            o(P('s_lshl_b32 s52, s2, 2'), P('s_add_u32 s52, s52, s%d' % sW), P('s_lshl_b32 s52, s52, 8'),
              P('s_add_u32 s%d, s52, %d' % (sTSO, 0x1F80000)))
        o(P('s_and_b32 s52, s%d, 1' % sG), P('s_lshl_b32 s52, s52, 4'), P('s_add_u32 s52, s52, s%d' % sM),
          P('s_lshl_b32 s52, s52, 2'), P('s_add_u32 s52, s52, s%d' % sW), P('s_lshl_b32 s%d, s52, 13' % sTUX),
          P('s_lshl_b32 s52, s%d, 2' % sM), P('s_add_u32 s52, s52, s%d' % sW), P('s_lshl_b32 s%d, s52, 13' % sTUG),
          P('v_lshlrev_b32 v%d, 7, v%d' % (vL128, vLANE)),
          P('s_mul_i32 s%d, s%d, %d' % (sST, sG, ACT_G)))
        if cfg.get('t_pro', 1):
            o(P('s_andn2_b32 s52, s%d, 1' % sG), P('s_lshl_b32 s52, s52, 17'), P('s_sub_u32 s52, s52, 16384'),
              P('s_max_i32 s52, s52, 0'), P('s_add_u32 s55, s52, s%d' % sTUX), P('s_cmp_lt_u32 s%d, %d' % (sTUX, 272 * 1024)),
              P('s_cselect_b32 s55, s55, 0x7ff00000'),
              VM('buffer_load_dword a255, v%d, s[8:11], s55 offen' % (vL128)))
            for t in self.touch_w('wq'):
                o(t)
        o(P('v_lshrrev_b32 v%d, 2, v%d' % (t0, vLANE)), P('v_lshrrev_b32 v%d, 2, v%d' % (t1, t0)),
          P('v_xor_b32 v%d, v%d, v%d' % (t1, t1, vLANE)), P('v_and_b32 v%d, 3, v%d' % (t1, t1)),
          P('v_lshlrev_b32 v%d, 4, v%d' % (t1, t1)),
          P('v_lshl_add_u32 v%d, v%d, 11, v%d' % (vDX, t0, t1)))
        o(P('v_lshlrev_b32 v%d, 1, v%d' % (t2, t0)), P('v_add_u32 v%d, 16, v%d' % (t3, t2)), P('v_add_u32 v%d, 1, v%d' % (t2, t2)),
          P('v_cmp_gt_u32 vcc, 8, v%d' % t0), P('v_cndmask_b32 v%d, v%d, v%d, vcc' % (t2, t2, t3)),
          P('v_lshl_add_u32 v%d, v%d, 10, v%d' % (vDH, t2, t1)))
        o(P('s_lshl_b32 s52, s%d, 7' % sG),
          P('s_sub_u32 s53, s52, 32'), P('s_lshl_b32 s%d, s53, 10' % sHSRC),
          P('s_cmp_eq_u32 s%d, 0' % sG), P('s_cselect_b32 s%d, 0, s%d' % (sHSRC, sHSRC)),
          P('s_cselect_b32 s53, 0x40000000, 0'), P('v_or_b32 v%d, s53, v%d' % (vDH, vDH)))
        for b in range(2):
            o(P('s_lshl_b32 s53, s%d, 1' % sW), P('s_add_u32 s53, s53, %d' % b), P('s_and_b32 s53, s53, 3'),
              P('s_lshl_b32 s53, s53, 5'), P('s_add_u32 s53, s53, s52'), P('s_lshr_b32 s54, s%d, 1' % sW),
              P('s_add_u32 s53, s53, s54'), P('s_lshl_b32 s%d, s53, 10' % (sXR0 + b)))
        o(P('v_lshrrev_b32 v%d, 4, v%d' % (t1, vLANE)), P('v_lshrrev_b32 v%d, 1, v%d' % (t2, vLANE)),
          P('v_xor_b32 v%d, v%d, v%d' % (t1, t1, t2)), P('v_and_b32 v%d, 1, v%d' % (t1, t1)),
          P('v_lshlrev_b32 v%d, 5, v%d' % (t1, t1)), P('v_and_b32 v%d, 1, v%d' % (t2, vLANE)),
          P('v_lshl_add_u32 v%d, v%d, 4, v%d' % (t1, t2, t1)),
          P('v_mul_u32_u24 v%d, 3072, v%d' % (t2, t0)), P('v_add_u32 v%d, v%d, v%d' % (vDQ, t1, t2)))
        self.tag_init = newtag('init')
        o(P('v_mov_b32 v%d, 0' % t1), P('s_mov_b64 exec, 1'),
          VM('buffer_store_dword v%d, v%d, s[28:31], s%d offen sc1' % (t1, t1, sFLGOFF), self.tag_init),
          P('s_mov_b64 exec, -1'))
        o(P('s_lshl_b32 s%d, s%d, 11' % (sD, sW)))
        self.xslot = {}
        for j in range(5):
            self.xslot[j] = self.x_ring_dma(j)
            o(self.xslot[j])
        self.wq_q = {}
        self.wq_q[0] = self.dma_wq_quarter(0); o(self.wq_q[0])
        self.halo_dma = []
        for a in range(4):
            d = [P('s_lshl_b32 s53, s%d, 6' % sW), P('s_add_u32 s53, s53, s%d' % sHSRC)] + \
                self.dma(SRD_X, vDH, 53, a * 256, sW1K, L_HALO + a * 4096)
            self.halo_dma.append(d); o(d)
        self.wq_q[1] = self.dma_wq_quarter(1); o(self.wq_q[1])
        if cfg.get('t_mall', 1):
            o(self.touch_mall())
        if cfg.get('t_tlb', 1):
            o(P('s_lshl_b32 s55, s%d, 17' % sG), P('s_mov_b64 exec, 1'),
              VM('buffer_load_dword a255, v%d, s[32:35], s55 offen' % vL128),
              P('s_add_u32 s55, s%d, %d' % (sST, WS_ACT + 458752)),
              VM('buffer_load_dword a255, v%d, s[28:31], s55 offen' % vL128),
              P('s_mov_b64 exec, -1'))
        o(P('s_lshl_b32 s52, s%d, 7' % sG), P('s_lshl_b32 s53, s%d, 5' % sW), P('s_add_u32 s53, s53, s52'), P('s_add_u32 s53, s53, s%d' % sTH),
          P('s_lshl_b32 s53, s53, 10'), P('s_lshl_b32 s54, s%d, 7' % sCT), P('s_add_u32 s53, s53, s54'),
          P('v_lshlrev_b32 v%d, 11, v%d' % (t1, I)), P('v_lshl_add_u32 v%d, v%d, 3, v%d' % (t1, Gq, t1)))
        self.tag_res = []
        for fb in range(4):
            t = newtag('res'); self.tag_res.append(t)
            o(VM('buffer_load_dwordx2 v[%d:%d], v%d, s[8:11], s53 offen offset:%d' % (vR + 2 * fb, vR + 2 * fb + 1, t1, fb * 32), t))
        o(P('v_and_b32 v%d, 1, v%d' % (t2, Gq)), P('v_lshlrev_b32 v%d, 5, v%d' % (t2, t2)),
          P('v_lshrrev_b32 v%d, 1, v%d' % (t3, Gq)), P('v_lshl_add_u32 v%d, v%d, 4, v%d' % (t2, t3, t2)),
          P('v_lshl_add_u32 v%d, v%d, 11, v%d' % (vOUT, I, t2)),
          P('s_mov_b32 s%d, s53' % 61))
        self.tag_b1 = newtag('b1')
        o(P('v_lshlrev_b32 v%d, 2, v%d' % (t1, vLANE)), P('s_mul_i32 s53, s%d, 224' % sM),
          VM('buffer_load_dword v%d, v%d, s[40:43], s53 offen' % (247, t1), self.tag_b1))
        for k in range(4):
            o(P('v_mov_b32 v%d, 0x3f803f80' % (vONES + k)))
        o(P('s_mov_b32 s%d, 1.0' % sONE), P('s_mov_b32 s%d, 1.0' % (sONE + 1)),
          P('s_mov_b32 s%d, %s' % (sM2L, f32(-2 * LN2))), P('s_mov_b32 s%d, %s' % (sM2L + 1, f32(-2 * LN2))),
          P('v_mov_b32 v%d, %s' % (vLN2, f32(LN2))), P('v_mov_b32 v%d, %s' % (vLN2 + 1, f32(LN2))))
        o(P('v_lshlrev_b32 v%d, 6, v%d' % (t0, RR)), P('v_lshl_add_u32 v%d, v%d, 3, v%d' % (t0, I3, t0)),
          P('v_add_u32 v%d, %d, v%d' % (t0, L_W, t0)),
          P('v_and_b32 v%d, 1, v%d' % (t1, Gq)), P('v_lshlrev_b32 v%d, 5, v%d' % (t1, t1)),
          P('v_add_u32 v%d, v%d, v%d' % (vWQA, t0, t1)),
          P('v_xor_b32 v%d, 32, v%d' % (t2, t1)), P('v_add_u32 v%d, v%d, v%d' % (vWQA + 1, t0, t2)),
          P('v_add_u32 v%d, 0x10000, v%d' % (vWQA + 2, vWQA)), P('v_add_u32 v%d, 0x10000, v%d' % (vWQA + 3, vWQA + 1)))
        o(P('s_and_b32 s53, s%d, 1' % sW), P('s_lshl_b32 s53, s53, 5'), P('v_xor_b32 v%d, s53, v%d' % (t2, t1)),
          P('v_add_u32 v%d, v%d, v%d' % (vE2, t0, t2)),
          P('s_lshr_b32 s53, s%d, 1' % sW), P('s_add_u32 s53, s53, 1'), P('s_lshl_b32 s53, s53, 15'),
          P('v_add_u32 v%d, s53, v%d' % (vE1, vE2)))
        o(P('v_lshrrev_b32 v%d, 1, v%d' % (t0, Gq)), P('v_lshrrev_b32 v%d, 2, v%d' % (t1, I)),
          P('v_xor_b32 v%d, v%d, v%d' % (t0, t0, t1)), P('v_lshlrev_b32 v%d, 4, v%d' % (t0, t0)),
          P('v_lshl_add_u32 v%d, v%d, 6, v%d' % (t0, I, t0)),
          P('v_and_b32 v%d, 1, v%d' % (t1, Gq)), P('v_lshl_add_u32 v%d, v%d, 3, v%d' % (t0, t1, t0)),
          P('v_add_u32 v%d, %d, v%d' % (vHXA, L_HALO, t0)), P('v_xor_b32 v%d, 32, v%d' % (vHXB, vHXA)),
          P('s_lshl_b32 s53, s%d, 11' % sW), P('s_add_u32 s53, s53, %d' % L_RING),
          P('v_add_u32 v%d, s53, v%d' % (vXA, t0)), P('v_xor_b32 v%d, 32, v%d' % (vXB, vXA)))
        o(P('v_mul_u32_u24 v%d, 224, v%d' % (t0, RR)), P('v_lshl_add_u32 v%d, v%d, 3, v%d' % (vW1A, I3, t0)),
          P('v_add_u32 v%d, 0x10000, v%d' % (vW1A + 1, vW1A)), P('v_add_u32 v%d, 0x20000, v%d' % (vW1A + 2, vW1A)))
        o(P('v_lshlrev_b32 v%d, 7, v%d' % (t0, RR)), P('v_lshl_add_u32 v%d, v%d, 3, v%d' % (t0, I3, t0)),
          P('s_and_b32 s53, s%d, 1' % sW), P('s_lshl_b32 s53, s53, 12'), P('s_add_u32 s53, s53, %d' % L_W),
          P('v_add_u32 v%d, s53, v%d' % (t0, t0)),
          P('v_lshrrev_b32 v%d, 1, v%d' % (t1, RR)), P('v_and_b32 v%d, 3, v%d' % (t1, t1)))
        for fb in range(4):
            o(P('v_xor_b32 v%d, %d, v%d' % (t2, fb, t1)), P('v_lshl_add_u32 v%d, v%d, 5, v%d' % (vW2A + fb * 3, t2, t0)),
              P('v_add_u32 v%d, 0x10000, v%d' % (vW2A + fb * 3 + 1, vW2A + fb * 3)),
              P('v_add_u32 v%d, 0x20000, v%d' % (vW2A + fb * 3 + 2, vW2A + fb * 3)))
        o(P('v_lshrrev_b32 v%d, 3, v%d' % (t0, vLANE)), P('v_lshrrev_b32 v%d, 1, v%d' % (t1, t0)),
          P('v_lshrrev_b32 v%d, 1, v%d' % (t2, vLANE)), P('v_xor_b32 v%d, v%d, v%d' % (t1, t1, t2)),
          P('v_and_b32 v%d, 3, v%d' % (t1, t1)), P('v_lshlrev_b32 v%d, 5, v%d' % (t1, t1)),
          P('v_and_b32 v%d, 1, v%d' % (t2, vLANE)), P('v_lshl_add_u32 v%d, v%d, 4, v%d' % (t1, t2, t1)),
          P('v_lshl_add_u32 v%d, v%d, 10, v%d' % (vDO, t0, t1)))
        for c in range(448):
            assert (c * 4682) >> 16 == c // 14
        for u in range(7):
            o(P('v_add_u32 v%d, %d, v%d' % (t0, 64 * u, vLANE)), P('v_mul_u32_u24 v%d, 4682, v%d' % (t1, t0)),
              P('v_lshrrev_b32 v%d, 16, v%d' % (t1, t1)), P('v_mul_u32_u24 v%d, 14, v%d' % (t2, t1)),
              P('v_sub_u32 v%d, v%d, v%d' % (t2, t0, t2)), P('v_lshlrev_b32 v%d, 4, v%d' % (t2, t2)),
              P('v_mul_u32_u24 v%d, 3584, v%d' % (t1, t1)), P('v_add_u32 v%d, v%d, v%d' % (vD1 + u, t1, t2)))
        o(P('v_lshlrev_b32 v%d, 4, v%d' % (vCS, Gq)))
        NEG = f32(-1e30)
        o(P('v_mov_b32 v%d, %s' % (t3, NEG)))
        for r in range(4):
            o(P('v_lshl_add_u32 v%d, v%d, 2, %d' % (t0, Gq, r)),
              P('v_sub_u32 v%d, v%d, v%d' % (t1, I, t0)), P('v_cmp_gt_u32 vcc, 8, v%d' % t1),
              P('v_cndmask_b32 v%d, v%d, 0, vcc' % (vCCUR + r, t3)) if False else None,
              P('v_cndmask_b32_e64 v%d, v%d, 0, vcc' % (vCCUR + r, t3)),
              P('v_add_u32 v%d, 9, v%d' % (t1, I)), P('v_cmp_ge_u32 vcc, v%d, v%d' % (t0, t1)),
              P('v_cndmask_b32_e64 v%d, v%d, 0, vcc' % (vCPREV + r, t3)))
        o(P('s_and_b32 s53, s%d, 1' % sW), P('s_or_b32 s53, s53, s%d' % sG), P('s_cmp_eq_u32 s53, 0'),
          P('s_cselect_b64 vcc, -1, 0'))
        for r in range(4):
            o(P('v_cndmask_b32 v%d, v%d, v%d, vcc' % (vCPA + r, vCPREV + r, t3)))
        o(P('v_lshlrev_b32 v%d, 2, v%d' % (t0, Gq)), P('v_add_u32 v%d, 6, v%d' % (t1, I)),
          P('v_cmp_ge_u32 s[%d:%d], v%d, v%d' % (sUP, sUP + 1, t0, t1)))
        o(P('v_cmp_eq_u32 s[%d:%d], 1, v%d' % (sMA, sMA + 1, I3)), P('v_cmp_eq_u32 s[%d:%d], 2, v%d' % (sMB, sMB + 1, I3)),
          P('v_cmp_eq_u32 s[%d:%d], 3, v%d' % (sMC, sMC + 1, I3)), P('v_lshrrev_b32 v%d, 2, v%d' % (t0, I)),
          P('v_cmp_eq_u32 s[%d:%d], v%d, v%d' % (sMD, sMD + 1, t0, Gq)))
        o(P('v_lshlrev_b32 v%d, 5, v%d' % (t0, I)), P('v_lshl_add_u32 v%d, v%d, 3, v%d' % (t0, Gq, t0)),
          P('s_lshl_b32 s53, s%d, 11' % sW), P('s_add_u32 s53, s53, %d' % L_EX),
          P('v_add_u32 v%d, s53, v%d' % (vEXV, t0)))
        o(P('s_lshr_b32 s53, s%d, 1' % sW), P('s_add_u32 s54, s53, 3'), P('s_bitcmp1_b32 s%d, 0' % sW),
          P('s_cselect_b32 s53, s54, s53'), P('s_lshl_b32 s53, s53, 10'), P('s_add_u32 s53, s53, %d' % L_EXK),
          P('v_lshlrev_b32 v%d, 3, v%d' % (t1, vLANE)), P('v_add_u32 v%d, s53, v%d' % (vEXK, t1)))
        o(P('s_and_b32 s53, s%d, 1' % sW), P('s_lshl_b32 s53, s53, 9'),
          P('s_add_u32 s54, s53, %d' % (L_EXK + 2048)), P('v_add_u32 v%d, s54, v%d' % (t2, t1)),
          P('s_add_u32 s54, s53, %d' % (L_EX + 8192)), P('v_add_u32 v%d, s54, v%d' % (t3, t0)),
          P('s_cmp_ge_u32 s%d, 2' % sW), P('s_cselect_b64 vcc, -1, 0'),
          P('v_cndmask_b32 v%d, v%d, v%d, vcc' % (vEXH, t2, t3)))
        o(P('v_lshlrev_b32 v%d, 5, v%d' % (t0, RR)), P('v_lshl_add_u32 v%d, v%d, 3, v%d' % (t0, I3, t0)),
          P('s_lshl_b32 s53, s%d, 11' % sW), P('s_add_u32 s53, s53, %d' % L_EX), P('v_add_u32 v%d, s53, v%d' % (vRV, t0)))
        o(P('v_subrev_u32 v%d, 1024, v%d' % (t1, vRV)),
          P('v_add_u32 v%d, %d, v%d' % (t2, L_EX + 8192, t0)),
          P('v_subrev_u32 v%d, 256, v%d' % (t3, t2)),
          P('v_cmp_le_u32 vcc, 8, v%d' % RR), P('v_cndmask_b32 v%d, v%d, v%d, vcc' % (t3, t2, t3)),
          P('s_cmp_eq_u32 s%d, 0' % sW), P('s_cselect_b64 vcc, -1, 0'), P('v_cndmask_b32 v%d, v%d, v%d, vcc' % (t2, t2, t3)),
          P('s_bitcmp1_b32 s%d, 0' % sW), P('s_cselect_b64 vcc, -1, 0'), P('v_cndmask_b32 v%d, v%d, v%d, vcc' % (vRVP, t2, t1)))
        o(P('v_lshlrev_b32 v%d, 3, v%d' % (t0, vLANE)),
          P('s_lshr_b32 s53, s%d, 1' % sW), P('s_bitcmp1_b32 s%d, 0' % sW), P('s_cselect_b32 s53, s53, 2'),
          P('s_lshl_b32 s53, s53, 10'), P('s_add_u32 s53, s53, %d' % L_EXK), P('v_add_u32 v%d, s53, v%d' % (t0, t0)),
          P('v_subrev_u32 v%d, 64, v%d' % (t1, t0)), P('v_cmp_le_u32 vcc, 8, v%d' % I),
          P('v_cndmask_b32 v%d, v%d, v%d, vcc' % (t1, t0, t1)),
          P('s_cmp_eq_u32 s%d, 0' % sW), P('s_cselect_b64 vcc, -1, 0'), P('v_cndmask_b32 v%d, v%d, v%d, vcc' % (vRK, t0, t1)))
        o(P('s_lshl_b32 s53, s%d, 12' % sW), P('v_add_u32 v%d, s53, v%d' % (vEXBW, vL16)),
          P('v_xor_b32 v%d, 0x1000, v%d' % (vEXBR, vEXBW)))
        o(P('s_lshr_b32 s53, s%d, 1' % sCT), P('s_lshl_b32 s53, s53, 8'), P('s_and_b32 s54, s%d, 1' % sCT),
          P('s_lshl_b32 s54, s54, 3'), P('s_add_u32 s53, s53, s54'),
          P('v_lshlrev_b32 v%d, 4, v%d' % (t0, I)), P('v_add_u32 v%d, s53, v%d' % (vSTO, t0)))
        o(P('s_cmp_eq_u32 s%d, 0' % sTH), P('s_cselect_b32 s54, 8, 0'),
          P('v_subrev_u32 v%d, s54, v%d' % (t0, I)),
          P('v_lshl_add_u32 v%d, v%d, 4, v%d' % (t1, Gq, t0)), P('v_lshlrev_b32 v%d, 4, v%d' % (t1, t1)),
          P('v_lshlrev_b32 v%d, 4, v%d' % (t2, t0)), P('v_add_u32 v%d, s53, v%d' % (t2, t2)),
          P('s_cmp_eq_u32 s%d, 3' % sW), P('s_cselect_b32 s53, 0, 0x40000000'),
          P('s_cmp_eq_u32 s%d, 15' % sG), P('s_cselect_b32 s53, 0x40000000, s53'),
          P('v_mov_b32 v%d, 0x40000000' % t3), P('v_cmp_le_u32 vcc, 8, v%d' % I),
          P('v_cndmask_b32 v%d, v%d, v%d, vcc' % (t1, t3, t1)), P('v_cndmask_b32 v%d, v%d, v%d, vcc' % (t2, t3, t2)),
          P('v_or_b32 v%d, s53, v%d' % (vHOF, t1)), P('v_or_b32 v%d, s53, v%d' % (vHST, t2)))
        o(P('s_mul_i32 s53, s%d, s%d' % (sXCC, sXCC)), P('s_lshl_b32 s53, s53, 13'), P('s_lshl_b32 s54, s%d, 5' % sXCC),
          P('s_add_u32 s53, s53, s54'), P('s_add_u32 s53, s53, 1'), P('s_mov_b32 s%d, s53' % sB),
          P('s_lshr_b32 s53, s%d, 1' % sG), P('s_lshl_b32 s53, s53, 5'), P('s_and_b32 s54, s%d, 1' % sG),
          P('s_lshl_b32 s54, s54, 2'), P('s_add_u32 s%d, s53, s54' % sC))

    def x_ring_dma(self, j):
        out = []
        for b in range(2):
            out.append(self.dma(SRD_X, vDX, sXR0 + b, j * 64, sD, L_RING + (j % 5) * 8192 + b * 1024))
        return out

    @staticmethod
    def vmtags(ops):
        t = []
        for x in ops:
            if isinstance(x, (list, tuple)):
                t += Gen.vmtags(x)
            elif x is not None and not isinstance(x, str) and x.kind == 'vm':
                t.append(x.tag)
        return t

    def finish_stats(self, s1, s2, pair_kv, pair_q=None, scale=None):
        t = vT + 80
        o = [P('v_mul_f32 v%d, %s, v%d' % (t, f32(1 / 512), s1)),
             P('v_mul_f32 v%d, %s, v%d' % (t + 1, f32(1 / 512), s2)),
             P('v_fma_f32 v%d, -v%d, v%d, v%d' % (t + 1, t, t, t + 1)),
             P('v_max_f32 v%d, 0, v%d' % (t + 1, t + 1)),
             P('v_add_f32 v%d, %s, v%d' % (t + 1, f32(1e-5), t + 1)),
             P('v_rsq_f32 v%d, v%d' % (pair_kv, t + 1))]
        if scale is not None:
            o.append(P('v_mul_f32 v%d, %s, v%d' % (pair_kv, f32(scale), pair_kv)))
        o.append(P('v_mul_f32 v%d, -v%d, v%d' % (pair_kv + 1, t, pair_kv)))
        if pair_q is not None:
            qs = f32(0.25 * LOG2E)
            o += [P('v_mul_f32 v%d, %s, v%d' % (pair_q, qs, pair_kv)), P('v_mul_f32 v%d, %s, v%d' % (pair_q + 1, qs, pair_kv + 1))]
        return o

    def reduce_g2(self, a, b):
        t = vT + 84
        return [P('v_permlane32_swap_b32 v%d, v%d' % (a, b)), P('v_add_f32 v%d, v%d, v%d' % (a, a, b)),
                P('v_mov_b32 v%d, v%d' % (t, a)), P('v_permlane16_swap_b32 v%d, v%d' % (a, t)),
                P('v_add_f32 v%d, v%d, v%d' % (a, a, t)), P('v_mov_b32 v%d, v%d' % (b, a)),
                P('v_permlane32_swap_b32 v%d, v%d' % (a, b))]

    def stats_from_st(self, regs, pair_kv, pair_q=None, scale=None):
        return [P('v_add_f32 v%d, v%d, v%d' % (regs, regs, regs + 2)), P('v_add_f32 v%d, v%d, v%d' % (regs + 1, regs + 1, regs + 3))] + \
            self.reduce_g2(regs, regs + 1) + self.finish_stats(regs, regs + 1, pair_kv, pair_q, scale)

    def accP1(self, blk, tb):
        return vACC + (blk * 2 + tb) * 4
    ACC_H = vACC + 48
    ACC_CS1 = vACC + 52
    ACC_CS2 = vACC + 56
    PKV = [vT + 0, vT + 2]; PQ = [vT + 4, vT + 6]; PH = vT + 8

    def wq_read(self, blk, j, part, dst):
        p = blk // 2; h = blk % 2
        if p < 2:
            return LG('ds_read_b64_tr_b16 v[%d:%d], v%d offset:%d' % (dst + 2 * part, dst + 2 * part + 1, vWQA + h, p * 32768 + j * 2048 + part * 1024))
        return LG('ds_read_b64_tr_b16 v[%d:%d], v%d offset:%d' % (dst + 2 * part, dst + 2 * part + 1, vWQA + 2 + h, j * 2048 + part * 1024))

    def p1a(self):
        o = self.add
        XB = vT + 12
        S1 = vT + 36
        S2 = vT + 48
        def xb(j, b): return XB + (j & 1) * 12 + b * 4
        xr_tags = {}
        def xreads(j):
            ops = []
            for b in range(2):
                ops.append(LG('ds_read_b64 v[%d:%d], v%d offset:%d' % (xb(j, b), xb(j, b) + 1, vXA, (j % 5) * 8192 + b * 1024)))
                ops.append(LG('ds_read_b64 v[%d:%d], v%d offset:%d' % (xb(j, b) + 2, xb(j, b) + 3, vXB, (j % 5) * 8192 + b * 1024)))
            ops.append(LG('ds_read_b64 v[%d:%d], v%d offset:%d' % (xb(j, 2), xb(j, 2) + 1, vHXA, j * 1024)))
            ops.append(LG('ds_read_b64 v[%d:%d], v%d offset:%d' % (xb(j, 2) + 2, xb(j, 2) + 3, vHXB, j * 1024)))
            xr_tags[j] = [x.tag for x in ops]
            return ops
        groups = []
        n = 0
        extras = []
        for j in range(5, 16):
            self.xslot[j] = self.x_ring_dma(j)
        for q in (2, 3):
            self.wq_q[q] = self.dma_wq_quarter(q)
        mfidx = 0
        first_idx = {}
        for j in range(16):
            first_idx[j] = mfidx
            z = (j == 0)
            for blk in range(8):
                dst = self.afrag(n); n += 1
                g = dict(pre=[], reads=[], mf=[])
                if blk == 0:
                    if j % 4 == 0:
                        q = j // 4
                        wt = self.vmtags(self.wq_q[q])
                        if j == 0:
                            wt += self.vmtags(self.halo_dma)
                        g['pre'] += [W(wt), P('s_barrier')]
                    g['pre'] += [W(self.vmtags(self.xslot[j]))]
                    g['reads'] += xreads(j)
                if blk < 6:
                    g['reads'] += [self.wq_read(blk, j, 0, dst), self.wq_read(blk, j, 1, dst)]
                    for tb in range(2):
                        acc = self.accP1(blk, tb)
                        c = '0' if z else vr(acc, 4)
                        g['mf'].append(('v_mfma_f32_16x16x32_bf16 %s, %s, %s, %s' % (vr(acc, 4), vr(dst, 4), vr(xb(j, tb), 4), c), []))
                    if blk in (1, 3, 5):
                        b = blk // 2
                        for (accb, A) in ((S1 + b * 4, vONES), (S2 + b * 4, xb(j, b))):
                            c = '0' if z else vr(accb, 4)
                            g['mf'].append(('v_mfma_f32_16x16x32_bf16 %s, %s, %s, %s' % (vr(accb, 4), vr(A, 4), vr(xb(j, b), 4), c), []))
                else:
                    base = vE1 if blk == 6 else vE2
                    g['reads'] += [LG('ds_read_b64_tr_b16 v[%d:%d], v%d offset:%d' % (dst + 2 * part, dst + 2 * part + 1, base, j * 2048 + part * 1024)) for part in range(2)]
                    if blk == 6:
                        c = '0' if z else vr(self.ACC_H, 4)
                        g['mf'].append(('v_mfma_f32_16x16x32_bf16 %s, %s, %s, %s' % (vr(self.ACC_H, 4), vr(dst, 4), vr(xb(j, 2), 4), c), []))
                        c = '0' if z else vr(self.ACC_CS1, 4)
                        g['mf'].append(('v_mfma_f32_16x16x32_bf16 %s, %s, %s, %s' % (vr(self.ACC_CS1, 4), vr(dst, 4), vr(vONES, 4), c), []))
                    else:
                        c = '0' if z else vr(self.ACC_CS2, 4)
                        g['mf'].append(('v_mfma_f32_16x16x32_bf16 %s, %s, %s, %s' % (vr(self.ACC_CS2, 4), vr(dst, 4), vr(vONES, 4), c), []))
                mfidx += len(g['mf'])
                groups.append(g)
        for j in range(11):
            for b, d in enumerate(self.xslot[j + 5]):
                extras.append((first_idx[j] + 2 + 2 * b, d))
        for k, d in enumerate(self.wq_q[2]):
            extras.append((first_idx[k // 2] + 8 + 4 * (k % 2), d))
        for k, d in enumerate(self.wq_q[3]):
            extras.append((first_idx[3 + k // 2] + 8 + 4 * (k % 2), d))
        reg = [W(self.tag_init), P('v_mov_b32 v%d, s%d' % (vTA, sB)), P('v_mov_b32 v%d, s%d' % (vTB, sC)),
               P('s_cmp_eq_u32 s%d, 0' % sW), P('s_cselect_b32 s53, 0, 0x40000000'),
               P('v_or_b32 v%d, s53, v%d' % (vTB, vTB)),
               P('s_mov_b64 exec, 1'),
               VM('buffer_atomic_add v%d, v%d, s[36:39], 0 offen' % (vTA, vTB)),
               P('s_mov_b64 exec, -1')]
        extras.append((first_idx[4] + 3, reg))
        groups[8 * 4]['pre'] = [W(self.tag_init)] + groups[8 * 4]['pre']
        extras.append((first_idx[8] + 9, self.mode_load()))
        extras.append((first_idx[11] + 1, self.mode_check()))
        tset = self.touch_set(self.cfg.get('t_p1a', 'of,xf'))
        k0 = self.cfg.get('t_p1a_k', 11)
        post = []
        for k, t in enumerate(tset):
            if k0 + k < 16:
                extras.append((first_idx[k0 + k] + 5, t))
            else:
                post.append(t)
        extras += self.sched_touches('p1a', first_idx)
        o(self.gemm_loop(groups, self.cfg.get('la_p1a', 3), extras))
        for t in post:
            o(t)
        t0 = 252; t1 = 253
        o(W(self.tag_b1), P('v_lshlrev_b32 v%d, 16, v247' % t0), P('v_and_b32 v%d, 0xffff0000, v247' % t1),
          P('v_mul_f32 v%d, %s, v%d' % (t0, f32(LOG2E), t0)), P('v_mul_f32 v%d, %s, v%d' % (t1, f32(LOG2E), t1)),
          P('v_lshlrev_b32 v%d, 3, v%d' % (vTA, vLANE)),
          P('s_mov_b32 exec_hi, 0x00ffffff'),
          LG('ds_write_b64 v%d, v[%d:%d] offset:%d' % (vTA, t0, t1, L_BB1)),
          P('s_mov_b64 exec, -1'))
        o(P('s_add_u32 s53, s%d, 2' % sW), P('s_lshl_b32 s53, s53, 6'), P('v_add_u32 v%d, s53, v%d' % (vTA, vCS)),
          P('s_and_b32 s53, s%d, 1' % sW), P('s_lshl_b32 s53, s53, 6'), P('v_add_u32 v%d, s53, v%d' % (vTB, vCS)),
          P('s_mov_b32 s52, 0x00010001'), P('s_mov_b32 s53, 0x00010001'), P('s_mov_b64 exec, s[52:53]'),
          LG('ds_write_b128 v%d, %s offset:%d' % (vTA, vr(self.ACC_CS1, 4), L_CSQ)),
          LG('ds_write_b128 v%d, %s offset:%d' % (vTB, vr(self.ACC_CS2, 4), L_CSQ)),
          P('s_mov_b64 exec, -1'))
        for b in range(3):
            s2 = S2 + b * 4
            o(P('v_cndmask_b32_e64 v%d, v%d, v%d, s[%d:%d]' % (s2, s2, s2 + 1, sMA, sMA + 1)),
              P('v_cndmask_b32_e64 v%d, v%d, v%d, s[%d:%d]' % (s2, s2, s2 + 2, sMB, sMB + 1)),
              P('v_cndmask_b32_e64 v%d, v%d, v%d, s[%d:%d]' % (s2, s2, s2 + 3, sMC, sMC + 1)),
              P('v_cndmask_b32_e64 v%d, 0, v%d, s[%d:%d]' % (s2, s2, sMD, sMD + 1)))
            t = s2 + 1
            o(P('v_mov_b32 v%d, v%d' % (t, s2)), P('v_permlane32_swap_b32 v%d, v%d' % (s2, t)),
              P('v_add_f32 v%d, v%d, v%d' % (s2, s2, t)), P('v_mov_b32 v%d, v%d' % (t, s2)),
              P('v_permlane16_swap_b32 v%d, v%d' % (s2, t)), P('v_add_f32 v%d, v%d, v%d' % (s2, s2, t)))
            if b < 2:
                o(self.finish_stats(S1 + b * 4, s2, self.PKV[b], self.PQ[b]))
            else:
                o(self.finish_stats(S1 + b * 4, s2, self.PH))
        o(WALL(False, True), P('s_barrier'))

    def p1b(self):
        o = self.add
        cfg = self.cfg
        for b in range(2):
            o(P('s_lshl_b32 s53, s%d, 1' % sW), P('s_add_u32 s53, s53, %d' % b), P('s_lshl_b32 s53, s53, 14'),
              P('s_add_u32 s%d, s53, s%d' % (sB0 + b, sX2)))
        xl = self.x_loads(16)
        pro = cfg.get('x_pro', 4)
        for j in range(pro):
            o(xl[j])
        stt = []
        STR = vT + 12
        for b in range(2):
            t = newtag('st'); stt.append(t)
            o(P('s_lshl_b32 s54, s%d, 11' % sW), P('s_add_u32 s53, s54, s%d' % sS2),
              P('s_add_u32 s53, s53, %d' % (b * 1024)),
              VM('buffer_load_dwordx4 %s, v%d, s[28:31], s53 offen sc1' % (vr(STR + 4 * b, 4), vL16), t))
        groups = []; n = 0; first_idx = {}; mfidx = 0
        for j in range(16):
            first_idx[j] = mfidx
            for blk in range(6):
                dst = self.afrag(n); n += 1
                g = dict(pre=[], reads=[self.wq_read(blk, j, 0, dst), self.wq_read(blk, j, 1, dst)], mf=[])
                for tb in range(2):
                    acc = self.accP1(blk, tb)
                    c = '0' if j == 0 else vr(acc, 4)
                    wt = self.vmtags(xl[j][tb]) if blk == 0 else []
                    g['mf'].append(('v_mfma_f32_16x16x32_bf16 %s, %s, %s, %s' % (vr(acc, 4), vr(dst, 4), ar((j * 2 + tb) * 4, 4), c), wt))
                mfidx += 2
                groups.append(g)
        extras = []
        k = 0
        rate = cfg.get('x_rate', 4)
        for j in range(pro, 16):
            for b in range(2):
                extras.append((first_idx[k // rate] + 1 + (12 // rate) * (k % rate), xl[j][b])); k += 1
        lastx = extras[-1][0]
        hp = [W(self.halo_store_tags), P('v_mov_b32 v%d, 1' % vTA),
              P('s_cmp_eq_u32 s%d, 3' % sW), P('s_cselect_b32 s53, 0, 0x40000000'),
              P('s_cmp_eq_u32 s%d, 15' % sG), P('s_cselect_b32 s53, 0x40000000, s53'),
              P('s_add_u32 s54, s%d, 1' % sG), P('s_lshr_b32 s52, s54, 1'), P('s_lshl_b32 s52, s52, 5'),
              P('s_and_b32 s54, s54, 1'), P('s_lshl_b32 s54, s54, 2'), P('s_add_u32 s52, s52, s54'),
              P('s_add_u32 s52, s52, 8'), P('s_or_b32 s53, s53, s52'),
              P('v_mov_b32 v%d, s53' % vTB),
              P('s_mov_b64 exec, 1'),
              VM('buffer_atomic_add v%d, v%d, s[36:39], 0 offen' % (vTA, vTB)),
              P('s_mov_b64 exec, -1')]
        extras.append((first_idx[0] + 6, hp))
        st_ops = [W(stt)]
        for b in range(2):
            st_ops += self.stats_from_st(STR + 4 * b, self.PKV[b], self.PQ[b])
        extras += self.spread(st_ops, first_idx[2] + 2, 1)
        HS = vT + 56
        HC = vT + 60; HZ = vT + 61
        spin = self.L('hsp'); hok = self.L('hok')
        tagc = newtag('hc'); htags = [newtag('h') for _ in range(17)]
        hk0 = cfg.get('halo_k0', 7); hk1 = cfg.get('halo_k', 10)
        h0 = [P('v_mov_b32 v%d, 0' % HZ),
              P('s_lshr_b32 s54, s%d, 1' % sG), P('s_lshl_b32 s54, s54, 5'), P('s_and_b32 s53, s%d, 1' % sG),
              P('s_lshl_b32 s53, s53, 2'), P('s_add_u32 s54, s54, s53'), P('s_add_u32 s%d, s54, 8' % sA),
              VM('buffer_load_dword v%d, v%d, s[36:39], s%d offen sc1' % (HC, HZ, sA), tagc)]
        extras.append((max(first_idx[hk0], lastx + 1), h0))
        hl = [W(tagc), P('s_mov_b32 s%d, 0' % sTMO),
              P('s_cmp_eq_u32 s%d, 0' % sG), P('s_cbranch_scc1 %s' % hok),
              LAB(spin),
              P('v_cmp_ne_u32 vcc, 16, v%d' % HC),
              P('s_cbranch_vccz %s' % hok),
              P('buffer_load_dword v%d, v%d, s[36:39], s%d offen sc1' % (HC, HZ, sA)),
              P('s_add_u32 s%d, s%d, 1' % (sTMO, sTMO)),
              P('s_waitcnt vmcnt(0)'),
              P('s_cmp_lt_u32 s%d, 0x100000' % sTMO), P('s_cbranch_scc1 %s' % spin),
              P('s_endpgm'),
              LAB(hok),
              P('s_cmp_eq_u32 s%d, 0' % sG), P('s_cselect_b32 s53, 0x40000000, 0'),
              P('v_or_b32 v%d, s53, v%d' % (HZ, vL16)),
              P('s_lshl_b32 s53, s%d, 10' % sG), P('s_add_u32 s53, s53, %d' % WS_HST),
              VM('buffer_load_dwordx4 %s, v%d, s[28:31], s53 offen sc1' % (vr(HS, 4), HZ), htags[16]),
              P('s_lshl_b32 s53, s%d, 14' % sG), P('s_add_u32 s%d, s53, %d' % (sA, WS_HF))]
        extras.append((first_idx[hk1], hl))
        for j in range(16):
            ops = []
            if j % 4 == 0:
                ops.append(P('s_add_u32 s%d, s%d, %d' % (sB, sA, j * 1024)))
            ops.append(VM('buffer_load_dwordx4 %s, v%d, s[28:31], s%d offen offset:%d sc1' % (ar(128 + 4 * j, 4), HZ, sB, (j % 4) * 1024), htags[j]))
            extras.append((first_idx[hk1] + 1 + 2 * j, ops))
        for k, t in enumerate(self.touch_set(cfg.get('t_p1b', ''))):
            extras.append((first_idx[hk1] + 34 + 6 * k, t))
        extras += self.spread([W(htags[16])] + self.stats_from_st(HS, self.PH), first_idx[15] - 14, 1)
        extras += self.sched_touches('p1b', first_idx)
        o(self.gemm_loop(groups, cfg.get('la', 3), extras))
        groups = []
        for j in range(16):
            dst = self.afrag(j)
            g = dict(pre=[], reads=[LG('ds_read_b64_tr_b16 v[%d:%d], v%d offset:%d' % (dst + 2 * part, dst + 2 * part + 1, vE1, j * 2048 + part * 1024)) for part in range(2)], mf=[])
            c = '0' if j == 0 else vr(self.ACC_H, 4)
            g['mf'].append(('v_mfma_f32_16x16x32_bf16 %s, %s, %s, %s' % (vr(self.ACC_H, 4), vr(dst, 4), ar(128 + 4 * j, 4), c), [htags[j]]))
            groups.append(g)
        o(self.gemm_loop(groups, 6, []))
        o(P('s_barrier'))

    def x_loads(self, nk, ring=None, depth=None):
        xl = []
        for j in range(nk):
            row = []
            for b in range(2):
                slot = j if depth is None else j % depth
                ops = []
                if j % 4 == 0:
                    ops.append(P('s_add_u32 s%d, s%d, %d' % (sXL0 + b, sB0 + b, j * 1024)))
                if self.cfg.get('noxl'):
                    ops.append(P('s_nop 0'))
                else:
                    ops.append(VM('buffer_load_dwordx4 %s, v%d, s[28:31], s%d offen offset:%d%s' % (ar((slot * 2 + b) * 4, 4), vL16, sXL0 + b, (j % 4) * 1024, '' if self.cfg.get('plainld') else ' sc1')))
                row.append(ops)
            xl.append(row)
        return xl

    def dual_store(self, stores):
        pure = self.L('stp'); done = self.L('std')
        o = [P('s_cmp_eq_u32 s%d, 0' % sMODE), P('s_cbranch_scc1 %s' % pure)]
        o += [P(s + ' sc1') for s in stores]
        o += [P('s_branch %s' % done), LAB(pure)]
        o += [P(s) for s in stores]
        o += [LAB(done)]
        cnt = [VM('; counted store') for _ in stores]
        return o + cnt, [c.tag for c in cnt]

    def p1_epi(self, dmas):
        o = []
        CS = vT + 12
        CSH = vT + 36
        Q = vT + 40
        K = vT + 48
        V = vT + 56
        HP = vT + 64
        TT = vT + 66
        cst = []
        for b in range(6):
            x = LG('ds_read_b128 %s, v%d offset:%d' % (vr(CS + 4 * b, 4), vCS, L_CSQ + b * 64)); cst.append(x.tag); o.append(x)
        o += [P('s_add_u32 s53, s%d, 2' % sW), P('s_lshl_b32 s53, s53, 6'), P('v_add_u32 v%d, s53, v%d' % (TT, vCS))]
        x = LG('ds_read_b128 %s, v%d offset:%d' % (vr(CSH, 4), TT, L_CSQ)); csh = x.tag; o.append(x)

        def ln(acc, cs, pair, dst):
            r = []
            for hh in range(2):
                t = TT + 2 * hh
                r.append(P('v_pk_mul_f32 %s, %s, %s op_sel:[0,1] op_sel_hi:[1,1]' % (vr(t, 2), vr(cs + 2 * hh, 2), vr(pair, 2))))
            for hh in range(2):
                t = TT + 2 * hh
                r.append(P('v_pk_fma_f32 %s, %s, %s, %s op_sel_hi:[1,0,1]' % (vr(t, 2), vr(acc + 2 * hh, 2), vr(pair, 2), vr(t, 2))))
            for hh in range(2):
                t = TT + 2 * hh
                r.append(P('v_cvt_pk_bf16_f32 v%d, v%d, v%d' % (dst + hh, t, t + 1)))
            return r
        wtags = []
        for blk in (4, 5, 2, 3, 0, 1):
            o.append(W(cst[blk]))
            for tb in range(2):
                h = blk % 2
                dst = (Q, K, V)[blk // 2] + (tb * 2 + h) * 2
                pair = self.PQ[tb] if blk < 2 else self.PKV[tb]
                o += ln(self.accP1(blk, tb), CS + 4 * blk, pair, dst)
                if blk >= 4:
                    x = LG('ds_write_b64 v%d, %s offset:%d' % (vEXV, vr(dst, 2), tb * 1024 + h * 512)); o.append(x)
                elif blk >= 2 and tb == 1:
                    x = LG('ds_write_b64 v%d, %s offset:%d' % (vEXK, vr(dst, 2), h * 512)); o.append(x)
            if blk == 3:
                o.append(W(csh))
                o += ln(self.ACC_H, CSH, self.PH, HP)
                o.append(LG('ds_write_b64 v%d, %s' % (vEXH, vr(HP, 2))))
        o += [WALL(False, True), P('s_barrier')]
        KP = vT + 70
        VV = vT + 12
        SC = vACC
        SP = vACC + 16
        PB = vACC + 32
        LL = vT + 24
        OO = vACC + 48
        MX = vT + 74
        rk = []; rv = []
        for h in range(2):
            x = LG('ds_read_b64 %s, v%d offset:%d' % (vr(KP + 2 * h, 2), vRK, h * 512)); rk.append(x.tag); o.append(x)
        for h in range(2):
            x = LG('ds_read_b64_tr_b16 %s, v%d offset:%d' % (vr(VV + 6 * h, 2), vRVP, h * 512)); rv.append(x.tag); o.append(x)
            for tb in range(2):
                x = LG('ds_read_b64_tr_b16 %s, v%d offset:%d' % (vr(VV + 6 * h + 2 + 2 * tb, 2), vRV, tb * 1024 + h * 512)); rv.append(x.tag); o.append(x)
        insts = [(tb, h) for tb in range(2) for h in range(2)]
        for n, (tb, h) in enumerate(insts):
            q = Q + (tb * 2 + h) * 2
            o.append(P('v_mfma_f32_16x16x16_bf16 %s, %s, %s, %s' % (vr(SC + 4 * n, 4), vr(K + (tb * 2 + h) * 2, 2), vr(q, 2), vr(vCCUR, 4))))
        for n, (tb, h) in enumerate(insts):
            q = Q + (tb * 2 + h) * 2
            if tb == 0:
                o.append(W(rk[h]))
                o.append(P('v_mfma_f32_16x16x16_bf16 %s, %s, %s, %s' % (vr(SP + 4 * n, 4), vr(KP + 2 * h, 2), vr(q, 2), vr(vCPA, 4))))
            else:
                o.append(P('v_mfma_f32_16x16x16_bf16 %s, %s, %s, %s' % (vr(SP + 4 * n, 4), vr(K + h * 2, 2), vr(q, 2), vr(vCPREV, 4))))
        for n in range(4):
            for r in range(4):
                o.append(P('v_max_f32 v%d, v%d, v%d' % (SC + 4 * n + r, SC + 4 * n + r, SP + 4 * n + r)))
        for n in range(4):
            o.append(P('v_max3_f32 v%d, v%d, v%d, v%d' % (MX + n, SC + 4 * n, SC + 4 * n + 1, SC + 4 * n + 2)))
        for n in range(4):
            o.append(P('v_max_f32 v%d, v%d, v%d' % (MX + n, MX + n, SC + 4 * n + 3)))
        a, b, c, d = MX, MX + 1, MX + 2, MX + 3
        o += [P('v_permlane32_swap_b32 v%d, v%d' % (a, b)), P('v_permlane32_swap_b32 v%d, v%d' % (c, d)),
              P('v_max_f32 v%d, v%d, v%d' % (a, a, b)), P('v_max_f32 v%d, v%d, v%d' % (c, c, d)),
              P('v_permlane16_swap_b32 v%d, v%d' % (a, c)), P('v_max_f32 v%d, v%d, v%d' % (a, a, c)),
              P('v_mov_b32 v%d, v%d' % (c, a)), P('v_permlane16_swap_b32 v%d, v%d' % (a, c)),
              P('v_mov_b32 v%d, v%d' % (b, a)), P('v_mov_b32 v%d, v%d' % (d, c)),
              P('v_permlane32_swap_b32 v%d, v%d' % (a, b)), P('v_permlane32_swap_b32 v%d, v%d' % (c, d))]
        for n in range(4):
            for hh in range(2):
                o.append(P('v_sub_f32 v%d, v%d, v%d' % (SC + 4 * n + 2 * hh, SC + 4 * n + 2 * hh, MX + n)))
                o.append(P('v_sub_f32 v%d, v%d, v%d' % (SC + 4 * n + 2 * hh + 1, SC + 4 * n + 2 * hh + 1, MX + n)))
        for n in range(4):
            for r in range(4):
                o.append(P('v_exp_f32 v%d, v%d' % (SC + 4 * n + r, SC + 4 * n + r)))
        for n in range(4):
            for hh in range(2):
                o.append(P('v_cvt_pk_bf16_f32 v%d, v%d, v%d' % (SP + 4 * n + hh, SC + 4 * n + 2 * hh, SC + 4 * n + 2 * hh + 1)))
        for n in range(4):
            for hh in range(2):
                o.append(P('v_cndmask_b32_e64 v%d, 0, v%d, s[%d:%d]' % (PB + 4 * n + hh, SP + 4 * n + hh, sUP, sUP + 1)))
                o.append(P('v_cndmask_b32_e64 v%d, v%d, 0, s[%d:%d]' % (PB + 4 * n + 2 + hh, SP + 4 * n + hh, sUP, sUP + 1)))
        o.append(W(rv))
        o.append(P('s_barrier'))
        for n, (tb, h) in enumerate(insts):
            o.append(P('v_mfma_f32_16x16x32_bf16 %s, %s, %s, 0' % (vr(LL + 4 * n, 4), vr(vONES, 4), vr(PB + 4 * n, 4))))
            o.append(P('v_mfma_f32_16x16x32_bf16 %s, %s, %s, 0' % (vr(OO + 4 * n, 4), vr(VV + 6 * h + 2 * tb, 4), vr(PB + 4 * n, 4))))
        for n in range(4):
            o.append(P('v_rcp_f32 v%d, v%d' % (LL + 4 * n, LL + 4 * n)))
        OUTR = vT + 40
        for n, (tb, h) in enumerate(insts):
            for hh in range(2):
                o.append(P('v_pk_mul_f32 %s, %s, %s op_sel_hi:[1,0]' % (vr(OO + 4 * n + 2 * hh, 2), vr(OO + 4 * n + 2 * hh, 2), vr(LL + 4 * n, 2))))
        for n, (tb, h) in enumerate(insts):
            for hh in range(2):
                o.append(P('v_cvt_pk_bf16_f32 v%d, v%d, v%d' % (OUTR + (tb * 2 + h) * 2 + hh, OO + 4 * n + 2 * hh, OO + 4 * n + 2 * hh + 1)))
        if dmas:
            k = min(i for i, x in enumerate(o) if x.text == 's_barrier') + 1
            body = interleave(o[k:], dmas, start=0, every=max(1, (len(o) - k) // (len(dmas) + 1)))
            o = o[:k] + body
        o += [P('s_lshl_b32 s54, s%d, 15' % sW), P('s_add_u32 s53, s54, s%d' % sOF), P('s_lshl_b32 s54, s%d, 10' % sM),
              P('s_add_u32 s53, s53, s54'), P('s_add_u32 s54, s53, 16384')]
        return o, ['buffer_store_dwordx4 %s, v%d, s[28:31], s%d offen' % (vr(OUTR + 4 * tb, 4), vL16, 53 + tb) for tb in range(2)]

    def mode_load(self):
        self.tag_mode = newtag('mode')
        return [P('s_lshr_b32 s53, s%d, 1' % sG), P('s_lshl_b32 s53, s53, 5'), P('s_and_b32 s54, s%d, 1' % sG),
                P('s_lshl_b32 s54, s54, 2'), P('s_add_u32 s%d, s53, s54' % sA),
                P('v_mov_b32 v%d, 0' % vTB),
                VM('buffer_load_dword v%d, v%d, s[36:39], s%d offen sc1' % (vTA, vTB, sA), self.tag_mode)]

    def mode_check(self):
        spin = self.L('rsp'); ok = self.L('rok')
        return [W(self.tag_mode), P('s_mov_b32 s%d, 0' % sTMO),
                P('v_readfirstlane_b32 s54, v%d' % vTA),
                P('s_nop 4'),
                P('s_and_b32 s52, s54, 31'), P('s_cmp_eq_u32 s52, 16'), P('s_cbranch_scc1 %s' % ok),
                LAB(spin),
                P('buffer_load_dword v%d, v%d, s[36:39], s%d offen sc1' % (vTA, vTB, sA)),
                P('s_add_u32 s%d, s%d, 1' % (sTMO, sTMO)),
                P('s_waitcnt vmcnt(0)'),
                P('v_readfirstlane_b32 s54, v%d' % vTA),
                P('s_nop 4'),
                P('s_and_b32 s52, s54, 31'), P('s_cmp_eq_u32 s52, 16'), P('s_cbranch_scc1 %s' % ok),
                P('s_cmp_lt_u32 s%d, 0x100000' % sTMO), P('s_cbranch_scc1 %s' % spin),
                P('s_endpgm'),
                LAB(ok),
                P('s_lshr_b32 s52, s54, 5'), P('s_and_b32 s52, s52, 255'), P('s_mul_i32 s52, s52, s52'),
                P('s_lshr_b32 s54, s54, 13'), P('s_lshl_b32 s54, s54, 4'),
                P('s_cmp_lg_u32 s52, s54'), P('s_cselect_b32 s%d, 1, 0' % sMODE)] + \
            ([P('s_mov_b32 s%d, 1' % sMODE)] if self.cfg.get('force_mixed') else []) + self.set_bases()

    def set_bases(self):
        o = [P('s_mul_i32 s52, s%d, %d' % (sG, ACT_G)), P('s_add_u32 s52, s52, %d' % WS_ACT),
             P('s_mul_i32 s53, s%d, %d' % (sG, 8 * 57344)), P('s_lshl_b32 s54, s%d, 13' % sG),
             P('s_cmp_eq_u32 s%d, %d' % (sMODE, 7 if self.cfg.get('noalias') else 0))]
        def sel(dst, pure_off, mixed_base_s, mixed_imm):
            return [P('s_add_u32 s55, s52, %d' % pure_off), P('s_add_u32 s%d, s%d, %d' % (dst, mixed_base_s, mixed_imm)),
                    P('s_cmp_eq_u32 s%d, %d' % (sMODE, 7 if self.cfg.get('noalias') else 0)),
                    P('s_cselect_b32 s%d, s55, s%d' % (dst, dst))]
        o += sel(sOF, 0, sGBASE, WS_OF) + sel(sAF, 0, 53, WS_AF) + sel(sX1, 458752, sGBASE, WS_XF) + \
            sel(sX2, 458752, sGBASE, WS_XF + XF_K) + sel(sS1, 589824, 54, WS_ST) + sel(sS2, 589824, 54, WS_ST + ST_K)
        for d, v in ((dOF, OF_R), (dAF, AF_R), (dX1, 2 * XF_K), (dS1, 2 * ST_K)):
            o.append(P('s_cselect_b32 s%d, 0, %d' % (d, v)))
        return o

    def gemmB(self, nk, srdW, src_base, nblk, depth, resident, refill_tags_out, exb, pre_extras=None, posf=None, tail=None, post=None):
        o = []
        o += [P('s_and_b32 s52, s%d, 1' % sW), P('s_mul_i32 s52, s52, %d' % (nk * 1024)),
              P('s_add_u32 s52, s52, s%d' % src_base),
              P('s_mul_i32 s53, s%d, %d' % (sTB, nblk * 1024)), P('s_add_u32 s%d, s52, s53' % sB0),
              P('s_xor_b32 s53, s%d, 1' % sTB), P('s_mul_i32 s53, s53, %d' % (nblk * 1024)), P('s_add_u32 s%d, s52, s53' % sB1)]
        xl = self.x_loads(nk, depth=depth)
        pro = min(nk, self.cfg.get('b_pro', 4))
        for t in range(pro):
            o += xl[t][0] + xl[t][1]
        groups = []; n = 0; first_idx = {}; mfidx = 0
        acc = lambda s, fb: vACC + (s * 4 + fb) * 4
        refills = []
        if nk > resident:
            for t in range(resident, nk):
                for kh in range(2):
                    refills.append(self.dma_wo_slot(srdW, nk, t, kh, posf(t)))
        for t in range(nk):
            first_idx[t] = mfidx
            pos = posf(t) if posf else t
            for fb in range(4):
                dst = self.afrag(n); n += 1
                g = dict(pre=[], reads=[], mf=[])
                if fb == 0 and t == resident:
                    g['pre'] += [W(self.vmtags(refills)), P('s_barrier')]
                for part in range(2):
                    a = pos * 8192 + part * 2048
                    win = a >> 16
                    g['reads'].append(LG('ds_read_b64_tr_b16 v[%d:%d], v%d offset:%d' % (dst + 2 * part, dst + 2 * part + 1, vW2A + fb * 3 + win, a & 0xffff)))
                for s in range(2):
                    c = '0' if t == 0 else vr(acc(s, fb), 4)
                    wt = self.vmtags(xl[t][s]) if fb == 0 else []
                    g['mf'].append(('v_mfma_f32_16x16x32_bf16 %s, %s, %s, %s' % (vr(acc(s, fb), 4), vr(dst, 4), ar(((t % depth) * 2 + s) * 4, 4), c), wt))
                mfidx += 2
                groups.append(g)
        extras = []
        last = -1
        for t in range(pro, nk):
            if t < depth:
                at = first_idx[min(nk - 1, (t - pro) // 2)] + 1 + 4 * ((t - pro) % 2)
            else:
                at = first_idx[t - depth] + 7
            at = max(at, last + 1)
            extras.append((at, xl[t][0])); extras.append((at + 1, xl[t][1]))
            last = at + 1
        if refills:
            nfree = nk - resident
            bar_at = first_idx[nfree] - 1
            extras.append((bar_at, [P('s_barrier')]))
            for k, d in enumerate(refills):
                extras.append((first_idx[nfree + k // 3] + 1 + 2 * (k % 3), d))
        if tail:
            extras.append((first_idx[resident] - 1, [P('s_barrier')]))
            nt_ = nk - resident
            for k, d in enumerate(tail):
                kk = k * nt_ // len(tail)
                extras.append((first_idx[resident + kk] + 1 + 2 * (k % 3), d))
        if pre_extras and False:
            for k, t in enumerate(pre_extras):
                extras.append((first_idx[min(nk - 1, self.cfg.get('t_p4_k', 16) + 2 * k)] + 4, t))
        extras += self.sched_touches('p4' if nk == 28 else 'p2', first_idx)
        o += self.gemm_loop(groups, self.cfg.get('la', 3), extras)
        o.append(P('s_barrier'))
        o += [P('v_add_u32 v%d, %d, v%d' % (vTA, exb, vEXBW)), P('v_add_u32 v%d, %d, v%d' % (vTB, exb, vEXBR))]
        if post:
            o += self.flat(post)
        for fb in range(4):
            o.append(LG('ds_write_b128 v%d, %s offset:%d' % (vTA, vr(acc(1, fb), 4), fb * 1024)))
        o += [WALL(False, True), P('s_barrier')]
        PT = vT
        rt = []
        for fb in range(4):
            x = LG('ds_read_b128 %s, v%d offset:%d' % (vr(PT + 4 * fb, 4), vTB, fb * 1024)); rt.append(x.tag); o.append(x)
        U = vT + 16
        for fb in range(4):
            for hh in range(2):
                r = vR + fb * 2 + hh
                o += [P('v_lshlrev_b32 v%d, 16, v%d' % (U + fb * 4 + hh * 2, r)), P('v_and_b32 v%d, 0xffff0000, v%d' % (U + fb * 4 + hh * 2 + 1, r))]
        for fb in range(4):
            for hh in range(2):
                a = acc(0, fb) + 2 * hh
                o.append(P('v_pk_add_f32 %s, %s, %s' % (vr(a, 2), vr(a, 2), vr(U + fb * 4 + 2 * hh, 2))))
        for fb in range(4):
            o.append(W(rt[fb]))
            for hh in range(2):
                a = acc(0, fb) + 2 * hh
                o.append(P('v_pk_add_f32 %s, %s, %s' % (vr(a, 2), vr(a, 2), vr(PT + fb * 4 + 2 * hh, 2))))
        for fb in range(4):
            for hh in range(2):
                a = acc(0, fb) + 2 * hh
                o.append(P('v_cvt_pk_bf16_f32 v%d, v%d, v%d' % (vR + fb * 2 + hh, a, a + 1)))
        return o

    def sw4(self):
        return self.touch_set(self.cfg.get('t_p4', ''), only_r1=True)

    def row_stats(self):
        s1 = vT + 32; s2 = vT + 33
        o = [P('v_mov_b32 v%d, 0' % s1), P('v_mov_b32 v%d, 0' % s2)]
        for k in range(8):
            o += [P('v_dot2c_f32_bf16 v%d, v%d, v%d' % (s1, vR + k, vONES)), P('v_dot2c_f32_bf16 v%d, v%d, v%d' % (s2, vR + k, vR + k))]
        o += self.reduce_g2(s1, s2)
        return o

    def x_stores(self, sx, ss):
        return [P('s_mul_i32 s53, s%d, 16384' % sTB), P('s_add_u32 s53, s53, s%d' % sx), P('s_lshl_b32 s54, s%d, 11' % sCT),
                P('s_add_u32 s53, s53, s54'),
                P('s_lshl_b32 s54, s%d, 10' % sTB), P('s_add_u32 s54, s54, s%d' % ss)]

    def x_store_block(self):
        pure = self.L('stp'); done = self.L('std')
        def body(fl):
            return [P('buffer_store_dwordx4 %s, v%d, s[28:31], s53 offen%s' % (vr(vR, 4), vL16, fl)),
                    P('buffer_store_dwordx4 %s, v%d, s[28:31], s53 offen offset:1024%s' % (vr(vR + 4, 4), vL16, fl)),
                    P('s_mov_b64 exec, 0xffff'),
                    P('buffer_store_dwordx2 %s, v%d, s[28:31], s54 offen%s' % (vr(vT + 32, 2), vSTO, fl)),
                    P('s_mov_b64 exec, -1')]
        o = [P('s_cmp_eq_u32 s%d, 0' % sMODE), P('s_cbranch_scc1 %s' % pure)] + body(' sc1') + \
            [P('s_branch %s' % done), LAB(pure)] + body('') + [LAB(done)]
        cnt = [VM('; counted store') for _ in range(3)]
        return o + cnt, [c.tag for c in cnt]

    def p3(self, extras_w2):
        o = []
        cfg = self.cfg
        for b in range(2):
            o += [P('s_lshl_b32 s53, s%d, 1' % sW), P('s_add_u32 s53, s53, %d' % b), P('s_lshl_b32 s53, s53, 14'),
                  P('s_add_u32 s%d, s53, s%d' % (sB0 + b, sX1))]
        xl = self.x_loads(16)
        pro = cfg.get('x_pro', 4)
        for j in range(pro):
            o += xl[j][0] + xl[j][1]
        stt = []
        STR = vT + 12
        PA = [vT + 0, vT + 2]
        for b in range(2):
            t = newtag('st'); stt.append(t)
            o += [P('s_lshl_b32 s54, s%d, 11' % sW), P('s_add_u32 s53, s54, s%d' % sS1),
                  P('s_add_u32 s53, s53, %d' % (b * 1024)),
                  VM('buffer_load_dwordx4 %s, v%d, s[28:31], s53 offen sc1' % (vr(STR + 4 * b, 4), vL16), t)]
        acc = lambda fb, tb: vACC + (fb * 2 + tb) * 4
        a3 = self.dma_w1_group(3)
        groups = []; n = 0; first_idx = {}; mfidx = 0
        for j in range(16):
            first_idx[j] = mfidx
            base = L_W1P[j // 4] + (j % 4) * 7168
            for fb in range(7):
                dst = self.afrag(n); n += 1
                g = dict(pre=[], reads=[], mf=[])
                if j == 12 and fb == 0:
                    g['pre'] += [W(self.vmtags(a3)), P('s_barrier')]
                for part in range(2):
                    a = base + part * 3584 + fb * 32
                    win = a >> 16
                    g['reads'].append(LG('ds_read_b64_tr_b16 v[%d:%d], v%d offset:%d' % (dst + 2 * part, dst + 2 * part + 1, vW1A + win, a & 0xffff)))
                for tb in range(2):
                    c = '0' if j == 0 else vr(acc(fb, tb), 4)
                    wt = self.vmtags(xl[j][tb]) if fb == 0 else []
                    g['mf'].append(('v_mfma_f32_16x16x32_bf16 %s, %s, %s, %s' % (vr(acc(fb, tb), 4), vr(dst, 4), ar((j * 2 + tb) * 4, 4), c), wt))
                mfidx += 2
                groups.append(g)
        extras = []
        k = 0
        rate = cfg.get('x_rate', 4)
        for j in range(pro, 16):
            for b in range(2):
                extras.append((first_idx[k // rate] + 1 + (14 // rate) * (k % rate), xl[j][b])); k += 1
        at = extras[-1][0] + 2
        for d in a3:
            extras.append((at, d)); at += 4
        st_ops = [W(stt)]
        for b in range(2):
            st_ops += self.stats_from_st(STR + 4 * b, PA[b], scale=LOG2E)
        extras += self.spread(st_ops, first_idx[2] + 2, 1)
        at = max(at, first_idx[9])
        for d in extras_w2:
            extras.append((at, d)); at += cfg.get('w2e_step', 7)
        for k, t in enumerate(self.touch_set(cfg.get('t_p3', 'af'), only_r1=True)):
            extras.append((first_idx[min(15, cfg.get('t_p3_k', 9) + 2 * k)] + 4, t))
        extras += self.sched_touches('p3', first_idx)
        o += self.gemm_loop(groups, cfg.get('la', 3), extras)
        o.append(P('s_barrier'))
        return o, PA

    def cs_w1(self):
        o = []
        A0 = vT + 40; A1 = vT + 44
        ad = vT + 48
        o += [P('s_lshl_b32 s53, s%d, 5' % sW), P('s_add_u32 s54, s%d, 4' % sW), P('s_min_u32 s54, s54, 6'), P('s_lshl_b32 s54, s54, 5')]
        for win in range(3):
            o += [P('v_add_u32 v%d, s53, v%d' % (ad + win, vW1A + win)), P('v_add_u32 v%d, s54, v%d' % (ad + 3 + win, vW1A + win))]
        groups = []; n = 0
        for j in range(16):
            base = L_W1P[j // 4] + (j % 4) * 7168
            for e in range(2):
                dst = self.afrag(n); n += 1
                g = dict(pre=[], reads=[], mf=[])
                for part in range(2):
                    a = base + part * 3584
                    g['reads'].append(LG('ds_read_b64_tr_b16 v[%d:%d], v%d offset:%d' % (dst + 2 * part, dst + 2 * part + 1, ad + 3 * e + (a >> 16), a & 0xffff)))
                accr = A0 if e == 0 else A1
                c = '0' if j == 0 else vr(accr, 4)
                g['mf'].append(('v_mfma_f32_16x16x32_bf16 %s, %s, %s, %s' % (vr(accr, 4), vr(dst, 4), vr(vONES, 4), c), []))
                groups.append(g)
        o += self.gemm_loop(groups, 3, [])
        o += [P('s_lshl_b32 s53, s53, 1'), P('s_lshl_b32 s54, s54, 1'),
              P('v_add_u32 v%d, s53, v%d' % (ad, vCS)), P('v_add_u32 v%d, s54, v%d' % (ad + 1, vCS)),
              P('s_mov_b32 s52, 0x00010001'), P('s_mov_b32 s53, 0x00010001'), P('s_mov_b64 exec, s[52:53]'),
              LG('ds_write_b128 v%d, %s offset:%d' % (ad, vr(A0, 4), L_CS1)),
              LG('ds_write_b128 v%d, %s offset:%d' % (ad + 1, vr(A1, 4), L_CS1)),
              P('s_mov_b64 exec, -1'), WALL(False, True), P('s_barrier')]
        return o

    def p3_epi(self, PA, dmas):
        o = []
        acc = lambda fb, tb: vACC + (fb * 2 + tb) * 4
        CS = vT + 12; BB = vT + 40
        PK = vT + 68
        cst = []
        for fb in range(7):
            x = LG('ds_read_b128 %s, v%d offset:%d' % (vr(CS + 4 * fb, 4), vCS, L_CS1 + fb * 64)); y = LG('ds_read_b128 %s, v%d offset:%d' % (vr(BB + 4 * fb, 4), vCS, L_BB1 + fb * 64))
            cst.append([x.tag, y.tag]); o += [x, y]
        T = vT + 68
        OUTR = lambda tb, fb: vAF + tb * 16 + fb * 2
        body = []
        for fb in range(7):
            body.append(W(cst[fb]))
            prs = [(tb, hh) for tb in range(2) for hh in range(2)]
            E = [T + 2 * k for k in range(4)]; U = [T + 8 + 2 * k for k in range(4)]
            for k, (tb, hh) in enumerate(prs):
                body.append(P('v_pk_fma_f32 %s, %s, %s, %s op_sel:[0,1,0] op_sel_hi:[1,1,1]' % (vr(E[k], 2), vr(CS + 4 * fb + 2 * hh, 2), vr(PA[tb], 2), vr(BB + 4 * fb + 2 * hh, 2))))
            for k, (tb, hh) in enumerate(prs):
                body.append(P('v_pk_fma_f32 %s, %s, %s, %s op_sel_hi:[1,0,1]' % (vr(E[k], 2), vr(acc(fb, tb) + 2 * hh, 2), vr(PA[tb], 2), vr(E[k], 2))))
            for k in range(4):
                body += [P('v_exp_f32 v%d, v%d' % (U[k], E[k])), P('v_exp_f32 v%d, v%d' % (U[k] + 1, E[k] + 1))]
            for k in range(4):
                body.append(P('v_pk_add_f32 %s, %s, s[%d:%d]' % (vr(U[k], 2), vr(U[k], 2), sONE, sONE + 1)))
            for k in range(4):
                body.append(P('v_pk_fma_f32 %s, %s, %s, s[%d:%d]' % (vr(U[k], 2), vr(U[k], 2), vr(U[k], 2), sONE, sONE + 1)))
            for k in range(4):
                body += [P('v_rcp_f32 v%d, v%d' % (U[k], U[k])), P('v_rcp_f32 v%d, v%d' % (U[k] + 1, U[k] + 1))]
            for k in range(4):
                body.append(P('v_pk_fma_f32 %s, %s, s[%d:%d], %s' % (vr(U[k], 2), vr(U[k], 2), sM2L, sM2L + 1, vr(vLN2, 2))))
            for k in range(4):
                body.append(P('v_pk_mul_f32 %s, %s, %s' % (vr(E[k], 2), vr(E[k], 2), vr(U[k], 2))))
            for k, (tb, hh) in enumerate(prs):
                body.append(P('v_cvt_pk_bf16_f32 v%d, v%d, v%d' % (OUTR(tb, fb) + hh, E[k], E[k] + 1)))
        if dmas:
            body = interleave(body, dmas, start=4, every=max(1, (len(body) - 8) // (len(dmas) + 1)))
        o += body
        o += [P('s_lshr_b32 s52, s%d, 1' % sM), P('s_mul_i32 s52, s52, 7168'), P('s_add_u32 s52, s52, s%d' % sAF),
              P('s_mul_i32 s53, s%d, %d' % (sW, 2 * 57344)), P('s_add_u32 s52, s52, s53'),
              P('s_add_u32 s53, s52, 57344'), P('s_add_u32 s54, s52, 4096'), P('s_add_u32 s55, s53, 4096')]
        def variant(odd, fl):
            r = []
            for tb in range(2):
                b0 = 52 + tb; b1 = 54 + tb
                if not odd:
                    for u in range(3):
                        r.append(P('buffer_store_dwordx4 %s, v%d, s[28:31], s%d offen offset:%d%s' % (vr(OUTR(tb, 2 * u), 4), vL16, b0, u * 1024, fl)))
                    r.append(P('buffer_store_dwordx2 %s, v%d, s[28:31], s%d offen offset:%d%s' % (vr(OUTR(tb, 6), 2), vL16, b0, 3072, fl)))
                else:
                    r.append(P('buffer_store_dwordx2 %s, v%d, s[28:31], s%d offen offset:%d%s' % (vr(OUTR(tb, 0), 2), vL16, b0, 3072 + 8, fl)))
                    for u in range(3):
                        r.append(P('buffer_store_dwordx4 %s, v%d, s[28:31], s%d offen offset:%d%s' % (vr(OUTR(tb, 2 * u + 1), 4), vL16, b1, u * 1024, fl)))
            return r
        l_odd = self.L('odd'); l_e1 = self.L('e1'); l_o1 = self.L('o1'); done = self.L('dn')
        o += [P('s_bitcmp1_b32 s%d, 0' % sM), P('s_cbranch_scc1 %s' % l_odd),
              P('s_cmp_eq_u32 s%d, 0' % sMODE), P('s_cbranch_scc1 %s' % l_e1)] + variant(False, ' sc1') + [P('s_branch %s' % done), LAB(l_e1)] + \
            variant(False, '') + [P('s_branch %s' % done), LAB(l_odd),
              P('s_cmp_eq_u32 s%d, 0' % sMODE), P('s_cbranch_scc1 %s' % l_o1)] + variant(True, ' sc1') + [P('s_branch %s' % done), LAB(l_o1)] + \
            variant(True, '') + [LAB(done)]
        cnt = [VM('; counted store') for _ in range(8)]
        return o + cnt, [c.tag for c in cnt]

    def build(self):
        cfg = self.cfg
        stop = cfg.get('stop', 99)
        o = self.add
        self.prologue()
        o(self.ts(0))
        self.p1a()
        o(self.ts(1))
        o(W(self.tag_res))
        o(LAB('L_P1EPI'))
        wo = [self.dma_wo_slot(SRD_WO, 8, t, kh, t) for t in range(8) for kh in range(2)]
        w1a0 = self.dma_w1_group(0)
        epi, stores = self.p1_epi(wo + w1a0)
        o(epi)
        ds, tags = self.dual_store(stores)
        o(ds)
        o(self.ts(2))
        o(P('s_lshl_b32 s%d, s%d, 2' % (sTGT, sRND)))
        o(self.sync_dyn(1, tags, window=self.win_w1(4, 8)))
        o(self.ts(3))
        if stop == 1:
            o(P('s_branch L_END'))
        o(self.gemmB(8, SRD_WO, sOF, 16, 8, 8, None, L_EXB2))
        o(self.ts(4))
        o(self.row_stats())
        o(self.x_stores(sX1, sS1))
        ds, tags = self.x_store_block()
        o(ds)
        o(self.sync_dyn(2, tags, window=self.win_w1(8, 12)))
        o(self.ts(5))
        if stop == 2:
            o(P('s_branch L_END'))
        w2_early = [self.dma_wo_slot(SRD_W2, 28, W2_T_AT[p], kh, p) for p in range(5) for kh in range(2)]
        body, PA = self.p3(w2_early)
        o(body)
        skip = self.L('cs1')
        o(P('s_cmp_lg_u32 s%d, 0' % sRND), P('s_cbranch_scc1 %s' % skip))
        o(self.cs_w1())
        o(LAB(skip))
        o(self.ts(6))
        n_epi = cfg.get('w2_epi_p', 15)
        w2_epi = [self.dma_wo_slot(SRD_W2, 28, W2_T_AT[p], kh, p) for p in range(5, n_epi) for kh in range(2)]
        epi, tags = self.p3_epi(PA, w2_epi)
        o(epi)
        o(self.ts(7))
        o(self.sync_dyn(3, tags, window=self.win_wo(SRD_W2, 28, 3, 7, dpos=12)))
        o(self.ts(8))
        if stop == 3:
            o(P('s_branch L_END'))
        o(P('s_cmp_eq_u32 s%d, 0' % sRND), P('s_cselect_b32 s%d, s%d, 0x7ff00000' % (sIT, sWQ_SRC)))
        wq_tail = self.dma_wq_quarter(0, src=sIT) + self.dma_wq_quarter(1, src=sIT) + self.dma_wq_quarter(2, src=sIT) + self.dma_wq_quarter(3, panels=(2,), src=sIT)
        wq_post = self.dma_wq_quarter(3, panels=(0, 1), src=sIT)
        o(self.gemmB(28, SRD_W2, sAF, 56, 16, 19, None, L_EXB4, pre_extras=self.sw4(), posf=w2pos, tail=wq_tail, post=wq_post))
        o(self.ts(9))
        o(P('s_cmp_lg_u32 s%d, 0' % sRND), P('s_cbranch_scc1 L_FINAL'))
        o(self.row_stats())
        o(self.x_stores(sX2, sS2))
        ds, tags = self.x_store_block()
        o(ds)
        ht = [newtag('hs') for _ in range(3)]
        o(P('s_add_u32 s52, s%d, 1' % sG), P('s_lshl_b32 s53, s52, 14'), P('s_lshl_b32 s54, s%d, 11' % sCT),
          P('s_add_u32 s53, s53, s54'), P('s_add_u32 s53, s53, %d' % WS_HF),
          P('s_lshl_b32 s54, s52, 10'), P('s_add_u32 s54, s54, %d' % WS_HST),
          VM('buffer_store_dwordx4 %s, v%d, s[28:31], s53 offen sc1' % (vr(vR, 4), vHOF), ht[0]),
          VM('buffer_store_dwordx4 %s, v%d, s[28:31], s53 offen offset:1024 sc1' % (vr(vR + 4, 4), vHOF), ht[1]),
          VM('buffer_store_dwordx2 %s, v%d, s[28:31], s54 offen sc1' % (vr(vT + 32, 2), vHST), ht[2]))
        self.halo_store_tags = ht
        o(self.sync_dyn(4, tags))
        o(self.ts(10))
        if stop == 4:
            o(P('s_branch L_END'))
        o(P('s_mov_b32 s%d, 1' % sRND), P('s_add_u32 s%d, s%d, s%d' % (sOF, sOF, dOF)), P('s_add_u32 s%d, s%d, s%d' % (sAF, sAF, dAF)),
          P('s_add_u32 s%d, s%d, s%d' % (sX1, sX1, dX1)), P('s_add_u32 s%d, s%d, s%d' % (sS1, sS1, dS1)))
        self.p1b()
        o(self.ts(11))
        o(WALL(False, True))
        o(P('s_branch L_P1EPI'))
        o(LAB('L_FINAL'))
        for u in range(2):
            o(P('v_permlane16_swap_b32 v%d, v%d' % (vR + 4 * u, vR + 4 * u + 2)), P('v_permlane16_swap_b32 v%d, v%d' % (vR + 4 * u + 1, vR + 4 * u + 3)))
        for u in range(2):
            o(VM('buffer_store_dwordx4 %s, v%d, s[32:35], s61 offen offset:%d' % (vr(vR + 4 * u, 4), vOUT, u * 64)))
        o(self.ts(12))
        o(LAB('L_END'), P('s_endpgm'))

    def sync_dyn(self, ph, tags, window=None):
        o = [W(tags)]
        pure = self.L('fp'); done = self.L('fd')
        o += [P('s_add_u32 s52, s%d, %d' % (sTGT, ph)),
              P('v_mov_b32 v%d, s52' % (vTA)), P('v_mov_b32 v%d, 0' % (vTB)),
              P('s_mov_b64 exec, 1'),
              P('s_cmp_eq_u32 s%d, 0' % sMODE), P('s_cbranch_scc1 %s' % pure),
              P('buffer_store_dword v%d, v%d, s[28:31], s%d offen sc1' % (vTA, vTB, sFLGOFF)),
              P('s_branch %s' % done), LAB(pure),
              P('buffer_store_dword v%d, v%d, s[28:31], s%d offen' % (vTA, vTB, sFLGOFF)),
              LAB(done), VM('; flag store counted'),
              P('s_mov_b64 exec, -1')]
        other = self.L('so'); join = self.L('sj'); loop = self.L('sp')
        o += [P('s_cmp_lg_u32 s%d, 0' % sW), P('s_cbranch_scc1 %s' % other),
              P('v_lshlrev_b32 v%d, 2, v%d' % (vTB, vLANE)),
              P('s_mov_b32 s%d, 0' % sTMO),
              LAB(loop),
              P('buffer_load_dword v%d, v%d, s[28:31], s%d offen sc1' % (vTA, vTB, sGFLG)),
              P('s_add_u32 s%d, s%d, 1' % (sTMO, sTMO)),
              P('s_waitcnt vmcnt(0)'),
              P('v_cmp_gt_u32 vcc, s52, v%d' % (vTA)),
              P('s_cbranch_vccz %s' % join),
              P('s_cmp_lt_u32 s%d, 0x100000' % sTMO),
              P('s_cbranch_scc1 %s' % loop),
              P('s_endpgm'),
              LAB(other)]
        if window:
            o += window
        o += [LAB(join)]
        if self.cfg.get('halo_nowait') and ph == 4:
            o += [WALL(True, True)]
        else:
            o += [WALL(True, True)]
        o += [P('s_barrier')]
        return o

    def text(self):
        self.build()
        body = self.p.render()
        body = [l for l in body if not l.strip().startswith('; counted') and not l.strip().startswith('; flag store')]
        hdr = open('interleave_layers__sliding_local_dilated__dense_activation_mish__prompt.s.ref').read().split('\n')
        head = []
        for l in hdr:
            if l.startswith('; Override') or l.startswith('; grid=') or l.startswith('; @launch'):
                continue
            if l.startswith('.amdgcn_target'):
                break
            head.append(l)
        out = head + ['; @launch grid=(256,1,1) block=(256,1,1) lds=%d' % LDS_BYTES,
                      '.amdgcn_target "amdgcn-amd-amdhsa--gfx950"', '.text', '.globl ' + KNAME, '.p2align 8',
                      '.type %s,@function' % KNAME, KNAME + ':']
        out += body
        out += ['.section .rodata,"a"', '.p2align 6', '.amdhsa_kernel ' + KNAME,
                '  .amdhsa_next_free_vgpr 512', '  .amdhsa_next_free_sgpr 102', '  .amdhsa_accum_offset 256',
                '  .amdhsa_group_segment_fixed_size 0', '  .amdhsa_kernarg_size 80', '  .amdhsa_user_sgpr_count 2',
                '  .amdhsa_user_sgpr_kernarg_segment_ptr 1', '  .amdhsa_system_sgpr_workgroup_id_x 1',
                '  .amdhsa_float_denorm_mode_32 3', '.end_amdhsa_kernel', '']
        return '\n'.join(out)


if __name__ == '__main__':
    cfg = {}
    outp = sys.argv[1]
    for a in sys.argv[2:]:
        k, v = a.split('=')
        try:
            cfg[k] = int(v)
        except ValueError:
            cfg[k] = v
    g = Gen(cfg)
    t = g.text()
    open(outp, 'w').write(t)
    print('wrote', outp, len(t), 'bytes;', 'nops padded:', g.p.npad)
```

```python
import re

TRANS = ('v_exp_f32', 'v_log_f32', 'v_rcp_f32', 'v_rsq_f32', 'v_sqrt_f32', 'v_sin_f32', 'v_cos_f32')


class Op:
    __slots__ = ('text', 'kind', 'tag', 'waits', 'comment')

    def __init__(self, text, kind='p', tag=None, waits=None):
        self.text = text
        self.kind = kind
        self.tag = tag
        self.waits = waits


_tagctr = [0]


def newtag(prefix='t'):
    _tagctr[0] += 1
    return '%s%d' % (prefix, _tagctr[0])


def P(text):
    return Op(text, 'p')


def VM(text, tag=None):
    return Op(text, 'vm', tag or newtag('vm'))


def LG(text, tag=None):
    return Op(text, 'lg', tag or newtag('lg'))


def W(*tags):
    flat = []
    for t in tags:
        if t is None:
            continue
        if isinstance(t, (list, tuple)):
            flat.extend(t)
        else:
            flat.append(t)
    return Op(None, 'w', waits=flat)


def WALL(vm=True, lg=True):
    return Op(None, 'wall', waits=(vm, lg))


def MARK(*tags):
    flat = []
    for t in tags:
        flat.extend(t) if isinstance(t, (list, tuple)) else flat.append(t)
    return Op(None, 'mark', waits=flat)


def LAB(name):
    return Op(name + ':', 'lab')


def vr(a, n=1, k='v'):
    return '%s%d' % (k, a) if n == 1 else '%s[%d:%d]' % (k, a, a + n - 1)


def ar(a, n=1):
    return vr(a, n, 'a')


def sr(a, n=1):
    return vr(a, n, 's')


_reg_re = re.compile(r'^(-|\|)?\|?([vas])(\d+)\|?$')
_rng_re = re.compile(r'^(-)?([vas])\[(\d+):(\d+)\]$')


def regs_of(opnd):
    o = opnd.strip()
    if o.startswith('abs(') or o.startswith('neg('):
        o = o[4:-1]
    m = _reg_re.match(o)
    if m:
        return {(m.group(2), int(m.group(3)))}
    m = _rng_re.match(o)
    if m:
        return {(m.group(2), i) for i in range(int(m.group(3)), int(m.group(4)) + 1)}
    if o == 'vcc':
        return {('s', 'vcc_lo'), ('s', 'vcc_hi')}
    if o in ('vcc_lo', 'vcc_hi'):
        return {('s', o)}
    if o == 'm0':
        return {('s', 'm0')}
    if o == 'exec':
        return {('s', 'exec_lo'), ('s', 'exec_hi')}
    return set()


def split_ops(text):
    t = text.split(';')[0].strip()
    parts = t.split(None, 1)
    mn = parts[0]
    if len(parts) == 1:
        return mn, []
    rest = parts[1]
    ops = []
    depth = 0
    cur = ''
    for ch in rest:
        if ch in '[(':
            depth += 1
        elif ch in '])':
            depth -= 1
        if ch == ',' and depth == 0:
            ops.append(cur.strip())
            cur = ''
        else:
            cur += ch
    ops.append(cur.strip())
    last = ops[-1].split()
    if last:
        ops[-1] = last[0]
        mods = last[1:]
    else:
        mods = []
    return mn, ops, mods


class Info:
    __slots__ = ('mn', 'cls', 'wr', 'rd', 'mfA', 'mfB', 'mfC', 'trans', 'dot', 'dpp', 'perm', 'rlane', 'lds_dma',
                 'store_data', 'states', 'branch', 'wide_store', 'cmask')

    def __init__(self):
        self.wr = set(); self.rd = set()
        self.mfA = self.mfB = self.mfC = set()
        self.trans = self.dot = self.dpp = self.perm = self.rlane = self.lds_dma = False
        self.store_data = set(); self.states = 1; self.branch = False; self.wide_store = False
        self.cls = 'other'; self.cmask = set()


def analyze(text):
    r = split_ops(text)
    inf = Info()
    mn = r[0]
    inf.mn = mn
    ops = r[1] if len(r) > 1 else []
    mods = r[2] if len(r) > 2 else []
    R = [regs_of(o) for o in ops]
    base = re.sub(r'_(e32|e64|dpp|sdwa)$', '', mn)
    if mn == 's_nop':
        inf.cls = 'salu'
        inf.states = int(ops[0], 0) + 1
        return inf
    if mn.startswith('s_cbranch') or mn == 's_branch' or mn.startswith('s_setpc') or mn == 's_endpgm':
        inf.cls = 'salu'; inf.branch = True
        return inf
    if mn.startswith('v_mfma'):
        inf.cls = 'mfma'
        inf.wr = R[0]; inf.mfA = R[1]; inf.mfB = R[2]; inf.mfC = R[3]
        inf.rd = R[1] | R[2] | R[3]
        return inf
    if mn.startswith('v_'):
        inf.cls = 'valu'
        inf.trans = base in TRANS
        inf.dot = base.startswith('v_dot')
        inf.dpp = mn.endswith('_dpp') or any(m.startswith('row_') or m.startswith('quad_perm') for m in mods)
        if base.startswith('v_permlane'):
            inf.perm = True
            inf.wr = R[0] | R[1]; inf.rd = R[0] | R[1]
            return inf
        if base in ('v_readfirstlane_b32', 'v_readlane_b32'):
            inf.rlane = True
            inf.wr = R[0]; inf.rd = set().union(*R[1:])
            return inf
        if base.startswith('v_cmp'):
            inf.wr = R[0]; inf.rd = set().union(*R[1:])
            return inf
        if base == 'v_cndmask_b32':
            inf.wr = R[0]; inf.rd = R[1] | R[2]
            inf.cmask = R[3] if len(R) > 3 else regs_of('vcc')
            inf.rd |= inf.cmask
            return inf
        if base in ('v_add_co_u32', 'v_sub_co_u32', 'v_addc_co_u32', 'v_subb_co_u32'):
            inf.wr = R[0] | R[1]; inf.rd = set().union(*R[2:])
            return inf
        inf.wr = R[0]
        inf.rd = set().union(*R[1:]) if len(R) > 1 else set()
        if base in ('v_fmac_f32', 'v_dot2c_f32_bf16', 'v_fmac_f16', 'v_pk_fmac_f16'):
            inf.rd |= R[0]
        return inf
    if mn.startswith('ds_'):
        inf.cls = 'ds'
        if mn.startswith('ds_read') or mn.startswith('ds_bpermute') or mn.startswith('ds_permute') or mn.startswith('ds_swizzle'):
            inf.wr = R[0]; inf.rd = set().union(*R[1:])
        else:
            inf.rd = set().union(*R)
            inf.store_data = set().union(*R[1:]) if len(R) > 1 else set()
        return inf
    if mn.startswith('buffer_') or mn.startswith('global_'):
        inf.cls = 'vmem'
        lds = 'lds' in mods or (ops and ops[-1] == 'lds')
        if mn.startswith('buffer_load') and lds:
            inf.lds_dma = True
            inf.rd = set().union(*R) | {('s', 'm0')}
        elif 'load' in mn:
            inf.wr = R[0]; inf.rd = set().union(*R[1:])
        elif 'atomic' in mn:
            inf.rd = set().union(*R)
            if 'sc0' in mods:
                inf.wr = R[0]
        else:
            inf.rd = set().union(*R)
            inf.store_data = R[0] if mn.startswith('buffer') else R[1]
            inf.wide_store = mn.endswith('x4') or mn.endswith('x3')
        return inf
    if mn.startswith('s_'):
        inf.cls = 'salu'
        if mn.startswith('s_cmp') or mn in ('s_waitcnt', 's_barrier', 's_sleep', 's_setprio', 's_bitcmp0_b32', 's_bitcmp1_b32'):
            inf.rd = set().union(*R) if R else set()
        else:
            inf.wr = R[0] if R else set()
            inf.rd = set().union(*R[1:]) if len(R) > 1 else set()
        return inf
    raise ValueError('cannot analyze: ' + text)


def _isv(regs):
    return {r for r in regs if r[0] in 'va'}


def _iss(regs):
    return {r for r in regs if r[0] == 's'}


def mfma_passes(mn):
    if '32x32' in mn:
        return 8
    return 4


def need_states(prod, cons):
    n = 0
    if prod.cls == 'valu':
        wv = _isv(prod.wr); ws_ = _iss(prod.wr)
        if cons.cls == 'mfma' and (wv & cons.rd):
            n = max(n, 2)
        if cons.cls == 'valu':
            if prod.trans and not cons.trans and (wv & cons.rd):
                n = max(n, 1)
            if prod.trans and cons.trans and (wv & cons.rd):
                n = max(n, 1)
            if cons.perm and (wv & cons.rd):
                n = max(n, 2)
            if cons.dpp and (wv & cons.rd):
                n = max(n, 2)
            if cons.rlane and (wv & cons.rd):
                n = max(n, 1)
            if ws_ & cons.rd:
                n = max(n, 4 if cons.rlane else 2)
            if prod.dot and (wv & (cons.rd | cons.wr)) and not (cons.dot and cons.mn == prod.mn and not (wv & (cons.rd - cons.wr))):
                n = max(n, 3)
        if prod.dot and cons.cls in ('ds', 'vmem', 'mfma') and (wv & cons.rd):
            n = max(n, 3)
        if cons.cls == 'vmem' and (ws_ & cons.rd):
            n = max(n, 5)
        if cons.cls == 'salu' and (ws_ & cons.rd):
            n = max(n, 4)
    if prod.cls == 'mfma':
        p = mfma_passes(prod.mn)
        d = prod.wr
        big = 8 if p == 4 else 12
        ovl = 6 if p == 4 else 10
        if cons.cls == 'mfma':
            if d & (cons.mfA | cons.mfB):
                n = max(n, big)
            if d & cons.mfC:
                if not (cons.mfC == d and mfma_passes(cons.mn) == p):
                    n = max(n, ovl)
            if (d & cons.wr) and not (d & cons.mfC):
                n = max(n, big)
        elif cons.cls in ('valu', 'ds', 'vmem'):
            if d & (cons.rd | cons.wr):
                n = max(n, big)
        if cons.cls == 'valu' and (prod.mfC & cons.wr):
            n = max(n, 3 if p == 4 else 7)
        if cons.cls in ('ds', 'vmem') and (prod.mfC & cons.wr):
            n = max(n, 3 if p == 4 else 7)
    if prod.cls == 'salu' and ('s', 'm0') in prod.wr and cons.lds_dma:
        n = max(n, 1)
    if prod.cls == 'vmem' and prod.wide_store and (prod.store_data & cons.wr):
        n = max(n, 2)
    if prod.cls == 'ds' and prod.store_data and (prod.store_data & cons.wr) and cons.cls == 'valu':
        n = max(n, 1)
    return n


class Prog:
    def __init__(self):
        self.ops = []

    def add(self, *items):
        for it in items:
            if it is None:
                continue
            if isinstance(it, (list, tuple)):
                self.add(*it)
            elif isinstance(it, str):
                self.ops.append(P(it))
            else:
                self.ops.append(it)

    def resolve(self):
        out = []
        vm_idx = {}; lg_idx = {}
        vm_n = 0; lg_n = 0
        vm_done = -1; lg_done = -1
        for op in self.ops:
            if op.kind == 'vm':
                vm_idx[op.tag] = vm_n; vm_n += 1
                out.append(op.text)
            elif op.kind == 'lg':
                lg_idx[op.tag] = lg_n; lg_n += 1
                out.append(op.text)
            elif op.kind == 'w':
                nv = None; nl = None
                for t in op.waits:
                    if t in vm_idx:
                        i = vm_idx[t]
                        if i > vm_done:
                            c = vm_n - 1 - i
                            nv = c if nv is None else min(nv, c)
                    elif t in lg_idx:
                        i = lg_idx[t]
                        if i > lg_done:
                            c = lg_n - 1 - i
                            nl = c if nl is None else min(nl, c)
                    else:
                        raise KeyError('wait on unknown tag %s' % t)
                parts = []
                if nv is not None:
                    nv = min(nv, 63)
                    parts.append('vmcnt(%d)' % nv)
                    vm_done = max(vm_done, vm_n - 1 - nv)
                if nl is not None:
                    nl = min(nl, 15)
                    parts.append('lgkmcnt(%d)' % nl)
                    lg_done = max(lg_done, lg_n - 1 - nl)
                if parts:
                    out.append('s_waitcnt ' + ' '.join(parts))
            elif op.kind == 'mark':
                for t in op.waits:
                    vm_done = max(vm_done, vm_idx[t])
            elif op.kind == 'wall':
                vm, lg = op.waits
                parts = []
                if vm:
                    parts.append('vmcnt(0)'); vm_done = vm_n - 1
                if lg:
                    parts.append('lgkmcnt(0)'); lg_done = lg_n - 1
                out.append('s_waitcnt ' + ' '.join(parts))
            elif op.kind == 'reset':
                vm_done = min(vm_done, op.waits[0]) if op.waits else vm_done
                out.append('; merge')
            else:
                out.append(op.text)
        return out

    def hazard_pad(self, lines):
        out = []
        hist = []
        npad = 0
        for ln in lines:
            s = ln.strip()
            if not s or s.startswith(';') or s.endswith(':') or s.startswith('.'):
                out.append(ln)
                continue
            inf = analyze(s)
            need = 0
            dist = 0
            for prev in reversed(hist):
                if dist >= 13:
                    break
                if inf.branch and 'nopad' in s:
                    req = 0
                elif inf.branch:
                    req = 0
                    if prev.cls == 'mfma':
                        req = 8 if mfma_passes(prev.mn) == 4 else 12
                    elif prev.cls == 'valu':
                        req = 5 if _iss(prev.wr) else (3 if prev.dot else 2)
                    elif prev.cls == 'vmem' and prev.wide_store:
                        req = 2
                else:
                    req = need_states(prev, inf)
                if req > dist:
                    need = max(need, req - dist)
                dist += prev.states
            while need > 0:
                k = min(need, 16)
                nop = 's_nop %d' % (k - 1)
                out.append('  ' + nop)
                hist.append(analyze(nop))
                need -= k
                npad += 1
            out.append(ln)
            hist.append(inf)
            if len(hist) > 32:
                hist = hist[-32:]
        self.npad = npad
        return out

    def render(self):
        lines = self.resolve()
        lines = [(l if (l.endswith(':') or l.startswith('.') or l.startswith(';')) else '  ' + l) for l in lines]
        return self.hazard_pad(lines)


def interleave(main, extra, start=0, every=1, per=1):
    out = []
    extra = list(extra)
    for i, op in enumerate(main):
        out.append(op)
        if i >= start and (i - start) % every == every - 1:
            for _ in range(per):
                if extra:
                    out.append(extra.pop(0))
    out.extend(extra)
    return out
```

```python
import sys, math
from asmlib import *

KNAME = 'interleave_layers__sliding_local_dilated__dense_activation_mish__prompt_kernel'

WS_FLG = 0x0000
WS_HFL = 0x1000
WS_TS = 0x2000
WS_ST = 0x10000
WS_HST = 0x80000
WS_HF = 0x90000
WS_XF = 0x100000
WS_OF = 0x800000
WS_AF = 0x1000000
WS_ACT = 0x2000000
ACT_G = 0x92000
WS_SIZE = 0x2A00000
ST_K = 0x20000; XF_K = 0x200000; OF_R = 0x200000; AF_R = 0x800000

L_CSQ = 0
L_CS1 = 384
L_BB1 = 832
L_W = 2048
L_HALO = 100352
L_RING = 116736
L_EX = 67584
L_EXK = L_EX + 9216
L_W1P = [135168, 106496, 77824, 49152]
L_EXB2 = 2048
L_EXB4 = 100352
LDS_BYTES = 163840
W2_PA = [12, 13, 14, 15, 16, 17, 18, 3, 7]
W2_PB = [0, 1, 2, 4, 5, 6, 8, 9, 10, 11]
def w2pos(t):
    return W2_PA[t] if t < 9 else (W2_PB[t - 9] if t < 19 else W2_PA[t - 19])
W2_T_AT = {w2pos(t): t for t in range(19)}

LOG2E = 1.4426950408889634
LN2 = 0.6931471805599453


def f32(x):
    import struct
    return '0x%08x' % struct.unpack('<I', struct.pack('<f', x))[0]


sRND = 3; sG = 4; sM = 5; sW = 6; sMODE = 7
SRD_X = 8; SRD_WQ = 12; SRD_WO = 16; SRD_W1 = 20; SRD_W2 = 24; SRD_WS = 28; SRD_OUT = 32; SRD_DBG = 36; SRD_B1 = 40
sXCC = 44
sWQ_SRC = 45
sW1K = 46
sWO_SRC = 47
sW1_SRC = 48
sW1_M = 49
sB0 = 50; sB1 = 51
sT0 = 52; sT1 = 53; sT2 = 54; sT3 = 55
sFLGOFF = 56
sGFLG = 57
sST = 58
sTH = 59; sCT = 60
sONE = 62
sM2L = 64
sUP = 66
sMA = 68; sMB = 70; sMC = 72; sMD = 74
sIT = 76; sTMO = 77; sTGT = 78; sA = 79; sB = 80; sC = 81; sD = 82
sXR0 = 83; sXR1 = 84
sHSRC = 85
sTB = 86
sGBASE = 87
sTS = 88
sTSO = 90
sOF = 94; sAF = 95; sX1 = 96; sS1 = 97; sX2 = 98; sS2 = 99
sTUX = 100; sTUG = 101
dOF = 83; dAF = 84; dX1 = 85; dS1 = 82
sXL0 = 92; sXL1 = 93

vLANE = 0; vL16 = 1
vR = 2
vONES = 10
vWQA = 14
vE1 = 18; vE2 = 19
vW1A = 20
vW2A = 23
vDQ = 35; vDO = 36; vD1 = 37
vCS = 44
vL128 = 45
vDUM = 247
vCCUR = 46; vCPREV = 50; vCPA = 54
vEXV = 58; vEXK = 59; vEXH = 60; vRVP = 61; vRV = 62; vRK = 63
vLN2 = 64
vEXBW = 66; vEXBR = 67
vSTO = 68
vHOF = 69
vHST = 70
vOUT = 71
vAF = 72
NAF = 6
vACC = 104
vT = 168
vTA = 254; vTB = 255
vDUMMY = 246
vDX = 240; vDH = 241; vXA = 242; vXB = 243; vHXA = 244; vHXB = 245


class Gen:
    def __init__(self, cfg):
        self.cfg = cfg
        self.p = Prog()
        self.lbl = 0

    def L(self, name):
        self.lbl += 1
        return '%s_%d' % (name, self.lbl)

    def add(self, *a):
        self.p.add(*a)

    def ts(self, idx, rnd=False):
        if not self.cfg.get('ts'):
            return []
        o = [P('s_memrealtime s[92:93]' if self.cfg.get('ts') == 1 else 's_memtime s[92:93]')]
        if rnd:
            o += [P('s_lshl_b32 s91, s%d, 4' % sRND), P('s_add_u32 s91, s91, %d' % idx), P('s_mov_b32 m0, s91'),
                  P('s_waitcnt lgkmcnt(0)'), P('v_writelane_b32 v103, s92, m0')]
        else:
            o += [P('s_waitcnt lgkmcnt(0)'), P('v_writelane_b32 v103, s92, %d' % idx)]
        return o

    def ts_flush(self):
        if not self.cfg.get('ts'):
            return []
        return [P('v_lshlrev_b32 v252, 2, v%d' % vLANE), VM('buffer_store_dword v103, v252, s[28:31], s90 offen')]

    def dma(self, srd, voff, src_s, src_imm, lds_s, lds_imm, tag=None, st=None):
        st = st if st is not None else sT0
        ops = []
        if lds_s is None:
            ops.append(P('s_mov_b32 m0, %d' % lds_imm))
        else:
            ops.append(P('s_add_u32 m0, s%d, %d' % (lds_s, lds_imm)))
        if src_s is None:
            ops.append(P('s_mov_b32 s%d, %d' % (st, src_imm)))
        else:
            ops.append(P('s_add_u32 s%d, s%d, %d' % (st, src_s, src_imm)))
        if self.cfg.get('nodma') and srd in (SRD_WO, SRD_W1, SRD_W2):
            ops.append(P('s_nop 0'))
            return ops
        nt = ' nt' if (self.cfg.get('nt') and srd in (SRD_W1, SRD_W2)) else ''
        ops.append(VM('buffer_load_dwordx4 v%d, s[%d:%d], s%d offen%s lds' % (voff, srd, srd + 3, st, nt), tag))
        return ops

    def touch(self, srd, unit_s, imm, limit=None, only_r1=False):
        ops = []
        if limit is not None:
            ops += [P('s_add_u32 s55, s%d, %d' % (unit_s, imm[0])), P('s_cmp_lt_u32 s%d, %d' % (unit_s, limit)),
                    P('s_cselect_b32 s55, s55, 0x7ff00000')]
            if imm[1] is not None:
                ops.insert(1, P('s_add_u32 s55, s55, s%d' % imm[1]))
        else:
            ops.append(P('s_add_u32 s55, s%d, %d' % (unit_s, imm)))
        if only_r1:
            ops += [P('s_cmp_eq_u32 s%d, 0' % sRND), P('s_cselect_b32 s55, s55, 0x7ff00000')]
        ops.append(VM('buffer_load_dword a255, v%d, s[%d:%d], s55 offen' % (vL128, srd, srd + 3)))
        return ops

    def touch_w(self, name, only_r1=False):
        srd, size = {'wq': (SRD_WQ, 512 * 3072), 'wo': (SRD_WO, 524288), 'w1': (SRD_W1, 512 * 3584), 'w2': (SRD_W2, 1792 * 1024)}[name]
        return [self.touch(srd, sTUX, k * 0x100000, only_r1=only_r1) for k in range((size + 0xfffff) // 0x100000)]

    def touch_act(self, off, nbytes):
        return [self.touch(SRD_WS, sTUG, (WS_ACT + off, sST), limit=nbytes)]

    def touch_range(self, name, lo, hi, rounds='12'):
        srd = {'wq': SRD_WQ, 'wo': SRD_WO, 'w1': SRD_W1, 'w2': SRD_W2}[name]
        unit = -(-(hi - lo) // (128 * 128)) * 128
        assert unit <= 8192
        nl = unit // 128
        ops = [P('s_lshr_b32 s55, s%d, 13' % sTUX), P('s_mul_i32 s55, s55, %d' % unit), P('s_add_u32 s55, s55, %d' % lo)]
        if rounds != '12':
            ops += [P('s_cmp_eq_u32 s%d, %d' % (sRND, 0 if rounds == '1' else 1)), P('s_cselect_b32 s55, s55, 0x7ff00000')]
        if nl < 64:
            m = (1 << nl) - 1
            ops += [P('s_mov_b32 exec_lo, 0x%x' % (m & 0xffffffff)), P('s_mov_b32 exec_hi, 0x%x' % (m >> 32))]
        ops.append(VM('buffer_load_dword a255, v%d, s[%d:%d], s55 offen' % (vL128, srd, srd + 3)))
        if nl < 64:
            ops.append(P('s_mov_b64 exec, -1'))
        return ops

    def sched_touches(self, phase, first_idx):
        out = []
        for e in str(self.cfg.get('tch', '')).split('+'):
            if not e:
                continue
            f = e.split('.')
            if f[0] != phase:
                continue
            k = int(f[1]); name = f[2]
            if name in ('of', 'af', 'xf'):
                ops = self.touch_set(name)[0]
            else:
                ops = self.touch_range(name, int(f[3]) * 1024, int(f[4]) * 1024, f[5] if len(f) > 5 else '12')
            out.append((first_idx[k] + 3, ops))
        return out

    def touch_act_even(self, off, n):
        unit = -(-n // (64 * 128)) * 128
        nl = unit // 128
        assert nl <= 64
        ops = [P('s_lshr_b32 s55, s%d, 13' % sTUG), P('s_mul_i32 s55, s55, %d' % unit), P('s_add_u32 s55, s55, s%d' % sST),
               P('s_add_u32 s55, s55, %d' % (WS_ACT + off))]
        if nl < 64:
            m = (1 << nl) - 1
            ops += [P('s_mov_b32 exec_lo, 0x%x' % (m & 0xffffffff)), P('s_mov_b32 exec_hi, 0x%x' % (m >> 32))]
        ops.append(VM('buffer_load_dword a255, v%d, s[28:31], s55 offen' % vL128))
        if nl < 64:
            ops.append(P('s_mov_b64 exec, -1'))
        return ops

    def touch_mall(self):
        o = [P('s_lshl_b32 s54, s2, 2'), P('s_add_u32 s54, s54, s%d' % sW)]
        for srd, first, n in ((SRD_W1, 0, 224), (SRD_W2, 256, 224), (SRD_WO, 512, 64)):
            o += [P('s_sub_u32 s55, s54, %d' % first), P('s_cmp_lt_u32 s55, %d' % n), P('s_cselect_b32 s55, s55, 0x3ff80'),
                  P('s_lshl_b32 s55, s55, 13'),
                  VM('buffer_load_dword a255, v%d, s[%d:%d], s55 offen' % (vL128, srd, srd + 3))]
        return o

    def touch_set(self, spec, only_r1=False):
        out = []
        for name in spec.split(','):
            if not name:
                continue
            if name == 'of':
                out.append(self.touch_act_even(0, 131072))
            elif name == 'af':
                out.append(self.touch_act_even(131072, 458752 - 131072))
            elif name == 'xf':
                out.append(self.touch_act_even(458752, 139264))
            else:
                out += self.touch_w(name, only_r1)
        return out

    def dma_wq_quarter(self, qd, panels=(0, 1, 2), src=None):
        out = []
        for a in range(2):
            for p in panels:
                rg = 8 * qd + 4 * a
                out.append(self.dma(SRD_WQ, vDQ, src if src is not None else sWQ_SRC, rg * 49152 + p * 1024, sW1K, L_W + p * 32768 + rg * 1024))
        return out

    def dma_wo_slot(self, srd, nk, t, kh, pos):
        js = kh * nk + t
        return self.dma(srd, vDO, sWO_SRC, js * 32768, sW1K, L_W + (2 * pos + kh) * 4096)

    def dma_w1_group(self, a):
        out = []
        for u in range(7):
            out.append(self.dma(SRD_W1, vD1 + u, sW1_SRC, a * 4 * 32 * 3584, sW1_M, L_W1P[a] + u * 1024))
        return out

    def window_loop(self, n0, n1, srd, srcA_s, srcA_imm, srcB, ldsC, ldsD, subs):
        lab = self.L('win'); end = self.L('winend')
        o = [P('s_add_u32 s%d, s%d, %d' % (sIT, sW, n0 - 1)),
             P('s_cmp_ge_u32 s%d, %d' % (sIT, n1)),
             P('s_cbranch_scc1 %s' % end),
             LAB(lab),
             P('s_mul_i32 s%d, s%d, %d' % (sA, sIT, srcB))]
        if srcA_s is not None:
            o.append(P('s_add_u32 s%d, s%d, s%d' % (sA, sA, srcA_s)))
        o.append(P('s_add_u32 s%d, s%d, %d' % (sA, sA, srcA_imm)))
        o.append(P('s_mul_i32 s%d, s%d, %d' % (sB, sIT, ldsD)))
        for (voff, so, lo) in subs:
            o.append(P('s_add_u32 m0, s%d, %d' % (sB, ldsC + lo)))
            o.append(P('s_add_u32 s%d, s%d, %d' % (sT0, sA, so)))
            nt = ' nt' if (self.cfg.get('nt') and srd in (SRD_W1, SRD_W2)) else ''
            if self.cfg.get('nodma'):
                o.append(P('s_nop 0'))
            else:
                o.append(P('buffer_load_dwordx4 v%d, s[%d:%d], s%d offen%s lds' % (voff, srd, srd + 3, sT0, nt)))
        o += [P('s_add_u32 s%d, s%d, 3' % (sIT, sIT)),
              P('s_cmp_lt_u32 s%d, %d' % (sIT, n1)),
              P('s_cbranch_scc1 %s' % lab),
              LAB(end)]
        return o

    def win_wq(self, rg0, rg1):
        return [P('s_lshl_b32 s%d, s%d, 6' % (sC, sM))] + self.window_loop(
            rg0, rg1, SRD_WQ, sC, 0, 49152, L_W, 1024, [(vDQ, p * 1024, p * 32768) for p in range(3)])

    def win_wo(self, srd, nk, t0, t1, dpos=0):
        subs = []
        for kh in range(2):
            for q in range(4):
                subs.append((vDO, kh * nk * 32768 + q * 8192, kh * 4096 + q * 1024))
        return [P('s_lshl_b32 s%d, s%d, 7' % (sC, sCT))] + self.window_loop(
            t0, t1, srd, sC, 0, 32768, L_W + dpos * 8192, 8192, subs)

    def win_w1(self, j0, j1):
        a = j0 // 4
        base = L_W1P[a] - j0 * 7168
        for j in range(j0, j1):
            assert L_W1P[j // 4] + (j % 4) * 7168 == base + j * 7168
        return [P('s_mul_i32 s%d, s%d, 224' % (sC, sM))] + self.window_loop(
            j0, j1, SRD_W1, sC, 0, 32 * 3584, base, 7168, [(vD1 + u, 0, u * 1024) for u in range(7)])

    def gemm_loop(self, groups, LA, extras):
        out = []
        n = len(groups)
        for k in range(min(LA, n)):
            out += groups[k].get('pre', []) + groups[k]['reads']
        flat = []
        for gi, g in enumerate(groups):
            rq = []
            if gi + LA < n:
                rq = list(groups[gi + LA].get('pre', [])) + list(groups[gi + LA]['reads'])
            nm = len(g['mf'])
            chunks = [[] for _ in range(nm)]
            reads_total = sum(1 for x in rq if x.kind == 'lg')
            per = max(1, -(-reads_total // nm))
            c = 0; cnt = 0
            for x in rq:
                chunks[min(c, nm - 1)].append(x)
                if x.kind == 'lg':
                    cnt += 1
                    if cnt == per:
                        cnt = 0; c += 1
            for k, (text, waits) in enumerate(g['mf']):
                w = list(waits)
                if k == 0:
                    w += [x.tag for x in g['reads']]
                flat.append((text, w, g.get('premf', []) if k == 0 else [], chunks[k]))
        extras = sorted(extras, key=lambda e: e[0])
        ei = 0
        for idx, (text, w, premf, chunk) in enumerate(flat):
            if idx == 0:
                out += premf + [W(w)]
            out.append(P(text))
            if idx + 1 < len(flat):
                out += flat[idx + 1][2]
                out.append(W(flat[idx + 1][1]))
            out += chunk
            k = 0
            while ei < len(extras) and extras[ei][0] <= idx and k < self.cfg.get('extra_per', 1):
                out += extras[ei][1]
                ei += 1; k += 1
        while ei < len(extras):
            out += extras[ei][1]; ei += 1
        return out

    @staticmethod
    def flat(ops):
        out = []
        for x in ops:
            if x is None:
                continue
            if isinstance(x, (list, tuple)):
                out += Gen.flat(x)
            else:
                out.append(x)
        return out

    def spread(self, ops, start, step=1, nvec=1):
        out = []; cur = []; nv = 0; at = start
        ops = self.flat(ops)
        for i, x in enumerate(ops):
            cur.append(x)
            t = x.text or ''
            if t.startswith('v_') or t.startswith('buffer_') or t.startswith('ds_'):
                nv += 1
                nxt = (ops[i + 1].text or '') if i + 1 < len(ops) else ''
                glued = (t.startswith('v_cmp') and ' vcc,' in t) or (nxt.startswith('v_cndmask') and nxt.rstrip().endswith('vcc'))
                if nv >= nvec and not glued:
                    out.append((at, cur)); cur = []; nv = 0; at += step
        if cur:
            out.append((at, cur))
        return out

    def afrag(self, n):
        return vAF + (n % NAF) * 4

    def prologue(self):
        cfg = self.cfg
        o = self.add
        o(P('s_cmp_ge_u32 s2, 256'), P('s_cbranch_scc1 L_END'))
        if cfg.get('ts'):
            o(P('v_mov_b32 v103, 0'), self.ts(13))
        o(P('s_load_dwordx16 s[72:87], s[0:1], 0'), P('s_load_dwordx4 s[88:91], s[0:1], 64'))
        if cfg.get('t_code', 1):
            nl = cfg.get('code_nl', 3)
            o(P('s_getpc_b64 s[50:51]'), LAB('L_PC'),
              P('s_lshr_b32 s52, s2, 3'), P('s_mul_i32 s52, s52, %d' % (4 * nl)),
              P('v_lshrrev_b32 v252, 6, v0'), P('v_mul_u32_u24 v252, %d, v252' % nl), P('v_and_b32 v253, 63, v0'),
              P('v_add3_u32 v252, v252, v253, s52'), P('v_lshlrev_b32 v252, 7, v252'),
              P('v_min_u32 v252, L_END-L_PC, v252'),
              P('s_mov_b64 exec, %d' % ((1 << nl) - 1)),
              VM('global_load_dword a255, v252, s[50:51]'),
              P('s_mov_b64 exec, -1'))
        o(P('s_getreg_b32 s%d, hwreg(HW_REG_XCC_ID, 0, 4)' % sXCC))
        o(P('s_and_b32 s52, s2, 7'), P('s_lshr_b32 s53, s2, 3'), P('s_lshr_b32 s54, s53, 4'),
          P('s_lshl_b32 s%d, s52, 1' % sG), P('s_add_u32 s%d, s%d, s54' % (sG, sG)),
          P('s_and_b32 s%d, s53, 15' % sM))
        if cfg.get('cross_groups'):
            o(P('s_lshr_b32 s%d, s2, 4' % sG), P('s_and_b32 s%d, s2, 15' % sM))
        o(P('v_lshrrev_b32 v252, 6, v0'), P('v_and_b32 v%d, 63, v0' % vLANE), P('v_readfirstlane_b32 s%d, v252' % sW))
        I = 250; Gq = 251; RR = 249; I3 = 248; t0 = 252; t1 = 253; t2 = 254; t3 = 255
        o(P('v_lshlrev_b32 v%d, 7, v%d' % (vL128, vLANE)), P('v_lshlrev_b32 v%d, 4, v%d' % (vL16, vLANE)))
        o(P('v_lshrrev_b32 v%d, 2, v%d' % (t0, vLANE)), P('v_lshrrev_b32 v%d, 2, v%d' % (t1, t0)),
          P('v_xor_b32 v%d, v%d, v%d' % (t1, t1, vLANE)), P('v_and_b32 v%d, 3, v%d' % (t1, t1)),
          P('v_lshlrev_b32 v%d, 4, v%d' % (t1, t1)),
          P('v_lshl_add_u32 v%d, v%d, 11, v%d' % (vDX, t0, t1)))
        o(P('v_lshlrev_b32 v%d, 1, v%d' % (t2, t0)), P('v_add_u32 v%d, 16, v%d' % (t3, t2)), P('v_add_u32 v%d, 1, v%d' % (t2, t2)),
          P('v_cmp_gt_u32 vcc, 8, v%d' % t0),
          P('s_lshr_b32 s%d, s%d, 3' % (sTH, sM)), P('s_and_b32 s%d, s%d, 7' % (sCT, sM)),
          P('v_cndmask_b32 v%d, v%d, v%d, vcc' % (t2, t2, t3)),
          P('v_lshl_add_u32 v%d, v%d, 10, v%d' % (vDH, t2, t1)),
          P('s_cmp_eq_u32 s%d, 0' % sG), P('s_cselect_b32 s53, 0x40000000, 0'), P('v_or_b32 v%d, s53, v%d' % (vDH, vDH)))
        o(P('v_lshrrev_b32 v%d, 4, v%d' % (t1, vLANE)), P('v_lshrrev_b32 v%d, 1, v%d' % (t2, vLANE)),
          P('v_xor_b32 v%d, v%d, v%d' % (t1, t1, t2)), P('v_and_b32 v%d, 1, v%d' % (t1, t1)),
          P('v_lshlrev_b32 v%d, 5, v%d' % (t1, t1)), P('v_and_b32 v%d, 1, v%d' % (t2, vLANE)),
          P('v_lshl_add_u32 v%d, v%d, 4, v%d' % (t1, t2, t1)),
          P('v_mul_u32_u24 v%d, 3072, v%d' % (t2, t0)), P('v_add_u32 v%d, v%d, v%d' % (vDQ, t1, t2)))
        o(P('s_mov_b32 s%d, 0' % sRND), P('s_mov_b32 s%d, 0' % sMODE),
          P('s_mul_i32 s%d, s%d, 49152' % (sWQ_SRC, sW)), P('s_lshl_b32 s52, s%d, 6' % sM),
          P('s_add_u32 s%d, s%d, s52' % (sWQ_SRC, sWQ_SRC)),
          P('s_lshl_b32 s%d, s%d, 10' % (sW1K, sW)),
          P('s_lshl_b32 s%d, s%d, 13' % (sWO_SRC, sW)), P('s_lshl_b32 s52, s%d, 7' % sCT),
          P('s_add_u32 s%d, s%d, s52' % (sWO_SRC, sWO_SRC)),
          P('s_mul_i32 s%d, s%d, %d' % (sW1_SRC, sW, 32 * 3584)), P('s_mul_i32 s52, s%d, 224' % sM),
          P('s_add_u32 s%d, s%d, s52' % (sW1_SRC, sW1_SRC)),
          P('s_mul_i32 s%d, s%d, 7168' % (sW1_M, sW)),
          P('s_lshl_b32 s%d, s%d, 8' % (sGFLG, sG)),
          P('s_lshl_b32 s52, s%d, 2' % sM), P('s_add_u32 s52, s52, s%d' % sW), P('s_lshl_b32 s52, s52, 2'),
          P('s_add_u32 s%d, s%d, s52' % (sFLGOFF, sGFLG)),
          P('s_and_b32 s52, s%d, 1' % sG), P('s_lshl_b32 s52, s52, 4'), P('s_add_u32 s52, s52, s%d' % sM),
          P('s_lshl_b32 s52, s52, 2'), P('s_add_u32 s52, s52, s%d' % sW), P('s_lshl_b32 s%d, s52, 13' % sTUX),
          P('s_mul_i32 s94, s52, 2176'),
          P('s_lshl_b32 s52, s%d, 2' % sM), P('s_add_u32 s52, s52, s%d' % sW), P('s_lshl_b32 s%d, s52, 13' % sTUG),
          P('s_mul_i32 s%d, s%d, %d' % (sST, sG, ACT_G)),
          P('s_andn2_b32 s52, s%d, 1' % sG), P('s_lshl_b32 s52, s52, 17'), P('s_sub_u32 s52, s52, 16384'),
          P('s_max_i32 s52, s52, 0'), P('s_add_u32 s94, s94, s52'),
          P('s_lshl_b32 s52, s%d, 7' % sG), P('s_sub_u32 s53, s52, 32'), P('s_lshl_b32 s97, s53, 10'),
          P('s_cmp_eq_u32 s%d, 0' % sG), P('s_cselect_b32 s97, 0, s97'), P('s_lshl_b32 s53, s%d, 6' % sW), P('s_add_u32 s97, s97, s53'))
        for b in range(2):
            o(P('s_lshl_b32 s53, s%d, 1' % sW), P('s_add_u32 s53, s53, %d' % b), P('s_and_b32 s53, s53, 3'),
              P('s_lshl_b32 s53, s53, 5'), P('s_add_u32 s53, s53, s52'), P('s_lshr_b32 s54, s%d, 1' % sW),
              P('s_add_u32 s53, s53, s54'), P('s_lshl_b32 s%d, s53, 10' % (95 + b)))
        o(P('s_lshl_b32 s98, s%d, 11' % sW))
        o(P('s_waitcnt lgkmcnt(0)'))
        if cfg.get('pts') == 1:
            o(self.ts(14))
        def srd(dst, src, size):
            return [P('s_mov_b32 s%d, s%d' % (dst, src)), P('s_and_b32 s%d, s%d, 0xffff' % (dst + 1, src + 1)),
                    P('s_mov_b32 s%d, 0x%x' % (dst + 2, size)), P('s_mov_b32 s%d, 0x20000' % (dst + 3))]
        o(srd(SRD_X, 72, 2097152), srd(SRD_WQ, 74, 512 * 3072))
        tp = cfg.get('t_pro', 1)
        def tq(q):
            return self.touch_range('wq', q * 393216, (q + 1) * 393216) if tp else []
        if tp:
            o(P('s_mov_b32 exec_lo, 0x1ffff'), P('s_mov_b32 exec_hi, 0'),
              VM('buffer_load_dword a255, v%d, s[8:11], s94 offen' % vL128), P('s_mov_b64 exec, -1'))
        o(tq(0), tq(1))
        allfirst = cfg.get('cold', 'A') == 'A'
        if allfirst:
            o(tq(2), tq(3))
        o(srd(SRD_WO, 76, 524288), srd(SRD_W1, 80, 512 * 3584), srd(SRD_B1, 82, 3584), srd(SRD_W2, 84, 1792 * 1024),
          srd(SRD_OUT, 86, 2097152), srd(SRD_DBG, 88, 256), srd(SRD_WS, 90, WS_SIZE))
        o(P('s_mov_b32 s%d, s95' % sXR0), P('s_mov_b32 s%d, s96' % sXR1), P('s_mov_b32 s%d, s97' % sHSRC), P('s_mov_b32 s%d, s98' % sD))
        o(P('s_and_b32 s52, s%d, 1' % sG), P('s_lshl_b32 s52, s52, 3'), P('s_add_u32 s52, s52, s%d' % sM),
          P('s_and_b32 s99, s52, %d' % (15 if cfg.get('rot', 0) else 0)), P('s_lshl_b32 s98, s99, 1'), P('s_add_u32 s98, s98, s%d' % sW),
          P('s_lshl_b32 s95, s%d, 6' % sM), P('s_lshl_b32 s52, s%d, 6' % sW), P('s_sub_u32 s%d, s%d, s52' % (sHSRC, sHSRC)))
        self.tq = (lambda q: []) if allfirst else tq
        if cfg.get('t_mall', 0) == 1:
            o(self.touch_mall())
        self.tag_init = newtag('init')
        o(P('v_mov_b32 v%d, 0' % t1), P('s_mov_b64 exec, 1'),
          VM('buffer_store_dword v%d, v%d, s[28:31], s%d offen sc1' % (t1, t1, sFLGOFF), self.tag_init),
          P('s_mov_b64 exec, -1'))
        if cfg.get('pts') == 1:
            o(self.ts(15))
        o(P('v_and_b32 v%d, 15, v%d' % (I, vLANE)), P('v_lshrrev_b32 v%d, 4, v%d' % (Gq, vLANE)),
          P('v_lshrrev_b32 v%d, 2, v%d' % (t0, I)), P('v_lshl_add_u32 v%d, v%d, 2, v%d' % (RR, Gq, t0)),
          P('v_and_b32 v%d, 3, v%d' % (I3, I)))
        for k in range(4):
            o(P('v_mov_b32 v%d, 0x3f803f80' % (vONES + k)))
        o(P('v_lshlrev_b32 v%d, 6, v%d' % (t0, RR)), P('v_lshl_add_u32 v%d, v%d, 3, v%d' % (t0, I3, t0)),
          P('v_add_u32 v%d, %d, v%d' % (t0, L_W, t0)),
          P('v_and_b32 v%d, 1, v%d' % (t1, Gq)), P('v_lshlrev_b32 v%d, 5, v%d' % (t1, t1)),
          P('v_add_u32 v%d, v%d, v%d' % (vWQA, t0, t1)),
          P('v_xor_b32 v%d, 32, v%d' % (t2, t1)), P('v_add_u32 v%d, v%d, v%d' % (vWQA + 1, t0, t2)),
          P('v_add_u32 v%d, 0x10000, v%d' % (vWQA + 2, vWQA)), P('v_add_u32 v%d, 0x10000, v%d' % (vWQA + 3, vWQA + 1)))
        o(P('s_and_b32 s53, s%d, 1' % sW), P('s_lshl_b32 s53, s53, 5'), P('v_xor_b32 v%d, s53, v%d' % (t2, t1)),
          P('v_add_u32 v%d, v%d, v%d' % (vE2, t0, t2)),
          P('s_lshr_b32 s53, s%d, 1' % sW), P('s_add_u32 s53, s53, 1'), P('s_lshl_b32 s53, s53, 15'),
          P('v_add_u32 v%d, s53, v%d' % (vE1, vE2)))
        o(P('v_lshrrev_b32 v%d, 1, v%d' % (t0, Gq)), P('v_lshrrev_b32 v%d, 2, v%d' % (t1, I)),
          P('v_xor_b32 v%d, v%d, v%d' % (t0, t0, t1)), P('v_lshlrev_b32 v%d, 4, v%d' % (t0, t0)),
          P('v_lshl_add_u32 v%d, v%d, 6, v%d' % (t0, I, t0)),
          P('v_and_b32 v%d, 1, v%d' % (t1, Gq)), P('v_lshl_add_u32 v%d, v%d, 3, v%d' % (t0, t1, t0)),
          P('v_add_u32 v%d, %d, v%d' % (vHXA, L_HALO, t0)), P('v_xor_b32 v%d, 32, v%d' % (vHXB, vHXA)),
          P('s_lshl_b32 s53, s%d, 11' % sW), P('s_add_u32 s53, s53, %d' % L_RING),
          P('v_add_u32 v%d, s53, v%d' % (vXA, t0)), P('v_xor_b32 v%d, 32, v%d' % (vXB, vXA)))
        o(P('v_cmp_eq_u32 s[%d:%d], 1, v%d' % (sMA, sMA + 1, I3)), P('v_cmp_eq_u32 s[%d:%d], 2, v%d' % (sMB, sMB + 1, I3)),
          P('v_cmp_eq_u32 s[%d:%d], 3, v%d' % (sMC, sMC + 1, I3)), P('v_lshrrev_b32 v%d, 2, v%d' % (t0, I)),
          P('v_cmp_eq_u32 s[%d:%d], v%d, v%d' % (sMD, sMD + 1, t0, Gq)))
        o(P('v_lshlrev_b32 v%d, 4, v%d' % (vCS, Gq)))
        o(P('s_lshl_b32 s%d, s%d, 17' % (sGBASE, sG)),
          P('s_lshl_b32 s52, s%d, 2' % sTH), P('s_add_u32 s%d, s52, s%d' % (sTB, sW)))
        if cfg.get('ts'):
            o(P('s_lshl_b32 s52, s2, 2'), P('s_add_u32 s52, s52, s%d' % sW), P('s_lshl_b32 s52, s52, 8'),
              P('s_add_u32 s%d, s52, %d' % (sTSO, 0x1F80000)))
        o(self.setup2())
        if cfg.get('pts') == 1:
            o(self.ts(29))
        self.xslot = {}; self.wq_q = {}; self.halo_dma = []
        for j in range(16):
            self.xslot[j] = self.x_ring_dma(j)
        for q in range(4):
            self.wq_q[q] = self.wq_rot_quarter(q)
        for a in range(4):
            if not cfg.get('rot', 0):
                self.halo_dma.append(self.dma(SRD_X, vDH, 97, a * 256, sW1K, L_HALO + a * 4096))
                continue
            self.halo_dma.append([P('s_add_u32 m0, s%d, %d' % (sW1K, L_HALO + a * 4096)), P('s_add_u32 s52, s99, s%d' % sW), P('s_add_u32 s52, s52, %d' % (4 * a)),
                                  P('s_and_b32 s52, s52, 15'), P('s_lshl_b32 s52, s52, 6'), P('s_add_u32 s52, s52, s%d' % sHSRC),
                                  VM('buffer_load_dwordx4 v%d, s[8:11], s52 offen lds' % vDH)])
        o(self.xslot[0], self.wq_q[0], self.halo_dma[0], self.xslot[1])
        if cfg.get('pts') == 1:
            o(self.ts(30))

    def setup2(self):
        I = 228; Gq = 229; RR = 230; I3 = 231; t0 = 232; t1 = 233; t2 = 234; t3 = 235; tr = 236
        o = []
        o += [P('v_and_b32 v%d, 15, v%d' % (I, vLANE)), P('v_lshrrev_b32 v%d, 4, v%d' % (Gq, vLANE)),
              P('v_lshrrev_b32 v%d, 2, v%d' % (t0, I)), P('v_lshl_add_u32 v%d, v%d, 2, v%d' % (RR, Gq, t0)),
              P('v_and_b32 v%d, 3, v%d' % (I3, I))]
        o += [P('v_lshrrev_b32 v%d, 3, v%d' % (t0, vLANE)), P('v_lshrrev_b32 v%d, 1, v%d' % (t1, t0)),
              P('v_lshrrev_b32 v%d, 1, v%d' % (t2, vLANE)), P('v_xor_b32 v%d, v%d, v%d' % (t1, t1, t2)),
              P('v_and_b32 v%d, 3, v%d' % (t1, t1)), P('v_lshlrev_b32 v%d, 5, v%d' % (t1, t1)),
              P('v_and_b32 v%d, 1, v%d' % (t2, vLANE)), P('v_lshl_add_u32 v%d, v%d, 4, v%d' % (t1, t2, t1)),
              P('v_lshl_add_u32 v%d, v%d, 10, v%d' % (vDO, t0, t1))]
        for c in range(448):
            assert (c * 4682) >> 16 == c // 14
        for u in range(7):
            o += [P('v_add_u32 v%d, %d, v%d' % (t0, 64 * u, vLANE)), P('v_mul_u32_u24 v%d, 4682, v%d' % (t1, t0)),
                  P('v_lshrrev_b32 v%d, 16, v%d' % (t1, t1)), P('v_mul_u32_u24 v%d, 14, v%d' % (t2, t1)),
                  P('v_sub_u32 v%d, v%d, v%d' % (t2, t0, t2)), P('v_lshlrev_b32 v%d, 4, v%d' % (t2, t2)),
                  P('v_mul_u32_u24 v%d, 3584, v%d' % (t1, t1)), P('v_add_u32 v%d, v%d, v%d' % (vD1 + u, t1, t2))]
        o += [P('s_lshl_b32 s80, s%d, 7' % sG), P('s_lshl_b32 s81, s%d, 5' % sW), P('s_add_u32 s80, s80, s81'), P('s_add_u32 s80, s80, s%d' % sTH),
              P('s_lshl_b32 s80, s80, 10'), P('s_lshl_b32 s81, s%d, 7' % sCT), P('s_add_u32 s61, s80, s81'),
              P('v_lshlrev_b32 v%d, 11, v%d' % (t1, I)), P('v_lshl_add_u32 v%d, v%d, 3, v%d' % (tr, Gq, t1))]
        self.tag_res = [newtag('res') for _ in range(4)]
        self.res_ops = [VM('buffer_load_dwordx2 v[%d:%d], v%d, s[8:11], s61 offen offset:%d' % (vR + 2 * fb, vR + 2 * fb + 1, tr, fb * 32), self.tag_res[fb]) for fb in range(4)]
        self.tag_b1 = newtag('b1')
        self.b1_op = [P('v_lshlrev_b32 v%d, 2, v%d' % (237, vLANE)), P('s_mul_i32 s80, s%d, 224' % sM),
                      VM('buffer_load_dword v247, v237, s[40:43], s80 offen', self.tag_b1)]
        o += [P('v_and_b32 v%d, 1, v%d' % (t2, Gq)), P('v_lshlrev_b32 v%d, 5, v%d' % (t2, t2)),
              P('v_lshrrev_b32 v%d, 1, v%d' % (t3, Gq)), P('v_lshl_add_u32 v%d, v%d, 4, v%d' % (t2, t3, t2)),
              P('v_lshl_add_u32 v%d, v%d, 11, v%d' % (vOUT, I, t2))]
        o += [P('s_mov_b32 s%d, 1.0' % sONE), P('s_mov_b32 s%d, 1.0' % (sONE + 1)),
              P('s_mov_b32 s%d, %s' % (sM2L, f32(-2 * LN2))), P('s_mov_b32 s%d, %s' % (sM2L + 1, f32(-2 * LN2))),
              P('v_mov_b32 v%d, %s' % (vLN2, f32(LN2))), P('v_mov_b32 v%d, %s' % (vLN2 + 1, f32(LN2)))]
        o += [P('v_mul_u32_u24 v%d, 224, v%d' % (t0, RR)), P('v_lshl_add_u32 v%d, v%d, 3, v%d' % (vW1A, I3, t0)),
              P('v_add_u32 v%d, 0x10000, v%d' % (vW1A + 1, vW1A)), P('v_add_u32 v%d, 0x20000, v%d' % (vW1A + 2, vW1A))]
        o += [P('v_lshlrev_b32 v%d, 7, v%d' % (t0, RR)), P('v_lshl_add_u32 v%d, v%d, 3, v%d' % (t0, I3, t0)),
              P('s_and_b32 s80, s%d, 1' % sW), P('s_lshl_b32 s80, s80, 12'), P('s_add_u32 s80, s80, %d' % L_W),
              P('v_add_u32 v%d, s80, v%d' % (t0, t0)),
              P('v_lshrrev_b32 v%d, 1, v%d' % (t1, RR)), P('v_and_b32 v%d, 3, v%d' % (t1, t1))]
        for fb in range(4):
            o += [P('v_xor_b32 v%d, %d, v%d' % (t2, fb, t1)), P('v_lshl_add_u32 v%d, v%d, 5, v%d' % (vW2A + fb * 3, t2, t0)),
                  P('v_add_u32 v%d, 0x10000, v%d' % (vW2A + fb * 3 + 1, vW2A + fb * 3)),
                  P('v_add_u32 v%d, 0x20000, v%d' % (vW2A + fb * 3 + 2, vW2A + fb * 3))]
        NEG = f32(-1e30)
        o += [P('v_mov_b32 v%d, %s' % (t3, NEG))]
        for r in range(4):
            o += [P('v_lshl_add_u32 v%d, v%d, 2, %d' % (t0, Gq, r)),
                  P('v_sub_u32 v%d, v%d, v%d' % (t1, I, t0)), P('v_cmp_gt_u32 vcc, 8, v%d' % t1),
                  P('v_cndmask_b32_e64 v%d, v%d, 0, vcc' % (vCCUR + r, t3)),
                  P('v_add_u32 v%d, 9, v%d' % (t1, I)), P('v_cmp_ge_u32 vcc, v%d, v%d' % (t0, t1)),
                  P('v_cndmask_b32_e64 v%d, v%d, 0, vcc' % (vCPREV + r, t3))]
        o += [P('s_and_b32 s80, s%d, 1' % sW), P('s_or_b32 s80, s80, s%d' % sG), P('s_cmp_eq_u32 s80, 0'), P('s_cselect_b64 vcc, -1, 0')]
        for r in range(4):
            o.append(P('v_cndmask_b32 v%d, v%d, v%d, vcc' % (vCPA + r, vCPREV + r, t3)))
        o += [P('v_lshlrev_b32 v%d, 2, v%d' % (t0, Gq)), P('v_add_u32 v%d, 6, v%d' % (t1, I)),
              P('v_cmp_ge_u32 s[%d:%d], v%d, v%d' % (sUP, sUP + 1, t0, t1))]
        o += [P('v_lshlrev_b32 v%d, 5, v%d' % (t0, I)), P('v_lshl_add_u32 v%d, v%d, 3, v%d' % (t0, Gq, t0)),
              P('s_lshl_b32 s80, s%d, 11' % sW), P('s_add_u32 s80, s80, %d' % L_EX), P('v_add_u32 v%d, s80, v%d' % (vEXV, t0))]
        o += [P('s_lshr_b32 s80, s%d, 1' % sW), P('s_add_u32 s81, s80, 3'), P('s_bitcmp1_b32 s%d, 0' % sW),
              P('s_cselect_b32 s80, s81, s80'), P('s_lshl_b32 s80, s80, 10'), P('s_add_u32 s80, s80, %d' % L_EXK),
              P('v_lshlrev_b32 v%d, 3, v%d' % (t1, vLANE)), P('v_add_u32 v%d, s80, v%d' % (vEXK, t1))]
        o += [P('s_and_b32 s80, s%d, 1' % sW), P('s_lshl_b32 s80, s80, 9'),
              P('s_add_u32 s81, s80, %d' % (L_EXK + 2048)), P('v_add_u32 v%d, s81, v%d' % (t2, t1)),
              P('s_add_u32 s81, s80, %d' % (L_EX + 8192)), P('v_add_u32 v%d, s81, v%d' % (t3, t0)),
              P('s_cmp_ge_u32 s%d, 2' % sW), P('s_cselect_b64 vcc, -1, 0'),
              P('v_cndmask_b32 v%d, v%d, v%d, vcc' % (vEXH, t2, t3))]
        o += [P('v_lshlrev_b32 v%d, 5, v%d' % (t0, RR)), P('v_lshl_add_u32 v%d, v%d, 3, v%d' % (t0, I3, t0)),
              P('s_lshl_b32 s80, s%d, 11' % sW), P('s_add_u32 s80, s80, %d' % L_EX), P('v_add_u32 v%d, s80, v%d' % (vRV, t0))]
        o += [P('v_subrev_u32 v%d, 1024, v%d' % (t1, vRV)),
              P('v_add_u32 v%d, %d, v%d' % (t2, L_EX + 8192, t0)),
              P('v_subrev_u32 v%d, 256, v%d' % (t3, t2)),
              P('v_cmp_le_u32 vcc, 8, v%d' % RR), P('v_cndmask_b32 v%d, v%d, v%d, vcc' % (t3, t2, t3)),
              P('s_cmp_eq_u32 s%d, 0' % sW), P('s_cselect_b64 vcc, -1, 0'), P('v_cndmask_b32 v%d, v%d, v%d, vcc' % (t2, t2, t3)),
              P('s_bitcmp1_b32 s%d, 0' % sW), P('s_cselect_b64 vcc, -1, 0'), P('v_cndmask_b32 v%d, v%d, v%d, vcc' % (vRVP, t2, t1))]
        o += [P('v_lshlrev_b32 v%d, 3, v%d' % (t0, vLANE)),
              P('s_lshr_b32 s80, s%d, 1' % sW), P('s_bitcmp1_b32 s%d, 0' % sW), P('s_cselect_b32 s80, s80, 2'),
              P('s_lshl_b32 s80, s80, 10'), P('s_add_u32 s80, s80, %d' % L_EXK), P('v_add_u32 v%d, s80, v%d' % (t0, t0)),
              P('v_subrev_u32 v%d, 64, v%d' % (t1, t0)), P('v_cmp_le_u32 vcc, 8, v%d' % I),
              P('v_cndmask_b32 v%d, v%d, v%d, vcc' % (t1, t0, t1)),
              P('s_cmp_eq_u32 s%d, 0' % sW), P('s_cselect_b64 vcc, -1, 0'), P('v_cndmask_b32 v%d, v%d, v%d, vcc' % (vRK, t0, t1))]
        o += [P('s_lshl_b32 s80, s%d, 12' % sW), P('v_add_u32 v%d, s80, v%d' % (vEXBW, vL16)),
              P('v_xor_b32 v%d, 0x1000, v%d' % (vEXBR, vEXBW))]
        o += [P('s_lshr_b32 s80, s%d, 1' % sCT), P('s_lshl_b32 s80, s80, 8'), P('s_and_b32 s81, s%d, 1' % sCT),
              P('s_lshl_b32 s81, s81, 3'), P('s_add_u32 s80, s80, s81'),
              P('v_lshlrev_b32 v%d, 4, v%d' % (t0, I)), P('v_add_u32 v%d, s80, v%d' % (vSTO, t0))]
        o += [P('s_cmp_eq_u32 s%d, 0' % sTH), P('s_cselect_b32 s81, 8, 0'),
              P('v_subrev_u32 v%d, s81, v%d' % (t0, I)),
              P('v_lshl_add_u32 v%d, v%d, 4, v%d' % (t1, Gq, t0)), P('v_lshlrev_b32 v%d, 4, v%d' % (t1, t1)),
              P('v_lshlrev_b32 v%d, 4, v%d' % (t2, t0)), P('v_add_u32 v%d, s80, v%d' % (t2, t2)),
              P('s_cmp_eq_u32 s%d, 3' % sW), P('s_cselect_b32 s80, 0, 0x40000000'),
              P('s_cmp_eq_u32 s%d, 15' % sG), P('s_cselect_b32 s80, 0x40000000, s80'),
              P('v_mov_b32 v%d, 0x40000000' % t3), P('v_cmp_le_u32 vcc, 8, v%d' % I),
              P('v_cndmask_b32 v%d, v%d, v%d, vcc' % (t1, t3, t1)), P('v_cndmask_b32 v%d, v%d, v%d, vcc' % (t2, t3, t2)),
              P('v_or_b32 v%d, s80, v%d' % (vHOF, t1)), P('v_or_b32 v%d, s80, v%d' % (vHST, t2))]
        return o

    def x_ring_dma(self, j):
        if not self.cfg.get('rot', 0):
            return [self.dma(SRD_X, vDX, sXR0 + b, j * 64, sD, L_RING + (j % 5) * 8192 + b * 1024) for b in range(2)]
        out = []
        for b in range(2):
            ops = [P('s_add_u32 m0, s%d, %d' % (sD, L_RING + (j % 5) * 8192 + b * 1024)),
                   P('s_add_u32 s52, s99, %d' % j), P('s_and_b32 s52, s52, 15'), P('s_lshl_b32 s52, s52, 6'),
                   P('s_add_u32 s52, s52, s%d' % (sXR0 + b)),
                   VM('buffer_load_dwordx4 v%d, s[8:11], s52 offen lds' % vDX)]
            out.append(ops)
        return out

    def wq_rot_quarter(self, qd):
        if not self.cfg.get('rot', 0):
            return self.dma_wq_quarter(qd)
        out = []
        for a in range(2):
            for p in range(3):
                rg = 8 * qd + 4 * a
                out.append([P('s_add_u32 m0, s%d, %d' % (sW1K, L_W + p * 32768 + rg * 1024)),
                            P('s_add_u32 s52, s98, %d' % rg), P('s_and_b32 s52, s52, 31'), P('s_mul_i32 s52, s52, 49152'),
                            P('s_add_u32 s52, s52, s95'), P('s_add_u32 s52, s52, %d' % (p * 1024)),
                            VM('buffer_load_dwordx4 v%d, s[12:15], s52 offen lds' % vDQ)])
        return out

    @staticmethod
    def vmtags(ops):
        t = []
        for x in ops:
            if isinstance(x, (list, tuple)):
                t += Gen.vmtags(x)
            elif x is not None and not isinstance(x, str) and x.kind == 'vm':
                t.append(x.tag)
        return t

    def finish_stats(self, s1, s2, pair_kv, pair_q=None, scale=None):
        t = vT + 80
        o = [P('v_mul_f32 v%d, %s, v%d' % (t, f32(1 / 512), s1)),
             P('v_mul_f32 v%d, %s, v%d' % (t + 1, f32(1 / 512), s2)),
             P('v_fma_f32 v%d, -v%d, v%d, v%d' % (t + 1, t, t, t + 1)),
             P('v_max_f32 v%d, 0, v%d' % (t + 1, t + 1)),
             P('v_add_f32 v%d, %s, v%d' % (t + 1, f32(1e-5), t + 1)),
             P('v_rsq_f32 v%d, v%d' % (pair_kv, t + 1))]
        if scale is not None:
            o.append(P('v_mul_f32 v%d, %s, v%d' % (pair_kv, f32(scale), pair_kv)))
        o.append(P('v_mul_f32 v%d, -v%d, v%d' % (pair_kv + 1, t, pair_kv)))
        if pair_q is not None:
            qs = f32(0.25 * LOG2E)
            o += [P('v_mul_f32 v%d, %s, v%d' % (pair_q, qs, pair_kv)), P('v_mul_f32 v%d, %s, v%d' % (pair_q + 1, qs, pair_kv + 1))]
        return o

    def reduce_g2(self, a, b):
        t = vT + 84
        return [P('v_permlane32_swap_b32 v%d, v%d' % (a, b)), P('v_add_f32 v%d, v%d, v%d' % (a, a, b)),
                P('v_mov_b32 v%d, v%d' % (t, a)), P('v_permlane16_swap_b32 v%d, v%d' % (a, t)),
                P('v_add_f32 v%d, v%d, v%d' % (a, a, t)), P('v_mov_b32 v%d, v%d' % (b, a)),
                P('v_permlane32_swap_b32 v%d, v%d' % (a, b))]

    def stats_from_st(self, regs, pair_kv, pair_q=None, scale=None):
        return [P('v_add_f32 v%d, v%d, v%d' % (regs, regs, regs + 2)), P('v_add_f32 v%d, v%d, v%d' % (regs + 1, regs + 1, regs + 3))] + \
            self.reduce_g2(regs, regs + 1) + self.finish_stats(regs, regs + 1, pair_kv, pair_q, scale)

    def accP1(self, blk, tb):
        return vACC + (blk * 2 + tb) * 4
    ACC_H = vACC + 48
    ACC_CS1 = vACC + 52
    ACC_CS2 = vACC + 56
    PKV = [vT + 0, vT + 2]; PQ = [vT + 4, vT + 6]; PH = vT + 8

    def wq_read(self, blk, j, part, dst):
        p = blk // 2; h = blk % 2
        if p < 2:
            return LG('ds_read_b64_tr_b16 v[%d:%d], v%d offset:%d' % (dst + 2 * part, dst + 2 * part + 1, vWQA + h, p * 32768 + j * 2048 + part * 1024))
        return LG('ds_read_b64_tr_b16 v[%d:%d], v%d offset:%d' % (dst + 2 * part, dst + 2 * part + 1, vWQA + 2 + h, j * 2048 + part * 1024))

    def p1a(self):
        o = self.add
        XB = vT + 12
        S1 = vT + 36
        S2 = vT + 48
        def xb(j, b): return XB + (j & 1) * 12 + b * 4
        xr_tags = {}
        def xreads(j):
            ops = []
            for b in range(2):
                ops.append(LG('ds_read_b64 v[%d:%d], v%d offset:%d' % (xb(j, b), xb(j, b) + 1, vXA, (j % 5) * 8192 + b * 1024)))
                ops.append(LG('ds_read_b64 v[%d:%d], v%d offset:%d' % (xb(j, b) + 2, xb(j, b) + 3, vXB, (j % 5) * 8192 + b * 1024)))
            ops.append(LG('ds_read_b64 v[%d:%d], v%d offset:%d' % (xb(j, 2), xb(j, 2) + 1, vHXA, j * 1024)))
            ops.append(LG('ds_read_b64 v[%d:%d], v%d offset:%d' % (xb(j, 2) + 2, xb(j, 2) + 3, vHXB, j * 1024)))
            xr_tags[j] = [x.tag for x in ops]
            return ops
        groups = []
        n = 0
        extras = []
        mfidx = 0
        first_idx = {}
        for j in range(16):
            first_idx[j] = mfidx
            z = (j == 0)
            for blk in range(8):
                dst = self.afrag(n); n += 1
                g = dict(pre=[], reads=[], mf=[])
                if blk == 0:
                    if j % 4 == 0:
                        q = j // 4
                        wt = self.vmtags(self.wq_q[q]) + self.vmtags(self.halo_dma[q])
                        g['pre'] += [W(wt), P('s_barrier')] if not (self.cfg.get('x_nobar') and q > 0) else []
                    if not self.cfg.get('x_nowait'):
                        g['pre'] += [W(self.vmtags(self.xslot[j]))]
                    g['reads'] += xreads(j)
                if blk < 6:
                    g['reads'] += [self.wq_read(blk, j, 0, dst), self.wq_read(blk, j, 1, dst)]
                    for tb in range(2):
                        acc = self.accP1(blk, tb)
                        c = '0' if z else vr(acc, 4)
                        g['mf'].append(('v_mfma_f32_16x16x32_bf16 %s, %s, %s, %s' % (vr(acc, 4), vr(dst, 4), vr(xb(j, tb), 4), c), []))
                    if blk in (1, 3, 5) and not self.cfg.get('x_nostat'):
                        b = blk // 2
                        for (accb, A) in ((S1 + b * 4, vONES), (S2 + b * 4, xb(j, b))):
                            c = '0' if z else vr(accb, 4)
                            g['mf'].append(('v_mfma_f32_16x16x32_bf16 %s, %s, %s, %s' % (vr(accb, 4), vr(A, 4), vr(xb(j, b), 4), c), []))
                else:
                    base = vE1 if blk == 6 else vE2
                    g['reads'] += [LG('ds_read_b64_tr_b16 v[%d:%d], v%d offset:%d' % (dst + 2 * part, dst + 2 * part + 1, base, j * 2048 + part * 1024)) for part in range(2)]
                    if blk == 6:
                        c = '0' if z else vr(self.ACC_H, 4)
                        g['mf'].append(('v_mfma_f32_16x16x32_bf16 %s, %s, %s, %s' % (vr(self.ACC_H, 4), vr(dst, 4), vr(xb(j, 2), 4), c), []))
                        c = '0' if z else vr(self.ACC_CS1, 4)
                        g['mf'].append(('v_mfma_f32_16x16x32_bf16 %s, %s, %s, %s' % (vr(self.ACC_CS1, 4), vr(dst, 4), vr(vONES, 4), c), []))
                    else:
                        c = '0' if z else vr(self.ACC_CS2, 4)
                        g['mf'].append(('v_mfma_f32_16x16x32_bf16 %s, %s, %s, %s' % (vr(self.ACC_CS2, 4), vr(dst, 4), vr(vONES, 4), c), []))
                mfidx += len(g['mf'])
                groups.append(g)
        def at(k, i):
            return first_idx[k] + i
        seq = []
        seq += [(at(0, 0), self.xslot[2][0]), (at(0, 2), self.xslot[2][1])]
        q1 = self.wq_q[1]
        seq += [(at(0, 5), q1[0]), (at(0, 8), q1[1]), (at(0, 11), q1[2]), (at(0, 14), self.xslot[3][0]), (at(0, 16), self.xslot[3][1]),
                (at(0, 19), self.tq(2)), (at(1, 1), q1[3]), (at(1, 4), q1[4]), (at(1, 7), q1[5]), (at(1, 10), self.halo_dma[1]),
                (at(1, 13), self.xslot[4][0]), (at(1, 15), self.xslot[4][1]), (at(1, 18), self.tq(3))]
        for j in range(11):
            for b, d in enumerate(self.xslot[j + 5]):
                seq.append((max(at(j, 2 + 2 * b), at(2, 0) + 2 * b + (j * 4 if j < 2 else 0)), d))
        for k, d in enumerate(self.wq_q[2] + [self.halo_dma[2]]):
            seq.append((at(3 + k // 2, 8 + 5 * (k % 2)), d))
        for k, d in enumerate(self.wq_q[3] + [self.halo_dma[3]]):
            seq.append((at(7 + k // 2, 8 + 5 * (k % 2)), d))
        extras += seq
        reg = [W(self.tag_init),
               P('s_mul_i32 s53, s%d, s%d' % (sXCC, sXCC)), P('s_lshl_b32 s53, s53, 13'), P('s_lshl_b32 s54, s%d, 5' % sXCC),
               P('s_add_u32 s53, s53, s54'), P('s_add_u32 s53, s53, 1'), P('v_mov_b32 v%d, s53' % vTA),
               P('s_lshr_b32 s53, s%d, 1' % sG), P('s_lshl_b32 s53, s53, 5'), P('s_and_b32 s54, s%d, 1' % sG),
               P('s_lshl_b32 s54, s54, 2'), P('s_add_u32 s54, s53, s54'), P('v_mov_b32 v%d, s54' % vTB),
               P('s_cmp_eq_u32 s%d, 0' % sW), P('s_cselect_b32 s53, 0, 0x40000000'),
               P('v_or_b32 v%d, s53, v%d' % (vTB, vTB)),
               P('s_mov_b64 exec, 1'),
               VM('buffer_atomic_add v%d, v%d, s[36:39], 0 offen' % (vTA, vTB)),
               P('s_mov_b64 exec, -1')]
        extras.append((first_idx[4] + 3, reg))
        groups[8 * 4]['pre'] = [W(self.tag_init)] + groups[8 * 4]['pre']
        if self.cfg.get('t_mall', 0) >= 4:
            extras.append((first_idx[self.cfg.get('t_mall')] + 4, self.touch_mall()))
        for k, x in enumerate(self.res_ops):
            extras.append((first_idx[11] + 3 + 3 * k, [x]))
        extras.append((first_idx[11] + 16, self.b1_op))
        extras.append((first_idx[8] + 9, self.mode_load()))
        extras.append((first_idx[11] + 1, self.mode_check()))
        tset = self.touch_set(self.cfg.get('t_p1a', 'of,xf'))
        k0 = self.cfg.get('t_p1a_k', 11)
        post = []
        for k, t in enumerate(tset):
            if k0 + k < 16:
                extras.append((first_idx[k0 + k] + 5, t))
            else:
                post.append(t)
        extras += self.sched_touches('p1a', first_idx)
        if self.cfg.get('pts') == 2:
            for k, slot in ((1, 14), (4, 15), (8, 29), (12, 30)):
                extras.append((first_idx[k] - 1, self.ts(slot)))
        if self.cfg.get('pts') == 3:
            for k in range(16):
                extras.append((first_idx[k], self.ts(32 + k)))
        o(self.gemm_loop(groups, self.cfg.get('la_p1a', 3), extras))
        for t in post:
            o(t)
        t0 = 252; t1 = 253
        o(W(self.tag_b1), P('v_lshlrev_b32 v%d, 16, v247' % t0), P('v_and_b32 v%d, 0xffff0000, v247' % t1),
          P('v_mul_f32 v%d, %s, v%d' % (t0, f32(LOG2E), t0)), P('v_mul_f32 v%d, %s, v%d' % (t1, f32(LOG2E), t1)),
          P('v_lshlrev_b32 v%d, 3, v%d' % (vTA, vLANE)),
          P('s_mov_b32 exec_hi, 0x00ffffff'),
          LG('ds_write_b64 v%d, v[%d:%d] offset:%d' % (vTA, t0, t1, L_BB1)),
          P('s_mov_b64 exec, -1'))
        o(P('s_add_u32 s53, s%d, 2' % sW), P('s_lshl_b32 s53, s53, 6'), P('v_add_u32 v%d, s53, v%d' % (vTA, vCS)),
          P('s_and_b32 s53, s%d, 1' % sW), P('s_lshl_b32 s53, s53, 6'), P('v_add_u32 v%d, s53, v%d' % (vTB, vCS)),
          P('s_mov_b32 s52, 0x00010001'), P('s_mov_b32 s53, 0x00010001'), P('s_mov_b64 exec, s[52:53]'),
          LG('ds_write_b128 v%d, %s offset:%d' % (vTA, vr(self.ACC_CS1, 4), L_CSQ)),
          LG('ds_write_b128 v%d, %s offset:%d' % (vTB, vr(self.ACC_CS2, 4), L_CSQ)),
          P('s_mov_b64 exec, -1'))
        for b in range(3):
            s2 = S2 + b * 4
            o(P('v_cndmask_b32_e64 v%d, v%d, v%d, s[%d:%d]' % (s2, s2, s2 + 1, sMA, sMA + 1)),
              P('v_cndmask_b32_e64 v%d, v%d, v%d, s[%d:%d]' % (s2, s2, s2 + 2, sMB, sMB + 1)),
              P('v_cndmask_b32_e64 v%d, v%d, v%d, s[%d:%d]' % (s2, s2, s2 + 3, sMC, sMC + 1)),
              P('v_cndmask_b32_e64 v%d, 0, v%d, s[%d:%d]' % (s2, s2, sMD, sMD + 1)))
            t = s2 + 1
            o(P('v_mov_b32 v%d, v%d' % (t, s2)), P('v_permlane32_swap_b32 v%d, v%d' % (s2, t)),
              P('v_add_f32 v%d, v%d, v%d' % (s2, s2, t)), P('v_mov_b32 v%d, v%d' % (t, s2)),
              P('v_permlane16_swap_b32 v%d, v%d' % (s2, t)), P('v_add_f32 v%d, v%d, v%d' % (s2, s2, t)))
            if b < 2:
                o(self.finish_stats(S1 + b * 4, s2, self.PKV[b], self.PQ[b]))
            else:
                o(self.finish_stats(S1 + b * 4, s2, self.PH))
        o(WALL(False, True), P('s_barrier'))

    def p1b(self):
        o = self.add
        cfg = self.cfg
        for b in range(2):
            o(P('s_lshl_b32 s53, s%d, 1' % sW), P('s_add_u32 s53, s53, %d' % b), P('s_lshl_b32 s53, s53, 14'),
              P('s_add_u32 s%d, s53, s%d' % (sB0 + b, sX2)))
        xl = self.x_loads(16)
        pro = cfg.get('x_pro', 4)
        for j in range(pro):
            o(xl[j])
        stt = []
        STR = vT + 12
        for b in range(2):
            t = newtag('st'); stt.append(t)
            o(P('s_lshl_b32 s54, s%d, 11' % sW), P('s_add_u32 s53, s54, s%d' % sS2),
              P('s_add_u32 s53, s53, %d' % (b * 1024)),
              VM('buffer_load_dwordx4 %s, v%d, s[28:31], s53 offen sc1' % (vr(STR + 4 * b, 4), vL16), t))
        groups = []; n = 0; first_idx = {}; mfidx = 0
        for j in range(16):
            first_idx[j] = mfidx
            for blk in range(6):
                dst = self.afrag(n); n += 1
                g = dict(pre=[], reads=[self.wq_read(blk, j, 0, dst), self.wq_read(blk, j, 1, dst)], mf=[])
                for tb in range(2):
                    acc = self.accP1(blk, tb)
                    c = '0' if j == 0 else vr(acc, 4)
                    wt = self.vmtags(xl[j][tb]) if blk == 0 else []
                    g['mf'].append(('v_mfma_f32_16x16x32_bf16 %s, %s, %s, %s' % (vr(acc, 4), vr(dst, 4), ar((j * 2 + tb) * 4, 4), c), wt))
                mfidx += 2
                groups.append(g)
        extras = []
        k = 0
        rate = cfg.get('x_rate', 4)
        for j in range(pro, 16):
            for b in range(2):
                extras.append((first_idx[k // rate] + 1 + (12 // rate) * (k % rate), xl[j][b])); k += 1
        lastx = extras[-1][0]
        hp = [W(self.halo_store_tags), P('v_mov_b32 v%d, 1' % vTA),
              P('s_cmp_eq_u32 s%d, 3' % sW), P('s_cselect_b32 s53, 0, 0x40000000'),
              P('s_cmp_eq_u32 s%d, 15' % sG), P('s_cselect_b32 s53, 0x40000000, s53'),
              P('s_add_u32 s54, s%d, 1' % sG), P('s_lshr_b32 s52, s54, 1'), P('s_lshl_b32 s52, s52, 5'),
              P('s_and_b32 s54, s54, 1'), P('s_lshl_b32 s54, s54, 2'), P('s_add_u32 s52, s52, s54'),
              P('s_add_u32 s52, s52, 8'), P('s_or_b32 s53, s53, s52'),
              P('v_mov_b32 v%d, s53' % vTB),
              P('s_mov_b64 exec, 1'),
              VM('buffer_atomic_add v%d, v%d, s[36:39], 0 offen' % (vTA, vTB)),
              P('s_mov_b64 exec, -1')]
        extras.append((first_idx[0] + 6, hp))
        st_ops = [W(stt)]
        for b in range(2):
            st_ops += self.stats_from_st(STR + 4 * b, self.PKV[b], self.PQ[b])
        extras += self.spread(st_ops, first_idx[2] + 2, 1)
        HS = vT + 56
        HC = vT + 60; HZ = vT + 61
        spin = self.L('hsp'); hok = self.L('hok')
        tagc = newtag('hc'); htags = [newtag('h') for _ in range(17)]
        hk0 = cfg.get('halo_k0', 7); hk1 = cfg.get('halo_k', 10)
        h0 = [P('v_mov_b32 v%d, 0' % HZ),
              P('s_lshr_b32 s54, s%d, 1' % sG), P('s_lshl_b32 s54, s54, 5'), P('s_and_b32 s53, s%d, 1' % sG),
              P('s_lshl_b32 s53, s53, 2'), P('s_add_u32 s54, s54, s53'), P('s_add_u32 s%d, s54, 8' % sA),
              VM('buffer_load_dword v%d, v%d, s[36:39], s%d offen sc1' % (HC, HZ, sA), tagc)]
        extras.append((max(first_idx[hk0], lastx + 1), h0))
        hl = [W(tagc), P('s_mov_b32 s%d, 0' % sTMO),
              P('s_cmp_eq_u32 s%d, 0' % sG), P('s_cbranch_scc1 %s' % hok),
              LAB(spin),
              P('v_cmp_ne_u32 vcc, 16, v%d' % HC),
              P('s_cbranch_vccz %s' % hok),
              P('buffer_load_dword v%d, v%d, s[36:39], s%d offen sc1' % (HC, HZ, sA)),
              P('s_add_u32 s%d, s%d, 1' % (sTMO, sTMO)),
              P('s_waitcnt vmcnt(0)'),
              P('s_cmp_lt_u32 s%d, 0x100000' % sTMO), P('s_cbranch_scc1 %s' % spin),
              P('s_endpgm'),
              LAB(hok),
              P('s_cmp_eq_u32 s%d, 0' % sG), P('s_cselect_b32 s53, 0x40000000, 0'),
              P('v_or_b32 v%d, s53, v%d' % (HZ, vL16)),
              P('s_lshl_b32 s53, s%d, 10' % sG), P('s_add_u32 s53, s53, %d' % WS_HST),
              VM('buffer_load_dwordx4 %s, v%d, s[28:31], s53 offen sc1' % (vr(HS, 4), HZ), htags[16]),
              P('s_lshl_b32 s53, s%d, 14' % sG), P('s_add_u32 s%d, s53, %d' % (sA, WS_HF))]
        extras.append((first_idx[hk1], hl))
        for j in range(16):
            ops = []
            if j % 4 == 0:
                ops.append(P('s_add_u32 s%d, s%d, %d' % (sB, sA, j * 1024)))
            ops.append(VM('buffer_load_dwordx4 %s, v%d, s[28:31], s%d offen offset:%d sc1' % (ar(128 + 4 * j, 4), HZ, sB, (j % 4) * 1024), htags[j]))
            extras.append((first_idx[hk1] + 1 + 2 * j, ops))
        if cfg.get('a0_early', 1):
            for k, d in enumerate(self.dma_w1_group(0) + (self.dma_w1_group(1) if cfg.get('a1_tail', 1) else [])):
                extras.append((first_idx[hk1] + 34 + cfg.get('a0_step', 2) * k, d))
        for k, t in enumerate(self.touch_set(cfg.get('t_p1b', ''))):
            extras.append((first_idx[hk1] + 34 + 6 * k, t))
        extras += self.spread([W(htags[16])] + self.stats_from_st(HS, self.PH), first_idx[15] - 14, 1)
        extras += self.sched_touches('p1b', first_idx)
        o(self.gemm_loop(groups, cfg.get('la', 3), extras))
        groups = []
        for j in range(16):
            dst = self.afrag(j)
            g = dict(pre=[], reads=[LG('ds_read_b64_tr_b16 v[%d:%d], v%d offset:%d' % (dst + 2 * part, dst + 2 * part + 1, vE1, j * 2048 + part * 1024)) for part in range(2)], mf=[])
            c = '0' if j == 0 else vr(self.ACC_H, 4)
            g['mf'].append(('v_mfma_f32_16x16x32_bf16 %s, %s, %s, %s' % (vr(self.ACC_H, 4), vr(dst, 4), ar(128 + 4 * j, 4), c), [htags[j]]))
            groups.append(g)
        o(self.gemm_loop(groups, 6, []))
        o(P('s_barrier'))

    def x_loads(self, nk, ring=None, depth=None):
        xl = []
        for j in range(nk):
            row = []
            for b in range(2):
                slot = j if depth is None else j % depth
                ops = []
                if j % 4 == 0:
                    ops.append(P('s_add_u32 s%d, s%d, %d' % (sXL0 + b, sB0 + b, j * 1024)))
                if self.cfg.get('noxl'):
                    ops.append(P('s_nop 0'))
                else:
                    ops.append(VM('buffer_load_dwordx4 %s, v%d, s[28:31], s%d offen offset:%d%s' % (ar((slot * 2 + b) * 4, 4), vL16, sXL0 + b, (j % 4) * 1024, '' if self.cfg.get('plainld') else ' sc1')))
                row.append(ops)
            xl.append(row)
        return xl

    def dual_store(self, stores):
        pure = self.L('stp'); done = self.L('std')
        o = [P('s_cmp_eq_u32 s%d, 0' % sMODE), P('s_cbranch_scc1 %s' % pure)]
        o += [P(s + ' sc1') for s in stores]
        o += [P('s_branch %s' % done), LAB(pure)]
        o += [P(s) for s in stores]
        o += [LAB(done)]
        cnt = [VM('; counted store') for _ in stores]
        return o + cnt, [c.tag for c in cnt]

    def p1_epi(self, dmas):
        o = []
        CS = vT + 12
        CSH = vT + 36
        Q = vT + 40
        K = vT + 48
        V = vT + 56
        HP = vT + 64
        TT = vT + 66
        cst = []
        for b in range(6):
            x = LG('ds_read_b128 %s, v%d offset:%d' % (vr(CS + 4 * b, 4), vCS, L_CSQ + b * 64)); cst.append(x.tag); o.append(x)
        o += [P('s_add_u32 s53, s%d, 2' % sW), P('s_lshl_b32 s53, s53, 6'), P('v_add_u32 v%d, s53, v%d' % (TT, vCS))]
        x = LG('ds_read_b128 %s, v%d offset:%d' % (vr(CSH, 4), TT, L_CSQ)); csh = x.tag; o.append(x)

        def ln(acc, cs, pair, dst):
            r = []
            for hh in range(2):
                t = TT + 2 * hh
                r.append(P('v_pk_mul_f32 %s, %s, %s op_sel:[0,1] op_sel_hi:[1,1]' % (vr(t, 2), vr(cs + 2 * hh, 2), vr(pair, 2))))
            for hh in range(2):
                t = TT + 2 * hh
                r.append(P('v_pk_fma_f32 %s, %s, %s, %s op_sel_hi:[1,0,1]' % (vr(t, 2), vr(acc + 2 * hh, 2), vr(pair, 2), vr(t, 2))))
            for hh in range(2):
                t = TT + 2 * hh
                r.append(P('v_cvt_pk_bf16_f32 v%d, v%d, v%d' % (dst + hh, t, t + 1)))
            return r
        wtags = []
        for blk in (4, 5, 2, 3, 0, 1):
            o.append(W(cst[blk]))
            for tb in range(2):
                h = blk % 2
                dst = (Q, K, V)[blk // 2] + (tb * 2 + h) * 2
                pair = self.PQ[tb] if blk < 2 else self.PKV[tb]
                o += ln(self.accP1(blk, tb), CS + 4 * blk, pair, dst)
                if blk >= 4:
                    x = LG('ds_write_b64 v%d, %s offset:%d' % (vEXV, vr(dst, 2), tb * 1024 + h * 512)); o.append(x)
                elif blk >= 2 and tb == 1:
                    x = LG('ds_write_b64 v%d, %s offset:%d' % (vEXK, vr(dst, 2), h * 512)); o.append(x)
            if blk == 3:
                o.append(W(csh))
                o += ln(self.ACC_H, CSH, self.PH, HP)
                o.append(LG('ds_write_b64 v%d, %s' % (vEXH, vr(HP, 2))))
        o += [WALL(False, True), P('s_barrier')]
        KP = vT + 70
        VV = vT + 12
        SC = vACC
        SP = vACC + 16
        PB = vACC + 32
        LL = vT + 24
        OO = vACC + 48
        MX = vT + 74
        rk = []; rv = []
        for h in range(2):
            x = LG('ds_read_b64 %s, v%d offset:%d' % (vr(KP + 2 * h, 2), vRK, h * 512)); rk.append(x.tag); o.append(x)
        for h in range(2):
            x = LG('ds_read_b64_tr_b16 %s, v%d offset:%d' % (vr(VV + 6 * h, 2), vRVP, h * 512)); rv.append(x.tag); o.append(x)
            for tb in range(2):
                x = LG('ds_read_b64_tr_b16 %s, v%d offset:%d' % (vr(VV + 6 * h + 2 + 2 * tb, 2), vRV, tb * 1024 + h * 512)); rv.append(x.tag); o.append(x)
        insts = [(tb, h) for tb in range(2) for h in range(2)]
        for n, (tb, h) in enumerate(insts):
            q = Q + (tb * 2 + h) * 2
            o.append(P('v_mfma_f32_16x16x16_bf16 %s, %s, %s, %s' % (vr(SC + 4 * n, 4), vr(K + (tb * 2 + h) * 2, 2), vr(q, 2), vr(vCCUR, 4))))
        for n, (tb, h) in enumerate(insts):
            q = Q + (tb * 2 + h) * 2
            if tb == 0:
                o.append(W(rk[h]))
                o.append(P('v_mfma_f32_16x16x16_bf16 %s, %s, %s, %s' % (vr(SP + 4 * n, 4), vr(KP + 2 * h, 2), vr(q, 2), vr(vCPA, 4))))
            else:
                o.append(P('v_mfma_f32_16x16x16_bf16 %s, %s, %s, %s' % (vr(SP + 4 * n, 4), vr(K + h * 2, 2), vr(q, 2), vr(vCPREV, 4))))
        for n in range(4):
            for r in range(4):
                o.append(P('v_max_f32 v%d, v%d, v%d' % (SC + 4 * n + r, SC + 4 * n + r, SP + 4 * n + r)))
        for n in range(4):
            o.append(P('v_max3_f32 v%d, v%d, v%d, v%d' % (MX + n, SC + 4 * n, SC + 4 * n + 1, SC + 4 * n + 2)))
        for n in range(4):
            o.append(P('v_max_f32 v%d, v%d, v%d' % (MX + n, MX + n, SC + 4 * n + 3)))
        a, b, c, d = MX, MX + 1, MX + 2, MX + 3
        o += [P('v_permlane32_swap_b32 v%d, v%d' % (a, b)), P('v_permlane32_swap_b32 v%d, v%d' % (c, d)),
              P('v_max_f32 v%d, v%d, v%d' % (a, a, b)), P('v_max_f32 v%d, v%d, v%d' % (c, c, d)),
              P('v_permlane16_swap_b32 v%d, v%d' % (a, c)), P('v_max_f32 v%d, v%d, v%d' % (a, a, c)),
              P('v_mov_b32 v%d, v%d' % (c, a)), P('v_permlane16_swap_b32 v%d, v%d' % (a, c)),
              P('v_mov_b32 v%d, v%d' % (b, a)), P('v_mov_b32 v%d, v%d' % (d, c)),
              P('v_permlane32_swap_b32 v%d, v%d' % (a, b)), P('v_permlane32_swap_b32 v%d, v%d' % (c, d))]
        for n in range(4):
            for hh in range(2):
                o.append(P('v_sub_f32 v%d, v%d, v%d' % (SC + 4 * n + 2 * hh, SC + 4 * n + 2 * hh, MX + n)))
                o.append(P('v_sub_f32 v%d, v%d, v%d' % (SC + 4 * n + 2 * hh + 1, SC + 4 * n + 2 * hh + 1, MX + n)))
        for n in range(4):
            for r in range(4):
                o.append(P('v_exp_f32 v%d, v%d' % (SC + 4 * n + r, SC + 4 * n + r)))
        for n in range(4):
            for hh in range(2):
                o.append(P('v_cvt_pk_bf16_f32 v%d, v%d, v%d' % (SP + 4 * n + hh, SC + 4 * n + 2 * hh, SC + 4 * n + 2 * hh + 1)))
        for n in range(4):
            for hh in range(2):
                o.append(P('v_cndmask_b32_e64 v%d, 0, v%d, s[%d:%d]' % (PB + 4 * n + hh, SP + 4 * n + hh, sUP, sUP + 1)))
                o.append(P('v_cndmask_b32_e64 v%d, v%d, 0, s[%d:%d]' % (PB + 4 * n + 2 + hh, SP + 4 * n + hh, sUP, sUP + 1)))
        o.append(W(rv))
        o.append(P('s_barrier'))
        for n, (tb, h) in enumerate(insts):
            o.append(P('v_mfma_f32_16x16x32_bf16 %s, %s, %s, 0' % (vr(LL + 4 * n, 4), vr(vONES, 4), vr(PB + 4 * n, 4))))
            o.append(P('v_mfma_f32_16x16x32_bf16 %s, %s, %s, 0' % (vr(OO + 4 * n, 4), vr(VV + 6 * h + 2 * tb, 4), vr(PB + 4 * n, 4))))
        for n in range(4):
            o.append(P('v_rcp_f32 v%d, v%d' % (LL + 4 * n, LL + 4 * n)))
        OUTR = vT + 40
        for n, (tb, h) in enumerate(insts):
            for hh in range(2):
                o.append(P('v_pk_mul_f32 %s, %s, %s op_sel_hi:[1,0]' % (vr(OO + 4 * n + 2 * hh, 2), vr(OO + 4 * n + 2 * hh, 2), vr(LL + 4 * n, 2))))
        for n, (tb, h) in enumerate(insts):
            for hh in range(2):
                o.append(P('v_cvt_pk_bf16_f32 v%d, v%d, v%d' % (OUTR + (tb * 2 + h) * 2 + hh, OO + 4 * n + 2 * hh, OO + 4 * n + 2 * hh + 1)))
        if dmas:
            k = min(i for i, x in enumerate(o) if x.text == 's_barrier') + 1
            body = interleave(o[k:], dmas, start=0, every=max(1, (len(o) - k) // (len(dmas) + 1)))
            o = o[:k] + body
        o += [P('s_lshl_b32 s54, s%d, 15' % sW), P('s_add_u32 s53, s54, s%d' % sOF), P('s_lshl_b32 s54, s%d, 10' % sM),
              P('s_add_u32 s53, s53, s54'), P('s_add_u32 s54, s53, 16384')]
        return o, ['buffer_store_dwordx4 %s, v%d, s[28:31], s%d offen' % (vr(OUTR + 4 * tb, 4), vL16, 53 + tb) for tb in range(2)]

    def mode_load(self):
        self.tag_mode = newtag('mode')
        return [P('s_lshr_b32 s53, s%d, 1' % sG), P('s_lshl_b32 s53, s53, 5'), P('s_and_b32 s54, s%d, 1' % sG),
                P('s_lshl_b32 s54, s54, 2'), P('s_add_u32 s%d, s53, s54' % sA),
                P('v_mov_b32 v%d, 0' % vTB),
                VM('buffer_load_dword v%d, v%d, s[36:39], s%d offen sc1' % (vTA, vTB, sA), self.tag_mode)]

    def mode_check(self):
        spin = self.L('rsp'); ok = self.L('rok')
        return [W(self.tag_mode), P('s_mov_b32 s%d, 0' % sTMO),
                P('v_readfirstlane_b32 s54, v%d' % vTA),
                P('s_nop 4'),
                P('s_and_b32 s52, s54, 31'), P('s_cmp_eq_u32 s52, 16'), P('s_cbranch_scc1 %s' % ok),
                LAB(spin),
                P('buffer_load_dword v%d, v%d, s[36:39], s%d offen sc1' % (vTA, vTB, sA)),
                P('s_add_u32 s%d, s%d, 1' % (sTMO, sTMO)),
                P('s_waitcnt vmcnt(0)'),
                P('v_readfirstlane_b32 s54, v%d' % vTA),
                P('s_nop 4'),
                P('s_and_b32 s52, s54, 31'), P('s_cmp_eq_u32 s52, 16'), P('s_cbranch_scc1 %s' % ok),
                P('s_cmp_lt_u32 s%d, 0x100000' % sTMO), P('s_cbranch_scc1 %s' % spin),
                P('s_endpgm'),
                LAB(ok),
                P('s_lshr_b32 s52, s54, 5'), P('s_and_b32 s52, s52, 255'), P('s_mul_i32 s52, s52, s52'),
                P('s_lshr_b32 s54, s54, 13'), P('s_lshl_b32 s54, s54, 4'),
                P('s_cmp_lg_u32 s52, s54'), P('s_cselect_b32 s%d, 1, 0' % sMODE)] + \
            ([P('s_mov_b32 s%d, 1' % sMODE)] if self.cfg.get('force_mixed') else []) + self.set_bases()

    def set_bases(self):
        o = [P('s_mul_i32 s52, s%d, %d' % (sG, ACT_G)), P('s_add_u32 s52, s52, %d' % WS_ACT),
             P('s_mul_i32 s53, s%d, %d' % (sG, 8 * 57344)), P('s_lshl_b32 s54, s%d, 13' % sG),
             P('s_cmp_eq_u32 s%d, %d' % (sMODE, 7 if self.cfg.get('noalias') else 0))]
        def sel(dst, pure_off, mixed_base_s, mixed_imm):
            return [P('s_add_u32 s55, s52, %d' % pure_off), P('s_add_u32 s%d, s%d, %d' % (dst, mixed_base_s, mixed_imm)),
                    P('s_cmp_eq_u32 s%d, %d' % (sMODE, 7 if self.cfg.get('noalias') else 0)),
                    P('s_cselect_b32 s%d, s55, s%d' % (dst, dst))]
        o += sel(sOF, 0, sGBASE, WS_OF) + sel(sAF, 0, 53, WS_AF) + sel(sX1, 458752, sGBASE, WS_XF) + \
            sel(sX2, 458752, sGBASE, WS_XF + XF_K) + sel(sS1, 589824, 54, WS_ST) + sel(sS2, 589824, 54, WS_ST + ST_K)
        for d, v in ((dOF, OF_R), (dAF, AF_R), (dX1, 2 * XF_K), (dS1, 2 * ST_K)):
            o.append(P('s_cselect_b32 s%d, 0, %d' % (d, v)))
        return o

    def gemmB(self, nk, srdW, src_base, nblk, depth, resident, refill_tags_out, exb, pre_extras=None, posf=None, tail=None, post=None, inloop=None):
        o = []
        o += [P('s_and_b32 s52, s%d, 1' % sW), P('s_mul_i32 s52, s52, %d' % (nk * 1024)),
              P('s_add_u32 s52, s52, s%d' % src_base),
              P('s_mul_i32 s53, s%d, %d' % (sTB, nblk * 1024)), P('s_add_u32 s%d, s52, s53' % sB0),
              P('s_xor_b32 s53, s%d, 1' % sTB), P('s_mul_i32 s53, s53, %d' % (nblk * 1024)), P('s_add_u32 s%d, s52, s53' % sB1)]
        xl = self.x_loads(nk, depth=depth)
        pro = min(nk, self.cfg.get('b_pro', 4))
        for t in range(pro):
            o += xl[t][0] + xl[t][1]
        groups = []; n = 0; first_idx = {}; mfidx = 0
        acc = lambda s, fb: vACC + (s * 4 + fb) * 4
        refills = []
        if nk > resident:
            for t in range(resident, nk):
                for kh in range(2):
                    refills.append(self.dma_wo_slot(srdW, nk, t, kh, posf(t)))
        for t in range(nk):
            first_idx[t] = mfidx
            pos = posf(t) if posf else t
            for fb in range(4):
                dst = self.afrag(n); n += 1
                g = dict(pre=[], reads=[], mf=[])
                if fb == 0 and t == resident:
                    g['pre'] += [W(self.vmtags(refills)), P('s_barrier')]
                for part in range(2):
                    a = pos * 8192 + part * 2048
                    win = a >> 16
                    g['reads'].append(LG('ds_read_b64_tr_b16 v[%d:%d], v%d offset:%d' % (dst + 2 * part, dst + 2 * part + 1, vW2A + fb * 3 + win, a & 0xffff)))
                for s in range(2):
                    c = '0' if t == 0 else vr(acc(s, fb), 4)
                    wt = self.vmtags(xl[t][s]) if fb == 0 else []
                    g['mf'].append(('v_mfma_f32_16x16x32_bf16 %s, %s, %s, %s' % (vr(acc(s, fb), 4), vr(dst, 4), ar(((t % depth) * 2 + s) * 4, 4), c), wt))
                mfidx += 2
                groups.append(g)
        extras = []
        last = -1
        for t in range(pro, nk):
            if t < depth:
                at = first_idx[min(nk - 1, (t - pro) // 2)] + 1 + 4 * ((t - pro) % 2)
            else:
                at = first_idx[t - depth] + 7
            at = max(at, last + 1)
            extras.append((at, xl[t][0])); extras.append((at + 1, xl[t][1]))
            last = at + 1
        if inloop:
            for k, d in enumerate(inloop):
                extras.append((last + 2 + self.cfg.get('a2_step', 5) * k, d))
        if refills:
            nfree = nk - resident
            bar_at = first_idx[nfree] - 1
            extras.append((bar_at, [P('s_barrier')]))
            for k, d in enumerate(refills):
                extras.append((first_idx[nfree + k // 3] + 1 + 2 * (k % 3), d))
        if tail:
            allb = [t_ for row in xl for blk in row for t_ in self.vmtags(blk)]
            extras.append((first_idx[resident] - 1, [W(allb), P('s_barrier')]))
            nt_ = nk - resident
            t0_ = self.cfg.get('tail_k0', 0)
            for k, d in enumerate(tail):
                kk = t0_ + k * (nt_ - t0_) // len(tail)
                sk = self.L('tsk')
                extras.append((first_idx[resident + kk] + 1 + 2 * (k % 3),
                               [P('s_cmp_lg_u32 s%d, 0' % sRND), P('s_cbranch_scc1 %s ;nopad' % sk)] + d + [LAB(sk)]))
        if pre_extras and False:
            for k, t in enumerate(pre_extras):
                extras.append((first_idx[min(nk - 1, self.cfg.get('t_p4_k', 16) + 2 * k)] + 4, t))
        extras += self.sched_touches('p4' if nk == 28 else 'p2', first_idx)
        o += self.gemm_loop(groups, self.cfg.get('la', 3), extras)
        o.append(P('s_barrier'))
        o += [P('v_add_u32 v%d, %d, v%d' % (vTA, exb, vEXBW)), P('v_add_u32 v%d, %d, v%d' % (vTB, exb, vEXBR))]
        if post:
            sk = self.L('psk')
            o += [P('s_cmp_lg_u32 s%d, 0' % sRND), P('s_cbranch_scc1 %s ;nopad' % sk)] + self.flat(post) + [LAB(sk)]
        for fb in range(4):
            o.append(LG('ds_write_b128 v%d, %s offset:%d' % (vTA, vr(acc(1, fb), 4), fb * 1024)))
        o += [WALL(False, True), P('s_barrier')]
        PT = vT
        rt = []
        for fb in range(4):
            x = LG('ds_read_b128 %s, v%d offset:%d' % (vr(PT + 4 * fb, 4), vTB, fb * 1024)); rt.append(x.tag); o.append(x)
        U = vT + 16
        for fb in range(4):
            for hh in range(2):
                r = vR + fb * 2 + hh
                o += [P('v_lshlrev_b32 v%d, 16, v%d' % (U + fb * 4 + hh * 2, r)), P('v_and_b32 v%d, 0xffff0000, v%d' % (U + fb * 4 + hh * 2 + 1, r))]
        for fb in range(4):
            for hh in range(2):
                a = acc(0, fb) + 2 * hh
                o.append(P('v_pk_add_f32 %s, %s, %s' % (vr(a, 2), vr(a, 2), vr(U + fb * 4 + 2 * hh, 2))))
        for fb in range(4):
            o.append(W(rt[fb]))
            for hh in range(2):
                a = acc(0, fb) + 2 * hh
                o.append(P('v_pk_add_f32 %s, %s, %s' % (vr(a, 2), vr(a, 2), vr(PT + fb * 4 + 2 * hh, 2))))
        for fb in range(4):
            for hh in range(2):
                a = acc(0, fb) + 2 * hh
                o.append(P('v_cvt_pk_bf16_f32 v%d, v%d, v%d' % (vR + fb * 2 + hh, a, a + 1)))
        return o

    def sw4(self):
        return self.touch_set(self.cfg.get('t_p4', ''), only_r1=True)

    def row_stats(self):
        s1 = vT + 32; s2 = vT + 33
        o = [P('v_mov_b32 v%d, 0' % s1), P('v_mov_b32 v%d, 0' % s2)]
        for k in range(8):
            o += [P('v_dot2c_f32_bf16 v%d, v%d, v%d' % (s1, vR + k, vONES)), P('v_dot2c_f32_bf16 v%d, v%d, v%d' % (s2, vR + k, vR + k))]
        o += self.reduce_g2(s1, s2)
        return o

    def x_stores(self, sx, ss):
        return [P('s_mul_i32 s53, s%d, 16384' % sTB), P('s_add_u32 s53, s53, s%d' % sx), P('s_lshl_b32 s54, s%d, 11' % sCT),
                P('s_add_u32 s53, s53, s54'),
                P('s_lshl_b32 s54, s%d, 10' % sTB), P('s_add_u32 s54, s54, s%d' % ss)]

    def x_store_block(self):
        pure = self.L('stp'); done = self.L('std')
        def body(fl):
            return [P('buffer_store_dwordx4 %s, v%d, s[28:31], s53 offen%s' % (vr(vR, 4), vL16, fl)),
                    P('buffer_store_dwordx4 %s, v%d, s[28:31], s53 offen offset:1024%s' % (vr(vR + 4, 4), vL16, fl)),
                    P('s_mov_b64 exec, 0xffff'),
                    P('buffer_store_dwordx2 %s, v%d, s[28:31], s54 offen%s' % (vr(vT + 32, 2), vSTO, fl)),
                    P('s_mov_b64 exec, -1')]
        o = [P('s_cmp_eq_u32 s%d, 0' % sMODE), P('s_cbranch_scc1 %s' % pure)] + body(' sc1') + \
            [P('s_branch %s' % done), LAB(pure)] + body('') + [LAB(done)]
        cnt = [VM('; counted store') for _ in range(3)]
        return o + cnt, [c.tag for c in cnt]

    def p3(self, extras_w2):
        o = []
        cfg = self.cfg
        for b in range(2):
            o += [P('s_lshl_b32 s53, s%d, 1' % sW), P('s_add_u32 s53, s53, %d' % b), P('s_lshl_b32 s53, s53, 14'),
                  P('s_add_u32 s%d, s53, s%d' % (sB0 + b, sX1))]
        xl = self.x_loads(16)
        pro = cfg.get('x_pro', 4)
        for j in range(pro):
            o += xl[j][0] + xl[j][1]
        stt = []
        STR = vT + 12
        PA = [vT + 0, vT + 2]
        for b in range(2):
            t = newtag('st'); stt.append(t)
            o += [P('s_lshl_b32 s54, s%d, 11' % sW), P('s_add_u32 s53, s54, s%d' % sS1),
                  P('s_add_u32 s53, s53, %d' % (b * 1024)),
                  VM('buffer_load_dwordx4 %s, v%d, s[28:31], s53 offen sc1' % (vr(STR + 4 * b, 4), vL16), t)]
        acc = lambda fb, tb: vACC + (fb * 2 + tb) * 4
        a3 = self.dma_w1_group(3)
        groups = []; n = 0; first_idx = {}; mfidx = 0
        for j in range(16):
            first_idx[j] = mfidx
            base = L_W1P[j // 4] + (j % 4) * 7168
            for fb in range(7):
                dst = self.afrag(n); n += 1
                g = dict(pre=[], reads=[], mf=[])
                if j == 12 and fb == 0:
                    g['pre'] += [W(self.vmtags(a3)), P('s_barrier')]
                for part in range(2):
                    a = base + part * 3584 + fb * 32
                    win = a >> 16
                    g['reads'].append(LG('ds_read_b64_tr_b16 v[%d:%d], v%d offset:%d' % (dst + 2 * part, dst + 2 * part + 1, vW1A + win, a & 0xffff)))
                for tb in range(2):
                    c = '0' if j == 0 else vr(acc(fb, tb), 4)
                    wt = self.vmtags(xl[j][tb]) if fb == 0 else []
                    g['mf'].append(('v_mfma_f32_16x16x32_bf16 %s, %s, %s, %s' % (vr(acc(fb, tb), 4), vr(dst, 4), ar((j * 2 + tb) * 4, 4), c), wt))
                mfidx += 2
                groups.append(g)
        extras = []
        k = 0
        rate = cfg.get('x_rate', 4)
        for j in range(pro, 16):
            for b in range(2):
                extras.append((first_idx[k // rate] + 1 + (14 // rate) * (k % rate), xl[j][b])); k += 1
        at = extras[-1][0] + 2
        for d in a3:
            extras.append((at, d)); at += 4
        st_ops = [W(stt)]
        for b in range(2):
            st_ops += self.stats_from_st(STR + 4 * b, PA[b], scale=LOG2E)
        extras += self.spread(st_ops, first_idx[2] + 2, 1)
        at = max(at, first_idx[9])
        for d in extras_w2:
            extras.append((at, d)); at += cfg.get('w2e_step', 7)
        for k, t in enumerate(self.touch_set(cfg.get('t_p3', 'af'), only_r1=True)):
            extras.append((first_idx[min(15, cfg.get('t_p3_k', 9) + 2 * k)] + 4, t))
        extras += self.sched_touches('p3', first_idx)
        o += self.gemm_loop(groups, cfg.get('la', 3), extras)
        o.append(P('s_barrier'))
        return o, PA

    def cs_w1(self):
        o = []
        A0 = vT + 40; A1 = vT + 44
        ad = vT + 48
        o += [P('s_lshl_b32 s53, s%d, 5' % sW), P('s_add_u32 s54, s%d, 4' % sW), P('s_min_u32 s54, s54, 6'), P('s_lshl_b32 s54, s54, 5')]
        for win in range(3):
            o += [P('v_add_u32 v%d, s53, v%d' % (ad + win, vW1A + win)), P('v_add_u32 v%d, s54, v%d' % (ad + 3 + win, vW1A + win))]
        groups = []; n = 0
        for j in range(16):
            base = L_W1P[j // 4] + (j % 4) * 7168
            for e in range(2):
                dst = self.afrag(n); n += 1
                g = dict(pre=[], reads=[], mf=[])
                for part in range(2):
                    a = base + part * 3584
                    g['reads'].append(LG('ds_read_b64_tr_b16 v[%d:%d], v%d offset:%d' % (dst + 2 * part, dst + 2 * part + 1, ad + 3 * e + (a >> 16), a & 0xffff)))
                accr = A0 if e == 0 else A1
                c = '0' if j == 0 else vr(accr, 4)
                g['mf'].append(('v_mfma_f32_16x16x32_bf16 %s, %s, %s, %s' % (vr(accr, 4), vr(dst, 4), vr(vONES, 4), c), []))
                groups.append(g)
        o += self.gemm_loop(groups, 3, [])
        o += [P('s_lshl_b32 s53, s53, 1'), P('s_lshl_b32 s54, s54, 1'),
              P('v_add_u32 v%d, s53, v%d' % (ad, vCS)), P('v_add_u32 v%d, s54, v%d' % (ad + 1, vCS)),
              P('s_mov_b32 s52, 0x00010001'), P('s_mov_b32 s53, 0x00010001'), P('s_mov_b64 exec, s[52:53]'),
              LG('ds_write_b128 v%d, %s offset:%d' % (ad, vr(A0, 4), L_CS1)),
              LG('ds_write_b128 v%d, %s offset:%d' % (ad + 1, vr(A1, 4), L_CS1)),
              P('s_mov_b64 exec, -1'), WALL(False, True), P('s_barrier')]
        return o

    def p3_epi(self, PA, dmas):
        o = []
        acc = lambda fb, tb: vACC + (fb * 2 + tb) * 4
        CS = vT + 12; BB = vT + 40
        PK = vT + 68
        cst = []
        for fb in range(7):
            x = LG('ds_read_b128 %s, v%d offset:%d' % (vr(CS + 4 * fb, 4), vCS, L_CS1 + fb * 64)); y = LG('ds_read_b128 %s, v%d offset:%d' % (vr(BB + 4 * fb, 4), vCS, L_BB1 + fb * 64))
            cst.append([x.tag, y.tag]); o += [x, y]
        T = vT + 68
        OUTR = lambda tb, fb: vAF + tb * 16 + fb * 2
        body = []
        for fb in range(7):
            body.append(W(cst[fb]))
            prs = [(tb, hh) for tb in range(2) for hh in range(2)]
            E = [T + 2 * k for k in range(4)]; U = [T + 8 + 2 * k for k in range(4)]
            for k, (tb, hh) in enumerate(prs):
                body.append(P('v_pk_fma_f32 %s, %s, %s, %s op_sel:[0,1,0] op_sel_hi:[1,1,1]' % (vr(E[k], 2), vr(CS + 4 * fb + 2 * hh, 2), vr(PA[tb], 2), vr(BB + 4 * fb + 2 * hh, 2))))
            for k, (tb, hh) in enumerate(prs):
                body.append(P('v_pk_fma_f32 %s, %s, %s, %s op_sel_hi:[1,0,1]' % (vr(E[k], 2), vr(acc(fb, tb) + 2 * hh, 2), vr(PA[tb], 2), vr(E[k], 2))))
            for k in range(4):
                body += [P('v_exp_f32 v%d, v%d' % (U[k], E[k])), P('v_exp_f32 v%d, v%d' % (U[k] + 1, E[k] + 1))]
            for k in range(4):
                body.append(P('v_pk_add_f32 %s, %s, s[%d:%d]' % (vr(U[k], 2), vr(U[k], 2), sONE, sONE + 1)))
            for k in range(4):
                body.append(P('v_pk_fma_f32 %s, %s, %s, s[%d:%d]' % (vr(U[k], 2), vr(U[k], 2), vr(U[k], 2), sONE, sONE + 1)))
            for k in range(4):
                body += [P('v_rcp_f32 v%d, v%d' % (U[k], U[k])), P('v_rcp_f32 v%d, v%d' % (U[k] + 1, U[k] + 1))]
            for k in range(4):
                body.append(P('v_pk_fma_f32 %s, %s, s[%d:%d], %s' % (vr(U[k], 2), vr(U[k], 2), sM2L, sM2L + 1, vr(vLN2, 2))))
            for k in range(4):
                body.append(P('v_pk_mul_f32 %s, %s, %s' % (vr(E[k], 2), vr(E[k], 2), vr(U[k], 2))))
            for k, (tb, hh) in enumerate(prs):
                body.append(P('v_cvt_pk_bf16_f32 v%d, v%d, v%d' % (OUTR(tb, fb) + hh, E[k], E[k] + 1)))
        if dmas:
            body = interleave(body, dmas, start=4, every=max(1, (len(body) - 8) // (len(dmas) + 1)))
        o += body
        o += [P('s_lshr_b32 s52, s%d, 1' % sM), P('s_mul_i32 s52, s52, 7168'), P('s_add_u32 s52, s52, s%d' % sAF),
              P('s_mul_i32 s53, s%d, %d' % (sW, 2 * 57344)), P('s_add_u32 s52, s52, s53'),
              P('s_add_u32 s53, s52, 57344'), P('s_add_u32 s54, s52, 4096'), P('s_add_u32 s55, s53, 4096')]
        def variant(odd, fl):
            r = []
            for tb in range(2):
                b0 = 52 + tb; b1 = 54 + tb
                if not odd:
                    for u in range(3):
                        r.append(P('buffer_store_dwordx4 %s, v%d, s[28:31], s%d offen offset:%d%s' % (vr(OUTR(tb, 2 * u), 4), vL16, b0, u * 1024, fl)))
                    r.append(P('buffer_store_dwordx2 %s, v%d, s[28:31], s%d offen offset:%d%s' % (vr(OUTR(tb, 6), 2), vL16, b0, 3072, fl)))
                else:
                    r.append(P('buffer_store_dwordx2 %s, v%d, s[28:31], s%d offen offset:%d%s' % (vr(OUTR(tb, 0), 2), vL16, b0, 3072 + 8, fl)))
                    for u in range(3):
                        r.append(P('buffer_store_dwordx4 %s, v%d, s[28:31], s%d offen offset:%d%s' % (vr(OUTR(tb, 2 * u + 1), 4), vL16, b1, u * 1024, fl)))
            return r
        l_odd = self.L('odd'); l_e1 = self.L('e1'); l_o1 = self.L('o1'); done = self.L('dn')
        o += [P('s_bitcmp1_b32 s%d, 0' % sM), P('s_cbranch_scc1 %s' % l_odd),
              P('s_cmp_eq_u32 s%d, 0' % sMODE), P('s_cbranch_scc1 %s' % l_e1)] + variant(False, ' sc1') + [P('s_branch %s' % done), LAB(l_e1)] + \
            variant(False, '') + [P('s_branch %s' % done), LAB(l_odd),
              P('s_cmp_eq_u32 s%d, 0' % sMODE), P('s_cbranch_scc1 %s' % l_o1)] + variant(True, ' sc1') + [P('s_branch %s' % done), LAB(l_o1)] + \
            variant(True, '') + [LAB(done)]
        cnt = [VM('; counted store') for _ in range(8)]
        return o + cnt, [c.tag for c in cnt]

    def build(self):
        cfg = self.cfg
        stop = cfg.get('stop', 99)
        o = self.add
        self.prologue()
        o(self.ts(0))
        self.p1a()
        o(self.ts(1))
        o(W(self.tag_res))
        if cfg.get('a0_early', 1):
            o(self.dma_w1_group(0))
        o(LAB('L_P1EPI'))
        wo = [self.dma_wo_slot(SRD_WO, 8, t, kh, t) for t in range(8) for kh in range(2)]
        w1a0 = self.dma_w1_group(0)
        epi, stores = self.p1_epi(wo + ([] if cfg.get('a0_early', 1) else w1a0))
        o(epi)
        ds, tags = self.dual_store(stores)
        o(ds)
        o(self.ts(2, True))
        o(P('s_lshl_b32 s%d, s%d, 2' % (sTGT, sRND)))
        o(self.sync_dyn(1, tags, pre_r1=self.dma_w1_group(1)) if cfg.get('a1_tail', 1) else self.sync_dyn(1, tags, pre=self.dma_w1_group(1)))
        o(self.ts(3, True))
        if stop == 1:
            o(P('s_branch L_END'))
        o(self.gemmB(8, SRD_WO, sOF, 16, 8, 8, None, L_EXB2, inloop=self.dma_w1_group(2) if cfg.get('a2_p2', 1) else None))
        o(self.ts(4, True))
        o(self.row_stats())
        o(self.x_stores(sX1, sS1))
        ds, tags = self.x_store_block()
        o(ds)
        o(self.sync_dyn(2, tags, pre=None if cfg.get('a2_p2', 1) else self.dma_w1_group(2)))
        o(self.ts(5, True))
        if stop == 2:
            o(P('s_branch L_END'))
        w2_early = [self.dma_wo_slot(SRD_W2, 28, W2_T_AT[p], kh, p) for p in range(5) for kh in range(2)]
        body, PA = self.p3(w2_early)
        o(body)
        skip = self.L('cs1')
        o(P('s_cmp_lg_u32 s%d, 0' % sRND), P('s_cbranch_scc1 %s' % skip))
        o(self.cs_w1())
        o(LAB(skip))
        o(self.ts(6, True))
        n_epi = cfg.get('w2_epi_p', 15)
        w2_epi = [self.dma_wo_slot(SRD_W2, 28, W2_T_AT[p], kh, p) for p in range(5, n_epi) for kh in range(2)]
        epi, tags = self.p3_epi(PA, w2_epi)
        o(epi)
        o(self.ts(7, True))
        o(self.sync_dyn(3, tags, pre=[self.dma_wo_slot(SRD_W2, 28, W2_T_AT[p], kh, p) for p in range(n_epi, 19) for kh in range(2)]))
        o(self.ts(8, True))
        if stop == 3:
            o(P('s_branch L_END'))
        wq_tail = self.dma_wq_quarter(0, src=None) + self.dma_wq_quarter(1, src=None) + self.dma_wq_quarter(2, src=None) + self.dma_wq_quarter(3, panels=(2,), src=None)
        wq_post = self.dma_wq_quarter(3, panels=(0, 1), src=None)
        o(self.gemmB(28, SRD_W2, sAF, 56, 16, 19, None, L_EXB4, pre_extras=self.sw4(), posf=w2pos, tail=wq_tail, post=wq_post))
        o(self.ts(9, True))
        o(P('s_cmp_lg_u32 s%d, 0' % sRND), P('s_cbranch_scc1 L_FINAL'))
        o(self.row_stats())
        o(self.x_stores(sX2, sS2))
        ds, tags = self.x_store_block()
        o(ds)
        ht = [newtag('hs') for _ in range(3)]
        o(P('s_add_u32 s52, s%d, 1' % sG), P('s_lshl_b32 s53, s52, 14'), P('s_lshl_b32 s54, s%d, 11' % sCT),
          P('s_add_u32 s53, s53, s54'), P('s_add_u32 s53, s53, %d' % WS_HF),
          P('s_lshl_b32 s54, s52, 10'), P('s_add_u32 s54, s54, %d' % WS_HST),
          VM('buffer_store_dwordx4 %s, v%d, s[28:31], s53 offen sc1' % (vr(vR, 4), vHOF), ht[0]),
          VM('buffer_store_dwordx4 %s, v%d, s[28:31], s53 offen offset:1024 sc1' % (vr(vR + 4, 4), vHOF), ht[1]),
          VM('buffer_store_dwordx2 %s, v%d, s[28:31], s54 offen sc1' % (vr(vT + 32, 2), vHST), ht[2]))
        self.halo_store_tags = ht
        o(self.sync_dyn(4, tags))
        o(self.ts(10))
        if stop == 4:
            o(P('s_branch L_END'))
        o(P('s_mov_b32 s%d, 1' % sRND), P('s_add_u32 s%d, s%d, s%d' % (sOF, sOF, dOF)), P('s_add_u32 s%d, s%d, s%d' % (sAF, sAF, dAF)),
          P('s_add_u32 s%d, s%d, s%d' % (sX1, sX1, dX1)), P('s_add_u32 s%d, s%d, s%d' % (sS1, sS1, dS1)))
        self.p1b()
        o(self.ts(27))
        o(WALL(False, True))
        o(P('s_branch L_P1EPI'))
        o(LAB('L_FINAL'))
        for u in range(2):
            o(P('v_permlane16_swap_b32 v%d, v%d' % (vR + 4 * u, vR + 4 * u + 2)), P('v_permlane16_swap_b32 v%d, v%d' % (vR + 4 * u + 1, vR + 4 * u + 3)))
        for u in range(2):
            o(VM('buffer_store_dwordx4 %s, v%d, s[32:35], s61 offen offset:%d' % (vr(vR + 4 * u, 4), vOUT, u * 64)))
        o(self.ts(28), self.ts_flush())
        o(LAB('L_END'), P('s_endpgm'))

    def sync_dyn(self, ph, tags, window=None, pre=None, pre_r1=None):
        if pre_r1:
            l2 = self.L('pr2'); l3 = self.L('pr3')
            raw = [P(x.text) for x in self.flat(pre_r1)]
            nd = sum(1 for x in self.flat(pre_r1) if x.kind == 'vm')
            o = [P('s_cmp_lg_u32 s%d, 0' % sRND), P('s_cbranch_scc1 %s' % l2)] + raw + [P('s_waitcnt vmcnt(%d)' % nd), P('s_branch %s' % l3),
                 LAB(l2), P('s_waitcnt vmcnt(0)'), LAB(l3), MARK(tags)]
        else:
            o = self.flat(pre or []) + [W(tags)]
        if self.cfg.get('sts'):
            o += self.ts(48 + 4 * (ph - 1))
        pure = self.L('fp'); done = self.L('fd')
        o += [P('s_add_u32 s52, s%d, %d' % (sTGT, ph)),
              P('v_mov_b32 v%d, s52' % (vTA)), P('v_mov_b32 v%d, 0' % (vTB)),
              P('s_mov_b64 exec, 1'),
              P('s_cmp_eq_u32 s%d, 0' % sMODE), P('s_cbranch_scc1 %s' % pure),
              P('buffer_store_dword v%d, v%d, s[28:31], s%d offen sc1' % (vTA, vTB, sFLGOFF)),
              P('s_branch %s' % done), LAB(pure),
              P('buffer_store_dword v%d, v%d, s[28:31], s%d offen' % (vTA, vTB, sFLGOFF)),
              LAB(done), VM('; flag store counted'),
              P('s_mov_b64 exec, -1')]
        other = self.L('so'); join = self.L('sj'); loop = self.L('sp')
        o += [P('s_cmp_lg_u32 s%d, 0' % sW), P('s_cbranch_scc1 %s' % other),
              P('v_lshlrev_b32 v%d, 2, v%d' % (vTB, vLANE)),
              P('s_mov_b32 s%d, 0' % sTMO),
              LAB(loop),
              P('buffer_load_dword v%d, v%d, s[28:31], s%d offen sc1' % (vTA, vTB, sGFLG)),
              P('s_add_u32 s%d, s%d, 1' % (sTMO, sTMO)),
              P('s_waitcnt vmcnt(0)'),
              P('v_cmp_gt_u32 vcc, s52, v%d' % (vTA)),
              P('s_cbranch_vccz %s' % join),
              P('s_cmp_lt_u32 s%d, 0x100000' % sTMO),
              P('s_cbranch_scc1 %s' % loop),
              P('s_endpgm'),
              LAB(other)]
        if window and not self.cfg.get('nowin'):
            o += window
        o += [LAB(join)]
        if self.cfg.get('sts'):
            o += self.ts(49 + 4 * (ph - 1)) + [WALL(True, True)] + self.ts(50 + 4 * (ph - 1))
        if self.cfg.get('halo_nowait') and ph == 4:
            o += [WALL(True, True)]
        else:
            o += [WALL(True, True)]
        o += [P('s_barrier')]
        return o

    def text(self):
        self.build()
        body = self.p.render()
        body = [l for l in body if not l.strip().startswith('; counted') and not l.strip().startswith('; flag store')]
        hdr = open('interleave_layers__sliding_local_dilated__dense_activation_mish__prompt.s.ref').read().split('\n')
        head = []
        for l in hdr:
            if l.startswith('; Override') or l.startswith('; grid=') or l.startswith('; @launch'):
                continue
            if l.startswith('.amdgcn_target'):
                break
            head.append(l)
        out = head + ['; @launch grid=(256,1,1) block=(256,1,1) lds=%d' % LDS_BYTES,
                      '.amdgcn_target "amdgcn-amd-amdhsa--gfx950"', '.text', '.globl ' + KNAME, '.p2align 8',
                      '.type %s,@function' % KNAME, KNAME + ':']
        out += body
        out += ['.section .rodata,"a"', '.p2align 6', '.amdhsa_kernel ' + KNAME,
                '  .amdhsa_next_free_vgpr 512', '  .amdhsa_next_free_sgpr 102', '  .amdhsa_accum_offset 256',
                '  .amdhsa_group_segment_fixed_size 0', '  .amdhsa_kernarg_size 80', '  .amdhsa_user_sgpr_count 2',
                '  .amdhsa_user_sgpr_kernarg_segment_ptr 1', '  .amdhsa_system_sgpr_workgroup_id_x 1',
                '  .amdhsa_float_denorm_mode_32 3', '.end_amdhsa_kernel', '']
        return '\n'.join(out)


if __name__ == '__main__':
    cfg = {}
    outp = sys.argv[1]
    for a in sys.argv[2:]:
        k, v = a.split('=')
        try:
            cfg[k] = int(v)
        except ValueError:
            cfg[k] = v
    g = Gen(cfg)
    t = g.text()
    open(outp, 'w').write(t)
    print('wrote', outp, len(t), 'bytes;', 'nops padded:', g.p.npad)
```

```python
import sys, math
from asmlib import *

KNAME = 'interleave_layers__sliding_local_dilated__dense_activation_mish__prompt_kernel'

WS_FLG = 0x0000
WS_HFL = 0x1000
WS_TS = 0x2000
WS_ST = 0x10000
WS_HST = 0x80000
WS_HF = 0x90000
WS_XF = 0x100000
WS_OF = 0x800000
WS_AF = 0x1000000
WS_ACT = 0x2000000
ACT_G = 0x92000
WS_SIZE = 0x2A00000
ST_K = 0x20000; XF_K = 0x200000; OF_R = 0x200000; AF_R = 0x800000

L_CSQ = 0
L_CS1 = 384
L_BB1 = 832
L_W = 2048
L_HALO = 100352
L_RING = 116736
L_EX = 67584
L_EXK = L_EX + 9216
L_W1P = [135168, 106496, 77824, 49152]
L_EXB2 = 2048
L_EXB4 = 100352
LDS_BYTES = 163840
W2_PA = [12, 13, 14, 15, 16, 17, 18, 3, 7]
W2_PB = [0, 1, 2, 4, 5, 6, 8, 9, 10, 11]
def w2pos(t):
    return W2_PA[t] if t < 9 else (W2_PB[t - 9] if t < 19 else W2_PA[t - 19])
W2_T_AT = {w2pos(t): t for t in range(19)}

LOG2E = 1.4426950408889634
LN2 = 0.6931471805599453


def f32(x):
    import struct
    return '0x%08x' % struct.unpack('<I', struct.pack('<f', x))[0]


sRND = 3; sG = 4; sM = 5; sW = 6; sMODE = 7
SRD_X = 8; SRD_WQ = 12; SRD_WO = 16; SRD_W1 = 20; SRD_W2 = 24; SRD_WS = 28; SRD_OUT = 32; SRD_DBG = 36; SRD_B1 = 40
sXCC = 44
sWQ_SRC = 45
sW1K = 46
sWO_SRC = 47
sW1_SRC = 48
sW1_M = 49
sB0 = 50; sB1 = 51
sT0 = 52; sT1 = 53; sT2 = 54; sT3 = 55
sFLGOFF = 56
sGFLG = 57
sST = 58
sTH = 59; sCT = 60
sONE = 62
sM2L = 64
sUP = 66
sMA = 68; sMB = 70; sMC = 72; sMD = 74
sIT = 76; sTMO = 77; sTGT = 78; sA = 79; sB = 80; sC = 81; sD = 82
sXR0 = 83; sXR1 = 84
sHSRC = 85
sTB = 86
sGBASE = 87
sTS = 88
sTSO = 90
sOF = 94; sAF = 95; sX1 = 96; sS1 = 97; sX2 = 98; sS2 = 99
sTUX = 100; sTUG = 101
dOF = 83; dAF = 84; dX1 = 85; dS1 = 82
sXL0 = 92; sXL1 = 93

vLANE = 0; vL16 = 1
vR = 2
vONES = 10
vWQA = 14
vE1 = 18; vE2 = 19
vW1A = 20
vW2A = 23
vDQ = 35; vDO = 36; vD1 = 37
vCS = 44
vL128 = 45
vDUM = 247
vCCUR = 46; vCPREV = 50; vCPA = 54
vEXV = 58; vEXK = 59; vEXH = 60; vRVP = 61; vRV = 62; vRK = 63
vLN2 = 64
vEXBW = 66; vEXBR = 67
vSTO = 68
vHOF = 69
vHST = 70
vOUT = 71
vAF = 72
NAF = 6
vACC = 104
vT = 168
vTA = 254; vTB = 255
vDUMMY = 246
vDX = 240; vDH = 241; vXA = 242; vXB = 243; vHXA = 244; vHXB = 245


class Gen:
    def __init__(self, cfg):
        self.cfg = cfg
        self.p = Prog()
        self.lbl = 0

    def L(self, name):
        self.lbl += 1
        return '%s_%d' % (name, self.lbl)

    def add(self, *a):
        self.p.add(*a)

    def ts(self, idx, rnd=False):
        if not self.cfg.get('ts'):
            return []
        o = [P('s_memrealtime s[92:93]' if self.cfg.get('ts') == 1 else 's_memtime s[92:93]')]
        if rnd:
            o += [P('s_lshl_b32 s91, s%d, 4' % sRND), P('s_add_u32 s91, s91, %d' % idx), P('s_mov_b32 m0, s91'),
                  P('s_waitcnt lgkmcnt(0)'), P('v_writelane_b32 v103, s92, m0')]
        else:
            o += [P('s_waitcnt lgkmcnt(0)'), P('v_writelane_b32 v103, s92, %d' % idx)]
        return o

    def ts_flush(self):
        if not self.cfg.get('ts'):
            return []
        if self.cfg.get('dbgts'):
            o = [P('s_memrealtime s[92:93]'), P('s_waitcnt lgkmcnt(0)'), P('v_readlane_b32 s53, v103, 12'), P('s_nop 4'), P('s_sub_u32 s52, s92, s53'),
                 P('v_writelane_b32 v103, s52, 63')]
            lanes = [1, 2, 10, 27, 28, 63, 6, 9]
            words = [4, 5, 6, 7, 12, 13, 14, 15]
            o += [P('v_readlane_b32 s54, v103, 13')]
            for ln, wd in zip(lanes, words):
                o += [P('v_readlane_b32 s52, v103, %d' % ln), P('s_nop 4')]
                if ln != 63:
                    o += [P('s_sub_u32 s52, s52, s54')]
                o += [P('v_writelane_b32 v252, s52, %d' % wd)]
            o += [P('v_lshlrev_b32 v253, 2, v%d' % vLANE), P('s_cmp_eq_u32 s2, 0'), P('s_cselect_b32 s52, 0, 1'), P('s_or_b32 s52, s52, s%d' % sW),
                  P('s_cmp_eq_u32 s52, 0'), P('s_cselect_b32 s52, 0xf0f0, 0'), P('s_mov_b32 exec_lo, s52'), P('s_mov_b32 exec_hi, 0'),
                  P('s_cbranch_execz L_TSD'),
                  VM('buffer_store_dword v252, v253, s[36:39], 0 offen'), LAB('L_TSD'), P('s_mov_b64 exec, -1')]
            return o
        return [P('v_lshlrev_b32 v252, 2, v%d' % vLANE), VM('buffer_store_dword v103, v252, s[28:31], s90 offen')]

    def dma(self, srd, voff, src_s, src_imm, lds_s, lds_imm, tag=None, st=None):
        st = st if st is not None else sT0
        ops = []
        if lds_s is None:
            ops.append(P('s_mov_b32 m0, %d' % lds_imm))
        else:
            ops.append(P('s_add_u32 m0, s%d, %d' % (lds_s, lds_imm)))
        if src_s is None:
            ops.append(P('s_mov_b32 s%d, %d' % (st, src_imm)))
        else:
            ops.append(P('s_add_u32 s%d, s%d, %d' % (st, src_s, src_imm)))
        if self.cfg.get('nodma') and srd in (SRD_WO, SRD_W1, SRD_W2):
            ops.append(P('s_nop 0'))
            return ops
        nt = ' nt' if (self.cfg.get('nt') and srd in (SRD_W1, SRD_W2)) else ''
        ops.append(VM('buffer_load_dwordx4 v%d, s[%d:%d], s%d offen%s lds' % (voff, srd, srd + 3, st, nt), tag))
        return ops

    def touch(self, srd, unit_s, imm, limit=None, only_r1=False):
        ops = []
        if limit is not None:
            ops += [P('s_add_u32 s55, s%d, %d' % (unit_s, imm[0])), P('s_cmp_lt_u32 s%d, %d' % (unit_s, limit)),
                    P('s_cselect_b32 s55, s55, 0x7ff00000')]
            if imm[1] is not None:
                ops.insert(1, P('s_add_u32 s55, s55, s%d' % imm[1]))
        else:
            ops.append(P('s_add_u32 s55, s%d, %d' % (unit_s, imm)))
        if only_r1:
            ops += [P('s_cmp_eq_u32 s%d, 0' % sRND), P('s_cselect_b32 s55, s55, 0x7ff00000')]
        ops.append(VM('buffer_load_dword a255, v%d, s[%d:%d], s55 offen' % (vL128, srd, srd + 3)))
        return ops

    def touch_w(self, name, only_r1=False):
        srd, size = {'wq': (SRD_WQ, 512 * 3072), 'wo': (SRD_WO, 524288), 'w1': (SRD_W1, 512 * 3584), 'w2': (SRD_W2, 1792 * 1024)}[name]
        return [self.touch(srd, sTUX, k * 0x100000, only_r1=only_r1) for k in range((size + 0xfffff) // 0x100000)]

    def touch_act(self, off, nbytes):
        return [self.touch(SRD_WS, sTUG, (WS_ACT + off, sST), limit=nbytes)]

    def touch_range(self, name, lo, hi, rounds='12'):
        srd = {'wq': SRD_WQ, 'wo': SRD_WO, 'w1': SRD_W1, 'w2': SRD_W2}[name]
        unit = -(-(hi - lo) // (128 * 128)) * 128
        assert unit <= 8192
        nl = unit // 128
        ops = [P('s_lshr_b32 s55, s%d, 13' % sTUX), P('s_mul_i32 s55, s55, %d' % unit), P('s_add_u32 s55, s55, %d' % lo)]
        if rounds != '12':
            ops += [P('s_cmp_eq_u32 s%d, %d' % (sRND, 0 if rounds == '1' else 1)), P('s_cselect_b32 s55, s55, 0x7ff00000')]
        if nl < 64:
            m = (1 << nl) - 1
            ops += [P('s_mov_b32 exec_lo, 0x%x' % (m & 0xffffffff)), P('s_mov_b32 exec_hi, 0x%x' % (m >> 32))]
        ops.append(VM('buffer_load_dword a255, v%d, s[%d:%d], s55 offen' % (vL128, srd, srd + 3)))
        if nl < 64:
            ops.append(P('s_mov_b64 exec, -1'))
        return ops

    def sched_touches(self, phase, first_idx):
        out = []
        for e in str(self.cfg.get('tch', '')).split('+'):
            if not e:
                continue
            f = e.split('.')
            if f[0] != phase:
                continue
            k = int(f[1]); name = f[2]
            if name in ('of', 'af', 'xf'):
                ops = self.touch_set(name)[0]
            else:
                ops = self.touch_range(name, int(f[3]) * 1024, int(f[4]) * 1024, f[5] if len(f) > 5 else '12')
            out.append((first_idx[k] + 3, ops))
        return out

    def touch_act_even(self, off, n):
        unit = -(-n // (64 * 128)) * 128
        nl = unit // 128
        assert nl <= 64
        ops = [P('s_lshr_b32 s55, s%d, 13' % sTUG), P('s_mul_i32 s55, s55, %d' % unit), P('s_add_u32 s55, s55, s%d' % sST),
               P('s_add_u32 s55, s55, %d' % (WS_ACT + off))]
        if nl < 64:
            m = (1 << nl) - 1
            ops += [P('s_mov_b32 exec_lo, 0x%x' % (m & 0xffffffff)), P('s_mov_b32 exec_hi, 0x%x' % (m >> 32))]
        ops.append(VM('buffer_load_dword a255, v%d, s[28:31], s55 offen' % vL128))
        if nl < 64:
            ops.append(P('s_mov_b64 exec, -1'))
        return ops

    def touch_mall(self):
        o = [P('s_lshl_b32 s54, s2, 2'), P('s_add_u32 s54, s54, s%d' % sW)]
        for srd, first, n in ((SRD_W1, 0, 224), (SRD_W2, 256, 224), (SRD_WO, 512, 64)):
            o += [P('s_sub_u32 s55, s54, %d' % first), P('s_cmp_lt_u32 s55, %d' % n), P('s_cselect_b32 s55, s55, 0x3ff80'),
                  P('s_lshl_b32 s55, s55, 13'),
                  VM('buffer_load_dword a255, v%d, s[%d:%d], s55 offen' % (vL128, srd, srd + 3))]
        return o

    def touch_set(self, spec, only_r1=False):
        out = []
        for name in spec.split(','):
            if not name:
                continue
            if name == 'of':
                out.append(self.touch_act_even(0, 131072))
            elif name == 'af':
                out.append(self.touch_act_even(131072, 458752 - 131072))
            elif name == 'xf':
                out.append(self.touch_act_even(458752, 139264))
            else:
                out += self.touch_w(name, only_r1)
        return out

    def dma_wq_quarter(self, qd, panels=(0, 1, 2), src=None):
        out = []
        for a in range(2):
            for p in panels:
                rg = 8 * qd + 4 * a
                out.append(self.dma(SRD_WQ, vDQ, src if src is not None else sWQ_SRC, rg * 49152 + p * 1024, sW1K, L_W + p * 32768 + rg * 1024))
        return out

    def dma_wo_slot(self, srd, nk, t, kh, pos):
        js = kh * nk + t
        return self.dma(srd, vDO, sWO_SRC, js * 32768, sW1K, L_W + (2 * pos + kh) * 4096)

    def dma_w1_group(self, a):
        out = []
        for u in range(7):
            out.append(self.dma(SRD_W1, vD1 + u, sW1_SRC, a * 4 * 32 * 3584, sW1_M, L_W1P[a] + u * 1024))
        return out

    def window_loop(self, n0, n1, srd, srcA_s, srcA_imm, srcB, ldsC, ldsD, subs):
        lab = self.L('win'); end = self.L('winend')
        o = [P('s_add_u32 s%d, s%d, %d' % (sIT, sW, n0 - 1)),
             P('s_cmp_ge_u32 s%d, %d' % (sIT, n1)),
             P('s_cbranch_scc1 %s' % end),
             LAB(lab),
             P('s_mul_i32 s%d, s%d, %d' % (sA, sIT, srcB))]
        if srcA_s is not None:
            o.append(P('s_add_u32 s%d, s%d, s%d' % (sA, sA, srcA_s)))
        o.append(P('s_add_u32 s%d, s%d, %d' % (sA, sA, srcA_imm)))
        o.append(P('s_mul_i32 s%d, s%d, %d' % (sB, sIT, ldsD)))
        for (voff, so, lo) in subs:
            o.append(P('s_add_u32 m0, s%d, %d' % (sB, ldsC + lo)))
            o.append(P('s_add_u32 s%d, s%d, %d' % (sT0, sA, so)))
            nt = ' nt' if (self.cfg.get('nt') and srd in (SRD_W1, SRD_W2)) else ''
            if self.cfg.get('nodma'):
                o.append(P('s_nop 0'))
            else:
                o.append(P('buffer_load_dwordx4 v%d, s[%d:%d], s%d offen%s lds' % (voff, srd, srd + 3, sT0, nt)))
        o += [P('s_add_u32 s%d, s%d, 3' % (sIT, sIT)),
              P('s_cmp_lt_u32 s%d, %d' % (sIT, n1)),
              P('s_cbranch_scc1 %s' % lab),
              LAB(end)]
        return o

    def win_wq(self, rg0, rg1):
        return [P('s_lshl_b32 s%d, s%d, 6' % (sC, sM))] + self.window_loop(
            rg0, rg1, SRD_WQ, sC, 0, 49152, L_W, 1024, [(vDQ, p * 1024, p * 32768) for p in range(3)])

    def win_wo(self, srd, nk, t0, t1, dpos=0):
        subs = []
        for kh in range(2):
            for q in range(4):
                subs.append((vDO, kh * nk * 32768 + q * 8192, kh * 4096 + q * 1024))
        return [P('s_lshl_b32 s%d, s%d, 7' % (sC, sCT))] + self.window_loop(
            t0, t1, srd, sC, 0, 32768, L_W + dpos * 8192, 8192, subs)

    def win_w1(self, j0, j1):
        a = j0 // 4
        base = L_W1P[a] - j0 * 7168
        for j in range(j0, j1):
            assert L_W1P[j // 4] + (j % 4) * 7168 == base + j * 7168
        return [P('s_mul_i32 s%d, s%d, 224' % (sC, sM))] + self.window_loop(
            j0, j1, SRD_W1, sC, 0, 32 * 3584, base, 7168, [(vD1 + u, 0, u * 1024) for u in range(7)])

    def gemm_loop(self, groups, LA, extras):
        out = []
        n = len(groups)
        for k in range(min(LA, n)):
            out += groups[k].get('pre', []) + groups[k]['reads']
        flat = []
        for gi, g in enumerate(groups):
            rq = []
            if gi + LA < n:
                rq = list(groups[gi + LA].get('pre', [])) + list(groups[gi + LA]['reads'])
            nm = len(g['mf'])
            chunks = [[] for _ in range(nm)]
            reads_total = sum(1 for x in rq if x.kind == 'lg')
            per = max(1, -(-reads_total // nm))
            c = 0; cnt = 0
            for x in rq:
                chunks[min(c, nm - 1)].append(x)
                if x.kind == 'lg':
                    cnt += 1
                    if cnt == per:
                        cnt = 0; c += 1
            for k, (text, waits) in enumerate(g['mf']):
                w = list(waits)
                if k == 0:
                    w += [x.tag for x in g['reads']]
                flat.append((text, w, g.get('premf', []) if k == 0 else [], chunks[k]))
        extras = sorted(extras, key=lambda e: e[0])
        ei = 0
        for idx, (text, w, premf, chunk) in enumerate(flat):
            if idx == 0:
                out += premf + [W(w)]
            out.append(P(text))
            if idx + 1 < len(flat):
                out += flat[idx + 1][2]
                out.append(W(flat[idx + 1][1]))
            out += chunk
            k = 0
            while ei < len(extras) and extras[ei][0] <= idx and k < self.cfg.get('extra_per', 1):
                out += extras[ei][1]
                ei += 1; k += 1
        while ei < len(extras):
            out += extras[ei][1]; ei += 1
        return out

    @staticmethod
    def flat(ops):
        out = []
        for x in ops:
            if x is None:
                continue
            if isinstance(x, (list, tuple)):
                out += Gen.flat(x)
            else:
                out.append(x)
        return out

    def spread(self, ops, start, step=1, nvec=1):
        out = []; cur = []; nv = 0; at = start
        ops = self.flat(ops)
        for i, x in enumerate(ops):
            cur.append(x)
            t = x.text or ''
            if t.startswith('v_') or t.startswith('buffer_') or t.startswith('ds_'):
                nv += 1
                nxt = (ops[i + 1].text or '') if i + 1 < len(ops) else ''
                glued = (t.startswith('v_cmp') and ' vcc,' in t) or (nxt.startswith('v_cndmask') and nxt.rstrip().endswith('vcc'))
                if nv >= nvec and not glued:
                    out.append((at, cur)); cur = []; nv = 0; at += step
        if cur:
            out.append((at, cur))
        return out

    def afrag(self, n):
        return vAF + (n % NAF) * 4

    def prologue(self):
        cfg = self.cfg
        o = self.add
        o(P('s_cmp_ge_u32 s2, 256'), P('s_cbranch_scc1 L_END'))
        if cfg.get('ts'):
            o(P('v_mov_b32 v103, 0'), self.ts(13))
            if cfg.get('dbgts'):
                o(P('s_memrealtime s[92:93]'), P('s_waitcnt lgkmcnt(0)'), P('v_writelane_b32 v103, s92, 12'))
        o(P('s_load_dwordx16 s[72:87], s[0:1], 0'), P('s_load_dwordx4 s[88:91], s[0:1], 64'))
        if cfg.get('t_code', 1):
            nl = cfg.get('code_nl', 3)
            o(P('s_getpc_b64 s[50:51]'), LAB('L_PC'),
              P('s_lshr_b32 s52, s2, 3'), P('s_mul_i32 s52, s52, %d' % (4 * nl)),
              P('v_lshrrev_b32 v252, 6, v0'), P('v_mul_u32_u24 v252, %d, v252' % nl), P('v_and_b32 v253, 63, v0'),
              P('v_add3_u32 v252, v252, v253, s52'), P('v_lshlrev_b32 v252, 7, v252'),
              P('v_min_u32 v252, L_END-L_PC, v252'),
              P('s_mov_b64 exec, %d' % ((1 << nl) - 1)),
              VM('global_load_dword a255, v252, s[50:51]'),
              P('s_mov_b64 exec, -1'))
        o(P('s_getreg_b32 s%d, hwreg(HW_REG_XCC_ID, 0, 4)' % sXCC))
        o(P('s_and_b32 s52, s2, 7'), P('s_lshr_b32 s53, s2, 3'), P('s_lshr_b32 s54, s53, 4'),
          P('s_lshl_b32 s%d, s52, 1' % sG), P('s_add_u32 s%d, s%d, s54' % (sG, sG)),
          P('s_and_b32 s%d, s53, 15' % sM))
        if cfg.get('cross_groups'):
            o(P('s_lshr_b32 s%d, s2, 4' % sG), P('s_and_b32 s%d, s2, 15' % sM))
        o(P('v_lshrrev_b32 v252, 6, v0'), P('v_and_b32 v%d, 63, v0' % vLANE), P('v_readfirstlane_b32 s%d, v252' % sW))
        I = 250; Gq = 251; RR = 249; I3 = 248; t0 = 252; t1 = 253; t2 = 254; t3 = 255
        o(P('v_lshlrev_b32 v%d, 7, v%d' % (vL128, vLANE)), P('v_lshlrev_b32 v%d, 4, v%d' % (vL16, vLANE)))
        o(P('v_lshrrev_b32 v%d, 2, v%d' % (t0, vLANE)), P('v_lshrrev_b32 v%d, 2, v%d' % (t1, t0)),
          P('v_xor_b32 v%d, v%d, v%d' % (t1, t1, vLANE)), P('v_and_b32 v%d, 3, v%d' % (t1, t1)),
          P('v_lshlrev_b32 v%d, 4, v%d' % (t1, t1)),
          P('v_lshl_add_u32 v%d, v%d, 11, v%d' % (vDX, t0, t1)))
        o(P('v_lshlrev_b32 v%d, 1, v%d' % (t2, t0)), P('v_add_u32 v%d, 16, v%d' % (t3, t2)), P('v_add_u32 v%d, 1, v%d' % (t2, t2)),
          P('v_cmp_gt_u32 vcc, 8, v%d' % t0),
          P('s_lshr_b32 s%d, s%d, 3' % (sTH, sM)), P('s_and_b32 s%d, s%d, 7' % (sCT, sM)),
          P('v_cndmask_b32 v%d, v%d, v%d, vcc' % (t2, t2, t3)),
          P('v_lshl_add_u32 v%d, v%d, 10, v%d' % (vDH, t2, t1)),
          P('s_cmp_eq_u32 s%d, 0' % sG), P('s_cselect_b32 s53, 0x40000000, 0'), P('v_or_b32 v%d, s53, v%d' % (vDH, vDH)))
        o(P('v_lshrrev_b32 v%d, 4, v%d' % (t1, vLANE)), P('v_lshrrev_b32 v%d, 1, v%d' % (t2, vLANE)),
          P('v_xor_b32 v%d, v%d, v%d' % (t1, t1, t2)), P('v_and_b32 v%d, 1, v%d' % (t1, t1)),
          P('v_lshlrev_b32 v%d, 5, v%d' % (t1, t1)), P('v_and_b32 v%d, 1, v%d' % (t2, vLANE)),
          P('v_lshl_add_u32 v%d, v%d, 4, v%d' % (t1, t2, t1)),
          P('v_mul_u32_u24 v%d, 3072, v%d' % (t2, t0)), P('v_add_u32 v%d, v%d, v%d' % (vDQ, t1, t2)))
        o(P('s_mov_b32 s%d, 0' % sRND), P('s_mov_b32 s%d, 0' % sMODE),
          P('s_mul_i32 s%d, s%d, 49152' % (sWQ_SRC, sW)), P('s_lshl_b32 s52, s%d, 6' % sM),
          P('s_add_u32 s%d, s%d, s52' % (sWQ_SRC, sWQ_SRC)),
          P('s_lshl_b32 s%d, s%d, 10' % (sW1K, sW)),
          P('s_lshl_b32 s%d, s%d, 13' % (sWO_SRC, sW)), P('s_lshl_b32 s52, s%d, 7' % sCT),
          P('s_add_u32 s%d, s%d, s52' % (sWO_SRC, sWO_SRC)),
          P('s_mul_i32 s%d, s%d, %d' % (sW1_SRC, sW, 32 * 3584)), P('s_mul_i32 s52, s%d, 224' % sM),
          P('s_add_u32 s%d, s%d, s52' % (sW1_SRC, sW1_SRC)),
          P('s_mul_i32 s%d, s%d, 7168' % (sW1_M, sW)),
          P('s_lshl_b32 s%d, s%d, 8' % (sGFLG, sG)),
          P('s_lshl_b32 s52, s%d, 2' % sM), P('s_add_u32 s52, s52, s%d' % sW), P('s_lshl_b32 s52, s52, 2'),
          P('s_add_u32 s%d, s%d, s52' % (sFLGOFF, sGFLG)),
          P('s_and_b32 s52, s%d, 1' % sG), P('s_lshl_b32 s52, s52, 4'), P('s_add_u32 s52, s52, s%d' % sM),
          P('s_lshl_b32 s52, s52, 2'), P('s_add_u32 s52, s52, s%d' % sW), P('s_lshl_b32 s%d, s52, 13' % sTUX),
          P('s_mul_i32 s94, s52, 2176'),
          P('s_lshl_b32 s52, s%d, 2' % sM), P('s_add_u32 s52, s52, s%d' % sW), P('s_lshl_b32 s%d, s52, 13' % sTUG),
          P('s_mul_i32 s%d, s%d, %d' % (sST, sG, ACT_G)),
          P('s_andn2_b32 s52, s%d, 1' % sG), P('s_lshl_b32 s52, s52, 17'), P('s_sub_u32 s52, s52, 16384'),
          P('s_max_i32 s52, s52, 0'), P('s_add_u32 s94, s94, s52'),
          P('s_lshl_b32 s52, s%d, 7' % sG), P('s_sub_u32 s53, s52, 32'), P('s_lshl_b32 s97, s53, 10'),
          P('s_cmp_eq_u32 s%d, 0' % sG), P('s_cselect_b32 s97, 0, s97'), P('s_lshl_b32 s53, s%d, 6' % sW), P('s_add_u32 s97, s97, s53'))
        for b in range(2):
            o(P('s_lshl_b32 s53, s%d, 1' % sW), P('s_add_u32 s53, s53, %d' % b), P('s_and_b32 s53, s53, 3'),
              P('s_lshl_b32 s53, s53, 5'), P('s_add_u32 s53, s53, s52'), P('s_lshr_b32 s54, s%d, 1' % sW),
              P('s_add_u32 s53, s53, s54'), P('s_lshl_b32 s%d, s53, 10' % (95 + b)))
        o(P('s_lshl_b32 s98, s%d, 11' % sW))
        o(P('s_waitcnt lgkmcnt(0)'))
        if cfg.get('pts') == 1:
            o(self.ts(14))
        def srd(dst, src, size):
            return [P('s_mov_b32 s%d, s%d' % (dst, src)), P('s_and_b32 s%d, s%d, 0xffff' % (dst + 1, src + 1)),
                    P('s_mov_b32 s%d, 0x%x' % (dst + 2, size)), P('s_mov_b32 s%d, 0x20000' % (dst + 3))]
        o(srd(SRD_X, 72, 2097152), srd(SRD_WQ, 74, 512 * 3072))
        tp = cfg.get('t_pro', 1)
        def tq(q):
            return self.touch_range('wq', q * 393216, (q + 1) * 393216) if tp else []
        if tp:
            o(P('s_mov_b32 exec_lo, 0x1ffff'), P('s_mov_b32 exec_hi, 0'),
              VM('buffer_load_dword a255, v%d, s[8:11], s94 offen' % vL128), P('s_mov_b64 exec, -1'))
        o(tq(0), tq(1))
        allfirst = cfg.get('cold', 'A') == 'A'
        if allfirst:
            o(tq(2), tq(3))
        o(srd(SRD_WO, 76, 524288), srd(SRD_W1, 80, 512 * 3584), srd(SRD_B1, 82, 3584), srd(SRD_W2, 84, 1792 * 1024),
          srd(SRD_OUT, 86, 2097152), srd(SRD_DBG, 88, 256), srd(SRD_WS, 90, WS_SIZE))
        o(P('s_mov_b32 s%d, s95' % sXR0), P('s_mov_b32 s%d, s96' % sXR1), P('s_mov_b32 s%d, s97' % sHSRC), P('s_mov_b32 s%d, s98' % sD))
        o(P('s_and_b32 s52, s%d, 1' % sG), P('s_lshl_b32 s52, s52, 3'), P('s_add_u32 s52, s52, s%d' % sM),
          P('s_and_b32 s99, s52, %d' % (15 if cfg.get('rot', 0) else 0)), P('s_lshl_b32 s98, s99, 1'), P('s_add_u32 s98, s98, s%d' % sW),
          P('s_lshl_b32 s95, s%d, 6' % sM), P('s_lshl_b32 s52, s%d, 6' % sW), P('s_sub_u32 s%d, s%d, s52' % (sHSRC, sHSRC)))
        self.tq = (lambda q: []) if allfirst else tq
        if cfg.get('t_mall', 0) == 1:
            o(self.touch_mall())
        self.tag_init = newtag('init')
        o(P('v_mov_b32 v%d, 0' % t1), P('s_mov_b64 exec, 1'),
          VM('buffer_store_dword v%d, v%d, s[28:31], s%d offen sc1' % (t1, t1, sFLGOFF), self.tag_init),
          P('s_mov_b64 exec, -1'))
        if cfg.get('pts') == 1:
            o(self.ts(15))
        o(P('v_and_b32 v%d, 15, v%d' % (I, vLANE)), P('v_lshrrev_b32 v%d, 4, v%d' % (Gq, vLANE)),
          P('v_lshrrev_b32 v%d, 2, v%d' % (t0, I)), P('v_lshl_add_u32 v%d, v%d, 2, v%d' % (RR, Gq, t0)),
          P('v_and_b32 v%d, 3, v%d' % (I3, I)))
        for k in range(4):
            o(P('v_mov_b32 v%d, 0x3f803f80' % (vONES + k)))
        o(P('v_lshlrev_b32 v%d, 6, v%d' % (t0, RR)), P('v_lshl_add_u32 v%d, v%d, 3, v%d' % (t0, I3, t0)),
          P('v_add_u32 v%d, %d, v%d' % (t0, L_W, t0)),
          P('v_and_b32 v%d, 1, v%d' % (t1, Gq)), P('v_lshlrev_b32 v%d, 5, v%d' % (t1, t1)),
          P('v_add_u32 v%d, v%d, v%d' % (vWQA, t0, t1)),
          P('v_xor_b32 v%d, 32, v%d' % (t2, t1)), P('v_add_u32 v%d, v%d, v%d' % (vWQA + 1, t0, t2)),
          P('v_add_u32 v%d, 0x10000, v%d' % (vWQA + 2, vWQA)), P('v_add_u32 v%d, 0x10000, v%d' % (vWQA + 3, vWQA + 1)))
        o(P('s_and_b32 s53, s%d, 1' % sW), P('s_lshl_b32 s53, s53, 5'), P('v_xor_b32 v%d, s53, v%d' % (t2, t1)),
          P('v_add_u32 v%d, v%d, v%d' % (vE2, t0, t2)),
          P('s_lshr_b32 s53, s%d, 1' % sW), P('s_add_u32 s53, s53, 1'), P('s_lshl_b32 s53, s53, 15'),
          P('v_add_u32 v%d, s53, v%d' % (vE1, vE2)))
        o(P('v_lshrrev_b32 v%d, 1, v%d' % (t0, Gq)), P('v_lshrrev_b32 v%d, 2, v%d' % (t1, I)),
          P('v_xor_b32 v%d, v%d, v%d' % (t0, t0, t1)), P('v_lshlrev_b32 v%d, 4, v%d' % (t0, t0)),
          P('v_lshl_add_u32 v%d, v%d, 6, v%d' % (t0, I, t0)),
          P('v_and_b32 v%d, 1, v%d' % (t1, Gq)), P('v_lshl_add_u32 v%d, v%d, 3, v%d' % (t0, t1, t0)),
          P('v_add_u32 v%d, %d, v%d' % (vHXA, L_HALO, t0)), P('v_xor_b32 v%d, 32, v%d' % (vHXB, vHXA)),
          P('s_lshl_b32 s53, s%d, 11' % sW), P('s_add_u32 s53, s53, %d' % L_RING),
          P('v_add_u32 v%d, s53, v%d' % (vXA, t0)), P('v_xor_b32 v%d, 32, v%d' % (vXB, vXA)))
        o(P('v_cmp_eq_u32 s[%d:%d], 1, v%d' % (sMA, sMA + 1, I3)), P('v_cmp_eq_u32 s[%d:%d], 2, v%d' % (sMB, sMB + 1, I3)),
          P('v_cmp_eq_u32 s[%d:%d], 3, v%d' % (sMC, sMC + 1, I3)), P('v_lshrrev_b32 v%d, 2, v%d' % (t0, I)),
          P('v_cmp_eq_u32 s[%d:%d], v%d, v%d' % (sMD, sMD + 1, t0, Gq)))
        o(P('v_lshlrev_b32 v%d, 4, v%d' % (vCS, Gq)))
        o(P('s_lshl_b32 s%d, s%d, 17' % (sGBASE, sG)),
          P('s_lshl_b32 s52, s%d, 2' % sTH), P('s_add_u32 s%d, s52, s%d' % (sTB, sW)))
        if cfg.get('ts'):
            o(P('s_lshl_b32 s52, s2, 2'), P('s_add_u32 s52, s52, s%d' % sW), P('s_lshl_b32 s52, s52, 8'),
              P('s_add_u32 s%d, s52, %d' % (sTSO, 0x1F80000)))
        o(self.setup2())
        if cfg.get('pts') == 1:
            o(self.ts(29))
        self.xslot = {}; self.wq_q = {}; self.halo_dma = []
        for j in range(16):
            self.xslot[j] = self.x_ring_dma(j)
        for q in range(4):
            self.wq_q[q] = self.wq_rot_quarter(q)
        for a in range(4):
            if not cfg.get('rot', 0):
                self.halo_dma.append(self.dma(SRD_X, vDH, 97, a * 256, sW1K, L_HALO + a * 4096))
                continue
            self.halo_dma.append([P('s_add_u32 m0, s%d, %d' % (sW1K, L_HALO + a * 4096)), P('s_add_u32 s52, s99, s%d' % sW), P('s_add_u32 s52, s52, %d' % (4 * a)),
                                  P('s_and_b32 s52, s52, 15'), P('s_lshl_b32 s52, s52, 6'), P('s_add_u32 s52, s52, s%d' % sHSRC),
                                  VM('buffer_load_dwordx4 v%d, s[8:11], s52 offen lds' % vDH)])
        o(self.xslot[0], self.wq_q[0], self.halo_dma[0], self.xslot[1])
        if cfg.get('pts') == 1:
            o(self.ts(30))

    def setup2(self):
        I = 228; Gq = 229; RR = 230; I3 = 231; t0 = 232; t1 = 233; t2 = 234; t3 = 235; tr = 236
        o = []
        o += [P('v_and_b32 v%d, 15, v%d' % (I, vLANE)), P('v_lshrrev_b32 v%d, 4, v%d' % (Gq, vLANE)),
              P('v_lshrrev_b32 v%d, 2, v%d' % (t0, I)), P('v_lshl_add_u32 v%d, v%d, 2, v%d' % (RR, Gq, t0)),
              P('v_and_b32 v%d, 3, v%d' % (I3, I))]
        o += [P('v_lshrrev_b32 v%d, 3, v%d' % (t0, vLANE)), P('v_lshrrev_b32 v%d, 1, v%d' % (t1, t0)),
              P('v_lshrrev_b32 v%d, 1, v%d' % (t2, vLANE)), P('v_xor_b32 v%d, v%d, v%d' % (t1, t1, t2)),
              P('v_and_b32 v%d, 3, v%d' % (t1, t1)), P('v_lshlrev_b32 v%d, 5, v%d' % (t1, t1)),
              P('v_and_b32 v%d, 1, v%d' % (t2, vLANE)), P('v_lshl_add_u32 v%d, v%d, 4, v%d' % (t1, t2, t1)),
              P('v_lshl_add_u32 v%d, v%d, 10, v%d' % (vDO, t0, t1))]
        for c in range(448):
            assert (c * 4682) >> 16 == c // 14
        for u in range(7):
            o += [P('v_add_u32 v%d, %d, v%d' % (t0, 64 * u, vLANE)), P('v_mul_u32_u24 v%d, 4682, v%d' % (t1, t0)),
                  P('v_lshrrev_b32 v%d, 16, v%d' % (t1, t1)), P('v_mul_u32_u24 v%d, 14, v%d' % (t2, t1)),
                  P('v_sub_u32 v%d, v%d, v%d' % (t2, t0, t2)), P('v_lshlrev_b32 v%d, 4, v%d' % (t2, t2)),
                  P('v_mul_u32_u24 v%d, 3584, v%d' % (t1, t1)), P('v_add_u32 v%d, v%d, v%d' % (vD1 + u, t1, t2))]
        o += [P('s_lshl_b32 s80, s%d, 7' % sG), P('s_lshl_b32 s81, s%d, 5' % sW), P('s_add_u32 s80, s80, s81'), P('s_add_u32 s80, s80, s%d' % sTH),
              P('s_lshl_b32 s80, s80, 10'), P('s_lshl_b32 s81, s%d, 7' % sCT), P('s_add_u32 s61, s80, s81'),
              P('v_lshlrev_b32 v%d, 11, v%d' % (t1, I)), P('v_lshl_add_u32 v%d, v%d, 3, v%d' % (tr, Gq, t1))]
        self.tag_res = [newtag('res') for _ in range(4)]
        self.res_ops = [VM('buffer_load_dwordx2 v[%d:%d], v%d, s[8:11], s61 offen offset:%d' % (vR + 2 * fb, vR + 2 * fb + 1, tr, fb * 32), self.tag_res[fb]) for fb in range(4)]
        self.tag_b1 = newtag('b1')
        self.b1_op = [P('v_lshlrev_b32 v%d, 2, v%d' % (237, vLANE)), P('s_mul_i32 s80, s%d, 224' % sM),
                      VM('buffer_load_dword v247, v237, s[40:43], s80 offen', self.tag_b1)]
        o += [P('v_and_b32 v%d, 1, v%d' % (t2, Gq)), P('v_lshlrev_b32 v%d, 5, v%d' % (t2, t2)),
              P('v_lshrrev_b32 v%d, 1, v%d' % (t3, Gq)), P('v_lshl_add_u32 v%d, v%d, 4, v%d' % (t2, t3, t2)),
              P('v_lshl_add_u32 v%d, v%d, 11, v%d' % (vOUT, I, t2))]
        o += [P('s_mov_b32 s%d, 1.0' % sONE), P('s_mov_b32 s%d, 1.0' % (sONE + 1)),
              P('s_mov_b32 s%d, %s' % (sM2L, f32(-2 * LN2))), P('s_mov_b32 s%d, %s' % (sM2L + 1, f32(-2 * LN2))),
              P('v_mov_b32 v%d, %s' % (vLN2, f32(LN2))), P('v_mov_b32 v%d, %s' % (vLN2 + 1, f32(LN2)))]
        o += [P('v_mul_u32_u24 v%d, 224, v%d' % (t0, RR)), P('v_lshl_add_u32 v%d, v%d, 3, v%d' % (vW1A, I3, t0)),
              P('v_add_u32 v%d, 0x10000, v%d' % (vW1A + 1, vW1A)), P('v_add_u32 v%d, 0x20000, v%d' % (vW1A + 2, vW1A))]
        o += [P('v_lshlrev_b32 v%d, 7, v%d' % (t0, RR)), P('v_lshl_add_u32 v%d, v%d, 3, v%d' % (t0, I3, t0)),
              P('s_and_b32 s80, s%d, 1' % sW), P('s_lshl_b32 s80, s80, 12'), P('s_add_u32 s80, s80, %d' % L_W),
              P('v_add_u32 v%d, s80, v%d' % (t0, t0)),
              P('v_lshrrev_b32 v%d, 1, v%d' % (t1, RR)), P('v_and_b32 v%d, 3, v%d' % (t1, t1))]
        for fb in range(4):
            o += [P('v_xor_b32 v%d, %d, v%d' % (t2, fb, t1)), P('v_lshl_add_u32 v%d, v%d, 5, v%d' % (vW2A + fb * 3, t2, t0)),
                  P('v_add_u32 v%d, 0x10000, v%d' % (vW2A + fb * 3 + 1, vW2A + fb * 3)),
                  P('v_add_u32 v%d, 0x20000, v%d' % (vW2A + fb * 3 + 2, vW2A + fb * 3))]
        NEG = f32(-1e30)
        o += [P('v_mov_b32 v%d, %s' % (t3, NEG))]
        for r in range(4):
            o += [P('v_lshl_add_u32 v%d, v%d, 2, %d' % (t0, Gq, r)),
                  P('v_sub_u32 v%d, v%d, v%d' % (t1, I, t0)), P('v_cmp_gt_u32 vcc, 8, v%d' % t1),
                  P('v_cndmask_b32_e64 v%d, v%d, 0, vcc' % (vCCUR + r, t3)),
                  P('v_add_u32 v%d, 9, v%d' % (t1, I)), P('v_cmp_ge_u32 vcc, v%d, v%d' % (t0, t1)),
                  P('v_cndmask_b32_e64 v%d, v%d, 0, vcc' % (vCPREV + r, t3))]
        o += [P('s_and_b32 s80, s%d, 1' % sW), P('s_or_b32 s80, s80, s%d' % sG), P('s_cmp_eq_u32 s80, 0'), P('s_cselect_b64 vcc, -1, 0')]
        for r in range(4):
            o.append(P('v_cndmask_b32 v%d, v%d, v%d, vcc' % (vCPA + r, vCPREV + r, t3)))
        o += [P('v_lshlrev_b32 v%d, 2, v%d' % (t0, Gq)), P('v_add_u32 v%d, 6, v%d' % (t1, I)),
              P('v_cmp_ge_u32 s[%d:%d], v%d, v%d' % (sUP, sUP + 1, t0, t1))]
        o += [P('v_lshlrev_b32 v%d, 5, v%d' % (t0, I)), P('v_lshl_add_u32 v%d, v%d, 3, v%d' % (t0, Gq, t0)),
              P('s_lshl_b32 s80, s%d, 11' % sW), P('s_add_u32 s80, s80, %d' % L_EX), P('v_add_u32 v%d, s80, v%d' % (vEXV, t0))]
        o += [P('s_lshr_b32 s80, s%d, 1' % sW), P('s_add_u32 s81, s80, 3'), P('s_bitcmp1_b32 s%d, 0' % sW),
              P('s_cselect_b32 s80, s81, s80'), P('s_lshl_b32 s80, s80, 10'), P('s_add_u32 s80, s80, %d' % L_EXK),
              P('v_lshlrev_b32 v%d, 3, v%d' % (t1, vLANE)), P('v_add_u32 v%d, s80, v%d' % (vEXK, t1))]
        o += [P('s_and_b32 s80, s%d, 1' % sW), P('s_lshl_b32 s80, s80, 9'),
              P('s_add_u32 s81, s80, %d' % (L_EXK + 2048)), P('v_add_u32 v%d, s81, v%d' % (t2, t1)),
              P('s_add_u32 s81, s80, %d' % (L_EX + 8192)), P('v_add_u32 v%d, s81, v%d' % (t3, t0)),
              P('s_cmp_ge_u32 s%d, 2' % sW), P('s_cselect_b64 vcc, -1, 0'),
              P('v_cndmask_b32 v%d, v%d, v%d, vcc' % (vEXH, t2, t3))]
        o += [P('v_lshlrev_b32 v%d, 5, v%d' % (t0, RR)), P('v_lshl_add_u32 v%d, v%d, 3, v%d' % (t0, I3, t0)),
              P('s_lshl_b32 s80, s%d, 11' % sW), P('s_add_u32 s80, s80, %d' % L_EX), P('v_add_u32 v%d, s80, v%d' % (vRV, t0))]
        o += [P('v_subrev_u32 v%d, 1024, v%d' % (t1, vRV)),
              P('v_add_u32 v%d, %d, v%d' % (t2, L_EX + 8192, t0)),
              P('v_subrev_u32 v%d, 256, v%d' % (t3, t2)),
              P('v_cmp_le_u32 vcc, 8, v%d' % RR), P('v_cndmask_b32 v%d, v%d, v%d, vcc' % (t3, t2, t3)),
              P('s_cmp_eq_u32 s%d, 0' % sW), P('s_cselect_b64 vcc, -1, 0'), P('v_cndmask_b32 v%d, v%d, v%d, vcc' % (t2, t2, t3)),
              P('s_bitcmp1_b32 s%d, 0' % sW), P('s_cselect_b64 vcc, -1, 0'), P('v_cndmask_b32 v%d, v%d, v%d, vcc' % (vRVP, t2, t1))]
        o += [P('v_lshlrev_b32 v%d, 3, v%d' % (t0, vLANE)),
              P('s_lshr_b32 s80, s%d, 1' % sW), P('s_bitcmp1_b32 s%d, 0' % sW), P('s_cselect_b32 s80, s80, 2'),
              P('s_lshl_b32 s80, s80, 10'), P('s_add_u32 s80, s80, %d' % L_EXK), P('v_add_u32 v%d, s80, v%d' % (t0, t0)),
              P('v_subrev_u32 v%d, 64, v%d' % (t1, t0)), P('v_cmp_le_u32 vcc, 8, v%d' % I),
              P('v_cndmask_b32 v%d, v%d, v%d, vcc' % (t1, t0, t1)),
              P('s_cmp_eq_u32 s%d, 0' % sW), P('s_cselect_b64 vcc, -1, 0'), P('v_cndmask_b32 v%d, v%d, v%d, vcc' % (vRK, t0, t1))]
        o += [P('s_lshl_b32 s80, s%d, 12' % sW), P('v_add_u32 v%d, s80, v%d' % (vEXBW, vL16)),
              P('v_xor_b32 v%d, 0x1000, v%d' % (vEXBR, vEXBW))]
        o += [P('s_lshr_b32 s80, s%d, 1' % sCT), P('s_lshl_b32 s80, s80, 8'), P('s_and_b32 s81, s%d, 1' % sCT),
              P('s_lshl_b32 s81, s81, 3'), P('s_add_u32 s80, s80, s81'),
              P('v_lshlrev_b32 v%d, 4, v%d' % (t0, I)), P('v_add_u32 v%d, s80, v%d' % (vSTO, t0))]
        o += [P('s_cmp_eq_u32 s%d, 0' % sTH), P('s_cselect_b32 s81, 8, 0'),
              P('v_subrev_u32 v%d, s81, v%d' % (t0, I)),
              P('v_lshl_add_u32 v%d, v%d, 4, v%d' % (t1, Gq, t0)), P('v_lshlrev_b32 v%d, 4, v%d' % (t1, t1)),
              P('v_lshlrev_b32 v%d, 4, v%d' % (t2, t0)), P('v_add_u32 v%d, s80, v%d' % (t2, t2)),
              P('s_cmp_eq_u32 s%d, 3' % sW), P('s_cselect_b32 s80, 0, 0x40000000'),
              P('s_cmp_eq_u32 s%d, 15' % sG), P('s_cselect_b32 s80, 0x40000000, s80'),
              P('v_mov_b32 v%d, 0x40000000' % t3), P('v_cmp_le_u32 vcc, 8, v%d' % I),
              P('v_cndmask_b32 v%d, v%d, v%d, vcc' % (t1, t3, t1)), P('v_cndmask_b32 v%d, v%d, v%d, vcc' % (t2, t3, t2)),
              P('v_or_b32 v%d, s80, v%d' % (vHOF, t1)), P('v_or_b32 v%d, s80, v%d' % (vHST, t2))]
        return o

    def x_ring_dma(self, j):
        if not self.cfg.get('rot', 0):
            return [self.dma(SRD_X, vDX, sXR0 + b, j * 64, sD, L_RING + (j % 5) * 8192 + b * 1024) for b in range(2)]
        out = []
        for b in range(2):
            ops = [P('s_add_u32 m0, s%d, %d' % (sD, L_RING + (j % 5) * 8192 + b * 1024)),
                   P('s_add_u32 s52, s99, %d' % j), P('s_and_b32 s52, s52, 15'), P('s_lshl_b32 s52, s52, 6'),
                   P('s_add_u32 s52, s52, s%d' % (sXR0 + b)),
                   VM('buffer_load_dwordx4 v%d, s[8:11], s52 offen lds' % vDX)]
            out.append(ops)
        return out

    def wq_rot_quarter(self, qd):
        if not self.cfg.get('rot', 0):
            return self.dma_wq_quarter(qd)
        out = []
        for a in range(2):
            for p in range(3):
                rg = 8 * qd + 4 * a
                out.append([P('s_add_u32 m0, s%d, %d' % (sW1K, L_W + p * 32768 + rg * 1024)),
                            P('s_add_u32 s52, s98, %d' % rg), P('s_and_b32 s52, s52, 31'), P('s_mul_i32 s52, s52, 49152'),
                            P('s_add_u32 s52, s52, s95'), P('s_add_u32 s52, s52, %d' % (p * 1024)),
                            VM('buffer_load_dwordx4 v%d, s[12:15], s52 offen lds' % vDQ)])
        return out

    @staticmethod
    def vmtags(ops):
        t = []
        for x in ops:
            if isinstance(x, (list, tuple)):
                t += Gen.vmtags(x)
            elif x is not None and not isinstance(x, str) and x.kind == 'vm':
                t.append(x.tag)
        return t

    def finish_stats(self, s1, s2, pair_kv, pair_q=None, scale=None):
        t = vT + 80
        o = [P('v_mul_f32 v%d, %s, v%d' % (t, f32(1 / 512), s1)),
             P('v_mul_f32 v%d, %s, v%d' % (t + 1, f32(1 / 512), s2)),
             P('v_fma_f32 v%d, -v%d, v%d, v%d' % (t + 1, t, t, t + 1)),
             P('v_max_f32 v%d, 0, v%d' % (t + 1, t + 1)),
             P('v_add_f32 v%d, %s, v%d' % (t + 1, f32(1e-5), t + 1)),
             P('v_rsq_f32 v%d, v%d' % (pair_kv, t + 1))]
        if scale is not None:
            o.append(P('v_mul_f32 v%d, %s, v%d' % (pair_kv, f32(scale), pair_kv)))
        o.append(P('v_mul_f32 v%d, -v%d, v%d' % (pair_kv + 1, t, pair_kv)))
        if pair_q is not None:
            qs = f32(0.25 * LOG2E)
            o += [P('v_mul_f32 v%d, %s, v%d' % (pair_q, qs, pair_kv)), P('v_mul_f32 v%d, %s, v%d' % (pair_q + 1, qs, pair_kv + 1))]
        return o

    def reduce_g2(self, a, b):
        t = vT + 84
        return [P('v_permlane32_swap_b32 v%d, v%d' % (a, b)), P('v_add_f32 v%d, v%d, v%d' % (a, a, b)),
                P('v_mov_b32 v%d, v%d' % (t, a)), P('v_permlane16_swap_b32 v%d, v%d' % (a, t)),
                P('v_add_f32 v%d, v%d, v%d' % (a, a, t)), P('v_mov_b32 v%d, v%d' % (b, a)),
                P('v_permlane32_swap_b32 v%d, v%d' % (a, b))]

    def stats_from_st(self, regs, pair_kv, pair_q=None, scale=None):
        return [P('v_add_f32 v%d, v%d, v%d' % (regs, regs, regs + 2)), P('v_add_f32 v%d, v%d, v%d' % (regs + 1, regs + 1, regs + 3))] + \
            self.reduce_g2(regs, regs + 1) + self.finish_stats(regs, regs + 1, pair_kv, pair_q, scale)

    def accP1(self, blk, tb):
        return vACC + (blk * 2 + tb) * 4
    ACC_H = vACC + 48
    ACC_CS1 = vACC + 52
    ACC_CS2 = vACC + 56
    PKV = [vT + 0, vT + 2]; PQ = [vT + 4, vT + 6]; PH = vT + 8

    def wq_read(self, blk, j, part, dst):
        p = blk // 2; h = blk % 2
        if p < 2:
            return LG('ds_read_b64_tr_b16 v[%d:%d], v%d offset:%d' % (dst + 2 * part, dst + 2 * part + 1, vWQA + h, p * 32768 + j * 2048 + part * 1024))
        return LG('ds_read_b64_tr_b16 v[%d:%d], v%d offset:%d' % (dst + 2 * part, dst + 2 * part + 1, vWQA + 2 + h, j * 2048 + part * 1024))

    def p1a(self):
        o = self.add
        XB = vT + 12
        S1 = vT + 36
        S2 = vT + 48
        def xb(j, b): return XB + (j & 1) * 12 + b * 4
        xr_tags = {}
        def xreads(j):
            ops = []
            for b in range(2):
                ops.append(LG('ds_read_b64 v[%d:%d], v%d offset:%d' % (xb(j, b), xb(j, b) + 1, vXA, (j % 5) * 8192 + b * 1024)))
                ops.append(LG('ds_read_b64 v[%d:%d], v%d offset:%d' % (xb(j, b) + 2, xb(j, b) + 3, vXB, (j % 5) * 8192 + b * 1024)))
            ops.append(LG('ds_read_b64 v[%d:%d], v%d offset:%d' % (xb(j, 2), xb(j, 2) + 1, vHXA, j * 1024)))
            ops.append(LG('ds_read_b64 v[%d:%d], v%d offset:%d' % (xb(j, 2) + 2, xb(j, 2) + 3, vHXB, j * 1024)))
            xr_tags[j] = [x.tag for x in ops]
            return ops
        groups = []
        n = 0
        extras = []
        mfidx = 0
        first_idx = {}
        for j in range(16):
            first_idx[j] = mfidx
            z = (j == 0)
            for blk in range(8):
                dst = self.afrag(n); n += 1
                g = dict(pre=[], reads=[], mf=[])
                if blk == 0:
                    if j % 4 == 0:
                        q = j // 4
                        wt = self.vmtags(self.wq_q[q]) + self.vmtags(self.halo_dma[q])
                        g['pre'] += [W(wt), P('s_barrier')] if not (self.cfg.get('x_nobar') and q > 0) else []
                    if not self.cfg.get('x_nowait'):
                        g['pre'] += [W(self.vmtags(self.xslot[j]))]
                    g['reads'] += xreads(j)
                if blk < 6:
                    g['reads'] += [self.wq_read(blk, j, 0, dst), self.wq_read(blk, j, 1, dst)]
                    for tb in range(2):
                        acc = self.accP1(blk, tb)
                        c = '0' if z else vr(acc, 4)
                        g['mf'].append(('v_mfma_f32_16x16x32_bf16 %s, %s, %s, %s' % (vr(acc, 4), vr(dst, 4), vr(xb(j, tb), 4), c), []))
                    if blk in (1, 3, 5) and not self.cfg.get('x_nostat'):
                        b = blk // 2
                        for (accb, A) in ((S1 + b * 4, vONES), (S2 + b * 4, xb(j, b))):
                            c = '0' if z else vr(accb, 4)
                            g['mf'].append(('v_mfma_f32_16x16x32_bf16 %s, %s, %s, %s' % (vr(accb, 4), vr(A, 4), vr(xb(j, b), 4), c), []))
                else:
                    base = vE1 if blk == 6 else vE2
                    g['reads'] += [LG('ds_read_b64_tr_b16 v[%d:%d], v%d offset:%d' % (dst + 2 * part, dst + 2 * part + 1, base, j * 2048 + part * 1024)) for part in range(2)]
                    if blk == 6:
                        c = '0' if z else vr(self.ACC_H, 4)
                        g['mf'].append(('v_mfma_f32_16x16x32_bf16 %s, %s, %s, %s' % (vr(self.ACC_H, 4), vr(dst, 4), vr(xb(j, 2), 4), c), []))
                        c = '0' if z else vr(self.ACC_CS1, 4)
                        g['mf'].append(('v_mfma_f32_16x16x32_bf16 %s, %s, %s, %s' % (vr(self.ACC_CS1, 4), vr(dst, 4), vr(vONES, 4), c), []))
                    else:
                        c = '0' if z else vr(self.ACC_CS2, 4)
                        g['mf'].append(('v_mfma_f32_16x16x32_bf16 %s, %s, %s, %s' % (vr(self.ACC_CS2, 4), vr(dst, 4), vr(vONES, 4), c), []))
                mfidx += len(g['mf'])
                groups.append(g)
        def at(k, i):
            return first_idx[k] + i
        seq = []
        seq += [(at(0, 0), self.xslot[2][0]), (at(0, 2), self.xslot[2][1])]
        q1 = self.wq_q[1]
        seq += [(at(0, 5), q1[0]), (at(0, 8), q1[1]), (at(0, 11), q1[2]), (at(0, 14), self.xslot[3][0]), (at(0, 16), self.xslot[3][1]),
                (at(0, 19), self.tq(2)), (at(1, 1), q1[3]), (at(1, 4), q1[4]), (at(1, 7), q1[5]), (at(1, 10), self.halo_dma[1]),
                (at(1, 13), self.xslot[4][0]), (at(1, 15), self.xslot[4][1]), (at(1, 18), self.tq(3))]
        for j in range(11):
            for b, d in enumerate(self.xslot[j + 5]):
                seq.append((max(at(j, 2 + 2 * b), at(2, 0) + 2 * b + (j * 4 if j < 2 else 0)), d))
        for k, d in enumerate(self.wq_q[2] + [self.halo_dma[2]]):
            seq.append((at(3 + k // 2, 8 + 5 * (k % 2)), d))
        for k, d in enumerate(self.wq_q[3] + [self.halo_dma[3]]):
            seq.append((at(7 + k // 2, 8 + 5 * (k % 2)), d))
        extras += seq
        reg = [W(self.tag_init),
               P('s_mul_i32 s53, s%d, s%d' % (sXCC, sXCC)), P('s_lshl_b32 s53, s53, 13'), P('s_lshl_b32 s54, s%d, 5' % sXCC),
               P('s_add_u32 s53, s53, s54'), P('s_add_u32 s53, s53, 1'), P('v_mov_b32 v%d, s53' % vTA),
               P('s_lshr_b32 s53, s%d, 1' % sG), P('s_lshl_b32 s53, s53, 5'), P('s_and_b32 s54, s%d, 1' % sG),
               P('s_lshl_b32 s54, s54, 2'), P('s_add_u32 s54, s53, s54'), P('v_mov_b32 v%d, s54' % vTB),
               P('s_cmp_eq_u32 s%d, 0' % sW), P('s_cselect_b32 s53, 0, 0x40000000'),
               P('v_or_b32 v%d, s53, v%d' % (vTB, vTB)),
               P('s_mov_b64 exec, 1'),
               VM('buffer_atomic_add v%d, v%d, s[36:39], 0 offen' % (vTA, vTB)),
               P('s_mov_b64 exec, -1')]
        extras.append((first_idx[4] + 3, reg))
        groups[8 * 4]['pre'] = [W(self.tag_init)] + groups[8 * 4]['pre']
        if self.cfg.get('t_mall', 0) >= 4:
            extras.append((first_idx[self.cfg.get('t_mall')] + 4, self.touch_mall()))
        for k, x in enumerate(self.res_ops):
            extras.append((first_idx[11] + 3 + 3 * k, [x]))
        extras.append((first_idx[11] + 16, self.b1_op))
        extras.append((first_idx[8] + 9, self.mode_load()))
        extras.append((first_idx[11] + 1, self.mode_check()))
        tset = self.touch_set(self.cfg.get('t_p1a', 'of,xf'))
        k0 = self.cfg.get('t_p1a_k', 11)
        post = []
        for k, t in enumerate(tset):
            if k0 + k < 16:
                extras.append((first_idx[k0 + k] + 5, t))
            else:
                post.append(t)
        extras += self.sched_touches('p1a', first_idx)
        if self.cfg.get('pts') == 2:
            for k, slot in ((1, 14), (4, 15), (8, 29), (12, 30)):
                extras.append((first_idx[k] - 1, self.ts(slot)))
        if self.cfg.get('pts') == 3:
            for k in range(16):
                extras.append((first_idx[k], self.ts(32 + k)))
        o(self.gemm_loop(groups, self.cfg.get('la_p1a', 3), extras))
        for t in post:
            o(t)
        t0 = 252; t1 = 253
        o(W(self.tag_b1), P('v_lshlrev_b32 v%d, 16, v247' % t0), P('v_and_b32 v%d, 0xffff0000, v247' % t1),
          P('v_mul_f32 v%d, %s, v%d' % (t0, f32(LOG2E), t0)), P('v_mul_f32 v%d, %s, v%d' % (t1, f32(LOG2E), t1)),
          P('v_lshlrev_b32 v%d, 3, v%d' % (vTA, vLANE)),
          P('s_mov_b32 exec_hi, 0x00ffffff'),
          LG('ds_write_b64 v%d, v[%d:%d] offset:%d' % (vTA, t0, t1, L_BB1)),
          P('s_mov_b64 exec, -1'))
        o(P('s_add_u32 s53, s%d, 2' % sW), P('s_lshl_b32 s53, s53, 6'), P('v_add_u32 v%d, s53, v%d' % (vTA, vCS)),
          P('s_and_b32 s53, s%d, 1' % sW), P('s_lshl_b32 s53, s53, 6'), P('v_add_u32 v%d, s53, v%d' % (vTB, vCS)),
          P('s_mov_b32 s52, 0x00010001'), P('s_mov_b32 s53, 0x00010001'), P('s_mov_b64 exec, s[52:53]'),
          LG('ds_write_b128 v%d, %s offset:%d' % (vTA, vr(self.ACC_CS1, 4), L_CSQ)),
          LG('ds_write_b128 v%d, %s offset:%d' % (vTB, vr(self.ACC_CS2, 4), L_CSQ)),
          P('s_mov_b64 exec, -1'))
        for b in range(3):
            s2 = S2 + b * 4
            o(P('v_cndmask_b32_e64 v%d, v%d, v%d, s[%d:%d]' % (s2, s2, s2 + 1, sMA, sMA + 1)),
              P('v_cndmask_b32_e64 v%d, v%d, v%d, s[%d:%d]' % (s2, s2, s2 + 2, sMB, sMB + 1)),
              P('v_cndmask_b32_e64 v%d, v%d, v%d, s[%d:%d]' % (s2, s2, s2 + 3, sMC, sMC + 1)),
              P('v_cndmask_b32_e64 v%d, 0, v%d, s[%d:%d]' % (s2, s2, sMD, sMD + 1)))
            t = s2 + 1
            o(P('v_mov_b32 v%d, v%d' % (t, s2)), P('v_permlane32_swap_b32 v%d, v%d' % (s2, t)),
              P('v_add_f32 v%d, v%d, v%d' % (s2, s2, t)), P('v_mov_b32 v%d, v%d' % (t, s2)),
              P('v_permlane16_swap_b32 v%d, v%d' % (s2, t)), P('v_add_f32 v%d, v%d, v%d' % (s2, s2, t)))
            if b < 2:
                o(self.finish_stats(S1 + b * 4, s2, self.PKV[b], self.PQ[b]))
            else:
                o(self.finish_stats(S1 + b * 4, s2, self.PH))
        o(WALL(False, True), P('s_barrier'))

    def p1b(self):
        o = self.add
        cfg = self.cfg
        for b in range(2):
            o(P('s_lshl_b32 s53, s%d, 1' % sW), P('s_add_u32 s53, s53, %d' % b), P('s_lshl_b32 s53, s53, 14'),
              P('s_add_u32 s%d, s53, s%d' % (sB0 + b, sX2)))
        xl = self.x_loads(16)
        pro = cfg.get('x_pro', 4)
        for j in range(pro):
            o(xl[j])
        stt = []
        STR = vT + 12
        for b in range(2):
            t = newtag('st'); stt.append(t)
            o(P('s_lshl_b32 s54, s%d, 11' % sW), P('s_add_u32 s53, s54, s%d' % sS2),
              P('s_add_u32 s53, s53, %d' % (b * 1024)),
              VM('buffer_load_dwordx4 %s, v%d, s[28:31], s53 offen sc1' % (vr(STR + 4 * b, 4), vL16), t))
        groups = []; n = 0; first_idx = {}; mfidx = 0
        for j in range(16):
            first_idx[j] = mfidx
            for blk in range(6):
                dst = self.afrag(n); n += 1
                g = dict(pre=[], reads=[self.wq_read(blk, j, 0, dst), self.wq_read(blk, j, 1, dst)], mf=[])
                for tb in range(2):
                    acc = self.accP1(blk, tb)
                    c = '0' if j == 0 else vr(acc, 4)
                    wt = self.vmtags(xl[j][tb]) if blk == 0 else []
                    g['mf'].append(('v_mfma_f32_16x16x32_bf16 %s, %s, %s, %s' % (vr(acc, 4), vr(dst, 4), ar((j * 2 + tb) * 4, 4), c), wt))
                mfidx += 2
                groups.append(g)
        extras = []
        k = 0
        rate = cfg.get('x_rate', 4)
        for j in range(pro, 16):
            for b in range(2):
                extras.append((first_idx[k // rate] + 1 + (12 // rate) * (k % rate), xl[j][b])); k += 1
        lastx = extras[-1][0]
        hp = [W(self.halo_store_tags), P('v_mov_b32 v%d, 1' % vTA),
              P('s_cmp_eq_u32 s%d, 3' % sW), P('s_cselect_b32 s53, 0, 0x40000000'),
              P('s_cmp_eq_u32 s%d, 15' % sG), P('s_cselect_b32 s53, 0x40000000, s53'),
              P('s_add_u32 s54, s%d, 1' % sG), P('s_lshr_b32 s52, s54, 1'), P('s_lshl_b32 s52, s52, 5'),
              P('s_and_b32 s54, s54, 1'), P('s_lshl_b32 s54, s54, 2'), P('s_add_u32 s52, s52, s54'),
              P('s_add_u32 s52, s52, 8'), P('s_or_b32 s53, s53, s52'),
              P('v_mov_b32 v%d, s53' % vTB),
              P('s_mov_b64 exec, 1'),
              VM('buffer_atomic_add v%d, v%d, s[36:39], 0 offen' % (vTA, vTB)),
              P('s_mov_b64 exec, -1')]
        extras.append((first_idx[0] + 6, hp))
        st_ops = [W(stt)]
        for b in range(2):
            st_ops += self.stats_from_st(STR + 4 * b, self.PKV[b], self.PQ[b])
        extras += self.spread(st_ops, first_idx[2] + 2, 1)
        HS = vT + 56
        HC = vT + 60; HZ = vT + 61
        spin = self.L('hsp'); hok = self.L('hok')
        tagc = newtag('hc'); htags = [newtag('h') for _ in range(17)]
        hk0 = cfg.get('halo_k0', 7); hk1 = cfg.get('halo_k', 10)
        h0 = [P('v_mov_b32 v%d, 0' % HZ),
              P('s_lshr_b32 s54, s%d, 1' % sG), P('s_lshl_b32 s54, s54, 5'), P('s_and_b32 s53, s%d, 1' % sG),
              P('s_lshl_b32 s53, s53, 2'), P('s_add_u32 s54, s54, s53'), P('s_add_u32 s%d, s54, 8' % sA),
              VM('buffer_load_dword v%d, v%d, s[36:39], s%d offen sc1' % (HC, HZ, sA), tagc)]
        extras.append((max(first_idx[hk0], lastx + 1), h0))
        hl = [W(tagc), P('s_mov_b32 s%d, 0' % sTMO),
              P('s_cmp_eq_u32 s%d, 0' % sG), P('s_cbranch_scc1 %s' % hok),
              LAB(spin),
              P('v_cmp_ne_u32 vcc, 16, v%d' % HC),
              P('s_cbranch_vccz %s' % hok),
              P('buffer_load_dword v%d, v%d, s[36:39], s%d offen sc1' % (HC, HZ, sA)),
              P('s_add_u32 s%d, s%d, 1' % (sTMO, sTMO)),
              P('s_waitcnt vmcnt(0)'),
              P('s_cmp_lt_u32 s%d, 0x100000' % sTMO), P('s_cbranch_scc1 %s' % spin),
              P('s_endpgm'),
              LAB(hok),
              P('s_cmp_eq_u32 s%d, 0' % sG), P('s_cselect_b32 s53, 0x40000000, 0'),
              P('v_or_b32 v%d, s53, v%d' % (HZ, vL16)),
              P('s_lshl_b32 s53, s%d, 10' % sG), P('s_add_u32 s53, s53, %d' % WS_HST),
              VM('buffer_load_dwordx4 %s, v%d, s[28:31], s53 offen sc1' % (vr(HS, 4), HZ), htags[16]),
              P('s_lshl_b32 s53, s%d, 14' % sG), P('s_add_u32 s%d, s53, %d' % (sA, WS_HF))]
        extras.append((first_idx[hk1], hl))
        for j in range(16):
            ops = []
            if j % 4 == 0:
                ops.append(P('s_add_u32 s%d, s%d, %d' % (sB, sA, j * 1024)))
            ops.append(VM('buffer_load_dwordx4 %s, v%d, s[28:31], s%d offen offset:%d sc1' % (ar(128 + 4 * j, 4), HZ, sB, (j % 4) * 1024), htags[j]))
            extras.append((first_idx[hk1] + 1 + 2 * j, ops))
        if cfg.get('a0_early', 1):
            for k, d in enumerate(self.dma_w1_group(0) + (self.dma_w1_group(1) if cfg.get('a1_tail', 1) else [])):
                extras.append((first_idx[hk1] + 34 + cfg.get('a0_step', 2) * k, d))
        for k, t in enumerate(self.touch_set(cfg.get('t_p1b', ''))):
            extras.append((first_idx[hk1] + 34 + 6 * k, t))
        extras += self.spread([W(htags[16])] + self.stats_from_st(HS, self.PH), first_idx[15] - 14, 1)
        extras += self.sched_touches('p1b', first_idx)
        o(self.gemm_loop(groups, cfg.get('la', 3), extras))
        groups = []
        for j in range(16):
            dst = self.afrag(j)
            g = dict(pre=[], reads=[LG('ds_read_b64_tr_b16 v[%d:%d], v%d offset:%d' % (dst + 2 * part, dst + 2 * part + 1, vE1, j * 2048 + part * 1024)) for part in range(2)], mf=[])
            c = '0' if j == 0 else vr(self.ACC_H, 4)
            g['mf'].append(('v_mfma_f32_16x16x32_bf16 %s, %s, %s, %s' % (vr(self.ACC_H, 4), vr(dst, 4), ar(128 + 4 * j, 4), c), [htags[j]]))
            groups.append(g)
        o(self.gemm_loop(groups, 6, []))
        o(P('s_barrier'))

    def x_loads(self, nk, ring=None, depth=None):
        xl = []
        for j in range(nk):
            row = []
            for b in range(2):
                slot = j if depth is None else j % depth
                ops = []
                if j % 4 == 0:
                    ops.append(P('s_add_u32 s%d, s%d, %d' % (sXL0 + b, sB0 + b, j * 1024)))
                if self.cfg.get('noxl'):
                    ops.append(P('s_nop 0'))
                else:
                    ops.append(VM('buffer_load_dwordx4 %s, v%d, s[28:31], s%d offen offset:%d%s' % (ar((slot * 2 + b) * 4, 4), vL16, sXL0 + b, (j % 4) * 1024, '' if self.cfg.get('plainld') else ' sc1')))
                row.append(ops)
            xl.append(row)
        return xl

    def dual_store(self, stores):
        pure = self.L('stp'); done = self.L('std')
        o = [P('s_cmp_eq_u32 s%d, 0' % sMODE), P('s_cbranch_scc1 %s' % pure)]
        o += [P(s + ' sc1') for s in stores]
        o += [P('s_branch %s' % done), LAB(pure)]
        o += [P(s) for s in stores]
        o += [LAB(done)]
        cnt = [VM('; counted store') for _ in stores]
        return o + cnt, [c.tag for c in cnt]

    def p1_epi(self, dmas):
        o = []
        CS = vT + 12
        CSH = vT + 36
        Q = vT + 40
        K = vT + 48
        V = vT + 56
        HP = vT + 64
        TT = vT + 66
        cst = []
        for b in range(6):
            x = LG('ds_read_b128 %s, v%d offset:%d' % (vr(CS + 4 * b, 4), vCS, L_CSQ + b * 64)); cst.append(x.tag); o.append(x)
        o += [P('s_add_u32 s53, s%d, 2' % sW), P('s_lshl_b32 s53, s53, 6'), P('v_add_u32 v%d, s53, v%d' % (TT, vCS))]
        x = LG('ds_read_b128 %s, v%d offset:%d' % (vr(CSH, 4), TT, L_CSQ)); csh = x.tag; o.append(x)

        def ln(acc, cs, pair, dst):
            r = []
            for hh in range(2):
                t = TT + 2 * hh
                r.append(P('v_pk_mul_f32 %s, %s, %s op_sel:[0,1] op_sel_hi:[1,1]' % (vr(t, 2), vr(cs + 2 * hh, 2), vr(pair, 2))))
            for hh in range(2):
                t = TT + 2 * hh
                r.append(P('v_pk_fma_f32 %s, %s, %s, %s op_sel_hi:[1,0,1]' % (vr(t, 2), vr(acc + 2 * hh, 2), vr(pair, 2), vr(t, 2))))
            for hh in range(2):
                t = TT + 2 * hh
                r.append(P('v_cvt_pk_bf16_f32 v%d, v%d, v%d' % (dst + hh, t, t + 1)))
            return r
        wtags = []
        for blk in (4, 5, 2, 3, 0, 1):
            o.append(W(cst[blk]))
            for tb in range(2):
                h = blk % 2
                dst = (Q, K, V)[blk // 2] + (tb * 2 + h) * 2
                pair = self.PQ[tb] if blk < 2 else self.PKV[tb]
                o += ln(self.accP1(blk, tb), CS + 4 * blk, pair, dst)
                if blk >= 4:
                    x = LG('ds_write_b64 v%d, %s offset:%d' % (vEXV, vr(dst, 2), tb * 1024 + h * 512)); o.append(x)
                elif blk >= 2 and tb == 1:
                    x = LG('ds_write_b64 v%d, %s offset:%d' % (vEXK, vr(dst, 2), h * 512)); o.append(x)
            if blk == 3:
                o.append(W(csh))
                o += ln(self.ACC_H, CSH, self.PH, HP)
                o.append(LG('ds_write_b64 v%d, %s' % (vEXH, vr(HP, 2))))
        o += [WALL(False, True), P('s_barrier')]
        KP = vT + 70
        VV = vT + 12
        SC = vACC
        SP = vACC + 16
        PB = vACC + 32
        LL = vT + 24
        OO = vACC + 48
        MX = vT + 74
        rk = []; rv = []
        for h in range(2):
            x = LG('ds_read_b64 %s, v%d offset:%d' % (vr(KP + 2 * h, 2), vRK, h * 512)); rk.append(x.tag); o.append(x)
        for h in range(2):
            x = LG('ds_read_b64_tr_b16 %s, v%d offset:%d' % (vr(VV + 6 * h, 2), vRVP, h * 512)); rv.append(x.tag); o.append(x)
            for tb in range(2):
                x = LG('ds_read_b64_tr_b16 %s, v%d offset:%d' % (vr(VV + 6 * h + 2 + 2 * tb, 2), vRV, tb * 1024 + h * 512)); rv.append(x.tag); o.append(x)
        insts = [(tb, h) for tb in range(2) for h in range(2)]
        for n, (tb, h) in enumerate(insts):
            q = Q + (tb * 2 + h) * 2
            o.append(P('v_mfma_f32_16x16x16_bf16 %s, %s, %s, %s' % (vr(SC + 4 * n, 4), vr(K + (tb * 2 + h) * 2, 2), vr(q, 2), vr(vCCUR, 4))))
        for n, (tb, h) in enumerate(insts):
            q = Q + (tb * 2 + h) * 2
            if tb == 0:
                o.append(W(rk[h]))
                o.append(P('v_mfma_f32_16x16x16_bf16 %s, %s, %s, %s' % (vr(SP + 4 * n, 4), vr(KP + 2 * h, 2), vr(q, 2), vr(vCPA, 4))))
            else:
                o.append(P('v_mfma_f32_16x16x16_bf16 %s, %s, %s, %s' % (vr(SP + 4 * n, 4), vr(K + h * 2, 2), vr(q, 2), vr(vCPREV, 4))))
        for n in range(4):
            for r in range(4):
                o.append(P('v_max_f32 v%d, v%d, v%d' % (SC + 4 * n + r, SC + 4 * n + r, SP + 4 * n + r)))
        for n in range(4):
            o.append(P('v_max3_f32 v%d, v%d, v%d, v%d' % (MX + n, SC + 4 * n, SC + 4 * n + 1, SC + 4 * n + 2)))
        for n in range(4):
            o.append(P('v_max_f32 v%d, v%d, v%d' % (MX + n, MX + n, SC + 4 * n + 3)))
        a, b, c, d = MX, MX + 1, MX + 2, MX + 3
        o += [P('v_permlane32_swap_b32 v%d, v%d' % (a, b)), P('v_permlane32_swap_b32 v%d, v%d' % (c, d)),
              P('v_max_f32 v%d, v%d, v%d' % (a, a, b)), P('v_max_f32 v%d, v%d, v%d' % (c, c, d)),
              P('v_permlane16_swap_b32 v%d, v%d' % (a, c)), P('v_max_f32 v%d, v%d, v%d' % (a, a, c)),
              P('v_mov_b32 v%d, v%d' % (c, a)), P('v_permlane16_swap_b32 v%d, v%d' % (a, c)),
              P('v_mov_b32 v%d, v%d' % (b, a)), P('v_mov_b32 v%d, v%d' % (d, c)),
              P('v_permlane32_swap_b32 v%d, v%d' % (a, b)), P('v_permlane32_swap_b32 v%d, v%d' % (c, d))]
        for n in range(4):
            for hh in range(2):
                o.append(P('v_sub_f32 v%d, v%d, v%d' % (SC + 4 * n + 2 * hh, SC + 4 * n + 2 * hh, MX + n)))
                o.append(P('v_sub_f32 v%d, v%d, v%d' % (SC + 4 * n + 2 * hh + 1, SC + 4 * n + 2 * hh + 1, MX + n)))
        for n in range(4):
            for r in range(4):
                o.append(P('v_exp_f32 v%d, v%d' % (SC + 4 * n + r, SC + 4 * n + r)))
        for n in range(4):
            for hh in range(2):
                o.append(P('v_cvt_pk_bf16_f32 v%d, v%d, v%d' % (SP + 4 * n + hh, SC + 4 * n + 2 * hh, SC + 4 * n + 2 * hh + 1)))
        for n in range(4):
            for hh in range(2):
                o.append(P('v_cndmask_b32_e64 v%d, 0, v%d, s[%d:%d]' % (PB + 4 * n + hh, SP + 4 * n + hh, sUP, sUP + 1)))
                o.append(P('v_cndmask_b32_e64 v%d, v%d, 0, s[%d:%d]' % (PB + 4 * n + 2 + hh, SP + 4 * n + hh, sUP, sUP + 1)))
        o.append(W(rv))
        o.append(P('s_barrier'))
        for n, (tb, h) in enumerate(insts):
            o.append(P('v_mfma_f32_16x16x32_bf16 %s, %s, %s, 0' % (vr(LL + 4 * n, 4), vr(vONES, 4), vr(PB + 4 * n, 4))))
            o.append(P('v_mfma_f32_16x16x32_bf16 %s, %s, %s, 0' % (vr(OO + 4 * n, 4), vr(VV + 6 * h + 2 * tb, 4), vr(PB + 4 * n, 4))))
        for n in range(4):
            o.append(P('v_rcp_f32 v%d, v%d' % (LL + 4 * n, LL + 4 * n)))
        OUTR = vT + 40
        for n, (tb, h) in enumerate(insts):
            for hh in range(2):
                o.append(P('v_pk_mul_f32 %s, %s, %s op_sel_hi:[1,0]' % (vr(OO + 4 * n + 2 * hh, 2), vr(OO + 4 * n + 2 * hh, 2), vr(LL + 4 * n, 2))))
        for n, (tb, h) in enumerate(insts):
            for hh in range(2):
                o.append(P('v_cvt_pk_bf16_f32 v%d, v%d, v%d' % (OUTR + (tb * 2 + h) * 2 + hh, OO + 4 * n + 2 * hh, OO + 4 * n + 2 * hh + 1)))
        if dmas:
            k = min(i for i, x in enumerate(o) if x.text == 's_barrier') + 1
            body = interleave(o[k:], dmas, start=0, every=max(1, (len(o) - k) // (len(dmas) + 1)))
            o = o[:k] + body
        o += [P('s_lshl_b32 s54, s%d, 15' % sW), P('s_add_u32 s53, s54, s%d' % sOF), P('s_lshl_b32 s54, s%d, 10' % sM),
              P('s_add_u32 s53, s53, s54'), P('s_add_u32 s54, s53, 16384')]
        return o, ['buffer_store_dwordx4 %s, v%d, s[28:31], s%d offen' % (vr(OUTR + 4 * tb, 4), vL16, 53 + tb) for tb in range(2)]

    def mode_load(self):
        self.tag_mode = newtag('mode')
        return [P('s_lshr_b32 s53, s%d, 1' % sG), P('s_lshl_b32 s53, s53, 5'), P('s_and_b32 s54, s%d, 1' % sG),
                P('s_lshl_b32 s54, s54, 2'), P('s_add_u32 s%d, s53, s54' % sA),
                P('v_mov_b32 v%d, 0' % vTB),
                VM('buffer_load_dword v%d, v%d, s[36:39], s%d offen sc1' % (vTA, vTB, sA), self.tag_mode)]

    def mode_check(self):
        spin = self.L('rsp'); ok = self.L('rok')
        return [W(self.tag_mode), P('s_mov_b32 s%d, 0' % sTMO),
                P('v_readfirstlane_b32 s54, v%d' % vTA),
                P('s_nop 4'),
                P('s_and_b32 s52, s54, 31'), P('s_cmp_eq_u32 s52, 16'), P('s_cbranch_scc1 %s' % ok),
                LAB(spin),
                P('buffer_load_dword v%d, v%d, s[36:39], s%d offen sc1' % (vTA, vTB, sA)),
                P('s_add_u32 s%d, s%d, 1' % (sTMO, sTMO)),
                P('s_waitcnt vmcnt(0)'),
                P('v_readfirstlane_b32 s54, v%d' % vTA),
                P('s_nop 4'),
                P('s_and_b32 s52, s54, 31'), P('s_cmp_eq_u32 s52, 16'), P('s_cbranch_scc1 %s' % ok),
                P('s_cmp_lt_u32 s%d, 0x100000' % sTMO), P('s_cbranch_scc1 %s' % spin),
                P('s_endpgm'),
                LAB(ok),
                P('s_lshr_b32 s52, s54, 5'), P('s_and_b32 s52, s52, 255'), P('s_mul_i32 s52, s52, s52'),
                P('s_lshr_b32 s54, s54, 13'), P('s_lshl_b32 s54, s54, 4'),
                P('s_cmp_lg_u32 s52, s54'), P('s_cselect_b32 s%d, 1, 0' % sMODE)] + \
            ([P('s_mov_b32 s%d, 1' % sMODE)] if self.cfg.get('force_mixed') else []) + self.set_bases()

    def set_bases(self):
        o = [P('s_mul_i32 s52, s%d, %d' % (sG, ACT_G)), P('s_add_u32 s52, s52, %d' % WS_ACT),
             P('s_mul_i32 s53, s%d, %d' % (sG, 8 * 57344)), P('s_lshl_b32 s54, s%d, 13' % sG),
             P('s_cmp_eq_u32 s%d, %d' % (sMODE, 7 if self.cfg.get('noalias') else 0))]
        def sel(dst, pure_off, mixed_base_s, mixed_imm):
            return [P('s_add_u32 s55, s52, %d' % pure_off), P('s_add_u32 s%d, s%d, %d' % (dst, mixed_base_s, mixed_imm)),
                    P('s_cmp_eq_u32 s%d, %d' % (sMODE, 7 if self.cfg.get('noalias') else 0)),
                    P('s_cselect_b32 s%d, s55, s%d' % (dst, dst))]
        o += sel(sOF, 0, sGBASE, WS_OF) + sel(sAF, 0, 53, WS_AF) + sel(sX1, 458752, sGBASE, WS_XF) + \
            sel(sX2, 458752, sGBASE, WS_XF + XF_K) + sel(sS1, 589824, 54, WS_ST) + sel(sS2, 589824, 54, WS_ST + ST_K)
        for d, v in ((dOF, OF_R), (dAF, AF_R), (dX1, 2 * XF_K), (dS1, 2 * ST_K)):
            o.append(P('s_cselect_b32 s%d, 0, %d' % (d, v)))
        return o

    def gemmB(self, nk, srdW, src_base, nblk, depth, resident, refill_tags_out, exb, pre_extras=None, posf=None, tail=None, post=None, inloop=None):
        o = []
        o += [P('s_and_b32 s52, s%d, 1' % sW), P('s_mul_i32 s52, s52, %d' % (nk * 1024)),
              P('s_add_u32 s52, s52, s%d' % src_base),
              P('s_mul_i32 s53, s%d, %d' % (sTB, nblk * 1024)), P('s_add_u32 s%d, s52, s53' % sB0),
              P('s_xor_b32 s53, s%d, 1' % sTB), P('s_mul_i32 s53, s53, %d' % (nblk * 1024)), P('s_add_u32 s%d, s52, s53' % sB1)]
        xl = self.x_loads(nk, depth=depth)
        pro = min(nk, self.cfg.get('b_pro', 4))
        for t in range(pro):
            o += xl[t][0] + xl[t][1]
        groups = []; n = 0; first_idx = {}; mfidx = 0
        acc = lambda s, fb: vACC + (s * 4 + fb) * 4
        refills = []
        if nk > resident:
            for t in range(resident, nk):
                for kh in range(2):
                    refills.append(self.dma_wo_slot(srdW, nk, t, kh, posf(t)))
        for t in range(nk):
            first_idx[t] = mfidx
            pos = posf(t) if posf else t
            for fb in range(4):
                dst = self.afrag(n); n += 1
                g = dict(pre=[], reads=[], mf=[])
                if fb == 0 and t == resident:
                    g['pre'] += [W(self.vmtags(refills)), P('s_barrier')]
                for part in range(2):
                    a = pos * 8192 + part * 2048
                    win = a >> 16
                    g['reads'].append(LG('ds_read_b64_tr_b16 v[%d:%d], v%d offset:%d' % (dst + 2 * part, dst + 2 * part + 1, vW2A + fb * 3 + win, a & 0xffff)))
                for s in range(2):
                    c = '0' if t == 0 else vr(acc(s, fb), 4)
                    wt = self.vmtags(xl[t][s]) if fb == 0 else []
                    g['mf'].append(('v_mfma_f32_16x16x32_bf16 %s, %s, %s, %s' % (vr(acc(s, fb), 4), vr(dst, 4), ar(((t % depth) * 2 + s) * 4, 4), c), wt))
                mfidx += 2
                groups.append(g)
        extras = []
        last = -1
        for t in range(pro, nk):
            if t < depth:
                at = first_idx[min(nk - 1, (t - pro) // 2)] + 1 + 4 * ((t - pro) % 2)
            else:
                at = first_idx[t - depth] + 7
            at = max(at, last + 1)
            extras.append((at, xl[t][0])); extras.append((at + 1, xl[t][1]))
            last = at + 1
        if inloop:
            for k, d in enumerate(inloop):
                extras.append((last + 2 + self.cfg.get('a2_step', 5) * k, d))
        if refills:
            nfree = nk - resident
            bar_at = first_idx[nfree] - 1
            extras.append((bar_at, [P('s_barrier')]))
            for k, d in enumerate(refills):
                extras.append((first_idx[nfree + k // 3] + 1 + 2 * (k % 3), d))
        if tail:
            allb = [t_ for row in xl for blk in row for t_ in self.vmtags(blk)]
            extras.append((first_idx[resident] - 1, [W(allb), P('s_barrier')]))
            nt_ = nk - resident
            t0_ = self.cfg.get('tail_k0', 0)
            for k, d in enumerate(tail):
                kk = t0_ + k * (nt_ - t0_) // len(tail)
                sk = self.L('tsk')
                extras.append((first_idx[resident + kk] + 1 + 2 * (k % 3),
                               [P('s_cmp_lg_u32 s%d, 0' % sRND), P('s_cbranch_scc1 %s ;nopad' % sk)] + d + [LAB(sk)]))
        if pre_extras and False:
            for k, t in enumerate(pre_extras):
                extras.append((first_idx[min(nk - 1, self.cfg.get('t_p4_k', 16) + 2 * k)] + 4, t))
        extras += self.sched_touches('p4' if nk == 28 else 'p2', first_idx)
        o += self.gemm_loop(groups, self.cfg.get('la', 3), extras)
        o.append(P('s_barrier'))
        o += [P('v_add_u32 v%d, %d, v%d' % (vTA, exb, vEXBW)), P('v_add_u32 v%d, %d, v%d' % (vTB, exb, vEXBR))]
        if post:
            sk = self.L('psk')
            o += [P('s_cmp_lg_u32 s%d, 0' % sRND), P('s_cbranch_scc1 %s ;nopad' % sk)] + self.flat(post) + [LAB(sk)]
        for fb in range(4):
            o.append(LG('ds_write_b128 v%d, %s offset:%d' % (vTA, vr(acc(1, fb), 4), fb * 1024)))
        o += [WALL(False, True), P('s_barrier')]
        PT = vT
        rt = []
        for fb in range(4):
            x = LG('ds_read_b128 %s, v%d offset:%d' % (vr(PT + 4 * fb, 4), vTB, fb * 1024)); rt.append(x.tag); o.append(x)
        U = vT + 16
        for fb in range(4):
            for hh in range(2):
                r = vR + fb * 2 + hh
                o += [P('v_lshlrev_b32 v%d, 16, v%d' % (U + fb * 4 + hh * 2, r)), P('v_and_b32 v%d, 0xffff0000, v%d' % (U + fb * 4 + hh * 2 + 1, r))]
        for fb in range(4):
            for hh in range(2):
                a = acc(0, fb) + 2 * hh
                o.append(P('v_pk_add_f32 %s, %s, %s' % (vr(a, 2), vr(a, 2), vr(U + fb * 4 + 2 * hh, 2))))
        for fb in range(4):
            o.append(W(rt[fb]))
            for hh in range(2):
                a = acc(0, fb) + 2 * hh
                o.append(P('v_pk_add_f32 %s, %s, %s' % (vr(a, 2), vr(a, 2), vr(PT + fb * 4 + 2 * hh, 2))))
        for fb in range(4):
            for hh in range(2):
                a = acc(0, fb) + 2 * hh
                o.append(P('v_cvt_pk_bf16_f32 v%d, v%d, v%d' % (vR + fb * 2 + hh, a, a + 1)))
        return o

    def sw4(self):
        return self.touch_set(self.cfg.get('t_p4', ''), only_r1=True)

    def row_stats(self):
        s1 = vT + 32; s2 = vT + 33
        o = [P('v_mov_b32 v%d, 0' % s1), P('v_mov_b32 v%d, 0' % s2)]
        for k in range(8):
            o += [P('v_dot2c_f32_bf16 v%d, v%d, v%d' % (s1, vR + k, vONES)), P('v_dot2c_f32_bf16 v%d, v%d, v%d' % (s2, vR + k, vR + k))]
        o += self.reduce_g2(s1, s2)
        return o

    def x_stores(self, sx, ss):
        return [P('s_mul_i32 s53, s%d, 16384' % sTB), P('s_add_u32 s53, s53, s%d' % sx), P('s_lshl_b32 s54, s%d, 11' % sCT),
                P('s_add_u32 s53, s53, s54'),
                P('s_lshl_b32 s54, s%d, 10' % sTB), P('s_add_u32 s54, s54, s%d' % ss)]

    def x_store_block(self):
        pure = self.L('stp'); done = self.L('std')
        def body(fl):
            return [P('buffer_store_dwordx4 %s, v%d, s[28:31], s53 offen%s' % (vr(vR, 4), vL16, fl)),
                    P('buffer_store_dwordx4 %s, v%d, s[28:31], s53 offen offset:1024%s' % (vr(vR + 4, 4), vL16, fl)),
                    P('s_mov_b64 exec, 0xffff'),
                    P('buffer_store_dwordx2 %s, v%d, s[28:31], s54 offen%s' % (vr(vT + 32, 2), vSTO, fl)),
                    P('s_mov_b64 exec, -1')]
        o = [P('s_cmp_eq_u32 s%d, 0' % sMODE), P('s_cbranch_scc1 %s' % pure)] + body(' sc1') + \
            [P('s_branch %s' % done), LAB(pure)] + body('') + [LAB(done)]
        cnt = [VM('; counted store') for _ in range(3)]
        return o + cnt, [c.tag for c in cnt]

    def p3(self, extras_w2):
        o = []
        cfg = self.cfg
        for b in range(2):
            o += [P('s_lshl_b32 s53, s%d, 1' % sW), P('s_add_u32 s53, s53, %d' % b), P('s_lshl_b32 s53, s53, 14'),
                  P('s_add_u32 s%d, s53, s%d' % (sB0 + b, sX1))]
        xl = self.x_loads(16)
        pro = cfg.get('x_pro', 4)
        for j in range(pro):
            o += xl[j][0] + xl[j][1]
        stt = []
        STR = vT + 12
        PA = [vT + 0, vT + 2]
        for b in range(2):
            t = newtag('st'); stt.append(t)
            o += [P('s_lshl_b32 s54, s%d, 11' % sW), P('s_add_u32 s53, s54, s%d' % sS1),
                  P('s_add_u32 s53, s53, %d' % (b * 1024)),
                  VM('buffer_load_dwordx4 %s, v%d, s[28:31], s53 offen sc1' % (vr(STR + 4 * b, 4), vL16), t)]
        acc = lambda fb, tb: vACC + (fb * 2 + tb) * 4
        a3 = self.dma_w1_group(3)
        groups = []; n = 0; first_idx = {}; mfidx = 0
        for j in range(16):
            first_idx[j] = mfidx
            base = L_W1P[j // 4] + (j % 4) * 7168
            for fb in range(7):
                dst = self.afrag(n); n += 1
                g = dict(pre=[], reads=[], mf=[])
                if j == 12 and fb == 0:
                    g['pre'] += [W(self.vmtags(a3)), P('s_barrier')]
                for part in range(2):
                    a = base + part * 3584 + fb * 32
                    win = a >> 16
                    g['reads'].append(LG('ds_read_b64_tr_b16 v[%d:%d], v%d offset:%d' % (dst + 2 * part, dst + 2 * part + 1, vW1A + win, a & 0xffff)))
                for tb in range(2):
                    c = '0' if j == 0 else vr(acc(fb, tb), 4)
                    wt = self.vmtags(xl[j][tb]) if fb == 0 else []
                    g['mf'].append(('v_mfma_f32_16x16x32_bf16 %s, %s, %s, %s' % (vr(acc(fb, tb), 4), vr(dst, 4), ar((j * 2 + tb) * 4, 4), c), wt))
                mfidx += 2
                groups.append(g)
        extras = []
        k = 0
        rate = cfg.get('x_rate', 4)
        for j in range(pro, 16):
            for b in range(2):
                extras.append((first_idx[k // rate] + 1 + (14 // rate) * (k % rate), xl[j][b])); k += 1
        at = extras[-1][0] + 2
        for d in a3:
            extras.append((at, d)); at += 4
        st_ops = [W(stt)]
        for b in range(2):
            st_ops += self.stats_from_st(STR + 4 * b, PA[b], scale=LOG2E)
        extras += self.spread(st_ops, first_idx[2] + 2, 1)
        at = max(at, first_idx[9])
        for d in extras_w2:
            extras.append((at, d)); at += cfg.get('w2e_step', 7)
        for k, t in enumerate(self.touch_set(cfg.get('t_p3', 'af'), only_r1=True)):
            extras.append((first_idx[min(15, cfg.get('t_p3_k', 9) + 2 * k)] + 4, t))
        extras += self.sched_touches('p3', first_idx)
        o += self.gemm_loop(groups, cfg.get('la', 3), extras)
        o.append(P('s_barrier'))
        return o, PA

    def cs_w1(self):
        o = []
        A0 = vT + 40; A1 = vT + 44
        ad = vT + 48
        o += [P('s_lshl_b32 s53, s%d, 5' % sW), P('s_add_u32 s54, s%d, 4' % sW), P('s_min_u32 s54, s54, 6'), P('s_lshl_b32 s54, s54, 5')]
        for win in range(3):
            o += [P('v_add_u32 v%d, s53, v%d' % (ad + win, vW1A + win)), P('v_add_u32 v%d, s54, v%d' % (ad + 3 + win, vW1A + win))]
        groups = []; n = 0
        for j in range(16):
            base = L_W1P[j // 4] + (j % 4) * 7168
            for e in range(2):
                dst = self.afrag(n); n += 1
                g = dict(pre=[], reads=[], mf=[])
                for part in range(2):
                    a = base + part * 3584
                    g['reads'].append(LG('ds_read_b64_tr_b16 v[%d:%d], v%d offset:%d' % (dst + 2 * part, dst + 2 * part + 1, ad + 3 * e + (a >> 16), a & 0xffff)))
                accr = A0 if e == 0 else A1
                c = '0' if j == 0 else vr(accr, 4)
                g['mf'].append(('v_mfma_f32_16x16x32_bf16 %s, %s, %s, %s' % (vr(accr, 4), vr(dst, 4), vr(vONES, 4), c), []))
                groups.append(g)
        o += self.gemm_loop(groups, 3, [])
        o += [P('s_lshl_b32 s53, s53, 1'), P('s_lshl_b32 s54, s54, 1'),
              P('v_add_u32 v%d, s53, v%d' % (ad, vCS)), P('v_add_u32 v%d, s54, v%d' % (ad + 1, vCS)),
              P('s_mov_b32 s52, 0x00010001'), P('s_mov_b32 s53, 0x00010001'), P('s_mov_b64 exec, s[52:53]'),
              LG('ds_write_b128 v%d, %s offset:%d' % (ad, vr(A0, 4), L_CS1)),
              LG('ds_write_b128 v%d, %s offset:%d' % (ad + 1, vr(A1, 4), L_CS1)),
              P('s_mov_b64 exec, -1'), WALL(False, True), P('s_barrier')]
        return o

    def p3_epi(self, PA, dmas):
        o = []
        acc = lambda fb, tb: vACC + (fb * 2 + tb) * 4
        CS = vT + 12; BB = vT + 40
        PK = vT + 68
        cst = []
        for fb in range(7):
            x = LG('ds_read_b128 %s, v%d offset:%d' % (vr(CS + 4 * fb, 4), vCS, L_CS1 + fb * 64)); y = LG('ds_read_b128 %s, v%d offset:%d' % (vr(BB + 4 * fb, 4), vCS, L_BB1 + fb * 64))
            cst.append([x.tag, y.tag]); o += [x, y]
        T = vT + 68
        OUTR = lambda tb, fb: vAF + tb * 16 + fb * 2
        body = []
        for fb in range(7):
            body.append(W(cst[fb]))
            prs = [(tb, hh) for tb in range(2) for hh in range(2)]
            E = [T + 2 * k for k in range(4)]; U = [T + 8 + 2 * k for k in range(4)]
            for k, (tb, hh) in enumerate(prs):
                body.append(P('v_pk_fma_f32 %s, %s, %s, %s op_sel:[0,1,0] op_sel_hi:[1,1,1]' % (vr(E[k], 2), vr(CS + 4 * fb + 2 * hh, 2), vr(PA[tb], 2), vr(BB + 4 * fb + 2 * hh, 2))))
            for k, (tb, hh) in enumerate(prs):
                body.append(P('v_pk_fma_f32 %s, %s, %s, %s op_sel_hi:[1,0,1]' % (vr(E[k], 2), vr(acc(fb, tb) + 2 * hh, 2), vr(PA[tb], 2), vr(E[k], 2))))
            for k in range(4):
                body += [P('v_exp_f32 v%d, v%d' % (U[k], E[k])), P('v_exp_f32 v%d, v%d' % (U[k] + 1, E[k] + 1))]
            for k in range(4):
                body.append(P('v_pk_add_f32 %s, %s, s[%d:%d]' % (vr(U[k], 2), vr(U[k], 2), sONE, sONE + 1)))
            for k in range(4):
                body.append(P('v_pk_fma_f32 %s, %s, %s, s[%d:%d]' % (vr(U[k], 2), vr(U[k], 2), vr(U[k], 2), sONE, sONE + 1)))
            for k in range(4):
                body += [P('v_rcp_f32 v%d, v%d' % (U[k], U[k])), P('v_rcp_f32 v%d, v%d' % (U[k] + 1, U[k] + 1))]
            for k in range(4):
                body.append(P('v_pk_fma_f32 %s, %s, s[%d:%d], %s' % (vr(U[k], 2), vr(U[k], 2), sM2L, sM2L + 1, vr(vLN2, 2))))
            for k in range(4):
                body.append(P('v_pk_mul_f32 %s, %s, %s' % (vr(E[k], 2), vr(E[k], 2), vr(U[k], 2))))
            for k, (tb, hh) in enumerate(prs):
                body.append(P('v_cvt_pk_bf16_f32 v%d, v%d, v%d' % (OUTR(tb, fb) + hh, E[k], E[k] + 1)))
        if dmas:
            body = interleave(body, dmas, start=4, every=max(1, (len(body) - 8) // (len(dmas) + 1)))
        o += body
        o += [P('s_lshr_b32 s52, s%d, 1' % sM), P('s_mul_i32 s52, s52, 7168'), P('s_add_u32 s52, s52, s%d' % sAF),
              P('s_mul_i32 s53, s%d, %d' % (sW, 2 * 57344)), P('s_add_u32 s52, s52, s53'),
              P('s_add_u32 s53, s52, 57344'), P('s_add_u32 s54, s52, 4096'), P('s_add_u32 s55, s53, 4096')]
        def variant(odd, fl):
            r = []
            for tb in range(2):
                b0 = 52 + tb; b1 = 54 + tb
                if not odd:
                    for u in range(3):
                        r.append(P('buffer_store_dwordx4 %s, v%d, s[28:31], s%d offen offset:%d%s' % (vr(OUTR(tb, 2 * u), 4), vL16, b0, u * 1024, fl)))
                    r.append(P('buffer_store_dwordx2 %s, v%d, s[28:31], s%d offen offset:%d%s' % (vr(OUTR(tb, 6), 2), vL16, b0, 3072, fl)))
                else:
                    r.append(P('buffer_store_dwordx2 %s, v%d, s[28:31], s%d offen offset:%d%s' % (vr(OUTR(tb, 0), 2), vL16, b0, 3072 + 8, fl)))
                    for u in range(3):
                        r.append(P('buffer_store_dwordx4 %s, v%d, s[28:31], s%d offen offset:%d%s' % (vr(OUTR(tb, 2 * u + 1), 4), vL16, b1, u * 1024, fl)))
            return r
        l_odd = self.L('odd'); l_e1 = self.L('e1'); l_o1 = self.L('o1'); done = self.L('dn')
        o += [P('s_bitcmp1_b32 s%d, 0' % sM), P('s_cbranch_scc1 %s' % l_odd),
              P('s_cmp_eq_u32 s%d, 0' % sMODE), P('s_cbranch_scc1 %s' % l_e1)] + variant(False, ' sc1') + [P('s_branch %s' % done), LAB(l_e1)] + \
            variant(False, '') + [P('s_branch %s' % done), LAB(l_odd),
              P('s_cmp_eq_u32 s%d, 0' % sMODE), P('s_cbranch_scc1 %s' % l_o1)] + variant(True, ' sc1') + [P('s_branch %s' % done), LAB(l_o1)] + \
            variant(True, '') + [LAB(done)]
        cnt = [VM('; counted store') for _ in range(8)]
        return o + cnt, [c.tag for c in cnt]

    def build(self):
        cfg = self.cfg
        stop = cfg.get('stop', 99)
        o = self.add
        self.prologue()
        o(self.ts(0))
        self.p1a()
        o(self.ts(1))
        o(W(self.tag_res))
        if cfg.get('a0_early', 1):
            o(self.dma_w1_group(0))
        o(LAB('L_P1EPI'))
        wo = [self.dma_wo_slot(SRD_WO, 8, t, kh, t) for t in range(8) for kh in range(2)]
        w1a0 = self.dma_w1_group(0)
        epi, stores = self.p1_epi(wo + ([] if cfg.get('a0_early', 1) else w1a0))
        o(epi)
        ds, tags = self.dual_store(stores)
        o(ds)
        o(self.ts(2, True))
        o(P('s_lshl_b32 s%d, s%d, 2' % (sTGT, sRND)))
        o(self.sync_dyn(1, tags, pre_r1=self.dma_w1_group(1)) if cfg.get('a1_tail', 1) else self.sync_dyn(1, tags, pre=self.dma_w1_group(1)))
        o(self.ts(3, True))
        if stop == 1:
            o(P('s_branch L_END'))
        o(self.gemmB(8, SRD_WO, sOF, 16, 8, 8, None, L_EXB2, inloop=self.dma_w1_group(2) if cfg.get('a2_p2', 1) else None))
        o(self.ts(4, True))
        o(self.row_stats())
        o(self.x_stores(sX1, sS1))
        ds, tags = self.x_store_block()
        o(ds)
        o(self.sync_dyn(2, tags, pre=None if cfg.get('a2_p2', 1) else self.dma_w1_group(2)))
        o(self.ts(5, True))
        if stop == 2:
            o(P('s_branch L_END'))
        w2_early = [self.dma_wo_slot(SRD_W2, 28, W2_T_AT[p], kh, p) for p in range(5) for kh in range(2)]
        body, PA = self.p3(w2_early)
        o(body)
        skip = self.L('cs1')
        o(P('s_cmp_lg_u32 s%d, 0' % sRND), P('s_cbranch_scc1 %s' % skip))
        o(self.cs_w1())
        o(LAB(skip))
        o(self.ts(6, True))
        n_epi = cfg.get('w2_epi_p', 15)
        w2_epi = [self.dma_wo_slot(SRD_W2, 28, W2_T_AT[p], kh, p) for p in range(5, n_epi) for kh in range(2)]
        epi, tags = self.p3_epi(PA, w2_epi)
        o(epi)
        o(self.ts(7, True))
        o(self.sync_dyn(3, tags, pre=[self.dma_wo_slot(SRD_W2, 28, W2_T_AT[p], kh, p) for p in range(n_epi, 19) for kh in range(2)]))
        o(self.ts(8, True))
        if stop == 3:
            o(P('s_branch L_END'))
        wq_tail = self.dma_wq_quarter(0, src=None) + self.dma_wq_quarter(1, src=None) + self.dma_wq_quarter(2, src=None) + self.dma_wq_quarter(3, panels=(2,), src=None)
        wq_post = self.dma_wq_quarter(3, panels=(0, 1), src=None)
        o(self.gemmB(28, SRD_W2, sAF, 56, 16, 19, None, L_EXB4, pre_extras=self.sw4(), posf=w2pos, tail=wq_tail, post=wq_post))
        o(self.ts(9, True))
        o(P('s_cmp_lg_u32 s%d, 0' % sRND), P('s_cbranch_scc1 L_FINAL'))
        o(self.row_stats())
        o(self.x_stores(sX2, sS2))
        ds, tags = self.x_store_block()
        o(ds)
        ht = [newtag('hs') for _ in range(3)]
        o(P('s_add_u32 s52, s%d, 1' % sG), P('s_lshl_b32 s53, s52, 14'), P('s_lshl_b32 s54, s%d, 11' % sCT),
          P('s_add_u32 s53, s53, s54'), P('s_add_u32 s53, s53, %d' % WS_HF),
          P('s_lshl_b32 s54, s52, 10'), P('s_add_u32 s54, s54, %d' % WS_HST),
          VM('buffer_store_dwordx4 %s, v%d, s[28:31], s53 offen sc1' % (vr(vR, 4), vHOF), ht[0]),
          VM('buffer_store_dwordx4 %s, v%d, s[28:31], s53 offen offset:1024 sc1' % (vr(vR + 4, 4), vHOF), ht[1]),
          VM('buffer_store_dwordx2 %s, v%d, s[28:31], s54 offen sc1' % (vr(vT + 32, 2), vHST), ht[2]))
        self.halo_store_tags = ht
        o(self.sync_dyn(4, tags))
        o(self.ts(10))
        if stop == 4:
            o(P('s_branch L_END'))
        o(P('s_mov_b32 s%d, 1' % sRND), P('s_add_u32 s%d, s%d, s%d' % (sOF, sOF, dOF)), P('s_add_u32 s%d, s%d, s%d' % (sAF, sAF, dAF)),
          P('s_add_u32 s%d, s%d, s%d' % (sX1, sX1, dX1)), P('s_add_u32 s%d, s%d, s%d' % (sS1, sS1, dS1)))
        self.p1b()
        o(self.ts(27))
        o(WALL(False, True))
        o(P('s_branch L_P1EPI'))
        o(LAB('L_FINAL'))
        for u in range(2):
            o(P('v_permlane16_swap_b32 v%d, v%d' % (vR + 4 * u, vR + 4 * u + 2)), P('v_permlane16_swap_b32 v%d, v%d' % (vR + 4 * u + 1, vR + 4 * u + 3)))
        for u in range(2):
            o(VM('buffer_store_dwordx4 %s, v%d, s[32:35], s61 offen offset:%d' % (vr(vR + 4 * u, 4), vOUT, u * 64)))
        o(self.ts(28), self.ts_flush())
        o(LAB('L_END'), P('s_endpgm'))

    def sync_dyn(self, ph, tags, window=None, pre=None, pre_r1=None):
        if pre_r1:
            l2 = self.L('pr2'); l3 = self.L('pr3')
            raw = [P(x.text) for x in self.flat(pre_r1)]
            nd = sum(1 for x in self.flat(pre_r1) if x.kind == 'vm')
            o = [P('s_cmp_lg_u32 s%d, 0' % sRND), P('s_cbranch_scc1 %s' % l2)] + raw + [P('s_waitcnt vmcnt(%d)' % nd), P('s_branch %s' % l3),
                 LAB(l2), P('s_waitcnt vmcnt(0)'), LAB(l3), MARK(tags)]
        else:
            o = self.flat(pre or []) + [W(tags)]
        if self.cfg.get('sts'):
            o += self.ts(48 + 4 * (ph - 1))
        pure = self.L('fp'); done = self.L('fd')
        o += [P('s_add_u32 s52, s%d, %d' % (sTGT, ph)),
              P('v_mov_b32 v%d, s52' % (vTA)), P('v_mov_b32 v%d, 0' % (vTB)),
              P('s_mov_b64 exec, 1'),
              P('s_cmp_eq_u32 s%d, 0' % sMODE), P('s_cbranch_scc1 %s' % pure),
              P('buffer_store_dword v%d, v%d, s[28:31], s%d offen sc1' % (vTA, vTB, sFLGOFF)),
              P('s_branch %s' % done), LAB(pure),
              P('buffer_store_dword v%d, v%d, s[28:31], s%d offen' % (vTA, vTB, sFLGOFF)),
              LAB(done), VM('; flag store counted'),
              P('s_mov_b64 exec, -1')]
        other = self.L('so'); join = self.L('sj'); loop = self.L('sp')
        o += [P('s_cmp_lg_u32 s%d, 0' % sW), P('s_cbranch_scc1 %s' % other),
              P('v_lshlrev_b32 v%d, 2, v%d' % (vTB, vLANE)),
              P('s_mov_b32 s%d, 0' % sTMO),
              LAB(loop),
              P('buffer_load_dword v%d, v%d, s[28:31], s%d offen sc1' % (vTA, vTB, sGFLG)),
              P('s_add_u32 s%d, s%d, 1' % (sTMO, sTMO)),
              P('s_waitcnt vmcnt(0)'),
              P('v_cmp_gt_u32 vcc, s52, v%d' % (vTA)),
              P('s_cbranch_vccz %s' % join),
              P('s_cmp_lt_u32 s%d, 0x100000' % sTMO),
              P('s_cbranch_scc1 %s' % loop),
              P('s_endpgm'),
              LAB(other)]
        if window and not self.cfg.get('nowin'):
            o += window
        o += [LAB(join)]
        if self.cfg.get('sts'):
            o += self.ts(49 + 4 * (ph - 1)) + [WALL(True, True)] + self.ts(50 + 4 * (ph - 1))
        if self.cfg.get('halo_nowait') and ph == 4:
            o += [WALL(True, True)]
        else:
            o += [WALL(True, True)]
        o += [P('s_barrier')]
        return o

    def text(self):
        self.build()
        body = self.p.render()
        body = [l for l in body if not l.strip().startswith('; counted') and not l.strip().startswith('; flag store')]
        hdr = open('interleave_layers__sliding_local_dilated__dense_activation_mish__prompt.s.ref').read().split('\n')
        head = []
        for l in hdr:
            if l.startswith('; Override') or l.startswith('; grid=') or l.startswith('; @launch'):
                continue
            if l.startswith('.amdgcn_target'):
                break
            head.append(l)
        out = head + ['; @launch grid=(256,1,1) block=(256,1,1) lds=%d' % LDS_BYTES,
                      '.amdgcn_target "amdgcn-amd-amdhsa--gfx950"', '.text', '.globl ' + KNAME, '.p2align 8',
                      '.type %s,@function' % KNAME, KNAME + ':']
        out += body
        out += ['.section .rodata,"a"', '.p2align 6', '.amdhsa_kernel ' + KNAME,
                '  .amdhsa_next_free_vgpr 512', '  .amdhsa_next_free_sgpr 102', '  .amdhsa_accum_offset 256',
                '  .amdhsa_group_segment_fixed_size 0', '  .amdhsa_kernarg_size 80', '  .amdhsa_user_sgpr_count 2',
                '  .amdhsa_user_sgpr_kernarg_segment_ptr 1', '  .amdhsa_system_sgpr_workgroup_id_x 1',
                '  .amdhsa_float_denorm_mode_32 3', '.end_amdhsa_kernel', '']
        return '\n'.join(out)


if __name__ == '__main__':
    cfg = {}
    outp = sys.argv[1]
    for a in sys.argv[2:]:
        k, v = a.split('=')
        try:
            cfg[k] = int(v)
        except ValueError:
            cfg[k] = v
    g = Gen(cfg)
    t = g.text()
    open(outp, 'w').write(t)
    print('wrote', outp, len(t), 'bytes;', 'nops padded:', g.p.npad)
```

```python
import sys, math
from asmlib import *

KNAME = 'interleave_layers__sliding_local_dilated__dense_activation_mish__prompt_kernel'

WS_FLG = 0x0000
WS_HFL = 0x1000
WS_TS = 0x2000
WS_ST = 0x10000
WS_HST = 0x80000
WS_HF = 0x90000
WS_XF = 0x100000
WS_OF = 0x800000
WS_AF = 0x1000000
WS_ACT = 0x2000000
ACT_G = 0x92000
WS_SIZE = 0x2A00000
ST_K = 0x20000; XF_K = 0x200000; OF_R = 0x200000; AF_R = 0x800000

L_CSQ = 0
L_CS1 = 384
L_BB1 = 832
L_W = 2048
L_HALO = 100352
L_RING = 116736
L_EX = 67584
L_EXK = L_EX + 9216
L_W1P = [135168, 106496, 77824, 49152]
L_EXB2 = 2048
L_EXB4 = 100352
LDS_BYTES = 163840
W2_PA = [12, 13, 14, 15, 16, 17, 18, 3, 7]
W2_PB = [0, 1, 2, 4, 5, 6, 8, 9, 10, 11]
def w2pos(t):
    return W2_PA[t] if t < 9 else (W2_PB[t - 9] if t < 19 else W2_PA[t - 19])
W2_T_AT = {w2pos(t): t for t in range(19)}

LOG2E = 1.4426950408889634
LN2 = 0.6931471805599453


def f32(x):
    import struct
    return '0x%08x' % struct.unpack('<I', struct.pack('<f', x))[0]


sRND = 3; sG = 4; sM = 5; sW = 6; sMODE = 7
SRD_X = 8; SRD_WQ = 12; SRD_WO = 16; SRD_W1 = 20; SRD_W2 = 24; SRD_WS = 28; SRD_OUT = 32; SRD_DBG = 36; SRD_B1 = 40
sXCC = 44
sWQ_SRC = 45
sW1K = 46
sWO_SRC = 47
sW1_SRC = 48
sW1_M = 49
sB0 = 50; sB1 = 51
sT0 = 52; sT1 = 53; sT2 = 54; sT3 = 55
sFLGOFF = 56
sGFLG = 57
sST = 58
sTH = 59; sCT = 60
sONE = 62
sM2L = 64
sUP = 66
sMA = 68; sMB = 70; sMC = 72; sMD = 74
sIT = 76; sTMO = 77; sTGT = 78; sA = 79; sB = 80; sC = 81; sD = 82
sXR0 = 83; sXR1 = 84
sHSRC = 85
sTB = 86
sGBASE = 87
sTS = 88
sTSO = 90
sOF = 94; sAF = 95; sX1 = 96; sS1 = 97; sX2 = 98; sS2 = 99
sTUX = 100; sTUG = 101
dOF = 83; dAF = 84; dX1 = 85; dS1 = 82
sXL0 = 92; sXL1 = 93

vLANE = 0; vL16 = 1
vR = 2
vONES = 10
vWQA = 14
vE1 = 18; vE2 = 19
vW1A = 20
vW2A = 23
vDQ = 35; vDO = 36; vD1 = 37
vCS = 44
vL128 = 45
vDUM = 247
vCCUR = 46; vCPREV = 50; vCPA = 54
vEXV = 58; vEXK = 59; vEXH = 60; vRVP = 61; vRV = 62; vRK = 63
vLN2 = 64
vEXBW = 66; vEXBR = 67
vSTO = 68
vHOF = 69
vHST = 70
vOUT = 71
vAF = 72
NAF = 6
vACC = 104
vT = 168
vTA = 254; vTB = 255
vDUMMY = 246
vDX = 240; vDH = 241; vXA = 242; vXB = 243; vHXA = 244; vHXB = 245


class Gen:
    def __init__(self, cfg):
        self.cfg = cfg
        self.p = Prog()
        self.lbl = 0

    def L(self, name):
        self.lbl += 1
        return '%s_%d' % (name, self.lbl)

    def add(self, *a):
        self.p.add(*a)

    def ts(self, idx, rnd=False):
        if not self.cfg.get('ts'):
            return []
        o = [P('s_memrealtime s[92:93]' if self.cfg.get('ts') == 1 else 's_memtime s[92:93]')]
        if rnd:
            o += [P('s_lshl_b32 s91, s%d, 4' % sRND), P('s_add_u32 s91, s91, %d' % idx), P('s_mov_b32 m0, s91'),
                  P('s_waitcnt lgkmcnt(0)'), P('v_writelane_b32 v103, s92, m0')]
        else:
            o += [P('s_waitcnt lgkmcnt(0)'), P('v_writelane_b32 v103, s92, %d' % idx)]
        return o

    def ts_flush(self):
        if not self.cfg.get('ts'):
            return []
        if self.cfg.get('dbgts'):
            o = [P('s_memrealtime s[92:93]'), P('s_waitcnt lgkmcnt(0)'), P('v_readlane_b32 s53, v103, 12'), P('s_nop 4'), P('s_sub_u32 s52, s92, s53'),
                 P('v_writelane_b32 v103, s52, 63')]
            lanes = [1, 2, 10, 27, 28, 63, 6, 9]
            words = [4, 5, 6, 7, 12, 13, 14, 15]
            o += [P('v_readlane_b32 s54, v103, 13')]
            for ln, wd in zip(lanes, words):
                o += [P('v_readlane_b32 s52, v103, %d' % ln), P('s_nop 4')]
                if ln != 63:
                    o += [P('s_sub_u32 s52, s52, s54')]
                o += [P('v_writelane_b32 v252, s52, %d' % wd)]
            o += [P('v_lshlrev_b32 v253, 2, v%d' % vLANE), P('s_cmp_eq_u32 s2, 0'), P('s_cselect_b32 s52, 0, 1'), P('s_or_b32 s52, s52, s%d' % sW),
                  P('s_cmp_eq_u32 s52, 0'), P('s_cselect_b32 s52, 0xf0f0, 0'), P('s_mov_b32 exec_lo, s52'), P('s_mov_b32 exec_hi, 0'),
                  P('s_cbranch_execz L_TSD'),
                  VM('buffer_store_dword v252, v253, s[36:39], 0 offen'), LAB('L_TSD'), P('s_mov_b64 exec, -1')]
            return o
        return [P('v_lshlrev_b32 v252, 2, v%d' % vLANE), VM('buffer_store_dword v103, v252, s[28:31], s90 offen')]

    def dma(self, srd, voff, src_s, src_imm, lds_s, lds_imm, tag=None, st=None):
        st = st if st is not None else sT0
        ops = []
        if lds_s is None:
            ops.append(P('s_mov_b32 m0, %d' % lds_imm))
        else:
            ops.append(P('s_add_u32 m0, s%d, %d' % (lds_s, lds_imm)))
        if src_s is None:
            ops.append(P('s_mov_b32 s%d, %d' % (st, src_imm)))
        else:
            ops.append(P('s_add_u32 s%d, s%d, %d' % (st, src_s, src_imm)))
        if self.cfg.get('nodma') and srd in (SRD_WO, SRD_W1, SRD_W2):
            ops.append(P('s_nop 0'))
            return ops
        nt = ' nt' if (self.cfg.get('nt') and srd in (SRD_W1, SRD_W2)) else ''
        ops.append(VM('buffer_load_dwordx4 v%d, s[%d:%d], s%d offen%s lds' % (voff, srd, srd + 3, st, nt), tag))
        return ops

    def touch(self, srd, unit_s, imm, limit=None, only_r1=False):
        ops = []
        if limit is not None:
            ops += [P('s_add_u32 s55, s%d, %d' % (unit_s, imm[0])), P('s_cmp_lt_u32 s%d, %d' % (unit_s, limit)),
                    P('s_cselect_b32 s55, s55, 0x7ff00000')]
            if imm[1] is not None:
                ops.insert(1, P('s_add_u32 s55, s55, s%d' % imm[1]))
        else:
            ops.append(P('s_add_u32 s55, s%d, %d' % (unit_s, imm)))
        if only_r1:
            ops += [P('s_cmp_eq_u32 s%d, 0' % sRND), P('s_cselect_b32 s55, s55, 0x7ff00000')]
        ops.append(VM('buffer_load_dword a255, v%d, s[%d:%d], s55 offen' % (vL128, srd, srd + 3)))
        return ops

    def touch_w(self, name, only_r1=False):
        srd, size = {'wq': (SRD_WQ, 512 * 3072), 'wo': (SRD_WO, 524288), 'w1': (SRD_W1, 512 * 3584), 'w2': (SRD_W2, 1792 * 1024)}[name]
        return [self.touch(srd, sTUX, k * 0x100000, only_r1=only_r1) for k in range((size + 0xfffff) // 0x100000)]

    def touch_act(self, off, nbytes):
        return [self.touch(SRD_WS, sTUG, (WS_ACT + off, sST), limit=nbytes)]

    def touch_range(self, name, lo, hi, rounds='12'):
        srd = {'wq': SRD_WQ, 'wo': SRD_WO, 'w1': SRD_W1, 'w2': SRD_W2}[name]
        unit = -(-(hi - lo) // (128 * 128)) * 128
        assert unit <= 8192
        nl = unit // 128
        ops = [P('s_lshr_b32 s55, s%d, 13' % sTUX), P('s_mul_i32 s55, s55, %d' % unit), P('s_add_u32 s55, s55, %d' % lo)]
        if rounds != '12':
            ops += [P('s_cmp_eq_u32 s%d, %d' % (sRND, 0 if rounds == '1' else 1)), P('s_cselect_b32 s55, s55, 0x7ff00000')]
        if nl < 64:
            m = (1 << nl) - 1
            ops += [P('s_mov_b32 exec_lo, 0x%x' % (m & 0xffffffff)), P('s_mov_b32 exec_hi, 0x%x' % (m >> 32))]
        ops.append(VM('buffer_load_dword a255, v%d, s[%d:%d], s55 offen' % (vL128, srd, srd + 3)))
        if nl < 64:
            ops.append(P('s_mov_b64 exec, -1'))
        return ops

    def sched_touches(self, phase, first_idx):
        out = []
        for e in str(self.cfg.get('tch', '')).split('+'):
            if not e:
                continue
            f = e.split('.')
            if f[0] != phase:
                continue
            k = int(f[1]); name = f[2]
            if name in ('of', 'af', 'xf'):
                ops = self.touch_set(name)[0]
            else:
                ops = self.touch_range(name, int(f[3]) * 1024, int(f[4]) * 1024, f[5] if len(f) > 5 else '12')
            out.append((first_idx[k] + 3, ops))
        return out

    def touch_act_even(self, off, n):
        unit = -(-n // (64 * 128)) * 128
        nl = unit // 128
        assert nl <= 64
        ops = [P('s_lshr_b32 s55, s%d, 13' % sTUG), P('s_mul_i32 s55, s55, %d' % unit), P('s_add_u32 s55, s55, s%d' % sST),
               P('s_add_u32 s55, s55, %d' % (WS_ACT + off))]
        if nl < 64:
            m = (1 << nl) - 1
            ops += [P('s_mov_b32 exec_lo, 0x%x' % (m & 0xffffffff)), P('s_mov_b32 exec_hi, 0x%x' % (m >> 32))]
        ops.append(VM('buffer_load_dword a255, v%d, s[28:31], s55 offen' % vL128))
        if nl < 64:
            ops.append(P('s_mov_b64 exec, -1'))
        return ops

    def touch_code(self, lab0, lab1, base, nl=1):
        return [P('s_lshr_b32 s55, s%d, 13' % sTUX), P('s_mul_i32 s55, s55, %d' % (nl * 128)),
                P('v_add_u32 v%d, s55, v%d' % (253, vL128)),
                P('v_add_u32 v%d, %s-L_PC, v%d' % (253, lab0, 253)),
                P('v_min_u32 v%d, %s-L_PC, v%d' % (253, lab1, 253)),
                P('s_mov_b64 exec, %d' % ((1 << nl) - 1)),
                VM('global_load_dword a255, v%d, s[%d:%d]' % (253, base, base + 1)),
                P('s_mov_b64 exec, -1')]

    def touch_mall(self):
        o = [P('s_lshl_b32 s54, s2, 2'), P('s_add_u32 s54, s54, s%d' % sW)]
        for srd, first, n in ((SRD_W1, 0, 224), (SRD_W2, 256, 224), (SRD_WO, 512, 64)):
            o += [P('s_sub_u32 s55, s54, %d' % first), P('s_cmp_lt_u32 s55, %d' % n), P('s_cselect_b32 s55, s55, 0x3ff80'),
                  P('s_lshl_b32 s55, s55, 13'),
                  VM('buffer_load_dword a255, v%d, s[%d:%d], s55 offen' % (vL128, srd, srd + 3))]
        return o

    def touch_set(self, spec, only_r1=False):
        out = []
        for name in spec.split(','):
            if not name:
                continue
            if name == 'of':
                out.append(self.touch_act_even(0, 131072))
            elif name == 'af':
                out.append(self.touch_act_even(131072, 458752 - 131072))
            elif name == 'xf':
                out.append(self.touch_act_even(458752, 139264))
            else:
                out += self.touch_w(name, only_r1)
        return out

    def dma_wq_quarter(self, qd, panels=(0, 1, 2), src=None):
        out = []
        for a in range(2):
            for p in panels:
                rg = 8 * qd + 4 * a
                out.append(self.dma(SRD_WQ, vDQ, src if src is not None else sWQ_SRC, rg * 49152 + p * 1024, sW1K, L_W + p * 32768 + rg * 1024))
        return out

    def dma_wo_slot(self, srd, nk, t, kh, pos):
        js = kh * nk + t
        return self.dma(srd, vDO, sWO_SRC, js * 32768, sW1K, L_W + (2 * pos + kh) * 4096)

    def dma_w1_group(self, a):
        out = []
        for u in range(7):
            out.append(self.dma(SRD_W1, vD1 + u, sW1_SRC, a * 4 * 32 * 3584, sW1_M, L_W1P[a] + u * 1024))
        return out

    def window_loop(self, n0, n1, srd, srcA_s, srcA_imm, srcB, ldsC, ldsD, subs):
        lab = self.L('win'); end = self.L('winend')
        o = [P('s_add_u32 s%d, s%d, %d' % (sIT, sW, n0 - 1)),
             P('s_cmp_ge_u32 s%d, %d' % (sIT, n1)),
             P('s_cbranch_scc1 %s' % end),
             LAB(lab),
             P('s_mul_i32 s%d, s%d, %d' % (sA, sIT, srcB))]
        if srcA_s is not None:
            o.append(P('s_add_u32 s%d, s%d, s%d' % (sA, sA, srcA_s)))
        o.append(P('s_add_u32 s%d, s%d, %d' % (sA, sA, srcA_imm)))
        o.append(P('s_mul_i32 s%d, s%d, %d' % (sB, sIT, ldsD)))
        for (voff, so, lo) in subs:
            o.append(P('s_add_u32 m0, s%d, %d' % (sB, ldsC + lo)))
            o.append(P('s_add_u32 s%d, s%d, %d' % (sT0, sA, so)))
            nt = ' nt' if (self.cfg.get('nt') and srd in (SRD_W1, SRD_W2)) else ''
            if self.cfg.get('nodma'):
                o.append(P('s_nop 0'))
            else:
                o.append(P('buffer_load_dwordx4 v%d, s[%d:%d], s%d offen%s lds' % (voff, srd, srd + 3, sT0, nt)))
        o += [P('s_add_u32 s%d, s%d, 3' % (sIT, sIT)),
              P('s_cmp_lt_u32 s%d, %d' % (sIT, n1)),
              P('s_cbranch_scc1 %s' % lab),
              LAB(end)]
        return o

    def win_wq(self, rg0, rg1):
        return [P('s_lshl_b32 s%d, s%d, 6' % (sC, sM))] + self.window_loop(
            rg0, rg1, SRD_WQ, sC, 0, 49152, L_W, 1024, [(vDQ, p * 1024, p * 32768) for p in range(3)])

    def win_wo(self, srd, nk, t0, t1, dpos=0):
        subs = []
        for kh in range(2):
            for q in range(4):
                subs.append((vDO, kh * nk * 32768 + q * 8192, kh * 4096 + q * 1024))
        return [P('s_lshl_b32 s%d, s%d, 7' % (sC, sCT))] + self.window_loop(
            t0, t1, srd, sC, 0, 32768, L_W + dpos * 8192, 8192, subs)

    def win_w1(self, j0, j1):
        a = j0 // 4
        base = L_W1P[a] - j0 * 7168
        for j in range(j0, j1):
            assert L_W1P[j // 4] + (j % 4) * 7168 == base + j * 7168
        return [P('s_mul_i32 s%d, s%d, 224' % (sC, sM))] + self.window_loop(
            j0, j1, SRD_W1, sC, 0, 32 * 3584, base, 7168, [(vD1 + u, 0, u * 1024) for u in range(7)])

    def gemm_loop(self, groups, LA, extras):
        out = []
        n = len(groups)
        for k in range(min(LA, n)):
            out += groups[k].get('pre', []) + groups[k]['reads']
        flat = []
        for gi, g in enumerate(groups):
            rq = []
            if gi + LA < n:
                rq = list(groups[gi + LA].get('pre', [])) + list(groups[gi + LA]['reads'])
            nm = len(g['mf'])
            chunks = [[] for _ in range(nm)]
            reads_total = sum(1 for x in rq if x.kind == 'lg')
            per = max(1, -(-reads_total // nm))
            c = 0; cnt = 0
            for x in rq:
                chunks[min(c, nm - 1)].append(x)
                if x.kind == 'lg':
                    cnt += 1
                    if cnt == per:
                        cnt = 0; c += 1
            for k, (text, waits) in enumerate(g['mf']):
                w = list(waits)
                if k == 0:
                    w += [x.tag for x in g['reads']]
                flat.append((text, w, g.get('premf', []) if k == 0 else [], chunks[k]))
        extras = sorted(extras, key=lambda e: e[0])
        ei = 0
        for idx, (text, w, premf, chunk) in enumerate(flat):
            if idx == 0:
                out += premf + [W(w)]
            out.append(P(text))
            if idx + 1 < len(flat):
                out += flat[idx + 1][2]
                out.append(W(flat[idx + 1][1]))
            out += chunk
            k = 0
            while ei < len(extras) and extras[ei][0] <= idx and k < self.cfg.get('extra_per', 1):
                out += extras[ei][1]
                ei += 1; k += 1
        while ei < len(extras):
            out += extras[ei][1]; ei += 1
        return out

    @staticmethod
    def flat(ops):
        out = []
        for x in ops:
            if x is None:
                continue
            if isinstance(x, (list, tuple)):
                out += Gen.flat(x)
            else:
                out.append(x)
        return out

    def spread(self, ops, start, step=1, nvec=1):
        out = []; cur = []; nv = 0; at = start
        ops = self.flat(ops)
        for i, x in enumerate(ops):
            cur.append(x)
            t = x.text or ''
            if t.startswith('v_') or t.startswith('buffer_') or t.startswith('ds_'):
                nv += 1
                nxt = (ops[i + 1].text or '') if i + 1 < len(ops) else ''
                glued = (t.startswith('v_cmp') and ' vcc,' in t) or (nxt.startswith('v_cndmask') and nxt.rstrip().endswith('vcc'))
                if nv >= nvec and not glued:
                    out.append((at, cur)); cur = []; nv = 0; at += step
        if cur:
            out.append((at, cur))
        return out

    def afrag(self, n):
        return vAF + (n % NAF) * 4

    def prologue(self):
        cfg = self.cfg
        o = self.add
        o(P('s_cmp_ge_u32 s2, 256'), P('s_cbranch_scc1 L_END'))
        if cfg.get('ts'):
            o(P('v_mov_b32 v103, 0'), self.ts(13))
            if cfg.get('dbgts'):
                o(P('s_memrealtime s[92:93]'), P('s_waitcnt lgkmcnt(0)'), P('v_writelane_b32 v103, s92, 12'))
        o(P('s_load_dwordx16 s[72:87], s[0:1], 0'), P('s_load_dwordx4 s[88:91], s[0:1], 64'))
        if cfg.get('t_code', 1):
            nl = cfg.get('code_nl', 2 if cfg.get('code_staged', 1) else 3)
            o(P('s_getpc_b64 s[50:51]'), LAB('L_PC'),
              P('s_lshr_b32 s52, s2, 3'), P('s_mul_i32 s52, s52, %d' % (4 * nl)),
              P('v_lshrrev_b32 v252, 6, v0'), P('v_mul_u32_u24 v252, %d, v252' % nl), P('v_and_b32 v253, 63, v0'),
              P('v_add3_u32 v252, v252, v253, s52'), P('v_lshlrev_b32 v252, 7, v252'),
              P('v_min_u32 v252, %s-L_PC, v252' % ('L_C2' if cfg.get('code_staged', 1) else 'L_END')),
              P('s_mov_b64 exec, %d' % ((1 << nl) - 1)),
              VM('global_load_dword a255, v252, s[50:51]'),
              P('s_mov_b64 exec, -1'))
        o(P('s_getreg_b32 s%d, hwreg(HW_REG_XCC_ID, 0, 4)' % sXCC))
        o(P('s_and_b32 s52, s2, 7'), P('s_lshr_b32 s53, s2, 3'), P('s_lshr_b32 s54, s53, 4'),
          P('s_lshl_b32 s%d, s52, 1' % sG), P('s_add_u32 s%d, s%d, s54' % (sG, sG)),
          P('s_and_b32 s%d, s53, 15' % sM))
        if cfg.get('cross_groups'):
            o(P('s_lshr_b32 s%d, s2, 4' % sG), P('s_and_b32 s%d, s2, 15' % sM))
        o(P('v_lshrrev_b32 v252, 6, v0'), P('v_and_b32 v%d, 63, v0' % vLANE), P('v_readfirstlane_b32 s%d, v252' % sW))
        I = 250; Gq = 251; RR = 249; I3 = 248; t0 = 252; t1 = 253; t2 = 254; t3 = 255
        o(P('v_lshlrev_b32 v%d, 7, v%d' % (vL128, vLANE)), P('v_lshlrev_b32 v%d, 4, v%d' % (vL16, vLANE)))
        o(P('v_lshrrev_b32 v%d, 2, v%d' % (t0, vLANE)), P('v_lshrrev_b32 v%d, 2, v%d' % (t1, t0)),
          P('v_xor_b32 v%d, v%d, v%d' % (t1, t1, vLANE)), P('v_and_b32 v%d, 3, v%d' % (t1, t1)),
          P('v_lshlrev_b32 v%d, 4, v%d' % (t1, t1)),
          P('v_lshl_add_u32 v%d, v%d, 11, v%d' % (vDX, t0, t1)))
        o(P('v_lshlrev_b32 v%d, 1, v%d' % (t2, t0)), P('v_add_u32 v%d, 16, v%d' % (t3, t2)), P('v_add_u32 v%d, 1, v%d' % (t2, t2)),
          P('v_cmp_gt_u32 vcc, 8, v%d' % t0),
          P('s_lshr_b32 s%d, s%d, 3' % (sTH, sM)), P('s_and_b32 s%d, s%d, 7' % (sCT, sM)),
          P('v_cndmask_b32 v%d, v%d, v%d, vcc' % (t2, t2, t3)),
          P('v_lshl_add_u32 v%d, v%d, 10, v%d' % (vDH, t2, t1)),
          P('s_cmp_eq_u32 s%d, 0' % sG), P('s_cselect_b32 s53, 0x40000000, 0'), P('v_or_b32 v%d, s53, v%d' % (vDH, vDH)))
        o(P('v_lshrrev_b32 v%d, 4, v%d' % (t1, vLANE)), P('v_lshrrev_b32 v%d, 1, v%d' % (t2, vLANE)),
          P('v_xor_b32 v%d, v%d, v%d' % (t1, t1, t2)), P('v_and_b32 v%d, 1, v%d' % (t1, t1)),
          P('v_lshlrev_b32 v%d, 5, v%d' % (t1, t1)), P('v_and_b32 v%d, 1, v%d' % (t2, vLANE)),
          P('v_lshl_add_u32 v%d, v%d, 4, v%d' % (t1, t2, t1)),
          P('v_mul_u32_u24 v%d, 3072, v%d' % (t2, t0)), P('v_add_u32 v%d, v%d, v%d' % (vDQ, t1, t2)))
        o(P('s_mov_b32 s%d, 0' % sRND), P('s_mov_b32 s%d, 0' % sMODE),
          P('s_mul_i32 s%d, s%d, 49152' % (sWQ_SRC, sW)), P('s_lshl_b32 s52, s%d, 6' % sM),
          P('s_add_u32 s%d, s%d, s52' % (sWQ_SRC, sWQ_SRC)),
          P('s_lshl_b32 s%d, s%d, 10' % (sW1K, sW)),
          P('s_lshl_b32 s%d, s%d, 13' % (sWO_SRC, sW)), P('s_lshl_b32 s52, s%d, 7' % sCT),
          P('s_add_u32 s%d, s%d, s52' % (sWO_SRC, sWO_SRC)),
          P('s_mul_i32 s%d, s%d, %d' % (sW1_SRC, sW, 32 * 3584)), P('s_mul_i32 s52, s%d, 224' % sM),
          P('s_add_u32 s%d, s%d, s52' % (sW1_SRC, sW1_SRC)),
          P('s_mul_i32 s%d, s%d, 7168' % (sW1_M, sW)),
          P('s_lshl_b32 s%d, s%d, 8' % (sGFLG, sG)),
          P('s_lshl_b32 s52, s%d, 2' % sM), P('s_add_u32 s52, s52, s%d' % sW), P('s_lshl_b32 s52, s52, 2'),
          P('s_add_u32 s%d, s%d, s52' % (sFLGOFF, sGFLG)),
          P('s_and_b32 s52, s%d, 1' % sG), P('s_lshl_b32 s52, s52, 4'), P('s_add_u32 s52, s52, s%d' % sM),
          P('s_lshl_b32 s52, s52, 2'), P('s_add_u32 s52, s52, s%d' % sW), P('s_lshl_b32 s%d, s52, 13' % sTUX),
          P('s_mul_i32 s94, s52, 2176'),
          P('s_lshl_b32 s52, s%d, 2' % sM), P('s_add_u32 s52, s52, s%d' % sW), P('s_lshl_b32 s%d, s52, 13' % sTUG),
          P('s_mul_i32 s%d, s%d, %d' % (sST, sG, ACT_G)),
          P('s_andn2_b32 s52, s%d, 1' % sG), P('s_lshl_b32 s52, s52, 17'), P('s_sub_u32 s52, s52, 16384'),
          P('s_max_i32 s52, s52, 0'), P('s_add_u32 s94, s94, s52'),
          P('s_lshl_b32 s52, s%d, 7' % sG), P('s_sub_u32 s53, s52, 32'), P('s_lshl_b32 s97, s53, 10'),
          P('s_cmp_eq_u32 s%d, 0' % sG), P('s_cselect_b32 s97, 0, s97'), P('s_lshl_b32 s53, s%d, 6' % sW), P('s_add_u32 s97, s97, s53'))
        for b in range(2):
            o(P('s_lshl_b32 s53, s%d, 1' % sW), P('s_add_u32 s53, s53, %d' % b), P('s_and_b32 s53, s53, 3'),
              P('s_lshl_b32 s53, s53, 5'), P('s_add_u32 s53, s53, s52'), P('s_lshr_b32 s54, s%d, 1' % sW),
              P('s_add_u32 s53, s53, s54'), P('s_lshl_b32 s%d, s53, 10' % (95 + b)))
        o(P('s_lshl_b32 s98, s%d, 11' % sW))
        o(P('s_waitcnt lgkmcnt(0)'))
        if cfg.get('pts') == 1:
            o(self.ts(14))
        def srd(dst, src, size):
            return [P('s_mov_b32 s%d, s%d' % (dst, src)), P('s_and_b32 s%d, s%d, 0xffff' % (dst + 1, src + 1)),
                    P('s_mov_b32 s%d, 0x%x' % (dst + 2, size)), P('s_mov_b32 s%d, 0x20000' % (dst + 3))]
        o(srd(SRD_X, 72, 2097152), srd(SRD_WQ, 74, 512 * 3072))
        tp = cfg.get('t_pro', 1)
        def tq(q):
            return self.touch_range('wq', q * 393216, (q + 1) * 393216) if tp else []
        if tp:
            o(P('s_mov_b32 exec_lo, 0x1ffff'), P('s_mov_b32 exec_hi, 0'),
              VM('buffer_load_dword a255, v%d, s[8:11], s94 offen' % vL128), P('s_mov_b64 exec, -1'))
        o(tq(0), tq(1))
        allfirst = cfg.get('cold', 'A') == 'A'
        if allfirst:
            o(tq(2), tq(3))
        o(srd(SRD_WO, 76, 524288), srd(SRD_W1, 80, 512 * 3584), srd(SRD_B1, 82, 3584), srd(SRD_W2, 84, 1792 * 1024),
          srd(SRD_OUT, 86, 2097152), srd(SRD_DBG, 88, 256), srd(SRD_WS, 90, WS_SIZE))
        o(P('s_mov_b32 s%d, s95' % sXR0), P('s_mov_b32 s%d, s96' % sXR1), P('s_mov_b32 s%d, s97' % sHSRC), P('s_mov_b32 s%d, s98' % sD))
        o(P('s_and_b32 s52, s%d, 1' % sG), P('s_lshl_b32 s52, s52, 3'), P('s_add_u32 s52, s52, s%d' % sM),
          P('s_and_b32 s99, s52, %d' % (15 if cfg.get('rot', 0) else 0)), P('s_lshl_b32 s98, s99, 1'), P('s_add_u32 s98, s98, s%d' % sW),
          P('s_lshl_b32 s95, s%d, 6' % sM), P('s_lshl_b32 s52, s%d, 6' % sW), P('s_sub_u32 s%d, s%d, s52' % (sHSRC, sHSRC)))
        self.tq = (lambda q: []) if allfirst else tq
        if cfg.get('t_mall', 0) == 1:
            o(self.touch_mall())
        self.tag_init = newtag('init')
        o(P('v_mov_b32 v%d, 0' % t1), P('s_mov_b64 exec, 1'),
          VM('buffer_store_dword v%d, v%d, s[28:31], s%d offen sc1' % (t1, t1, sFLGOFF), self.tag_init),
          P('s_mov_b64 exec, -1'))
        if cfg.get('pts') == 1:
            o(self.ts(15))
        o(P('v_and_b32 v%d, 15, v%d' % (I, vLANE)), P('v_lshrrev_b32 v%d, 4, v%d' % (Gq, vLANE)),
          P('v_lshrrev_b32 v%d, 2, v%d' % (t0, I)), P('v_lshl_add_u32 v%d, v%d, 2, v%d' % (RR, Gq, t0)),
          P('v_and_b32 v%d, 3, v%d' % (I3, I)))
        for k in range(4):
            o(P('v_mov_b32 v%d, 0x3f803f80' % (vONES + k)))
        o(P('v_lshlrev_b32 v%d, 6, v%d' % (t0, RR)), P('v_lshl_add_u32 v%d, v%d, 3, v%d' % (t0, I3, t0)),
          P('v_add_u32 v%d, %d, v%d' % (t0, L_W, t0)),
          P('v_and_b32 v%d, 1, v%d' % (t1, Gq)), P('v_lshlrev_b32 v%d, 5, v%d' % (t1, t1)),
          P('v_add_u32 v%d, v%d, v%d' % (vWQA, t0, t1)),
          P('v_xor_b32 v%d, 32, v%d' % (t2, t1)), P('v_add_u32 v%d, v%d, v%d' % (vWQA + 1, t0, t2)),
          P('v_add_u32 v%d, 0x10000, v%d' % (vWQA + 2, vWQA)), P('v_add_u32 v%d, 0x10000, v%d' % (vWQA + 3, vWQA + 1)))
        o(P('s_and_b32 s53, s%d, 1' % sW), P('s_lshl_b32 s53, s53, 5'), P('v_xor_b32 v%d, s53, v%d' % (t2, t1)),
          P('v_add_u32 v%d, v%d, v%d' % (vE2, t0, t2)),
          P('s_lshr_b32 s53, s%d, 1' % sW), P('s_add_u32 s53, s53, 1'), P('s_lshl_b32 s53, s53, 15'),
          P('v_add_u32 v%d, s53, v%d' % (vE1, vE2)))
        o(P('v_lshrrev_b32 v%d, 1, v%d' % (t0, Gq)), P('v_lshrrev_b32 v%d, 2, v%d' % (t1, I)),
          P('v_xor_b32 v%d, v%d, v%d' % (t0, t0, t1)), P('v_lshlrev_b32 v%d, 4, v%d' % (t0, t0)),
          P('v_lshl_add_u32 v%d, v%d, 6, v%d' % (t0, I, t0)),
          P('v_and_b32 v%d, 1, v%d' % (t1, Gq)), P('v_lshl_add_u32 v%d, v%d, 3, v%d' % (t0, t1, t0)),
          P('v_add_u32 v%d, %d, v%d' % (vHXA, L_HALO, t0)), P('v_xor_b32 v%d, 32, v%d' % (vHXB, vHXA)),
          P('s_lshl_b32 s53, s%d, 11' % sW), P('s_add_u32 s53, s53, %d' % L_RING),
          P('v_add_u32 v%d, s53, v%d' % (vXA, t0)), P('v_xor_b32 v%d, 32, v%d' % (vXB, vXA)))
        o(P('v_cmp_eq_u32 s[%d:%d], 1, v%d' % (sMA, sMA + 1, I3)), P('v_cmp_eq_u32 s[%d:%d], 2, v%d' % (sMB, sMB + 1, I3)),
          P('v_cmp_eq_u32 s[%d:%d], 3, v%d' % (sMC, sMC + 1, I3)), P('v_lshrrev_b32 v%d, 2, v%d' % (t0, I)),
          P('v_cmp_eq_u32 s[%d:%d], v%d, v%d' % (sMD, sMD + 1, t0, Gq)))
        o(P('v_lshlrev_b32 v%d, 4, v%d' % (vCS, Gq)))
        o(P('s_lshl_b32 s%d, s%d, 17' % (sGBASE, sG)),
          P('s_lshl_b32 s52, s%d, 2' % sTH), P('s_add_u32 s%d, s52, s%d' % (sTB, sW)))
        if cfg.get('ts'):
            o(P('s_lshl_b32 s52, s2, 2'), P('s_add_u32 s52, s52, s%d' % sW), P('s_lshl_b32 s52, s52, 8'),
              P('s_add_u32 s%d, s52, %d' % (sTSO, 0x1F80000)))
        o(self.setup2())
        if cfg.get('pts') == 1:
            o(self.ts(29))
        self.xslot = {}; self.wq_q = {}; self.halo_dma = []
        for j in range(16):
            self.xslot[j] = self.x_ring_dma(j)
        for q in range(4):
            self.wq_q[q] = self.wq_rot_quarter(q)
        for a in range(4):
            if not cfg.get('rot', 0):
                self.halo_dma.append(self.dma(SRD_X, vDH, 97, a * 256, sW1K, L_HALO + a * 4096))
                continue
            self.halo_dma.append([P('s_add_u32 m0, s%d, %d' % (sW1K, L_HALO + a * 4096)), P('s_add_u32 s52, s99, s%d' % sW), P('s_add_u32 s52, s52, %d' % (4 * a)),
                                  P('s_and_b32 s52, s52, 15'), P('s_lshl_b32 s52, s52, 6'), P('s_add_u32 s52, s52, s%d' % sHSRC),
                                  VM('buffer_load_dwordx4 v%d, s[8:11], s52 offen lds' % vDH)])
        o(self.xslot[0], self.wq_q[0], self.halo_dma[0], self.xslot[1])
        if cfg.get('pts') == 1:
            o(self.ts(30))

    def setup2(self):
        I = 228; Gq = 229; RR = 230; I3 = 231; t0 = 232; t1 = 233; t2 = 234; t3 = 235; tr = 236
        o = []
        o += [P('v_and_b32 v%d, 15, v%d' % (I, vLANE)), P('v_lshrrev_b32 v%d, 4, v%d' % (Gq, vLANE)),
              P('v_lshrrev_b32 v%d, 2, v%d' % (t0, I)), P('v_lshl_add_u32 v%d, v%d, 2, v%d' % (RR, Gq, t0)),
              P('v_and_b32 v%d, 3, v%d' % (I3, I))]
        o += [P('v_lshrrev_b32 v%d, 3, v%d' % (t0, vLANE)), P('v_lshrrev_b32 v%d, 1, v%d' % (t1, t0)),
              P('v_lshrrev_b32 v%d, 1, v%d' % (t2, vLANE)), P('v_xor_b32 v%d, v%d, v%d' % (t1, t1, t2)),
              P('v_and_b32 v%d, 3, v%d' % (t1, t1)), P('v_lshlrev_b32 v%d, 5, v%d' % (t1, t1)),
              P('v_and_b32 v%d, 1, v%d' % (t2, vLANE)), P('v_lshl_add_u32 v%d, v%d, 4, v%d' % (t1, t2, t1)),
              P('v_lshl_add_u32 v%d, v%d, 10, v%d' % (vDO, t0, t1))]
        for c in range(448):
            assert (c * 4682) >> 16 == c // 14
        for u in range(7):
            o += [P('v_add_u32 v%d, %d, v%d' % (t0, 64 * u, vLANE)), P('v_mul_u32_u24 v%d, 4682, v%d' % (t1, t0)),
                  P('v_lshrrev_b32 v%d, 16, v%d' % (t1, t1)), P('v_mul_u32_u24 v%d, 14, v%d' % (t2, t1)),
                  P('v_sub_u32 v%d, v%d, v%d' % (t2, t0, t2)), P('v_lshlrev_b32 v%d, 4, v%d' % (t2, t2)),
                  P('v_mul_u32_u24 v%d, 3584, v%d' % (t1, t1)), P('v_add_u32 v%d, v%d, v%d' % (vD1 + u, t1, t2))]
        o += [P('s_lshl_b32 s80, s%d, 7' % sG), P('s_lshl_b32 s81, s%d, 5' % sW), P('s_add_u32 s80, s80, s81'), P('s_add_u32 s80, s80, s%d' % sTH),
              P('s_lshl_b32 s80, s80, 10'), P('s_lshl_b32 s81, s%d, 7' % sCT), P('s_add_u32 s61, s80, s81'),
              P('v_lshlrev_b32 v%d, 11, v%d' % (t1, I)), P('v_lshl_add_u32 v%d, v%d, 3, v%d' % (tr, Gq, t1))]
        self.tag_res = [newtag('res') for _ in range(4)]
        self.res_ops = [VM('buffer_load_dwordx2 v[%d:%d], v%d, s[8:11], s61 offen offset:%d' % (vR + 2 * fb, vR + 2 * fb + 1, tr, fb * 32), self.tag_res[fb]) for fb in range(4)]
        self.tag_b1 = newtag('b1')
        self.b1_op = [P('v_lshlrev_b32 v%d, 2, v%d' % (237, vLANE)), P('s_mul_i32 s80, s%d, 224' % sM),
                      VM('buffer_load_dword v247, v237, s[40:43], s80 offen', self.tag_b1)]
        o += [P('v_and_b32 v%d, 1, v%d' % (t2, Gq)), P('v_lshlrev_b32 v%d, 5, v%d' % (t2, t2)),
              P('v_lshrrev_b32 v%d, 1, v%d' % (t3, Gq)), P('v_lshl_add_u32 v%d, v%d, 4, v%d' % (t2, t3, t2)),
              P('v_lshl_add_u32 v%d, v%d, 11, v%d' % (vOUT, I, t2))]
        o += [P('s_mov_b32 s%d, 1.0' % sONE), P('s_mov_b32 s%d, 1.0' % (sONE + 1)),
              P('s_mov_b32 s%d, %s' % (sM2L, f32(-2 * LN2))), P('s_mov_b32 s%d, %s' % (sM2L + 1, f32(-2 * LN2))),
              P('v_mov_b32 v%d, %s' % (vLN2, f32(LN2))), P('v_mov_b32 v%d, %s' % (vLN2 + 1, f32(LN2)))]
        o += [P('v_mul_u32_u24 v%d, 224, v%d' % (t0, RR)), P('v_lshl_add_u32 v%d, v%d, 3, v%d' % (vW1A, I3, t0)),
              P('v_add_u32 v%d, 0x10000, v%d' % (vW1A + 1, vW1A)), P('v_add_u32 v%d, 0x20000, v%d' % (vW1A + 2, vW1A))]
        o += [P('v_lshlrev_b32 v%d, 7, v%d' % (t0, RR)), P('v_lshl_add_u32 v%d, v%d, 3, v%d' % (t0, I3, t0)),
              P('s_and_b32 s80, s%d, 1' % sW), P('s_lshl_b32 s80, s80, 12'), P('s_add_u32 s80, s80, %d' % L_W),
              P('v_add_u32 v%d, s80, v%d' % (t0, t0)),
              P('v_lshrrev_b32 v%d, 1, v%d' % (t1, RR)), P('v_and_b32 v%d, 3, v%d' % (t1, t1))]
        for fb in range(4):
            o += [P('v_xor_b32 v%d, %d, v%d' % (t2, fb, t1)), P('v_lshl_add_u32 v%d, v%d, 5, v%d' % (vW2A + fb * 3, t2, t0)),
                  P('v_add_u32 v%d, 0x10000, v%d' % (vW2A + fb * 3 + 1, vW2A + fb * 3)),
                  P('v_add_u32 v%d, 0x20000, v%d' % (vW2A + fb * 3 + 2, vW2A + fb * 3))]
        NEG = f32(-1e30)
        o += [P('v_mov_b32 v%d, %s' % (t3, NEG))]
        for r in range(4):
            o += [P('v_lshl_add_u32 v%d, v%d, 2, %d' % (t0, Gq, r)),
                  P('v_sub_u32 v%d, v%d, v%d' % (t1, I, t0)), P('v_cmp_gt_u32 vcc, 8, v%d' % t1),
                  P('v_cndmask_b32_e64 v%d, v%d, 0, vcc' % (vCCUR + r, t3)),
                  P('v_add_u32 v%d, 9, v%d' % (t1, I)), P('v_cmp_ge_u32 vcc, v%d, v%d' % (t0, t1)),
                  P('v_cndmask_b32_e64 v%d, v%d, 0, vcc' % (vCPREV + r, t3))]
        o += [P('s_and_b32 s80, s%d, 1' % sW), P('s_or_b32 s80, s80, s%d' % sG), P('s_cmp_eq_u32 s80, 0'), P('s_cselect_b64 vcc, -1, 0')]
        for r in range(4):
            o.append(P('v_cndmask_b32 v%d, v%d, v%d, vcc' % (vCPA + r, vCPREV + r, t3)))
        o += [P('v_lshlrev_b32 v%d, 2, v%d' % (t0, Gq)), P('v_add_u32 v%d, 6, v%d' % (t1, I)),
              P('v_cmp_ge_u32 s[%d:%d], v%d, v%d' % (sUP, sUP + 1, t0, t1))]
        o += [P('v_lshlrev_b32 v%d, 5, v%d' % (t0, I)), P('v_lshl_add_u32 v%d, v%d, 3, v%d' % (t0, Gq, t0)),
              P('s_lshl_b32 s80, s%d, 11' % sW), P('s_add_u32 s80, s80, %d' % L_EX), P('v_add_u32 v%d, s80, v%d' % (vEXV, t0))]
        o += [P('s_lshr_b32 s80, s%d, 1' % sW), P('s_add_u32 s81, s80, 3'), P('s_bitcmp1_b32 s%d, 0' % sW),
              P('s_cselect_b32 s80, s81, s80'), P('s_lshl_b32 s80, s80, 10'), P('s_add_u32 s80, s80, %d' % L_EXK),
              P('v_lshlrev_b32 v%d, 3, v%d' % (t1, vLANE)), P('v_add_u32 v%d, s80, v%d' % (vEXK, t1))]
        o += [P('s_and_b32 s80, s%d, 1' % sW), P('s_lshl_b32 s80, s80, 9'),
              P('s_add_u32 s81, s80, %d' % (L_EXK + 2048)), P('v_add_u32 v%d, s81, v%d' % (t2, t1)),
              P('s_add_u32 s81, s80, %d' % (L_EX + 8192)), P('v_add_u32 v%d, s81, v%d' % (t3, t0)),
              P('s_cmp_ge_u32 s%d, 2' % sW), P('s_cselect_b64 vcc, -1, 0'),
              P('v_cndmask_b32 v%d, v%d, v%d, vcc' % (vEXH, t2, t3))]
        o += [P('v_lshlrev_b32 v%d, 5, v%d' % (t0, RR)), P('v_lshl_add_u32 v%d, v%d, 3, v%d' % (t0, I3, t0)),
              P('s_lshl_b32 s80, s%d, 11' % sW), P('s_add_u32 s80, s80, %d' % L_EX), P('v_add_u32 v%d, s80, v%d' % (vRV, t0))]
        o += [P('v_subrev_u32 v%d, 1024, v%d' % (t1, vRV)),
              P('v_add_u32 v%d, %d, v%d' % (t2, L_EX + 8192, t0)),
              P('v_subrev_u32 v%d, 256, v%d' % (t3, t2)),
              P('v_cmp_le_u32 vcc, 8, v%d' % RR), P('v_cndmask_b32 v%d, v%d, v%d, vcc' % (t3, t2, t3)),
              P('s_cmp_eq_u32 s%d, 0' % sW), P('s_cselect_b64 vcc, -1, 0'), P('v_cndmask_b32 v%d, v%d, v%d, vcc' % (t2, t2, t3)),
              P('s_bitcmp1_b32 s%d, 0' % sW), P('s_cselect_b64 vcc, -1, 0'), P('v_cndmask_b32 v%d, v%d, v%d, vcc' % (vRVP, t2, t1))]
        o += [P('v_lshlrev_b32 v%d, 3, v%d' % (t0, vLANE)),
              P('s_lshr_b32 s80, s%d, 1' % sW), P('s_bitcmp1_b32 s%d, 0' % sW), P('s_cselect_b32 s80, s80, 2'),
              P('s_lshl_b32 s80, s80, 10'), P('s_add_u32 s80, s80, %d' % L_EXK), P('v_add_u32 v%d, s80, v%d' % (t0, t0)),
              P('v_subrev_u32 v%d, 64, v%d' % (t1, t0)), P('v_cmp_le_u32 vcc, 8, v%d' % I),
              P('v_cndmask_b32 v%d, v%d, v%d, vcc' % (t1, t0, t1)),
              P('s_cmp_eq_u32 s%d, 0' % sW), P('s_cselect_b64 vcc, -1, 0'), P('v_cndmask_b32 v%d, v%d, v%d, vcc' % (vRK, t0, t1))]
        o += [P('s_lshl_b32 s80, s%d, 12' % sW), P('v_add_u32 v%d, s80, v%d' % (vEXBW, vL16)),
              P('v_xor_b32 v%d, 0x1000, v%d' % (vEXBR, vEXBW))]
        o += [P('s_lshr_b32 s80, s%d, 1' % sCT), P('s_lshl_b32 s80, s80, 8'), P('s_and_b32 s81, s%d, 1' % sCT),
              P('s_lshl_b32 s81, s81, 3'), P('s_add_u32 s80, s80, s81'),
              P('v_lshlrev_b32 v%d, 4, v%d' % (t0, I)), P('v_add_u32 v%d, s80, v%d' % (vSTO, t0))]
        o += [P('s_cmp_eq_u32 s%d, 0' % sTH), P('s_cselect_b32 s81, 8, 0'),
              P('v_subrev_u32 v%d, s81, v%d' % (t0, I)),
              P('v_lshl_add_u32 v%d, v%d, 4, v%d' % (t1, Gq, t0)), P('v_lshlrev_b32 v%d, 4, v%d' % (t1, t1)),
              P('v_lshlrev_b32 v%d, 4, v%d' % (t2, t0)), P('v_add_u32 v%d, s80, v%d' % (t2, t2)),
              P('s_cmp_eq_u32 s%d, 3' % sW), P('s_cselect_b32 s80, 0, 0x40000000'),
              P('s_cmp_eq_u32 s%d, 15' % sG), P('s_cselect_b32 s80, 0x40000000, s80'),
              P('v_mov_b32 v%d, 0x40000000' % t3), P('v_cmp_le_u32 vcc, 8, v%d' % I),
              P('v_cndmask_b32 v%d, v%d, v%d, vcc' % (t1, t3, t1)), P('v_cndmask_b32 v%d, v%d, v%d, vcc' % (t2, t3, t2)),
              P('v_or_b32 v%d, s80, v%d' % (vHOF, t1)), P('v_or_b32 v%d, s80, v%d' % (vHST, t2))]
        return o

    def wq_stash(self):
        o = [P('s_lshl_b32 s53, s%d, 10' % sW), P('s_add_u32 s53, s53, %d' % L_W), P('v_add_u32 v%d, s53, v%d' % (vTA, vL16)),
             P('v_add_u32 v%d, 0x10000, v%d' % (vTB, vTA))]
        for p in range(12):
            for c in range(2):
                a = p * 8192 + c * 4096
                o.append(LG('ds_read_b128 %s, v%d offset:%d' % (ar(128 + (2 * p + c) * 4, 4), vTA if a < 65536 else vTB, a & 0xffff)))
        return o

    def wq_restore(self, positions, va, vb):
        o = []
        for p in positions:
            for c in range(2):
                a = p * 8192 + c * 4096
                o.append([P('s_mov_b64 exec, s[74:75]'),
                          LG('ds_write_b128 v%d, %s offset:%d' % (va if a < 65536 else vb, ar(128 + (2 * p + c) * 4, 4), a & 0xffff)),
                          P('s_mov_b64 exec, -1')])
        return o

    def x_ring_dma(self, j):
        if not self.cfg.get('rot', 0):
            return [self.dma(SRD_X, vDX, sXR0 + b, j * 64, sD, L_RING + (j % 5) * 8192 + b * 1024) for b in range(2)]
        out = []
        for b in range(2):
            ops = [P('s_add_u32 m0, s%d, %d' % (sD, L_RING + (j % 5) * 8192 + b * 1024)),
                   P('s_add_u32 s52, s99, %d' % j), P('s_and_b32 s52, s52, 15'), P('s_lshl_b32 s52, s52, 6'),
                   P('s_add_u32 s52, s52, s%d' % (sXR0 + b)),
                   VM('buffer_load_dwordx4 v%d, s[8:11], s52 offen lds' % vDX)]
            out.append(ops)
        return out

    def wq_rot_quarter(self, qd):
        if not self.cfg.get('rot', 0):
            return self.dma_wq_quarter(qd)
        out = []
        for a in range(2):
            for p in range(3):
                rg = 8 * qd + 4 * a
                out.append([P('s_add_u32 m0, s%d, %d' % (sW1K, L_W + p * 32768 + rg * 1024)),
                            P('s_add_u32 s52, s98, %d' % rg), P('s_and_b32 s52, s52, 31'), P('s_mul_i32 s52, s52, 49152'),
                            P('s_add_u32 s52, s52, s95'), P('s_add_u32 s52, s52, %d' % (p * 1024)),
                            VM('buffer_load_dwordx4 v%d, s[12:15], s52 offen lds' % vDQ)])
        return out

    @staticmethod
    def vmtags(ops):
        t = []
        for x in ops:
            if isinstance(x, (list, tuple)):
                t += Gen.vmtags(x)
            elif x is not None and not isinstance(x, str) and x.kind == 'vm':
                t.append(x.tag)
        return t

    def finish_stats(self, s1, s2, pair_kv, pair_q=None, scale=None):
        t = vT + 80
        o = [P('v_mul_f32 v%d, %s, v%d' % (t, f32(1 / 512), s1)),
             P('v_mul_f32 v%d, %s, v%d' % (t + 1, f32(1 / 512), s2)),
             P('v_fma_f32 v%d, -v%d, v%d, v%d' % (t + 1, t, t, t + 1)),
             P('v_max_f32 v%d, 0, v%d' % (t + 1, t + 1)),
             P('v_add_f32 v%d, %s, v%d' % (t + 1, f32(1e-5), t + 1)),
             P('v_rsq_f32 v%d, v%d' % (pair_kv, t + 1))]
        if scale is not None:
            o.append(P('v_mul_f32 v%d, %s, v%d' % (pair_kv, f32(scale), pair_kv)))
        o.append(P('v_mul_f32 v%d, -v%d, v%d' % (pair_kv + 1, t, pair_kv)))
        if pair_q is not None:
            qs = f32(0.25 * LOG2E)
            o += [P('v_mul_f32 v%d, %s, v%d' % (pair_q, qs, pair_kv)), P('v_mul_f32 v%d, %s, v%d' % (pair_q + 1, qs, pair_kv + 1))]
        return o

    def reduce_g2(self, a, b):
        t = vT + 84
        return [P('v_permlane32_swap_b32 v%d, v%d' % (a, b)), P('v_add_f32 v%d, v%d, v%d' % (a, a, b)),
                P('v_mov_b32 v%d, v%d' % (t, a)), P('v_permlane16_swap_b32 v%d, v%d' % (a, t)),
                P('v_add_f32 v%d, v%d, v%d' % (a, a, t)), P('v_mov_b32 v%d, v%d' % (b, a)),
                P('v_permlane32_swap_b32 v%d, v%d' % (a, b))]

    def stats_from_st(self, regs, pair_kv, pair_q=None, scale=None):
        return [P('v_add_f32 v%d, v%d, v%d' % (regs, regs, regs + 2)), P('v_add_f32 v%d, v%d, v%d' % (regs + 1, regs + 1, regs + 3))] + \
            self.reduce_g2(regs, regs + 1) + self.finish_stats(regs, regs + 1, pair_kv, pair_q, scale)

    def accP1(self, blk, tb):
        return vACC + (blk * 2 + tb) * 4
    ACC_H = vACC + 48
    ACC_CS1 = vACC + 52
    ACC_CS2 = vACC + 56
    PKV = [vT + 0, vT + 2]; PQ = [vT + 4, vT + 6]; PH = vT + 8

    def wq_read(self, blk, j, part, dst):
        p = blk // 2; h = blk % 2
        if p < 2:
            return LG('ds_read_b64_tr_b16 v[%d:%d], v%d offset:%d' % (dst + 2 * part, dst + 2 * part + 1, vWQA + h, p * 32768 + j * 2048 + part * 1024))
        return LG('ds_read_b64_tr_b16 v[%d:%d], v%d offset:%d' % (dst + 2 * part, dst + 2 * part + 1, vWQA + 2 + h, j * 2048 + part * 1024))

    def p1a(self):
        o = self.add
        XB = vT + 12
        S1 = vT + 36
        S2 = vT + 48
        def xb(j, b): return XB + (j & 1) * 12 + b * 4
        xr_tags = {}
        def xreads(j):
            ops = []
            for b in range(2):
                ops.append(LG('ds_read_b64 v[%d:%d], v%d offset:%d' % (xb(j, b), xb(j, b) + 1, vXA, (j % 5) * 8192 + b * 1024)))
                ops.append(LG('ds_read_b64 v[%d:%d], v%d offset:%d' % (xb(j, b) + 2, xb(j, b) + 3, vXB, (j % 5) * 8192 + b * 1024)))
            ops.append(LG('ds_read_b64 v[%d:%d], v%d offset:%d' % (xb(j, 2), xb(j, 2) + 1, vHXA, j * 1024)))
            ops.append(LG('ds_read_b64 v[%d:%d], v%d offset:%d' % (xb(j, 2) + 2, xb(j, 2) + 3, vHXB, j * 1024)))
            xr_tags[j] = [x.tag for x in ops]
            return ops
        groups = []
        n = 0
        extras = []
        mfidx = 0
        first_idx = {}
        for j in range(16):
            first_idx[j] = mfidx
            z = (j == 0)
            for blk in range(8):
                dst = self.afrag(n); n += 1
                g = dict(pre=[], reads=[], mf=[])
                if blk == 0:
                    if j % 4 == 0:
                        q = j // 4
                        wt = self.vmtags(self.wq_q[q]) + self.vmtags(self.halo_dma[q])
                        g['pre'] += [W(wt), P('s_barrier')] if not (self.cfg.get('x_nobar') and q > 0) else []
                    if not self.cfg.get('x_nowait'):
                        g['pre'] += [W(self.vmtags(self.xslot[j]))]
                    g['reads'] += xreads(j)
                if blk < 6:
                    g['reads'] += [self.wq_read(blk, j, 0, dst), self.wq_read(blk, j, 1, dst)]
                    for tb in range(2):
                        acc = self.accP1(blk, tb)
                        c = '0' if z else vr(acc, 4)
                        g['mf'].append(('v_mfma_f32_16x16x32_bf16 %s, %s, %s, %s' % (vr(acc, 4), vr(dst, 4), vr(xb(j, tb), 4), c), []))
                    if blk in (1, 3, 5) and not self.cfg.get('x_nostat'):
                        b = blk // 2
                        for (accb, A) in ((S1 + b * 4, vONES), (S2 + b * 4, xb(j, b))):
                            c = '0' if z else vr(accb, 4)
                            g['mf'].append(('v_mfma_f32_16x16x32_bf16 %s, %s, %s, %s' % (vr(accb, 4), vr(A, 4), vr(xb(j, b), 4), c), []))
                else:
                    base = vE1 if blk == 6 else vE2
                    g['reads'] += [LG('ds_read_b64_tr_b16 v[%d:%d], v%d offset:%d' % (dst + 2 * part, dst + 2 * part + 1, base, j * 2048 + part * 1024)) for part in range(2)]
                    if blk == 6:
                        c = '0' if z else vr(self.ACC_H, 4)
                        g['mf'].append(('v_mfma_f32_16x16x32_bf16 %s, %s, %s, %s' % (vr(self.ACC_H, 4), vr(dst, 4), vr(xb(j, 2), 4), c), []))
                        c = '0' if z else vr(self.ACC_CS1, 4)
                        g['mf'].append(('v_mfma_f32_16x16x32_bf16 %s, %s, %s, %s' % (vr(self.ACC_CS1, 4), vr(dst, 4), vr(vONES, 4), c), []))
                    else:
                        c = '0' if z else vr(self.ACC_CS2, 4)
                        g['mf'].append(('v_mfma_f32_16x16x32_bf16 %s, %s, %s, %s' % (vr(self.ACC_CS2, 4), vr(dst, 4), vr(vONES, 4), c), []))
                mfidx += len(g['mf'])
                groups.append(g)
        def at(k, i):
            return first_idx[k] + i
        seq = []
        seq += [(at(0, 0), self.xslot[2][0]), (at(0, 2), self.xslot[2][1])]
        q1 = self.wq_q[1]
        seq += [(at(0, 5), q1[0]), (at(0, 8), q1[1]), (at(0, 11), q1[2]), (at(0, 14), self.xslot[3][0]), (at(0, 16), self.xslot[3][1]),
                (at(0, 19), self.tq(2)), (at(1, 1), q1[3]), (at(1, 4), q1[4]), (at(1, 7), q1[5]), (at(1, 10), self.halo_dma[1]),
                (at(1, 13), self.xslot[4][0]), (at(1, 15), self.xslot[4][1]), (at(1, 18), self.tq(3))]
        for j in range(11):
            for b, d in enumerate(self.xslot[j + 5]):
                seq.append((max(at(j, 2 + 2 * b), at(2, 0) + 2 * b + (j * 4 if j < 2 else 0)), d))
        for k, d in enumerate(self.wq_q[2] + [self.halo_dma[2]]):
            seq.append((at(3 + k // 2, 8 + 5 * (k % 2)), d))
        for k, d in enumerate(self.wq_q[3] + [self.halo_dma[3]]):
            seq.append((at(7 + k // 2, 8 + 5 * (k % 2)), d))
        extras += seq
        reg = [W(self.tag_init),
               P('s_mul_i32 s53, s%d, s%d' % (sXCC, sXCC)), P('s_lshl_b32 s53, s53, 13'), P('s_lshl_b32 s54, s%d, 5' % sXCC),
               P('s_add_u32 s53, s53, s54'), P('s_add_u32 s53, s53, 1'), P('v_mov_b32 v%d, s53' % vTA),
               P('s_lshr_b32 s53, s%d, 1' % sG), P('s_lshl_b32 s53, s53, 5'), P('s_and_b32 s54, s%d, 1' % sG),
               P('s_lshl_b32 s54, s54, 2'), P('s_add_u32 s54, s53, s54'), P('v_mov_b32 v%d, s54' % vTB),
               P('s_cmp_eq_u32 s%d, 0' % sW), P('s_cselect_b32 s53, 0, 0x40000000'),
               P('v_or_b32 v%d, s53, v%d' % (vTB, vTB)),
               P('s_mov_b64 exec, 1'),
               VM('buffer_atomic_add v%d, v%d, s[36:39], 0 offen' % (vTA, vTB)),
               P('s_mov_b64 exec, -1')]
        extras.append((first_idx[4] + 3, reg))
        groups[8 * 4]['pre'] = [W(self.tag_init)] + groups[8 * 4]['pre']
        if self.cfg.get('t_mall', 0) >= 4:
            extras.append((first_idx[self.cfg.get('t_mall')] + 4, self.touch_mall()))
        for k, x in enumerate(self.res_ops):
            extras.append((first_idx[11] + 3 + 3 * k, [x]))
        extras.append((first_idx[11] + 16, self.b1_op))
        extras.append((first_idx[8] + 9, self.mode_load()))
        extras.append((first_idx[11] + 1, self.mode_check()))
        tset = self.touch_set(self.cfg.get('t_p1a', 'of,xf'))
        k0 = self.cfg.get('t_p1a_k', 11)
        post = []
        for k, t in enumerate(tset):
            if k0 + k < 16:
                extras.append((first_idx[k0 + k] + 5, t))
            else:
                post.append(t)
        extras += self.sched_touches('p1a', first_idx)
        if self.cfg.get('code_staged', 1) and self.cfg.get('t_code', 1):
            extras.append((first_idx[self.cfg.get('code_k1', 10)] + 12, self.touch_code('L_C2', 'L_C4', 50)))
        if self.cfg.get('pts') == 2:
            for k, slot in ((1, 14), (4, 15), (8, 29), (12, 30)):
                extras.append((first_idx[k] - 1, self.ts(slot)))
        if self.cfg.get('pts') == 3:
            for k in range(16):
                extras.append((first_idx[k], self.ts(32 + k)))
        o(self.gemm_loop(groups, self.cfg.get('la_p1a', 3), extras))
        for t in post:
            o(t)
        t0 = 252; t1 = 253
        o(W(self.tag_b1), P('v_lshlrev_b32 v%d, 16, v247' % t0), P('v_and_b32 v%d, 0xffff0000, v247' % t1),
          P('v_mul_f32 v%d, %s, v%d' % (t0, f32(LOG2E), t0)), P('v_mul_f32 v%d, %s, v%d' % (t1, f32(LOG2E), t1)),
          P('v_lshlrev_b32 v%d, 3, v%d' % (vTA, vLANE)),
          P('s_mov_b32 exec_hi, 0x00ffffff'),
          LG('ds_write_b64 v%d, v[%d:%d] offset:%d' % (vTA, t0, t1, L_BB1)),
          P('s_mov_b64 exec, -1'))
        o(P('s_add_u32 s53, s%d, 2' % sW), P('s_lshl_b32 s53, s53, 6'), P('v_add_u32 v%d, s53, v%d' % (vTA, vCS)),
          P('s_and_b32 s53, s%d, 1' % sW), P('s_lshl_b32 s53, s53, 6'), P('v_add_u32 v%d, s53, v%d' % (vTB, vCS)),
          P('s_mov_b32 s52, 0x00010001'), P('s_mov_b32 s53, 0x00010001'), P('s_mov_b64 exec, s[52:53]'),
          LG('ds_write_b128 v%d, %s offset:%d' % (vTA, vr(self.ACC_CS1, 4), L_CSQ)),
          LG('ds_write_b128 v%d, %s offset:%d' % (vTB, vr(self.ACC_CS2, 4), L_CSQ)),
          P('s_mov_b64 exec, -1'))
        for b in range(3):
            s2 = S2 + b * 4
            o(P('v_cndmask_b32_e64 v%d, v%d, v%d, s[%d:%d]' % (s2, s2, s2 + 1, sMA, sMA + 1)),
              P('v_cndmask_b32_e64 v%d, v%d, v%d, s[%d:%d]' % (s2, s2, s2 + 2, sMB, sMB + 1)),
              P('v_cndmask_b32_e64 v%d, v%d, v%d, s[%d:%d]' % (s2, s2, s2 + 3, sMC, sMC + 1)),
              P('v_cndmask_b32_e64 v%d, 0, v%d, s[%d:%d]' % (s2, s2, sMD, sMD + 1)))
            t = s2 + 1
            o(P('v_mov_b32 v%d, v%d' % (t, s2)), P('v_permlane32_swap_b32 v%d, v%d' % (s2, t)),
              P('v_add_f32 v%d, v%d, v%d' % (s2, s2, t)), P('v_mov_b32 v%d, v%d' % (t, s2)),
              P('v_permlane16_swap_b32 v%d, v%d' % (s2, t)), P('v_add_f32 v%d, v%d, v%d' % (s2, s2, t)))
            if b < 2:
                o(self.finish_stats(S1 + b * 4, s2, self.PKV[b], self.PQ[b]))
            else:
                o(self.finish_stats(S1 + b * 4, s2, self.PH))
        o(P('s_mov_b32 s72, s50'), P('s_mov_b32 s73, s51'))
        o(WALL(False, True), P('s_barrier'))

    def p1b(self):
        o = self.add
        cfg = self.cfg
        for b in range(2):
            o(P('s_lshl_b32 s53, s%d, 1' % sW), P('s_add_u32 s53, s53, %d' % b), P('s_lshl_b32 s53, s53, 14'),
              P('s_add_u32 s%d, s53, s%d' % (sB0 + b, sX2)))
        xl = self.x_loads(16)
        pro = cfg.get('x_pro', 4)
        for j in range(pro):
            o(xl[j])
        stt = []
        STR = vT + 12
        for b in range(2):
            t = newtag('st'); stt.append(t)
            o(P('s_lshl_b32 s54, s%d, 11' % sW), P('s_add_u32 s53, s54, s%d' % sS2),
              P('s_add_u32 s53, s53, %d' % (b * 1024)),
              VM('buffer_load_dwordx4 %s, v%d, s[28:31], s53 offen sc1' % (vr(STR + 4 * b, 4), vL16), t))
        groups = []; n = 0; first_idx = {}; mfidx = 0
        for j in range(16):
            first_idx[j] = mfidx
            for blk in range(6):
                dst = self.afrag(n); n += 1
                g = dict(pre=[], reads=[self.wq_read(blk, j, 0, dst), self.wq_read(blk, j, 1, dst)], mf=[])
                for tb in range(2):
                    acc = self.accP1(blk, tb)
                    c = '0' if j == 0 else vr(acc, 4)
                    wt = self.vmtags(xl[j][tb]) if blk == 0 else []
                    g['mf'].append(('v_mfma_f32_16x16x32_bf16 %s, %s, %s, %s' % (vr(acc, 4), vr(dst, 4), ar((j * 2 + tb) * 4, 4), c), wt))
                mfidx += 2
                groups.append(g)
        extras = []
        k = 0
        rate = cfg.get('x_rate', 4)
        for j in range(pro, 16):
            for b in range(2):
                extras.append((first_idx[k // rate] + 1 + (12 // rate) * (k % rate), xl[j][b])); k += 1
        lastx = extras[-1][0]
        hp = [W(self.halo_store_tags), P('v_mov_b32 v%d, 1' % vTA),
              P('s_cmp_eq_u32 s%d, 3' % sW), P('s_cselect_b32 s53, 0, 0x40000000'),
              P('s_cmp_eq_u32 s%d, 15' % sG), P('s_cselect_b32 s53, 0x40000000, s53'),
              P('s_add_u32 s54, s%d, 1' % sG), P('s_lshr_b32 s52, s54, 1'), P('s_lshl_b32 s52, s52, 5'),
              P('s_and_b32 s54, s54, 1'), P('s_lshl_b32 s54, s54, 2'), P('s_add_u32 s52, s52, s54'),
              P('s_add_u32 s52, s52, 8'), P('s_or_b32 s53, s53, s52'),
              P('v_mov_b32 v%d, s53' % vTB),
              P('s_mov_b64 exec, 1'),
              VM('buffer_atomic_add v%d, v%d, s[36:39], 0 offen' % (vTA, vTB)),
              P('s_mov_b64 exec, -1')]
        extras.append((first_idx[0] + 6, hp))
        st_ops = [W(stt)]
        for b in range(2):
            st_ops += self.stats_from_st(STR + 4 * b, self.PKV[b], self.PQ[b])
        extras += self.spread(st_ops, first_idx[2] + 2, 1)
        HS = vT + 56
        HC = vT + 60; HZ = vT + 61
        spin = self.L('hsp'); hok = self.L('hok')
        tagc = newtag('hc'); htags = [newtag('h') for _ in range(17)]
        hk0 = cfg.get('halo_k0', 7); hk1 = cfg.get('halo_k', 10)
        h0 = [P('v_mov_b32 v%d, 0' % HZ),
              P('s_lshr_b32 s54, s%d, 1' % sG), P('s_lshl_b32 s54, s54, 5'), P('s_and_b32 s53, s%d, 1' % sG),
              P('s_lshl_b32 s53, s53, 2'), P('s_add_u32 s54, s54, s53'), P('s_add_u32 s%d, s54, 8' % sA),
              VM('buffer_load_dword v%d, v%d, s[36:39], s%d offen sc1' % (HC, HZ, sA), tagc)]
        extras.append((max(first_idx[hk0], lastx + 1), h0))
        hl = [W(tagc), P('s_mov_b32 s%d, 0' % sTMO),
              P('s_cmp_eq_u32 s%d, 0' % sG), P('s_cbranch_scc1 %s' % hok),
              LAB(spin),
              P('v_cmp_ne_u32 vcc, 16, v%d' % HC),
              P('s_cbranch_vccz %s' % hok),
              P('buffer_load_dword v%d, v%d, s[36:39], s%d offen sc1' % (HC, HZ, sA)),
              P('s_add_u32 s%d, s%d, 1' % (sTMO, sTMO)),
              P('s_waitcnt vmcnt(0)'),
              P('s_cmp_lt_u32 s%d, 0x100000' % sTMO), P('s_cbranch_scc1 %s' % spin),
              P('s_endpgm'),
              LAB(hok),
              P('s_cmp_eq_u32 s%d, 0' % sG), P('s_cselect_b32 s53, 0x40000000, 0'),
              P('v_or_b32 v%d, s53, v%d' % (HZ, vL16)),
              P('s_lshl_b32 s53, s%d, 10' % sG), P('s_add_u32 s53, s53, %d' % WS_HST),
              VM('buffer_load_dwordx4 %s, v%d, s[28:31], s53 offen sc1' % (vr(HS, 4), HZ), htags[16]),
              P('s_lshl_b32 s53, s%d, 14' % sG), P('s_add_u32 s%d, s53, %d' % (sA, WS_HF))]
        extras.append((first_idx[hk1], hl))
        for j in range(16):
            ops = []
            if j % 4 == 0:
                ops.append(P('s_add_u32 s%d, s%d, %d' % (sB, sA, j * 1024)))
            ops.append(VM('buffer_load_dwordx4 %s, v%d, s[28:31], s%d offen offset:%d sc1' % (ar(128 + 4 * j, 4), HZ, sB, (j % 4) * 1024), htags[j]))
            extras.append((first_idx[hk1] + 1 + 2 * j, ops))
        if cfg.get('a0_early', 1):
            for k, d in enumerate(self.dma_w1_group(0) + (self.dma_w1_group(1) if cfg.get('a1_tail', 1) else [])):
                extras.append((first_idx[hk1] + 34 + cfg.get('a0_step', 2) * k, d))
        for k, t in enumerate(self.touch_set(cfg.get('t_p1b', ''))):
            extras.append((first_idx[hk1] + 34 + 6 * k, t))
        extras += self.spread([W(htags[16])] + self.stats_from_st(HS, self.PH), first_idx[15] - 14, 1)
        extras += self.sched_touches('p1b', first_idx)
        o(self.gemm_loop(groups, cfg.get('la', 3), extras))
        groups = []
        for j in range(16):
            dst = self.afrag(j)
            g = dict(pre=[], reads=[LG('ds_read_b64_tr_b16 v[%d:%d], v%d offset:%d' % (dst + 2 * part, dst + 2 * part + 1, vE1, j * 2048 + part * 1024)) for part in range(2)], mf=[])
            c = '0' if j == 0 else vr(self.ACC_H, 4)
            g['mf'].append(('v_mfma_f32_16x16x32_bf16 %s, %s, %s, %s' % (vr(self.ACC_H, 4), vr(dst, 4), ar(128 + 4 * j, 4), c), [htags[j]]))
            groups.append(g)
        o(self.gemm_loop(groups, 6, []))
        o(P('s_barrier'))

    def x_loads(self, nk, ring=None, depth=None):
        xl = []
        for j in range(nk):
            row = []
            for b in range(2):
                slot = j if depth is None else j % depth
                ops = []
                if j % 4 == 0:
                    ops.append(P('s_add_u32 s%d, s%d, %d' % (sXL0 + b, sB0 + b, j * 1024)))
                if self.cfg.get('noxl'):
                    ops.append(P('s_nop 0'))
                else:
                    ops.append(VM('buffer_load_dwordx4 %s, v%d, s[28:31], s%d offen offset:%d%s' % (ar((slot * 2 + b) * 4, 4), vL16, sXL0 + b, (j % 4) * 1024, '' if self.cfg.get('plainld') else ' sc1')))
                row.append(ops)
            xl.append(row)
        return xl

    def dual_store(self, stores):
        pure = self.L('stp'); done = self.L('std')
        o = [P('s_cmp_eq_u32 s%d, 0' % sMODE), P('s_cbranch_scc1 %s' % pure)]
        o += [P(s + ' sc1') for s in stores]
        o += [P('s_branch %s' % done), LAB(pure)]
        o += [P(s) for s in stores]
        o += [LAB(done)]
        cnt = [VM('; counted store') for _ in stores]
        return o + cnt, [c.tag for c in cnt]

    def p1_epi(self, dmas):
        o = []
        CS = vT + 12
        CSH = vT + 36
        Q = vT + 40
        K = vT + 48
        V = vT + 56
        HP = vT + 64
        TT = vT + 66
        cst = []
        for b in range(6):
            x = LG('ds_read_b128 %s, v%d offset:%d' % (vr(CS + 4 * b, 4), vCS, L_CSQ + b * 64)); cst.append(x.tag); o.append(x)
        o += [P('s_add_u32 s53, s%d, 2' % sW), P('s_lshl_b32 s53, s53, 6'), P('v_add_u32 v%d, s53, v%d' % (TT, vCS))]
        x = LG('ds_read_b128 %s, v%d offset:%d' % (vr(CSH, 4), TT, L_CSQ)); csh = x.tag; o.append(x)

        def ln(acc, cs, pair, dst):
            r = []
            for hh in range(2):
                t = TT + 2 * hh
                r.append(P('v_pk_mul_f32 %s, %s, %s op_sel:[0,1] op_sel_hi:[1,1]' % (vr(t, 2), vr(cs + 2 * hh, 2), vr(pair, 2))))
            for hh in range(2):
                t = TT + 2 * hh
                r.append(P('v_pk_fma_f32 %s, %s, %s, %s op_sel_hi:[1,0,1]' % (vr(t, 2), vr(acc + 2 * hh, 2), vr(pair, 2), vr(t, 2))))
            for hh in range(2):
                t = TT + 2 * hh
                r.append(P('v_cvt_pk_bf16_f32 v%d, v%d, v%d' % (dst + hh, t, t + 1)))
            return r
        wtags = []
        for blk in (4, 5, 2, 3, 0, 1):
            o.append(W(cst[blk]))
            for tb in range(2):
                h = blk % 2
                dst = (Q, K, V)[blk // 2] + (tb * 2 + h) * 2
                pair = self.PQ[tb] if blk < 2 else self.PKV[tb]
                o += ln(self.accP1(blk, tb), CS + 4 * blk, pair, dst)
                if blk >= 4:
                    x = LG('ds_write_b64 v%d, %s offset:%d' % (vEXV, vr(dst, 2), tb * 1024 + h * 512)); o.append(x)
                elif blk >= 2 and tb == 1:
                    x = LG('ds_write_b64 v%d, %s offset:%d' % (vEXK, vr(dst, 2), h * 512)); o.append(x)
            if blk == 3:
                o.append(W(csh))
                o += ln(self.ACC_H, CSH, self.PH, HP)
                o.append(LG('ds_write_b64 v%d, %s' % (vEXH, vr(HP, 2))))
        o += [WALL(False, True), P('s_barrier')]
        KP = vT + 70
        VV = vT + 12
        SC = vACC
        SP = vACC + 16
        PB = vACC + 32
        LL = vT + 24
        OO = vACC + 48
        MX = vT + 74
        rk = []; rv = []
        for h in range(2):
            x = LG('ds_read_b64 %s, v%d offset:%d' % (vr(KP + 2 * h, 2), vRK, h * 512)); rk.append(x.tag); o.append(x)
        for h in range(2):
            x = LG('ds_read_b64_tr_b16 %s, v%d offset:%d' % (vr(VV + 6 * h, 2), vRVP, h * 512)); rv.append(x.tag); o.append(x)
            for tb in range(2):
                x = LG('ds_read_b64_tr_b16 %s, v%d offset:%d' % (vr(VV + 6 * h + 2 + 2 * tb, 2), vRV, tb * 1024 + h * 512)); rv.append(x.tag); o.append(x)
        insts = [(tb, h) for tb in range(2) for h in range(2)]
        for n, (tb, h) in enumerate(insts):
            q = Q + (tb * 2 + h) * 2
            o.append(P('v_mfma_f32_16x16x16_bf16 %s, %s, %s, %s' % (vr(SC + 4 * n, 4), vr(K + (tb * 2 + h) * 2, 2), vr(q, 2), vr(vCCUR, 4))))
        for n, (tb, h) in enumerate(insts):
            q = Q + (tb * 2 + h) * 2
            if tb == 0:
                o.append(W(rk[h]))
                o.append(P('v_mfma_f32_16x16x16_bf16 %s, %s, %s, %s' % (vr(SP + 4 * n, 4), vr(KP + 2 * h, 2), vr(q, 2), vr(vCPA, 4))))
            else:
                o.append(P('v_mfma_f32_16x16x16_bf16 %s, %s, %s, %s' % (vr(SP + 4 * n, 4), vr(K + h * 2, 2), vr(q, 2), vr(vCPREV, 4))))
        for n in range(4):
            for r in range(4):
                o.append(P('v_max_f32 v%d, v%d, v%d' % (SC + 4 * n + r, SC + 4 * n + r, SP + 4 * n + r)))
        for n in range(4):
            o.append(P('v_max3_f32 v%d, v%d, v%d, v%d' % (MX + n, SC + 4 * n, SC + 4 * n + 1, SC + 4 * n + 2)))
        for n in range(4):
            o.append(P('v_max_f32 v%d, v%d, v%d' % (MX + n, MX + n, SC + 4 * n + 3)))
        a, b, c, d = MX, MX + 1, MX + 2, MX + 3
        o += [P('v_permlane32_swap_b32 v%d, v%d' % (a, b)), P('v_permlane32_swap_b32 v%d, v%d' % (c, d)),
              P('v_max_f32 v%d, v%d, v%d' % (a, a, b)), P('v_max_f32 v%d, v%d, v%d' % (c, c, d)),
              P('v_permlane16_swap_b32 v%d, v%d' % (a, c)), P('v_max_f32 v%d, v%d, v%d' % (a, a, c)),
              P('v_mov_b32 v%d, v%d' % (c, a)), P('v_permlane16_swap_b32 v%d, v%d' % (a, c)),
              P('v_mov_b32 v%d, v%d' % (b, a)), P('v_mov_b32 v%d, v%d' % (d, c)),
              P('v_permlane32_swap_b32 v%d, v%d' % (a, b)), P('v_permlane32_swap_b32 v%d, v%d' % (c, d))]
        for n in range(4):
            for hh in range(2):
                o.append(P('v_sub_f32 v%d, v%d, v%d' % (SC + 4 * n + 2 * hh, SC + 4 * n + 2 * hh, MX + n)))
                o.append(P('v_sub_f32 v%d, v%d, v%d' % (SC + 4 * n + 2 * hh + 1, SC + 4 * n + 2 * hh + 1, MX + n)))
        for n in range(4):
            for r in range(4):
                o.append(P('v_exp_f32 v%d, v%d' % (SC + 4 * n + r, SC + 4 * n + r)))
        for n in range(4):
            for hh in range(2):
                o.append(P('v_cvt_pk_bf16_f32 v%d, v%d, v%d' % (SP + 4 * n + hh, SC + 4 * n + 2 * hh, SC + 4 * n + 2 * hh + 1)))
        for n in range(4):
            for hh in range(2):
                o.append(P('v_cndmask_b32_e64 v%d, 0, v%d, s[%d:%d]' % (PB + 4 * n + hh, SP + 4 * n + hh, sUP, sUP + 1)))
                o.append(P('v_cndmask_b32_e64 v%d, v%d, 0, s[%d:%d]' % (PB + 4 * n + 2 + hh, SP + 4 * n + hh, sUP, sUP + 1)))
        o.append(W(rv))
        o.append(P('s_barrier'))
        for n, (tb, h) in enumerate(insts):
            o.append(P('v_mfma_f32_16x16x32_bf16 %s, %s, %s, 0' % (vr(LL + 4 * n, 4), vr(vONES, 4), vr(PB + 4 * n, 4))))
            o.append(P('v_mfma_f32_16x16x32_bf16 %s, %s, %s, 0' % (vr(OO + 4 * n, 4), vr(VV + 6 * h + 2 * tb, 4), vr(PB + 4 * n, 4))))
        for n in range(4):
            o.append(P('v_rcp_f32 v%d, v%d' % (LL + 4 * n, LL + 4 * n)))
        OUTR = vT + 40
        for n, (tb, h) in enumerate(insts):
            for hh in range(2):
                o.append(P('v_pk_mul_f32 %s, %s, %s op_sel_hi:[1,0]' % (vr(OO + 4 * n + 2 * hh, 2), vr(OO + 4 * n + 2 * hh, 2), vr(LL + 4 * n, 2))))
        for n, (tb, h) in enumerate(insts):
            for hh in range(2):
                o.append(P('v_cvt_pk_bf16_f32 v%d, v%d, v%d' % (OUTR + (tb * 2 + h) * 2 + hh, OO + 4 * n + 2 * hh, OO + 4 * n + 2 * hh + 1)))
        if dmas:
            k = min(i for i, x in enumerate(o) if x.text == 's_barrier') + 1
            body = interleave(o[k:], dmas, start=0, every=max(1, (len(o) - k) // (len(dmas) + 1)))
            o = o[:k] + body
        o += [P('s_lshl_b32 s54, s%d, 15' % sW), P('s_add_u32 s53, s54, s%d' % sOF), P('s_lshl_b32 s54, s%d, 10' % sM),
              P('s_add_u32 s53, s53, s54'), P('s_add_u32 s54, s53, 16384')]
        return o, ['buffer_store_dwordx4 %s, v%d, s[28:31], s%d offen' % (vr(OUTR + 4 * tb, 4), vL16, 53 + tb) for tb in range(2)]

    def mode_load(self):
        self.tag_mode = newtag('mode')
        return [P('s_lshr_b32 s53, s%d, 1' % sG), P('s_lshl_b32 s53, s53, 5'), P('s_and_b32 s54, s%d, 1' % sG),
                P('s_lshl_b32 s54, s54, 2'), P('s_add_u32 s%d, s53, s54' % sA),
                P('v_mov_b32 v%d, 0' % vTB),
                VM('buffer_load_dword v%d, v%d, s[36:39], s%d offen sc1' % (vTA, vTB, sA), self.tag_mode)]

    def mode_check(self):
        spin = self.L('rsp'); ok = self.L('rok')
        return [W(self.tag_mode), P('s_mov_b32 s%d, 0' % sTMO),
                P('v_readfirstlane_b32 s54, v%d' % vTA),
                P('s_nop 4'),
                P('s_and_b32 s52, s54, 31'), P('s_cmp_eq_u32 s52, 16'), P('s_cbranch_scc1 %s' % ok),
                LAB(spin),
                P('buffer_load_dword v%d, v%d, s[36:39], s%d offen sc1' % (vTA, vTB, sA)),
                P('s_add_u32 s%d, s%d, 1' % (sTMO, sTMO)),
                P('s_waitcnt vmcnt(0)'),
                P('v_readfirstlane_b32 s54, v%d' % vTA),
                P('s_nop 4'),
                P('s_and_b32 s52, s54, 31'), P('s_cmp_eq_u32 s52, 16'), P('s_cbranch_scc1 %s' % ok),
                P('s_cmp_lt_u32 s%d, 0x100000' % sTMO), P('s_cbranch_scc1 %s' % spin),
                P('s_endpgm'),
                LAB(ok),
                P('s_lshr_b32 s52, s54, 5'), P('s_and_b32 s52, s52, 255'), P('s_mul_i32 s52, s52, s52'),
                P('s_lshr_b32 s54, s54, 13'), P('s_lshl_b32 s54, s54, 4'),
                P('s_cmp_lg_u32 s52, s54'), P('s_cselect_b32 s%d, 1, 0' % sMODE)] + \
            ([P('s_mov_b32 s%d, 1' % sMODE)] if self.cfg.get('force_mixed') else []) + self.set_bases()

    def set_bases(self):
        o = [P('s_mul_i32 s52, s%d, %d' % (sG, ACT_G)), P('s_add_u32 s52, s52, %d' % WS_ACT),
             P('s_mul_i32 s53, s%d, %d' % (sG, 8 * 57344)), P('s_lshl_b32 s54, s%d, 13' % sG),
             P('s_cmp_eq_u32 s%d, %d' % (sMODE, 7 if self.cfg.get('noalias') else 0))]
        def sel(dst, pure_off, mixed_base_s, mixed_imm):
            return [P('s_add_u32 s55, s52, %d' % pure_off), P('s_add_u32 s%d, s%d, %d' % (dst, mixed_base_s, mixed_imm)),
                    P('s_cmp_eq_u32 s%d, %d' % (sMODE, 7 if self.cfg.get('noalias') else 0)),
                    P('s_cselect_b32 s%d, s55, s%d' % (dst, dst))]
        o += sel(sOF, 0, sGBASE, WS_OF) + sel(sAF, 0, 53, WS_AF) + sel(sX1, 458752, sGBASE, WS_XF) + \
            sel(sX2, 458752, sGBASE, WS_XF + XF_K) + sel(sS1, 589824, 54, WS_ST) + sel(sS2, 589824, 54, WS_ST + ST_K)
        for d, v in ((dOF, OF_R), (dAF, AF_R), (dX1, 2 * XF_K), (dS1, 2 * ST_K)):
            o.append(P('s_cselect_b32 s%d, 0, %d' % (d, v)))
        return o

    def gemmB(self, nk, srdW, src_base, nblk, depth, resident, refill_tags_out, exb, pre_extras=None, posf=None, tail=None, post=None, inloop=None, tail_lds=False):
        o = []
        o += [P('s_and_b32 s52, s%d, 1' % sW), P('s_mul_i32 s52, s52, %d' % (nk * 1024)),
              P('s_add_u32 s52, s52, s%d' % src_base),
              P('s_mul_i32 s53, s%d, %d' % (sTB, nblk * 1024)), P('s_add_u32 s%d, s52, s53' % sB0),
              P('s_xor_b32 s53, s%d, 1' % sTB), P('s_mul_i32 s53, s53, %d' % (nblk * 1024)), P('s_add_u32 s%d, s52, s53' % sB1)]
        xl = self.x_loads(nk, depth=depth)
        pro = min(nk, self.cfg.get('b_pro', 4))
        for t in range(pro):
            o += xl[t][0] + xl[t][1]
        groups = []; n = 0; first_idx = {}; mfidx = 0
        acc = lambda s, fb: vACC + (s * 4 + fb) * 4
        refills = []
        if nk > resident:
            for t in range(resident, nk):
                for kh in range(2):
                    refills.append(self.dma_wo_slot(srdW, nk, t, kh, posf(t)))
        for t in range(nk):
            first_idx[t] = mfidx
            pos = posf(t) if posf else t
            for fb in range(4):
                dst = self.afrag(n); n += 1
                g = dict(pre=[], reads=[], mf=[])
                if fb == 0 and t == resident:
                    g['pre'] += [W(self.vmtags(refills)), P('s_barrier')]
                for part in range(2):
                    a = pos * 8192 + part * 2048
                    win = a >> 16
                    g['reads'].append(LG('ds_read_b64_tr_b16 v[%d:%d], v%d offset:%d' % (dst + 2 * part, dst + 2 * part + 1, vW2A + fb * 3 + win, a & 0xffff)))
                for s in range(2):
                    c = '0' if t == 0 else vr(acc(s, fb), 4)
                    wt = self.vmtags(xl[t][s]) if fb == 0 else []
                    g['mf'].append(('v_mfma_f32_16x16x32_bf16 %s, %s, %s, %s' % (vr(acc(s, fb), 4), vr(dst, 4), ar(((t % depth) * 2 + s) * 4, 4), c), wt))
                mfidx += 2
                groups.append(g)
        extras = []
        last = -1
        for t in range(pro, nk):
            if t < depth:
                at = first_idx[min(nk - 1, (t - pro) // 2)] + 1 + 4 * ((t - pro) % 2)
            else:
                at = first_idx[t - depth] + 7
            at = max(at, last + 1)
            extras.append((at, xl[t][0])); extras.append((at + 1, xl[t][1]))
            last = at + 1
        if inloop:
            for k, d in enumerate(inloop):
                extras.append((last + 2 + self.cfg.get('a2_step', 5) * k, d))
        if refills:
            nfree = nk - resident
            bar_at = first_idx[nfree] - 1
            extras.append((bar_at, [P('s_barrier')]))
            for k, d in enumerate(refills):
                extras.append((first_idx[nfree + k // 3] + 1 + 2 * (k % 3), d))
        if tail and tail_lds:
            extras.append((first_idx[resident] - 1, [P('s_barrier')]))
            nt_ = nk - resident
            for k, d in enumerate(tail):
                extras.append((first_idx[resident] + 1 + k * (8 * nt_ - 4) // len(tail), d))
        elif tail:
            allb = [t_ for row in xl for blk in row for t_ in self.vmtags(blk)]
            extras.append((first_idx[resident] - 1, [W(allb), P('s_barrier')]))
            nt_ = nk - resident
            t0_ = self.cfg.get('tail_k0', 0)
            for k, d in enumerate(tail):
                kk = t0_ + k * (nt_ - t0_) // len(tail)
                sk = self.L('tsk')
                extras.append((first_idx[resident + kk] + 1 + 2 * (k % 3),
                               [P('s_cmp_lg_u32 s%d, 0' % sRND), P('s_cbranch_scc1 %s ;nopad' % sk)] + d + [LAB(sk)]))
        if pre_extras and False:
            for k, t in enumerate(pre_extras):
                extras.append((first_idx[min(nk - 1, self.cfg.get('t_p4_k', 16) + 2 * k)] + 4, t))
        extras += self.sched_touches('p4' if nk == 28 else 'p2', first_idx)
        if nk == 28 and self.cfg.get('code_staged', 1) and self.cfg.get('t_code', 1):
            extras.append((first_idx[16] + 3, self.touch_code('L_C5', 'L_END', 72)))
        o += self.gemm_loop(groups, self.cfg.get('la', 3), extras)
        o.append(P('s_barrier'))
        o += [P('v_add_u32 v%d, %d, v%d' % (vTA, exb, vEXBW)), P('v_add_u32 v%d, %d, v%d' % (vTB, exb, vEXBR))]
        if post and tail_lds:
            o += self.flat(post)
        elif post:
            sk = self.L('psk')
            o += [P('s_cmp_lg_u32 s%d, 0' % sRND), P('s_cbranch_scc1 %s ;nopad' % sk)] + self.flat(post) + [LAB(sk)]
        for fb in range(4):
            o.append(LG('ds_write_b128 v%d, %s offset:%d' % (vTA, vr(acc(1, fb), 4), fb * 1024)))
        o += [WALL(False, True), P('s_barrier')]
        PT = vT
        rt = []
        for fb in range(4):
            x = LG('ds_read_b128 %s, v%d offset:%d' % (vr(PT + 4 * fb, 4), vTB, fb * 1024)); rt.append(x.tag); o.append(x)
        U = vT + 16
        for fb in range(4):
            for hh in range(2):
                r = vR + fb * 2 + hh
                o += [P('v_lshlrev_b32 v%d, 16, v%d' % (U + fb * 4 + hh * 2, r)), P('v_and_b32 v%d, 0xffff0000, v%d' % (U + fb * 4 + hh * 2 + 1, r))]
        for fb in range(4):
            for hh in range(2):
                a = acc(0, fb) + 2 * hh
                o.append(P('v_pk_add_f32 %s, %s, %s' % (vr(a, 2), vr(a, 2), vr(U + fb * 4 + 2 * hh, 2))))
        for fb in range(4):
            o.append(W(rt[fb]))
            for hh in range(2):
                a = acc(0, fb) + 2 * hh
                o.append(P('v_pk_add_f32 %s, %s, %s' % (vr(a, 2), vr(a, 2), vr(PT + fb * 4 + 2 * hh, 2))))
        for fb in range(4):
            for hh in range(2):
                a = acc(0, fb) + 2 * hh
                o.append(P('v_cvt_pk_bf16_f32 v%d, v%d, v%d' % (vR + fb * 2 + hh, a, a + 1)))
        return o

    def sw4(self):
        return self.touch_set(self.cfg.get('t_p4', ''), only_r1=True)

    def row_stats(self):
        s1 = vT + 32; s2 = vT + 33
        o = [P('v_mov_b32 v%d, 0' % s1), P('v_mov_b32 v%d, 0' % s2)]
        for k in range(8):
            o += [P('v_dot2c_f32_bf16 v%d, v%d, v%d' % (s1, vR + k, vONES)), P('v_dot2c_f32_bf16 v%d, v%d, v%d' % (s2, vR + k, vR + k))]
        o += self.reduce_g2(s1, s2)
        return o

    def x_stores(self, sx, ss):
        return [P('s_mul_i32 s53, s%d, 16384' % sTB), P('s_add_u32 s53, s53, s%d' % sx), P('s_lshl_b32 s54, s%d, 11' % sCT),
                P('s_add_u32 s53, s53, s54'),
                P('s_lshl_b32 s54, s%d, 10' % sTB), P('s_add_u32 s54, s54, s%d' % ss)]

    def x_store_block(self):
        pure = self.L('stp'); done = self.L('std')
        def body(fl):
            return [P('buffer_store_dwordx4 %s, v%d, s[28:31], s53 offen%s' % (vr(vR, 4), vL16, fl)),
                    P('buffer_store_dwordx4 %s, v%d, s[28:31], s53 offen offset:1024%s' % (vr(vR + 4, 4), vL16, fl)),
                    P('s_mov_b64 exec, 0xffff'),
                    P('buffer_store_dwordx2 %s, v%d, s[28:31], s54 offen%s' % (vr(vT + 32, 2), vSTO, fl)),
                    P('s_mov_b64 exec, -1')]
        o = [P('s_cmp_eq_u32 s%d, 0' % sMODE), P('s_cbranch_scc1 %s' % pure)] + body(' sc1') + \
            [P('s_branch %s' % done), LAB(pure)] + body('') + [LAB(done)]
        cnt = [VM('; counted store') for _ in range(3)]
        return o + cnt, [c.tag for c in cnt]

    def p3(self, extras_w2):
        o = []
        cfg = self.cfg
        for b in range(2):
            o += [P('s_lshl_b32 s53, s%d, 1' % sW), P('s_add_u32 s53, s53, %d' % b), P('s_lshl_b32 s53, s53, 14'),
                  P('s_add_u32 s%d, s53, s%d' % (sB0 + b, sX1))]
        xl = self.x_loads(16)
        pro = cfg.get('x_pro', 4)
        for j in range(pro):
            o += xl[j][0] + xl[j][1]
        stt = []
        STR = vT + 12
        PA = [vT + 0, vT + 2]
        for b in range(2):
            t = newtag('st'); stt.append(t)
            o += [P('s_lshl_b32 s54, s%d, 11' % sW), P('s_add_u32 s53, s54, s%d' % sS1),
                  P('s_add_u32 s53, s53, %d' % (b * 1024)),
                  VM('buffer_load_dwordx4 %s, v%d, s[28:31], s53 offen sc1' % (vr(STR + 4 * b, 4), vL16), t)]
        acc = lambda fb, tb: vACC + (fb * 2 + tb) * 4
        a3 = self.dma_w1_group(3)
        groups = []; n = 0; first_idx = {}; mfidx = 0
        for j in range(16):
            first_idx[j] = mfidx
            base = L_W1P[j // 4] + (j % 4) * 7168
            for fb in range(7):
                dst = self.afrag(n); n += 1
                g = dict(pre=[], reads=[], mf=[])
                if j == 12 and fb == 0:
                    g['pre'] += [W(self.vmtags(a3)), P('s_barrier')]
                for part in range(2):
                    a = base + part * 3584 + fb * 32
                    win = a >> 16
                    g['reads'].append(LG('ds_read_b64_tr_b16 v[%d:%d], v%d offset:%d' % (dst + 2 * part, dst + 2 * part + 1, vW1A + win, a & 0xffff)))
                for tb in range(2):
                    c = '0' if j == 0 else vr(acc(fb, tb), 4)
                    wt = self.vmtags(xl[j][tb]) if fb == 0 else []
                    g['mf'].append(('v_mfma_f32_16x16x32_bf16 %s, %s, %s, %s' % (vr(acc(fb, tb), 4), vr(dst, 4), ar((j * 2 + tb) * 4, 4), c), wt))
                mfidx += 2
                groups.append(g)
        extras = []
        k = 0
        rate = cfg.get('x_rate', 4)
        for j in range(pro, 16):
            for b in range(2):
                extras.append((first_idx[k // rate] + 1 + (14 // rate) * (k % rate), xl[j][b])); k += 1
        at = extras[-1][0] + 2
        for d in a3:
            extras.append((at, d)); at += 4
        st_ops = [W(stt)]
        for b in range(2):
            st_ops += self.stats_from_st(STR + 4 * b, PA[b], scale=LOG2E)
        extras += self.spread(st_ops, first_idx[2] + 2, 1)
        at = max(at, first_idx[9])
        for d in extras_w2:
            extras.append((at, d)); at += cfg.get('w2e_step', 7)
        for k, t in enumerate(self.touch_set(cfg.get('t_p3', 'af'), only_r1=True)):
            extras.append((first_idx[min(15, cfg.get('t_p3_k', 9) + 2 * k)] + 4, t))
        extras += self.sched_touches('p3', first_idx)
        if cfg.get('code_staged', 1) and cfg.get('t_code', 1):
            extras.append((first_idx[10] + 6, self.touch_code('L_C4', 'L_C5', 72)))
        o += self.gemm_loop(groups, cfg.get('la', 3), extras)
        o.append(P('s_barrier'))
        return o, PA

    def cs_w1(self):
        o = []
        A0 = vT + 40; A1 = vT + 44
        ad = vT + 48
        o += [P('s_lshl_b32 s53, s%d, 5' % sW), P('s_add_u32 s54, s%d, 4' % sW), P('s_min_u32 s54, s54, 6'), P('s_lshl_b32 s54, s54, 5')]
        for win in range(3):
            o += [P('v_add_u32 v%d, s53, v%d' % (ad + win, vW1A + win)), P('v_add_u32 v%d, s54, v%d' % (ad + 3 + win, vW1A + win))]
        groups = []; n = 0
        for j in range(16):
            base = L_W1P[j // 4] + (j % 4) * 7168
            for e in range(2):
                dst = self.afrag(n); n += 1
                g = dict(pre=[], reads=[], mf=[])
                for part in range(2):
                    a = base + part * 3584
                    g['reads'].append(LG('ds_read_b64_tr_b16 v[%d:%d], v%d offset:%d' % (dst + 2 * part, dst + 2 * part + 1, ad + 3 * e + (a >> 16), a & 0xffff)))
                accr = A0 if e == 0 else A1
                c = '0' if j == 0 else vr(accr, 4)
                g['mf'].append(('v_mfma_f32_16x16x32_bf16 %s, %s, %s, %s' % (vr(accr, 4), vr(dst, 4), vr(vONES, 4), c), []))
                groups.append(g)
        o += self.gemm_loop(groups, 3, [])
        o += [P('s_lshl_b32 s53, s53, 1'), P('s_lshl_b32 s54, s54, 1'),
              P('v_add_u32 v%d, s53, v%d' % (ad, vCS)), P('v_add_u32 v%d, s54, v%d' % (ad + 1, vCS)),
              P('s_mov_b32 s52, 0x00010001'), P('s_mov_b32 s53, 0x00010001'), P('s_mov_b64 exec, s[52:53]'),
              LG('ds_write_b128 v%d, %s offset:%d' % (ad, vr(A0, 4), L_CS1)),
              LG('ds_write_b128 v%d, %s offset:%d' % (ad + 1, vr(A1, 4), L_CS1)),
              P('s_mov_b64 exec, -1'), WALL(False, True), P('s_barrier')]
        return o

    def p3_epi(self, PA, dmas):
        o = []
        acc = lambda fb, tb: vACC + (fb * 2 + tb) * 4
        CS = vT + 12; BB = vT + 40
        PK = vT + 68
        cst = []
        for fb in range(7):
            x = LG('ds_read_b128 %s, v%d offset:%d' % (vr(CS + 4 * fb, 4), vCS, L_CS1 + fb * 64)); y = LG('ds_read_b128 %s, v%d offset:%d' % (vr(BB + 4 * fb, 4), vCS, L_BB1 + fb * 64))
            cst.append([x.tag, y.tag]); o += [x, y]
        T = vT + 68
        OUTR = lambda tb, fb: vAF + tb * 16 + fb * 2
        body = []
        for fb in range(7):
            body.append(W(cst[fb]))
            prs = [(tb, hh) for tb in range(2) for hh in range(2)]
            E = [T + 2 * k for k in range(4)]; U = [T + 8 + 2 * k for k in range(4)]
            for k, (tb, hh) in enumerate(prs):
                body.append(P('v_pk_fma_f32 %s, %s, %s, %s op_sel:[0,1,0] op_sel_hi:[1,1,1]' % (vr(E[k], 2), vr(CS + 4 * fb + 2 * hh, 2), vr(PA[tb], 2), vr(BB + 4 * fb + 2 * hh, 2))))
            for k, (tb, hh) in enumerate(prs):
                body.append(P('v_pk_fma_f32 %s, %s, %s, %s op_sel_hi:[1,0,1]' % (vr(E[k], 2), vr(acc(fb, tb) + 2 * hh, 2), vr(PA[tb], 2), vr(E[k], 2))))
            for k in range(4):
                body += [P('v_exp_f32 v%d, v%d' % (U[k], E[k])), P('v_exp_f32 v%d, v%d' % (U[k] + 1, E[k] + 1))]
            for k in range(4):
                body.append(P('v_pk_add_f32 %s, %s, s[%d:%d]' % (vr(U[k], 2), vr(U[k], 2), sONE, sONE + 1)))
            for k in range(4):
                body.append(P('v_pk_fma_f32 %s, %s, %s, s[%d:%d]' % (vr(U[k], 2), vr(U[k], 2), vr(U[k], 2), sONE, sONE + 1)))
            for k in range(4):
                body += [P('v_rcp_f32 v%d, v%d' % (U[k], U[k])), P('v_rcp_f32 v%d, v%d' % (U[k] + 1, U[k] + 1))]
            for k in range(4):
                body.append(P('v_pk_fma_f32 %s, %s, s[%d:%d], %s' % (vr(U[k], 2), vr(U[k], 2), sM2L, sM2L + 1, vr(vLN2, 2))))
            for k in range(4):
                body.append(P('v_pk_mul_f32 %s, %s, %s' % (vr(E[k], 2), vr(E[k], 2), vr(U[k], 2))))
            for k, (tb, hh) in enumerate(prs):
                body.append(P('v_cvt_pk_bf16_f32 v%d, v%d, v%d' % (OUTR(tb, fb) + hh, E[k], E[k] + 1)))
        if dmas:
            frac = self.cfg.get('p3e_frac', 100)
            body = interleave(body, dmas, start=4, every=max(1, ((len(body) - 8) * frac // 100) // (len(dmas) + 1)))
        o += body
        o += [P('s_lshr_b32 s52, s%d, 1' % sM), P('s_mul_i32 s52, s52, 7168'), P('s_add_u32 s52, s52, s%d' % sAF),
              P('s_mul_i32 s53, s%d, %d' % (sW, 2 * 57344)), P('s_add_u32 s52, s52, s53'),
              P('s_add_u32 s53, s52, 57344'), P('s_add_u32 s54, s52, 4096'), P('s_add_u32 s55, s53, 4096')]
        def variant(odd, fl):
            r = []
            for tb in range(2):
                b0 = 52 + tb; b1 = 54 + tb
                if not odd:
                    for u in range(3):
                        r.append(P('buffer_store_dwordx4 %s, v%d, s[28:31], s%d offen offset:%d%s' % (vr(OUTR(tb, 2 * u), 4), vL16, b0, u * 1024, fl)))
                    r.append(P('buffer_store_dwordx2 %s, v%d, s[28:31], s%d offen offset:%d%s' % (vr(OUTR(tb, 6), 2), vL16, b0, 3072, fl)))
                else:
                    r.append(P('buffer_store_dwordx2 %s, v%d, s[28:31], s%d offen offset:%d%s' % (vr(OUTR(tb, 0), 2), vL16, b0, 3072 + 8, fl)))
                    for u in range(3):
                        r.append(P('buffer_store_dwordx4 %s, v%d, s[28:31], s%d offen offset:%d%s' % (vr(OUTR(tb, 2 * u + 1), 4), vL16, b1, u * 1024, fl)))
            return r
        l_odd = self.L('odd'); l_e1 = self.L('e1'); l_o1 = self.L('o1'); done = self.L('dn')
        o += [P('s_bitcmp1_b32 s%d, 0' % sM), P('s_cbranch_scc1 %s' % l_odd),
              P('s_cmp_eq_u32 s%d, 0' % sMODE), P('s_cbranch_scc1 %s' % l_e1)] + variant(False, ' sc1') + [P('s_branch %s' % done), LAB(l_e1)] + \
            variant(False, '') + [P('s_branch %s' % done), LAB(l_odd),
              P('s_cmp_eq_u32 s%d, 0' % sMODE), P('s_cbranch_scc1 %s' % l_o1)] + variant(True, ' sc1') + [P('s_branch %s' % done), LAB(l_o1)] + \
            variant(True, '') + [LAB(done)]
        cnt = [VM('; counted store') for _ in range(8)]
        return o + cnt, [c.tag for c in cnt]

    def build(self):
        cfg = self.cfg
        stop = cfg.get('stop', 99)
        o = self.add
        self.prologue()
        o(self.ts(0))
        self.p1a()
        o(self.ts(1))
        o(W(self.tag_res))
        if cfg.get('stash', 1):
            o(self.wq_stash(), WALL(False, True), P('s_barrier'))
        if cfg.get('a0_early', 1):
            o(self.dma_w1_group(0))
        o(LAB('L_P1EPI'))
        wo = [self.dma_wo_slot(SRD_WO, 8, t, kh, t) for t in range(8) for kh in range(2)]
        w1a0 = self.dma_w1_group(0)
        epi, stores = self.p1_epi(wo + ([] if cfg.get('a0_early', 1) else w1a0))
        o(epi)
        ds, tags = self.dual_store(stores)
        o(ds)
        o(self.ts(2, True))
        o(P('s_lshl_b32 s%d, s%d, 2' % (sTGT, sRND)))
        o(self.sync_dyn(1, tags, pre_r1=self.dma_w1_group(1)) if cfg.get('a1_tail', 1) else self.sync_dyn(1, tags, pre=self.dma_w1_group(1)))
        o(self.ts(3, True))
        if stop == 1:
            o(P('s_branch L_END'))
        o(LAB('L_C2'))
        o(self.gemmB(8, SRD_WO, sOF, 16, 8, 8, None, L_EXB2, inloop=self.dma_w1_group(2) if cfg.get('a2_p2', 1) else None))
        o(self.ts(4, True))
        o(self.row_stats())
        o(self.x_stores(sX1, sS1))
        ds, tags = self.x_store_block()
        o(ds)
        o(self.sync_dyn(2, tags, pre=None if cfg.get('a2_p2', 1) else self.dma_w1_group(2)))
        o(self.ts(5, True))
        if stop == 2:
            o(P('s_branch L_END'))
        w2_early = [self.dma_wo_slot(SRD_W2, 28, W2_T_AT[p], kh, p) for p in range(5) for kh in range(2)]
        body, PA = self.p3(w2_early)
        o(body)
        skip = self.L('cs1')
        o(P('s_cmp_lg_u32 s%d, 0' % sRND), P('s_cbranch_scc1 %s' % skip))
        o(self.cs_w1())
        o(LAB(skip))
        o(self.ts(6, True))
        n_epi = cfg.get('w2_epi_p', 15)
        w2_epi = [self.dma_wo_slot(SRD_W2, 28, W2_T_AT[p], kh, p) for p in range(5, n_epi) for kh in range(2)]
        epi, tags = self.p3_epi(PA, w2_epi)
        o(epi)
        o(self.ts(7, True))
        o(self.sync_dyn(3, tags, pre=[self.dma_wo_slot(SRD_W2, 28, W2_T_AT[p], kh, p) for p in range(n_epi, 19) for kh in range(2)]))
        o(self.ts(8, True))
        if stop == 3:
            o(P('s_branch L_END'))
        o(LAB('L_C4'))
        if cfg.get('stash', 1):
            VA, VB = vT + 60, vT + 61
            o(P('s_cmp_eq_u32 s%d, 0' % sRND), P('s_cselect_b64 s[74:75], -1, 0'))
            o(P('s_lshl_b32 s53, s%d, 10' % sW), P('s_add_u32 s53, s53, %d' % L_W), P('v_add_u32 v%d, s53, v%d' % (VA, vL16)),
              P('v_add_u32 v%d, 0x10000, v%d' % (VB, VA)))
            wq_tail = self.wq_restore([0, 1, 2, 4, 5, 6, 8, 9, 10, 11], VA, VB)
            wq_post = self.wq_restore([3, 7], VA, VB)
            o(self.gemmB(28, SRD_W2, sAF, 56, 16, 19, None, L_EXB4, posf=w2pos, tail=wq_tail, post=wq_post, tail_lds=True))
        else:
            wq_tail = self.dma_wq_quarter(0, src=None) + self.dma_wq_quarter(1, src=None) + self.dma_wq_quarter(2, src=None) + self.dma_wq_quarter(3, panels=(2,), src=None)
            wq_post = self.dma_wq_quarter(3, panels=(0, 1), src=None)
            o(self.gemmB(28, SRD_W2, sAF, 56, 16, 19, None, L_EXB4, pre_extras=self.sw4(), posf=w2pos, tail=wq_tail, post=wq_post))
        o(self.ts(9, True))
        o(LAB('L_C5'))
        o(P('s_cmp_lg_u32 s%d, 0' % sRND), P('s_cbranch_scc1 L_FINAL'))
        o(self.row_stats())
        o(self.x_stores(sX2, sS2))
        ds, tags = self.x_store_block()
        o(ds)
        ht = [newtag('hs') for _ in range(3)]
        o(P('s_add_u32 s52, s%d, 1' % sG), P('s_lshl_b32 s53, s52, 14'), P('s_lshl_b32 s54, s%d, 11' % sCT),
          P('s_add_u32 s53, s53, s54'), P('s_add_u32 s53, s53, %d' % WS_HF),
          P('s_lshl_b32 s54, s52, 10'), P('s_add_u32 s54, s54, %d' % WS_HST),
          VM('buffer_store_dwordx4 %s, v%d, s[28:31], s53 offen sc1' % (vr(vR, 4), vHOF), ht[0]),
          VM('buffer_store_dwordx4 %s, v%d, s[28:31], s53 offen offset:1024 sc1' % (vr(vR + 4, 4), vHOF), ht[1]),
          VM('buffer_store_dwordx2 %s, v%d, s[28:31], s54 offen sc1' % (vr(vT + 32, 2), vHST), ht[2]))
        self.halo_store_tags = ht
        o(self.sync_dyn(4, tags))
        o(self.ts(10))
        if stop == 4:
            o(P('s_branch L_END'))
        o(P('s_mov_b32 s%d, 1' % sRND), P('s_add_u32 s%d, s%d, s%d' % (sOF, sOF, dOF)), P('s_add_u32 s%d, s%d, s%d' % (sAF, sAF, dAF)),
          P('s_add_u32 s%d, s%d, s%d' % (sX1, sX1, dX1)), P('s_add_u32 s%d, s%d, s%d' % (sS1, sS1, dS1)))
        self.p1b()
        o(self.ts(27))
        o(WALL(False, True))
        o(P('s_branch L_P1EPI'))
        o(LAB('L_FINAL'))
        for u in range(2):
            o(P('v_permlane16_swap_b32 v%d, v%d' % (vR + 4 * u, vR + 4 * u + 2)), P('v_permlane16_swap_b32 v%d, v%d' % (vR + 4 * u + 1, vR + 4 * u + 3)))
        for u in range(2):
            o(VM('buffer_store_dwordx4 %s, v%d, s[32:35], s61 offen offset:%d' % (vr(vR + 4 * u, 4), vOUT, u * 64)))
        o(self.ts(28), self.ts_flush())
        o(LAB('L_END'), P('s_endpgm'))

    def sync_dyn(self, ph, tags, window=None, pre=None, pre_r1=None):
        if pre_r1:
            l2 = self.L('pr2'); l3 = self.L('pr3')
            raw = [P(x.text) for x in self.flat(pre_r1)]
            nd = sum(1 for x in self.flat(pre_r1) if x.kind == 'vm')
            o = [P('s_cmp_lg_u32 s%d, 0' % sRND), P('s_cbranch_scc1 %s' % l2)] + raw + [P('s_waitcnt vmcnt(%d)' % nd), P('s_branch %s' % l3),
                 LAB(l2), P('s_waitcnt vmcnt(0)'), LAB(l3), MARK(tags)]
        else:
            o = self.flat(pre or []) + [W(tags)]
        if self.cfg.get('sts'):
            o += self.ts(48 + 4 * (ph - 1))
        pure = self.L('fp'); done = self.L('fd')
        o += [P('s_add_u32 s52, s%d, %d' % (sTGT, ph)),
              P('v_mov_b32 v%d, s52' % (vTA)), P('v_mov_b32 v%d, 0' % (vTB)),
              P('s_mov_b64 exec, 1'),
              P('s_cmp_eq_u32 s%d, 0' % sMODE), P('s_cbranch_scc1 %s' % pure),
              P('buffer_store_dword v%d, v%d, s[28:31], s%d offen sc1' % (vTA, vTB, sFLGOFF)),
              P('s_branch %s' % done), LAB(pure),
              P('buffer_store_dword v%d, v%d, s[28:31], s%d offen' % (vTA, vTB, sFLGOFF)),
              LAB(done), VM('; flag store counted'),
              P('s_mov_b64 exec, -1')]
        other = self.L('so'); join = self.L('sj'); loop = self.L('sp')
        o += [P('s_cmp_lg_u32 s%d, 0' % sW), P('s_cbranch_scc1 %s' % other),
              P('v_lshlrev_b32 v%d, 2, v%d' % (vTB, vLANE)),
              P('s_mov_b32 s%d, 0' % sTMO),
              LAB(loop),
              P('buffer_load_dword v%d, v%d, s[28:31], s%d offen sc1' % (vTA, vTB, sGFLG)),
              P('s_add_u32 s%d, s%d, 1' % (sTMO, sTMO)),
              P('s_waitcnt vmcnt(0)'),
              P('v_cmp_gt_u32 vcc, s52, v%d' % (vTA)),
              P('s_cbranch_vccz %s' % join),
              P('s_cmp_lt_u32 s%d, 0x100000' % sTMO),
              P('s_cbranch_scc1 %s' % loop),
              P('s_endpgm'),
              LAB(other)]
        if window and not self.cfg.get('nowin'):
            o += window
        o += [LAB(join)]
        if self.cfg.get('sts'):
            o += self.ts(49 + 4 * (ph - 1)) + [WALL(True, True)] + self.ts(50 + 4 * (ph - 1))
        if self.cfg.get('halo_nowait') and ph == 4:
            o += [WALL(True, True)]
        else:
            o += [WALL(True, True)]
        o += [P('s_barrier')]
        return o

    def text(self):
        self.build()
        body = self.p.render()
        body = [l for l in body if not l.strip().startswith('; counted') and not l.strip().startswith('; flag store')]
        hdr = open('interleave_layers__sliding_local_dilated__dense_activation_mish__prompt.s.ref').read().split('\n')
        head = []
        for l in hdr:
            if l.startswith('; Override') or l.startswith('; grid=') or l.startswith('; @launch'):
                continue
            if l.startswith('.amdgcn_target'):
                break
            head.append(l)
        out = head + ['; @launch grid=(256,1,1) block=(256,1,1) lds=%d' % LDS_BYTES,
                      '.amdgcn_target "amdgcn-amd-amdhsa--gfx950"', '.text', '.globl ' + KNAME, '.p2align 8',
                      '.type %s,@function' % KNAME, KNAME + ':']
        out += body
        out += ['.section .rodata,"a"', '.p2align 6', '.amdhsa_kernel ' + KNAME,
                '  .amdhsa_next_free_vgpr 512', '  .amdhsa_next_free_sgpr 102', '  .amdhsa_accum_offset 256',
                '  .amdhsa_group_segment_fixed_size 0', '  .amdhsa_kernarg_size 80', '  .amdhsa_user_sgpr_count 2',
                '  .amdhsa_user_sgpr_kernarg_segment_ptr 1', '  .amdhsa_system_sgpr_workgroup_id_x 1',
                '  .amdhsa_float_denorm_mode_32 3', '.end_amdhsa_kernel', '']
        return '\n'.join(out)


if __name__ == '__main__':
    cfg = {}
    outp = sys.argv[1]
    for a in sys.argv[2:]:
        k, v = a.split('=')
        try:
            cfg[k] = int(v)
        except ValueError:
            cfg[k] = v
    g = Gen(cfg)
    t = g.text()
    open(outp, 'w').write(t)
    print('wrote', outp, len(t), 'bytes;', 'nops padded:', g.p.npad)
```

```python
import sys, math
from asmlib import *

KNAME = 'interleave_layers__sliding_local_dilated__dense_activation_mish__prompt_kernel'

WS_FLG = 0x0000
WS_HFL = 0x1000
WS_TS = 0x2000
WS_ST = 0x10000
WS_HST = 0x80000
WS_HF = 0x90000
WS_XF = 0x100000
WS_OF = 0x800000
WS_AF = 0x1000000
WS_ACT = 0x2000000
ACT_G = 0x92000
WS_SIZE = 0x2A00000
ST_K = 0x20000; XF_K = 0x200000; OF_R = 0x200000; AF_R = 0x800000

L_CSQ = 0
L_CS1 = 384
L_BB1 = 832
L_W = 2048
L_HALO = 100352
L_RING = 116736
L_EX = 67584
L_EXK = L_EX + 9216
L_W1P = [135168, 106496, 77824, 49152]
L_EXB2 = 2048
L_EXB4 = 100352
LDS_BYTES = 163840
W2_PA = [12, 13, 14, 15, 16, 17, 18, 3, 7]
W2_PB = [0, 1, 2, 4, 5, 6, 8, 9, 10, 11]
def w2pos(t):
    return W2_PA[t] if t < 9 else (W2_PB[t - 9] if t < 19 else W2_PA[t - 19])
W2_T_AT = {w2pos(t): t for t in range(19)}

LOG2E = 1.4426950408889634
LN2 = 0.6931471805599453


def f32(x):
    import struct
    return '0x%08x' % struct.unpack('<I', struct.pack('<f', x))[0]


sRND = 3; sG = 4; sM = 5; sW = 6; sMODE = 7
SRD_X = 8; SRD_WQ = 12; SRD_WO = 16; SRD_W1 = 20; SRD_W2 = 24; SRD_WS = 28; SRD_OUT = 32; SRD_DBG = 36; SRD_B1 = 40
sXCC = 44
sWQ_SRC = 45
sW1K = 46
sWO_SRC = 47
sW1_SRC = 48
sW1_M = 49
sB0 = 50; sB1 = 51
sT0 = 52; sT1 = 53; sT2 = 54; sT3 = 55
sFLGOFF = 56
sGFLG = 57
sST = 58
sTH = 59; sCT = 60
sONE = 62
sM2L = 64
sUP = 66
sMA = 68; sMB = 70; sMC = 72; sMD = 74
sIT = 76; sTMO = 77; sTGT = 78; sA = 79; sB = 80; sC = 81; sD = 82
sXR0 = 83; sXR1 = 84
sHSRC = 85
sTB = 86
sGBASE = 87
sTS = 88
sTSO = 90
sOF = 94; sAF = 95; sX1 = 96; sS1 = 97; sX2 = 98; sS2 = 99
sTUX = 100; sTUG = 101
dOF = 83; dAF = 84; dX1 = 85; dS1 = 82
sXL0 = 92; sXL1 = 93

vLANE = 0; vL16 = 1
vR = 2
vONES = 10
vWQA = 14
vE1 = 18; vE2 = 19
vW1A = 20
vW2A = 23
vDQ = 35; vDO = 36; vD1 = 37
vCS = 44
vL128 = 45
vDUM = 247
vCCUR = 46; vCPREV = 50; vCPA = 54
vEXV = 58; vEXK = 59; vEXH = 60; vRVP = 61; vRV = 62; vRK = 63
vLN2 = 64
vEXBW = 66; vEXBR = 67
vSTO = 68
vHOF = 69
vHST = 70
vOUT = 71
vAF = 72
NAF = 6
vACC = 104
vT = 168
vTA = 254; vTB = 255
vDUMMY = 246
vDX = 240; vDH = 241; vXA = 242; vXB = 243; vHXA = 244; vHXB = 245


class Gen:
    def __init__(self, cfg):
        self.cfg = cfg
        self.p = Prog()
        self.lbl = 0

    def L(self, name):
        self.lbl += 1
        return '%s_%d' % (name, self.lbl)

    def add(self, *a):
        self.p.add(*a)

    def ts(self, idx, rnd=False):
        if not self.cfg.get('ts'):
            return []
        o = [P('s_memrealtime s[92:93]' if self.cfg.get('ts') == 1 else 's_memtime s[92:93]')]
        if rnd:
            o += [P('s_lshl_b32 s91, s%d, 4' % sRND), P('s_add_u32 s91, s91, %d' % idx), P('s_mov_b32 m0, s91'),
                  P('s_waitcnt lgkmcnt(0)'), P('v_writelane_b32 v103, s92, m0')]
        else:
            o += [P('s_waitcnt lgkmcnt(0)'), P('v_writelane_b32 v103, s92, %d' % idx)]
        return o

    def ts_flush(self):
        if not self.cfg.get('ts'):
            return []
        if self.cfg.get('dbgts'):
            o = [P('s_memrealtime s[92:93]'), P('s_waitcnt lgkmcnt(0)'), P('v_readlane_b32 s53, v103, 12'), P('s_nop 4'), P('s_sub_u32 s52, s92, s53'),
                 P('v_writelane_b32 v103, s52, 63')]
            lanes = [1, 2, 10, 27, 28, 63, 6, 9]
            words = [4, 5, 6, 7, 12, 13, 14, 15]
            o += [P('v_readlane_b32 s54, v103, 13')]
            for ln, wd in zip(lanes, words):
                o += [P('v_readlane_b32 s52, v103, %d' % ln), P('s_nop 4')]
                if ln != 63:
                    o += [P('s_sub_u32 s52, s52, s54')]
                o += [P('v_writelane_b32 v252, s52, %d' % wd)]
            o += [P('v_lshlrev_b32 v253, 2, v%d' % vLANE), P('s_cmp_eq_u32 s2, 0'), P('s_cselect_b32 s52, 0, 1'), P('s_or_b32 s52, s52, s%d' % sW),
                  P('s_cmp_eq_u32 s52, 0'), P('s_cselect_b32 s52, 0xf0f0, 0'), P('s_mov_b32 exec_lo, s52'), P('s_mov_b32 exec_hi, 0'),
                  P('s_cbranch_execz L_TSD'),
                  VM('buffer_store_dword v252, v253, s[36:39], 0 offen'), LAB('L_TSD'), P('s_mov_b64 exec, -1')]
            return o
        return [P('v_lshlrev_b32 v252, 2, v%d' % vLANE), VM('buffer_store_dword v103, v252, s[28:31], s90 offen')]

    def dma(self, srd, voff, src_s, src_imm, lds_s, lds_imm, tag=None, st=None):
        st = st if st is not None else sT0
        ops = []
        if lds_s is None:
            ops.append(P('s_mov_b32 m0, %d' % lds_imm))
        else:
            ops.append(P('s_add_u32 m0, s%d, %d' % (lds_s, lds_imm)))
        if src_s is None:
            ops.append(P('s_mov_b32 s%d, %d' % (st, src_imm)))
        else:
            ops.append(P('s_add_u32 s%d, s%d, %d' % (st, src_s, src_imm)))
        if self.cfg.get('nodma') and srd in (SRD_WO, SRD_W1, SRD_W2):
            ops.append(P('s_nop 0'))
            return ops
        nt = ' nt' if (self.cfg.get('nt') and srd in (SRD_W1, SRD_W2)) else ''
        ops.append(VM('buffer_load_dwordx4 v%d, s[%d:%d], s%d offen%s lds' % (voff, srd, srd + 3, st, nt), tag))
        return ops

    def touch(self, srd, unit_s, imm, limit=None, only_r1=False):
        ops = []
        if limit is not None:
            ops += [P('s_add_u32 s55, s%d, %d' % (unit_s, imm[0])), P('s_cmp_lt_u32 s%d, %d' % (unit_s, limit)),
                    P('s_cselect_b32 s55, s55, 0x7ff00000')]
            if imm[1] is not None:
                ops.insert(1, P('s_add_u32 s55, s55, s%d' % imm[1]))
        else:
            ops.append(P('s_add_u32 s55, s%d, %d' % (unit_s, imm)))
        if only_r1:
            ops += [P('s_cmp_eq_u32 s%d, 0' % sRND), P('s_cselect_b32 s55, s55, 0x7ff00000')]
        ops.append(VM('buffer_load_dword a255, v%d, s[%d:%d], s55 offen' % (vL128, srd, srd + 3)))
        return ops

    def touch_w(self, name, only_r1=False):
        srd, size = {'wq': (SRD_WQ, 512 * 3072), 'wo': (SRD_WO, 524288), 'w1': (SRD_W1, 512 * 3584), 'w2': (SRD_W2, 1792 * 1024)}[name]
        return [self.touch(srd, sTUX, k * 0x100000, only_r1=only_r1) for k in range((size + 0xfffff) // 0x100000)]

    def touch_act(self, off, nbytes):
        return [self.touch(SRD_WS, sTUG, (WS_ACT + off, sST), limit=nbytes)]

    def touch_range(self, name, lo, hi, rounds='12'):
        srd = {'wq': SRD_WQ, 'wo': SRD_WO, 'w1': SRD_W1, 'w2': SRD_W2}[name]
        unit = -(-(hi - lo) // (128 * 128)) * 128
        assert unit <= 8192
        nl = unit // 128
        ops = [P('s_lshr_b32 s55, s%d, 13' % sTUX), P('s_mul_i32 s55, s55, %d' % unit), P('s_add_u32 s55, s55, %d' % lo)]
        if rounds != '12':
            ops += [P('s_cmp_eq_u32 s%d, %d' % (sRND, 0 if rounds == '1' else 1)), P('s_cselect_b32 s55, s55, 0x7ff00000')]
        if nl < 64:
            m = (1 << nl) - 1
            ops += [P('s_mov_b32 exec_lo, 0x%x' % (m & 0xffffffff)), P('s_mov_b32 exec_hi, 0x%x' % (m >> 32))]
        ops.append(VM('buffer_load_dword a255, v%d, s[%d:%d], s55 offen' % (vL128, srd, srd + 3)))
        if nl < 64:
            ops.append(P('s_mov_b64 exec, -1'))
        return ops

    def sched_touches(self, phase, first_idx):
        out = []
        for e in str(self.cfg.get('tch', '')).split('+'):
            if not e:
                continue
            f = e.split('.')
            if f[0] != phase:
                continue
            k = int(f[1]); name = f[2]
            if name in ('of', 'af', 'xf'):
                ops = self.touch_set(name)[0]
            else:
                ops = self.touch_range(name, int(f[3]) * 1024, int(f[4]) * 1024, f[5] if len(f) > 5 else '12')
            out.append((first_idx[k] + 3, ops))
        return out

    def touch_act_even(self, off, n):
        unit = -(-n // (64 * 128)) * 128
        nl = unit // 128
        assert nl <= 64
        ops = [P('s_lshr_b32 s55, s%d, 13' % sTUG), P('s_mul_i32 s55, s55, %d' % unit), P('s_add_u32 s55, s55, s%d' % sST),
               P('s_add_u32 s55, s55, %d' % (WS_ACT + off))]
        if nl < 64:
            m = (1 << nl) - 1
            ops += [P('s_mov_b32 exec_lo, 0x%x' % (m & 0xffffffff)), P('s_mov_b32 exec_hi, 0x%x' % (m >> 32))]
        ops.append(VM('buffer_load_dword a255, v%d, s[28:31], s55 offen' % vL128))
        if nl < 64:
            ops.append(P('s_mov_b64 exec, -1'))
        return ops

    def touch_code(self, lab0, lab1, base, nl=1):
        return [P('s_lshr_b32 s55, s%d, 13' % sTUX), P('s_mul_i32 s55, s55, %d' % (nl * 128)),
                P('v_add_u32 v%d, s55, v%d' % (253, vL128)),
                P('v_add_u32 v%d, %s-L_PC, v%d' % (253, lab0, 253)),
                P('v_min_u32 v%d, %s-L_PC, v%d' % (253, lab1, 253)),
                P('s_mov_b64 exec, %d' % ((1 << nl) - 1)),
                VM('global_load_dword a255, v%d, s[%d:%d]' % (253, base, base + 1)),
                P('s_mov_b64 exec, -1')]

    def delta(self, dst, shift=7):
        if not self.cfg.get('split', 0):
            return [P('s_mov_b32 s%d, 0' % dst)]
        return [P('s_xor_b32 s%d, s%d, 4' % (dst, sCT)), P('s_sub_u32 s%d, s%d, s%d' % (dst, dst, sCT)), P('s_lshl_b32 s%d, s%d, %d' % (dst, dst, shift))]

    def touch_mall(self):
        o = [P('s_lshl_b32 s54, s2, 2'), P('s_add_u32 s54, s54, s%d' % sW)]
        for srd, first, n in ((SRD_W1, 0, 224), (SRD_W2, 256, 224), (SRD_WO, 512, 64)):
            o += [P('s_sub_u32 s55, s54, %d' % first), P('s_cmp_lt_u32 s55, %d' % n), P('s_cselect_b32 s55, s55, 0x3ff80'),
                  P('s_lshl_b32 s55, s55, 13'),
                  VM('buffer_load_dword a255, v%d, s[%d:%d], s55 offen' % (vL128, srd, srd + 3))]
        return o

    def touch_set(self, spec, only_r1=False):
        out = []
        for name in spec.split(','):
            if not name:
                continue
            if name == 'of':
                out.append(self.touch_act_even(0, 131072))
            elif name == 'af':
                out.append(self.touch_act_even(131072, 458752 - 131072))
            elif name == 'xf':
                out.append(self.touch_act_even(458752, 139264))
            else:
                out += self.touch_w(name, only_r1)
        return out

    def dma_wq_quarter(self, qd, panels=(0, 1, 2), src=None):
        out = []
        for a in range(2):
            for p in panels:
                rg = 8 * qd + 4 * a
                out.append(self.dma(SRD_WQ, vDQ, src if src is not None else sWQ_SRC, rg * 49152 + p * 1024, sW1K, L_W + p * 32768 + rg * 1024))
        return out

    def dma_wo_slot(self, srd, nk, t, kh, pos):
        js = kh * nk + t
        return self.dma(srd, vDO, sWO_SRC, js * 32768, sW1K, L_W + (2 * pos + kh) * 4096)

    def dma_w1_group(self, a):
        out = []
        for u in range(7):
            out.append(self.dma(SRD_W1, vD1 + u, sW1_SRC, a * 4 * 32 * 3584, sW1_M, L_W1P[a] + u * 1024))
        return out

    def window_loop(self, n0, n1, srd, srcA_s, srcA_imm, srcB, ldsC, ldsD, subs):
        lab = self.L('win'); end = self.L('winend')
        o = [P('s_add_u32 s%d, s%d, %d' % (sIT, sW, n0 - 1)),
             P('s_cmp_ge_u32 s%d, %d' % (sIT, n1)),
             P('s_cbranch_scc1 %s' % end),
             LAB(lab),
             P('s_mul_i32 s%d, s%d, %d' % (sA, sIT, srcB))]
        if srcA_s is not None:
            o.append(P('s_add_u32 s%d, s%d, s%d' % (sA, sA, srcA_s)))
        o.append(P('s_add_u32 s%d, s%d, %d' % (sA, sA, srcA_imm)))
        o.append(P('s_mul_i32 s%d, s%d, %d' % (sB, sIT, ldsD)))
        for (voff, so, lo) in subs:
            o.append(P('s_add_u32 m0, s%d, %d' % (sB, ldsC + lo)))
            o.append(P('s_add_u32 s%d, s%d, %d' % (sT0, sA, so)))
            nt = ' nt' if (self.cfg.get('nt') and srd in (SRD_W1, SRD_W2)) else ''
            if self.cfg.get('nodma'):
                o.append(P('s_nop 0'))
            else:
                o.append(P('buffer_load_dwordx4 v%d, s[%d:%d], s%d offen%s lds' % (voff, srd, srd + 3, sT0, nt)))
        o += [P('s_add_u32 s%d, s%d, 3' % (sIT, sIT)),
              P('s_cmp_lt_u32 s%d, %d' % (sIT, n1)),
              P('s_cbranch_scc1 %s' % lab),
              LAB(end)]
        return o

    def win_wq(self, rg0, rg1):
        return [P('s_lshl_b32 s%d, s%d, 6' % (sC, sM))] + self.window_loop(
            rg0, rg1, SRD_WQ, sC, 0, 49152, L_W, 1024, [(vDQ, p * 1024, p * 32768) for p in range(3)])

    def win_wo(self, srd, nk, t0, t1, dpos=0):
        subs = []
        for kh in range(2):
            for q in range(4):
                subs.append((vDO, kh * nk * 32768 + q * 8192, kh * 4096 + q * 1024))
        return [P('s_lshl_b32 s%d, s%d, 7' % (sC, sCT))] + self.window_loop(
            t0, t1, srd, sC, 0, 32768, L_W + dpos * 8192, 8192, subs)

    def win_w1(self, j0, j1):
        a = j0 // 4
        base = L_W1P[a] - j0 * 7168
        for j in range(j0, j1):
            assert L_W1P[j // 4] + (j % 4) * 7168 == base + j * 7168
        return [P('s_mul_i32 s%d, s%d, 224' % (sC, sM))] + self.window_loop(
            j0, j1, SRD_W1, sC, 0, 32 * 3584, base, 7168, [(vD1 + u, 0, u * 1024) for u in range(7)])

    def gemm_loop(self, groups, LA, extras):
        out = []
        n = len(groups)
        for k in range(min(LA, n)):
            out += groups[k].get('pre', []) + groups[k]['reads']
        flat = []
        for gi, g in enumerate(groups):
            rq = []
            if gi + LA < n:
                rq = list(groups[gi + LA].get('pre', [])) + list(groups[gi + LA]['reads'])
            nm = len(g['mf'])
            chunks = [[] for _ in range(nm)]
            reads_total = sum(1 for x in rq if x.kind == 'lg')
            per = max(1, -(-reads_total // nm))
            c = 0; cnt = 0
            for x in rq:
                chunks[min(c, nm - 1)].append(x)
                if x.kind == 'lg':
                    cnt += 1
                    if cnt == per:
                        cnt = 0; c += 1
            for k, (text, waits) in enumerate(g['mf']):
                w = list(waits)
                if k == 0:
                    w += [x.tag for x in g['reads']]
                flat.append((text, w, g.get('premf', []) if k == 0 else [], chunks[k]))
        extras = sorted(extras, key=lambda e: e[0])
        ei = 0
        for idx, (text, w, premf, chunk) in enumerate(flat):
            if idx == 0:
                out += premf + [W(w)]
            out.append(P(text))
            if idx + 1 < len(flat):
                out += flat[idx + 1][2]
                out.append(W(flat[idx + 1][1]))
            out += chunk
            k = 0
            while ei < len(extras) and extras[ei][0] <= idx and k < self.cfg.get('extra_per', 1):
                out += extras[ei][1]
                ei += 1; k += 1
        while ei < len(extras):
            out += extras[ei][1]; ei += 1
        return out

    @staticmethod
    def flat(ops):
        out = []
        for x in ops:
            if x is None:
                continue
            if isinstance(x, (list, tuple)):
                out += Gen.flat(x)
            else:
                out.append(x)
        return out

    def spread(self, ops, start, step=1, nvec=1):
        out = []; cur = []; nv = 0; at = start
        ops = self.flat(ops)
        for i, x in enumerate(ops):
            cur.append(x)
            t = x.text or ''
            if t.startswith('v_') or t.startswith('buffer_') or t.startswith('ds_'):
                nv += 1
                nxt = (ops[i + 1].text or '') if i + 1 < len(ops) else ''
                glued = (t.startswith('v_cmp') and ' vcc,' in t) or (nxt.startswith('v_cndmask') and nxt.rstrip().endswith('vcc'))
                if nv >= nvec and not glued:
                    out.append((at, cur)); cur = []; nv = 0; at += step
        if cur:
            out.append((at, cur))
        return out

    def afrag(self, n):
        return vAF + (n % NAF) * 4

    def prologue(self):
        cfg = self.cfg
        o = self.add
        o(P('s_cmp_ge_u32 s2, 256'), P('s_cbranch_scc1 L_END'))
        if cfg.get('ts'):
            o(P('v_mov_b32 v103, 0'), self.ts(13))
            if cfg.get('dbgts'):
                o(P('s_memrealtime s[92:93]'), P('s_waitcnt lgkmcnt(0)'), P('v_writelane_b32 v103, s92, 12'))
        o(P('s_load_dwordx16 s[72:87], s[0:1], 0'), P('s_load_dwordx4 s[88:91], s[0:1], 64'))
        if cfg.get('t_code', 1):
            nl = cfg.get('code_nl', 2 if cfg.get('code_staged', 1) else 3)
            o(P('s_getpc_b64 s[50:51]'), LAB('L_PC'),
              P('s_lshr_b32 s52, s2, 3'), P('s_mul_i32 s52, s52, %d' % (4 * nl)),
              P('v_lshrrev_b32 v252, 6, v0'), P('v_mul_u32_u24 v252, %d, v252' % nl), P('v_and_b32 v253, 63, v0'),
              P('v_add3_u32 v252, v252, v253, s52'), P('v_lshlrev_b32 v252, 7, v252'),
              P('v_min_u32 v252, %s-L_PC, v252' % ('L_C2' if cfg.get('code_staged', 1) else 'L_END')),
              P('s_mov_b64 exec, %d' % ((1 << nl) - 1)),
              VM('global_load_dword a255, v252, s[50:51]'),
              P('s_mov_b64 exec, -1'))
        o(P('s_getreg_b32 s%d, hwreg(HW_REG_XCC_ID, 0, 4)' % sXCC))
        o(P('s_and_b32 s52, s2, 7'), P('s_lshr_b32 s53, s2, 3'), P('s_lshr_b32 s54, s53, 4'),
          P('s_lshl_b32 s%d, s52, 1' % sG), P('s_add_u32 s%d, s%d, s54' % (sG, sG)),
          P('s_and_b32 s%d, s53, 15' % sM))
        if cfg.get('cross_groups'):
            o(P('s_lshr_b32 s%d, s2, 4' % sG), P('s_and_b32 s%d, s2, 15' % sM))
        o(P('v_lshrrev_b32 v252, 6, v0'), P('v_and_b32 v%d, 63, v0' % vLANE), P('v_readfirstlane_b32 s%d, v252' % sW))
        I = 250; Gq = 251; RR = 249; I3 = 248; t0 = 252; t1 = 253; t2 = 254; t3 = 255
        o(P('v_lshlrev_b32 v%d, 7, v%d' % (vL128, vLANE)), P('v_lshlrev_b32 v%d, 4, v%d' % (vL16, vLANE)))
        o(P('v_lshrrev_b32 v%d, 2, v%d' % (t0, vLANE)), P('v_lshrrev_b32 v%d, 2, v%d' % (t1, t0)),
          P('v_xor_b32 v%d, v%d, v%d' % (t1, t1, vLANE)), P('v_and_b32 v%d, 3, v%d' % (t1, t1)),
          P('v_lshlrev_b32 v%d, 4, v%d' % (t1, t1)),
          P('v_lshl_add_u32 v%d, v%d, 11, v%d' % (vDX, t0, t1)))
        o(P('v_lshlrev_b32 v%d, 1, v%d' % (t2, t0)), P('v_add_u32 v%d, 16, v%d' % (t3, t2)), P('v_add_u32 v%d, 1, v%d' % (t2, t2)),
          P('v_cmp_gt_u32 vcc, 8, v%d' % t0),
          P('s_lshr_b32 s%d, s%d, 3' % (sTH, sM)), P('s_and_b32 s%d, s%d, 7' % (sCT, sM)),
          P('v_cndmask_b32 v%d, v%d, v%d, vcc' % (t2, t2, t3)),
          P('v_lshl_add_u32 v%d, v%d, 10, v%d' % (vDH, t2, t1)),
          P('s_cmp_eq_u32 s%d, 0' % sG), P('s_cselect_b32 s53, 0x40000000, 0'), P('v_or_b32 v%d, s53, v%d' % (vDH, vDH)))
        o(P('v_lshrrev_b32 v%d, 4, v%d' % (t1, vLANE)), P('v_lshrrev_b32 v%d, 1, v%d' % (t2, vLANE)),
          P('v_xor_b32 v%d, v%d, v%d' % (t1, t1, t2)), P('v_and_b32 v%d, 1, v%d' % (t1, t1)),
          P('v_lshlrev_b32 v%d, 5, v%d' % (t1, t1)), P('v_and_b32 v%d, 1, v%d' % (t2, vLANE)),
          P('v_lshl_add_u32 v%d, v%d, 4, v%d' % (t1, t2, t1)),
          P('v_mul_u32_u24 v%d, 3072, v%d' % (t2, t0)), P('v_add_u32 v%d, v%d, v%d' % (vDQ, t1, t2)))
        o(P('s_mov_b32 s%d, 0' % sRND), P('s_mov_b32 s%d, 0' % sMODE),
          P('s_mul_i32 s%d, s%d, 49152' % (sWQ_SRC, sW)), P('s_lshl_b32 s52, s%d, 6' % sM),
          P('s_add_u32 s%d, s%d, s52' % (sWQ_SRC, sWQ_SRC)),
          P('s_lshl_b32 s%d, s%d, 10' % (sW1K, sW)),
          P('s_lshl_b32 s%d, s%d, 13' % (sWO_SRC, sW)), P('s_and_b32 s52, s%d, %d' % (sCT, 3 if cfg.get('split', 0) else 7)), P('s_lshl_b32 s52, s52, 7'),
          P('s_add_u32 s%d, s%d, s52' % (sWO_SRC, sWO_SRC)),
          P('s_mul_i32 s%d, s%d, %d' % (sW1_SRC, sW, 32 * 3584)), P('s_mul_i32 s52, s%d, 224' % sM),
          P('s_add_u32 s%d, s%d, s52' % (sW1_SRC, sW1_SRC)),
          P('s_mul_i32 s%d, s%d, 7168' % (sW1_M, sW)),
          P('s_lshl_b32 s%d, s%d, 8' % (sGFLG, sG)),
          P('s_lshl_b32 s52, s%d, 2' % sM), P('s_add_u32 s52, s52, s%d' % sW), P('s_lshl_b32 s52, s52, 2'),
          P('s_add_u32 s%d, s%d, s52' % (sFLGOFF, sGFLG)),
          P('s_and_b32 s52, s%d, 1' % sG), P('s_lshl_b32 s52, s52, 4'), P('s_add_u32 s52, s52, s%d' % sM),
          P('s_lshl_b32 s52, s52, 2'), P('s_add_u32 s52, s52, s%d' % sW), P('s_lshl_b32 s%d, s52, 13' % sTUX),
          P('s_mul_i32 s94, s52, 2176'),
          P('s_lshl_b32 s52, s%d, 2' % sM), P('s_add_u32 s52, s52, s%d' % sW), P('s_lshl_b32 s%d, s52, 13' % sTUG),
          P('s_mul_i32 s%d, s%d, %d' % (sST, sG, ACT_G)),
          P('s_andn2_b32 s52, s%d, 1' % sG), P('s_lshl_b32 s52, s52, 17'), P('s_sub_u32 s52, s52, 16384'),
          P('s_max_i32 s52, s52, 0'), P('s_add_u32 s94, s94, s52'),
          P('s_lshl_b32 s52, s%d, 7' % sG), P('s_sub_u32 s53, s52, 32'), P('s_lshl_b32 s97, s53, 10'),
          P('s_cmp_eq_u32 s%d, 0' % sG), P('s_cselect_b32 s97, 0, s97'), P('s_lshl_b32 s53, s%d, 6' % sW), P('s_add_u32 s97, s97, s53'))
        for b in range(2):
            o(P('s_lshl_b32 s53, s%d, 1' % sW), P('s_add_u32 s53, s53, %d' % b), P('s_and_b32 s53, s53, 3'),
              P('s_lshl_b32 s53, s53, 5'), P('s_add_u32 s53, s53, s52'), P('s_lshr_b32 s54, s%d, 1' % sW),
              P('s_add_u32 s53, s53, s54'), P('s_lshl_b32 s%d, s53, 10' % (95 + b)))
        o(P('s_lshl_b32 s98, s%d, 11' % sW))
        o(P('s_waitcnt lgkmcnt(0)'))
        if cfg.get('pts') == 1:
            o(self.ts(14))
        def srd(dst, src, size):
            return [P('s_mov_b32 s%d, s%d' % (dst, src)), P('s_and_b32 s%d, s%d, 0xffff' % (dst + 1, src + 1)),
                    P('s_mov_b32 s%d, 0x%x' % (dst + 2, size)), P('s_mov_b32 s%d, 0x20000' % (dst + 3))]
        o(srd(SRD_X, 72, 2097152), srd(SRD_WQ, 74, 512 * 3072))
        tp = cfg.get('t_pro', 1)
        def tq(q):
            return self.touch_range('wq', q * 393216, (q + 1) * 393216) if tp else []
        if tp:
            o(P('s_mov_b32 exec_lo, 0x1ffff'), P('s_mov_b32 exec_hi, 0'),
              VM('buffer_load_dword a255, v%d, s[8:11], s94 offen' % vL128), P('s_mov_b64 exec, -1'))
        o(tq(0), tq(1))
        allfirst = cfg.get('cold', 'A') == 'A'
        if allfirst:
            o(tq(2), tq(3))
        o(srd(SRD_WO, 76, 524288), srd(SRD_W1, 80, 512 * 3584), srd(SRD_B1, 82, 3584), srd(SRD_W2, 84, 1792 * 1024),
          srd(SRD_OUT, 86, 2097152), srd(SRD_DBG, 88, 256), srd(SRD_WS, 90, WS_SIZE))
        o(P('s_mov_b32 s%d, s95' % sXR0), P('s_mov_b32 s%d, s96' % sXR1), P('s_mov_b32 s%d, s97' % sHSRC), P('s_mov_b32 s%d, s98' % sD))
        o(P('s_and_b32 s52, s%d, 1' % sG), P('s_lshl_b32 s52, s52, 3'), P('s_add_u32 s52, s52, s%d' % sM),
          P('s_and_b32 s99, s52, %d' % (15 if cfg.get('rot', 0) else 0)), P('s_lshl_b32 s98, s99, 1'), P('s_add_u32 s98, s98, s%d' % sW),
          P('s_lshl_b32 s95, s%d, 6' % sM), P('s_lshl_b32 s52, s%d, 6' % sW), P('s_sub_u32 s%d, s%d, s52' % (sHSRC, sHSRC)))
        self.tq = (lambda q: []) if allfirst else tq
        if cfg.get('t_mall', 0) == 1:
            o(self.touch_mall())
        self.tag_init = newtag('init')
        o(P('v_mov_b32 v%d, 0' % t1), P('s_mov_b64 exec, 1'),
          VM('buffer_store_dword v%d, v%d, s[28:31], s%d offen sc1' % (t1, t1, sFLGOFF), self.tag_init),
          P('s_mov_b64 exec, -1'))
        if cfg.get('pts') == 1:
            o(self.ts(15))
        o(P('v_and_b32 v%d, 15, v%d' % (I, vLANE)), P('v_lshrrev_b32 v%d, 4, v%d' % (Gq, vLANE)),
          P('v_lshrrev_b32 v%d, 2, v%d' % (t0, I)), P('v_lshl_add_u32 v%d, v%d, 2, v%d' % (RR, Gq, t0)),
          P('v_and_b32 v%d, 3, v%d' % (I3, I)))
        for k in range(4):
            o(P('v_mov_b32 v%d, 0x3f803f80' % (vONES + k)))
        o(P('v_lshlrev_b32 v%d, 6, v%d' % (t0, RR)), P('v_lshl_add_u32 v%d, v%d, 3, v%d' % (t0, I3, t0)),
          P('v_add_u32 v%d, %d, v%d' % (t0, L_W, t0)),
          P('v_and_b32 v%d, 1, v%d' % (t1, Gq)), P('v_lshlrev_b32 v%d, 5, v%d' % (t1, t1)),
          P('v_add_u32 v%d, v%d, v%d' % (vWQA, t0, t1)),
          P('v_xor_b32 v%d, 32, v%d' % (t2, t1)), P('v_add_u32 v%d, v%d, v%d' % (vWQA + 1, t0, t2)),
          P('v_add_u32 v%d, 0x10000, v%d' % (vWQA + 2, vWQA)), P('v_add_u32 v%d, 0x10000, v%d' % (vWQA + 3, vWQA + 1)))
        o(P('s_and_b32 s53, s%d, 1' % sW), P('s_lshl_b32 s53, s53, 5'), P('v_xor_b32 v%d, s53, v%d' % (t2, t1)),
          P('v_add_u32 v%d, v%d, v%d' % (vE2, t0, t2)),
          P('s_lshr_b32 s53, s%d, 1' % sW), P('s_add_u32 s53, s53, 1'), P('s_lshl_b32 s53, s53, 15'),
          P('v_add_u32 v%d, s53, v%d' % (vE1, vE2)))
        o(P('v_lshrrev_b32 v%d, 1, v%d' % (t0, Gq)), P('v_lshrrev_b32 v%d, 2, v%d' % (t1, I)),
          P('v_xor_b32 v%d, v%d, v%d' % (t0, t0, t1)), P('v_lshlrev_b32 v%d, 4, v%d' % (t0, t0)),
          P('v_lshl_add_u32 v%d, v%d, 6, v%d' % (t0, I, t0)),
          P('v_and_b32 v%d, 1, v%d' % (t1, Gq)), P('v_lshl_add_u32 v%d, v%d, 3, v%d' % (t0, t1, t0)),
          P('v_add_u32 v%d, %d, v%d' % (vHXA, L_HALO, t0)), P('v_xor_b32 v%d, 32, v%d' % (vHXB, vHXA)),
          P('s_lshl_b32 s53, s%d, 11' % sW), P('s_add_u32 s53, s53, %d' % L_RING),
          P('v_add_u32 v%d, s53, v%d' % (vXA, t0)), P('v_xor_b32 v%d, 32, v%d' % (vXB, vXA)))
        o(P('v_cmp_eq_u32 s[%d:%d], 1, v%d' % (sMA, sMA + 1, I3)), P('v_cmp_eq_u32 s[%d:%d], 2, v%d' % (sMB, sMB + 1, I3)),
          P('v_cmp_eq_u32 s[%d:%d], 3, v%d' % (sMC, sMC + 1, I3)), P('v_lshrrev_b32 v%d, 2, v%d' % (t0, I)),
          P('v_cmp_eq_u32 s[%d:%d], v%d, v%d' % (sMD, sMD + 1, t0, Gq)))
        o(P('v_lshlrev_b32 v%d, 4, v%d' % (vCS, Gq)))
        o(P('s_lshl_b32 s%d, s%d, 17' % (sGBASE, sG)),
          P('s_lshl_b32 s52, s%d, 2' % sTH), P('s_add_u32 s%d, s52, s%d' % (sTB, sW)))
        if cfg.get('ts'):
            o(P('s_lshl_b32 s52, s2, 2'), P('s_add_u32 s52, s52, s%d' % sW), P('s_lshl_b32 s52, s52, 8'),
              P('s_add_u32 s%d, s52, %d' % (sTSO, 0x1F80000)))
        o(self.setup2())
        if cfg.get('pts') == 1:
            o(self.ts(29))
        self.xslot = {}; self.wq_q = {}; self.halo_dma = []
        for j in range(16):
            self.xslot[j] = self.x_ring_dma(j)
        for q in range(4):
            self.wq_q[q] = self.wq_rot_quarter(q)
        for a in range(4):
            if not cfg.get('rot', 0):
                self.halo_dma.append(self.dma(SRD_X, vDH, 97, a * 256, sW1K, L_HALO + a * 4096))
                continue
            self.halo_dma.append([P('s_add_u32 m0, s%d, %d' % (sW1K, L_HALO + a * 4096)), P('s_add_u32 s52, s99, s%d' % sW), P('s_add_u32 s52, s52, %d' % (4 * a)),
                                  P('s_and_b32 s52, s52, 15'), P('s_lshl_b32 s52, s52, 6'), P('s_add_u32 s52, s52, s%d' % sHSRC),
                                  VM('buffer_load_dwordx4 v%d, s[8:11], s52 offen lds' % vDH)])
        o(self.xslot[0], self.wq_q[0], self.halo_dma[0], self.xslot[1])
        if cfg.get('pts') == 1:
            o(self.ts(30))

    def setup2(self):
        I = 228; Gq = 229; RR = 230; I3 = 231; t0 = 232; t1 = 233; t2 = 234; t3 = 235; tr = 236
        o = []
        o += [P('v_and_b32 v%d, 15, v%d' % (I, vLANE)), P('v_lshrrev_b32 v%d, 4, v%d' % (Gq, vLANE)),
              P('v_lshrrev_b32 v%d, 2, v%d' % (t0, I)), P('v_lshl_add_u32 v%d, v%d, 2, v%d' % (RR, Gq, t0)),
              P('v_and_b32 v%d, 3, v%d' % (I3, I))]
        o += [P('v_lshrrev_b32 v%d, 3, v%d' % (t0, vLANE)), P('v_lshrrev_b32 v%d, 1, v%d' % (t1, t0)),
              P('v_lshrrev_b32 v%d, 1, v%d' % (t2, vLANE)), P('v_xor_b32 v%d, v%d, v%d' % (t1, t1, t2)),
              P('v_and_b32 v%d, 3, v%d' % (t1, t1)), P('v_lshlrev_b32 v%d, 5, v%d' % (t1, t1)),
              P('v_and_b32 v%d, 1, v%d' % (t2, vLANE)), P('v_lshl_add_u32 v%d, v%d, 4, v%d' % (t1, t2, t1)),
              P('v_lshl_add_u32 v%d, v%d, 10, v%d' % (vDO, t0, t1))]
        if self.cfg.get('split', 0):
            o += [P('s_and_b32 s80, s%d, 4' % sCT), P('s_lshl_b32 s80, s80, 7'), P('s_xor_b32 s81, s80, 512'),
                  P('v_add_u32 v%d, s81, v%d' % (t2, vDO)), P('v_add_u32 v%d, s80, v%d' % (vDO, vDO)),
                  P('v_and_b32 v%d, 64, v%d' % (t1, t1)), P('v_cmp_ne_u32 vcc, 0, v%d' % t1),
                  P('v_cndmask_b32 v%d, v%d, v%d, vcc' % (vDO, vDO, t2))]
        for c in range(448):
            assert (c * 4682) >> 16 == c // 14
        for u in range(7):
            o += [P('v_add_u32 v%d, %d, v%d' % (t0, 64 * u, vLANE)), P('v_mul_u32_u24 v%d, 4682, v%d' % (t1, t0)),
                  P('v_lshrrev_b32 v%d, 16, v%d' % (t1, t1)), P('v_mul_u32_u24 v%d, 14, v%d' % (t2, t1)),
                  P('v_sub_u32 v%d, v%d, v%d' % (t2, t0, t2)), P('v_lshlrev_b32 v%d, 4, v%d' % (t2, t2)),
                  P('v_mul_u32_u24 v%d, 3584, v%d' % (t1, t1)), P('v_add_u32 v%d, v%d, v%d' % (vD1 + u, t1, t2))]
        o += [P('s_lshl_b32 s80, s%d, 7' % sG), P('s_lshl_b32 s81, s%d, 5' % sW), P('s_add_u32 s80, s80, s81'), P('s_add_u32 s80, s80, s%d' % sTH),
              P('s_lshl_b32 s80, s80, 10'), P('s_lshl_b32 s81, s%d, 7' % sCT), P('s_add_u32 s61, s80, s81'),
              P('v_lshlrev_b32 v%d, 11, v%d' % (t1, I)), P('v_lshl_add_u32 v%d, v%d, 3, v%d' % (tr, Gq, t1))]
        self.tag_res = [newtag('res') for _ in range(4)]
        self.res_ops = []
        for fb in range(4):
            pre = (self.delta(55) + [P('s_add_u32 s55, s55, s61')]) if fb >= 2 else []
            self.res_ops.append(pre + [VM('buffer_load_dwordx2 v[%d:%d], v%d, s[8:11], s%d offen offset:%d' % (vR + 2 * fb, vR + 2 * fb + 1, tr, 55 if fb >= 2 else 61, fb * 32), self.tag_res[fb])])
        self.tag_b1 = newtag('b1')
        self.b1_op = [P('v_lshlrev_b32 v%d, 2, v%d' % (237, vLANE)), P('s_mul_i32 s80, s%d, 224' % sM),
                      VM('buffer_load_dword v247, v237, s[40:43], s80 offen', self.tag_b1)]
        o += [P('v_and_b32 v%d, 1, v%d' % (t2, Gq)), P('v_lshlrev_b32 v%d, 5, v%d' % (t2, t2)),
              P('v_lshrrev_b32 v%d, 1, v%d' % (t3, Gq)), P('v_lshl_add_u32 v%d, v%d, 4, v%d' % (t2, t3, t2)),
              P('v_lshl_add_u32 v%d, v%d, 11, v%d' % (vOUT, I, t2))]
        o += [P('s_mov_b32 s%d, 1.0' % sONE), P('s_mov_b32 s%d, 1.0' % (sONE + 1)),
              P('s_mov_b32 s%d, %s' % (sM2L, f32(-2 * LN2))), P('s_mov_b32 s%d, %s' % (sM2L + 1, f32(-2 * LN2))),
              P('v_mov_b32 v%d, %s' % (vLN2, f32(LN2))), P('v_mov_b32 v%d, %s' % (vLN2 + 1, f32(LN2)))]
        o += [P('v_mul_u32_u24 v%d, 224, v%d' % (t0, RR)), P('v_lshl_add_u32 v%d, v%d, 3, v%d' % (vW1A, I3, t0)),
              P('v_add_u32 v%d, 0x10000, v%d' % (vW1A + 1, vW1A)), P('v_add_u32 v%d, 0x20000, v%d' % (vW1A + 2, vW1A))]
        o += [P('v_lshlrev_b32 v%d, 7, v%d' % (t0, RR)), P('v_lshl_add_u32 v%d, v%d, 3, v%d' % (t0, I3, t0)),
              P('s_and_b32 s80, s%d, 1' % sW), P('s_lshl_b32 s80, s80, 12'), P('s_add_u32 s80, s80, %d' % L_W),
              P('v_add_u32 v%d, s80, v%d' % (t0, t0)),
              P('v_lshrrev_b32 v%d, 1, v%d' % (t1, RR)), P('v_and_b32 v%d, 3, v%d' % (t1, t1))]
        for fb in range(4):
            o += [P('v_xor_b32 v%d, %d, v%d' % (t2, fb, t1)), P('v_lshl_add_u32 v%d, v%d, 5, v%d' % (vW2A + fb * 3, t2, t0)),
                  P('v_add_u32 v%d, 0x10000, v%d' % (vW2A + fb * 3 + 1, vW2A + fb * 3)),
                  P('v_add_u32 v%d, 0x20000, v%d' % (vW2A + fb * 3 + 2, vW2A + fb * 3))]
        NEG = f32(-1e30)
        o += [P('v_mov_b32 v%d, %s' % (t3, NEG))]
        for r in range(4):
            o += [P('v_lshl_add_u32 v%d, v%d, 2, %d' % (t0, Gq, r)),
                  P('v_sub_u32 v%d, v%d, v%d' % (t1, I, t0)), P('v_cmp_gt_u32 vcc, 8, v%d' % t1),
                  P('v_cndmask_b32_e64 v%d, v%d, 0, vcc' % (vCCUR + r, t3)),
                  P('v_add_u32 v%d, 9, v%d' % (t1, I)), P('v_cmp_ge_u32 vcc, v%d, v%d' % (t0, t1)),
                  P('v_cndmask_b32_e64 v%d, v%d, 0, vcc' % (vCPREV + r, t3))]
        o += [P('s_and_b32 s80, s%d, 1' % sW), P('s_or_b32 s80, s80, s%d' % sG), P('s_cmp_eq_u32 s80, 0'), P('s_cselect_b64 vcc, -1, 0')]
        for r in range(4):
            o.append(P('v_cndmask_b32 v%d, v%d, v%d, vcc' % (vCPA + r, vCPREV + r, t3)))
        o += [P('v_lshlrev_b32 v%d, 2, v%d' % (t0, Gq)), P('v_add_u32 v%d, 6, v%d' % (t1, I)),
              P('v_cmp_ge_u32 s[%d:%d], v%d, v%d' % (sUP, sUP + 1, t0, t1))]
        o += [P('v_lshlrev_b32 v%d, 5, v%d' % (t0, I)), P('v_lshl_add_u32 v%d, v%d, 3, v%d' % (t0, Gq, t0)),
              P('s_lshl_b32 s80, s%d, 11' % sW), P('s_add_u32 s80, s80, %d' % L_EX), P('v_add_u32 v%d, s80, v%d' % (vEXV, t0))]
        o += [P('s_lshr_b32 s80, s%d, 1' % sW), P('s_add_u32 s81, s80, 3'), P('s_bitcmp1_b32 s%d, 0' % sW),
              P('s_cselect_b32 s80, s81, s80'), P('s_lshl_b32 s80, s80, 10'), P('s_add_u32 s80, s80, %d' % L_EXK),
              P('v_lshlrev_b32 v%d, 3, v%d' % (t1, vLANE)), P('v_add_u32 v%d, s80, v%d' % (vEXK, t1))]
        o += [P('s_and_b32 s80, s%d, 1' % sW), P('s_lshl_b32 s80, s80, 9'),
              P('s_add_u32 s81, s80, %d' % (L_EXK + 2048)), P('v_add_u32 v%d, s81, v%d' % (t2, t1)),
              P('s_add_u32 s81, s80, %d' % (L_EX + 8192)), P('v_add_u32 v%d, s81, v%d' % (t3, t0)),
              P('s_cmp_ge_u32 s%d, 2' % sW), P('s_cselect_b64 vcc, -1, 0'),
              P('v_cndmask_b32 v%d, v%d, v%d, vcc' % (vEXH, t2, t3))]
        o += [P('v_lshlrev_b32 v%d, 5, v%d' % (t0, RR)), P('v_lshl_add_u32 v%d, v%d, 3, v%d' % (t0, I3, t0)),
              P('s_lshl_b32 s80, s%d, 11' % sW), P('s_add_u32 s80, s80, %d' % L_EX), P('v_add_u32 v%d, s80, v%d' % (vRV, t0))]
        o += [P('v_subrev_u32 v%d, 1024, v%d' % (t1, vRV)),
              P('v_add_u32 v%d, %d, v%d' % (t2, L_EX + 8192, t0)),
              P('v_subrev_u32 v%d, 256, v%d' % (t3, t2)),
              P('v_cmp_le_u32 vcc, 8, v%d' % RR), P('v_cndmask_b32 v%d, v%d, v%d, vcc' % (t3, t2, t3)),
              P('s_cmp_eq_u32 s%d, 0' % sW), P('s_cselect_b64 vcc, -1, 0'), P('v_cndmask_b32 v%d, v%d, v%d, vcc' % (t2, t2, t3)),
              P('s_bitcmp1_b32 s%d, 0' % sW), P('s_cselect_b64 vcc, -1, 0'), P('v_cndmask_b32 v%d, v%d, v%d, vcc' % (vRVP, t2, t1))]
        o += [P('v_lshlrev_b32 v%d, 3, v%d' % (t0, vLANE)),
              P('s_lshr_b32 s80, s%d, 1' % sW), P('s_bitcmp1_b32 s%d, 0' % sW), P('s_cselect_b32 s80, s80, 2'),
              P('s_lshl_b32 s80, s80, 10'), P('s_add_u32 s80, s80, %d' % L_EXK), P('v_add_u32 v%d, s80, v%d' % (t0, t0)),
              P('v_subrev_u32 v%d, 64, v%d' % (t1, t0)), P('v_cmp_le_u32 vcc, 8, v%d' % I),
              P('v_cndmask_b32 v%d, v%d, v%d, vcc' % (t1, t0, t1)),
              P('s_cmp_eq_u32 s%d, 0' % sW), P('s_cselect_b64 vcc, -1, 0'), P('v_cndmask_b32 v%d, v%d, v%d, vcc' % (vRK, t0, t1))]
        o += [P('s_lshl_b32 s80, s%d, 12' % sW), P('v_add_u32 v%d, s80, v%d' % (vEXBW, vL16)),
              P('v_xor_b32 v%d, 0x1000, v%d' % (vEXBR, vEXBW))]
        o += [P('s_lshr_b32 s80, s%d, 1' % sCT), P('s_lshl_b32 s80, s80, 8'), P('s_and_b32 s81, s%d, 1' % sCT),
              P('s_lshl_b32 s81, s81, 3'), P('s_add_u32 s80, s80, s81'),
              P('v_lshlrev_b32 v%d, 4, v%d' % (t0, I)), P('v_add_u32 v%d, s80, v%d' % (vSTO, t0))]
        o += [P('s_cmp_eq_u32 s%d, 0' % sTH), P('s_cselect_b32 s81, 8, 0'),
              P('v_subrev_u32 v%d, s81, v%d' % (t0, I)),
              P('v_lshl_add_u32 v%d, v%d, 4, v%d' % (t1, Gq, t0)), P('v_lshlrev_b32 v%d, 4, v%d' % (t1, t1)),
              P('v_lshlrev_b32 v%d, 4, v%d' % (t2, t0)), P('v_add_u32 v%d, s80, v%d' % (t2, t2)),
              P('s_cmp_eq_u32 s%d, 3' % sW), P('s_cselect_b32 s80, 0, 0x40000000'),
              P('s_cmp_eq_u32 s%d, 15' % sG), P('s_cselect_b32 s80, 0x40000000, s80'),
              P('v_mov_b32 v%d, 0x40000000' % t3), P('v_cmp_le_u32 vcc, 8, v%d' % I),
              P('v_cndmask_b32 v%d, v%d, v%d, vcc' % (t1, t3, t1)), P('v_cndmask_b32 v%d, v%d, v%d, vcc' % (t2, t3, t2)),
              P('v_or_b32 v%d, s80, v%d' % (vHOF, t1)), P('v_or_b32 v%d, s80, v%d' % (vHST, t2))]
        return o

    def wq_stash(self):
        o = [P('s_lshl_b32 s53, s%d, 10' % sW), P('s_add_u32 s53, s53, %d' % L_W), P('v_add_u32 v%d, s53, v%d' % (vTA, vL16)),
             P('v_add_u32 v%d, 0x10000, v%d' % (vTB, vTA))]
        for p in range(12):
            for c in range(2):
                a = p * 8192 + c * 4096
                o.append(LG('ds_read_b128 %s, v%d offset:%d' % (ar(128 + (2 * p + c) * 4, 4), vTA if a < 65536 else vTB, a & 0xffff)))
        return o

    def wq_restore(self, positions, va, vb):
        o = []
        for p in positions:
            for c in range(2):
                a = p * 8192 + c * 4096
                o.append([P('s_mov_b64 exec, s[74:75]'),
                          LG('ds_write_b128 v%d, %s offset:%d' % (va if a < 65536 else vb, ar(128 + (2 * p + c) * 4, 4), a & 0xffff)),
                          P('s_mov_b64 exec, -1')])
        return o

    def x_ring_dma(self, j):
        if not self.cfg.get('rot', 0):
            return [self.dma(SRD_X, vDX, sXR0 + b, j * 64, sD, L_RING + (j % 5) * 8192 + b * 1024) for b in range(2)]
        out = []
        for b in range(2):
            ops = [P('s_add_u32 m0, s%d, %d' % (sD, L_RING + (j % 5) * 8192 + b * 1024)),
                   P('s_add_u32 s52, s99, %d' % j), P('s_and_b32 s52, s52, 15'), P('s_lshl_b32 s52, s52, 6'),
                   P('s_add_u32 s52, s52, s%d' % (sXR0 + b)),
                   VM('buffer_load_dwordx4 v%d, s[8:11], s52 offen lds' % vDX)]
            out.append(ops)
        return out

    def wq_rot_quarter(self, qd):
        if not self.cfg.get('rot', 0):
            return self.dma_wq_quarter(qd)
        out = []
        for a in range(2):
            for p in range(3):
                rg = 8 * qd + 4 * a
                out.append([P('s_add_u32 m0, s%d, %d' % (sW1K, L_W + p * 32768 + rg * 1024)),
                            P('s_add_u32 s52, s98, %d' % rg), P('s_and_b32 s52, s52, 31'), P('s_mul_i32 s52, s52, 49152'),
                            P('s_add_u32 s52, s52, s95'), P('s_add_u32 s52, s52, %d' % (p * 1024)),
                            VM('buffer_load_dwordx4 v%d, s[12:15], s52 offen lds' % vDQ)])
        return out

    @staticmethod
    def vmtags(ops):
        t = []
        for x in ops:
            if isinstance(x, (list, tuple)):
                t += Gen.vmtags(x)
            elif x is not None and not isinstance(x, str) and x.kind == 'vm':
                t.append(x.tag)
        return t

    def finish_stats(self, s1, s2, pair_kv, pair_q=None, scale=None):
        t = vT + 80
        o = [P('v_mul_f32 v%d, %s, v%d' % (t, f32(1 / 512), s1)),
             P('v_mul_f32 v%d, %s, v%d' % (t + 1, f32(1 / 512), s2)),
             P('v_fma_f32 v%d, -v%d, v%d, v%d' % (t + 1, t, t, t + 1)),
             P('v_max_f32 v%d, 0, v%d' % (t + 1, t + 1)),
             P('v_add_f32 v%d, %s, v%d' % (t + 1, f32(1e-5), t + 1)),
             P('v_rsq_f32 v%d, v%d' % (pair_kv, t + 1))]
        if scale is not None:
            o.append(P('v_mul_f32 v%d, %s, v%d' % (pair_kv, f32(scale), pair_kv)))
        o.append(P('v_mul_f32 v%d, -v%d, v%d' % (pair_kv + 1, t, pair_kv)))
        if pair_q is not None:
            qs = f32(0.25 * LOG2E)
            o += [P('v_mul_f32 v%d, %s, v%d' % (pair_q, qs, pair_kv)), P('v_mul_f32 v%d, %s, v%d' % (pair_q + 1, qs, pair_kv + 1))]
        return o

    def reduce_g2(self, a, b):
        t = vT + 84
        return [P('v_permlane32_swap_b32 v%d, v%d' % (a, b)), P('v_add_f32 v%d, v%d, v%d' % (a, a, b)),
                P('v_mov_b32 v%d, v%d' % (t, a)), P('v_permlane16_swap_b32 v%d, v%d' % (a, t)),
                P('v_add_f32 v%d, v%d, v%d' % (a, a, t)), P('v_mov_b32 v%d, v%d' % (b, a)),
                P('v_permlane32_swap_b32 v%d, v%d' % (a, b))]

    def stats_from_st(self, regs, pair_kv, pair_q=None, scale=None):
        return [P('v_add_f32 v%d, v%d, v%d' % (regs, regs, regs + 2)), P('v_add_f32 v%d, v%d, v%d' % (regs + 1, regs + 1, regs + 3))] + \
            self.reduce_g2(regs, regs + 1) + self.finish_stats(regs, regs + 1, pair_kv, pair_q, scale)

    def accP1(self, blk, tb):
        return vACC + (blk * 2 + tb) * 4
    ACC_H = vACC + 48
    ACC_CS1 = vACC + 52
    ACC_CS2 = vACC + 56
    PKV = [vT + 0, vT + 2]; PQ = [vT + 4, vT + 6]; PH = vT + 8

    def wq_read(self, blk, j, part, dst):
        p = blk // 2; h = blk % 2
        if p < 2:
            return LG('ds_read_b64_tr_b16 v[%d:%d], v%d offset:%d' % (dst + 2 * part, dst + 2 * part + 1, vWQA + h, p * 32768 + j * 2048 + part * 1024))
        return LG('ds_read_b64_tr_b16 v[%d:%d], v%d offset:%d' % (dst + 2 * part, dst + 2 * part + 1, vWQA + 2 + h, j * 2048 + part * 1024))

    def p1a(self):
        o = self.add
        XB = vT + 12
        S1 = vT + 36
        S2 = vT + 48
        def xb(j, b): return XB + (j & 1) * 12 + b * 4
        xr_tags = {}
        def xreads(j):
            ops = []
            for b in range(2):
                ops.append(LG('ds_read_b64 v[%d:%d], v%d offset:%d' % (xb(j, b), xb(j, b) + 1, vXA, (j % 5) * 8192 + b * 1024)))
                ops.append(LG('ds_read_b64 v[%d:%d], v%d offset:%d' % (xb(j, b) + 2, xb(j, b) + 3, vXB, (j % 5) * 8192 + b * 1024)))
            ops.append(LG('ds_read_b64 v[%d:%d], v%d offset:%d' % (xb(j, 2), xb(j, 2) + 1, vHXA, j * 1024)))
            ops.append(LG('ds_read_b64 v[%d:%d], v%d offset:%d' % (xb(j, 2) + 2, xb(j, 2) + 3, vHXB, j * 1024)))
            xr_tags[j] = [x.tag for x in ops]
            return ops
        groups = []
        n = 0
        extras = []
        mfidx = 0
        first_idx = {}
        for j in range(16):
            first_idx[j] = mfidx
            z = (j == 0)
            for blk in range(8):
                dst = self.afrag(n); n += 1
                g = dict(pre=[], reads=[], mf=[])
                if blk == 0:
                    if j % 4 == 0:
                        q = j // 4
                        wt = self.vmtags(self.wq_q[q]) + self.vmtags(self.halo_dma[q])
                        g['pre'] += [W(wt), P('s_barrier')] if not (self.cfg.get('x_nobar') and q > 0) else []
                    if not self.cfg.get('x_nowait'):
                        g['pre'] += [W(self.vmtags(self.xslot[j]))]
                    g['reads'] += xreads(j)
                if blk < 6:
                    g['reads'] += [self.wq_read(blk, j, 0, dst), self.wq_read(blk, j, 1, dst)]
                    for tb in range(2):
                        acc = self.accP1(blk, tb)
                        c = '0' if z else vr(acc, 4)
                        g['mf'].append(('v_mfma_f32_16x16x32_bf16 %s, %s, %s, %s' % (vr(acc, 4), vr(dst, 4), vr(xb(j, tb), 4), c), []))
                    if blk in (1, 3, 5) and not self.cfg.get('x_nostat'):
                        b = blk // 2
                        for (accb, A) in ((S1 + b * 4, vONES), (S2 + b * 4, xb(j, b))):
                            c = '0' if z else vr(accb, 4)
                            g['mf'].append(('v_mfma_f32_16x16x32_bf16 %s, %s, %s, %s' % (vr(accb, 4), vr(A, 4), vr(xb(j, b), 4), c), []))
                else:
                    base = vE1 if blk == 6 else vE2
                    g['reads'] += [LG('ds_read_b64_tr_b16 v[%d:%d], v%d offset:%d' % (dst + 2 * part, dst + 2 * part + 1, base, j * 2048 + part * 1024)) for part in range(2)]
                    if blk == 6:
                        c = '0' if z else vr(self.ACC_H, 4)
                        g['mf'].append(('v_mfma_f32_16x16x32_bf16 %s, %s, %s, %s' % (vr(self.ACC_H, 4), vr(dst, 4), vr(xb(j, 2), 4), c), []))
                        c = '0' if z else vr(self.ACC_CS1, 4)
                        g['mf'].append(('v_mfma_f32_16x16x32_bf16 %s, %s, %s, %s' % (vr(self.ACC_CS1, 4), vr(dst, 4), vr(vONES, 4), c), []))
                    else:
                        c = '0' if z else vr(self.ACC_CS2, 4)
                        g['mf'].append(('v_mfma_f32_16x16x32_bf16 %s, %s, %s, %s' % (vr(self.ACC_CS2, 4), vr(dst, 4), vr(vONES, 4), c), []))
                mfidx += len(g['mf'])
                groups.append(g)
        def at(k, i):
            return first_idx[k] + i
        seq = []
        seq += [(at(0, 0), self.xslot[2][0]), (at(0, 2), self.xslot[2][1])]
        q1 = self.wq_q[1]
        seq += [(at(0, 5), q1[0]), (at(0, 8), q1[1]), (at(0, 11), q1[2]), (at(0, 14), self.xslot[3][0]), (at(0, 16), self.xslot[3][1]),
                (at(0, 19), self.tq(2)), (at(1, 1), q1[3]), (at(1, 4), q1[4]), (at(1, 7), q1[5]), (at(1, 10), self.halo_dma[1]),
                (at(1, 13), self.xslot[4][0]), (at(1, 15), self.xslot[4][1]), (at(1, 18), self.tq(3))]
        for j in range(11):
            for b, d in enumerate(self.xslot[j + 5]):
                seq.append((max(at(j, 2 + 2 * b), at(2, 0) + 2 * b + (j * 4 if j < 2 else 0)), d))
        q2k = self.cfg.get('q2k', 3); q3k = self.cfg.get('q3k', 7)
        for k, d in enumerate(self.wq_q[2] + [self.halo_dma[2]]):
            seq.append((at(q2k + k // 2, 8 + 5 * (k % 2)), d))
        for k, d in enumerate(self.wq_q[3] + [self.halo_dma[3]]):
            seq.append((at(q3k + k // 2, 8 + 5 * (k % 2)), d))
        extras += seq
        reg = [W(self.tag_init),
               P('s_mul_i32 s53, s%d, s%d' % (sXCC, sXCC)), P('s_lshl_b32 s53, s53, 13'), P('s_lshl_b32 s54, s%d, 5' % sXCC),
               P('s_add_u32 s53, s53, s54'), P('s_add_u32 s53, s53, 1'), P('v_mov_b32 v%d, s53' % vTA),
               P('s_lshr_b32 s53, s%d, 1' % sG), P('s_lshl_b32 s53, s53, 5'), P('s_and_b32 s54, s%d, 1' % sG),
               P('s_lshl_b32 s54, s54, 2'), P('s_add_u32 s54, s53, s54'), P('v_mov_b32 v%d, s54' % vTB),
               P('s_cmp_eq_u32 s%d, 0' % sW), P('s_cselect_b32 s53, 0, 0x40000000'),
               P('v_or_b32 v%d, s53, v%d' % (vTB, vTB)),
               P('s_mov_b64 exec, 1'),
               VM('buffer_atomic_add v%d, v%d, s[36:39], 0 offen' % (vTA, vTB)),
               P('s_mov_b64 exec, -1')]
        extras.append((first_idx[4] + 3, reg))
        groups[8 * 4]['pre'] = [W(self.tag_init)] + groups[8 * 4]['pre']
        if self.cfg.get('t_mall', 0) >= 4:
            extras.append((first_idx[self.cfg.get('t_mall')] + 4, self.touch_mall()))
        for k, x in enumerate(self.res_ops):
            extras.append((first_idx[11] + 3 + 3 * k, x))
        extras.append((first_idx[11] + 16, self.b1_op))
        extras.append((first_idx[8] + 9, self.mode_load()))
        extras.append((first_idx[11] + 1, self.mode_check()))
        tset = self.touch_set(self.cfg.get('t_p1a', 'of,xf'))
        k0 = self.cfg.get('t_p1a_k', 11)
        post = []
        for k, t in enumerate(tset):
            if k0 + k < 16:
                extras.append((first_idx[k0 + k] + 5, t))
            else:
                post.append(t)
        extras += self.sched_touches('p1a', first_idx)
        if self.cfg.get('code_staged', 1) and self.cfg.get('t_code', 1):
            extras.append((first_idx[self.cfg.get('code_k1', 10)] + 12, self.touch_code('L_C2', 'L_C4', 50)))
        if self.cfg.get('pts') == 2:
            for k, slot in ((1, 14), (4, 15), (8, 29), (12, 30)):
                extras.append((first_idx[k] - 1, self.ts(slot)))
        if self.cfg.get('pts') == 3:
            for k in range(16):
                extras.append((first_idx[k], self.ts(32 + k)))
        o(self.gemm_loop(groups, self.cfg.get('la_p1a', 3), extras))
        for t in post:
            o(t)
        t0 = 252; t1 = 253
        o(W(self.tag_b1), P('v_lshlrev_b32 v%d, 16, v247' % t0), P('v_and_b32 v%d, 0xffff0000, v247' % t1),
          P('v_mul_f32 v%d, %s, v%d' % (t0, f32(LOG2E), t0)), P('v_mul_f32 v%d, %s, v%d' % (t1, f32(LOG2E), t1)),
          P('v_lshlrev_b32 v%d, 3, v%d' % (vTA, vLANE)),
          P('s_mov_b32 exec_hi, 0x00ffffff'),
          LG('ds_write_b64 v%d, v[%d:%d] offset:%d' % (vTA, t0, t1, L_BB1)),
          P('s_mov_b64 exec, -1'))
        o(P('s_add_u32 s53, s%d, 2' % sW), P('s_lshl_b32 s53, s53, 6'), P('v_add_u32 v%d, s53, v%d' % (vTA, vCS)),
          P('s_and_b32 s53, s%d, 1' % sW), P('s_lshl_b32 s53, s53, 6'), P('v_add_u32 v%d, s53, v%d' % (vTB, vCS)),
          P('s_mov_b32 s52, 0x00010001'), P('s_mov_b32 s53, 0x00010001'), P('s_mov_b64 exec, s[52:53]'),
          LG('ds_write_b128 v%d, %s offset:%d' % (vTA, vr(self.ACC_CS1, 4), L_CSQ)),
          LG('ds_write_b128 v%d, %s offset:%d' % (vTB, vr(self.ACC_CS2, 4), L_CSQ)),
          P('s_mov_b64 exec, -1'))
        for b in range(3):
            s2 = S2 + b * 4
            o(P('v_cndmask_b32_e64 v%d, v%d, v%d, s[%d:%d]' % (s2, s2, s2 + 1, sMA, sMA + 1)),
              P('v_cndmask_b32_e64 v%d, v%d, v%d, s[%d:%d]' % (s2, s2, s2 + 2, sMB, sMB + 1)),
              P('v_cndmask_b32_e64 v%d, v%d, v%d, s[%d:%d]' % (s2, s2, s2 + 3, sMC, sMC + 1)),
              P('v_cndmask_b32_e64 v%d, 0, v%d, s[%d:%d]' % (s2, s2, sMD, sMD + 1)))
            t = s2 + 1
            o(P('v_mov_b32 v%d, v%d' % (t, s2)), P('v_permlane32_swap_b32 v%d, v%d' % (s2, t)),
              P('v_add_f32 v%d, v%d, v%d' % (s2, s2, t)), P('v_mov_b32 v%d, v%d' % (t, s2)),
              P('v_permlane16_swap_b32 v%d, v%d' % (s2, t)), P('v_add_f32 v%d, v%d, v%d' % (s2, s2, t)))
            if b < 2:
                o(self.finish_stats(S1 + b * 4, s2, self.PKV[b], self.PQ[b]))
            else:
                o(self.finish_stats(S1 + b * 4, s2, self.PH))
        o(P('s_mov_b32 s72, s50'), P('s_mov_b32 s73, s51'))
        o(WALL(False, True), P('s_barrier'))

    def p1b(self):
        o = self.add
        cfg = self.cfg
        for b in range(2):
            o(P('s_lshl_b32 s53, s%d, 1' % sW), P('s_add_u32 s53, s53, %d' % b), P('s_lshl_b32 s53, s53, 14'),
              P('s_add_u32 s%d, s53, s%d' % (sB0 + b, sX2)))
        xl = self.x_loads(16)
        pro = cfg.get('x_pro', 4)
        for j in range(pro):
            o(xl[j])
        stt = []
        STR = vT + 12
        for b in range(2):
            t = newtag('st'); stt.append(t)
            o(P('s_lshl_b32 s54, s%d, 11' % sW), P('s_add_u32 s53, s54, s%d' % sS2),
              P('s_add_u32 s53, s53, %d' % (b * 1024)),
              VM('buffer_load_dwordx4 %s, v%d, s[28:31], s53 offen sc1' % (vr(STR + 4 * b, 4), vL16), t))
        groups = []; n = 0; first_idx = {}; mfidx = 0
        for j in range(16):
            first_idx[j] = mfidx
            for blk in range(6):
                dst = self.afrag(n); n += 1
                g = dict(pre=[], reads=[self.wq_read(blk, j, 0, dst), self.wq_read(blk, j, 1, dst)], mf=[])
                for tb in range(2):
                    acc = self.accP1(blk, tb)
                    c = '0' if j == 0 else vr(acc, 4)
                    wt = self.vmtags(xl[j][tb]) if blk == 0 else []
                    g['mf'].append(('v_mfma_f32_16x16x32_bf16 %s, %s, %s, %s' % (vr(acc, 4), vr(dst, 4), ar((j * 2 + tb) * 4, 4), c), wt))
                mfidx += 2
                groups.append(g)
        extras = []
        k = 0
        rate = cfg.get('x_rate', 4)
        for j in range(pro, 16):
            for b in range(2):
                extras.append((first_idx[k // rate] + 1 + (12 // rate) * (k % rate), xl[j][b])); k += 1
        lastx = extras[-1][0]
        hp = [W(self.halo_store_tags), P('v_mov_b32 v%d, 1' % vTA),
              P('s_cmp_eq_u32 s%d, 3' % sW), P('s_cselect_b32 s53, 0, 0x40000000'),
              P('s_cmp_eq_u32 s%d, 15' % sG), P('s_cselect_b32 s53, 0x40000000, s53'),
              P('s_add_u32 s54, s%d, 1' % sG), P('s_lshr_b32 s52, s54, 1'), P('s_lshl_b32 s52, s52, 5'),
              P('s_and_b32 s54, s54, 1'), P('s_lshl_b32 s54, s54, 2'), P('s_add_u32 s52, s52, s54'),
              P('s_add_u32 s52, s52, 8'), P('s_or_b32 s53, s53, s52'),
              P('v_mov_b32 v%d, s53' % vTB),
              P('s_mov_b64 exec, 1'),
              VM('buffer_atomic_add v%d, v%d, s[36:39], 0 offen' % (vTA, vTB)),
              P('s_mov_b64 exec, -1')]
        extras.append((first_idx[0] + 6, hp))
        st_ops = [W(stt)]
        for b in range(2):
            st_ops += self.stats_from_st(STR + 4 * b, self.PKV[b], self.PQ[b])
        extras += self.spread(st_ops, first_idx[2] + 2, 1)
        HS = vT + 56
        HC = vT + 60; HZ = vT + 61
        spin = self.L('hsp'); hok = self.L('hok')
        tagc = newtag('hc'); htags = [newtag('h') for _ in range(17)]
        hk0 = cfg.get('halo_k0', 7); hk1 = cfg.get('halo_k', 10)
        h0 = [P('v_mov_b32 v%d, 0' % HZ),
              P('s_lshr_b32 s54, s%d, 1' % sG), P('s_lshl_b32 s54, s54, 5'), P('s_and_b32 s53, s%d, 1' % sG),
              P('s_lshl_b32 s53, s53, 2'), P('s_add_u32 s54, s54, s53'), P('s_add_u32 s%d, s54, 8' % sA),
              VM('buffer_load_dword v%d, v%d, s[36:39], s%d offen sc1' % (HC, HZ, sA), tagc)]
        extras.append((max(first_idx[hk0], lastx + 1), h0))
        hl = [W(tagc), P('s_mov_b32 s%d, 0' % sTMO),
              P('s_cmp_eq_u32 s%d, 0' % sG), P('s_cbranch_scc1 %s' % hok),
              LAB(spin),
              P('v_cmp_ne_u32 vcc, 16, v%d' % HC),
              P('s_cbranch_vccz %s' % hok),
              P('buffer_load_dword v%d, v%d, s[36:39], s%d offen sc1' % (HC, HZ, sA)),
              P('s_add_u32 s%d, s%d, 1' % (sTMO, sTMO)),
              P('s_waitcnt vmcnt(0)'),
              P('s_cmp_lt_u32 s%d, 0x100000' % sTMO), P('s_cbranch_scc1 %s' % spin),
              P('s_endpgm'),
              LAB(hok),
              P('s_cmp_eq_u32 s%d, 0' % sG), P('s_cselect_b32 s53, 0x40000000, 0'),
              P('v_or_b32 v%d, s53, v%d' % (HZ, vL16)),
              P('s_lshl_b32 s53, s%d, 10' % sG), P('s_add_u32 s53, s53, %d' % WS_HST),
              VM('buffer_load_dwordx4 %s, v%d, s[28:31], s53 offen sc1' % (vr(HS, 4), HZ), htags[16]),
              P('s_lshl_b32 s53, s%d, 14' % sG), P('s_add_u32 s%d, s53, %d' % (sA, WS_HF))]
        extras.append((first_idx[hk1], hl))
        for j in range(16):
            ops = []
            if j % 4 == 0:
                ops.append(P('s_add_u32 s%d, s%d, %d' % (sB, sA, j * 1024)))
            ops.append(VM('buffer_load_dwordx4 %s, v%d, s[28:31], s%d offen offset:%d sc1' % (ar(128 + 4 * j, 4), HZ, sB, (j % 4) * 1024), htags[j]))
            extras.append((first_idx[hk1] + 1 + 2 * j, ops))
        if cfg.get('a0_early', 1):
            for k, d in enumerate(self.dma_w1_group(0) + (self.dma_w1_group(1) if cfg.get('a1_tail', 1) else [])):
                extras.append((first_idx[hk1] + 34 + cfg.get('a0_step', 2) * k, d))
        for k, t in enumerate(self.touch_set(cfg.get('t_p1b', ''))):
            extras.append((first_idx[hk1] + 34 + 6 * k, t))
        extras += self.spread([W(htags[16])] + self.stats_from_st(HS, self.PH), first_idx[15] - 14, 1)
        extras += self.sched_touches('p1b', first_idx)
        o(self.gemm_loop(groups, cfg.get('la', 3), extras))
        groups = []
        for j in range(16):
            dst = self.afrag(j)
            g = dict(pre=[], reads=[LG('ds_read_b64_tr_b16 v[%d:%d], v%d offset:%d' % (dst + 2 * part, dst + 2 * part + 1, vE1, j * 2048 + part * 1024)) for part in range(2)], mf=[])
            c = '0' if j == 0 else vr(self.ACC_H, 4)
            g['mf'].append(('v_mfma_f32_16x16x32_bf16 %s, %s, %s, %s' % (vr(self.ACC_H, 4), vr(dst, 4), ar(128 + 4 * j, 4), c), [htags[j]]))
            groups.append(g)
        o(self.gemm_loop(groups, 6, []))
        o(P('s_barrier'))

    def x_loads(self, nk, ring=None, depth=None):
        xl = []
        for j in range(nk):
            row = []
            for b in range(2):
                slot = j if depth is None else j % depth
                ops = []
                if j % 4 == 0:
                    ops.append(P('s_add_u32 s%d, s%d, %d' % (sXL0 + b, sB0 + b, j * 1024)))
                if self.cfg.get('noxl'):
                    ops.append(P('s_nop 0'))
                else:
                    ops.append(VM('buffer_load_dwordx4 %s, v%d, s[28:31], s%d offen offset:%d%s' % (ar((slot * 2 + b) * 4, 4), vL16, sXL0 + b, (j % 4) * 1024, '' if self.cfg.get('plainld') else ' sc1')))
                row.append(ops)
            xl.append(row)
        return xl

    def dual_store(self, stores):
        pure = self.L('stp'); done = self.L('std')
        o = [P('s_cmp_eq_u32 s%d, 0' % sMODE), P('s_cbranch_scc1 %s' % pure)]
        o += [P(s + ' sc1') for s in stores]
        o += [P('s_branch %s' % done), LAB(pure)]
        o += [P(s) for s in stores]
        o += [LAB(done)]
        cnt = [VM('; counted store') for _ in stores]
        return o + cnt, [c.tag for c in cnt]

    def p1_epi(self, dmas):
        o = []
        CS = vT + 12
        CSH = vT + 36
        Q = vT + 40
        K = vT + 48
        V = vT + 56
        HP = vT + 64
        TT = vT + 66
        cst = []
        for b in range(6):
            x = LG('ds_read_b128 %s, v%d offset:%d' % (vr(CS + 4 * b, 4), vCS, L_CSQ + b * 64)); cst.append(x.tag); o.append(x)
        o += [P('s_add_u32 s53, s%d, 2' % sW), P('s_lshl_b32 s53, s53, 6'), P('v_add_u32 v%d, s53, v%d' % (TT, vCS))]
        x = LG('ds_read_b128 %s, v%d offset:%d' % (vr(CSH, 4), TT, L_CSQ)); csh = x.tag; o.append(x)

        def ln(acc, cs, pair, dst):
            r = []
            for hh in range(2):
                t = TT + 2 * hh
                r.append(P('v_pk_mul_f32 %s, %s, %s op_sel:[0,1] op_sel_hi:[1,1]' % (vr(t, 2), vr(cs + 2 * hh, 2), vr(pair, 2))))
            for hh in range(2):
                t = TT + 2 * hh
                r.append(P('v_pk_fma_f32 %s, %s, %s, %s op_sel_hi:[1,0,1]' % (vr(t, 2), vr(acc + 2 * hh, 2), vr(pair, 2), vr(t, 2))))
            for hh in range(2):
                t = TT + 2 * hh
                r.append(P('v_cvt_pk_bf16_f32 v%d, v%d, v%d' % (dst + hh, t, t + 1)))
            return r
        wtags = []
        for blk in (4, 5, 2, 3, 0, 1):
            o.append(W(cst[blk]))
            for tb in range(2):
                h = blk % 2
                dst = (Q, K, V)[blk // 2] + (tb * 2 + h) * 2
                pair = self.PQ[tb] if blk < 2 else self.PKV[tb]
                o += ln(self.accP1(blk, tb), CS + 4 * blk, pair, dst)
                if blk >= 4:
                    x = LG('ds_write_b64 v%d, %s offset:%d' % (vEXV, vr(dst, 2), tb * 1024 + h * 512)); o.append(x)
                elif blk >= 2 and tb == 1:
                    x = LG('ds_write_b64 v%d, %s offset:%d' % (vEXK, vr(dst, 2), h * 512)); o.append(x)
            if blk == 3:
                o.append(W(csh))
                o += ln(self.ACC_H, CSH, self.PH, HP)
                o.append(LG('ds_write_b64 v%d, %s' % (vEXH, vr(HP, 2))))
        o += [WALL(False, True), P('s_barrier')]
        KP = vT + 70
        VV = vT + 12
        SC = vACC
        SP = vACC + 16
        PB = vACC + 32
        LL = vT + 24
        OO = vACC + 48
        MX = vT + 74
        rk = []; rv = []
        for h in range(2):
            x = LG('ds_read_b64 %s, v%d offset:%d' % (vr(KP + 2 * h, 2), vRK, h * 512)); rk.append(x.tag); o.append(x)
        for h in range(2):
            x = LG('ds_read_b64_tr_b16 %s, v%d offset:%d' % (vr(VV + 6 * h, 2), vRVP, h * 512)); rv.append(x.tag); o.append(x)
            for tb in range(2):
                x = LG('ds_read_b64_tr_b16 %s, v%d offset:%d' % (vr(VV + 6 * h + 2 + 2 * tb, 2), vRV, tb * 1024 + h * 512)); rv.append(x.tag); o.append(x)
        insts = [(tb, h) for tb in range(2) for h in range(2)]
        for n, (tb, h) in enumerate(insts):
            q = Q + (tb * 2 + h) * 2
            o.append(P('v_mfma_f32_16x16x16_bf16 %s, %s, %s, %s' % (vr(SC + 4 * n, 4), vr(K + (tb * 2 + h) * 2, 2), vr(q, 2), vr(vCCUR, 4))))
        for n, (tb, h) in enumerate(insts):
            q = Q + (tb * 2 + h) * 2
            if tb == 0:
                o.append(W(rk[h]))
                o.append(P('v_mfma_f32_16x16x16_bf16 %s, %s, %s, %s' % (vr(SP + 4 * n, 4), vr(KP + 2 * h, 2), vr(q, 2), vr(vCPA, 4))))
            else:
                o.append(P('v_mfma_f32_16x16x16_bf16 %s, %s, %s, %s' % (vr(SP + 4 * n, 4), vr(K + h * 2, 2), vr(q, 2), vr(vCPREV, 4))))
        for n in range(4):
            for r in range(4):
                o.append(P('v_max_f32 v%d, v%d, v%d' % (SC + 4 * n + r, SC + 4 * n + r, SP + 4 * n + r)))
        for n in range(4):
            o.append(P('v_max3_f32 v%d, v%d, v%d, v%d' % (MX + n, SC + 4 * n, SC + 4 * n + 1, SC + 4 * n + 2)))
        for n in range(4):
            o.append(P('v_max_f32 v%d, v%d, v%d' % (MX + n, MX + n, SC + 4 * n + 3)))
        a, b, c, d = MX, MX + 1, MX + 2, MX + 3
        o += [P('v_permlane32_swap_b32 v%d, v%d' % (a, b)), P('v_permlane32_swap_b32 v%d, v%d' % (c, d)),
              P('v_max_f32 v%d, v%d, v%d' % (a, a, b)), P('v_max_f32 v%d, v%d, v%d' % (c, c, d)),
              P('v_permlane16_swap_b32 v%d, v%d' % (a, c)), P('v_max_f32 v%d, v%d, v%d' % (a, a, c)),
              P('v_mov_b32 v%d, v%d' % (c, a)), P('v_permlane16_swap_b32 v%d, v%d' % (a, c)),
              P('v_mov_b32 v%d, v%d' % (b, a)), P('v_mov_b32 v%d, v%d' % (d, c)),
              P('v_permlane32_swap_b32 v%d, v%d' % (a, b)), P('v_permlane32_swap_b32 v%d, v%d' % (c, d))]
        for n in range(4):
            for hh in range(2):
                o.append(P('v_sub_f32 v%d, v%d, v%d' % (SC + 4 * n + 2 * hh, SC + 4 * n + 2 * hh, MX + n)))
                o.append(P('v_sub_f32 v%d, v%d, v%d' % (SC + 4 * n + 2 * hh + 1, SC + 4 * n + 2 * hh + 1, MX + n)))
        for n in range(4):
            for r in range(4):
                o.append(P('v_exp_f32 v%d, v%d' % (SC + 4 * n + r, SC + 4 * n + r)))
        for n in range(4):
            for hh in range(2):
                o.append(P('v_cvt_pk_bf16_f32 v%d, v%d, v%d' % (SP + 4 * n + hh, SC + 4 * n + 2 * hh, SC + 4 * n + 2 * hh + 1)))
        for n in range(4):
            for hh in range(2):
                o.append(P('v_cndmask_b32_e64 v%d, 0, v%d, s[%d:%d]' % (PB + 4 * n + hh, SP + 4 * n + hh, sUP, sUP + 1)))
                o.append(P('v_cndmask_b32_e64 v%d, v%d, 0, s[%d:%d]' % (PB + 4 * n + 2 + hh, SP + 4 * n + hh, sUP, sUP + 1)))
        o.append(W(rv))
        o.append(P('s_barrier'))
        for n, (tb, h) in enumerate(insts):
            o.append(P('v_mfma_f32_16x16x32_bf16 %s, %s, %s, 0' % (vr(LL + 4 * n, 4), vr(vONES, 4), vr(PB + 4 * n, 4))))
            o.append(P('v_mfma_f32_16x16x32_bf16 %s, %s, %s, 0' % (vr(OO + 4 * n, 4), vr(VV + 6 * h + 2 * tb, 4), vr(PB + 4 * n, 4))))
        for n in range(4):
            o.append(P('v_rcp_f32 v%d, v%d' % (LL + 4 * n, LL + 4 * n)))
        OUTR = vT + 40
        for n, (tb, h) in enumerate(insts):
            for hh in range(2):
                o.append(P('v_pk_mul_f32 %s, %s, %s op_sel_hi:[1,0]' % (vr(OO + 4 * n + 2 * hh, 2), vr(OO + 4 * n + 2 * hh, 2), vr(LL + 4 * n, 2))))
        for n, (tb, h) in enumerate(insts):
            for hh in range(2):
                o.append(P('v_cvt_pk_bf16_f32 v%d, v%d, v%d' % (OUTR + (tb * 2 + h) * 2 + hh, OO + 4 * n + 2 * hh, OO + 4 * n + 2 * hh + 1)))
        if dmas:
            k = min(i for i, x in enumerate(o) if x.text == 's_barrier') + 1
            body = interleave(o[k:], dmas, start=0, every=max(1, (len(o) - k) // (len(dmas) + 1)))
            o = o[:k] + body
        o += [P('s_lshl_b32 s54, s%d, 15' % sW), P('s_add_u32 s53, s54, s%d' % sOF), P('s_lshl_b32 s54, s%d, 10' % sM),
              P('s_add_u32 s53, s53, s54'), P('s_add_u32 s54, s53, 16384')]
        return o, ['buffer_store_dwordx4 %s, v%d, s[28:31], s%d offen' % (vr(OUTR + 4 * tb, 4), vL16, 53 + tb) for tb in range(2)]

    def mode_load(self):
        self.tag_mode = newtag('mode')
        return [P('s_lshr_b32 s53, s%d, 1' % sG), P('s_lshl_b32 s53, s53, 5'), P('s_and_b32 s54, s%d, 1' % sG),
                P('s_lshl_b32 s54, s54, 2'), P('s_add_u32 s%d, s53, s54' % sA),
                P('v_mov_b32 v%d, 0' % vTB),
                VM('buffer_load_dword v%d, v%d, s[36:39], s%d offen sc1' % (vTA, vTB, sA), self.tag_mode)]

    def mode_check(self):
        spin = self.L('rsp'); ok = self.L('rok')
        return [W(self.tag_mode), P('s_mov_b32 s%d, 0' % sTMO),
                P('v_readfirstlane_b32 s54, v%d' % vTA),
                P('s_nop 4'),
                P('s_and_b32 s52, s54, 31'), P('s_cmp_eq_u32 s52, 16'), P('s_cbranch_scc1 %s' % ok),
                LAB(spin),
                P('buffer_load_dword v%d, v%d, s[36:39], s%d offen sc1' % (vTA, vTB, sA)),
                P('s_add_u32 s%d, s%d, 1' % (sTMO, sTMO)),
                P('s_waitcnt vmcnt(0)'),
                P('v_readfirstlane_b32 s54, v%d' % vTA),
                P('s_nop 4'),
                P('s_and_b32 s52, s54, 31'), P('s_cmp_eq_u32 s52, 16'), P('s_cbranch_scc1 %s' % ok),
                P('s_cmp_lt_u32 s%d, 0x100000' % sTMO), P('s_cbranch_scc1 %s' % spin),
                P('s_endpgm'),
                LAB(ok),
                P('s_lshr_b32 s52, s54, 5'), P('s_and_b32 s52, s52, 255'), P('s_mul_i32 s52, s52, s52'),
                P('s_lshr_b32 s54, s54, 13'), P('s_lshl_b32 s54, s54, 4'),
                P('s_cmp_lg_u32 s52, s54'), P('s_cselect_b32 s%d, 1, 0' % sMODE)] + \
            ([P('s_mov_b32 s%d, 1' % sMODE)] if self.cfg.get('force_mixed') else []) + self.set_bases()

    def set_bases(self):
        o = [P('s_mul_i32 s52, s%d, %d' % (sG, ACT_G)), P('s_add_u32 s52, s52, %d' % WS_ACT),
             P('s_mul_i32 s53, s%d, %d' % (sG, 8 * 57344)), P('s_lshl_b32 s54, s%d, 13' % sG),
             P('s_cmp_eq_u32 s%d, %d' % (sMODE, 7 if self.cfg.get('noalias') else 0))]
        def sel(dst, pure_off, mixed_base_s, mixed_imm):
            return [P('s_add_u32 s55, s52, %d' % pure_off), P('s_add_u32 s%d, s%d, %d' % (dst, mixed_base_s, mixed_imm)),
                    P('s_cmp_eq_u32 s%d, %d' % (sMODE, 7 if self.cfg.get('noalias') else 0)),
                    P('s_cselect_b32 s%d, s55, s%d' % (dst, dst))]
        o += sel(sOF, 0, sGBASE, WS_OF) + sel(sAF, 0, 53, WS_AF) + sel(sX1, 458752, sGBASE, WS_XF) + \
            sel(sX2, 458752, sGBASE, WS_XF + XF_K) + sel(sS1, 589824, 54, WS_ST) + sel(sS2, 589824, 54, WS_ST + ST_K)
        for d, v in ((dOF, OF_R), (dAF, AF_R), (dX1, 2 * XF_K), (dS1, 2 * ST_K)):
            o.append(P('s_cselect_b32 s%d, 0, %d' % (d, v)))
        return o

    def gemmB(self, nk, srdW, src_base, nblk, depth, resident, refill_tags_out, exb, pre_extras=None, posf=None, tail=None, post=None, inloop=None, tail_lds=False):
        o = []
        o += [P('s_and_b32 s52, s%d, 1' % sW), P('s_mul_i32 s52, s52, %d' % (nk * 1024)),
              P('s_add_u32 s52, s52, s%d' % src_base),
              P('s_mul_i32 s53, s%d, %d' % (sTB, nblk * 1024)), P('s_add_u32 s%d, s52, s53' % sB0),
              P('s_xor_b32 s53, s%d, 1' % sTB), P('s_mul_i32 s53, s53, %d' % (nblk * 1024)), P('s_add_u32 s%d, s52, s53' % sB1)]
        xl = self.x_loads(nk, depth=depth)
        pro = min(nk, self.cfg.get('b_pro', 4))
        for t in range(pro):
            o += xl[t][0] + xl[t][1]
        groups = []; n = 0; first_idx = {}; mfidx = 0
        acc = lambda s, fb: vACC + (s * 4 + fb) * 4
        refills = []
        if nk > resident:
            for t in range(resident, nk):
                for kh in range(2):
                    refills.append(self.dma_wo_slot(srdW, nk, t, kh, posf(t)))
        for t in range(nk):
            first_idx[t] = mfidx
            pos = posf(t) if posf else t
            for fb in range(4):
                dst = self.afrag(n); n += 1
                g = dict(pre=[], reads=[], mf=[])
                if fb == 0 and t == resident:
                    g['pre'] += [W(self.vmtags(refills)), P('s_barrier')]
                for part in range(2):
                    a = pos * 8192 + part * 2048
                    win = a >> 16
                    g['reads'].append(LG('ds_read_b64_tr_b16 v[%d:%d], v%d offset:%d' % (dst + 2 * part, dst + 2 * part + 1, vW2A + fb * 3 + win, a & 0xffff)))
                for s in range(2):
                    c = '0' if t == 0 else vr(acc(s, fb), 4)
                    wt = self.vmtags(xl[t][s]) if fb == 0 else []
                    g['mf'].append(('v_mfma_f32_16x16x32_bf16 %s, %s, %s, %s' % (vr(acc(s, fb), 4), vr(dst, 4), ar(((t % depth) * 2 + s) * 4, 4), c), wt))
                mfidx += 2
                groups.append(g)
        extras = []
        last = -1
        for t in range(pro, nk):
            if t < depth:
                at = first_idx[min(nk - 1, (t - pro) // 2)] + 1 + 4 * ((t - pro) % 2)
            else:
                at = first_idx[t - depth] + 7
            at = max(at, last + 1)
            extras.append((at, xl[t][0])); extras.append((at + 1, xl[t][1]))
            last = at + 1
        if inloop:
            for k, d in enumerate(inloop):
                extras.append((last + 2 + self.cfg.get('a2_step', 5) * k, d))
        if refills:
            nfree = nk - resident
            bar_at = first_idx[nfree] - 1
            extras.append((bar_at, [P('s_barrier')]))
            for k, d in enumerate(refills):
                extras.append((first_idx[nfree + k // 3] + 1 + 2 * (k % 3), d))
        if tail and tail_lds:
            extras.append((first_idx[resident] - 1, [P('s_barrier')]))
            nt_ = nk - resident
            for k, d in enumerate(tail):
                extras.append((first_idx[resident] + 1 + k * (8 * nt_ - 4) // len(tail), d))
        elif tail:
            allb = [t_ for row in xl for blk in row for t_ in self.vmtags(blk)]
            extras.append((first_idx[resident] - 1, [W(allb), P('s_barrier')]))
            nt_ = nk - resident
            t0_ = self.cfg.get('tail_k0', 0)
            for k, d in enumerate(tail):
                kk = t0_ + k * (nt_ - t0_) // len(tail)
                sk = self.L('tsk')
                extras.append((first_idx[resident + kk] + 1 + 2 * (k % 3),
                               [P('s_cmp_lg_u32 s%d, 0' % sRND), P('s_cbranch_scc1 %s ;nopad' % sk)] + d + [LAB(sk)]))
        if pre_extras and False:
            for k, t in enumerate(pre_extras):
                extras.append((first_idx[min(nk - 1, self.cfg.get('t_p4_k', 16) + 2 * k)] + 4, t))
        extras += self.sched_touches('p4' if nk == 28 else 'p2', first_idx)
        if nk == 28 and self.cfg.get('wbl2'):
            allb2 = [t_ for row in xl for blk in row for t_ in self.vmtags(blk)] + self.vmtags(refills)
            sk = self.L('wb')
            extras.append((first_idx[self.cfg.get('wbl2')] + 2,
                           [W(allb2), P('s_cmp_eq_u32 s%d, 0' % sTUX), P('s_cselect_b32 s52, s%d, 0' % sRND), P('s_cmp_eq_u32 s52, 1'),
                            P('s_cbranch_scc0 %s ;nopad' % sk), P('buffer_wbl2 sc1'), LAB(sk)]))
        if nk == 28 and self.cfg.get('code_staged', 1) and self.cfg.get('t_code', 1):
            extras.append((first_idx[16] + 3, self.touch_code('L_C5', 'L_END', 72)))
        o += self.gemm_loop(groups, self.cfg.get('la', 3), extras)
        o.append(P('s_barrier'))
        o += [P('v_add_u32 v%d, %d, v%d' % (vTA, exb, vEXBW)), P('v_add_u32 v%d, %d, v%d' % (vTB, exb, vEXBR))]
        if post and tail_lds:
            o += self.flat(post)
        elif post:
            sk = self.L('psk')
            o += [P('s_cmp_lg_u32 s%d, 0' % sRND), P('s_cbranch_scc1 %s ;nopad' % sk)] + self.flat(post) + [LAB(sk)]
        for fb in range(4):
            o.append(LG('ds_write_b128 v%d, %s offset:%d' % (vTA, vr(acc(1, fb), 4), fb * 1024)))
        o += [WALL(False, True), P('s_barrier')]
        PT = vT
        rt = []
        for fb in range(4):
            x = LG('ds_read_b128 %s, v%d offset:%d' % (vr(PT + 4 * fb, 4), vTB, fb * 1024)); rt.append(x.tag); o.append(x)
        U = vT + 16
        for fb in range(4):
            for hh in range(2):
                r = vR + fb * 2 + hh
                o += [P('v_lshlrev_b32 v%d, 16, v%d' % (U + fb * 4 + hh * 2, r)), P('v_and_b32 v%d, 0xffff0000, v%d' % (U + fb * 4 + hh * 2 + 1, r))]
        for fb in range(4):
            for hh in range(2):
                a = acc(0, fb) + 2 * hh
                o.append(P('v_pk_add_f32 %s, %s, %s' % (vr(a, 2), vr(a, 2), vr(U + fb * 4 + 2 * hh, 2))))
        for fb in range(4):
            o.append(W(rt[fb]))
            for hh in range(2):
                a = acc(0, fb) + 2 * hh
                o.append(P('v_pk_add_f32 %s, %s, %s' % (vr(a, 2), vr(a, 2), vr(PT + fb * 4 + 2 * hh, 2))))
        for fb in range(4):
            for hh in range(2):
                a = acc(0, fb) + 2 * hh
                o.append(P('v_cvt_pk_bf16_f32 v%d, v%d, v%d' % (vR + fb * 2 + hh, a, a + 1)))
        return o

    def sw4(self):
        return self.touch_set(self.cfg.get('t_p4', ''), only_r1=True)

    def row_stats(self):
        s1 = vT + 32; s2 = vT + 33; s1b = vT + 34; s2b = vT + 35
        o = [P('v_mov_b32 v%d, 0' % r) for r in (s1, s2, s1b, s2b)]
        for k in range(0, 8, 2):
            o += [P('v_dot2c_f32_bf16 v%d, v%d, v%d' % (s1, vR + k, vONES)), P('v_dot2c_f32_bf16 v%d, v%d, v%d' % (s2, vR + k, vR + k)),
                  P('v_dot2c_f32_bf16 v%d, v%d, v%d' % (s1b, vR + k + 1, vONES)), P('v_dot2c_f32_bf16 v%d, v%d, v%d' % (s2b, vR + k + 1, vR + k + 1))]
        o += [P('v_add_f32 v%d, v%d, v%d' % (s1, s1, s1b)), P('v_add_f32 v%d, v%d, v%d' % (s2, s2, s2b))]
        o += self.reduce_g2(s1, s2)
        return o

    def x_stores(self, sx, ss):
        return [P('s_mul_i32 s53, s%d, 16384' % sTB), P('s_add_u32 s53, s53, s%d' % sx), P('s_lshl_b32 s54, s%d, 11' % sCT),
                P('s_add_u32 s53, s53, s54'),
                P('s_lshl_b32 s54, s%d, 10' % sTB), P('s_add_u32 s54, s54, s%d' % ss)]

    def x_store_frags(self):
        ds, tags = self.dual_store(['buffer_store_dwordx4 %s, v%d, s[28:31], s53 offen' % (vr(vR, 4), vL16),
                                    'buffer_store_dwordx4 %s, v%d, s[28:31], s55 offen offset:1024' % (vr(vR + 4, 4), vL16)])
        return self.delta(55, 11) + [P('s_add_u32 s55, s55, s53')] + ds, tags

    def x_store_stats(self):
        ds, tags = self.dual_store(['buffer_store_dwordx2 %s, v%d, s[28:31], s54 offen' % (vr(vT + 32, 2), vSTO)])
        return [P('s_mov_b64 exec, 0xffff')] + ds + [P('s_mov_b64 exec, -1')], tags

    def p3(self, extras_w2):
        o = []
        cfg = self.cfg
        for b in range(2):
            o += [P('s_lshl_b32 s53, s%d, 1' % sW), P('s_add_u32 s53, s53, %d' % b), P('s_lshl_b32 s53, s53, 14'),
                  P('s_add_u32 s%d, s53, s%d' % (sB0 + b, sX1))]
        xl = self.x_loads(16)
        pro = cfg.get('x_pro', 4)
        for j in range(pro):
            o += xl[j][0] + xl[j][1]
        stt = []
        STR = vT + 12
        PA = [vT + 0, vT + 2]
        for b in range(2):
            t = newtag('st'); stt.append(t)
            o += [P('s_lshl_b32 s54, s%d, 11' % sW), P('s_add_u32 s53, s54, s%d' % sS1),
                  P('s_add_u32 s53, s53, %d' % (b * 1024)),
                  VM('buffer_load_dwordx4 %s, v%d, s[28:31], s53 offen sc1' % (vr(STR + 4 * b, 4), vL16), t)]
        acc = lambda fb, tb: vACC + (fb * 2 + tb) * 4
        a3 = self.dma_w1_group(3)
        groups = []; n = 0; first_idx = {}; mfidx = 0
        for j in range(16):
            first_idx[j] = mfidx
            base = L_W1P[j // 4] + (j % 4) * 7168
            for fb in range(7):
                dst = self.afrag(n); n += 1
                g = dict(pre=[], reads=[], mf=[])
                if j == 12 and fb == 0:
                    g['pre'] += [W(self.vmtags(a3)), P('s_barrier')]
                for part in range(2):
                    a = base + part * 3584 + fb * 32
                    win = a >> 16
                    g['reads'].append(LG('ds_read_b64_tr_b16 v[%d:%d], v%d offset:%d' % (dst + 2 * part, dst + 2 * part + 1, vW1A + win, a & 0xffff)))
                for tb in range(2):
                    c = '0' if j == 0 else vr(acc(fb, tb), 4)
                    wt = self.vmtags(xl[j][tb]) if fb == 0 else []
                    g['mf'].append(('v_mfma_f32_16x16x32_bf16 %s, %s, %s, %s' % (vr(acc(fb, tb), 4), vr(dst, 4), ar((j * 2 + tb) * 4, 4), c), wt))
                mfidx += 2
                groups.append(g)
        extras = []
        k = 0
        rate = cfg.get('x_rate', 4)
        for j in range(pro, 16):
            for b in range(2):
                extras.append((first_idx[k // rate] + 1 + (14 // rate) * (k % rate), xl[j][b])); k += 1
        at = extras[-1][0] + 2
        for d in a3:
            extras.append((at, d)); at += 4
        st_ops = [W(stt)]
        for b in range(2):
            st_ops += self.stats_from_st(STR + 4 * b, PA[b], scale=LOG2E)
        extras += self.spread(st_ops, first_idx[2] + 2, 1)
        at = max(at, first_idx[9])
        for d in extras_w2:
            extras.append((at, d)); at += cfg.get('w2e_step', 7)
        for k, t in enumerate(self.touch_set(cfg.get('t_p3', 'af'), only_r1=True)):
            extras.append((first_idx[min(15, cfg.get('t_p3_k', 9) + 2 * k)] + 4, t))
        extras += self.sched_touches('p3', first_idx)
        if cfg.get('code_staged', 1) and cfg.get('t_code', 1):
            extras.append((first_idx[10] + 6, self.touch_code('L_C4', 'L_C5', 72)))
        o += self.gemm_loop(groups, cfg.get('la', 3), extras)
        o.append(P('s_barrier'))
        return o, PA

    def cs_w1(self):
        o = []
        A0 = vT + 40; A1 = vT + 44
        ad = vT + 48
        o += [P('s_lshl_b32 s53, s%d, 5' % sW), P('s_add_u32 s54, s%d, 4' % sW), P('s_min_u32 s54, s54, 6'), P('s_lshl_b32 s54, s54, 5')]
        for win in range(3):
            o += [P('v_add_u32 v%d, s53, v%d' % (ad + win, vW1A + win)), P('v_add_u32 v%d, s54, v%d' % (ad + 3 + win, vW1A + win))]
        groups = []; n = 0
        for j in range(16):
            base = L_W1P[j // 4] + (j % 4) * 7168
            for e in range(2):
                dst = self.afrag(n); n += 1
                g = dict(pre=[], reads=[], mf=[])
                for part in range(2):
                    a = base + part * 3584
                    g['reads'].append(LG('ds_read_b64_tr_b16 v[%d:%d], v%d offset:%d' % (dst + 2 * part, dst + 2 * part + 1, ad + 3 * e + (a >> 16), a & 0xffff)))
                accr = A0 if e == 0 else A1
                c = '0' if j == 0 else vr(accr, 4)
                g['mf'].append(('v_mfma_f32_16x16x32_bf16 %s, %s, %s, %s' % (vr(accr, 4), vr(dst, 4), vr(vONES, 4), c), []))
                groups.append(g)
        o += self.gemm_loop(groups, 3, [])
        o += [P('s_lshl_b32 s53, s53, 1'), P('s_lshl_b32 s54, s54, 1'),
              P('v_add_u32 v%d, s53, v%d' % (ad, vCS)), P('v_add_u32 v%d, s54, v%d' % (ad + 1, vCS)),
              P('s_mov_b32 s52, 0x00010001'), P('s_mov_b32 s53, 0x00010001'), P('s_mov_b64 exec, s[52:53]'),
              LG('ds_write_b128 v%d, %s offset:%d' % (ad, vr(A0, 4), L_CS1)),
              LG('ds_write_b128 v%d, %s offset:%d' % (ad + 1, vr(A1, 4), L_CS1)),
              P('s_mov_b64 exec, -1'), WALL(False, True), P('s_barrier')]
        return o

    def p3_epi(self, PA, dmas):
        o = []
        acc = lambda fb, tb: vACC + (fb * 2 + tb) * 4
        CS = vT + 12; BB = vT + 40
        PK = vT + 68
        cst = []
        for fb in range(7):
            x = LG('ds_read_b128 %s, v%d offset:%d' % (vr(CS + 4 * fb, 4), vCS, L_CS1 + fb * 64)); y = LG('ds_read_b128 %s, v%d offset:%d' % (vr(BB + 4 * fb, 4), vCS, L_BB1 + fb * 64))
            cst.append([x.tag, y.tag]); o += [x, y]
        T = vT + 68
        OUTR = lambda tb, fb: vAF + tb * 16 + fb * 2
        body = []
        for fb in range(7):
            body.append(W(cst[fb]))
            prs = [(tb, hh) for tb in range(2) for hh in range(2)]
            E = [T + 2 * k for k in range(4)]; U = [T + 8 + 2 * k for k in range(4)]
            for k, (tb, hh) in enumerate(prs):
                body.append(P('v_pk_fma_f32 %s, %s, %s, %s op_sel:[0,1,0] op_sel_hi:[1,1,1]' % (vr(E[k], 2), vr(CS + 4 * fb + 2 * hh, 2), vr(PA[tb], 2), vr(BB + 4 * fb + 2 * hh, 2))))
            for k, (tb, hh) in enumerate(prs):
                body.append(P('v_pk_fma_f32 %s, %s, %s, %s op_sel_hi:[1,0,1]' % (vr(E[k], 2), vr(acc(fb, tb) + 2 * hh, 2), vr(PA[tb], 2), vr(E[k], 2))))
            for k in range(4):
                body += [P('v_exp_f32 v%d, v%d' % (U[k], E[k])), P('v_exp_f32 v%d, v%d' % (U[k] + 1, E[k] + 1))]
            for k in range(4):
                body.append(P('v_pk_add_f32 %s, %s, s[%d:%d]' % (vr(U[k], 2), vr(U[k], 2), sONE, sONE + 1)))
            for k in range(4):
                body.append(P('v_pk_fma_f32 %s, %s, %s, s[%d:%d]' % (vr(U[k], 2), vr(U[k], 2), vr(U[k], 2), sONE, sONE + 1)))
            for k in range(4):
                body += [P('v_rcp_f32 v%d, v%d' % (U[k], U[k])), P('v_rcp_f32 v%d, v%d' % (U[k] + 1, U[k] + 1))]
            for k in range(4):
                body.append(P('v_pk_fma_f32 %s, %s, s[%d:%d], %s' % (vr(U[k], 2), vr(U[k], 2), sM2L, sM2L + 1, vr(vLN2, 2))))
            for k in range(4):
                body.append(P('v_pk_mul_f32 %s, %s, %s' % (vr(E[k], 2), vr(E[k], 2), vr(U[k], 2))))
            for k, (tb, hh) in enumerate(prs):
                body.append(P('v_cvt_pk_bf16_f32 v%d, v%d, v%d' % (OUTR(tb, fb) + hh, E[k], E[k] + 1)))
        if dmas:
            frac = self.cfg.get('p3e_frac', 100)
            body = interleave(body, dmas, start=4, every=max(1, ((len(body) - 8) * frac // 100) // (len(dmas) + 1)))
        o += body
        o += [P('s_lshr_b32 s52, s%d, 1' % sM), P('s_mul_i32 s52, s52, 7168'), P('s_add_u32 s52, s52, s%d' % sAF),
              P('s_mul_i32 s53, s%d, %d' % (sW, 2 * 57344)), P('s_add_u32 s52, s52, s53'),
              P('s_add_u32 s53, s52, 57344'), P('s_add_u32 s54, s52, 4096'), P('s_add_u32 s55, s53, 4096')]
        def variant(odd, fl):
            r = []
            for tb in range(2):
                b0 = 52 + tb; b1 = 54 + tb
                if not odd:
                    for u in range(3):
                        r.append(P('buffer_store_dwordx4 %s, v%d, s[28:31], s%d offen offset:%d%s' % (vr(OUTR(tb, 2 * u), 4), vL16, b0, u * 1024, fl)))
                    r.append(P('buffer_store_dwordx2 %s, v%d, s[28:31], s%d offen offset:%d%s' % (vr(OUTR(tb, 6), 2), vL16, b0, 3072, fl)))
                else:
                    r.append(P('buffer_store_dwordx2 %s, v%d, s[28:31], s%d offen offset:%d%s' % (vr(OUTR(tb, 0), 2), vL16, b0, 3072 + 8, fl)))
                    for u in range(3):
                        r.append(P('buffer_store_dwordx4 %s, v%d, s[28:31], s%d offen offset:%d%s' % (vr(OUTR(tb, 2 * u + 1), 4), vL16, b1, u * 1024, fl)))
            return r
        l_odd = self.L('odd'); l_e1 = self.L('e1'); l_o1 = self.L('o1'); done = self.L('dn')
        o += [P('s_bitcmp1_b32 s%d, 0' % sM), P('s_cbranch_scc1 %s' % l_odd),
              P('s_cmp_eq_u32 s%d, 0' % sMODE), P('s_cbranch_scc1 %s' % l_e1)] + variant(False, ' sc1') + [P('s_branch %s' % done), LAB(l_e1)] + \
            variant(False, '') + [P('s_branch %s' % done), LAB(l_odd),
              P('s_cmp_eq_u32 s%d, 0' % sMODE), P('s_cbranch_scc1 %s' % l_o1)] + variant(True, ' sc1') + [P('s_branch %s' % done), LAB(l_o1)] + \
            variant(True, '') + [LAB(done)]
        cnt = [VM('; counted store') for _ in range(8)]
        return o + cnt, [c.tag for c in cnt]

    def build(self):
        cfg = self.cfg
        stop = cfg.get('stop', 99)
        o = self.add
        self.prologue()
        o(self.ts(0))
        self.p1a()
        o(self.ts(1))
        o(W(self.tag_res))
        if cfg.get('stash', 1):
            o(self.wq_stash(), WALL(False, True), P('s_barrier'))
        if cfg.get('a0_early', 1):
            o(self.dma_w1_group(0))
        o(LAB('L_P1EPI'))
        wo = [self.dma_wo_slot(SRD_WO, 8, t, kh, t) for t in range(8) for kh in range(2)]
        w1a0 = self.dma_w1_group(0)
        epi, stores = self.p1_epi(wo + ([] if cfg.get('a0_early', 1) else w1a0))
        o(epi)
        ds, tags = self.dual_store(stores)
        o(ds)
        o(self.ts(2, True))
        o(P('s_lshl_b32 s%d, s%d, 2' % (sTGT, sRND)))
        o(self.sync_dyn(1, tags, pre_r1=self.dma_w1_group(1)) if cfg.get('a1_tail', 1) else self.sync_dyn(1, tags, pre=self.dma_w1_group(1)))
        o(self.ts(3, True))
        if stop == 1:
            o(P('s_branch L_END'))
        o(LAB('L_C2'))
        o(self.gemmB(8, SRD_WO, sOF, 16, 8, 8, None, L_EXB2, inloop=self.dma_w1_group(2) if cfg.get('a2_p2', 1) else None))
        o(self.ts(4, True))
        o(self.x_stores(sX1, sS1))
        ds, tags = self.x_store_frags(); o(ds)
        o(self.row_stats())
        ds, tags2 = self.x_store_stats(); o(ds)
        tags = tags + tags2
        o(self.sync_dyn(2, tags, pre=None if cfg.get('a2_p2', 1) else self.dma_w1_group(2)))
        o(self.ts(5, True))
        if stop == 2:
            o(P('s_branch L_END'))
        w2_early = [self.dma_wo_slot(SRD_W2, 28, W2_T_AT[p], kh, p) for p in range(5) for kh in range(2)]
        body, PA = self.p3(w2_early)
        o(body)
        skip = self.L('cs1')
        o(P('s_cmp_lg_u32 s%d, 0' % sRND), P('s_cbranch_scc1 %s' % skip))
        o(self.cs_w1())
        o(LAB(skip))
        o(self.ts(6, True))
        n_epi = cfg.get('w2_epi_p', 15)
        w2_epi = [self.dma_wo_slot(SRD_W2, 28, W2_T_AT[p], kh, p) for p in range(5, n_epi) for kh in range(2)]
        epi, tags = self.p3_epi(PA, w2_epi)
        o(epi)
        o(self.ts(7, True))
        o(self.sync_dyn(3, tags, pre=[self.dma_wo_slot(SRD_W2, 28, W2_T_AT[p], kh, p) for p in range(n_epi, 19) for kh in range(2)]))
        o(self.ts(8, True))
        if stop == 3:
            o(P('s_branch L_END'))
        o(LAB('L_C4'))
        if cfg.get('stash', 1):
            VA, VB = vT + 60, vT + 61
            o(P('s_cmp_eq_u32 s%d, 0' % sRND), P('s_cselect_b64 s[74:75], -1, 0'))
            o(P('s_lshl_b32 s53, s%d, 10' % sW), P('s_add_u32 s53, s53, %d' % L_W), P('v_add_u32 v%d, s53, v%d' % (VA, vL16)),
              P('v_add_u32 v%d, 0x10000, v%d' % (VB, VA)))
            wq_tail = self.wq_restore([0, 1, 2, 4, 5, 6, 8, 9, 10, 11], VA, VB)
            wq_post = self.wq_restore([3, 7], VA, VB)
            o(self.gemmB(28, SRD_W2, sAF, 56, 16, 19, None, L_EXB4, posf=w2pos, tail=wq_tail, post=wq_post, tail_lds=True))
        else:
            wq_tail = self.dma_wq_quarter(0, src=None) + self.dma_wq_quarter(1, src=None) + self.dma_wq_quarter(2, src=None) + self.dma_wq_quarter(3, panels=(2,), src=None)
            wq_post = self.dma_wq_quarter(3, panels=(0, 1), src=None)
            o(self.gemmB(28, SRD_W2, sAF, 56, 16, 19, None, L_EXB4, pre_extras=self.sw4(), posf=w2pos, tail=wq_tail, post=wq_post))
        o(self.ts(9, True))
        o(LAB('L_C5'))
        o(P('s_cmp_lg_u32 s%d, 0' % sRND), P('s_cbranch_scc1 L_FINAL'))
        o(self.x_stores(sX2, sS2))
        ds, tags = self.x_store_frags(); o(ds)
        o(self.row_stats())
        ds, tags2 = self.x_store_stats(); o(ds)
        tags = tags + tags2
        ht = [newtag('hs') for _ in range(3)]
        o(P('s_add_u32 s52, s%d, 1' % sG), P('s_lshl_b32 s53, s52, 14'), P('s_lshl_b32 s54, s%d, 11' % sCT),
          P('s_add_u32 s53, s53, s54'), P('s_add_u32 s53, s53, %d' % WS_HF),
          P('s_lshl_b32 s54, s52, 10'), P('s_add_u32 s54, s54, %d' % WS_HST),
          VM('buffer_store_dwordx4 %s, v%d, s[28:31], s53 offen sc1' % (vr(vR, 4), vHOF), ht[0]),
          self.delta(55, 11), P('s_add_u32 s55, s55, s53'),
          VM('buffer_store_dwordx4 %s, v%d, s[28:31], s55 offen offset:1024 sc1' % (vr(vR + 4, 4), vHOF), ht[1]),
          VM('buffer_store_dwordx2 %s, v%d, s[28:31], s54 offen sc1' % (vr(vT + 32, 2), vHST), ht[2]))
        self.halo_store_tags = ht
        o(self.sync_dyn(4, tags))
        o(self.ts(10))
        if stop == 4:
            o(P('s_branch L_END'))
        o(P('s_mov_b32 s%d, 1' % sRND), P('s_add_u32 s%d, s%d, s%d' % (sOF, sOF, dOF)), P('s_add_u32 s%d, s%d, s%d' % (sAF, sAF, dAF)),
          P('s_add_u32 s%d, s%d, s%d' % (sX1, sX1, dX1)), P('s_add_u32 s%d, s%d, s%d' % (sS1, sS1, dS1)))
        self.p1b()
        o(self.ts(27))
        o(WALL(False, True))
        o(P('s_branch L_P1EPI'))
        o(LAB('L_FINAL'))
        for u in range(2):
            o(P('v_permlane16_swap_b32 v%d, v%d' % (vR + 4 * u, vR + 4 * u + 2)), P('v_permlane16_swap_b32 v%d, v%d' % (vR + 4 * u + 1, vR + 4 * u + 3)))
        for u in range(2):
            if u == 1:
                o(self.delta(55), P('s_add_u32 s55, s55, s61'))
            o(VM('buffer_store_dwordx4 %s, v%d, s[32:35], s%d offen offset:%d%s' % (vr(vR + 4 * u, 4), vOUT, 55 if u else 61, u * 64, ' sc1' if cfg.get('out_sc1') else '')))
        o(self.ts(28), self.ts_flush())
        o(LAB('L_END'), P('s_endpgm'))

    def sync_dyn(self, ph, tags, window=None, pre=None, pre_r1=None):
        if pre_r1:
            l2 = self.L('pr2'); l3 = self.L('pr3')
            raw = [P(x.text) for x in self.flat(pre_r1)]
            nd = sum(1 for x in self.flat(pre_r1) if x.kind == 'vm')
            o = [P('s_cmp_lg_u32 s%d, 0' % sRND), P('s_cbranch_scc1 %s' % l2)] + raw + [P('s_waitcnt vmcnt(%d)' % nd), P('s_branch %s' % l3),
                 LAB(l2), P('s_waitcnt vmcnt(0)'), LAB(l3), MARK(tags)]
        else:
            o = self.flat(pre or []) + [W(tags)]
        if self.cfg.get('sts'):
            o += self.ts(48 + 4 * (ph - 1))
        pure = self.L('fp'); done = self.L('fd')
        o += [P('s_add_u32 s52, s%d, %d' % (sTGT, ph)),
              P('v_mov_b32 v%d, s52' % (vTA)), P('v_mov_b32 v%d, 0' % (vTB)),
              P('s_mov_b64 exec, 1'),
              P('s_cmp_eq_u32 s%d, 0' % sMODE), P('s_cbranch_scc1 %s' % pure),
              P('buffer_store_dword v%d, v%d, s[28:31], s%d offen sc1' % (vTA, vTB, sFLGOFF)),
              P('s_branch %s' % done), LAB(pure),
              P('buffer_store_dword v%d, v%d, s[28:31], s%d offen' % (vTA, vTB, sFLGOFF)),
              LAB(done), VM('; flag store counted'),
              P('s_mov_b64 exec, -1')]
        other = self.L('so'); join = self.L('sj'); loop = self.L('sp')
        o += [P('s_cmp_lg_u32 s%d, 0' % sW), P('s_cbranch_scc1 %s' % other),
              P('v_lshlrev_b32 v%d, 2, v%d' % (vTB, vLANE)),
              P('s_mov_b32 s%d, 0' % sTMO),
              LAB(loop),
              P('buffer_load_dword v%d, v%d, s[28:31], s%d offen sc1' % (vTA, vTB, sGFLG)),
              P('s_add_u32 s%d, s%d, 1' % (sTMO, sTMO)),
              P('s_waitcnt vmcnt(0)'),
              P('v_cmp_gt_u32 vcc, s52, v%d' % (vTA)),
              P('s_cbranch_vccz %s' % join),
              P('s_cmp_lt_u32 s%d, 0x100000' % sTMO),
              P('s_cbranch_scc1 %s' % loop),
              P('s_endpgm'),
              LAB(other)]
        if window and not self.cfg.get('nowin'):
            o += window
        o += [LAB(join)]
        if self.cfg.get('sts'):
            o += self.ts(49 + 4 * (ph - 1)) + [WALL(True, True)] + self.ts(50 + 4 * (ph - 1))
        if self.cfg.get('halo_nowait') and ph == 4:
            o += [WALL(True, True)]
        else:
            o += [WALL(True, True)]
        o += [P('s_barrier')]
        return o

    def text(self):
        self.build()
        body = self.p.render()
        body = [l for l in body if not l.strip().startswith('; counted') and not l.strip().startswith('; flag store')]
        hdr = open('interleave_layers__sliding_local_dilated__dense_activation_mish__prompt.s.ref').read().split('\n')
        head = []
        for l in hdr:
            if l.startswith('; Override') or l.startswith('; grid=') or l.startswith('; @launch'):
                continue
            if l.startswith('.amdgcn_target'):
                break
            head.append(l)
        out = head + ['; @launch grid=(256,1,1) block=(256,1,1) lds=%d' % LDS_BYTES,
                      '.amdgcn_target "amdgcn-amd-amdhsa--gfx950"', '.text', '.globl ' + KNAME, '.p2align 8',
                      '.type %s,@function' % KNAME, KNAME + ':']
        out += body
        out += ['.section .rodata,"a"', '.p2align 6', '.amdhsa_kernel ' + KNAME,
                '  .amdhsa_next_free_vgpr 512', '  .amdhsa_next_free_sgpr 102', '  .amdhsa_accum_offset 256',
                '  .amdhsa_group_segment_fixed_size 0', '  .amdhsa_kernarg_size 80', '  .amdhsa_user_sgpr_count 2',
                '  .amdhsa_user_sgpr_kernarg_segment_ptr 1', '  .amdhsa_system_sgpr_workgroup_id_x 1',
                '  .amdhsa_float_denorm_mode_32 3', '.end_amdhsa_kernel', '']
        return '\n'.join(out)


if __name__ == '__main__':
    cfg = {}
    outp = sys.argv[1]
    for a in sys.argv[2:]:
        k, v = a.split('=')
        try:
            cfg[k] = int(v)
        except ValueError:
            cfg[k] = v
    g = Gen(cfg)
    t = g.text()
    open(outp, 'w').write(t)
    print('wrote', outp, len(t), 'bytes;', 'nops padded:', g.p.npad)
```

```python
import sys, math
from asmlib import *

KNAME = 'interleave_layers__sliding_local_dilated__dense_activation_mish__prompt_kernel'

WS_FLG = 0x0000
WS_HFL = 0x1000
WS_TS = 0x2000
WS_ST = 0x10000
WS_HST = 0x80000
WS_HF = 0x90000
WS_XF = 0x100000
WS_OF = 0x800000
WS_AF = 0x1000000
WS_ACT = 0x2000000
ACT_G = 0x92000
WS_SIZE = 0x2A00000
ST_K = 0x20000; XF_K = 0x200000; OF_R = 0x200000; AF_R = 0x800000

L_CSQ = 0
L_CS1 = 384
L_BB1 = 832
L_W = 2048
L_HALO = 100352
L_RING = 116736
L_EX = 67584
L_EXK = L_EX + 9216
L_W1P = [135168, 106496, 77824, 49152]
L_EXB2 = 2048
L_EXB4 = 100352
LDS_BYTES = 163840
W2_PA = [12, 13, 14, 15, 16, 17, 18, 3, 7]
W2_PB = [0, 1, 2, 4, 5, 6, 8, 9, 10, 11]
def w2pos(t):
    return W2_PA[t] if t < 9 else (W2_PB[t - 9] if t < 19 else W2_PA[t - 19])
W2_T_AT = {w2pos(t): t for t in range(19)}

LOG2E = 1.4426950408889634
LN2 = 0.6931471805599453


def f32(x):
    import struct
    return '0x%08x' % struct.unpack('<I', struct.pack('<f', x))[0]


sRND = 3; sG = 4; sM = 5; sW = 6; sMODE = 7
SRD_X = 8; SRD_WQ = 12; SRD_WO = 16; SRD_W1 = 20; SRD_W2 = 24; SRD_WS = 28; SRD_OUT = 32; SRD_DBG = 36; SRD_B1 = 40
sXCC = 44
sWQ_SRC = 45
sW1K = 46
sWO_SRC = 47
sW1_SRC = 48
sW1_M = 49
sB0 = 50; sB1 = 51
sT0 = 52; sT1 = 53; sT2 = 54; sT3 = 55
sFLGOFF = 56
sGFLG = 57
sST = 58
sTH = 59; sCT = 60
sONE = 62
sM2L = 64
sUP = 66
sMA = 68; sMB = 70; sMC = 72; sMD = 74
sIT = 76; sTMO = 77; sTGT = 78; sA = 79; sB = 80; sC = 81; sD = 82
sXR0 = 83; sXR1 = 84
sHSRC = 85
sTB = 86
sGBASE = 87
sTS = 88
sTSO = 90
sOF = 94; sAF = 95; sX1 = 96; sS1 = 97; sX2 = 98; sS2 = 99
sTUX = 100; sTUG = 101
dOF = 83; dAF = 84; dX1 = 85; dS1 = 82
sXL0 = 92; sXL1 = 93

vLANE = 0; vL16 = 1
vR = 2
vONES = 10
vWQA = 14
vE1 = 18; vE2 = 19
vW1A = 20
vW2A = 23
vDQ = 35; vDO = 36; vD1 = 37
vCS = 44
vL128 = 45
vDUM = 247
vCCUR = 46; vCPREV = 50; vCPA = 54
vEXV = 58; vEXK = 59; vEXH = 60; vRVP = 61; vRV = 62; vRK = 63
vLN2 = 64
vEXBW = 66; vEXBR = 67
vSTO = 68
vHOF = 69
vHST = 70
vOUT = 71
vAF = 72
NAF = 6
vACC = 104
vT = 168
vTA = 254; vTB = 255
vWOA = 247
vDUMMY = 246
XD = 12
aWO = 96; aWQ = 160
L_HS = 135168
vDX = 240; vDH = 241; vXA = 242; vXB = 243; vHXA = 244; vHXB = 245


class Gen:
    def __init__(self, cfg):
        self.cfg = cfg
        self.p = Prog()
        self.lbl = 0

    def L(self, name):
        self.lbl += 1
        return '%s_%d' % (name, self.lbl)

    def add(self, *a):
        self.p.add(*a)

    def ts(self, idx, rnd=False):
        if not self.cfg.get('ts'):
            return []
        o = [P('s_memrealtime s[92:93]' if self.cfg.get('ts') == 1 else 's_memtime s[92:93]')]
        if rnd:
            o += [P('s_lshl_b32 s91, s%d, 4' % sRND), P('s_add_u32 s91, s91, %d' % idx), P('s_mov_b32 m0, s91'),
                  P('s_waitcnt lgkmcnt(0)'), P('v_writelane_b32 v103, s92, m0')]
        else:
            o += [P('s_waitcnt lgkmcnt(0)'), P('v_writelane_b32 v103, s92, %d' % idx)]
        return o

    def ts_flush(self):
        if not self.cfg.get('ts'):
            return []
        if self.cfg.get('dbgts'):
            o = [P('s_memrealtime s[92:93]'), P('s_waitcnt lgkmcnt(0)'), P('v_readlane_b32 s53, v103, 12'), P('s_nop 4'), P('s_sub_u32 s52, s92, s53'),
                 P('v_writelane_b32 v103, s52, 63')]
            lanes = [1, 2, 10, 27, 28, 63, 6, 9]
            words = [4, 5, 6, 7, 12, 13, 14, 15]
            o += [P('v_readlane_b32 s54, v103, 13')]
            for ln, wd in zip(lanes, words):
                o += [P('v_readlane_b32 s52, v103, %d' % ln), P('s_nop 4')]
                if ln != 63:
                    o += [P('s_sub_u32 s52, s52, s54')]
                o += [P('v_writelane_b32 v252, s52, %d' % wd)]
            o += [P('v_lshlrev_b32 v253, 2, v%d' % vLANE), P('s_cmp_eq_u32 s2, 0'), P('s_cselect_b32 s52, 0, 1'), P('s_or_b32 s52, s52, s%d' % sW),
                  P('s_cmp_eq_u32 s52, 0'), P('s_cselect_b32 s52, 0xf0f0, 0'), P('s_mov_b32 exec_lo, s52'), P('s_mov_b32 exec_hi, 0'),
                  P('s_cbranch_execz L_TSD'),
                  VM('buffer_store_dword v252, v253, s[36:39], 0 offen'), LAB('L_TSD'), P('s_mov_b64 exec, -1')]
            return o
        return [P('v_lshlrev_b32 v252, 2, v%d' % vLANE), VM('buffer_store_dword v103, v252, s[28:31], s90 offen')]

    def dma(self, srd, voff, src_s, src_imm, lds_s, lds_imm, tag=None, st=None):
        st = st if st is not None else sT0
        ops = []
        if lds_s is None:
            ops.append(P('s_mov_b32 m0, %d' % lds_imm))
        else:
            ops.append(P('s_add_u32 m0, s%d, %d' % (lds_s, lds_imm)))
        if src_s is None:
            ops.append(P('s_mov_b32 s%d, %d' % (st, src_imm)))
        else:
            ops.append(P('s_add_u32 s%d, s%d, %d' % (st, src_s, src_imm)))
        if self.cfg.get('nodma') and srd in (SRD_WO, SRD_W1, SRD_W2):
            ops.append(P('s_nop 0'))
            return ops
        nt = ' nt' if (self.cfg.get('nt') and srd in (SRD_W1, SRD_W2)) else ''
        ops.append(VM('buffer_load_dwordx4 v%d, s[%d:%d], s%d offen%s lds' % (voff, srd, srd + 3, st, nt), tag))
        return ops

    def touch(self, srd, unit_s, imm, limit=None, only_r1=False):
        ops = []
        if limit is not None:
            ops += [P('s_add_u32 s55, s%d, %d' % (unit_s, imm[0])), P('s_cmp_lt_u32 s%d, %d' % (unit_s, limit)),
                    P('s_cselect_b32 s55, s55, 0x7ff00000')]
            if imm[1] is not None:
                ops.insert(1, P('s_add_u32 s55, s55, s%d' % imm[1]))
        else:
            ops.append(P('s_add_u32 s55, s%d, %d' % (unit_s, imm)))
        if only_r1:
            ops += [P('s_cmp_eq_u32 s%d, 0' % sRND), P('s_cselect_b32 s55, s55, 0x7ff00000')]
        ops.append(VM('buffer_load_dword v102, v%d, s[%d:%d], s55 offen' % (vL128, srd, srd + 3)))
        return ops

    def touch_w(self, name, only_r1=False):
        srd, size = {'wq': (SRD_WQ, 512 * 3072), 'wo': (SRD_WO, 524288), 'w1': (SRD_W1, 512 * 3584), 'w2': (SRD_W2, 1792 * 1024)}[name]
        return [self.touch(srd, sTUX, k * 0x100000, only_r1=only_r1) for k in range((size + 0xfffff) // 0x100000)]

    def touch_act(self, off, nbytes):
        return [self.touch(SRD_WS, sTUG, (WS_ACT + off, sST), limit=nbytes)]

    def touch_range(self, name, lo, hi, rounds='12'):
        srd = {'wq': SRD_WQ, 'wo': SRD_WO, 'w1': SRD_W1, 'w2': SRD_W2}[name]
        unit = -(-(hi - lo) // (128 * 128)) * 128
        assert unit <= 8192
        nl = unit // 128
        ops = [P('s_lshr_b32 s55, s%d, 13' % sTUX), P('s_mul_i32 s55, s55, %d' % unit), P('s_add_u32 s55, s55, %d' % lo)]
        if rounds != '12':
            ops += [P('s_cmp_eq_u32 s%d, %d' % (sRND, 0 if rounds == '1' else 1)), P('s_cselect_b32 s55, s55, 0x7ff00000')]
        if nl < 64:
            m = (1 << nl) - 1
            ops += [P('s_mov_b32 exec_lo, 0x%x' % (m & 0xffffffff)), P('s_mov_b32 exec_hi, 0x%x' % (m >> 32))]
        ops.append(VM('buffer_load_dword v102, v%d, s[%d:%d], s55 offen' % (vL128, srd, srd + 3)))
        if nl < 64:
            ops.append(P('s_mov_b64 exec, -1'))
        return ops

    def sched_touches(self, phase, first_idx):
        out = []
        for e in str(self.cfg.get('tch', '')).split('+'):
            if not e:
                continue
            f = e.split('.')
            if f[0] != phase:
                continue
            k = int(f[1]); name = f[2]
            if name == 'af2':
                ops = self.touch_act_even(131072, 458752 - 131072, '2')
            elif name in ('of', 'af', 'xf'):
                ops = self.touch_set(name)[0]
            else:
                ops = self.touch_range(name, int(f[3]) * 1024, int(f[4]) * 1024, f[5] if len(f) > 5 else '12')
            out.append((first_idx[k] + 3, ops))
        return out

    def touch_act_even(self, off, n, rounds='12'):
        unit = -(-n // (64 * 128)) * 128
        nl = unit // 128
        assert nl <= 64
        ops = [P('s_lshr_b32 s55, s%d, 13' % sTUG), P('s_mul_i32 s55, s55, %d' % unit), P('s_add_u32 s55, s55, s%d' % sST),
               P('s_add_u32 s55, s55, %d' % (WS_ACT + off))]
        if rounds != '12':
            ops += [P('s_cmp_eq_u32 s%d, %d' % (sRND, 0 if rounds == '1' else 1)), P('s_cselect_b32 s55, s55, 0x7ff00000')]
        if nl < 64:
            m = (1 << nl) - 1
            ops += [P('s_mov_b32 exec_lo, 0x%x' % (m & 0xffffffff)), P('s_mov_b32 exec_hi, 0x%x' % (m >> 32))]
        ops.append(VM('buffer_load_dword v102, v%d, s[28:31], s55 offen' % vL128))
        if nl < 64:
            ops.append(P('s_mov_b64 exec, -1'))
        return ops

    def touch_code(self, lab0, lab1, base, nl=1):
        return [P('s_lshr_b32 s55, s%d, 13' % sTUX), P('s_mul_i32 s55, s55, %d' % (nl * 128)),
                P('v_add_u32 v%d, s55, v%d' % (253, vL128)),
                P('v_add_u32 v%d, %s-L_PC, v%d' % (253, lab0, 253)),
                P('v_min_u32 v%d, %s-L_PC, v%d' % (253, lab1, 253)),
                P('s_mov_b64 exec, %d' % ((1 << nl) - 1)),
                VM('global_load_dword v102, v%d, s[%d:%d]' % (253, base, base + 1)),
                P('s_mov_b64 exec, -1')]

    def delta(self, dst, shift=7):
        if not self.cfg.get('split', 0):
            return [P('s_mov_b32 s%d, 0' % dst)]
        return [P('s_xor_b32 s%d, s%d, 4' % (dst, sCT)), P('s_sub_u32 s%d, s%d, s%d' % (dst, dst, sCT)), P('s_lshl_b32 s%d, s%d, %d' % (dst, dst, shift))]

    def touch_mall(self):
        o = [P('s_lshl_b32 s54, s2, 2'), P('s_add_u32 s54, s54, s%d' % sW)]
        for srd, first, n in ((SRD_W1, 0, 224), (SRD_W2, 256, 224), (SRD_WO, 512, 64)):
            o += [P('s_sub_u32 s55, s54, %d' % first), P('s_cmp_lt_u32 s55, %d' % n), P('s_cselect_b32 s55, s55, 0x3ff80'),
                  P('s_lshl_b32 s55, s55, 13'),
                  VM('buffer_load_dword v102, v%d, s[%d:%d], s55 offen' % (vL128, srd, srd + 3))]
        return o

    def touch_set(self, spec, only_r1=False):
        out = []
        for name in spec.split(','):
            if not name:
                continue
            if name == 'of':
                out.append(self.touch_act_even(0, 131072))
            elif name == 'af':
                out.append(self.touch_act_even(131072, 458752 - 131072))
            elif name == 'xf':
                out.append(self.touch_act_even(458752, 139264))
            else:
                out += self.touch_w(name, only_r1)
        return out

    def dma_wq_quarter(self, qd, panels=(0, 1, 2), src=None):
        out = []
        for a in range(2):
            for p in panels:
                rg = 8 * qd + 4 * a
                out.append(self.dma(SRD_WQ, vDQ, src if src is not None else sWQ_SRC, rg * 49152 + p * 1024, sW1K, L_W + p * 32768 + rg * 1024))
        return out

    def dma_wo_slot(self, srd, nk, t, kh, pos):
        js = kh * nk + t
        return self.dma(srd, vDO, sWO_SRC, js * 32768, sW1K, L_W + (2 * pos + kh) * 4096)

    def dma_w1_group(self, a):
        out = []
        for u in range(7):
            out.append(self.dma(SRD_W1, vD1 + u, sW1_SRC, a * 4 * 32 * 3584, sW1_M, L_W1P[a] + u * 1024))
        return out

    def window_loop(self, n0, n1, srd, srcA_s, srcA_imm, srcB, ldsC, ldsD, subs):
        lab = self.L('win'); end = self.L('winend')
        o = [P('s_add_u32 s%d, s%d, %d' % (sIT, sW, n0 - 1)),
             P('s_cmp_ge_u32 s%d, %d' % (sIT, n1)),
             P('s_cbranch_scc1 %s' % end),
             LAB(lab),
             P('s_mul_i32 s%d, s%d, %d' % (sA, sIT, srcB))]
        if srcA_s is not None:
            o.append(P('s_add_u32 s%d, s%d, s%d' % (sA, sA, srcA_s)))
        o.append(P('s_add_u32 s%d, s%d, %d' % (sA, sA, srcA_imm)))
        o.append(P('s_mul_i32 s%d, s%d, %d' % (sB, sIT, ldsD)))
        for (voff, so, lo) in subs:
            o.append(P('s_add_u32 m0, s%d, %d' % (sB, ldsC + lo)))
            o.append(P('s_add_u32 s%d, s%d, %d' % (sT0, sA, so)))
            nt = ' nt' if (self.cfg.get('nt') and srd in (SRD_W1, SRD_W2)) else ''
            if self.cfg.get('nodma'):
                o.append(P('s_nop 0'))
            else:
                o.append(P('buffer_load_dwordx4 v%d, s[%d:%d], s%d offen%s lds' % (voff, srd, srd + 3, sT0, nt)))
        o += [P('s_add_u32 s%d, s%d, 3' % (sIT, sIT)),
              P('s_cmp_lt_u32 s%d, %d' % (sIT, n1)),
              P('s_cbranch_scc1 %s' % lab),
              LAB(end)]
        return o

    def win_wq(self, rg0, rg1):
        return [P('s_lshl_b32 s%d, s%d, 6' % (sC, sM))] + self.window_loop(
            rg0, rg1, SRD_WQ, sC, 0, 49152, L_W, 1024, [(vDQ, p * 1024, p * 32768) for p in range(3)])

    def win_wo(self, srd, nk, t0, t1, dpos=0):
        subs = []
        for kh in range(2):
            for q in range(4):
                subs.append((vDO, kh * nk * 32768 + q * 8192, kh * 4096 + q * 1024))
        return [P('s_lshl_b32 s%d, s%d, 7' % (sC, sCT))] + self.window_loop(
            t0, t1, srd, sC, 0, 32768, L_W + dpos * 8192, 8192, subs)

    def win_w1(self, j0, j1):
        a = j0 // 4
        base = L_W1P[a] - j0 * 7168
        for j in range(j0, j1):
            assert L_W1P[j // 4] + (j % 4) * 7168 == base + j * 7168
        return [P('s_mul_i32 s%d, s%d, 224' % (sC, sM))] + self.window_loop(
            j0, j1, SRD_W1, sC, 0, 32 * 3584, base, 7168, [(vD1 + u, 0, u * 1024) for u in range(7)])

    def gemm_loop(self, groups, LA, extras):
        out = []
        n = len(groups)
        for k in range(min(LA, n)):
            out += groups[k].get('pre', []) + groups[k]['reads']
        flat = []
        for gi, g in enumerate(groups):
            rq = []
            if gi + LA < n:
                rq = list(groups[gi + LA].get('pre', [])) + list(groups[gi + LA]['reads'])
            nm = len(g['mf'])
            chunks = [[] for _ in range(nm)]
            reads_total = sum(1 for x in rq if x.kind == 'lg')
            per = max(1, -(-reads_total // nm))
            c = 0; cnt = 0
            for x in rq:
                chunks[min(c, nm - 1)].append(x)
                if x.kind == 'lg':
                    cnt += 1
                    if cnt == per:
                        cnt = 0; c += 1
            for k, (text, waits) in enumerate(g['mf']):
                w = list(waits)
                if k == 0:
                    w += [x.tag for x in g['reads']]
                flat.append((text, w, g.get('premf', []) if k == 0 else [], chunks[k]))
        extras = sorted(extras, key=lambda e: e[0])
        ei = 0
        for idx, (text, w, premf, chunk) in enumerate(flat):
            if idx == 0:
                out += premf + [W(w)]
            out.append(P(text))
            if idx + 1 < len(flat):
                out += flat[idx + 1][2]
                out.append(W(flat[idx + 1][1]))
            out += chunk
            k = 0
            while ei < len(extras) and extras[ei][0] <= idx and k < self.cfg.get('extra_per', 1):
                out += extras[ei][1]
                ei += 1; k += 1
        while ei < len(extras):
            out += extras[ei][1]; ei += 1
        return out

    @staticmethod
    def flat(ops):
        out = []
        for x in ops:
            if x is None:
                continue
            if isinstance(x, (list, tuple)):
                out += Gen.flat(x)
            else:
                out.append(x)
        return out

    def spread(self, ops, start, step=1, nvec=1):
        out = []; cur = []; nv = 0; at = start
        ops = self.flat(ops)
        for i, x in enumerate(ops):
            cur.append(x)
            t = x.text or ''
            if t.startswith('v_') or t.startswith('buffer_') or t.startswith('ds_'):
                nv += 1
                nxt = (ops[i + 1].text or '') if i + 1 < len(ops) else ''
                glued = (t.startswith('v_cmp') and ' vcc,' in t) or (nxt.startswith('v_cndmask') and nxt.rstrip().endswith('vcc'))
                if nv >= nvec and not glued:
                    out.append((at, cur)); cur = []; nv = 0; at += step
        if cur:
            out.append((at, cur))
        return out

    def afrag(self, n):
        return vAF + (n % NAF) * 4

    def prologue(self):
        cfg = self.cfg
        o = self.add
        o(P('s_cmp_ge_u32 s2, 256'), P('s_cbranch_scc1 L_END'))
        if cfg.get('ts'):
            o(P('v_mov_b32 v103, 0'), self.ts(13))
            if cfg.get('dbgts'):
                o(P('s_memrealtime s[92:93]'), P('s_waitcnt lgkmcnt(0)'), P('v_writelane_b32 v103, s92, 12'))
        o(P('s_load_dwordx16 s[72:87], s[0:1], 0'), P('s_load_dwordx4 s[88:91], s[0:1], 64'))
        if cfg.get('t_code', 1):
            nl = cfg.get('code_nl', 2 if cfg.get('code_staged', 1) else 3)
            o(P('s_getpc_b64 s[50:51]'), LAB('L_PC'),
              P('s_lshr_b32 s52, s2, 3'), P('s_mul_i32 s52, s52, %d' % (4 * nl)),
              P('v_lshrrev_b32 v252, 6, v0'), P('v_mul_u32_u24 v252, %d, v252' % nl), P('v_and_b32 v253, 63, v0'),
              P('v_add3_u32 v252, v252, v253, s52'), P('v_lshlrev_b32 v252, 7, v252'),
              P('v_min_u32 v252, %s-L_PC, v252' % ('L_C2' if cfg.get('code_staged', 1) else 'L_END')),
              P('s_mov_b64 exec, %d' % ((1 << nl) - 1)),
              VM('global_load_dword v102, v252, s[50:51]'),
              P('s_mov_b64 exec, -1'))
        o(P('s_getreg_b32 s%d, hwreg(HW_REG_XCC_ID, 0, 4)' % sXCC))
        o(P('s_and_b32 s52, s2, 7'), P('s_lshr_b32 s53, s2, 3'), P('s_lshr_b32 s54, s53, 4'),
          P('s_lshl_b32 s%d, s52, 1' % sG), P('s_add_u32 s%d, s%d, s54' % (sG, sG)),
          P('s_and_b32 s%d, s53, 15' % sM))
        if cfg.get('cross_groups'):
            o(P('s_lshr_b32 s%d, s2, 4' % sG), P('s_and_b32 s%d, s2, 15' % sM))
        o(P('v_lshrrev_b32 v252, 6, v0'), P('v_and_b32 v%d, 63, v0' % vLANE), P('v_readfirstlane_b32 s%d, v252' % sW))
        I = 250; Gq = 251; RR = 249; I3 = 248; t0 = 252; t1 = 253; t2 = 254; t3 = 255
        o(P('v_lshlrev_b32 v%d, 7, v%d' % (vL128, vLANE)), P('v_lshlrev_b32 v%d, 4, v%d' % (vL16, vLANE)))
        o(P('v_lshrrev_b32 v%d, 2, v%d' % (t0, vLANE)), P('v_lshrrev_b32 v%d, 2, v%d' % (t1, t0)),
          P('v_xor_b32 v%d, v%d, v%d' % (t1, t1, vLANE)), P('v_and_b32 v%d, 3, v%d' % (t1, t1)),
          P('v_lshlrev_b32 v%d, 4, v%d' % (t1, t1)),
          P('v_lshl_add_u32 v%d, v%d, 11, v%d' % (vDX, t0, t1)))
        o(P('v_lshlrev_b32 v%d, 1, v%d' % (t2, t0)), P('v_add_u32 v%d, 16, v%d' % (t3, t2)), P('v_add_u32 v%d, 1, v%d' % (t2, t2)),
          P('v_cmp_gt_u32 vcc, 8, v%d' % t0),
          P('s_lshr_b32 s%d, s%d, 3' % (sTH, sM)), P('s_and_b32 s%d, s%d, 7' % (sCT, sM)),
          P('v_cndmask_b32 v%d, v%d, v%d, vcc' % (t2, t2, t3)),
          P('v_lshl_add_u32 v%d, v%d, 10, v%d' % (vDH, t2, t1)),
          P('s_cmp_eq_u32 s%d, 0' % sG), P('s_cselect_b32 s53, 0x40000000, 0'), P('v_or_b32 v%d, s53, v%d' % (vDH, vDH)))
        o(P('v_lshrrev_b32 v%d, 4, v%d' % (t1, vLANE)), P('v_lshrrev_b32 v%d, 1, v%d' % (t2, vLANE)),
          P('v_xor_b32 v%d, v%d, v%d' % (t1, t1, t2)), P('v_and_b32 v%d, 1, v%d' % (t1, t1)),
          P('v_lshlrev_b32 v%d, 5, v%d' % (t1, t1)), P('v_and_b32 v%d, 1, v%d' % (t2, vLANE)),
          P('v_lshl_add_u32 v%d, v%d, 4, v%d' % (t1, t2, t1)),
          P('v_mul_u32_u24 v%d, 3072, v%d' % (t2, t0)), P('v_add_u32 v%d, v%d, v%d' % (vDQ, t1, t2)))
        o(P('s_mov_b32 s%d, 0' % sRND), P('s_mov_b32 s%d, 0' % sMODE),
          P('s_mul_i32 s%d, s%d, 49152' % (sWQ_SRC, sW)), P('s_lshl_b32 s52, s%d, 6' % sM),
          P('s_add_u32 s%d, s%d, s52' % (sWQ_SRC, sWQ_SRC)),
          P('s_lshl_b32 s%d, s%d, 10' % (sW1K, sW)),
          P('s_lshl_b32 s%d, s%d, 13' % (sWO_SRC, sW)), P('s_and_b32 s52, s%d, %d' % (sCT, 3 if cfg.get('split', 0) else 7)), P('s_lshl_b32 s52, s52, 7'),
          P('s_add_u32 s%d, s%d, s52' % (sWO_SRC, sWO_SRC)),
          P('s_mul_i32 s%d, s%d, %d' % (sW1_SRC, sW, 32 * 3584)), P('s_mul_i32 s52, s%d, 224' % sM),
          P('s_add_u32 s%d, s%d, s52' % (sW1_SRC, sW1_SRC)),
          P('s_mul_i32 s%d, s%d, 7168' % (sW1_M, sW)),
          P('s_lshl_b32 s%d, s%d, 8' % (sGFLG, sG)),
          P('s_lshl_b32 s52, s%d, 2' % sM), P('s_add_u32 s52, s52, s%d' % sW), P('s_lshl_b32 s52, s52, 2'),
          P('s_add_u32 s%d, s%d, s52' % (sFLGOFF, sGFLG)),
          P('s_and_b32 s52, s%d, 1' % sG), P('s_lshl_b32 s52, s52, 4'), P('s_add_u32 s52, s52, s%d' % sM),
          P('s_lshl_b32 s52, s52, 2'), P('s_add_u32 s52, s52, s%d' % sW), P('s_lshl_b32 s%d, s52, 13' % sTUX),
          P('s_mul_i32 s94, s52, 2176'),
          P('s_lshl_b32 s52, s%d, 2' % sM), P('s_add_u32 s52, s52, s%d' % sW), P('s_lshl_b32 s%d, s52, 13' % sTUG),
          P('s_mul_i32 s%d, s%d, %d' % (sST, sG, ACT_G)),
          P('s_andn2_b32 s52, s%d, 1' % sG), P('s_lshl_b32 s52, s52, 17'), P('s_sub_u32 s52, s52, 16384'),
          P('s_max_i32 s52, s52, 0'), P('s_add_u32 s94, s94, s52'),
          P('s_lshl_b32 s52, s%d, 7' % sG), P('s_sub_u32 s53, s52, 32'), P('s_lshl_b32 s97, s53, 10'),
          P('s_cmp_eq_u32 s%d, 0' % sG), P('s_cselect_b32 s97, 0, s97'), P('s_lshl_b32 s53, s%d, 6' % sW), P('s_add_u32 s97, s97, s53'))
        for b in range(2):
            o(P('s_lshl_b32 s53, s%d, 1' % sW), P('s_add_u32 s53, s53, %d' % b), P('s_and_b32 s53, s53, 3'),
              P('s_lshl_b32 s53, s53, 5'), P('s_add_u32 s53, s53, s52'), P('s_lshr_b32 s54, s%d, 1' % sW),
              P('s_add_u32 s53, s53, s54'), P('s_lshl_b32 s%d, s53, 10' % (95 + b)))
        o(P('s_lshl_b32 s98, s%d, 11' % sW))
        o(P('s_waitcnt lgkmcnt(0)'))
        if cfg.get('pts') == 1:
            o(self.ts(14))
        def srd(dst, src, size):
            return [P('s_mov_b32 s%d, s%d' % (dst, src)), P('s_and_b32 s%d, s%d, 0xffff' % (dst + 1, src + 1)),
                    P('s_mov_b32 s%d, 0x%x' % (dst + 2, size)), P('s_mov_b32 s%d, 0x20000' % (dst + 3))]
        o(srd(SRD_X, 72, 2097152), srd(SRD_WQ, 74, 512 * 3072))
        tp = cfg.get('t_pro', 1)
        def tq(q):
            return self.touch_range('wq', q * 393216, (q + 1) * 393216) if tp else []
        if tp:
            o(P('s_mov_b32 exec_lo, 0x1ffff'), P('s_mov_b32 exec_hi, 0'),
              VM('buffer_load_dword v102, v%d, s[8:11], s94 offen' % vL128), P('s_mov_b64 exec, -1'))
        o(tq(0), tq(1))
        allfirst = cfg.get('cold', 'A') == 'A'
        coldD = cfg.get('cold', 'A') in ('D', 'E')
        if allfirst:
            o(tq(2), tq(3))
        if coldD:
            o(tq(2))
        o(srd(SRD_WO, 76, 524288), srd(SRD_W1, 80, 512 * 3584), srd(SRD_B1, 82, 3584), srd(SRD_W2, 84, 1792 * 1024),
          srd(SRD_OUT, 86, 2097152), srd(SRD_DBG, 88, 256), srd(SRD_WS, 90, WS_SIZE))
        o(P('s_mov_b32 s%d, s95' % sXR0), P('s_mov_b32 s%d, s96' % sXR1), P('s_mov_b32 s%d, s97' % sHSRC), P('s_mov_b32 s%d, s98' % sD))
        o(P('s_and_b32 s52, s%d, 1' % sG), P('s_lshl_b32 s52, s52, 3'), P('s_add_u32 s52, s52, s%d' % sM),
          P('s_and_b32 s99, s52, %d' % (15 if cfg.get('rot', 0) else 0)), P('s_lshl_b32 s98, s99, 1'), P('s_add_u32 s98, s98, s%d' % sW),
          P('s_lshl_b32 s95, s%d, 6' % sM), P('s_lshl_b32 s52, s%d, 6' % sW), P('s_sub_u32 s%d, s%d, s52' % (sHSRC, sHSRC)))
        self.tq = (lambda q: []) if (allfirst or coldD) else tq
        self.tq3 = tq(3) if coldD else None
        if cfg.get('t_mall', 0) == 1:
            o(self.touch_mall())
        self.tag_init = newtag('init')
        o(P('v_mov_b32 v%d, 0' % t1), P('s_mov_b64 exec, 1'),
          VM('buffer_store_dword v%d, v%d, s[28:31], s%d offen sc1' % (t1, t1, sFLGOFF), self.tag_init),
          P('s_mov_b64 exec, -1'))
        if cfg.get('pts') == 1:
            o(self.ts(15))
        o(P('v_and_b32 v%d, 15, v%d' % (I, vLANE)), P('v_lshrrev_b32 v%d, 4, v%d' % (Gq, vLANE)),
          P('v_lshrrev_b32 v%d, 2, v%d' % (t0, I)), P('v_lshl_add_u32 v%d, v%d, 2, v%d' % (RR, Gq, t0)),
          P('v_and_b32 v%d, 3, v%d' % (I3, I)))
        for k in range(4):
            o(P('v_mov_b32 v%d, 0x3f803f80' % (vONES + k)))
        o(P('v_lshlrev_b32 v%d, 6, v%d' % (t0, RR)), P('v_lshl_add_u32 v%d, v%d, 3, v%d' % (t0, I3, t0)),
          P('v_add_u32 v%d, %d, v%d' % (t0, L_W, t0)),
          P('v_and_b32 v%d, 1, v%d' % (t1, Gq)), P('v_lshlrev_b32 v%d, 5, v%d' % (t1, t1)),
          P('v_add_u32 v%d, v%d, v%d' % (vWQA, t0, t1)),
          P('v_xor_b32 v%d, 32, v%d' % (t2, t1)), P('v_add_u32 v%d, v%d, v%d' % (vWQA + 1, t0, t2)),
          P('v_add_u32 v%d, 0x10000, v%d' % (vWQA + 2, vWQA)), P('v_add_u32 v%d, 0x10000, v%d' % (vWQA + 3, vWQA + 1)))
        o(P('s_and_b32 s53, s%d, 1' % sW), P('s_lshl_b32 s53, s53, 5'), P('v_xor_b32 v%d, s53, v%d' % (t2, t1)),
          P('v_add_u32 v%d, v%d, v%d' % (vE2, t0, t2)),
          P('s_lshr_b32 s53, s%d, 1' % sW), P('s_add_u32 s53, s53, 1'), P('s_lshl_b32 s53, s53, 15'),
          P('v_add_u32 v%d, s53, v%d' % (vE1, vE2)))
        o(P('v_lshrrev_b32 v%d, 1, v%d' % (t0, Gq)), P('v_lshrrev_b32 v%d, 2, v%d' % (t1, I)),
          P('v_xor_b32 v%d, v%d, v%d' % (t0, t0, t1)), P('v_lshlrev_b32 v%d, 4, v%d' % (t0, t0)),
          P('v_lshl_add_u32 v%d, v%d, 6, v%d' % (t0, I, t0)),
          P('v_and_b32 v%d, 1, v%d' % (t1, Gq)), P('v_lshl_add_u32 v%d, v%d, 3, v%d' % (t0, t1, t0)),
          P('v_add_u32 v%d, %d, v%d' % (vHXA, L_HALO, t0)), P('v_xor_b32 v%d, 32, v%d' % (vHXB, vHXA)),
          P('s_lshl_b32 s53, s%d, 11' % sW), P('s_add_u32 s53, s53, %d' % L_RING),
          P('v_add_u32 v%d, s53, v%d' % (vXA, t0)), P('v_xor_b32 v%d, 32, v%d' % (vXB, vXA)))
        o(P('v_cmp_eq_u32 s[%d:%d], 1, v%d' % (sMA, sMA + 1, I3)), P('v_cmp_eq_u32 s[%d:%d], 2, v%d' % (sMB, sMB + 1, I3)),
          P('v_cmp_eq_u32 s[%d:%d], 3, v%d' % (sMC, sMC + 1, I3)), P('v_lshrrev_b32 v%d, 2, v%d' % (t0, I)),
          P('v_cmp_eq_u32 s[%d:%d], v%d, v%d' % (sMD, sMD + 1, t0, Gq)))
        o(P('v_lshlrev_b32 v%d, 4, v%d' % (vCS, Gq)))
        o(P('s_lshl_b32 s%d, s%d, 17' % (sGBASE, sG)),
          P('s_lshl_b32 s52, s%d, 2' % sTH), P('s_add_u32 s%d, s52, s%d' % (sTB, sW)))
        if cfg.get('ts'):
            o(P('s_lshl_b32 s52, s2, 2'), P('s_add_u32 s52, s52, s%d' % sW), P('s_lshl_b32 s52, s52, 8'),
              P('s_add_u32 s%d, s52, %d' % (sTSO, 0x1F80000)))
        o(self.setup2())
        if cfg.get('pts') == 1:
            o(self.ts(29))
        self.xslot = {}; self.wq_q = {}; self.halo_dma = []
        for j in range(16):
            self.xslot[j] = self.x_ring_dma(j)
        for q in range(4):
            self.wq_q[q] = self.wq_rot_quarter(q)
        for a in range(4):
            if not cfg.get('rot', 0):
                self.halo_dma.append(self.dma(SRD_X, vDH, 97, a * 256, sW1K, L_HALO + a * 4096))
                continue
            self.halo_dma.append([P('s_add_u32 m0, s%d, %d' % (sW1K, L_HALO + a * 4096)), P('s_add_u32 s52, s99, s%d' % sW), P('s_add_u32 s52, s52, %d' % (4 * a)),
                                  P('s_and_b32 s52, s52, 15'), P('s_lshl_b32 s52, s52, 6'), P('s_add_u32 s52, s52, s%d' % sHSRC),
                                  VM('buffer_load_dwordx4 v%d, s[8:11], s52 offen lds' % vDH)])
        o(self.xslot[0], self.wq_q[0], self.halo_dma[0], self.xslot[1])
        if cfg.get('pts') == 1:
            o(self.ts(30))

    def setup2(self):
        I = 228; Gq = 229; RR = 230; I3 = 231; t0 = 232; t1 = 233; t2 = 234; t3 = 235; tr = 236
        o = []
        o += [P('v_and_b32 v%d, 15, v%d' % (I, vLANE)), P('v_lshrrev_b32 v%d, 4, v%d' % (Gq, vLANE)),
              P('v_lshrrev_b32 v%d, 2, v%d' % (t0, I)), P('v_lshl_add_u32 v%d, v%d, 2, v%d' % (RR, Gq, t0)),
              P('v_and_b32 v%d, 3, v%d' % (I3, I))]
        o += [P('v_lshrrev_b32 v%d, 3, v%d' % (t0, vLANE)), P('v_lshrrev_b32 v%d, 1, v%d' % (t1, t0)),
              P('v_lshrrev_b32 v%d, 1, v%d' % (t2, vLANE)), P('v_xor_b32 v%d, v%d, v%d' % (t1, t1, t2)),
              P('v_and_b32 v%d, 3, v%d' % (t1, t1)), P('v_lshlrev_b32 v%d, 5, v%d' % (t1, t1)),
              P('v_and_b32 v%d, 1, v%d' % (t2, vLANE)), P('v_lshl_add_u32 v%d, v%d, 4, v%d' % (t1, t2, t1)),
              P('v_lshl_add_u32 v%d, v%d, 10, v%d' % (vDO, t0, t1))]
        if self.cfg.get('split', 0):
            o += [P('s_and_b32 s80, s%d, 4' % sCT), P('s_lshl_b32 s80, s80, 7'), P('s_xor_b32 s81, s80, 512'),
                  P('v_add_u32 v%d, s81, v%d' % (t2, vDO)), P('v_add_u32 v%d, s80, v%d' % (vDO, vDO)),
                  P('v_and_b32 v%d, 64, v%d' % (t1, t1)), P('v_cmp_ne_u32 vcc, 0, v%d' % t1),
                  P('v_cndmask_b32 v%d, v%d, v%d, vcc' % (vDO, vDO, t2))]
        for c in range(448):
            assert (c * 4682) >> 16 == c // 14
        for u in range(7):
            o += [P('v_add_u32 v%d, %d, v%d' % (t0, 64 * u, vLANE)), P('v_mul_u32_u24 v%d, 4682, v%d' % (t1, t0)),
                  P('v_lshrrev_b32 v%d, 16, v%d' % (t1, t1)), P('v_mul_u32_u24 v%d, 14, v%d' % (t2, t1)),
                  P('v_sub_u32 v%d, v%d, v%d' % (t2, t0, t2)), P('v_lshlrev_b32 v%d, 4, v%d' % (t2, t2)),
                  P('v_mul_u32_u24 v%d, 3584, v%d' % (t1, t1)), P('v_add_u32 v%d, v%d, v%d' % (vD1 + u, t1, t2))]
        o += [P('s_lshl_b32 s80, s%d, 7' % sG), P('s_lshl_b32 s81, s%d, 5' % sW), P('s_add_u32 s80, s80, s81'), P('s_add_u32 s80, s80, s%d' % sTH),
              P('s_lshl_b32 s80, s80, 10'), P('s_lshl_b32 s81, s%d, 7' % sCT), P('s_add_u32 s61, s80, s81'),
              P('v_lshlrev_b32 v%d, 11, v%d' % (t1, I)), P('v_lshl_add_u32 v%d, v%d, 3, v%d' % (tr, Gq, t1))]
        self.tag_res = [newtag('res') for _ in range(4)]
        self.res_ops = []
        for fb in range(4):
            pre = (self.delta(55) + [P('s_add_u32 s55, s55, s61')]) if fb >= 2 else []
            self.res_ops.append(pre + [VM('buffer_load_dwordx2 v[%d:%d], v%d, s[8:11], s%d offen offset:%d' % (vR + 2 * fb, vR + 2 * fb + 1, tr, 55 if fb >= 2 else 61, fb * 32), self.tag_res[fb])])
        self.tag_b1 = newtag('b1')
        self.b1_op = [P('v_lshlrev_b32 v%d, 2, v%d' % (237, vLANE)), P('s_mul_i32 s80, s%d, 224' % sM),
                      VM('buffer_load_dword v247, v237, s[40:43], s80 offen', self.tag_b1)]
        o += [P('v_and_b32 v%d, 1, v%d' % (t2, Gq)), P('v_lshlrev_b32 v%d, 5, v%d' % (t2, t2)),
              P('v_lshrrev_b32 v%d, 1, v%d' % (t3, Gq)), P('v_lshl_add_u32 v%d, v%d, 4, v%d' % (t2, t3, t2)),
              P('v_lshl_add_u32 v%d, v%d, 11, v%d' % (vOUT, I, t2))]
        o += [P('s_mov_b32 s%d, 1.0' % sONE), P('s_mov_b32 s%d, 1.0' % (sONE + 1)),
              P('s_mov_b32 s%d, %s' % (sM2L, f32(-2 * LN2))), P('s_mov_b32 s%d, %s' % (sM2L + 1, f32(-2 * LN2))),
              P('v_mov_b32 v%d, %s' % (vLN2, f32(LN2))), P('v_mov_b32 v%d, %s' % (vLN2 + 1, f32(LN2)))]
        o += [P('v_mul_u32_u24 v%d, 224, v%d' % (t0, RR)), P('v_lshl_add_u32 v%d, v%d, 3, v%d' % (vW1A, I3, t0)),
              P('v_add_u32 v%d, 0x10000, v%d' % (vW1A + 1, vW1A)), P('v_add_u32 v%d, 0x20000, v%d' % (vW1A + 2, vW1A))]
        o += [P('v_lshlrev_b32 v%d, 7, v%d' % (t0, RR)), P('v_lshl_add_u32 v%d, v%d, 3, v%d' % (t0, I3, t0)),
              P('s_and_b32 s80, s%d, 1' % sW), P('s_lshl_b32 s80, s80, 12'), P('s_add_u32 s80, s80, %d' % L_W),
              P('v_add_u32 v%d, s80, v%d' % (t0, t0)),
              P('v_lshrrev_b32 v%d, 1, v%d' % (t1, RR)), P('v_and_b32 v%d, 3, v%d' % (t1, t1))]
        for fb in range(4):
            o += [P('v_xor_b32 v%d, %d, v%d' % (t2, fb, t1)), P('v_lshl_add_u32 v%d, v%d, 5, v%d' % (vW2A + fb * 3, t2, t0)),
                  P('v_add_u32 v%d, 0x10000, v%d' % (vW2A + fb * 3 + 1, vW2A + fb * 3)),
                  P('v_add_u32 v%d, 0x20000, v%d' % (vW2A + fb * 3 + 2, vW2A + fb * 3))]
        NEG = f32(-1e30)
        o += [P('v_mov_b32 v%d, %s' % (t3, NEG))]
        for r in range(4):
            o += [P('v_lshl_add_u32 v%d, v%d, 2, %d' % (t0, Gq, r)),
                  P('v_sub_u32 v%d, v%d, v%d' % (t1, I, t0)), P('v_cmp_gt_u32 vcc, 8, v%d' % t1),
                  P('v_cndmask_b32_e64 v%d, v%d, 0, vcc' % (vCCUR + r, t3)),
                  P('v_add_u32 v%d, 9, v%d' % (t1, I)), P('v_cmp_ge_u32 vcc, v%d, v%d' % (t0, t1)),
                  P('v_cndmask_b32_e64 v%d, v%d, 0, vcc' % (vCPREV + r, t3))]
        o += [P('s_and_b32 s80, s%d, 1' % sW), P('s_or_b32 s80, s80, s%d' % sG), P('s_cmp_eq_u32 s80, 0'), P('s_cselect_b64 vcc, -1, 0')]
        for r in range(4):
            o.append(P('v_cndmask_b32 v%d, v%d, v%d, vcc' % (vCPA + r, vCPREV + r, t3)))
        o += [P('v_lshlrev_b32 v%d, 2, v%d' % (t0, Gq)), P('v_add_u32 v%d, 6, v%d' % (t1, I)),
              P('v_cmp_ge_u32 s[%d:%d], v%d, v%d' % (sUP, sUP + 1, t0, t1))]
        o += [P('v_lshlrev_b32 v%d, 5, v%d' % (t0, I)), P('v_lshl_add_u32 v%d, v%d, 3, v%d' % (t0, Gq, t0)),
              P('s_lshl_b32 s80, s%d, 11' % sW), P('s_add_u32 s80, s80, %d' % L_EX), P('v_add_u32 v%d, s80, v%d' % (vEXV, t0))]
        o += [P('s_lshr_b32 s80, s%d, 1' % sW), P('s_add_u32 s81, s80, 3'), P('s_bitcmp1_b32 s%d, 0' % sW),
              P('s_cselect_b32 s80, s81, s80'), P('s_lshl_b32 s80, s80, 10'), P('s_add_u32 s80, s80, %d' % L_EXK),
              P('v_lshlrev_b32 v%d, 3, v%d' % (t1, vLANE)), P('v_add_u32 v%d, s80, v%d' % (vEXK, t1))]
        o += [P('s_and_b32 s80, s%d, 1' % sW), P('s_lshl_b32 s80, s80, 9'),
              P('s_add_u32 s81, s80, %d' % (L_EXK + 2048)), P('v_add_u32 v%d, s81, v%d' % (t2, t1)),
              P('s_add_u32 s81, s80, %d' % (L_EX + 8192)), P('v_add_u32 v%d, s81, v%d' % (t3, t0)),
              P('s_cmp_ge_u32 s%d, 2' % sW), P('s_cselect_b64 vcc, -1, 0'),
              P('v_cndmask_b32 v%d, v%d, v%d, vcc' % (vEXH, t2, t3))]
        o += [P('v_lshlrev_b32 v%d, 5, v%d' % (t0, RR)), P('v_lshl_add_u32 v%d, v%d, 3, v%d' % (t0, I3, t0)),
              P('s_lshl_b32 s80, s%d, 11' % sW), P('s_add_u32 s80, s80, %d' % L_EX), P('v_add_u32 v%d, s80, v%d' % (vRV, t0))]
        o += [P('v_subrev_u32 v%d, 1024, v%d' % (t1, vRV)),
              P('v_add_u32 v%d, %d, v%d' % (t2, L_EX + 8192, t0)),
              P('v_subrev_u32 v%d, 256, v%d' % (t3, t2)),
              P('v_cmp_le_u32 vcc, 8, v%d' % RR), P('v_cndmask_b32 v%d, v%d, v%d, vcc' % (t3, t2, t3)),
              P('s_cmp_eq_u32 s%d, 0' % sW), P('s_cselect_b64 vcc, -1, 0'), P('v_cndmask_b32 v%d, v%d, v%d, vcc' % (t2, t2, t3)),
              P('s_bitcmp1_b32 s%d, 0' % sW), P('s_cselect_b64 vcc, -1, 0'), P('v_cndmask_b32 v%d, v%d, v%d, vcc' % (vRVP, t2, t1))]
        o += [P('v_lshlrev_b32 v%d, 3, v%d' % (t0, vLANE)),
              P('s_lshr_b32 s80, s%d, 1' % sW), P('s_bitcmp1_b32 s%d, 0' % sW), P('s_cselect_b32 s80, s80, 2'),
              P('s_lshl_b32 s80, s80, 10'), P('s_add_u32 s80, s80, %d' % L_EXK), P('v_add_u32 v%d, s80, v%d' % (t0, t0)),
              P('v_subrev_u32 v%d, 64, v%d' % (t1, t0)), P('v_cmp_le_u32 vcc, 8, v%d' % I),
              P('v_cndmask_b32 v%d, v%d, v%d, vcc' % (t1, t0, t1)),
              P('s_cmp_eq_u32 s%d, 0' % sW), P('s_cselect_b64 vcc, -1, 0'), P('v_cndmask_b32 v%d, v%d, v%d, vcc' % (vRK, t0, t1))]
        o += [P('s_lshl_b32 s80, s%d, 12' % sW), P('v_add_u32 v%d, s80, v%d' % (vEXBW, vL16)),
              P('v_xor_b32 v%d, 0x1000, v%d' % (vEXBR, vEXBW))]
        o += [P('s_lshr_b32 s80, s%d, 1' % sCT), P('s_lshl_b32 s80, s80, 8'), P('s_and_b32 s81, s%d, 1' % sCT),
              P('s_lshl_b32 s81, s81, 3'), P('s_add_u32 s80, s80, s81'),
              P('v_lshlrev_b32 v%d, 4, v%d' % (t0, I)), P('v_add_u32 v%d, s80, v%d' % (vSTO, t0))]
        o += [P('s_cmp_eq_u32 s%d, 0' % sTH), P('s_cselect_b32 s81, 8, 0'),
              P('v_subrev_u32 v%d, s81, v%d' % (t0, I)),
              P('v_lshl_add_u32 v%d, v%d, 4, v%d' % (t1, Gq, t0)), P('v_lshlrev_b32 v%d, 4, v%d' % (t1, t1)),
              P('v_lshlrev_b32 v%d, 4, v%d' % (t2, t0)), P('v_add_u32 v%d, s80, v%d' % (t2, t2)),
              P('s_cmp_eq_u32 s%d, 3' % sW), P('s_cselect_b32 s80, 0, 0x40000000'),
              P('s_cmp_eq_u32 s%d, 15' % sG), P('s_cselect_b32 s80, 0x40000000, s80'),
              P('v_mov_b32 v%d, 0x40000000' % t3), P('v_cmp_le_u32 vcc, 8, v%d' % I),
              P('v_cndmask_b32 v%d, v%d, v%d, vcc' % (t1, t3, t1)), P('v_cndmask_b32 v%d, v%d, v%d, vcc' % (t2, t3, t2)),
              P('v_or_b32 v%d, s80, v%d' % (vHOF, t1)), P('v_or_b32 v%d, s80, v%d' % (vHST, t2))]
        return o

    def wq_stash(self):
        o = [P('s_lshl_b32 s53, s%d, 10' % sW), P('s_add_u32 s53, s53, %d' % L_W), P('v_add_u32 v%d, s53, v%d' % (vTA, vL16)),
             P('v_add_u32 v%d, 0x10000, v%d' % (vTB, vTA))]
        for p in range(12):
            for c in range(2):
                a = p * 8192 + c * 4096
                o.append(LG('ds_read_b128 %s, v%d offset:%d' % (ar(aWQ + (2 * p + c) * 4, 4), vTA if a < 65536 else vTB, a & 0xffff)))
        return o

    def wo_stash(self):
        sk = self.L('wos')
        o = [P('s_cmp_lg_u32 s%d, 0' % sRND), P('s_cbranch_scc1 %s' % sk),
             P('s_lshl_b32 s53, s%d, 10' % sW), P('s_add_u32 s53, s53, %d' % L_W), P('v_add_u32 v%d, s53, v%d' % (vTA, vL16))]
        for c in range(16):
            o.append(P('ds_read_b128 %s, v%d offset:%d' % (ar(aWO + 4 * c, 4), vTA, c * 4096)))
        o += [P('s_waitcnt lgkmcnt(0)'), LAB(sk)]
        return o

    def p1_epi_fill(self):
        out = []
        wo = [self.dma_wo_slot(SRD_WO, 8, t, kh, t) for t in range(8) for kh in range(2)]
        a0 = self.dma_w1_group(0)
        gs = self.cfg.get('fill_g', 4)
        a0groups = [a0[0:2], a0[2:4], a0[4:6], a0[6:7]]
        for c0 in range(0, 16, gs):
            sk = self.L('wr1')
            e = [P('s_cmp_lg_u32 s%d, 0' % sRND), P('s_cbranch_scc1 %s ;nopad' % sk)]
            for c in range(c0, c0 + gs):
                e += [P(x.text) for x in wo[c]]
            e += [LAB(sk)]
            out.append(e)
        res = []
        for k, e in enumerate(out):
            res.append(e)
            n_a = 4 // len(out) if len(out) <= 4 else (1 if k % (len(out) // 4) == 0 else 0)
            for q in range(n_a):
                if a0groups:
                    sk = self.L('wr2')
                    blk = [P('s_cmp_eq_u32 s%d, 0' % sRND), P('s_cbranch_scc1 %s ;nopad' % sk)]
                    for d in a0groups.pop(0):
                        blk += [P(x.text) for x in d]
                    res.append(blk + [LAB(sk)])
        out = res
        return out

    def wo_restore(self):
        sk = self.L('wor')
        o = [P('s_cmp_eq_u32 s%d, 0' % sRND), P('s_cbranch_scc1 %s' % sk)]
        for c in range(16):
            o.append(P('ds_write_b128 v%d, %s offset:%d' % (vWOA, ar(aWO + 4 * c, 4), c * 4096)))
        return o + [LAB(sk)]

    def wq_restore(self, positions, va, vb):
        o = []
        for p in positions:
            for c in range(2):
                a = p * 8192 + c * 4096
                o.append([P('s_mov_b64 exec, s[74:75]'),
                          LG('ds_write_b128 v%d, %s offset:%d' % (va if a < 65536 else vb, ar(aWQ + (2 * p + c) * 4, 4), a & 0xffff)),
                          P('s_mov_b64 exec, -1')])
        return o

    def x_ring_dma(self, j):
        if not self.cfg.get('rot', 0):
            return [self.dma(SRD_X, vDX, sXR0 + b, j * 64, sD, L_RING + (j % 5) * 8192 + b * 1024) for b in range(2)]
        out = []
        for b in range(2):
            ops = [P('s_add_u32 m0, s%d, %d' % (sD, L_RING + (j % 5) * 8192 + b * 1024)),
                   P('s_add_u32 s52, s99, %d' % j), P('s_and_b32 s52, s52, 15'), P('s_lshl_b32 s52, s52, 6'),
                   P('s_add_u32 s52, s52, s%d' % (sXR0 + b)),
                   VM('buffer_load_dwordx4 v%d, s[8:11], s52 offen lds' % vDX)]
            out.append(ops)
        return out

    def wq_rot_quarter(self, qd):
        if not self.cfg.get('rot', 0):
            return self.dma_wq_quarter(qd)
        out = []
        for a in range(2):
            for p in range(3):
                rg = 8 * qd + 4 * a
                out.append([P('s_add_u32 m0, s%d, %d' % (sW1K, L_W + p * 32768 + rg * 1024)),
                            P('s_add_u32 s52, s98, %d' % rg), P('s_and_b32 s52, s52, 31'), P('s_mul_i32 s52, s52, 49152'),
                            P('s_add_u32 s52, s52, s95'), P('s_add_u32 s52, s52, %d' % (p * 1024)),
                            VM('buffer_load_dwordx4 v%d, s[12:15], s52 offen lds' % vDQ)])
        return out

    @staticmethod
    def vmtags(ops):
        t = []
        for x in ops:
            if isinstance(x, (list, tuple)):
                t += Gen.vmtags(x)
            elif x is not None and not isinstance(x, str) and x.kind == 'vm':
                t.append(x.tag)
        return t

    def finish_stats(self, s1, s2, pair_kv, pair_q=None, scale=None):
        t = vT + 80
        o = [P('v_mul_f32 v%d, %s, v%d' % (t, f32(1 / 512), s1)),
             P('v_mul_f32 v%d, %s, v%d' % (t + 1, f32(1 / 512), s2)),
             P('v_fma_f32 v%d, -v%d, v%d, v%d' % (t + 1, t, t, t + 1)),
             P('v_max_f32 v%d, 0, v%d' % (t + 1, t + 1)),
             P('v_add_f32 v%d, %s, v%d' % (t + 1, f32(1e-5), t + 1)),
             P('v_rsq_f32 v%d, v%d' % (pair_kv, t + 1))]
        if scale is not None:
            o.append(P('v_mul_f32 v%d, %s, v%d' % (pair_kv, f32(scale), pair_kv)))
        o.append(P('v_mul_f32 v%d, -v%d, v%d' % (pair_kv + 1, t, pair_kv)))
        if pair_q is not None:
            qs = f32(0.25 * LOG2E)
            o += [P('v_mul_f32 v%d, %s, v%d' % (pair_q, qs, pair_kv)), P('v_mul_f32 v%d, %s, v%d' % (pair_q + 1, qs, pair_kv + 1))]
        return o

    def reduce_g2(self, a, b):
        t = vT + 84
        return [P('v_permlane32_swap_b32 v%d, v%d' % (a, b)), P('v_add_f32 v%d, v%d, v%d' % (a, a, b)),
                P('v_mov_b32 v%d, v%d' % (t, a)), P('v_permlane16_swap_b32 v%d, v%d' % (a, t)),
                P('v_add_f32 v%d, v%d, v%d' % (a, a, t)), P('v_mov_b32 v%d, v%d' % (b, a)),
                P('v_permlane32_swap_b32 v%d, v%d' % (a, b))]

    def stats_from_st(self, regs, pair_kv, pair_q=None, scale=None):
        return [P('v_add_f32 v%d, v%d, v%d' % (regs, regs, regs + 2)), P('v_add_f32 v%d, v%d, v%d' % (regs + 1, regs + 1, regs + 3))] + \
            self.reduce_g2(regs, regs + 1) + self.finish_stats(regs, regs + 1, pair_kv, pair_q, scale)

    def accP1(self, blk, tb):
        return vACC + (blk * 2 + tb) * 4
    ACC_H = vACC + 48
    ACC_CS1 = vACC + 52
    ACC_CS2 = vACC + 56
    PKV = [vT + 0, vT + 2]; PQ = [vT + 4, vT + 6]; PH = vT + 8

    def wq_read(self, blk, j, part, dst):
        p = blk // 2; h = blk % 2
        if p < 2:
            return LG('ds_read_b64_tr_b16 v[%d:%d], v%d offset:%d' % (dst + 2 * part, dst + 2 * part + 1, vWQA + h, p * 32768 + j * 2048 + part * 1024))
        return LG('ds_read_b64_tr_b16 v[%d:%d], v%d offset:%d' % (dst + 2 * part, dst + 2 * part + 1, vWQA + 2 + h, j * 2048 + part * 1024))

    def p1a(self):
        o = self.add
        XB = vT + 12
        S1 = vT + 36
        S2 = vT + 48
        def xb(j, b): return XB + (j & 1) * 12 + b * 4
        xr_tags = {}
        def xreads(j):
            ops = []
            for b in range(2):
                ops.append(LG('ds_read_b64 v[%d:%d], v%d offset:%d' % (xb(j, b), xb(j, b) + 1, vXA, (j % 5) * 8192 + b * 1024)))
                ops.append(LG('ds_read_b64 v[%d:%d], v%d offset:%d' % (xb(j, b) + 2, xb(j, b) + 3, vXB, (j % 5) * 8192 + b * 1024)))
            ops.append(LG('ds_read_b64 v[%d:%d], v%d offset:%d' % (xb(j, 2), xb(j, 2) + 1, vHXA, j * 1024)))
            ops.append(LG('ds_read_b64 v[%d:%d], v%d offset:%d' % (xb(j, 2) + 2, xb(j, 2) + 3, vHXB, j * 1024)))
            xr_tags[j] = [x.tag for x in ops]
            return ops
        groups = []
        n = 0
        extras = []
        mfidx = 0
        first_idx = {}
        for j in range(16):
            first_idx[j] = mfidx
            z = (j == 0)
            for blk in range(8):
                dst = self.afrag(n); n += 1
                g = dict(pre=[], reads=[], mf=[])
                if blk == 0:
                    if j % 4 == 0:
                        q = j // 4
                        wt = self.vmtags(self.wq_q[q]) + self.vmtags(self.halo_dma[q])
                        g['pre'] += [W(wt), P('s_barrier')] if not (self.cfg.get('x_nobar') and q > 0) else []
                    if not self.cfg.get('x_nowait'):
                        g['pre'] += [W(self.vmtags(self.xslot[j]))]
                    g['reads'] += xreads(j)
                if blk < 6:
                    g['reads'] += [self.wq_read(blk, j, 0, dst), self.wq_read(blk, j, 1, dst)]
                    for tb in range(2):
                        acc = self.accP1(blk, tb)
                        c = '0' if z else vr(acc, 4)
                        g['mf'].append(('v_mfma_f32_16x16x32_bf16 %s, %s, %s, %s' % (vr(acc, 4), vr(dst, 4), vr(xb(j, tb), 4), c), []))
                    if blk in (1, 3, 5) and not self.cfg.get('x_nostat'):
                        b = blk // 2
                        for (accb, A) in ((S1 + b * 4, vONES), (S2 + b * 4, xb(j, b))):
                            c = '0' if z else vr(accb, 4)
                            g['mf'].append(('v_mfma_f32_16x16x32_bf16 %s, %s, %s, %s' % (vr(accb, 4), vr(A, 4), vr(xb(j, b), 4), c), []))
                else:
                    base = vE1 if blk == 6 else vE2
                    g['reads'] += [LG('ds_read_b64_tr_b16 v[%d:%d], v%d offset:%d' % (dst + 2 * part, dst + 2 * part + 1, base, j * 2048 + part * 1024)) for part in range(2)]
                    if blk == 6:
                        c = '0' if z else vr(self.ACC_H, 4)
                        g['mf'].append(('v_mfma_f32_16x16x32_bf16 %s, %s, %s, %s' % (vr(self.ACC_H, 4), vr(dst, 4), vr(xb(j, 2), 4), c), []))
                        c = '0' if z else vr(self.ACC_CS1, 4)
                        g['mf'].append(('v_mfma_f32_16x16x32_bf16 %s, %s, %s, %s' % (vr(self.ACC_CS1, 4), vr(dst, 4), vr(vONES, 4), c), []))
                    else:
                        c = '0' if z else vr(self.ACC_CS2, 4)
                        g['mf'].append(('v_mfma_f32_16x16x32_bf16 %s, %s, %s, %s' % (vr(self.ACC_CS2, 4), vr(dst, 4), vr(vONES, 4), c), []))
                mfidx += len(g['mf'])
                groups.append(g)
        def at(k, i):
            return first_idx[k] + i
        seq = []
        seq += [(at(0, 0), self.xslot[2][0]), (at(0, 2), self.xslot[2][1])]
        q1 = self.wq_q[1]
        seq += [(at(0, 5), q1[0]), (at(0, 8), q1[1]), (at(0, 11), q1[2]), (at(0, 14), self.xslot[3][0]), (at(0, 16), self.xslot[3][1]),
                (at(0, 19), self.tq(2)), (at(1, 1), q1[3]), (at(1, 4), q1[4]), (at(1, 7), q1[5]), (at(1, 10), self.halo_dma[1]),
                (at(1, 13), self.xslot[4][0]), (at(1, 15), self.xslot[4][1]), (at(1, 18), self.tq(3))]
        for j in range(11):
            for b, d in enumerate(self.xslot[j + 5]):
                seq.append((max(at(j, 2 + 2 * b), at(2, 0) + 2 * b + (j * 4 if j < 2 else 0)), d))
        if self.tq3:
            seq.append((at(self.cfg.get('tq3k', 4), 12), self.tq3))
        q2k = self.cfg.get('q2k', 3); q3k = self.cfg.get('q3k', 7)
        for k, d in enumerate(self.wq_q[2] + [self.halo_dma[2]]):
            seq.append((at(q2k + k // 2, 8 + 5 * (k % 2)), d))
        for k, d in enumerate(self.wq_q[3] + [self.halo_dma[3]]):
            seq.append((at(q3k + k // 2, 8 + 5 * (k % 2)), d))
        extras += seq
        reg = [W(self.tag_init),
               P('s_mul_i32 s53, s%d, s%d' % (sXCC, sXCC)), P('s_lshl_b32 s53, s53, 13'), P('s_lshl_b32 s54, s%d, 5' % sXCC),
               P('s_add_u32 s53, s53, s54'), P('s_add_u32 s53, s53, 1'), P('v_mov_b32 v%d, s53' % vTA),
               P('s_lshr_b32 s53, s%d, 1' % sG), P('s_lshl_b32 s53, s53, 5'), P('s_and_b32 s54, s%d, 1' % sG),
               P('s_lshl_b32 s54, s54, 2'), P('s_add_u32 s54, s53, s54'), P('v_mov_b32 v%d, s54' % vTB),
               P('s_cmp_eq_u32 s%d, 0' % sW), P('s_cselect_b32 s53, 0, 0x40000000'),
               P('v_or_b32 v%d, s53, v%d' % (vTB, vTB)),
               P('s_mov_b64 exec, 1'),
               VM('buffer_atomic_add v%d, v%d, s[36:39], 0 offen' % (vTA, vTB)),
               P('s_mov_b64 exec, -1')]
        extras.append((first_idx[4] + 3, reg))
        groups[8 * 4]['pre'] = [W(self.tag_init)] + groups[8 * 4]['pre']
        if self.cfg.get('t_mall', 0) >= 4:
            extras.append((first_idx[self.cfg.get('t_mall')] + 4, self.touch_mall()))
        for k, x in enumerate(self.res_ops):
            extras.append((first_idx[11] + 3 + 3 * k, x))
        extras.append((first_idx[11] + 16, self.b1_op))
        extras.append((first_idx[8] + 9, self.mode_load()))
        extras.append((first_idx[11] + 1, self.mode_check()))
        tset = self.touch_set(self.cfg.get('t_p1a', 'of,xf'))
        k0 = self.cfg.get('t_p1a_k', 11)
        post = []
        for k, t in enumerate(tset):
            if k0 + k < 16:
                extras.append((first_idx[k0 + k] + 5, t))
            else:
                post.append(t)
        extras += self.sched_touches('p1a', first_idx)
        if self.cfg.get('code_staged', 1) and self.cfg.get('t_code', 1):
            extras.append((first_idx[self.cfg.get('code_k1', 10)] + 12, self.touch_code('L_C2', 'L_C4', 50)))
        if self.cfg.get('pts') == 2:
            for k, slot in ((1, 14), (4, 15), (8, 29), (12, 30)):
                extras.append((first_idx[k] - 1, self.ts(slot)))
        if self.cfg.get('pts') == 3:
            for k in range(16):
                extras.append((first_idx[k], self.ts(32 + k)))
        o(self.gemm_loop(groups, self.cfg.get('la_p1a', 3), extras))
        for t in post:
            o(t)
        t0 = 252; t1 = 253
        o(W(self.tag_b1), P('v_lshlrev_b32 v%d, 16, v247' % t0), P('v_and_b32 v%d, 0xffff0000, v247' % t1),
          P('v_mul_f32 v%d, %s, v%d' % (t0, f32(LOG2E), t0)), P('v_mul_f32 v%d, %s, v%d' % (t1, f32(LOG2E), t1)),
          P('v_lshlrev_b32 v%d, 3, v%d' % (vTA, vLANE)),
          P('s_mov_b32 exec_hi, 0x00ffffff'),
          LG('ds_write_b64 v%d, v[%d:%d] offset:%d' % (vTA, t0, t1, L_BB1)),
          P('s_mov_b64 exec, -1'))
        o(P('s_add_u32 s53, s%d, 2' % sW), P('s_lshl_b32 s53, s53, 6'), P('v_add_u32 v%d, s53, v%d' % (vTA, vCS)),
          P('s_and_b32 s53, s%d, 1' % sW), P('s_lshl_b32 s53, s53, 6'), P('v_add_u32 v%d, s53, v%d' % (vTB, vCS)),
          P('s_mov_b32 s52, 0x00010001'), P('s_mov_b32 s53, 0x00010001'), P('s_mov_b64 exec, s[52:53]'),
          LG('ds_write_b128 v%d, %s offset:%d' % (vTA, vr(self.ACC_CS1, 4), L_CSQ)),
          LG('ds_write_b128 v%d, %s offset:%d' % (vTB, vr(self.ACC_CS2, 4), L_CSQ)),
          P('s_mov_b64 exec, -1'))
        for b in range(3):
            s2 = S2 + b * 4
            o(P('v_cndmask_b32_e64 v%d, v%d, v%d, s[%d:%d]' % (s2, s2, s2 + 1, sMA, sMA + 1)),
              P('v_cndmask_b32_e64 v%d, v%d, v%d, s[%d:%d]' % (s2, s2, s2 + 2, sMB, sMB + 1)),
              P('v_cndmask_b32_e64 v%d, v%d, v%d, s[%d:%d]' % (s2, s2, s2 + 3, sMC, sMC + 1)),
              P('v_cndmask_b32_e64 v%d, 0, v%d, s[%d:%d]' % (s2, s2, sMD, sMD + 1)))
            t = s2 + 1
            o(P('v_mov_b32 v%d, v%d' % (t, s2)), P('v_permlane32_swap_b32 v%d, v%d' % (s2, t)),
              P('v_add_f32 v%d, v%d, v%d' % (s2, s2, t)), P('v_mov_b32 v%d, v%d' % (t, s2)),
              P('v_permlane16_swap_b32 v%d, v%d' % (s2, t)), P('v_add_f32 v%d, v%d, v%d' % (s2, s2, t)))
            if b < 2:
                o(self.finish_stats(S1 + b * 4, s2, self.PKV[b], self.PQ[b]))
            else:
                o(self.finish_stats(S1 + b * 4, s2, self.PH))
        o(P('s_mov_b32 s72, s50'), P('s_mov_b32 s73, s51'))
        o(WALL(False, True), P('s_barrier'))

    def p1b(self):
        o = self.add
        cfg = self.cfg
        for b in range(2):
            o(P('s_lshl_b32 s53, s%d, 1' % sW), P('s_add_u32 s53, s53, %d' % b), P('s_lshl_b32 s53, s53, 14'),
              P('s_add_u32 s%d, s53, s%d' % (sB0 + b, sX2)))
        xl = self.x_loads(16, depth=XD)
        pro = cfg.get('x_pro', 4)
        for j in range(pro):
            o(xl[j])
        stt = []
        STR = vT + 12
        for b in range(2):
            t = newtag('st'); stt.append(t)
            o(P('s_lshl_b32 s54, s%d, 11' % sW), P('s_add_u32 s53, s54, s%d' % sS2),
              P('s_add_u32 s53, s53, %d' % (b * 1024)),
              VM('buffer_load_dwordx4 %s, v%d, s[28:31], s53 offen sc1' % (vr(STR + 4 * b, 4), vL16), t))
        groups = []; n = 0; first_idx = {}; mfidx = 0
        for j in range(16):
            first_idx[j] = mfidx
            for blk in range(6):
                dst = self.afrag(n); n += 1
                g = dict(pre=[], reads=[self.wq_read(blk, j, 0, dst), self.wq_read(blk, j, 1, dst)], mf=[])
                for tb in range(2):
                    acc = self.accP1(blk, tb)
                    c = '0' if j == 0 else vr(acc, 4)
                    wt = self.vmtags(xl[j][tb]) if blk == 0 else []
                    g['mf'].append(('v_mfma_f32_16x16x32_bf16 %s, %s, %s, %s' % (vr(acc, 4), vr(dst, 4), ar(((j % XD) * 2 + tb) * 4, 4), c), wt))
                mfidx += 2
                groups.append(g)
        extras = self.x_sched(xl, 16, pro, first_idx, 12, XD, cfg.get('x_rate', 4))
        lastx = extras[-1][0]
        hp = [W(self.halo_store_tags), P('v_mov_b32 v%d, 1' % vTA),
              P('s_cmp_eq_u32 s%d, 3' % sW), P('s_cselect_b32 s53, 0, 0x40000000'),
              P('s_cmp_eq_u32 s%d, 15' % sG), P('s_cselect_b32 s53, 0x40000000, s53'),
              P('s_add_u32 s54, s%d, 1' % sG), P('s_lshr_b32 s52, s54, 1'), P('s_lshl_b32 s52, s52, 5'),
              P('s_and_b32 s54, s54, 1'), P('s_lshl_b32 s54, s54, 2'), P('s_add_u32 s52, s52, s54'),
              P('s_add_u32 s52, s52, 8'), P('s_or_b32 s53, s53, s52'),
              P('v_mov_b32 v%d, s53' % vTB),
              P('s_mov_b64 exec, 1'),
              VM('buffer_atomic_add v%d, v%d, s[36:39], 0 offen' % (vTA, vTB)),
              P('s_mov_b64 exec, -1')]
        extras.append((first_idx[0] + 6, hp))
        st_ops = [W(stt)]
        for b in range(2):
            st_ops += self.stats_from_st(STR + 4 * b, self.PKV[b], self.PQ[b])
        extras += self.spread(st_ops, first_idx[2] + 2, 1)
        HS = vT + 56
        HC = vT + 60; HZ = vT + 61
        spin = self.L('hsp'); hok = self.L('hok')
        tagc = newtag('hc'); htags = [newtag('h') for _ in range(17)]
        hk0 = cfg.get('halo_k0', 7); hk1 = cfg.get('halo_k', 10)
        h0 = [P('v_mov_b32 v%d, 0' % HZ),
              P('s_lshr_b32 s54, s%d, 1' % sG), P('s_lshl_b32 s54, s54, 5'), P('s_and_b32 s53, s%d, 1' % sG),
              P('s_lshl_b32 s53, s53, 2'), P('s_add_u32 s54, s54, s53'), P('s_add_u32 s%d, s54, 8' % sA),
              VM('buffer_load_dword v%d, v%d, s[36:39], s%d offen sc1' % (HC, HZ, sA), tagc)]
        extras.append((max(first_idx[hk0], lastx + 1), h0))
        hl = [W(tagc), P('s_mov_b32 s%d, 0' % sTMO),
              P('s_cmp_eq_u32 s%d, 0' % sG), P('s_cbranch_scc1 %s' % hok),
              LAB(spin),
              P('v_cmp_ne_u32 vcc, 16, v%d' % HC),
              P('s_cbranch_vccz %s' % hok),
              P('buffer_load_dword v%d, v%d, s[36:39], s%d offen sc1' % (HC, HZ, sA)),
              P('s_add_u32 s%d, s%d, 1' % (sTMO, sTMO)),
              P('s_waitcnt vmcnt(0)'),
              P('s_cmp_lt_u32 s%d, 0x100000' % sTMO), P('s_cbranch_scc1 %s' % spin),
              P('s_endpgm'),
              LAB(hok),
              P('s_cmp_eq_u32 s%d, 0' % sG), P('s_cselect_b32 s53, 0x40000000, 0'),
              P('v_or_b32 v%d, s53, v%d' % (HZ, vL16)),
              P('s_lshl_b32 s53, s%d, 10' % sG), P('s_add_u32 s53, s53, %d' % WS_HST),
              VM('buffer_load_dwordx4 %s, v%d, s[28:31], s53 offen sc1' % (vr(HS, 4), HZ), htags[16]),
              P('s_lshl_b32 s53, s%d, 14' % sG), P('s_lshl_b32 s54, s%d, 12' % sW), P('s_add_u32 s53, s53, s54'),
              P('s_add_u32 s%d, s53, %d' % (sA, WS_HF))]
        HB = vT + 40
        for j in range(4):
            hl.append(VM('buffer_load_dwordx4 %s, v%d, s[28:31], s%d offen offset:%d sc1' % (vr(HB + 4 * j, 4), HZ, sA, j * 1024), htags[j]))
        extras.append((max(first_idx[hk1], lastx + 2), hl))
        for k, d in enumerate(self.dma_w1_group(1)):
            extras.append((max(first_idx[hk1], lastx + 2) + 2 + cfg.get('a0_step', 3) * k, d))
        hw = [W(htags[:4]), P('s_lshl_b32 s53, s%d, 12' % sW), P('s_add_u32 s53, s53, %d' % L_HS), P('v_add_u32 v%d, s53, v%d' % (HC, vL16))]
        for j in range(4):
            hw.append(LG('ds_write_b128 v%d, %s offset:%d' % (HC, vr(HB + 4 * j, 4), j * 1024)))
        extras += self.spread(hw, first_idx[15] + 1, 2)
        for k, t in enumerate(self.touch_set(cfg.get('t_p1b', ''))):
            extras.append((first_idx[hk1] + 34 + 6 * k, t))
        extras += self.spread([W(htags[16])] + self.stats_from_st(HS, self.PH), first_idx[15] - 14, 1)
        extras += self.sched_touches('p1b', first_idx)
        o(self.gemm_loop(groups, cfg.get('la', 3), extras))
        o(WALL(False, True), P('s_barrier'), P('v_add_u32 v%d, %d, v%d' % (HC, L_HS, vL16)))
        groups = []
        for j in range(16):
            dst = self.afrag(j); xb = vT + 12 + (j % 6) * 4
            g = dict(pre=[], reads=[LG('ds_read_b128 %s, v%d offset:%d' % (vr(xb, 4), HC, j * 1024))] +
                     [LG('ds_read_b64_tr_b16 v[%d:%d], v%d offset:%d' % (dst + 2 * part, dst + 2 * part + 1, vE1, j * 2048 + part * 1024)) for part in range(2)], mf=[])
            c = '0' if j == 0 else vr(self.ACC_H, 4)
            g['mf'].append(('v_mfma_f32_16x16x32_bf16 %s, %s, %s, %s' % (vr(self.ACC_H, 4), vr(dst, 4), vr(xb, 4), c), []))
            groups.append(g)
        o(self.gemm_loop(groups, 4, []))
        o(P('s_barrier'))

    def x_sched(self, xl, nk, pro, first_idx, nmf, depth, rate):
        extras = []; k = 0; last = -1
        for j in range(pro, nk):
            for b in range(2):
                if j < depth:
                    at = first_idx[k // rate] + 1 + (nmf // rate) * (k % rate); k += 1
                else:
                    at = first_idx[j - depth] + nmf - 1 + b
                at = max(at, last + 1)
                extras.append((at, xl[j][b])); last = at
        return extras

    def x_loads(self, nk, ring=None, depth=None):
        xl = []
        for j in range(nk):
            row = []
            for b in range(2):
                slot = j if depth is None else j % depth
                ops = []
                if j % 4 == 0:
                    ops.append(P('s_add_u32 s%d, s%d, %d' % (sXL0 + b, sB0 + b, j * 1024)))
                if self.cfg.get('noxl'):
                    ops.append(P('s_nop 0'))
                else:
                    ops.append(VM('buffer_load_dwordx4 %s, v%d, s[28:31], s%d offen offset:%d%s' % (ar((slot * 2 + b) * 4, 4), vL16, sXL0 + b, (j % 4) * 1024, '' if self.cfg.get('plainld') else ' sc1')))
                row.append(ops)
            xl.append(row)
        return xl

    def dual_store(self, stores):
        pure = self.L('stp'); done = self.L('std')
        o = [P('s_cmp_eq_u32 s%d, 0' % sMODE), P('s_cbranch_scc1 %s' % pure)]
        o += [P(s + ' sc1') for s in stores]
        o += [P('s_branch %s' % done), LAB(pure)]
        o += [P(s) for s in stores]
        o += [LAB(done)]
        cnt = [VM('; counted store') for _ in stores]
        return o + cnt, [c.tag for c in cnt]

    def p1_epi(self, dmas):
        o = []
        CS = vT + 12
        CSH = vT + 36
        Q = vT + 40
        K = vT + 48
        V = vT + 56
        HP = vT + 64
        TT = vT + 66
        cst = []
        for b in range(6):
            x = LG('ds_read_b128 %s, v%d offset:%d' % (vr(CS + 4 * b, 4), vCS, L_CSQ + b * 64)); cst.append(x.tag); o.append(x)
        o += [P('s_add_u32 s53, s%d, 2' % sW), P('s_lshl_b32 s53, s53, 6'), P('v_add_u32 v%d, s53, v%d' % (TT, vCS))]
        x = LG('ds_read_b128 %s, v%d offset:%d' % (vr(CSH, 4), TT, L_CSQ)); csh = x.tag; o.append(x)

        def ln(acc, cs, pair, dst):
            r = []
            for hh in range(2):
                t = TT + 2 * hh
                r.append(P('v_pk_mul_f32 %s, %s, %s op_sel:[0,1] op_sel_hi:[1,1]' % (vr(t, 2), vr(cs + 2 * hh, 2), vr(pair, 2))))
            for hh in range(2):
                t = TT + 2 * hh
                r.append(P('v_pk_fma_f32 %s, %s, %s, %s op_sel_hi:[1,0,1]' % (vr(t, 2), vr(acc + 2 * hh, 2), vr(pair, 2), vr(t, 2))))
            for hh in range(2):
                t = TT + 2 * hh
                r.append(P('v_cvt_pk_bf16_f32 v%d, v%d, v%d' % (dst + hh, t, t + 1)))
            return r
        wtags = []
        for blk in (4, 5, 2, 3, 0, 1):
            o.append(W(cst[blk]))
            for tb in range(2):
                h = blk % 2
                dst = (Q, K, V)[blk // 2] + (tb * 2 + h) * 2
                pair = self.PQ[tb] if blk < 2 else self.PKV[tb]
                o += ln(self.accP1(blk, tb), CS + 4 * blk, pair, dst)
                if blk >= 4:
                    x = LG('ds_write_b64 v%d, %s offset:%d' % (vEXV, vr(dst, 2), tb * 1024 + h * 512)); o.append(x)
                elif blk >= 2 and tb == 1:
                    x = LG('ds_write_b64 v%d, %s offset:%d' % (vEXK, vr(dst, 2), h * 512)); o.append(x)
            if blk == 3:
                o.append(W(csh))
                o += ln(self.ACC_H, CSH, self.PH, HP)
                o.append(LG('ds_write_b64 v%d, %s' % (vEXH, vr(HP, 2))))
        o += [WALL(False, True), P('s_barrier')]
        KP = vT + 70
        VV = vT + 12
        SC = vACC
        SP = vACC + 16
        PB = vACC + 32
        LL = vT + 24
        OO = vACC + 48
        MX = vT + 74
        rk = []; rv = []
        for h in range(2):
            x = LG('ds_read_b64 %s, v%d offset:%d' % (vr(KP + 2 * h, 2), vRK, h * 512)); rk.append(x.tag); o.append(x)
        for h in range(2):
            x = LG('ds_read_b64_tr_b16 %s, v%d offset:%d' % (vr(VV + 6 * h, 2), vRVP, h * 512)); rv.append(x.tag); o.append(x)
            for tb in range(2):
                x = LG('ds_read_b64_tr_b16 %s, v%d offset:%d' % (vr(VV + 6 * h + 2 + 2 * tb, 2), vRV, tb * 1024 + h * 512)); rv.append(x.tag); o.append(x)
        insts = [(tb, h) for tb in range(2) for h in range(2)]
        for n, (tb, h) in enumerate(insts):
            q = Q + (tb * 2 + h) * 2
            o.append(P('v_mfma_f32_16x16x16_bf16 %s, %s, %s, %s' % (vr(SC + 4 * n, 4), vr(K + (tb * 2 + h) * 2, 2), vr(q, 2), vr(vCCUR, 4))))
        for n, (tb, h) in enumerate(insts):
            q = Q + (tb * 2 + h) * 2
            if tb == 0:
                o.append(W(rk[h]))
                o.append(P('v_mfma_f32_16x16x16_bf16 %s, %s, %s, %s' % (vr(SP + 4 * n, 4), vr(KP + 2 * h, 2), vr(q, 2), vr(vCPA, 4))))
            else:
                o.append(P('v_mfma_f32_16x16x16_bf16 %s, %s, %s, %s' % (vr(SP + 4 * n, 4), vr(K + h * 2, 2), vr(q, 2), vr(vCPREV, 4))))
        for n in range(4):
            for r in range(4):
                o.append(P('v_max_f32 v%d, v%d, v%d' % (SC + 4 * n + r, SC + 4 * n + r, SP + 4 * n + r)))
        for n in range(4):
            o.append(P('v_max3_f32 v%d, v%d, v%d, v%d' % (MX + n, SC + 4 * n, SC + 4 * n + 1, SC + 4 * n + 2)))
        for n in range(4):
            o.append(P('v_max_f32 v%d, v%d, v%d' % (MX + n, MX + n, SC + 4 * n + 3)))
        a, b, c, d = MX, MX + 1, MX + 2, MX + 3
        o += [P('v_permlane32_swap_b32 v%d, v%d' % (a, b)), P('v_permlane32_swap_b32 v%d, v%d' % (c, d)),
              P('v_max_f32 v%d, v%d, v%d' % (a, a, b)), P('v_max_f32 v%d, v%d, v%d' % (c, c, d)),
              P('v_permlane16_swap_b32 v%d, v%d' % (a, c)), P('v_max_f32 v%d, v%d, v%d' % (a, a, c)),
              P('v_mov_b32 v%d, v%d' % (c, a)), P('v_permlane16_swap_b32 v%d, v%d' % (a, c)),
              P('v_mov_b32 v%d, v%d' % (b, a)), P('v_mov_b32 v%d, v%d' % (d, c)),
              P('v_permlane32_swap_b32 v%d, v%d' % (a, b)), P('v_permlane32_swap_b32 v%d, v%d' % (c, d))]
        for n in range(4):
            for hh in range(2):
                o.append(P('v_sub_f32 v%d, v%d, v%d' % (SC + 4 * n + 2 * hh, SC + 4 * n + 2 * hh, MX + n)))
                o.append(P('v_sub_f32 v%d, v%d, v%d' % (SC + 4 * n + 2 * hh + 1, SC + 4 * n + 2 * hh + 1, MX + n)))
        for n in range(4):
            for r in range(4):
                o.append(P('v_exp_f32 v%d, v%d' % (SC + 4 * n + r, SC + 4 * n + r)))
        for n in range(4):
            for hh in range(2):
                o.append(P('v_cvt_pk_bf16_f32 v%d, v%d, v%d' % (SP + 4 * n + hh, SC + 4 * n + 2 * hh, SC + 4 * n + 2 * hh + 1)))
        for n in range(4):
            for hh in range(2):
                o.append(P('v_cndmask_b32_e64 v%d, 0, v%d, s[%d:%d]' % (PB + 4 * n + hh, SP + 4 * n + hh, sUP, sUP + 1)))
                o.append(P('v_cndmask_b32_e64 v%d, v%d, 0, s[%d:%d]' % (PB + 4 * n + 2 + hh, SP + 4 * n + hh, sUP, sUP + 1)))
        o.append(W(rv))
        o.append(P('s_barrier'))
        for n, (tb, h) in enumerate(insts):
            o.append(P('v_mfma_f32_16x16x32_bf16 %s, %s, %s, 0' % (vr(LL + 4 * n, 4), vr(vONES, 4), vr(PB + 4 * n, 4))))
            o.append(P('v_mfma_f32_16x16x32_bf16 %s, %s, %s, 0' % (vr(OO + 4 * n, 4), vr(VV + 6 * h + 2 * tb, 4), vr(PB + 4 * n, 4))))
        for n in range(4):
            o.append(P('v_rcp_f32 v%d, v%d' % (LL + 4 * n, LL + 4 * n)))
        OUTR = vT + 40
        for n, (tb, h) in enumerate(insts):
            for hh in range(2):
                o.append(P('v_pk_mul_f32 %s, %s, %s op_sel_hi:[1,0]' % (vr(OO + 4 * n + 2 * hh, 2), vr(OO + 4 * n + 2 * hh, 2), vr(LL + 4 * n, 2))))
        for n, (tb, h) in enumerate(insts):
            for hh in range(2):
                o.append(P('v_cvt_pk_bf16_f32 v%d, v%d, v%d' % (OUTR + (tb * 2 + h) * 2 + hh, OO + 4 * n + 2 * hh, OO + 4 * n + 2 * hh + 1)))
        if dmas:
            k = min(i for i, x in enumerate(o) if x.text == 's_barrier') + 1
            body = interleave(o[k:], dmas, start=0, every=max(1, (len(o) - k) // (len(dmas) + 1)))
            o = o[:k] + body
        o += [P('s_lshl_b32 s54, s%d, 15' % sW), P('s_add_u32 s53, s54, s%d' % sOF), P('s_lshl_b32 s54, s%d, 10' % sM),
              P('s_add_u32 s53, s53, s54'), P('s_add_u32 s54, s53, 16384')]
        return o, ['buffer_store_dwordx4 %s, v%d, s[28:31], s%d offen' % (vr(OUTR + 4 * tb, 4), vL16, 53 + tb) for tb in range(2)]

    def mode_load(self):
        self.tag_mode = newtag('mode')
        return [P('s_lshr_b32 s53, s%d, 1' % sG), P('s_lshl_b32 s53, s53, 5'), P('s_and_b32 s54, s%d, 1' % sG),
                P('s_lshl_b32 s54, s54, 2'), P('s_add_u32 s%d, s53, s54' % sA),
                P('v_mov_b32 v%d, 0' % vTB),
                VM('buffer_load_dword v%d, v%d, s[36:39], s%d offen sc1' % (vTA, vTB, sA), self.tag_mode)]

    def mode_check(self):
        spin = self.L('rsp'); ok = self.L('rok')
        return [W(self.tag_mode), P('s_mov_b32 s%d, 0' % sTMO),
                P('v_readfirstlane_b32 s54, v%d' % vTA),
                P('s_nop 4'),
                P('s_and_b32 s52, s54, 31'), P('s_cmp_eq_u32 s52, 16'), P('s_cbranch_scc1 %s' % ok),
                LAB(spin),
                P('buffer_load_dword v%d, v%d, s[36:39], s%d offen sc1' % (vTA, vTB, sA)),
                P('s_add_u32 s%d, s%d, 1' % (sTMO, sTMO)),
                P('s_waitcnt vmcnt(0)'),
                P('v_readfirstlane_b32 s54, v%d' % vTA),
                P('s_nop 4'),
                P('s_and_b32 s52, s54, 31'), P('s_cmp_eq_u32 s52, 16'), P('s_cbranch_scc1 %s' % ok),
                P('s_cmp_lt_u32 s%d, 0x100000' % sTMO), P('s_cbranch_scc1 %s' % spin),
                P('s_endpgm'),
                LAB(ok),
                P('s_lshr_b32 s52, s54, 5'), P('s_and_b32 s52, s52, 255'), P('s_mul_i32 s52, s52, s52'),
                P('s_lshr_b32 s54, s54, 13'), P('s_lshl_b32 s54, s54, 4'),
                P('s_cmp_lg_u32 s52, s54'), P('s_cselect_b32 s%d, 1, 0' % sMODE)] + \
            ([P('s_mov_b32 s%d, 1' % sMODE)] if self.cfg.get('force_mixed') else []) + self.set_bases()

    def set_bases(self):
        o = [P('s_mul_i32 s52, s%d, %d' % (sG, ACT_G)), P('s_add_u32 s52, s52, %d' % WS_ACT),
             P('s_mul_i32 s53, s%d, %d' % (sG, 8 * 57344)), P('s_lshl_b32 s54, s%d, 13' % sG),
             P('s_cmp_eq_u32 s%d, %d' % (sMODE, 7 if self.cfg.get('noalias') else 0))]
        def sel(dst, pure_off, mixed_base_s, mixed_imm):
            return [P('s_add_u32 s55, s52, %d' % pure_off), P('s_add_u32 s%d, s%d, %d' % (dst, mixed_base_s, mixed_imm)),
                    P('s_cmp_eq_u32 s%d, %d' % (sMODE, 7 if self.cfg.get('noalias') else 0)),
                    P('s_cselect_b32 s%d, s55, s%d' % (dst, dst))]
        o += sel(sOF, 0, sGBASE, WS_OF) + sel(sAF, 0, 53, WS_AF) + sel(sX1, 458752, sGBASE, WS_XF) + \
            sel(sX2, 458752, sGBASE, WS_XF + XF_K) + sel(sS1, 589824, 54, WS_ST) + sel(sS2, 589824, 54, WS_ST + ST_K)
        for d, v in ((dOF, OF_R), (dAF, AF_R), (dX1, 2 * XF_K), (dS1, 2 * ST_K)):
            o.append(P('s_cselect_b32 s%d, 0, %d' % (d, v)))
        return o

    def gemmB(self, nk, srdW, src_base, nblk, depth, resident, refill_tags_out, exb, pre_extras=None, posf=None, tail=None, post=None, inloop=None, tail_lds=False):
        o = []
        o += [P('s_and_b32 s52, s%d, 1' % sW), P('s_mul_i32 s52, s52, %d' % (nk * 1024)),
              P('s_add_u32 s52, s52, s%d' % src_base),
              P('s_mul_i32 s53, s%d, %d' % (sTB, nblk * 1024)), P('s_add_u32 s%d, s52, s53' % sB0),
              P('s_xor_b32 s53, s%d, 1' % sTB), P('s_mul_i32 s53, s53, %d' % (nblk * 1024)), P('s_add_u32 s%d, s52, s53' % sB1)]
        xl = self.x_loads(nk, depth=depth)
        pro = min(nk, self.cfg.get('b_pro', 4))
        for t in range(pro):
            o += xl[t][0] + xl[t][1]
        if nk == 8:
            o += self.wo_stash()
        groups = []; n = 0; first_idx = {}; mfidx = 0
        acc = lambda s, fb: vACC + (s * 4 + fb) * 4
        refills = []
        if nk > resident:
            for t in range(resident, nk):
                for kh in range(2):
                    refills.append(self.dma_wo_slot(srdW, nk, t, kh, posf(t)))
        for t in range(nk):
            first_idx[t] = mfidx
            pos = posf(t) if posf else t
            for fb in range(4):
                dst = self.afrag(n); n += 1
                g = dict(pre=[], reads=[], mf=[])
                if fb == 0 and t == resident:
                    g['pre'] += [W(self.vmtags(refills)), P('s_barrier')]
                for part in range(2):
                    a = pos * 8192 + part * 2048
                    win = a >> 16
                    g['reads'].append(LG('ds_read_b64_tr_b16 v[%d:%d], v%d offset:%d' % (dst + 2 * part, dst + 2 * part + 1, vW2A + fb * 3 + win, a & 0xffff)))
                for s in range(2):
                    c = '0' if t == 0 else vr(acc(s, fb), 4)
                    wt = self.vmtags(xl[t][s]) if fb == 0 else []
                    g['mf'].append(('v_mfma_f32_16x16x32_bf16 %s, %s, %s, %s' % (vr(acc(s, fb), 4), vr(dst, 4), ar(((t % depth) * 2 + s) * 4, 4), c), wt))
                mfidx += 2
                groups.append(g)
        extras = []
        last = -1
        for t in range(pro, nk):
            if t < depth:
                at = first_idx[min(nk - 1, (t - pro) // 2)] + 1 + 4 * ((t - pro) % 2)
            else:
                at = first_idx[t - depth] + 7
            at = max(at, last + 1)
            extras.append((at, xl[t][0])); extras.append((at + 1, xl[t][1]))
            last = at + 1
        if inloop:
            for k, d in enumerate(inloop):
                extras.append((last + 2 + self.cfg.get('a2_step', 5) * k, d))
        if refills:
            nfree = nk - resident
            bar_at = first_idx[nfree] - 1
            extras.append((bar_at, [P('s_barrier')]))
            for k, d in enumerate(refills):
                extras.append((first_idx[nfree + k // 3] + 1 + 2 * (k % 3), d))
        if tail and tail_lds:
            extras.append((first_idx[resident] - 1, [P('s_barrier')]))
            nt_ = nk - resident
            for k, d in enumerate(tail):
                extras.append((first_idx[resident] + 1 + k * (8 * nt_ - 4) // len(tail), d))
        elif tail:
            allb = [t_ for row in xl for blk in row for t_ in self.vmtags(blk)]
            extras.append((first_idx[resident] - 1, [W(allb), P('s_barrier')]))
            nt_ = nk - resident
            t0_ = self.cfg.get('tail_k0', 0)
            for k, d in enumerate(tail):
                kk = t0_ + k * (nt_ - t0_) // len(tail)
                sk = self.L('tsk')
                extras.append((first_idx[resident + kk] + 1 + 2 * (k % 3),
                               [P('s_cmp_lg_u32 s%d, 0' % sRND), P('s_cbranch_scc1 %s ;nopad' % sk)] + d + [LAB(sk)]))
        if pre_extras and False:
            for k, t in enumerate(pre_extras):
                extras.append((first_idx[min(nk - 1, self.cfg.get('t_p4_k', 16) + 2 * k)] + 4, t))
        extras += self.sched_touches('p4' if nk == 28 else 'p2', first_idx)
        if nk == 28 and self.cfg.get('wbl2'):
            allb2 = [t_ for row in xl for blk in row for t_ in self.vmtags(blk)] + self.vmtags(refills)
            sk = self.L('wb')
            extras.append((first_idx[self.cfg.get('wbl2')] + 2,
                           [W(allb2), P('s_cmp_eq_u32 s%d, 0' % sTUX), P('s_cselect_b32 s52, s%d, 0' % sRND), P('s_cmp_eq_u32 s52, 1'),
                            P('s_cbranch_scc0 %s ;nopad' % sk), P('buffer_wbl2 sc1'), LAB(sk)]))
        if nk == 28 and self.cfg.get('code_staged', 1) and self.cfg.get('t_code', 1):
            extras.append((first_idx[16] + 3, self.touch_code('L_C5', 'L_END', 72)))
        o += self.gemm_loop(groups, self.cfg.get('la', 3), extras)
        o.append(P('s_barrier'))
        o += [P('v_add_u32 v%d, %d, v%d' % (vTA, exb, vEXBW)), P('v_add_u32 v%d, %d, v%d' % (vTB, exb, vEXBR))]
        if post and tail_lds:
            o += self.flat(post)
        elif post:
            sk = self.L('psk')
            o += [P('s_cmp_lg_u32 s%d, 0' % sRND), P('s_cbranch_scc1 %s ;nopad' % sk)] + self.flat(post) + [LAB(sk)]
        for fb in range(4):
            o.append(LG('ds_write_b128 v%d, %s offset:%d' % (vTA, vr(acc(1, fb), 4), fb * 1024)))
        o += [WALL(False, True), P('s_barrier')]
        PT = vT
        rt = []
        for fb in range(4):
            x = LG('ds_read_b128 %s, v%d offset:%d' % (vr(PT + 4 * fb, 4), vTB, fb * 1024)); rt.append(x.tag); o.append(x)
        U = vT + 16
        for fb in range(4):
            for hh in range(2):
                r = vR + fb * 2 + hh
                o += [P('v_lshlrev_b32 v%d, 16, v%d' % (U + fb * 4 + hh * 2, r)), P('v_and_b32 v%d, 0xffff0000, v%d' % (U + fb * 4 + hh * 2 + 1, r))]
        for fb in range(4):
            for hh in range(2):
                a = acc(0, fb) + 2 * hh
                o.append(P('v_pk_add_f32 %s, %s, %s' % (vr(a, 2), vr(a, 2), vr(U + fb * 4 + 2 * hh, 2))))
        for fb in range(4):
            o.append(W(rt[fb]))
            for hh in range(2):
                a = acc(0, fb) + 2 * hh
                o.append(P('v_pk_add_f32 %s, %s, %s' % (vr(a, 2), vr(a, 2), vr(PT + fb * 4 + 2 * hh, 2))))
        for fb in range(4):
            for hh in range(2):
                a = acc(0, fb) + 2 * hh
                o.append(P('v_cvt_pk_bf16_f32 v%d, v%d, v%d' % (vR + fb * 2 + hh, a, a + 1)))
        return o

    def sw4(self):
        return self.touch_set(self.cfg.get('t_p4', ''), only_r1=True)

    def row_stats(self):
        s1 = vT + 32; s2 = vT + 33; s1b = vT + 34; s2b = vT + 35
        o = [P('v_mov_b32 v%d, 0' % r) for r in (s1, s2, s1b, s2b)]
        for k in range(0, 8, 2):
            o += [P('v_dot2c_f32_bf16 v%d, v%d, v%d' % (s1, vR + k, vONES)), P('v_dot2c_f32_bf16 v%d, v%d, v%d' % (s2, vR + k, vR + k)),
                  P('v_dot2c_f32_bf16 v%d, v%d, v%d' % (s1b, vR + k + 1, vONES)), P('v_dot2c_f32_bf16 v%d, v%d, v%d' % (s2b, vR + k + 1, vR + k + 1))]
        o += [P('v_add_f32 v%d, v%d, v%d' % (s1, s1, s1b)), P('v_add_f32 v%d, v%d, v%d' % (s2, s2, s2b))]
        o += self.reduce_g2(s1, s2)
        return o

    def x_stores(self, sx, ss):
        return [P('s_mul_i32 s53, s%d, 16384' % sTB), P('s_add_u32 s53, s53, s%d' % sx), P('s_lshl_b32 s54, s%d, 11' % sCT),
                P('s_add_u32 s53, s53, s54'),
                P('s_lshl_b32 s54, s%d, 10' % sTB), P('s_add_u32 s54, s54, s%d' % ss)]

    def x_store_frags(self):
        ds, tags = self.dual_store(['buffer_store_dwordx4 %s, v%d, s[28:31], s53 offen' % (vr(vR, 4), vL16),
                                    'buffer_store_dwordx4 %s, v%d, s[28:31], s55 offen offset:1024' % (vr(vR + 4, 4), vL16)])
        return self.delta(55, 11) + [P('s_add_u32 s55, s55, s53')] + ds, tags

    def x_store_stats(self):
        ds, tags = self.dual_store(['buffer_store_dwordx2 %s, v%d, s[28:31], s54 offen' % (vr(vT + 32, 2), vSTO)])
        return [P('s_mov_b64 exec, 0xffff')] + ds + [P('s_mov_b64 exec, -1')], tags

    def p3(self, extras_w2):
        o = []
        cfg = self.cfg
        for b in range(2):
            o += [P('s_lshl_b32 s53, s%d, 1' % sW), P('s_add_u32 s53, s53, %d' % b), P('s_lshl_b32 s53, s53, 14'),
                  P('s_add_u32 s%d, s53, s%d' % (sB0 + b, sX1))]
        xl = self.x_loads(16, depth=XD)
        pro = cfg.get('x_pro', 4)
        for j in range(pro):
            o += xl[j][0] + xl[j][1]
        stt = []
        STR = vT + 12
        PA = [vT + 0, vT + 2]
        for b in range(2):
            t = newtag('st'); stt.append(t)
            o += [P('s_lshl_b32 s54, s%d, 11' % sW), P('s_add_u32 s53, s54, s%d' % sS1),
                  P('s_add_u32 s53, s53, %d' % (b * 1024)),
                  VM('buffer_load_dwordx4 %s, v%d, s[28:31], s53 offen sc1' % (vr(STR + 4 * b, 4), vL16), t)]
        acc = lambda fb, tb: vACC + (fb * 2 + tb) * 4
        a3 = self.dma_w1_group(3)
        groups = []; n = 0; first_idx = {}; mfidx = 0
        for j in range(16):
            first_idx[j] = mfidx
            base = L_W1P[j // 4] + (j % 4) * 7168
            for fb in range(7):
                dst = self.afrag(n); n += 1
                g = dict(pre=[], reads=[], mf=[])
                if j == 12 and fb == 0:
                    g['pre'] += [W(self.vmtags(a3)), P('s_barrier')]
                for part in range(2):
                    a = base + part * 3584 + fb * 32
                    win = a >> 16
                    g['reads'].append(LG('ds_read_b64_tr_b16 v[%d:%d], v%d offset:%d' % (dst + 2 * part, dst + 2 * part + 1, vW1A + win, a & 0xffff)))
                for tb in range(2):
                    c = '0' if j == 0 else vr(acc(fb, tb), 4)
                    wt = self.vmtags(xl[j][tb]) if fb == 0 else []
                    g['mf'].append(('v_mfma_f32_16x16x32_bf16 %s, %s, %s, %s' % (vr(acc(fb, tb), 4), vr(dst, 4), ar(((j % XD) * 2 + tb) * 4, 4), c), wt))
                mfidx += 2
                groups.append(g)
        extras = self.x_sched(xl, 16, pro, first_idx, 14, XD, cfg.get('x_rate', 4))
        at = extras[-1][0] + 2
        for d in a3:
            extras.append((at, d)); at += 4
        st_ops = [W(stt)]
        for b in range(2):
            st_ops += self.stats_from_st(STR + 4 * b, PA[b], scale=LOG2E)
        extras += self.spread(st_ops, first_idx[2] + 2, 1)
        at = max(at, first_idx[9])
        for d in extras_w2:
            extras.append((at, d)); at += cfg.get('w2e_step', 7)
        for k, t in enumerate(self.touch_set(cfg.get('t_p3', 'af'), only_r1=True)):
            extras.append((first_idx[min(15, cfg.get('t_p3_k', 9) + 2 * k)] + 4, t))
        extras += self.sched_touches('p3', first_idx)
        if cfg.get('code_staged', 1) and cfg.get('t_code', 1):
            extras.append((first_idx[10] + 6, self.touch_code('L_C4', 'L_C5', 72)))
        o += self.gemm_loop(groups, cfg.get('la', 3), extras)
        o.append(P('s_barrier'))
        return o, PA

    def cs_w1(self):
        o = []
        A0 = vT + 40; A1 = vT + 44
        ad = vT + 48
        o += [P('s_lshl_b32 s53, s%d, 5' % sW), P('s_add_u32 s54, s%d, 4' % sW), P('s_min_u32 s54, s54, 6'), P('s_lshl_b32 s54, s54, 5')]
        for win in range(3):
            o += [P('v_add_u32 v%d, s53, v%d' % (ad + win, vW1A + win)), P('v_add_u32 v%d, s54, v%d' % (ad + 3 + win, vW1A + win))]
        groups = []; n = 0
        for j in range(16):
            base = L_W1P[j // 4] + (j % 4) * 7168
            for e in range(2):
                dst = self.afrag(n); n += 1
                g = dict(pre=[], reads=[], mf=[])
                for part in range(2):
                    a = base + part * 3584
                    g['reads'].append(LG('ds_read_b64_tr_b16 v[%d:%d], v%d offset:%d' % (dst + 2 * part, dst + 2 * part + 1, ad + 3 * e + (a >> 16), a & 0xffff)))
                accr = A0 if e == 0 else A1
                c = '0' if j == 0 else vr(accr, 4)
                g['mf'].append(('v_mfma_f32_16x16x32_bf16 %s, %s, %s, %s' % (vr(accr, 4), vr(dst, 4), vr(vONES, 4), c), []))
                groups.append(g)
        o += self.gemm_loop(groups, 3, [])
        o += [P('s_lshl_b32 s53, s53, 1'), P('s_lshl_b32 s54, s54, 1'),
              P('v_add_u32 v%d, s53, v%d' % (ad, vCS)), P('v_add_u32 v%d, s54, v%d' % (ad + 1, vCS)),
              P('s_mov_b32 s52, 0x00010001'), P('s_mov_b32 s53, 0x00010001'), P('s_mov_b64 exec, s[52:53]'),
              LG('ds_write_b128 v%d, %s offset:%d' % (ad, vr(A0, 4), L_CS1)),
              LG('ds_write_b128 v%d, %s offset:%d' % (ad + 1, vr(A1, 4), L_CS1)),
              P('s_mov_b64 exec, -1'), WALL(False, True), P('s_barrier')]
        return o

    def p3_epi(self, PA, dmas):
        o = []
        acc = lambda fb, tb: vACC + (fb * 2 + tb) * 4
        CS = vT + 12; BB = vT + 40
        PK = vT + 68
        cst = []
        for fb in range(7):
            x = LG('ds_read_b128 %s, v%d offset:%d' % (vr(CS + 4 * fb, 4), vCS, L_CS1 + fb * 64)); y = LG('ds_read_b128 %s, v%d offset:%d' % (vr(BB + 4 * fb, 4), vCS, L_BB1 + fb * 64))
            cst.append([x.tag, y.tag]); o += [x, y]
        T = vT + 68
        OUTR = lambda tb, fb: vAF + tb * 16 + fb * 2
        body = []
        for fb in range(7):
            body.append(W(cst[fb]))
            prs = [(tb, hh) for tb in range(2) for hh in range(2)]
            E = [T + 2 * k for k in range(4)]; U = [T + 8 + 2 * k for k in range(4)]
            for k, (tb, hh) in enumerate(prs):
                body.append(P('v_pk_fma_f32 %s, %s, %s, %s op_sel:[0,1,0] op_sel_hi:[1,1,1]' % (vr(E[k], 2), vr(CS + 4 * fb + 2 * hh, 2), vr(PA[tb], 2), vr(BB + 4 * fb + 2 * hh, 2))))
            for k, (tb, hh) in enumerate(prs):
                body.append(P('v_pk_fma_f32 %s, %s, %s, %s op_sel_hi:[1,0,1]' % (vr(E[k], 2), vr(acc(fb, tb) + 2 * hh, 2), vr(PA[tb], 2), vr(E[k], 2))))
            for k in range(4):
                body += [P('v_exp_f32 v%d, v%d' % (U[k], E[k])), P('v_exp_f32 v%d, v%d' % (U[k] + 1, E[k] + 1))]
            for k in range(4):
                body.append(P('v_pk_add_f32 %s, %s, s[%d:%d]' % (vr(U[k], 2), vr(U[k], 2), sONE, sONE + 1)))
            for k in range(4):
                body.append(P('v_pk_fma_f32 %s, %s, %s, s[%d:%d]' % (vr(U[k], 2), vr(U[k], 2), vr(U[k], 2), sONE, sONE + 1)))
            for k in range(4):
                body += [P('v_rcp_f32 v%d, v%d' % (U[k], U[k])), P('v_rcp_f32 v%d, v%d' % (U[k] + 1, U[k] + 1))]
            for k in range(4):
                body.append(P('v_pk_fma_f32 %s, %s, s[%d:%d], %s' % (vr(U[k], 2), vr(U[k], 2), sM2L, sM2L + 1, vr(vLN2, 2))))
            for k in range(4):
                body.append(P('v_pk_mul_f32 %s, %s, %s' % (vr(E[k], 2), vr(E[k], 2), vr(U[k], 2))))
            for k, (tb, hh) in enumerate(prs):
                body.append(P('v_cvt_pk_bf16_f32 v%d, v%d, v%d' % (OUTR(tb, fb) + hh, E[k], E[k] + 1)))
        if dmas:
            frac = self.cfg.get('p3e_frac', 100)
            body = interleave(body, dmas, start=4, every=max(1, ((len(body) - 8) * frac // 100) // (len(dmas) + 1)))
        o += body
        o += [P('s_lshr_b32 s52, s%d, 1' % sM), P('s_mul_i32 s52, s52, 7168'), P('s_add_u32 s52, s52, s%d' % sAF),
              P('s_mul_i32 s53, s%d, %d' % (sW, 2 * 57344)), P('s_add_u32 s52, s52, s53'),
              P('s_add_u32 s53, s52, 57344'), P('s_add_u32 s54, s52, 4096'), P('s_add_u32 s55, s53, 4096')]
        def variant(odd, fl):
            r = []
            for tb in range(2):
                b0 = 52 + tb; b1 = 54 + tb
                if not odd:
                    for u in range(3):
                        r.append(P('buffer_store_dwordx4 %s, v%d, s[28:31], s%d offen offset:%d%s' % (vr(OUTR(tb, 2 * u), 4), vL16, b0, u * 1024, fl)))
                    r.append(P('buffer_store_dwordx2 %s, v%d, s[28:31], s%d offen offset:%d%s' % (vr(OUTR(tb, 6), 2), vL16, b0, 3072, fl)))
                else:
                    r.append(P('buffer_store_dwordx2 %s, v%d, s[28:31], s%d offen offset:%d%s' % (vr(OUTR(tb, 0), 2), vL16, b0, 3072 + 8, fl)))
                    for u in range(3):
                        r.append(P('buffer_store_dwordx4 %s, v%d, s[28:31], s%d offen offset:%d%s' % (vr(OUTR(tb, 2 * u + 1), 4), vL16, b1, u * 1024, fl)))
            return r
        l_odd = self.L('odd'); l_e1 = self.L('e1'); l_o1 = self.L('o1'); done = self.L('dn')
        sel = sMODE
        if self.cfg.get('af_sc1_r1'):
            sel = sIT
            o += [P('s_xor_b32 s%d, s%d, 1' % (sIT, sRND)), P('s_or_b32 s%d, s%d, s%d' % (sIT, sIT, sMODE))]
        o += [P('s_bitcmp1_b32 s%d, 0' % sM), P('s_cbranch_scc1 %s' % l_odd),
              P('s_cmp_eq_u32 s%d, 0' % sel), P('s_cbranch_scc1 %s' % l_e1)] + variant(False, ' sc1') + [P('s_branch %s' % done), LAB(l_e1)] + \
            variant(False, '') + [P('s_branch %s' % done), LAB(l_odd),
              P('s_cmp_eq_u32 s%d, 0' % sel), P('s_cbranch_scc1 %s' % l_o1)] + variant(True, ' sc1') + [P('s_branch %s' % done), LAB(l_o1)] + \
            variant(True, '') + [LAB(done)]
        cnt = [VM('; counted store') for _ in range(8)]
        return o + cnt, [c.tag for c in cnt]

    def build(self):
        cfg = self.cfg
        stop = cfg.get('stop', 99)
        o = self.add
        self.prologue()
        o(self.ts(0))
        self.p1a()
        o(self.ts(1))
        o(W(self.tag_res))
        if cfg.get('stash', 1):
            o(self.wq_stash(), WALL(False, True), P('s_barrier'))
        if cfg.get('a0_early', 1):
            o(self.dma_w1_group(0))
        o(LAB('L_P1EPI'))
        wo = [self.dma_wo_slot(SRD_WO, 8, t, kh, t) for t in range(8) for kh in range(2)]
        w1a0 = self.dma_w1_group(0)
        o(P('s_cmp_eq_u32 s%d, 1' % sRND), P('s_cselect_b64 s[70:71], -1, 0'),
          P('s_lshl_b32 s53, s%d, 10' % sW), P('s_add_u32 s53, s53, %d' % L_W), P('v_add_u32 v%d, s53, v%d' % (vWOA, vL16)))
        epi, stores = self.p1_epi(self.p1_epi_fill())
        o(epi)
        ds, tags = self.dual_store(stores)
        o(ds)
        o(self.wo_restore())
        o(self.ts(2, True))
        o(P('s_lshl_b32 s%d, s%d, 2' % (sTGT, sRND)))
        o(self.sync_dyn(1, tags, pre_r1=self.dma_w1_group(1)) if cfg.get('a1_tail', 1) else self.sync_dyn(1, tags, pre=self.dma_w1_group(1)))
        o(self.ts(3, True))
        if stop == 1:
            o(P('s_branch L_END'))
        o(LAB('L_C2'))
        o(self.gemmB(8, SRD_WO, sOF, 16, 8, 8, None, L_EXB2, inloop=self.dma_w1_group(2) if cfg.get('a2_p2', 1) else None))
        o(self.ts(4, True))
        o(self.x_stores(sX1, sS1))
        ds, tags = self.x_store_frags(); o(ds)
        o(self.row_stats())
        ds, tags2 = self.x_store_stats(); o(ds)
        tags = tags + tags2
        o(self.sync_dyn(2, tags, pre=None if cfg.get('a2_p2', 1) else self.dma_w1_group(2)))
        o(self.ts(5, True))
        if stop == 2:
            o(P('s_branch L_END'))
        w2_early = [self.dma_wo_slot(SRD_W2, 28, W2_T_AT[p], kh, p) for p in range(5) for kh in range(2)]
        body, PA = self.p3(w2_early)
        o(body)
        skip = self.L('cs1')
        o(P('s_cmp_lg_u32 s%d, 0' % sRND), P('s_cbranch_scc1 %s' % skip))
        o(self.cs_w1())
        o(LAB(skip))
        o(self.ts(6, True))
        n_epi = cfg.get('w2_epi_p', 15)
        w2_epi = [self.dma_wo_slot(SRD_W2, 28, W2_T_AT[p], kh, p) for p in range(5, n_epi) for kh in range(2)]
        epi, tags = self.p3_epi(PA, w2_epi)
        o(epi)
        o(self.ts(7, True))
        o(self.sync_dyn(3, tags, pre=[self.dma_wo_slot(SRD_W2, 28, W2_T_AT[p], kh, p) for p in range(n_epi, 19) for kh in range(2)]))
        o(self.ts(8, True))
        if stop == 3:
            o(P('s_branch L_END'))
        o(LAB('L_C4'))
        if cfg.get('stash', 1):
            VA, VB = vT + 60, vT + 61
            o(P('s_cmp_eq_u32 s%d, 0' % sRND), P('s_cselect_b64 s[74:75], -1, 0'))
            o(P('s_lshl_b32 s53, s%d, 10' % sW), P('s_add_u32 s53, s53, %d' % L_W), P('v_add_u32 v%d, s53, v%d' % (VA, vL16)),
              P('v_add_u32 v%d, 0x10000, v%d' % (VB, VA)))
            wq_tail = self.wq_restore([0, 1, 2, 4, 5, 6, 8, 9, 10, 11], VA, VB)
            wq_post = self.wq_restore([3, 7], VA, VB)
            o(self.gemmB(28, SRD_W2, sAF, 56, XD, 19, None, L_EXB4, posf=w2pos, tail=wq_tail, post=wq_post, tail_lds=True))
        else:
            wq_tail = self.dma_wq_quarter(0, src=None) + self.dma_wq_quarter(1, src=None) + self.dma_wq_quarter(2, src=None) + self.dma_wq_quarter(3, panels=(2,), src=None)
            wq_post = self.dma_wq_quarter(3, panels=(0, 1), src=None)
            o(self.gemmB(28, SRD_W2, sAF, 56, XD, 19, None, L_EXB4, pre_extras=self.sw4(), posf=w2pos, tail=wq_tail, post=wq_post))
        o(self.ts(9, True))
        o(LAB('L_C5'))
        o(P('s_cmp_lg_u32 s%d, 0' % sRND), P('s_cbranch_scc1 L_FINAL'))
        o(self.x_stores(sX2, sS2))
        ds, tags = self.x_store_frags(); o(ds)
        o(self.row_stats())
        ds, tags2 = self.x_store_stats(); o(ds)
        tags = tags + tags2
        ht = [newtag('hs') for _ in range(3)]
        o(P('s_add_u32 s52, s%d, 1' % sG), P('s_lshl_b32 s53, s52, 14'), P('s_lshl_b32 s54, s%d, 11' % sCT),
          P('s_add_u32 s53, s53, s54'), P('s_add_u32 s53, s53, %d' % WS_HF),
          P('s_lshl_b32 s54, s52, 10'), P('s_add_u32 s54, s54, %d' % WS_HST),
          VM('buffer_store_dwordx4 %s, v%d, s[28:31], s53 offen sc1' % (vr(vR, 4), vHOF), ht[0]),
          self.delta(55, 11), P('s_add_u32 s55, s55, s53'),
          VM('buffer_store_dwordx4 %s, v%d, s[28:31], s55 offen offset:1024 sc1' % (vr(vR + 4, 4), vHOF), ht[1]),
          VM('buffer_store_dwordx2 %s, v%d, s[28:31], s54 offen sc1' % (vr(vT + 32, 2), vHST), ht[2]))
        self.halo_store_tags = ht
        o(self.sync_dyn(4, tags))
        o(self.ts(10))
        if stop == 4:
            o(P('s_branch L_END'))
        o(P('s_mov_b32 s%d, 1' % sRND), P('s_add_u32 s%d, s%d, s%d' % (sOF, sOF, dOF)), P('s_add_u32 s%d, s%d, s%d' % (sAF, sAF, dAF)),
          P('s_add_u32 s%d, s%d, s%d' % (sX1, sX1, dX1)), P('s_add_u32 s%d, s%d, s%d' % (sS1, sS1, dS1)))
        self.p1b()
        o(self.ts(27))
        o(WALL(False, True))
        o(P('s_branch L_P1EPI'))
        o(LAB('L_FINAL'))
        for u in range(2):
            o(P('v_permlane16_swap_b32 v%d, v%d' % (vR + 4 * u, vR + 4 * u + 2)), P('v_permlane16_swap_b32 v%d, v%d' % (vR + 4 * u + 1, vR + 4 * u + 3)))
        for u in range(2):
            if u == 1:
                o(self.delta(55), P('s_add_u32 s55, s55, s61'))
            o(VM('buffer_store_dwordx4 %s, v%d, s[32:35], s%d offen offset:%d%s' % (vr(vR + 4 * u, 4), vOUT, 55 if u else 61, u * 64, ' sc1' if cfg.get('out_sc1') else '')))
        o(self.ts(28), self.ts_flush())
        o(LAB('L_END'), P('s_endpgm'))

    def sync_dyn(self, ph, tags, window=None, pre=None, pre_r1=None):
        if pre_r1:
            l2 = self.L('pr2'); l3 = self.L('pr3')
            raw = [P(x.text) for x in self.flat(pre_r1)]
            nd = sum(1 for x in self.flat(pre_r1) if x.kind == 'vm')
            o = [P('s_cmp_lg_u32 s%d, 0' % sRND), P('s_cbranch_scc1 %s' % l2)] + raw + [P('s_waitcnt vmcnt(%d)' % nd), P('s_branch %s' % l3),
                 LAB(l2), P('s_waitcnt vmcnt(0)'), LAB(l3), MARK(tags)]
        else:
            o = self.flat(pre or []) + [W(tags)]
        if self.cfg.get('sts'):
            o += self.ts(48 + 4 * (ph - 1))
        pure = self.L('fp'); done = self.L('fd')
        o += [P('s_add_u32 s52, s%d, %d' % (sTGT, ph)),
              P('v_mov_b32 v%d, s52' % (vTA)), P('v_mov_b32 v%d, 0' % (vTB)),
              P('s_mov_b64 exec, 1'),
              P('s_cmp_eq_u32 s%d, 0' % sMODE), P('s_cbranch_scc1 %s' % pure),
              P('buffer_store_dword v%d, v%d, s[28:31], s%d offen sc1' % (vTA, vTB, sFLGOFF)),
              P('s_branch %s' % done), LAB(pure),
              P('buffer_store_dword v%d, v%d, s[28:31], s%d offen' % (vTA, vTB, sFLGOFF)),
              LAB(done), VM('; flag store counted'),
              P('s_mov_b64 exec, -1')]
        other = self.L('so'); join = self.L('sj'); loop = self.L('sp')
        o += [P('s_cmp_lg_u32 s%d, 0' % sW), P('s_cbranch_scc1 %s' % other),
              P('v_lshlrev_b32 v%d, 2, v%d' % (vTB, vLANE)),
              P('s_mov_b32 s%d, 0' % sTMO),
              LAB(loop),
              P('buffer_load_dword v%d, v%d, s[28:31], s%d offen sc1' % (vTA, vTB, sGFLG)),
              P('s_add_u32 s%d, s%d, 1' % (sTMO, sTMO)),
              P('s_waitcnt vmcnt(0)'),
              P('v_cmp_gt_u32 vcc, s52, v%d' % (vTA)),
              P('s_cbranch_vccz %s' % join),
              P('s_cmp_lt_u32 s%d, 0x100000' % sTMO),
              P('s_cbranch_scc1 %s' % loop),
              P('s_endpgm'),
              LAB(other)]
        if window and not self.cfg.get('nowin'):
            o += window
        o += [LAB(join)]
        if self.cfg.get('sts'):
            o += self.ts(49 + 4 * (ph - 1)) + [WALL(True, True)] + self.ts(50 + 4 * (ph - 1))
        if self.cfg.get('halo_nowait') and ph == 4:
            o += [WALL(True, True)]
        else:
            o += [WALL(True, True)]
        o += [P('s_barrier')]
        return o

    def text(self):
        self.build()
        body = self.p.render()
        body = [l for l in body if not l.strip().startswith('; counted') and not l.strip().startswith('; flag store')]
        hdr = open('interleave_layers__sliding_local_dilated__dense_activation_mish__prompt.s.ref').read().split('\n')
        head = []
        for l in hdr:
            if l.startswith('; Override') or l.startswith('; grid=') or l.startswith('; @launch'):
                continue
            if l.startswith('.amdgcn_target'):
                break
            head.append(l)
        out = head + ['; @launch grid=(256,1,1) block=(256,1,1) lds=%d' % LDS_BYTES,
                      '.amdgcn_target "amdgcn-amd-amdhsa--gfx950"', '.text', '.globl ' + KNAME, '.p2align 8',
                      '.type %s,@function' % KNAME, KNAME + ':']
        out += body
        out += ['.section .rodata,"a"', '.p2align 6', '.amdhsa_kernel ' + KNAME,
                '  .amdhsa_next_free_vgpr 512', '  .amdhsa_next_free_sgpr 102', '  .amdhsa_accum_offset 256',
                '  .amdhsa_group_segment_fixed_size 0', '  .amdhsa_kernarg_size 80', '  .amdhsa_user_sgpr_count 2',
                '  .amdhsa_user_sgpr_kernarg_segment_ptr 1', '  .amdhsa_system_sgpr_workgroup_id_x 1',
                '  .amdhsa_float_denorm_mode_32 3', '.end_amdhsa_kernel', '']
        return '\n'.join(out)


if __name__ == '__main__':
    cfg = {}
    outp = sys.argv[1]
    for a in sys.argv[2:]:
        k, v = a.split('=')
        try:
            cfg[k] = int(v)
        except ValueError:
            cfg[k] = v
    g = Gen(cfg)
    t = g.text()
    open(outp, 'w').write(t)
    print('wrote', outp, len(t), 'bytes;', 'nops padded:', g.p.npad)
```

```python
import sys, math
from asmlib import *

KNAME = 'interleave_layers__sliding_local_dilated__dense_activation_mish__prompt_kernel'

WS_FLG = 0x0000
WS_HFL = 0x1000
WS_TS = 0x2000
WS_ST = 0x10000
WS_HST = 0x80000
WS_HF = 0x90000
WS_XF = 0x100000
WS_OF = 0x800000
WS_AF = 0x1000000
WS_ACT = 0x2000000
ACT_G = 0x92000
WS_SIZE = 0x2A00000
ST_K = 0x20000; XF_K = 0x200000; OF_R = 0x200000; AF_R = 0x800000

L_CSQ = 0
L_CS1 = 384
L_BB1 = 832
L_W = 2048
L_HALO = 100352
L_RING = 116736
L_EX = 67584
L_EXK = L_EX + 9216
L_W1P = [135168, 106496, 77824, 49152]
L_EXB2 = 2048
L_EXB4 = 100352
LDS_BYTES = 163840
W2_PA = [12, 13, 14, 15, 16, 17, 18, 3, 7]
W2_PB = [0, 1, 2, 4, 5, 6, 8, 9, 10, 11]
def w2pos(t):
    return W2_PA[t] if t < 9 else (W2_PB[t - 9] if t < 19 else W2_PA[t - 19])
W2_T_AT = {w2pos(t): t for t in range(19)}

LOG2E = 1.4426950408889634
LN2 = 0.6931471805599453


def f32(x):
    import struct
    return '0x%08x' % struct.unpack('<I', struct.pack('<f', x))[0]


sRND = 3; sG = 4; sM = 5; sW = 6; sMODE = 7
SRD_X = 8; SRD_WQ = 12; SRD_WO = 16; SRD_W1 = 20; SRD_W2 = 24; SRD_WS = 28; SRD_OUT = 32; SRD_DBG = 36; SRD_B1 = 40
sXCC = 44
sWQ_SRC = 45
sW1K = 46
sWO_SRC = 47
sW1_SRC = 48
sW1_M = 49
sB0 = 50; sB1 = 51
sT0 = 52; sT1 = 53; sT2 = 54; sT3 = 55
sFLGOFF = 56
sGFLG = 57
sST = 58
sTH = 59; sCT = 60
sONE = 62
sM2L = 64
sUP = 66
sMA = 68; sMB = 70; sMC = 72; sMD = 74
sIT = 76; sTMO = 77; sTGT = 78; sA = 79; sB = 80; sC = 81; sD = 82
sXR0 = 83; sXR1 = 84
sHSRC = 85
sTB = 86
sGBASE = 87
sTS = 88
sTSO = 90
sOF = 94; sAF = 95; sX1 = 96; sS1 = 97; sX2 = 98; sS2 = 99
sTUX = 100; sTUG = 101
dOF = 83; dAF = 84; dX1 = 85; dS1 = 82
sXL0 = 92; sXL1 = 93

vLANE = 0; vL16 = 1
vR = 2
vONES = 10
vWQA = 14
vE1 = 18; vE2 = 19
vW1A = 20
vW2A = 23
vDQ = 35; vDO = 36; vD1 = 37
vCS = 44
vL128 = 45
vDUM = 247
vCCUR = 46; vCPREV = 50; vCPA = 54
vEXV = 58; vEXK = 59; vEXH = 60; vRVP = 61; vRV = 62; vRK = 63
vLN2 = 64
vEXBW = 66; vEXBR = 67
vSTO = 68
vHOF = 69
vHST = 70
vOUT = 71
vAF = 72
NAF = 6
vACC = 104
vT = 168
vTA = 254; vTB = 255
vWOA = 247
vDUMMY = 246
XD = 12
aWO = 96; aWQ = 160
L_HS = 135168
vDX = 240; vDH = 241; vXA = 242; vXB = 243; vHXA = 244; vHXB = 245


class Gen:
    def __init__(self, cfg):
        self.cfg = cfg
        self.p = Prog()
        self.lbl = 0

    def L(self, name):
        self.lbl += 1
        return '%s_%d' % (name, self.lbl)

    def add(self, *a):
        self.p.add(*a)

    def ts(self, idx, rnd=False):
        if not self.cfg.get('ts'):
            return []
        o = [P('s_memrealtime s[92:93]' if self.cfg.get('ts') == 1 else 's_memtime s[92:93]')]
        if rnd:
            o += [P('s_lshl_b32 s91, s%d, 4' % sRND), P('s_add_u32 s91, s91, %d' % idx), P('s_mov_b32 m0, s91'),
                  P('s_waitcnt lgkmcnt(0)'), P('v_writelane_b32 v103, s92, m0')]
        else:
            o += [P('s_waitcnt lgkmcnt(0)'), P('v_writelane_b32 v103, s92, %d' % idx)]
        return o

    def ts_flush(self):
        if not self.cfg.get('ts'):
            return []
        if self.cfg.get('dbgts'):
            o = [P('s_memrealtime s[92:93]'), P('s_waitcnt lgkmcnt(0)'), P('v_readlane_b32 s53, v103, 12'), P('s_nop 4'), P('s_sub_u32 s52, s92, s53'),
                 P('v_writelane_b32 v103, s52, 63')]
            lanes = [1, 2, 10, 27, 28, 63, 6, 9]
            words = [4, 5, 6, 7, 12, 13, 14, 15]
            o += [P('v_readlane_b32 s54, v103, 13')]
            for ln, wd in zip(lanes, words):
                o += [P('v_readlane_b32 s52, v103, %d' % ln), P('s_nop 4')]
                if ln != 63:
                    o += [P('s_sub_u32 s52, s52, s54')]
                o += [P('v_writelane_b32 v252, s52, %d' % wd)]
            o += [P('v_lshlrev_b32 v253, 2, v%d' % vLANE), P('s_cmp_eq_u32 s2, 0'), P('s_cselect_b32 s52, 0, 1'), P('s_or_b32 s52, s52, s%d' % sW),
                  P('s_cmp_eq_u32 s52, 0'), P('s_cselect_b32 s52, 0xf0f0, 0'), P('s_mov_b32 exec_lo, s52'), P('s_mov_b32 exec_hi, 0'),
                  P('s_cbranch_execz L_TSD'),
                  VM('buffer_store_dword v252, v253, s[36:39], 0 offen'), LAB('L_TSD'), P('s_mov_b64 exec, -1')]
            return o
        return [P('v_lshlrev_b32 v252, 2, v%d' % vLANE), VM('buffer_store_dword v103, v252, s[28:31], s90 offen')]

    def dma(self, srd, voff, src_s, src_imm, lds_s, lds_imm, tag=None, st=None):
        st = st if st is not None else sT0
        ops = []
        if lds_s is None:
            ops.append(P('s_mov_b32 m0, %d' % lds_imm))
        else:
            ops.append(P('s_add_u32 m0, s%d, %d' % (lds_s, lds_imm)))
        if src_s is None:
            ops.append(P('s_mov_b32 s%d, %d' % (st, src_imm)))
        else:
            ops.append(P('s_add_u32 s%d, s%d, %d' % (st, src_s, src_imm)))
        if self.cfg.get('nodma') and srd in (SRD_WO, SRD_W1, SRD_W2):
            ops.append(P('s_nop 0'))
            return ops
        nt = ' nt' if (self.cfg.get('nt') and srd in (SRD_W1, SRD_W2)) else ''
        ops.append(VM('buffer_load_dwordx4 v%d, s[%d:%d], s%d offen%s lds' % (voff, srd, srd + 3, st, nt), tag))
        return ops

    def touch(self, srd, unit_s, imm, limit=None, only_r1=False):
        ops = []
        if limit is not None:
            ops += [P('s_add_u32 s55, s%d, %d' % (unit_s, imm[0])), P('s_cmp_lt_u32 s%d, %d' % (unit_s, limit)),
                    P('s_cselect_b32 s55, s55, 0x7ff00000')]
            if imm[1] is not None:
                ops.insert(1, P('s_add_u32 s55, s55, s%d' % imm[1]))
        else:
            ops.append(P('s_add_u32 s55, s%d, %d' % (unit_s, imm)))
        if only_r1:
            ops += [P('s_cmp_eq_u32 s%d, 0' % sRND), P('s_cselect_b32 s55, s55, 0x7ff00000')]
        ops.append(VM('buffer_load_dword v102, v%d, s[%d:%d], s55 offen' % (vL128, srd, srd + 3)))
        return ops

    def touch_w(self, name, only_r1=False):
        srd, size = {'wq': (SRD_WQ, 512 * 3072), 'wo': (SRD_WO, 524288), 'w1': (SRD_W1, 512 * 3584), 'w2': (SRD_W2, 1792 * 1024)}[name]
        return [self.touch(srd, sTUX, k * 0x100000, only_r1=only_r1) for k in range((size + 0xfffff) // 0x100000)]

    def touch_act(self, off, nbytes):
        return [self.touch(SRD_WS, sTUG, (WS_ACT + off, sST), limit=nbytes)]

    def touch_range(self, name, lo, hi, rounds='12'):
        srd = {'wq': SRD_WQ, 'wo': SRD_WO, 'w1': SRD_W1, 'w2': SRD_W2}[name]
        unit = -(-(hi - lo) // (128 * 128)) * 128
        assert unit <= 8192
        nl = unit // 128
        ops = [P('s_lshr_b32 s55, s%d, 13' % sTUX), P('s_mul_i32 s55, s55, %d' % unit), P('s_add_u32 s55, s55, %d' % lo)]
        if rounds != '12':
            ops += [P('s_cmp_eq_u32 s%d, %d' % (sRND, 0 if rounds == '1' else 1)), P('s_cselect_b32 s55, s55, 0x7ff00000')]
        if nl < 64:
            m = (1 << nl) - 1
            ops += [P('s_mov_b32 exec_lo, 0x%x' % (m & 0xffffffff)), P('s_mov_b32 exec_hi, 0x%x' % (m >> 32))]
        ops.append(VM('buffer_load_dword v102, v%d, s[%d:%d], s55 offen' % (vL128, srd, srd + 3)))
        if nl < 64:
            ops.append(P('s_mov_b64 exec, -1'))
        return ops

    def sched_touches(self, phase, first_idx):
        out = []
        for e in str(self.cfg.get('tch', '')).split('+'):
            if not e:
                continue
            f = e.split('.')
            if f[0] != phase:
                continue
            k = int(f[1]); name = f[2]
            if name in ('of', 'af', 'xf'):
                ops = self.touch_set(name)[0]
            else:
                ops = self.touch_range(name, int(f[3]) * 1024, int(f[4]) * 1024, f[5] if len(f) > 5 else '12')
            out.append((first_idx[k] + 3, ops))
        return out

    def touch_act_even(self, off, n):
        unit = -(-n // (64 * 128)) * 128
        nl = unit // 128
        assert nl <= 64
        ops = [P('s_lshr_b32 s55, s%d, 13' % sTUG), P('s_mul_i32 s55, s55, %d' % unit), P('s_add_u32 s55, s55, s%d' % sST),
               P('s_add_u32 s55, s55, %d' % (WS_ACT + off))]
        if nl < 64:
            m = (1 << nl) - 1
            ops += [P('s_mov_b32 exec_lo, 0x%x' % (m & 0xffffffff)), P('s_mov_b32 exec_hi, 0x%x' % (m >> 32))]
        ops.append(VM('buffer_load_dword v102, v%d, s[28:31], s55 offen' % vL128))
        if nl < 64:
            ops.append(P('s_mov_b64 exec, -1'))
        return ops

    def touch_code(self, lab0, lab1, base, nl=1):
        return [P('s_lshr_b32 s55, s%d, 13' % sTUX), P('s_mul_i32 s55, s55, %d' % (nl * 128)),
                P('v_add_u32 v%d, s55, v%d' % (253, vL128)),
                P('v_add_u32 v%d, %s-L_PC, v%d' % (253, lab0, 253)),
                P('v_min_u32 v%d, %s-L_PC, v%d' % (253, lab1, 253)),
                P('s_mov_b64 exec, %d' % ((1 << nl) - 1)),
                VM('global_load_dword v102, v%d, s[%d:%d]' % (253, base, base + 1)),
                P('s_mov_b64 exec, -1')]

    def delta(self, dst, shift=7):
        if not self.cfg.get('split', 0):
            return [P('s_mov_b32 s%d, 0' % dst)]
        return [P('s_xor_b32 s%d, s%d, 4' % (dst, sCT)), P('s_sub_u32 s%d, s%d, s%d' % (dst, dst, sCT)), P('s_lshl_b32 s%d, s%d, %d' % (dst, dst, shift))]

    def touch_mall(self):
        o = [P('s_lshl_b32 s54, s2, 2'), P('s_add_u32 s54, s54, s%d' % sW)]
        for srd, first, n in ((SRD_W1, 0, 224), (SRD_W2, 256, 224), (SRD_WO, 512, 64)):
            o += [P('s_sub_u32 s55, s54, %d' % first), P('s_cmp_lt_u32 s55, %d' % n), P('s_cselect_b32 s55, s55, 0x3ff80'),
                  P('s_lshl_b32 s55, s55, 13'),
                  VM('buffer_load_dword v102, v%d, s[%d:%d], s55 offen' % (vL128, srd, srd + 3))]
        return o

    def touch_set(self, spec, only_r1=False):
        out = []
        for name in spec.split(','):
            if not name:
                continue
            if name == 'of':
                out.append(self.touch_act_even(0, 131072))
            elif name == 'af':
                out.append(self.touch_act_even(131072, 458752 - 131072))
            elif name == 'xf':
                out.append(self.touch_act_even(458752, 139264))
            else:
                out += self.touch_w(name, only_r1)
        return out

    def dma_wq_quarter(self, qd, panels=(0, 1, 2), src=None):
        out = []
        for a in range(2):
            for p in panels:
                rg = 8 * qd + 4 * a
                out.append(self.dma(SRD_WQ, vDQ, src if src is not None else sWQ_SRC, rg * 49152 + p * 1024, sW1K, L_W + p * 32768 + rg * 1024))
        return out

    def dma_wo_slot(self, srd, nk, t, kh, pos):
        js = kh * nk + t
        return self.dma(srd, vDO, sWO_SRC, js * 32768, sW1K, L_W + (2 * pos + kh) * 4096)

    def dma_w1_group(self, a):
        out = []
        for u in range(7):
            out.append(self.dma(SRD_W1, vD1 + u, sW1_SRC, a * 4 * 32 * 3584, sW1_M, L_W1P[a] + u * 1024))
        return out

    def window_loop(self, n0, n1, srd, srcA_s, srcA_imm, srcB, ldsC, ldsD, subs):
        lab = self.L('win'); end = self.L('winend')
        o = [P('s_add_u32 s%d, s%d, %d' % (sIT, sW, n0 - 1)),
             P('s_cmp_ge_u32 s%d, %d' % (sIT, n1)),
             P('s_cbranch_scc1 %s' % end),
             LAB(lab),
             P('s_mul_i32 s%d, s%d, %d' % (sA, sIT, srcB))]
        if srcA_s is not None:
            o.append(P('s_add_u32 s%d, s%d, s%d' % (sA, sA, srcA_s)))
        o.append(P('s_add_u32 s%d, s%d, %d' % (sA, sA, srcA_imm)))
        o.append(P('s_mul_i32 s%d, s%d, %d' % (sB, sIT, ldsD)))
        for (voff, so, lo) in subs:
            o.append(P('s_add_u32 m0, s%d, %d' % (sB, ldsC + lo)))
            o.append(P('s_add_u32 s%d, s%d, %d' % (sT0, sA, so)))
            nt = ' nt' if (self.cfg.get('nt') and srd in (SRD_W1, SRD_W2)) else ''
            if self.cfg.get('nodma'):
                o.append(P('s_nop 0'))
            else:
                o.append(P('buffer_load_dwordx4 v%d, s[%d:%d], s%d offen%s lds' % (voff, srd, srd + 3, sT0, nt)))
        o += [P('s_add_u32 s%d, s%d, 3' % (sIT, sIT)),
              P('s_cmp_lt_u32 s%d, %d' % (sIT, n1)),
              P('s_cbranch_scc1 %s' % lab),
              LAB(end)]
        return o

    def win_wq(self, rg0, rg1):
        return [P('s_lshl_b32 s%d, s%d, 6' % (sC, sM))] + self.window_loop(
            rg0, rg1, SRD_WQ, sC, 0, 49152, L_W, 1024, [(vDQ, p * 1024, p * 32768) for p in range(3)])

    def win_wo(self, srd, nk, t0, t1, dpos=0):
        subs = []
        for kh in range(2):
            for q in range(4):
                subs.append((vDO, kh * nk * 32768 + q * 8192, kh * 4096 + q * 1024))
        return [P('s_lshl_b32 s%d, s%d, 7' % (sC, sCT))] + self.window_loop(
            t0, t1, srd, sC, 0, 32768, L_W + dpos * 8192, 8192, subs)

    def win_w1(self, j0, j1):
        a = j0 // 4
        base = L_W1P[a] - j0 * 7168
        for j in range(j0, j1):
            assert L_W1P[j // 4] + (j % 4) * 7168 == base + j * 7168
        return [P('s_mul_i32 s%d, s%d, 224' % (sC, sM))] + self.window_loop(
            j0, j1, SRD_W1, sC, 0, 32 * 3584, base, 7168, [(vD1 + u, 0, u * 1024) for u in range(7)])

    def gemm_loop(self, groups, LA, extras):
        out = []
        n = len(groups)
        for k in range(min(LA, n)):
            out += groups[k].get('pre', []) + groups[k]['reads']
        flat = []
        for gi, g in enumerate(groups):
            rq = []
            if gi + LA < n:
                rq = list(groups[gi + LA].get('pre', [])) + list(groups[gi + LA]['reads'])
            nm = len(g['mf'])
            chunks = [[] for _ in range(nm)]
            reads_total = sum(1 for x in rq if x.kind == 'lg')
            per = max(1, -(-reads_total // nm))
            c = 0; cnt = 0
            for x in rq:
                chunks[min(c, nm - 1)].append(x)
                if x.kind == 'lg':
                    cnt += 1
                    if cnt == per:
                        cnt = 0; c += 1
            for k, (text, waits) in enumerate(g['mf']):
                w = list(waits)
                if k == 0:
                    w += [x.tag for x in g['reads']]
                flat.append((text, w, g.get('premf', []) if k == 0 else [], chunks[k]))
        extras = sorted(extras, key=lambda e: e[0])
        ei = 0
        for idx, (text, w, premf, chunk) in enumerate(flat):
            if idx == 0:
                out += premf + [W(w)]
            out.append(P(text))
            if idx + 1 < len(flat):
                out += flat[idx + 1][2]
                out.append(W(flat[idx + 1][1]))
            out += chunk
            k = 0
            while ei < len(extras) and extras[ei][0] <= idx and k < self.cfg.get('extra_per', 1):
                out += extras[ei][1]
                ei += 1; k += 1
        while ei < len(extras):
            out += extras[ei][1]; ei += 1
        return out

    @staticmethod
    def flat(ops):
        out = []
        for x in ops:
            if x is None:
                continue
            if isinstance(x, (list, tuple)):
                out += Gen.flat(x)
            else:
                out.append(x)
        return out

    def spread(self, ops, start, step=1, nvec=1):
        out = []; cur = []; nv = 0; at = start
        ops = self.flat(ops)
        for i, x in enumerate(ops):
            cur.append(x)
            t = x.text or ''
            if t.startswith('v_') or t.startswith('buffer_') or t.startswith('ds_'):
                nv += 1
                nxt = (ops[i + 1].text or '') if i + 1 < len(ops) else ''
                glued = (t.startswith('v_cmp') and ' vcc,' in t) or (nxt.startswith('v_cndmask') and nxt.rstrip().endswith('vcc'))
                if nv >= nvec and not glued:
                    out.append((at, cur)); cur = []; nv = 0; at += step
        if cur:
            out.append((at, cur))
        return out

    def afrag(self, n):
        return vAF + (n % NAF) * 4

    def prologue(self):
        cfg = self.cfg
        o = self.add
        o(P('s_cmp_ge_u32 s2, 256'), P('s_cbranch_scc1 L_END'))
        if cfg.get('ts'):
            o(P('v_mov_b32 v103, 0'), self.ts(13))
            if cfg.get('dbgts'):
                o(P('s_memrealtime s[92:93]'), P('s_waitcnt lgkmcnt(0)'), P('v_writelane_b32 v103, s92, 12'))
        o(P('s_load_dwordx16 s[72:87], s[0:1], 0'), P('s_load_dwordx4 s[88:91], s[0:1], 64'))
        if cfg.get('t_code', 1):
            nl = cfg.get('code_nl', 2 if cfg.get('code_staged', 1) else 3)
            o(P('s_getpc_b64 s[50:51]'), LAB('L_PC'),
              P('s_lshr_b32 s52, s2, 3'), P('s_mul_i32 s52, s52, %d' % (4 * nl)),
              P('v_lshrrev_b32 v252, 6, v0'), P('v_mul_u32_u24 v252, %d, v252' % nl), P('v_and_b32 v253, 63, v0'),
              P('v_add3_u32 v252, v252, v253, s52'), P('v_lshlrev_b32 v252, 7, v252'),
              P('v_min_u32 v252, %s-L_PC, v252' % ('L_C2' if cfg.get('code_staged', 1) else 'L_END')),
              P('s_mov_b64 exec, %d' % ((1 << nl) - 1)),
              VM('global_load_dword v102, v252, s[50:51]'),
              P('s_mov_b64 exec, -1'))
        o(P('s_getreg_b32 s%d, hwreg(HW_REG_XCC_ID, 0, 4)' % sXCC))
        o(P('s_and_b32 s52, s2, 7'), P('s_lshr_b32 s53, s2, 3'), P('s_lshr_b32 s54, s53, 4'),
          P('s_lshl_b32 s%d, s52, 1' % sG), P('s_add_u32 s%d, s%d, s54' % (sG, sG)),
          P('s_and_b32 s%d, s53, 15' % sM))
        if cfg.get('cross_groups'):
            o(P('s_lshr_b32 s%d, s2, 4' % sG), P('s_and_b32 s%d, s2, 15' % sM))
        o(P('v_lshrrev_b32 v252, 6, v0'), P('v_and_b32 v%d, 63, v0' % vLANE), P('v_readfirstlane_b32 s%d, v252' % sW))
        I = 250; Gq = 251; RR = 249; I3 = 248; t0 = 252; t1 = 253; t2 = 254; t3 = 255
        o(P('v_lshlrev_b32 v%d, 7, v%d' % (vL128, vLANE)), P('v_lshlrev_b32 v%d, 4, v%d' % (vL16, vLANE)))
        o(P('v_lshrrev_b32 v%d, 2, v%d' % (t0, vLANE)), P('v_lshrrev_b32 v%d, 2, v%d' % (t1, t0)),
          P('v_xor_b32 v%d, v%d, v%d' % (t1, t1, vLANE)), P('v_and_b32 v%d, 3, v%d' % (t1, t1)),
          P('v_lshlrev_b32 v%d, 4, v%d' % (t1, t1)),
          P('v_lshl_add_u32 v%d, v%d, 11, v%d' % (vDX, t0, t1)))
        o(P('v_lshlrev_b32 v%d, 1, v%d' % (t2, t0)), P('v_add_u32 v%d, 16, v%d' % (t3, t2)), P('v_add_u32 v%d, 1, v%d' % (t2, t2)),
          P('v_cmp_gt_u32 vcc, 8, v%d' % t0),
          P('s_lshr_b32 s%d, s%d, 3' % (sTH, sM)), P('s_and_b32 s%d, s%d, 7' % (sCT, sM)),
          P('v_cndmask_b32 v%d, v%d, v%d, vcc' % (t2, t2, t3)),
          P('v_lshl_add_u32 v%d, v%d, 10, v%d' % (vDH, t2, t1)),
          P('s_cmp_eq_u32 s%d, 0' % sG), P('s_cselect_b32 s53, 0x40000000, 0'), P('v_or_b32 v%d, s53, v%d' % (vDH, vDH)))
        o(P('v_lshrrev_b32 v%d, 4, v%d' % (t1, vLANE)), P('v_lshrrev_b32 v%d, 1, v%d' % (t2, vLANE)),
          P('v_xor_b32 v%d, v%d, v%d' % (t1, t1, t2)), P('v_and_b32 v%d, 1, v%d' % (t1, t1)),
          P('v_lshlrev_b32 v%d, 5, v%d' % (t1, t1)), P('v_and_b32 v%d, 1, v%d' % (t2, vLANE)),
          P('v_lshl_add_u32 v%d, v%d, 4, v%d' % (t1, t2, t1)),
          P('v_mul_u32_u24 v%d, 3072, v%d' % (t2, t0)), P('v_add_u32 v%d, v%d, v%d' % (vDQ, t1, t2)))
        o(P('s_mov_b32 s%d, 0' % sRND), P('s_mov_b32 s%d, 0' % sMODE),
          P('s_mul_i32 s%d, s%d, 49152' % (sWQ_SRC, sW)), P('s_lshl_b32 s52, s%d, 6' % sM),
          P('s_add_u32 s%d, s%d, s52' % (sWQ_SRC, sWQ_SRC)),
          P('s_lshl_b32 s%d, s%d, 10' % (sW1K, sW)),
          P('s_lshl_b32 s%d, s%d, 13' % (sWO_SRC, sW)), P('s_and_b32 s52, s%d, %d' % (sCT, 3 if cfg.get('split', 0) else 7)), P('s_lshl_b32 s52, s52, 7'),
          P('s_add_u32 s%d, s%d, s52' % (sWO_SRC, sWO_SRC)),
          P('s_mul_i32 s%d, s%d, %d' % (sW1_SRC, sW, 32 * 3584)), P('s_mul_i32 s52, s%d, 224' % sM),
          P('s_add_u32 s%d, s%d, s52' % (sW1_SRC, sW1_SRC)),
          P('s_mul_i32 s%d, s%d, 7168' % (sW1_M, sW)),
          P('s_lshl_b32 s%d, s%d, 8' % (sGFLG, sG)),
          P('s_lshl_b32 s52, s%d, 2' % sM), P('s_add_u32 s52, s52, s%d' % sW), P('s_lshl_b32 s52, s52, 2'),
          P('s_add_u32 s%d, s%d, s52' % (sFLGOFF, sGFLG)),
          P('s_and_b32 s52, s%d, 1' % sG), P('s_lshl_b32 s52, s52, 4'), P('s_add_u32 s52, s52, s%d' % sM),
          P('s_lshl_b32 s52, s52, 2'), P('s_add_u32 s52, s52, s%d' % sW), P('s_lshl_b32 s%d, s52, 13' % sTUX),
          P('s_mul_i32 s94, s52, 2176'),
          P('s_lshl_b32 s52, s%d, 2' % sM), P('s_add_u32 s52, s52, s%d' % sW), P('s_lshl_b32 s%d, s52, 13' % sTUG),
          P('s_mul_i32 s%d, s%d, %d' % (sST, sG, ACT_G)),
          P('s_andn2_b32 s52, s%d, 1' % sG), P('s_lshl_b32 s52, s52, 17'), P('s_sub_u32 s52, s52, 16384'),
          P('s_max_i32 s52, s52, 0'), P('s_add_u32 s94, s94, s52'),
          P('s_lshl_b32 s52, s%d, 7' % sG), P('s_sub_u32 s53, s52, 32'), P('s_lshl_b32 s97, s53, 10'),
          P('s_cmp_eq_u32 s%d, 0' % sG), P('s_cselect_b32 s97, 0, s97'), P('s_lshl_b32 s53, s%d, 6' % sW), P('s_add_u32 s97, s97, s53'))
        for b in range(2):
            o(P('s_lshl_b32 s53, s%d, 1' % sW), P('s_add_u32 s53, s53, %d' % b), P('s_and_b32 s53, s53, 3'),
              P('s_lshl_b32 s53, s53, 5'), P('s_add_u32 s53, s53, s52'), P('s_lshr_b32 s54, s%d, 1' % sW),
              P('s_add_u32 s53, s53, s54'), P('s_lshl_b32 s%d, s53, 10' % (95 + b)))
        o(P('s_lshl_b32 s98, s%d, 11' % sW))
        o(P('s_waitcnt lgkmcnt(0)'))
        if cfg.get('pts') == 1:
            o(self.ts(14))
        def srd(dst, src, size):
            return [P('s_mov_b32 s%d, s%d' % (dst, src)), P('s_and_b32 s%d, s%d, 0xffff' % (dst + 1, src + 1)),
                    P('s_mov_b32 s%d, 0x%x' % (dst + 2, size)), P('s_mov_b32 s%d, 0x20000' % (dst + 3))]
        o(srd(SRD_X, 72, 2097152), srd(SRD_WQ, 74, 512 * 3072))
        tp = cfg.get('t_pro', 1)
        def tq(q):
            return self.touch_range('wq', q * 393216, (q + 1) * 393216) if tp else []
        if tp:
            o(P('s_mov_b32 exec_lo, 0x1ffff'), P('s_mov_b32 exec_hi, 0'),
              VM('buffer_load_dword v102, v%d, s[8:11], s94 offen' % vL128), P('s_mov_b64 exec, -1'))
        o(tq(0), tq(1))
        allfirst = cfg.get('cold', 'A') == 'A'
        if allfirst:
            o(tq(2), tq(3))
        o(srd(SRD_WO, 76, 524288), srd(SRD_W1, 80, 512 * 3584), srd(SRD_B1, 82, 3584), srd(SRD_W2, 84, 1792 * 1024),
          srd(SRD_OUT, 86, 2097152), srd(SRD_DBG, 88, 256), srd(SRD_WS, 90, WS_SIZE))
        o(P('s_mov_b32 s%d, s95' % sXR0), P('s_mov_b32 s%d, s96' % sXR1), P('s_mov_b32 s%d, s97' % sHSRC), P('s_mov_b32 s%d, s98' % sD))
        o(P('s_and_b32 s52, s%d, 1' % sG), P('s_lshl_b32 s52, s52, 3'), P('s_add_u32 s52, s52, s%d' % sM),
          P('s_and_b32 s99, s52, %d' % (15 if cfg.get('rot', 0) else 0)), P('s_lshl_b32 s98, s99, 1'), P('s_add_u32 s98, s98, s%d' % sW),
          P('s_lshl_b32 s95, s%d, 6' % sM), P('s_lshl_b32 s52, s%d, 6' % sW), P('s_sub_u32 s%d, s%d, s52' % (sHSRC, sHSRC)))
        self.tq = (lambda q: []) if allfirst else tq
        if cfg.get('t_mall', 0) == 1:
            o(self.touch_mall())
        self.tag_init = newtag('init')
        o(P('v_mov_b32 v%d, 0' % t1), P('s_mov_b64 exec, 1'),
          VM('buffer_store_dword v%d, v%d, s[28:31], s%d offen sc1' % (t1, t1, sFLGOFF), self.tag_init),
          P('s_mov_b64 exec, -1'))
        if cfg.get('pts') == 1:
            o(self.ts(15))
        o(P('v_and_b32 v%d, 15, v%d' % (I, vLANE)), P('v_lshrrev_b32 v%d, 4, v%d' % (Gq, vLANE)),
          P('v_lshrrev_b32 v%d, 2, v%d' % (t0, I)), P('v_lshl_add_u32 v%d, v%d, 2, v%d' % (RR, Gq, t0)),
          P('v_and_b32 v%d, 3, v%d' % (I3, I)))
        for k in range(4):
            o(P('v_mov_b32 v%d, 0x3f803f80' % (vONES + k)))
        o(P('v_lshlrev_b32 v%d, 6, v%d' % (t0, RR)), P('v_lshl_add_u32 v%d, v%d, 3, v%d' % (t0, I3, t0)),
          P('v_add_u32 v%d, %d, v%d' % (t0, L_W, t0)),
          P('v_and_b32 v%d, 1, v%d' % (t1, Gq)), P('v_lshlrev_b32 v%d, 5, v%d' % (t1, t1)),
          P('v_add_u32 v%d, v%d, v%d' % (vWQA, t0, t1)),
          P('v_xor_b32 v%d, 32, v%d' % (t2, t1)), P('v_add_u32 v%d, v%d, v%d' % (vWQA + 1, t0, t2)),
          P('v_add_u32 v%d, 0x10000, v%d' % (vWQA + 2, vWQA)), P('v_add_u32 v%d, 0x10000, v%d' % (vWQA + 3, vWQA + 1)))
        o(P('s_and_b32 s53, s%d, 1' % sW), P('s_lshl_b32 s53, s53, 5'), P('v_xor_b32 v%d, s53, v%d' % (t2, t1)),
          P('v_add_u32 v%d, v%d, v%d' % (vE2, t0, t2)),
          P('s_lshr_b32 s53, s%d, 1' % sW), P('s_add_u32 s53, s53, 1'), P('s_lshl_b32 s53, s53, 15'),
          P('v_add_u32 v%d, s53, v%d' % (vE1, vE2)))
        o(P('v_lshrrev_b32 v%d, 1, v%d' % (t0, Gq)), P('v_lshrrev_b32 v%d, 2, v%d' % (t1, I)),
          P('v_xor_b32 v%d, v%d, v%d' % (t0, t0, t1)), P('v_lshlrev_b32 v%d, 4, v%d' % (t0, t0)),
          P('v_lshl_add_u32 v%d, v%d, 6, v%d' % (t0, I, t0)),
          P('v_and_b32 v%d, 1, v%d' % (t1, Gq)), P('v_lshl_add_u32 v%d, v%d, 3, v%d' % (t0, t1, t0)),
          P('v_add_u32 v%d, %d, v%d' % (vHXA, L_HALO, t0)), P('v_xor_b32 v%d, 32, v%d' % (vHXB, vHXA)),
          P('s_lshl_b32 s53, s%d, 11' % sW), P('s_add_u32 s53, s53, %d' % L_RING),
          P('v_add_u32 v%d, s53, v%d' % (vXA, t0)), P('v_xor_b32 v%d, 32, v%d' % (vXB, vXA)))
        o(P('v_cmp_eq_u32 s[%d:%d], 1, v%d' % (sMA, sMA + 1, I3)), P('v_cmp_eq_u32 s[%d:%d], 2, v%d' % (sMB, sMB + 1, I3)),
          P('v_cmp_eq_u32 s[%d:%d], 3, v%d' % (sMC, sMC + 1, I3)), P('v_lshrrev_b32 v%d, 2, v%d' % (t0, I)),
          P('v_cmp_eq_u32 s[%d:%d], v%d, v%d' % (sMD, sMD + 1, t0, Gq)))
        o(P('v_lshlrev_b32 v%d, 4, v%d' % (vCS, Gq)))
        o(P('s_lshl_b32 s%d, s%d, 17' % (sGBASE, sG)),
          P('s_lshl_b32 s52, s%d, 2' % sTH), P('s_add_u32 s%d, s52, s%d' % (sTB, sW)))
        if cfg.get('ts'):
            o(P('s_lshl_b32 s52, s2, 2'), P('s_add_u32 s52, s52, s%d' % sW), P('s_lshl_b32 s52, s52, 8'),
              P('s_add_u32 s%d, s52, %d' % (sTSO, 0x1F80000)))
        o(self.setup2())
        if cfg.get('pts') == 1:
            o(self.ts(29))
        self.xslot = {}; self.wq_q = {}; self.halo_dma = []
        for j in range(16):
            self.xslot[j] = self.x_ring_dma(j)
        for q in range(4):
            self.wq_q[q] = self.wq_rot_quarter(q)
        for a in range(4):
            if not cfg.get('rot', 0):
                self.halo_dma.append(self.dma(SRD_X, vDH, 97, a * 256, sW1K, L_HALO + a * 4096))
                continue
            self.halo_dma.append([P('s_add_u32 m0, s%d, %d' % (sW1K, L_HALO + a * 4096)), P('s_add_u32 s52, s99, s%d' % sW), P('s_add_u32 s52, s52, %d' % (4 * a)),
                                  P('s_and_b32 s52, s52, 15'), P('s_lshl_b32 s52, s52, 6'), P('s_add_u32 s52, s52, s%d' % sHSRC),
                                  VM('buffer_load_dwordx4 v%d, s[8:11], s52 offen lds' % vDH)])
        o(self.xslot[0], self.wq_q[0], self.halo_dma[0], self.xslot[1])
        if cfg.get('pts') == 1:
            o(self.ts(30))

    def setup2(self):
        I = 228; Gq = 229; RR = 230; I3 = 231; t0 = 232; t1 = 233; t2 = 234; t3 = 235; tr = 236
        o = []
        o += [P('v_and_b32 v%d, 15, v%d' % (I, vLANE)), P('v_lshrrev_b32 v%d, 4, v%d' % (Gq, vLANE)),
              P('v_lshrrev_b32 v%d, 2, v%d' % (t0, I)), P('v_lshl_add_u32 v%d, v%d, 2, v%d' % (RR, Gq, t0)),
              P('v_and_b32 v%d, 3, v%d' % (I3, I))]
        o += [P('v_lshrrev_b32 v%d, 3, v%d' % (t0, vLANE)), P('v_lshrrev_b32 v%d, 1, v%d' % (t1, t0)),
              P('v_lshrrev_b32 v%d, 1, v%d' % (t2, vLANE)), P('v_xor_b32 v%d, v%d, v%d' % (t1, t1, t2)),
              P('v_and_b32 v%d, 3, v%d' % (t1, t1)), P('v_lshlrev_b32 v%d, 5, v%d' % (t1, t1)),
              P('v_and_b32 v%d, 1, v%d' % (t2, vLANE)), P('v_lshl_add_u32 v%d, v%d, 4, v%d' % (t1, t2, t1)),
              P('v_lshl_add_u32 v%d, v%d, 10, v%d' % (vDO, t0, t1))]
        if self.cfg.get('split', 0):
            o += [P('s_and_b32 s80, s%d, 4' % sCT), P('s_lshl_b32 s80, s80, 7'), P('s_xor_b32 s81, s80, 512'),
                  P('v_add_u32 v%d, s81, v%d' % (t2, vDO)), P('v_add_u32 v%d, s80, v%d' % (vDO, vDO)),
                  P('v_and_b32 v%d, 64, v%d' % (t1, t1)), P('v_cmp_ne_u32 vcc, 0, v%d' % t1),
                  P('v_cndmask_b32 v%d, v%d, v%d, vcc' % (vDO, vDO, t2))]
        for c in range(448):
            assert (c * 4682) >> 16 == c // 14
        for u in range(7):
            o += [P('v_add_u32 v%d, %d, v%d' % (t0, 64 * u, vLANE)), P('v_mul_u32_u24 v%d, 4682, v%d' % (t1, t0)),
                  P('v_lshrrev_b32 v%d, 16, v%d' % (t1, t1)), P('v_mul_u32_u24 v%d, 14, v%d' % (t2, t1)),
                  P('v_sub_u32 v%d, v%d, v%d' % (t2, t0, t2)), P('v_lshlrev_b32 v%d, 4, v%d' % (t2, t2)),
                  P('v_mul_u32_u24 v%d, 3584, v%d' % (t1, t1)), P('v_add_u32 v%d, v%d, v%d' % (vD1 + u, t1, t2))]
        o += [P('s_lshl_b32 s80, s%d, 7' % sG), P('s_lshl_b32 s81, s%d, 5' % sW), P('s_add_u32 s80, s80, s81'), P('s_add_u32 s80, s80, s%d' % sTH),
              P('s_lshl_b32 s80, s80, 10'), P('s_lshl_b32 s81, s%d, 7' % sCT), P('s_add_u32 s61, s80, s81'),
              P('v_lshlrev_b32 v%d, 11, v%d' % (t1, I)), P('v_lshl_add_u32 v%d, v%d, 3, v%d' % (tr, Gq, t1))]
        self.tag_res = [newtag('res') for _ in range(4)]
        self.res_ops = []
        for fb in range(4):
            pre = (self.delta(55) + [P('s_add_u32 s55, s55, s61')]) if fb >= 2 else []
            self.res_ops.append(pre + [VM('buffer_load_dwordx2 v[%d:%d], v%d, s[8:11], s%d offen offset:%d' % (vR + 2 * fb, vR + 2 * fb + 1, tr, 55 if fb >= 2 else 61, fb * 32), self.tag_res[fb])])
        self.tag_b1 = newtag('b1')
        self.b1_op = [P('v_lshlrev_b32 v%d, 2, v%d' % (237, vLANE)), P('s_mul_i32 s80, s%d, 224' % sM),
                      VM('buffer_load_dword v247, v237, s[40:43], s80 offen', self.tag_b1)]
        o += [P('v_and_b32 v%d, 1, v%d' % (t2, Gq)), P('v_lshlrev_b32 v%d, 5, v%d' % (t2, t2)),
              P('v_lshrrev_b32 v%d, 1, v%d' % (t3, Gq)), P('v_lshl_add_u32 v%d, v%d, 4, v%d' % (t2, t3, t2)),
              P('v_lshl_add_u32 v%d, v%d, 11, v%d' % (vOUT, I, t2))]
        o += [P('s_mov_b32 s%d, 1.0' % sONE), P('s_mov_b32 s%d, 1.0' % (sONE + 1)),
              P('s_mov_b32 s%d, %s' % (sM2L, f32(-2 * LN2))), P('s_mov_b32 s%d, %s' % (sM2L + 1, f32(-2 * LN2))),
              P('v_mov_b32 v%d, %s' % (vLN2, f32(LN2))), P('v_mov_b32 v%d, %s' % (vLN2 + 1, f32(LN2)))]
        o += [P('v_mul_u32_u24 v%d, 224, v%d' % (t0, RR)), P('v_lshl_add_u32 v%d, v%d, 3, v%d' % (vW1A, I3, t0)),
              P('v_add_u32 v%d, 0x10000, v%d' % (vW1A + 1, vW1A)), P('v_add_u32 v%d, 0x20000, v%d' % (vW1A + 2, vW1A))]
        o += [P('v_lshlrev_b32 v%d, 7, v%d' % (t0, RR)), P('v_lshl_add_u32 v%d, v%d, 3, v%d' % (t0, I3, t0)),
              P('s_and_b32 s80, s%d, 1' % sW), P('s_lshl_b32 s80, s80, 12'), P('s_add_u32 s80, s80, %d' % L_W),
              P('v_add_u32 v%d, s80, v%d' % (t0, t0)),
              P('v_lshrrev_b32 v%d, 1, v%d' % (t1, RR)), P('v_and_b32 v%d, 3, v%d' % (t1, t1))]
        for fb in range(4):
            o += [P('v_xor_b32 v%d, %d, v%d' % (t2, fb, t1)), P('v_lshl_add_u32 v%d, v%d, 5, v%d' % (vW2A + fb * 3, t2, t0)),
                  P('v_add_u32 v%d, 0x10000, v%d' % (vW2A + fb * 3 + 1, vW2A + fb * 3)),
                  P('v_add_u32 v%d, 0x20000, v%d' % (vW2A + fb * 3 + 2, vW2A + fb * 3))]
        NEG = f32(-1e30)
        o += [P('v_mov_b32 v%d, %s' % (t3, NEG))]
        for r in range(4):
            o += [P('v_lshl_add_u32 v%d, v%d, 2, %d' % (t0, Gq, r)),
                  P('v_sub_u32 v%d, v%d, v%d' % (t1, I, t0)), P('v_cmp_gt_u32 vcc, 8, v%d' % t1),
                  P('v_cndmask_b32_e64 v%d, v%d, 0, vcc' % (vCCUR + r, t3)),
                  P('v_add_u32 v%d, 9, v%d' % (t1, I)), P('v_cmp_ge_u32 vcc, v%d, v%d' % (t0, t1)),
                  P('v_cndmask_b32_e64 v%d, v%d, 0, vcc' % (vCPREV + r, t3))]
        o += [P('s_and_b32 s80, s%d, 1' % sW), P('s_or_b32 s80, s80, s%d' % sG), P('s_cmp_eq_u32 s80, 0'), P('s_cselect_b64 vcc, -1, 0')]
        for r in range(4):
            o.append(P('v_cndmask_b32 v%d, v%d, v%d, vcc' % (vCPA + r, vCPREV + r, t3)))
        o += [P('v_lshlrev_b32 v%d, 2, v%d' % (t0, Gq)), P('v_add_u32 v%d, 6, v%d' % (t1, I)),
              P('v_cmp_ge_u32 s[%d:%d], v%d, v%d' % (sUP, sUP + 1, t0, t1))]
        o += [P('v_lshlrev_b32 v%d, 5, v%d' % (t0, I)), P('v_lshl_add_u32 v%d, v%d, 3, v%d' % (t0, Gq, t0)),
              P('s_lshl_b32 s80, s%d, 11' % sW), P('s_add_u32 s80, s80, %d' % L_EX), P('v_add_u32 v%d, s80, v%d' % (vEXV, t0))]
        o += [P('s_lshr_b32 s80, s%d, 1' % sW), P('s_add_u32 s81, s80, 3'), P('s_bitcmp1_b32 s%d, 0' % sW),
              P('s_cselect_b32 s80, s81, s80'), P('s_lshl_b32 s80, s80, 10'), P('s_add_u32 s80, s80, %d' % L_EXK),
              P('v_lshlrev_b32 v%d, 3, v%d' % (t1, vLANE)), P('v_add_u32 v%d, s80, v%d' % (vEXK, t1))]
        o += [P('s_and_b32 s80, s%d, 1' % sW), P('s_lshl_b32 s80, s80, 9'),
              P('s_add_u32 s81, s80, %d' % (L_EXK + 2048)), P('v_add_u32 v%d, s81, v%d' % (t2, t1)),
              P('s_add_u32 s81, s80, %d' % (L_EX + 8192)), P('v_add_u32 v%d, s81, v%d' % (t3, t0)),
              P('s_cmp_ge_u32 s%d, 2' % sW), P('s_cselect_b64 vcc, -1, 0'),
              P('v_cndmask_b32 v%d, v%d, v%d, vcc' % (vEXH, t2, t3))]
        o += [P('v_lshlrev_b32 v%d, 5, v%d' % (t0, RR)), P('v_lshl_add_u32 v%d, v%d, 3, v%d' % (t0, I3, t0)),
              P('s_lshl_b32 s80, s%d, 11' % sW), P('s_add_u32 s80, s80, %d' % L_EX), P('v_add_u32 v%d, s80, v%d' % (vRV, t0))]
        o += [P('v_subrev_u32 v%d, 1024, v%d' % (t1, vRV)),
              P('v_add_u32 v%d, %d, v%d' % (t2, L_EX + 8192, t0)),
              P('v_subrev_u32 v%d, 256, v%d' % (t3, t2)),
              P('v_cmp_le_u32 vcc, 8, v%d' % RR), P('v_cndmask_b32 v%d, v%d, v%d, vcc' % (t3, t2, t3)),
              P('s_cmp_eq_u32 s%d, 0' % sW), P('s_cselect_b64 vcc, -1, 0'), P('v_cndmask_b32 v%d, v%d, v%d, vcc' % (t2, t2, t3)),
              P('s_bitcmp1_b32 s%d, 0' % sW), P('s_cselect_b64 vcc, -1, 0'), P('v_cndmask_b32 v%d, v%d, v%d, vcc' % (vRVP, t2, t1))]
        o += [P('v_lshlrev_b32 v%d, 3, v%d' % (t0, vLANE)),
              P('s_lshr_b32 s80, s%d, 1' % sW), P('s_bitcmp1_b32 s%d, 0' % sW), P('s_cselect_b32 s80, s80, 2'),
              P('s_lshl_b32 s80, s80, 10'), P('s_add_u32 s80, s80, %d' % L_EXK), P('v_add_u32 v%d, s80, v%d' % (t0, t0)),
              P('v_subrev_u32 v%d, 64, v%d' % (t1, t0)), P('v_cmp_le_u32 vcc, 8, v%d' % I),
              P('v_cndmask_b32 v%d, v%d, v%d, vcc' % (t1, t0, t1)),
              P('s_cmp_eq_u32 s%d, 0' % sW), P('s_cselect_b64 vcc, -1, 0'), P('v_cndmask_b32 v%d, v%d, v%d, vcc' % (vRK, t0, t1))]
        o += [P('s_lshl_b32 s80, s%d, 12' % sW), P('v_add_u32 v%d, s80, v%d' % (vEXBW, vL16)),
              P('v_xor_b32 v%d, 0x1000, v%d' % (vEXBR, vEXBW))]
        o += [P('s_lshr_b32 s80, s%d, 1' % sCT), P('s_lshl_b32 s80, s80, 8'), P('s_and_b32 s81, s%d, 1' % sCT),
              P('s_lshl_b32 s81, s81, 3'), P('s_add_u32 s80, s80, s81'),
              P('v_lshlrev_b32 v%d, 4, v%d' % (t0, I)), P('v_add_u32 v%d, s80, v%d' % (vSTO, t0))]
        o += [P('s_cmp_eq_u32 s%d, 0' % sTH), P('s_cselect_b32 s81, 8, 0'),
              P('v_subrev_u32 v%d, s81, v%d' % (t0, I)),
              P('v_lshl_add_u32 v%d, v%d, 4, v%d' % (t1, Gq, t0)), P('v_lshlrev_b32 v%d, 4, v%d' % (t1, t1)),
              P('v_lshlrev_b32 v%d, 4, v%d' % (t2, t0)), P('v_add_u32 v%d, s80, v%d' % (t2, t2)),
              P('s_cmp_eq_u32 s%d, 3' % sW), P('s_cselect_b32 s80, 0, 0x40000000'),
              P('s_cmp_eq_u32 s%d, 15' % sG), P('s_cselect_b32 s80, 0x40000000, s80'),
              P('v_mov_b32 v%d, 0x40000000' % t3), P('v_cmp_le_u32 vcc, 8, v%d' % I),
              P('v_cndmask_b32 v%d, v%d, v%d, vcc' % (t1, t3, t1)), P('v_cndmask_b32 v%d, v%d, v%d, vcc' % (t2, t3, t2)),
              P('v_or_b32 v%d, s80, v%d' % (vHOF, t1)), P('v_or_b32 v%d, s80, v%d' % (vHST, t2))]
        return o

    def wq_stash(self):
        o = [P('s_lshl_b32 s53, s%d, 10' % sW), P('s_add_u32 s53, s53, %d' % L_W), P('v_add_u32 v%d, s53, v%d' % (vTA, vL16)),
             P('v_add_u32 v%d, 0x10000, v%d' % (vTB, vTA))]
        for p in range(12):
            for c in range(2):
                a = p * 8192 + c * 4096
                o.append(LG('ds_read_b128 %s, v%d offset:%d' % (ar(aWQ + (2 * p + c) * 4, 4), vTA if a < 65536 else vTB, a & 0xffff)))
        return o

    def wo_stash(self):
        sk = self.L('wos')
        o = [P('s_cmp_lg_u32 s%d, 0' % sRND), P('s_cbranch_scc1 %s' % sk),
             P('s_lshl_b32 s53, s%d, 10' % sW), P('s_add_u32 s53, s53, %d' % L_W), P('v_add_u32 v%d, s53, v%d' % (vTA, vL16))]
        for c in range(16):
            o.append(P('ds_read_b128 %s, v%d offset:%d' % (ar(aWO + 4 * c, 4), vTA, c * 4096)))
        o += [P('s_waitcnt lgkmcnt(0)'), LAB(sk)]
        return o

    def p1_epi_fill(self):
        out = []
        wo = [self.dma_wo_slot(SRD_WO, 8, t, kh, t) for t in range(8) for kh in range(2)]
        a0 = self.dma_w1_group(0)
        gs = self.cfg.get('fill_g', 4)
        a0groups = [a0[0:2], a0[2:4], a0[4:6], a0[6:7]]
        for c0 in range(0, 16, gs):
            sk = self.L('wr1')
            e = [P('s_cmp_lg_u32 s%d, 0' % sRND), P('s_cbranch_scc1 %s ;nopad' % sk)]
            for c in range(c0, c0 + gs):
                e += [P(x.text) for x in wo[c]]
            e += [LAB(sk)]
            out.append(e)
        res = []
        for k, e in enumerate(out):
            res.append(e)
            n_a = 4 // len(out) if len(out) <= 4 else (1 if k % (len(out) // 4) == 0 else 0)
            for q in range(n_a):
                if a0groups:
                    sk = self.L('wr2')
                    blk = [P('s_cmp_eq_u32 s%d, 0' % sRND), P('s_cbranch_scc1 %s ;nopad' % sk)]
                    for d in a0groups.pop(0):
                        blk += [P(x.text) for x in d]
                    res.append(blk + [LAB(sk)])
        out = res
        return out

    def wo_restore(self):
        sk = self.L('wor')
        o = [P('s_cmp_eq_u32 s%d, 0' % sRND), P('s_cbranch_scc1 %s' % sk)]
        for c in range(16):
            o.append(P('ds_write_b128 v%d, %s offset:%d' % (vWOA, ar(aWO + 4 * c, 4), c * 4096)))
        return o + [LAB(sk)]

    def wq_restore(self, positions, va, vb):
        o = []
        for p in positions:
            for c in range(2):
                a = p * 8192 + c * 4096
                o.append([P('s_mov_b64 exec, s[74:75]'),
                          LG('ds_write_b128 v%d, %s offset:%d' % (va if a < 65536 else vb, ar(aWQ + (2 * p + c) * 4, 4), a & 0xffff)),
                          P('s_mov_b64 exec, -1')])
        return o

    def x_ring_dma(self, j):
        if not self.cfg.get('rot', 0):
            return [self.dma(SRD_X, vDX, sXR0 + b, j * 64, sD, L_RING + (j % 5) * 8192 + b * 1024) for b in range(2)]
        out = []
        for b in range(2):
            ops = [P('s_add_u32 m0, s%d, %d' % (sD, L_RING + (j % 5) * 8192 + b * 1024)),
                   P('s_add_u32 s52, s99, %d' % j), P('s_and_b32 s52, s52, 15'), P('s_lshl_b32 s52, s52, 6'),
                   P('s_add_u32 s52, s52, s%d' % (sXR0 + b)),
                   VM('buffer_load_dwordx4 v%d, s[8:11], s52 offen lds' % vDX)]
            out.append(ops)
        return out

    def wq_rot_quarter(self, qd):
        if not self.cfg.get('rot', 0):
            return self.dma_wq_quarter(qd)
        out = []
        for a in range(2):
            for p in range(3):
                rg = 8 * qd + 4 * a
                out.append([P('s_add_u32 m0, s%d, %d' % (sW1K, L_W + p * 32768 + rg * 1024)),
                            P('s_add_u32 s52, s98, %d' % rg), P('s_and_b32 s52, s52, 31'), P('s_mul_i32 s52, s52, 49152'),
                            P('s_add_u32 s52, s52, s95'), P('s_add_u32 s52, s52, %d' % (p * 1024)),
                            VM('buffer_load_dwordx4 v%d, s[12:15], s52 offen lds' % vDQ)])
        return out

    @staticmethod
    def vmtags(ops):
        t = []
        for x in ops:
            if isinstance(x, (list, tuple)):
                t += Gen.vmtags(x)
            elif x is not None and not isinstance(x, str) and x.kind == 'vm':
                t.append(x.tag)
        return t

    def finish_stats(self, s1, s2, pair_kv, pair_q=None, scale=None):
        t = vT + 80
        o = [P('v_mul_f32 v%d, %s, v%d' % (t, f32(1 / 512), s1)),
             P('v_mul_f32 v%d, %s, v%d' % (t + 1, f32(1 / 512), s2)),
             P('v_fma_f32 v%d, -v%d, v%d, v%d' % (t + 1, t, t, t + 1)),
             P('v_max_f32 v%d, 0, v%d' % (t + 1, t + 1)),
             P('v_add_f32 v%d, %s, v%d' % (t + 1, f32(1e-5), t + 1)),
             P('v_rsq_f32 v%d, v%d' % (pair_kv, t + 1))]
        if scale is not None:
            o.append(P('v_mul_f32 v%d, %s, v%d' % (pair_kv, f32(scale), pair_kv)))
        o.append(P('v_mul_f32 v%d, -v%d, v%d' % (pair_kv + 1, t, pair_kv)))
        if pair_q is not None:
            qs = f32(0.25 * LOG2E)
            o += [P('v_mul_f32 v%d, %s, v%d' % (pair_q, qs, pair_kv)), P('v_mul_f32 v%d, %s, v%d' % (pair_q + 1, qs, pair_kv + 1))]
        return o

    def reduce_g2(self, a, b):
        t = vT + 84
        return [P('v_permlane32_swap_b32 v%d, v%d' % (a, b)), P('v_add_f32 v%d, v%d, v%d' % (a, a, b)),
                P('v_mov_b32 v%d, v%d' % (t, a)), P('v_permlane16_swap_b32 v%d, v%d' % (a, t)),
                P('v_add_f32 v%d, v%d, v%d' % (a, a, t)), P('v_mov_b32 v%d, v%d' % (b, a)),
                P('v_permlane32_swap_b32 v%d, v%d' % (a, b))]

    def stats_from_st(self, regs, pair_kv, pair_q=None, scale=None):
        return [P('v_add_f32 v%d, v%d, v%d' % (regs, regs, regs + 2)), P('v_add_f32 v%d, v%d, v%d' % (regs + 1, regs + 1, regs + 3))] + \
            self.reduce_g2(regs, regs + 1) + self.finish_stats(regs, regs + 1, pair_kv, pair_q, scale)

    def accP1(self, blk, tb):
        return vACC + (blk * 2 + tb) * 4
    ACC_H = vACC + 48
    ACC_CS1 = vACC + 52
    ACC_CS2 = vACC + 56
    PKV = [vT + 0, vT + 2]; PQ = [vT + 4, vT + 6]; PH = vT + 8

    def wq_read(self, blk, j, part, dst):
        p = blk // 2; h = blk % 2
        if p < 2:
            return LG('ds_read_b64_tr_b16 v[%d:%d], v%d offset:%d' % (dst + 2 * part, dst + 2 * part + 1, vWQA + h, p * 32768 + j * 2048 + part * 1024))
        return LG('ds_read_b64_tr_b16 v[%d:%d], v%d offset:%d' % (dst + 2 * part, dst + 2 * part + 1, vWQA + 2 + h, j * 2048 + part * 1024))

    def p1a(self):
        o = self.add
        XB = vT + 12
        S1 = vT + 36
        S2 = vT + 48
        def xb(j, b): return XB + (j & 1) * 12 + b * 4
        xr_tags = {}
        def xreads(j):
            ops = []
            for b in range(2):
                ops.append(LG('ds_read_b64 v[%d:%d], v%d offset:%d' % (xb(j, b), xb(j, b) + 1, vXA, (j % 5) * 8192 + b * 1024)))
                ops.append(LG('ds_read_b64 v[%d:%d], v%d offset:%d' % (xb(j, b) + 2, xb(j, b) + 3, vXB, (j % 5) * 8192 + b * 1024)))
            ops.append(LG('ds_read_b64 v[%d:%d], v%d offset:%d' % (xb(j, 2), xb(j, 2) + 1, vHXA, j * 1024)))
            ops.append(LG('ds_read_b64 v[%d:%d], v%d offset:%d' % (xb(j, 2) + 2, xb(j, 2) + 3, vHXB, j * 1024)))
            xr_tags[j] = [x.tag for x in ops]
            return ops
        groups = []
        n = 0
        extras = []
        mfidx = 0
        first_idx = {}
        for j in range(16):
            first_idx[j] = mfidx
            z = (j == 0)
            for blk in range(8):
                dst = self.afrag(n); n += 1
                g = dict(pre=[], reads=[], mf=[])
                if blk == 0:
                    if j % 4 == 0:
                        q = j // 4
                        wt = self.vmtags(self.wq_q[q]) + self.vmtags(self.halo_dma[q])
                        g['pre'] += [W(wt), P('s_barrier')] if not (self.cfg.get('x_nobar') and q > 0) else []
                    if not self.cfg.get('x_nowait'):
                        g['pre'] += [W(self.vmtags(self.xslot[j]))]
                    g['reads'] += xreads(j)
                if blk < 6:
                    g['reads'] += [self.wq_read(blk, j, 0, dst), self.wq_read(blk, j, 1, dst)]
                    for tb in range(2):
                        acc = self.accP1(blk, tb)
                        c = '0' if z else vr(acc, 4)
                        g['mf'].append(('v_mfma_f32_16x16x32_bf16 %s, %s, %s, %s' % (vr(acc, 4), vr(dst, 4), vr(xb(j, tb), 4), c), []))
                    if blk in (1, 3, 5) and not self.cfg.get('x_nostat'):
                        b = blk // 2
                        for (accb, A) in ((S1 + b * 4, vONES), (S2 + b * 4, xb(j, b))):
                            c = '0' if z else vr(accb, 4)
                            g['mf'].append(('v_mfma_f32_16x16x32_bf16 %s, %s, %s, %s' % (vr(accb, 4), vr(A, 4), vr(xb(j, b), 4), c), []))
                else:
                    base = vE1 if blk == 6 else vE2
                    g['reads'] += [LG('ds_read_b64_tr_b16 v[%d:%d], v%d offset:%d' % (dst + 2 * part, dst + 2 * part + 1, base, j * 2048 + part * 1024)) for part in range(2)]
                    if blk == 6:
                        c = '0' if z else vr(self.ACC_H, 4)
                        g['mf'].append(('v_mfma_f32_16x16x32_bf16 %s, %s, %s, %s' % (vr(self.ACC_H, 4), vr(dst, 4), vr(xb(j, 2), 4), c), []))
                        c = '0' if z else vr(self.ACC_CS1, 4)
                        g['mf'].append(('v_mfma_f32_16x16x32_bf16 %s, %s, %s, %s' % (vr(self.ACC_CS1, 4), vr(dst, 4), vr(vONES, 4), c), []))
                    else:
                        c = '0' if z else vr(self.ACC_CS2, 4)
                        g['mf'].append(('v_mfma_f32_16x16x32_bf16 %s, %s, %s, %s' % (vr(self.ACC_CS2, 4), vr(dst, 4), vr(vONES, 4), c), []))
                mfidx += len(g['mf'])
                groups.append(g)
        def at(k, i):
            return first_idx[k] + i
        seq = []
        seq += [(at(0, 0), self.xslot[2][0]), (at(0, 2), self.xslot[2][1])]
        q1 = self.wq_q[1]
        seq += [(at(0, 5), q1[0]), (at(0, 8), q1[1]), (at(0, 11), q1[2]), (at(0, 14), self.xslot[3][0]), (at(0, 16), self.xslot[3][1]),
                (at(0, 19), self.tq(2)), (at(1, 1), q1[3]), (at(1, 4), q1[4]), (at(1, 7), q1[5]), (at(1, 10), self.halo_dma[1]),
                (at(1, 13), self.xslot[4][0]), (at(1, 15), self.xslot[4][1]), (at(1, 18), self.tq(3))]
        for j in range(11):
            for b, d in enumerate(self.xslot[j + 5]):
                seq.append((max(at(j, 2 + 2 * b), at(2, 0) + 2 * b + (j * 4 if j < 2 else 0)), d))
        q2k = self.cfg.get('q2k', 3); q3k = self.cfg.get('q3k', 7)
        for k, d in enumerate(self.wq_q[2] + [self.halo_dma[2]]):
            seq.append((at(q2k + k // 2, 8 + 5 * (k % 2)), d))
        for k, d in enumerate(self.wq_q[3] + [self.halo_dma[3]]):
            seq.append((at(q3k + k // 2, 8 + 5 * (k % 2)), d))
        extras += seq
        reg = [W(self.tag_init),
               P('s_mul_i32 s53, s%d, s%d' % (sXCC, sXCC)), P('s_lshl_b32 s53, s53, 13'), P('s_lshl_b32 s54, s%d, 5' % sXCC),
               P('s_add_u32 s53, s53, s54'), P('s_add_u32 s53, s53, 1'), P('v_mov_b32 v%d, s53' % vTA),
               P('s_lshr_b32 s53, s%d, 1' % sG), P('s_lshl_b32 s53, s53, 5'), P('s_and_b32 s54, s%d, 1' % sG),
               P('s_lshl_b32 s54, s54, 2'), P('s_add_u32 s54, s53, s54'), P('v_mov_b32 v%d, s54' % vTB),
               P('s_cmp_eq_u32 s%d, 0' % sW), P('s_cselect_b32 s53, 0, 0x40000000'),
               P('v_or_b32 v%d, s53, v%d' % (vTB, vTB)),
               P('s_mov_b64 exec, 1'),
               VM('buffer_atomic_add v%d, v%d, s[36:39], 0 offen' % (vTA, vTB)),
               P('s_mov_b64 exec, -1')]
        extras.append((first_idx[4] + 3, reg))
        groups[8 * 4]['pre'] = [W(self.tag_init)] + groups[8 * 4]['pre']
        if self.cfg.get('t_mall', 0) >= 4:
            extras.append((first_idx[self.cfg.get('t_mall')] + 4, self.touch_mall()))
        for k, x in enumerate(self.res_ops):
            extras.append((first_idx[11] + 3 + 3 * k, x))
        extras.append((first_idx[11] + 16, self.b1_op))
        extras.append((first_idx[8] + 9, self.mode_load()))
        extras.append((first_idx[11] + 1, self.mode_check()))
        tset = self.touch_set(self.cfg.get('t_p1a', 'of,xf'))
        k0 = self.cfg.get('t_p1a_k', 11)
        post = []
        for k, t in enumerate(tset):
            if k0 + k < 16:
                extras.append((first_idx[k0 + k] + 5, t))
            else:
                post.append(t)
        extras += self.sched_touches('p1a', first_idx)
        if self.cfg.get('code_staged', 1) and self.cfg.get('t_code', 1):
            extras.append((first_idx[self.cfg.get('code_k1', 10)] + 12, self.touch_code('L_C2', 'L_C4', 50)))
        if self.cfg.get('pts') == 2:
            for k, slot in ((1, 14), (4, 15), (8, 29), (12, 30)):
                extras.append((first_idx[k] - 1, self.ts(slot)))
        if self.cfg.get('pts') == 3:
            for k in range(16):
                extras.append((first_idx[k], self.ts(32 + k)))
        o(self.gemm_loop(groups, self.cfg.get('la_p1a', 3), extras))
        for t in post:
            o(t)
        t0 = 252; t1 = 253
        o(W(self.tag_b1), P('v_lshlrev_b32 v%d, 16, v247' % t0), P('v_and_b32 v%d, 0xffff0000, v247' % t1),
          P('v_mul_f32 v%d, %s, v%d' % (t0, f32(LOG2E), t0)), P('v_mul_f32 v%d, %s, v%d' % (t1, f32(LOG2E), t1)),
          P('v_lshlrev_b32 v%d, 3, v%d' % (vTA, vLANE)),
          P('s_mov_b32 exec_hi, 0x00ffffff'),
          LG('ds_write_b64 v%d, v[%d:%d] offset:%d' % (vTA, t0, t1, L_BB1)),
          P('s_mov_b64 exec, -1'))
        o(P('s_add_u32 s53, s%d, 2' % sW), P('s_lshl_b32 s53, s53, 6'), P('v_add_u32 v%d, s53, v%d' % (vTA, vCS)),
          P('s_and_b32 s53, s%d, 1' % sW), P('s_lshl_b32 s53, s53, 6'), P('v_add_u32 v%d, s53, v%d' % (vTB, vCS)),
          P('s_mov_b32 s52, 0x00010001'), P('s_mov_b32 s53, 0x00010001'), P('s_mov_b64 exec, s[52:53]'),
          LG('ds_write_b128 v%d, %s offset:%d' % (vTA, vr(self.ACC_CS1, 4), L_CSQ)),
          LG('ds_write_b128 v%d, %s offset:%d' % (vTB, vr(self.ACC_CS2, 4), L_CSQ)),
          P('s_mov_b64 exec, -1'))
        for b in range(3):
            s2 = S2 + b * 4
            o(P('v_cndmask_b32_e64 v%d, v%d, v%d, s[%d:%d]' % (s2, s2, s2 + 1, sMA, sMA + 1)),
              P('v_cndmask_b32_e64 v%d, v%d, v%d, s[%d:%d]' % (s2, s2, s2 + 2, sMB, sMB + 1)),
              P('v_cndmask_b32_e64 v%d, v%d, v%d, s[%d:%d]' % (s2, s2, s2 + 3, sMC, sMC + 1)),
              P('v_cndmask_b32_e64 v%d, 0, v%d, s[%d:%d]' % (s2, s2, sMD, sMD + 1)))
            t = s2 + 1
            o(P('v_mov_b32 v%d, v%d' % (t, s2)), P('v_permlane32_swap_b32 v%d, v%d' % (s2, t)),
              P('v_add_f32 v%d, v%d, v%d' % (s2, s2, t)), P('v_mov_b32 v%d, v%d' % (t, s2)),
              P('v_permlane16_swap_b32 v%d, v%d' % (s2, t)), P('v_add_f32 v%d, v%d, v%d' % (s2, s2, t)))
            if b < 2:
                o(self.finish_stats(S1 + b * 4, s2, self.PKV[b], self.PQ[b]))
            else:
                o(self.finish_stats(S1 + b * 4, s2, self.PH))
        o(P('s_mov_b32 s72, s50'), P('s_mov_b32 s73, s51'))
        o(WALL(False, True), P('s_barrier'))

    def p1b(self):
        o = self.add
        cfg = self.cfg
        for b in range(2):
            o(P('s_lshl_b32 s53, s%d, 1' % sW), P('s_add_u32 s53, s53, %d' % b), P('s_lshl_b32 s53, s53, 14'),
              P('s_add_u32 s%d, s53, s%d' % (sB0 + b, sX2)))
        xl = self.x_loads(16, depth=XD)
        pro = cfg.get('x_pro', 4)
        for j in range(pro):
            o(xl[j])
        stt = []
        STR = vT + 12
        for b in range(2):
            t = newtag('st'); stt.append(t)
            o(P('s_lshl_b32 s54, s%d, 11' % sW), P('s_add_u32 s53, s54, s%d' % sS2),
              P('s_add_u32 s53, s53, %d' % (b * 1024)),
              VM('buffer_load_dwordx4 %s, v%d, s[28:31], s53 offen sc1' % (vr(STR + 4 * b, 4), vL16), t))
        groups = []; n = 0; first_idx = {}; mfidx = 0
        for j in range(16):
            first_idx[j] = mfidx
            for blk in range(6):
                dst = self.afrag(n); n += 1
                g = dict(pre=[], reads=[self.wq_read(blk, j, 0, dst), self.wq_read(blk, j, 1, dst)], mf=[])
                for tb in range(2):
                    acc = self.accP1(blk, tb)
                    c = '0' if j == 0 else vr(acc, 4)
                    wt = self.vmtags(xl[j][tb]) if blk == 0 else []
                    g['mf'].append(('v_mfma_f32_16x16x32_bf16 %s, %s, %s, %s' % (vr(acc, 4), vr(dst, 4), ar(((j % XD) * 2 + tb) * 4, 4), c), wt))
                mfidx += 2
                groups.append(g)
        extras = self.x_sched(xl, 16, pro, first_idx, 12, XD, cfg.get('x_rate', 4))
        lastx = extras[-1][0]
        hp = [W(self.halo_store_tags), P('v_mov_b32 v%d, 1' % vTA),
              P('s_cmp_eq_u32 s%d, 3' % sW), P('s_cselect_b32 s53, 0, 0x40000000'),
              P('s_cmp_eq_u32 s%d, 15' % sG), P('s_cselect_b32 s53, 0x40000000, s53'),
              P('s_add_u32 s54, s%d, 1' % sG), P('s_lshr_b32 s52, s54, 1'), P('s_lshl_b32 s52, s52, 5'),
              P('s_and_b32 s54, s54, 1'), P('s_lshl_b32 s54, s54, 2'), P('s_add_u32 s52, s52, s54'),
              P('s_add_u32 s52, s52, 8'), P('s_or_b32 s53, s53, s52'),
              P('v_mov_b32 v%d, s53' % vTB),
              P('s_mov_b64 exec, 1'),
              VM('buffer_atomic_add v%d, v%d, s[36:39], 0 offen' % (vTA, vTB)),
              P('s_mov_b64 exec, -1')]
        extras.append((first_idx[0] + 6, hp))
        st_ops = [W(stt)]
        for b in range(2):
            st_ops += self.stats_from_st(STR + 4 * b, self.PKV[b], self.PQ[b])
        extras += self.spread(st_ops, first_idx[2] + 2, 1)
        HS = vT + 56
        HC = vT + 60; HZ = vT + 61
        spin = self.L('hsp'); hok = self.L('hok')
        tagc = newtag('hc'); htags = [newtag('h') for _ in range(17)]
        hk0 = cfg.get('halo_k0', 7); hk1 = cfg.get('halo_k', 10)
        h0 = [P('v_mov_b32 v%d, 0' % HZ),
              P('s_lshr_b32 s54, s%d, 1' % sG), P('s_lshl_b32 s54, s54, 5'), P('s_and_b32 s53, s%d, 1' % sG),
              P('s_lshl_b32 s53, s53, 2'), P('s_add_u32 s54, s54, s53'), P('s_add_u32 s%d, s54, 8' % sA),
              VM('buffer_load_dword v%d, v%d, s[36:39], s%d offen sc1' % (HC, HZ, sA), tagc)]
        extras.append((max(first_idx[hk0], lastx + 1), h0))
        hl = [W(tagc), P('s_mov_b32 s%d, 0' % sTMO),
              P('s_cmp_eq_u32 s%d, 0' % sG), P('s_cbranch_scc1 %s' % hok),
              LAB(spin),
              P('v_cmp_ne_u32 vcc, 16, v%d' % HC),
              P('s_cbranch_vccz %s' % hok),
              P('buffer_load_dword v%d, v%d, s[36:39], s%d offen sc1' % (HC, HZ, sA)),
              P('s_add_u32 s%d, s%d, 1' % (sTMO, sTMO)),
              P('s_waitcnt vmcnt(0)'),
              P('s_cmp_lt_u32 s%d, 0x100000' % sTMO), P('s_cbranch_scc1 %s' % spin),
              P('s_endpgm'),
              LAB(hok),
              P('s_cmp_eq_u32 s%d, 0' % sG), P('s_cselect_b32 s53, 0x40000000, 0'),
              P('v_or_b32 v%d, s53, v%d' % (HZ, vL16)),
              P('s_lshl_b32 s53, s%d, 10' % sG), P('s_add_u32 s53, s53, %d' % WS_HST),
              VM('buffer_load_dwordx4 %s, v%d, s[28:31], s53 offen sc1' % (vr(HS, 4), HZ), htags[16]),
              P('s_lshl_b32 s53, s%d, 14' % sG), P('s_lshl_b32 s54, s%d, 12' % sW), P('s_add_u32 s53, s53, s54'),
              P('s_add_u32 s%d, s53, %d' % (sA, WS_HF))]
        HB = vT + 40
        for j in range(4):
            hl.append(VM('buffer_load_dwordx4 %s, v%d, s[28:31], s%d offen offset:%d sc1' % (vr(HB + 4 * j, 4), HZ, sA, j * 1024), htags[j]))
        extras.append((max(first_idx[hk1], lastx + 2), hl))
        for k, d in enumerate(self.dma_w1_group(1)):
            extras.append((max(first_idx[hk1], lastx + 2) + 2 + cfg.get('a0_step', 3) * k, d))
        hw = [W(htags[:4]), P('s_lshl_b32 s53, s%d, 12' % sW), P('s_add_u32 s53, s53, %d' % L_HS), P('v_add_u32 v%d, s53, v%d' % (HC, vL16))]
        for j in range(4):
            hw.append(LG('ds_write_b128 v%d, %s offset:%d' % (HC, vr(HB + 4 * j, 4), j * 1024)))
        extras += self.spread(hw, first_idx[15] + 1, 2)
        for k, t in enumerate(self.touch_set(cfg.get('t_p1b', ''))):
            extras.append((first_idx[hk1] + 34 + 6 * k, t))
        extras += self.spread([W(htags[16])] + self.stats_from_st(HS, self.PH), first_idx[15] - 14, 1)
        extras += self.sched_touches('p1b', first_idx)
        o(self.gemm_loop(groups, cfg.get('la', 3), extras))
        o(WALL(False, True), P('s_barrier'), P('v_add_u32 v%d, %d, v%d' % (HC, L_HS, vL16)))
        groups = []
        for j in range(16):
            dst = self.afrag(j); xb = vT + 12 + (j % 6) * 4
            g = dict(pre=[], reads=[LG('ds_read_b128 %s, v%d offset:%d' % (vr(xb, 4), HC, j * 1024))] +
                     [LG('ds_read_b64_tr_b16 v[%d:%d], v%d offset:%d' % (dst + 2 * part, dst + 2 * part + 1, vE1, j * 2048 + part * 1024)) for part in range(2)], mf=[])
            c = '0' if j == 0 else vr(self.ACC_H, 4)
            g['mf'].append(('v_mfma_f32_16x16x32_bf16 %s, %s, %s, %s' % (vr(self.ACC_H, 4), vr(dst, 4), vr(xb, 4), c), []))
            groups.append(g)
        o(self.gemm_loop(groups, 4, []))
        o(P('s_barrier'))

    def x_sched(self, xl, nk, pro, first_idx, nmf, depth, rate):
        extras = []; k = 0; last = -1
        for j in range(pro, nk):
            for b in range(2):
                if j < depth:
                    at = first_idx[k // rate] + 1 + (nmf // rate) * (k % rate); k += 1
                else:
                    at = first_idx[j - depth] + nmf - 1 + b
                at = max(at, last + 1)
                extras.append((at, xl[j][b])); last = at
        return extras

    def x_loads(self, nk, ring=None, depth=None):
        xl = []
        for j in range(nk):
            row = []
            for b in range(2):
                slot = j if depth is None else j % depth
                ops = []
                if j % 4 == 0:
                    ops.append(P('s_add_u32 s%d, s%d, %d' % (sXL0 + b, sB0 + b, j * 1024)))
                if self.cfg.get('noxl'):
                    ops.append(P('s_nop 0'))
                else:
                    ops.append(VM('buffer_load_dwordx4 %s, v%d, s[28:31], s%d offen offset:%d%s' % (ar((slot * 2 + b) * 4, 4), vL16, sXL0 + b, (j % 4) * 1024, '' if self.cfg.get('plainld') else ' sc1')))
                row.append(ops)
            xl.append(row)
        return xl

    def dual_store(self, stores):
        pure = self.L('stp'); done = self.L('std')
        o = [P('s_cmp_eq_u32 s%d, 0' % sMODE), P('s_cbranch_scc1 %s' % pure)]
        o += [P(s + ' sc1') for s in stores]
        o += [P('s_branch %s' % done), LAB(pure)]
        o += [P(s) for s in stores]
        o += [LAB(done)]
        cnt = [VM('; counted store') for _ in stores]
        return o + cnt, [c.tag for c in cnt]

    def p1_epi(self, dmas):
        o = []
        CS = vT + 12
        CSH = vT + 36
        Q = vT + 40
        K = vT + 48
        V = vT + 56
        HP = vT + 64
        TT = vT + 66
        cst = []
        for b in range(6):
            x = LG('ds_read_b128 %s, v%d offset:%d' % (vr(CS + 4 * b, 4), vCS, L_CSQ + b * 64)); cst.append(x.tag); o.append(x)
        o += [P('s_add_u32 s53, s%d, 2' % sW), P('s_lshl_b32 s53, s53, 6'), P('v_add_u32 v%d, s53, v%d' % (TT, vCS))]
        x = LG('ds_read_b128 %s, v%d offset:%d' % (vr(CSH, 4), TT, L_CSQ)); csh = x.tag; o.append(x)

        def ln(acc, cs, pair, dst):
            r = []
            for hh in range(2):
                t = TT + 2 * hh
                r.append(P('v_pk_mul_f32 %s, %s, %s op_sel:[0,1] op_sel_hi:[1,1]' % (vr(t, 2), vr(cs + 2 * hh, 2), vr(pair, 2))))
            for hh in range(2):
                t = TT + 2 * hh
                r.append(P('v_pk_fma_f32 %s, %s, %s, %s op_sel_hi:[1,0,1]' % (vr(t, 2), vr(acc + 2 * hh, 2), vr(pair, 2), vr(t, 2))))
            for hh in range(2):
                t = TT + 2 * hh
                r.append(P('v_cvt_pk_bf16_f32 v%d, v%d, v%d' % (dst + hh, t, t + 1)))
            return r
        wtags = []
        for blk in (4, 5, 2, 3, 0, 1):
            o.append(W(cst[blk]))
            for tb in range(2):
                h = blk % 2
                dst = (Q, K, V)[blk // 2] + (tb * 2 + h) * 2
                pair = self.PQ[tb] if blk < 2 else self.PKV[tb]
                o += ln(self.accP1(blk, tb), CS + 4 * blk, pair, dst)
                if blk >= 4:
                    x = LG('ds_write_b64 v%d, %s offset:%d' % (vEXV, vr(dst, 2), tb * 1024 + h * 512)); o.append(x)
                elif blk >= 2 and tb == 1:
                    x = LG('ds_write_b64 v%d, %s offset:%d' % (vEXK, vr(dst, 2), h * 512)); o.append(x)
            if blk == 3:
                o.append(W(csh))
                o += ln(self.ACC_H, CSH, self.PH, HP)
                o.append(LG('ds_write_b64 v%d, %s' % (vEXH, vr(HP, 2))))
        o += [WALL(False, True), P('s_barrier')]
        KP = vT + 70
        VV = vT + 12
        SC = vACC
        SP = vACC + 16
        PB = vACC + 32
        LL = vT + 24
        OO = vACC + 48
        MX = vT + 74
        rk = []; rv = []
        for h in range(2):
            x = LG('ds_read_b64 %s, v%d offset:%d' % (vr(KP + 2 * h, 2), vRK, h * 512)); rk.append(x.tag); o.append(x)
        for h in range(2):
            x = LG('ds_read_b64_tr_b16 %s, v%d offset:%d' % (vr(VV + 6 * h, 2), vRVP, h * 512)); rv.append(x.tag); o.append(x)
            for tb in range(2):
                x = LG('ds_read_b64_tr_b16 %s, v%d offset:%d' % (vr(VV + 6 * h + 2 + 2 * tb, 2), vRV, tb * 1024 + h * 512)); rv.append(x.tag); o.append(x)
        insts = [(tb, h) for tb in range(2) for h in range(2)]
        for n, (tb, h) in enumerate(insts):
            q = Q + (tb * 2 + h) * 2
            o.append(P('v_mfma_f32_16x16x16_bf16 %s, %s, %s, %s' % (vr(SC + 4 * n, 4), vr(K + (tb * 2 + h) * 2, 2), vr(q, 2), vr(vCCUR, 4))))
        for n, (tb, h) in enumerate(insts):
            q = Q + (tb * 2 + h) * 2
            if tb == 0:
                o.append(W(rk[h]))
                o.append(P('v_mfma_f32_16x16x16_bf16 %s, %s, %s, %s' % (vr(SP + 4 * n, 4), vr(KP + 2 * h, 2), vr(q, 2), vr(vCPA, 4))))
            else:
                o.append(P('v_mfma_f32_16x16x16_bf16 %s, %s, %s, %s' % (vr(SP + 4 * n, 4), vr(K + h * 2, 2), vr(q, 2), vr(vCPREV, 4))))
        for n in range(4):
            for r in range(4):
                o.append(P('v_max_f32 v%d, v%d, v%d' % (SC + 4 * n + r, SC + 4 * n + r, SP + 4 * n + r)))
        for n in range(4):
            o.append(P('v_max3_f32 v%d, v%d, v%d, v%d' % (MX + n, SC + 4 * n, SC + 4 * n + 1, SC + 4 * n + 2)))
        for n in range(4):
            o.append(P('v_max_f32 v%d, v%d, v%d' % (MX + n, MX + n, SC + 4 * n + 3)))
        a, b, c, d = MX, MX + 1, MX + 2, MX + 3
        o += [P('v_permlane32_swap_b32 v%d, v%d' % (a, b)), P('v_permlane32_swap_b32 v%d, v%d' % (c, d)),
              P('v_max_f32 v%d, v%d, v%d' % (a, a, b)), P('v_max_f32 v%d, v%d, v%d' % (c, c, d)),
              P('v_permlane16_swap_b32 v%d, v%d' % (a, c)), P('v_max_f32 v%d, v%d, v%d' % (a, a, c)),
              P('v_mov_b32 v%d, v%d' % (c, a)), P('v_permlane16_swap_b32 v%d, v%d' % (a, c)),
              P('v_mov_b32 v%d, v%d' % (b, a)), P('v_mov_b32 v%d, v%d' % (d, c)),
              P('v_permlane32_swap_b32 v%d, v%d' % (a, b)), P('v_permlane32_swap_b32 v%d, v%d' % (c, d))]
        for n in range(4):
            for hh in range(2):
                o.append(P('v_sub_f32 v%d, v%d, v%d' % (SC + 4 * n + 2 * hh, SC + 4 * n + 2 * hh, MX + n)))
                o.append(P('v_sub_f32 v%d, v%d, v%d' % (SC + 4 * n + 2 * hh + 1, SC + 4 * n + 2 * hh + 1, MX + n)))
        for n in range(4):
            for r in range(4):
                o.append(P('v_exp_f32 v%d, v%d' % (SC + 4 * n + r, SC + 4 * n + r)))
        for n in range(4):
            for hh in range(2):
                o.append(P('v_cvt_pk_bf16_f32 v%d, v%d, v%d' % (SP + 4 * n + hh, SC + 4 * n + 2 * hh, SC + 4 * n + 2 * hh + 1)))
        for n in range(4):
            for hh in range(2):
                o.append(P('v_cndmask_b32_e64 v%d, 0, v%d, s[%d:%d]' % (PB + 4 * n + hh, SP + 4 * n + hh, sUP, sUP + 1)))
                o.append(P('v_cndmask_b32_e64 v%d, v%d, 0, s[%d:%d]' % (PB + 4 * n + 2 + hh, SP + 4 * n + hh, sUP, sUP + 1)))
        o.append(W(rv))
        o.append(P('s_barrier'))
        for n, (tb, h) in enumerate(insts):
            o.append(P('v_mfma_f32_16x16x32_bf16 %s, %s, %s, 0' % (vr(LL + 4 * n, 4), vr(vONES, 4), vr(PB + 4 * n, 4))))
            o.append(P('v_mfma_f32_16x16x32_bf16 %s, %s, %s, 0' % (vr(OO + 4 * n, 4), vr(VV + 6 * h + 2 * tb, 4), vr(PB + 4 * n, 4))))
        for n in range(4):
            o.append(P('v_rcp_f32 v%d, v%d' % (LL + 4 * n, LL + 4 * n)))
        OUTR = vT + 40
        for n, (tb, h) in enumerate(insts):
            for hh in range(2):
                o.append(P('v_pk_mul_f32 %s, %s, %s op_sel_hi:[1,0]' % (vr(OO + 4 * n + 2 * hh, 2), vr(OO + 4 * n + 2 * hh, 2), vr(LL + 4 * n, 2))))
        for n, (tb, h) in enumerate(insts):
            for hh in range(2):
                o.append(P('v_cvt_pk_bf16_f32 v%d, v%d, v%d' % (OUTR + (tb * 2 + h) * 2 + hh, OO + 4 * n + 2 * hh, OO + 4 * n + 2 * hh + 1)))
        if dmas:
            k = min(i for i, x in enumerate(o) if x.text == 's_barrier') + 1
            body = interleave(o[k:], dmas, start=0, every=max(1, (len(o) - k) // (len(dmas) + 1)))
            o = o[:k] + body
        o += [P('s_lshl_b32 s54, s%d, 15' % sW), P('s_add_u32 s53, s54, s%d' % sOF), P('s_lshl_b32 s54, s%d, 10' % sM),
              P('s_add_u32 s53, s53, s54'), P('s_add_u32 s54, s53, 16384')]
        return o, ['buffer_store_dwordx4 %s, v%d, s[28:31], s%d offen' % (vr(OUTR + 4 * tb, 4), vL16, 53 + tb) for tb in range(2)]

    def mode_load(self):
        self.tag_mode = newtag('mode')
        return [P('s_lshr_b32 s53, s%d, 1' % sG), P('s_lshl_b32 s53, s53, 5'), P('s_and_b32 s54, s%d, 1' % sG),
                P('s_lshl_b32 s54, s54, 2'), P('s_add_u32 s%d, s53, s54' % sA),
                P('v_mov_b32 v%d, 0' % vTB),
                VM('buffer_load_dword v%d, v%d, s[36:39], s%d offen sc1' % (vTA, vTB, sA), self.tag_mode)]

    def mode_check(self):
        spin = self.L('rsp'); ok = self.L('rok')
        return [W(self.tag_mode), P('s_mov_b32 s%d, 0' % sTMO),
                P('v_readfirstlane_b32 s54, v%d' % vTA),
                P('s_nop 4'),
                P('s_and_b32 s52, s54, 31'), P('s_cmp_eq_u32 s52, 16'), P('s_cbranch_scc1 %s' % ok),
                LAB(spin),
                P('buffer_load_dword v%d, v%d, s[36:39], s%d offen sc1' % (vTA, vTB, sA)),
                P('s_add_u32 s%d, s%d, 1' % (sTMO, sTMO)),
                P('s_waitcnt vmcnt(0)'),
                P('v_readfirstlane_b32 s54, v%d' % vTA),
                P('s_nop 4'),
                P('s_and_b32 s52, s54, 31'), P('s_cmp_eq_u32 s52, 16'), P('s_cbranch_scc1 %s' % ok),
                P('s_cmp_lt_u32 s%d, 0x100000' % sTMO), P('s_cbranch_scc1 %s' % spin),
                P('s_endpgm'),
                LAB(ok),
                P('s_lshr_b32 s52, s54, 5'), P('s_and_b32 s52, s52, 255'), P('s_mul_i32 s52, s52, s52'),
                P('s_lshr_b32 s54, s54, 13'), P('s_lshl_b32 s54, s54, 4'),
                P('s_cmp_lg_u32 s52, s54'), P('s_cselect_b32 s%d, 1, 0' % sMODE)] + \
            ([P('s_mov_b32 s%d, 1' % sMODE)] if self.cfg.get('force_mixed') else []) + self.set_bases()

    def set_bases(self):
        o = [P('s_mul_i32 s52, s%d, %d' % (sG, ACT_G)), P('s_add_u32 s52, s52, %d' % WS_ACT),
             P('s_mul_i32 s53, s%d, %d' % (sG, 8 * 57344)), P('s_lshl_b32 s54, s%d, 13' % sG),
             P('s_cmp_eq_u32 s%d, %d' % (sMODE, 7 if self.cfg.get('noalias') else 0))]
        def sel(dst, pure_off, mixed_base_s, mixed_imm):
            return [P('s_add_u32 s55, s52, %d' % pure_off), P('s_add_u32 s%d, s%d, %d' % (dst, mixed_base_s, mixed_imm)),
                    P('s_cmp_eq_u32 s%d, %d' % (sMODE, 7 if self.cfg.get('noalias') else 0)),
                    P('s_cselect_b32 s%d, s55, s%d' % (dst, dst))]
        o += sel(sOF, 0, sGBASE, WS_OF) + sel(sAF, 0, 53, WS_AF) + sel(sX1, 458752, sGBASE, WS_XF) + \
            sel(sX2, 458752, sGBASE, WS_XF + XF_K) + sel(sS1, 589824, 54, WS_ST) + sel(sS2, 589824, 54, WS_ST + ST_K)
        for d, v in ((dOF, OF_R), (dAF, AF_R), (dX1, 2 * XF_K), (dS1, 2 * ST_K)):
            o.append(P('s_cselect_b32 s%d, 0, %d' % (d, v)))
        return o

    def gemmB(self, nk, srdW, src_base, nblk, depth, resident, refill_tags_out, exb, pre_extras=None, posf=None, tail=None, post=None, inloop=None, tail_lds=False):
        o = []
        o += [P('s_and_b32 s52, s%d, 1' % sW), P('s_mul_i32 s52, s52, %d' % (nk * 1024)),
              P('s_add_u32 s52, s52, s%d' % src_base),
              P('s_mul_i32 s53, s%d, %d' % (sTB, nblk * 1024)), P('s_add_u32 s%d, s52, s53' % sB0),
              P('s_xor_b32 s53, s%d, 1' % sTB), P('s_mul_i32 s53, s53, %d' % (nblk * 1024)), P('s_add_u32 s%d, s52, s53' % sB1)]
        xl = self.x_loads(nk, depth=depth)
        pro = min(nk, self.cfg.get('b_pro', 4))
        for t in range(pro):
            o += xl[t][0] + xl[t][1]
        if nk == 8:
            o += self.wo_stash()
        groups = []; n = 0; first_idx = {}; mfidx = 0
        acc = lambda s, fb: vACC + (s * 4 + fb) * 4
        refills = []
        if nk > resident:
            for t in range(resident, nk):
                for kh in range(2):
                    refills.append(self.dma_wo_slot(srdW, nk, t, kh, posf(t)))
        for t in range(nk):
            first_idx[t] = mfidx
            pos = posf(t) if posf else t
            for fb in range(4):
                dst = self.afrag(n); n += 1
                g = dict(pre=[], reads=[], mf=[])
                if fb == 0 and t == resident:
                    g['pre'] += [W(self.vmtags(refills)), P('s_barrier')]
                for part in range(2):
                    a = pos * 8192 + part * 2048
                    win = a >> 16
                    g['reads'].append(LG('ds_read_b64_tr_b16 v[%d:%d], v%d offset:%d' % (dst + 2 * part, dst + 2 * part + 1, vW2A + fb * 3 + win, a & 0xffff)))
                for s in range(2):
                    c = '0' if t == 0 else vr(acc(s, fb), 4)
                    wt = self.vmtags(xl[t][s]) if fb == 0 else []
                    g['mf'].append(('v_mfma_f32_16x16x32_bf16 %s, %s, %s, %s' % (vr(acc(s, fb), 4), vr(dst, 4), ar(((t % depth) * 2 + s) * 4, 4), c), wt))
                mfidx += 2
                groups.append(g)
        extras = []
        last = -1
        for t in range(pro, nk):
            if t < depth:
                at = first_idx[min(nk - 1, (t - pro) // 2)] + 1 + 4 * ((t - pro) % 2)
            else:
                at = first_idx[t - depth] + 7
            at = max(at, last + 1)
            extras.append((at, xl[t][0])); extras.append((at + 1, xl[t][1]))
            last = at + 1
        if inloop:
            for k, d in enumerate(inloop):
                extras.append((last + 2 + self.cfg.get('a2_step', 5) * k, d))
        if refills:
            nfree = nk - resident
            bar_at = first_idx[nfree] - 1
            extras.append((bar_at, [P('s_barrier')]))
            for k, d in enumerate(refills):
                extras.append((first_idx[nfree + k // 3] + 1 + 2 * (k % 3), d))
        if tail and tail_lds:
            extras.append((first_idx[resident] - 1, [P('s_barrier')]))
            nt_ = nk - resident
            for k, d in enumerate(tail):
                extras.append((first_idx[resident] + 1 + k * (8 * nt_ - 4) // len(tail), d))
        elif tail:
            allb = [t_ for row in xl for blk in row for t_ in self.vmtags(blk)]
            extras.append((first_idx[resident] - 1, [W(allb), P('s_barrier')]))
            nt_ = nk - resident
            t0_ = self.cfg.get('tail_k0', 0)
            for k, d in enumerate(tail):
                kk = t0_ + k * (nt_ - t0_) // len(tail)
                sk = self.L('tsk')
                extras.append((first_idx[resident + kk] + 1 + 2 * (k % 3),
                               [P('s_cmp_lg_u32 s%d, 0' % sRND), P('s_cbranch_scc1 %s ;nopad' % sk)] + d + [LAB(sk)]))
        if pre_extras and False:
            for k, t in enumerate(pre_extras):
                extras.append((first_idx[min(nk - 1, self.cfg.get('t_p4_k', 16) + 2 * k)] + 4, t))
        extras += self.sched_touches('p4' if nk == 28 else 'p2', first_idx)
        if nk == 28 and self.cfg.get('wbl2'):
            allb2 = [t_ for row in xl for blk in row for t_ in self.vmtags(blk)] + self.vmtags(refills)
            sk = self.L('wb')
            extras.append((first_idx[self.cfg.get('wbl2')] + 2,
                           [W(allb2), P('s_cmp_eq_u32 s%d, 0' % sTUX), P('s_cselect_b32 s52, s%d, 0' % sRND), P('s_cmp_eq_u32 s52, 1'),
                            P('s_cbranch_scc0 %s ;nopad' % sk), P('buffer_wbl2 sc1'), LAB(sk)]))
        if nk == 28 and self.cfg.get('code_staged', 1) and self.cfg.get('t_code', 1):
            extras.append((first_idx[16] + 3, self.touch_code('L_C5', 'L_END', 72)))
        o += self.gemm_loop(groups, self.cfg.get('la', 3), extras)
        o.append(P('s_barrier'))
        o += [P('v_add_u32 v%d, %d, v%d' % (vTA, exb, vEXBW)), P('v_add_u32 v%d, %d, v%d' % (vTB, exb, vEXBR))]
        if post and tail_lds:
            o += self.flat(post)
        elif post:
            sk = self.L('psk')
            o += [P('s_cmp_lg_u32 s%d, 0' % sRND), P('s_cbranch_scc1 %s ;nopad' % sk)] + self.flat(post) + [LAB(sk)]
        for fb in range(4):
            o.append(LG('ds_write_b128 v%d, %s offset:%d' % (vTA, vr(acc(1, fb), 4), fb * 1024)))
        o += [WALL(False, True), P('s_barrier')]
        PT = vT
        rt = []
        for fb in range(4):
            x = LG('ds_read_b128 %s, v%d offset:%d' % (vr(PT + 4 * fb, 4), vTB, fb * 1024)); rt.append(x.tag); o.append(x)
        U = vT + 16
        for fb in range(4):
            for hh in range(2):
                r = vR + fb * 2 + hh
                o += [P('v_lshlrev_b32 v%d, 16, v%d' % (U + fb * 4 + hh * 2, r)), P('v_and_b32 v%d, 0xffff0000, v%d' % (U + fb * 4 + hh * 2 + 1, r))]
        for fb in range(4):
            for hh in range(2):
                a = acc(0, fb) + 2 * hh
                o.append(P('v_pk_add_f32 %s, %s, %s' % (vr(a, 2), vr(a, 2), vr(U + fb * 4 + 2 * hh, 2))))
        for fb in range(4):
            o.append(W(rt[fb]))
            for hh in range(2):
                a = acc(0, fb) + 2 * hh
                o.append(P('v_pk_add_f32 %s, %s, %s' % (vr(a, 2), vr(a, 2), vr(PT + fb * 4 + 2 * hh, 2))))
        for fb in range(4):
            for hh in range(2):
                a = acc(0, fb) + 2 * hh
                o.append(P('v_cvt_pk_bf16_f32 v%d, v%d, v%d' % (vR + fb * 2 + hh, a, a + 1)))
        return o

    def sw4(self):
        return self.touch_set(self.cfg.get('t_p4', ''), only_r1=True)

    def row_stats(self):
        s1 = vT + 32; s2 = vT + 33; s1b = vT + 34; s2b = vT + 35
        o = [P('v_mov_b32 v%d, 0' % r) for r in (s1, s2, s1b, s2b)]
        for k in range(0, 8, 2):
            o += [P('v_dot2c_f32_bf16 v%d, v%d, v%d' % (s1, vR + k, vONES)), P('v_dot2c_f32_bf16 v%d, v%d, v%d' % (s2, vR + k, vR + k)),
                  P('v_dot2c_f32_bf16 v%d, v%d, v%d' % (s1b, vR + k + 1, vONES)), P('v_dot2c_f32_bf16 v%d, v%d, v%d' % (s2b, vR + k + 1, vR + k + 1))]
        o += [P('v_add_f32 v%d, v%d, v%d' % (s1, s1, s1b)), P('v_add_f32 v%d, v%d, v%d' % (s2, s2, s2b))]
        o += self.reduce_g2(s1, s2)
        return o

    def x_stores(self, sx, ss):
        return [P('s_mul_i32 s53, s%d, 16384' % sTB), P('s_add_u32 s53, s53, s%d' % sx), P('s_lshl_b32 s54, s%d, 11' % sCT),
                P('s_add_u32 s53, s53, s54'),
                P('s_lshl_b32 s54, s%d, 10' % sTB), P('s_add_u32 s54, s54, s%d' % ss)]

    def x_store_frags(self):
        ds, tags = self.dual_store(['buffer_store_dwordx4 %s, v%d, s[28:31], s53 offen' % (vr(vR, 4), vL16),
                                    'buffer_store_dwordx4 %s, v%d, s[28:31], s55 offen offset:1024' % (vr(vR + 4, 4), vL16)])
        return self.delta(55, 11) + [P('s_add_u32 s55, s55, s53')] + ds, tags

    def x_store_stats(self):
        ds, tags = self.dual_store(['buffer_store_dwordx2 %s, v%d, s[28:31], s54 offen' % (vr(vT + 32, 2), vSTO)])
        return [P('s_mov_b64 exec, 0xffff')] + ds + [P('s_mov_b64 exec, -1')], tags

    def p3(self, extras_w2):
        o = []
        cfg = self.cfg
        for b in range(2):
            o += [P('s_lshl_b32 s53, s%d, 1' % sW), P('s_add_u32 s53, s53, %d' % b), P('s_lshl_b32 s53, s53, 14'),
                  P('s_add_u32 s%d, s53, s%d' % (sB0 + b, sX1))]
        xl = self.x_loads(16, depth=XD)
        pro = cfg.get('x_pro', 4)
        for j in range(pro):
            o += xl[j][0] + xl[j][1]
        stt = []
        STR = vT + 12
        PA = [vT + 0, vT + 2]
        for b in range(2):
            t = newtag('st'); stt.append(t)
            o += [P('s_lshl_b32 s54, s%d, 11' % sW), P('s_add_u32 s53, s54, s%d' % sS1),
                  P('s_add_u32 s53, s53, %d' % (b * 1024)),
                  VM('buffer_load_dwordx4 %s, v%d, s[28:31], s53 offen sc1' % (vr(STR + 4 * b, 4), vL16), t)]
        acc = lambda fb, tb: vACC + (fb * 2 + tb) * 4
        a3 = self.dma_w1_group(3)
        groups = []; n = 0; first_idx = {}; mfidx = 0
        for j in range(16):
            first_idx[j] = mfidx
            base = L_W1P[j // 4] + (j % 4) * 7168
            for fb in range(7):
                dst = self.afrag(n); n += 1
                g = dict(pre=[], reads=[], mf=[])
                if j == 12 and fb == 0:
                    g['pre'] += [W(self.vmtags(a3)), P('s_barrier')]
                for part in range(2):
                    a = base + part * 3584 + fb * 32
                    win = a >> 16
                    g['reads'].append(LG('ds_read_b64_tr_b16 v[%d:%d], v%d offset:%d' % (dst + 2 * part, dst + 2 * part + 1, vW1A + win, a & 0xffff)))
                for tb in range(2):
                    c = '0' if j == 0 else vr(acc(fb, tb), 4)
                    wt = self.vmtags(xl[j][tb]) if fb == 0 else []
                    g['mf'].append(('v_mfma_f32_16x16x32_bf16 %s, %s, %s, %s' % (vr(acc(fb, tb), 4), vr(dst, 4), ar(((j % XD) * 2 + tb) * 4, 4), c), wt))
                mfidx += 2
                groups.append(g)
        extras = self.x_sched(xl, 16, pro, first_idx, 14, XD, cfg.get('x_rate', 4))
        at = extras[-1][0] + 2
        for d in a3:
            extras.append((at, d)); at += 4
        st_ops = [W(stt)]
        for b in range(2):
            st_ops += self.stats_from_st(STR + 4 * b, PA[b], scale=LOG2E)
        extras += self.spread(st_ops, first_idx[2] + 2, 1)
        at = max(at, first_idx[9])
        for d in extras_w2:
            extras.append((at, d)); at += cfg.get('w2e_step', 7)
        for k, t in enumerate(self.touch_set(cfg.get('t_p3', 'af'), only_r1=True)):
            extras.append((first_idx[min(15, cfg.get('t_p3_k', 9) + 2 * k)] + 4, t))
        extras += self.sched_touches('p3', first_idx)
        if cfg.get('code_staged', 1) and cfg.get('t_code', 1):
            extras.append((first_idx[10] + 6, self.touch_code('L_C4', 'L_C5', 72)))
        o += self.gemm_loop(groups, cfg.get('la', 3), extras)
        o.append(P('s_barrier'))
        return o, PA

    def cs_w1(self):
        o = []
        A0 = vT + 40; A1 = vT + 44
        ad = vT + 48
        o += [P('s_lshl_b32 s53, s%d, 5' % sW), P('s_add_u32 s54, s%d, 4' % sW), P('s_min_u32 s54, s54, 6'), P('s_lshl_b32 s54, s54, 5')]
        for win in range(3):
            o += [P('v_add_u32 v%d, s53, v%d' % (ad + win, vW1A + win)), P('v_add_u32 v%d, s54, v%d' % (ad + 3 + win, vW1A + win))]
        groups = []; n = 0
        for j in range(16):
            base = L_W1P[j // 4] + (j % 4) * 7168
            for e in range(2):
                dst = self.afrag(n); n += 1
                g = dict(pre=[], reads=[], mf=[])
                for part in range(2):
                    a = base + part * 3584
                    g['reads'].append(LG('ds_read_b64_tr_b16 v[%d:%d], v%d offset:%d' % (dst + 2 * part, dst + 2 * part + 1, ad + 3 * e + (a >> 16), a & 0xffff)))
                accr = A0 if e == 0 else A1
                c = '0' if j == 0 else vr(accr, 4)
                g['mf'].append(('v_mfma_f32_16x16x32_bf16 %s, %s, %s, %s' % (vr(accr, 4), vr(dst, 4), vr(vONES, 4), c), []))
                groups.append(g)
        o += self.gemm_loop(groups, 3, [])
        o += [P('s_lshl_b32 s53, s53, 1'), P('s_lshl_b32 s54, s54, 1'),
              P('v_add_u32 v%d, s53, v%d' % (ad, vCS)), P('v_add_u32 v%d, s54, v%d' % (ad + 1, vCS)),
              P('s_mov_b32 s52, 0x00010001'), P('s_mov_b32 s53, 0x00010001'), P('s_mov_b64 exec, s[52:53]'),
              LG('ds_write_b128 v%d, %s offset:%d' % (ad, vr(A0, 4), L_CS1)),
              LG('ds_write_b128 v%d, %s offset:%d' % (ad + 1, vr(A1, 4), L_CS1)),
              P('s_mov_b64 exec, -1'), WALL(False, True), P('s_barrier')]
        return o

    def p3_epi(self, PA, dmas):
        o = []
        acc = lambda fb, tb: vACC + (fb * 2 + tb) * 4
        CS = vT + 12; BB = vT + 40
        PK = vT + 68
        cst = []
        for fb in range(7):
            x = LG('ds_read_b128 %s, v%d offset:%d' % (vr(CS + 4 * fb, 4), vCS, L_CS1 + fb * 64)); y = LG('ds_read_b128 %s, v%d offset:%d' % (vr(BB + 4 * fb, 4), vCS, L_BB1 + fb * 64))
            cst.append([x.tag, y.tag]); o += [x, y]
        T = vT + 68
        OUTR = lambda tb, fb: vAF + tb * 16 + fb * 2
        body = []
        for fb in range(7):
            body.append(W(cst[fb]))
            prs = [(tb, hh) for tb in range(2) for hh in range(2)]
            E = [T + 2 * k for k in range(4)]; U = [T + 8 + 2 * k for k in range(4)]
            for k, (tb, hh) in enumerate(prs):
                body.append(P('v_pk_fma_f32 %s, %s, %s, %s op_sel:[0,1,0] op_sel_hi:[1,1,1]' % (vr(E[k], 2), vr(CS + 4 * fb + 2 * hh, 2), vr(PA[tb], 2), vr(BB + 4 * fb + 2 * hh, 2))))
            for k, (tb, hh) in enumerate(prs):
                body.append(P('v_pk_fma_f32 %s, %s, %s, %s op_sel_hi:[1,0,1]' % (vr(E[k], 2), vr(acc(fb, tb) + 2 * hh, 2), vr(PA[tb], 2), vr(E[k], 2))))
            for k in range(4):
                body += [P('v_exp_f32 v%d, v%d' % (U[k], E[k])), P('v_exp_f32 v%d, v%d' % (U[k] + 1, E[k] + 1))]
            for k in range(4):
                body.append(P('v_pk_add_f32 %s, %s, s[%d:%d]' % (vr(U[k], 2), vr(U[k], 2), sONE, sONE + 1)))
            for k in range(4):
                body.append(P('v_pk_fma_f32 %s, %s, %s, s[%d:%d]' % (vr(U[k], 2), vr(U[k], 2), vr(U[k], 2), sONE, sONE + 1)))
            for k in range(4):
                body += [P('v_rcp_f32 v%d, v%d' % (U[k], U[k])), P('v_rcp_f32 v%d, v%d' % (U[k] + 1, U[k] + 1))]
            for k in range(4):
                body.append(P('v_pk_fma_f32 %s, %s, s[%d:%d], %s' % (vr(U[k], 2), vr(U[k], 2), sM2L, sM2L + 1, vr(vLN2, 2))))
            for k in range(4):
                body.append(P('v_pk_mul_f32 %s, %s, %s' % (vr(E[k], 2), vr(E[k], 2), vr(U[k], 2))))
            for k, (tb, hh) in enumerate(prs):
                body.append(P('v_cvt_pk_bf16_f32 v%d, v%d, v%d' % (OUTR(tb, fb) + hh, E[k], E[k] + 1)))
        if dmas:
            frac = self.cfg.get('p3e_frac', 100)
            body = interleave(body, dmas, start=4, every=max(1, ((len(body) - 8) * frac // 100) // (len(dmas) + 1)))
        o += body
        o += [P('s_lshr_b32 s52, s%d, 1' % sM), P('s_mul_i32 s52, s52, 7168'), P('s_add_u32 s52, s52, s%d' % sAF),
              P('s_mul_i32 s53, s%d, %d' % (sW, 2 * 57344)), P('s_add_u32 s52, s52, s53'),
              P('s_add_u32 s53, s52, 57344'), P('s_add_u32 s54, s52, 4096'), P('s_add_u32 s55, s53, 4096')]
        def variant(odd, fl):
            r = []
            for tb in range(2):
                b0 = 52 + tb; b1 = 54 + tb
                if not odd:
                    for u in range(3):
                        r.append(P('buffer_store_dwordx4 %s, v%d, s[28:31], s%d offen offset:%d%s' % (vr(OUTR(tb, 2 * u), 4), vL16, b0, u * 1024, fl)))
                    r.append(P('buffer_store_dwordx2 %s, v%d, s[28:31], s%d offen offset:%d%s' % (vr(OUTR(tb, 6), 2), vL16, b0, 3072, fl)))
                else:
                    r.append(P('buffer_store_dwordx2 %s, v%d, s[28:31], s%d offen offset:%d%s' % (vr(OUTR(tb, 0), 2), vL16, b0, 3072 + 8, fl)))
                    for u in range(3):
                        r.append(P('buffer_store_dwordx4 %s, v%d, s[28:31], s%d offen offset:%d%s' % (vr(OUTR(tb, 2 * u + 1), 4), vL16, b1, u * 1024, fl)))
            return r
        l_odd = self.L('odd'); l_e1 = self.L('e1'); l_o1 = self.L('o1'); done = self.L('dn')
        o += [P('s_bitcmp1_b32 s%d, 0' % sM), P('s_cbranch_scc1 %s' % l_odd),
              P('s_cmp_eq_u32 s%d, 0' % sMODE), P('s_cbranch_scc1 %s' % l_e1)] + variant(False, ' sc1') + [P('s_branch %s' % done), LAB(l_e1)] + \
            variant(False, '') + [P('s_branch %s' % done), LAB(l_odd),
              P('s_cmp_eq_u32 s%d, 0' % sMODE), P('s_cbranch_scc1 %s' % l_o1)] + variant(True, ' sc1') + [P('s_branch %s' % done), LAB(l_o1)] + \
            variant(True, '') + [LAB(done)]
        cnt = [VM('; counted store') for _ in range(8)]
        return o + cnt, [c.tag for c in cnt]

    def build(self):
        cfg = self.cfg
        stop = cfg.get('stop', 99)
        o = self.add
        self.prologue()
        o(self.ts(0))
        self.p1a()
        o(self.ts(1))
        o(W(self.tag_res))
        if cfg.get('stash', 1):
            o(self.wq_stash(), WALL(False, True), P('s_barrier'))
        if cfg.get('a0_early', 1):
            o(self.dma_w1_group(0))
        o(LAB('L_P1EPI'))
        wo = [self.dma_wo_slot(SRD_WO, 8, t, kh, t) for t in range(8) for kh in range(2)]
        w1a0 = self.dma_w1_group(0)
        o(P('s_cmp_eq_u32 s%d, 1' % sRND), P('s_cselect_b64 s[70:71], -1, 0'),
          P('s_lshl_b32 s53, s%d, 10' % sW), P('s_add_u32 s53, s53, %d' % L_W), P('v_add_u32 v%d, s53, v%d' % (vWOA, vL16)))
        epi, stores = self.p1_epi(self.p1_epi_fill())
        o(epi)
        ds, tags = self.dual_store(stores)
        o(ds)
        o(self.wo_restore())
        o(self.ts(2, True))
        o(P('s_lshl_b32 s%d, s%d, 2' % (sTGT, sRND)))
        o(self.sync_dyn(1, tags, pre_r1=self.dma_w1_group(1)) if cfg.get('a1_tail', 1) else self.sync_dyn(1, tags, pre=self.dma_w1_group(1)))
        o(self.ts(3, True))
        if stop == 1:
            o(P('s_branch L_END'))
        o(LAB('L_C2'))
        o(self.gemmB(8, SRD_WO, sOF, 16, 8, 8, None, L_EXB2, inloop=self.dma_w1_group(2) if cfg.get('a2_p2', 1) else None))
        o(self.ts(4, True))
        o(self.x_stores(sX1, sS1))
        ds, tags = self.x_store_frags(); o(ds)
        o(self.row_stats())
        ds, tags2 = self.x_store_stats(); o(ds)
        tags = tags + tags2
        o(self.sync_dyn(2, tags, pre=None if cfg.get('a2_p2', 1) else self.dma_w1_group(2)))
        o(self.ts(5, True))
        if stop == 2:
            o(P('s_branch L_END'))
        w2_early = [self.dma_wo_slot(SRD_W2, 28, W2_T_AT[p], kh, p) for p in range(5) for kh in range(2)]
        body, PA = self.p3(w2_early)
        o(body)
        skip = self.L('cs1')
        o(P('s_cmp_lg_u32 s%d, 0' % sRND), P('s_cbranch_scc1 %s' % skip))
        o(self.cs_w1())
        o(LAB(skip))
        o(self.ts(6, True))
        n_epi = cfg.get('w2_epi_p', 15)
        w2_epi = [self.dma_wo_slot(SRD_W2, 28, W2_T_AT[p], kh, p) for p in range(5, n_epi) for kh in range(2)]
        epi, tags = self.p3_epi(PA, w2_epi)
        o(epi)
        o(self.ts(7, True))
        o(self.sync_dyn(3, tags, pre=[self.dma_wo_slot(SRD_W2, 28, W2_T_AT[p], kh, p) for p in range(n_epi, 19) for kh in range(2)]))
        o(self.ts(8, True))
        if stop == 3:
            o(P('s_branch L_END'))
        o(LAB('L_C4'))
        if cfg.get('stash', 1):
            VA, VB = vT + 60, vT + 61
            o(P('s_cmp_eq_u32 s%d, 0' % sRND), P('s_cselect_b64 s[74:75], -1, 0'))
            o(P('s_lshl_b32 s53, s%d, 10' % sW), P('s_add_u32 s53, s53, %d' % L_W), P('v_add_u32 v%d, s53, v%d' % (VA, vL16)),
              P('v_add_u32 v%d, 0x10000, v%d' % (VB, VA)))
            wq_tail = self.wq_restore([0, 1, 2, 4, 5, 6, 8, 9, 10, 11], VA, VB)
            wq_post = self.wq_restore([3, 7], VA, VB)
            o(self.gemmB(28, SRD_W2, sAF, 56, XD, 19, None, L_EXB4, posf=w2pos, tail=wq_tail, post=wq_post, tail_lds=True))
        else:
            wq_tail = self.dma_wq_quarter(0, src=None) + self.dma_wq_quarter(1, src=None) + self.dma_wq_quarter(2, src=None) + self.dma_wq_quarter(3, panels=(2,), src=None)
            wq_post = self.dma_wq_quarter(3, panels=(0, 1), src=None)
            o(self.gemmB(28, SRD_W2, sAF, 56, XD, 19, None, L_EXB4, pre_extras=self.sw4(), posf=w2pos, tail=wq_tail, post=wq_post))
        o(self.ts(9, True))
        o(LAB('L_C5'))
        o(P('s_cmp_lg_u32 s%d, 0' % sRND), P('s_cbranch_scc1 L_FINAL'))
        o(self.x_stores(sX2, sS2))
        ds, tags = self.x_store_frags(); o(ds)
        o(self.row_stats())
        ds, tags2 = self.x_store_stats(); o(ds)
        tags = tags + tags2
        ht = [newtag('hs') for _ in range(3)]
        o(P('s_add_u32 s52, s%d, 1' % sG), P('s_lshl_b32 s53, s52, 14'), P('s_lshl_b32 s54, s%d, 11' % sCT),
          P('s_add_u32 s53, s53, s54'), P('s_add_u32 s53, s53, %d' % WS_HF),
          P('s_lshl_b32 s54, s52, 10'), P('s_add_u32 s54, s54, %d' % WS_HST),
          VM('buffer_store_dwordx4 %s, v%d, s[28:31], s53 offen sc1' % (vr(vR, 4), vHOF), ht[0]),
          self.delta(55, 11), P('s_add_u32 s55, s55, s53'),
          VM('buffer_store_dwordx4 %s, v%d, s[28:31], s55 offen offset:1024 sc1' % (vr(vR + 4, 4), vHOF), ht[1]),
          VM('buffer_store_dwordx2 %s, v%d, s[28:31], s54 offen sc1' % (vr(vT + 32, 2), vHST), ht[2]))
        self.halo_store_tags = ht
        o(self.sync_dyn(4, tags))
        o(self.ts(10))
        if stop == 4:
            o(P('s_branch L_END'))
        o(P('s_mov_b32 s%d, 1' % sRND), P('s_add_u32 s%d, s%d, s%d' % (sOF, sOF, dOF)), P('s_add_u32 s%d, s%d, s%d' % (sAF, sAF, dAF)),
          P('s_add_u32 s%d, s%d, s%d' % (sX1, sX1, dX1)), P('s_add_u32 s%d, s%d, s%d' % (sS1, sS1, dS1)))
        self.p1b()
        o(self.ts(27))
        o(WALL(False, True))
        o(P('s_branch L_P1EPI'))
        o(LAB('L_FINAL'))
        for u in range(2):
            o(P('v_permlane16_swap_b32 v%d, v%d' % (vR + 4 * u, vR + 4 * u + 2)), P('v_permlane16_swap_b32 v%d, v%d' % (vR + 4 * u + 1, vR + 4 * u + 3)))
        for u in range(2):
            if u == 1:
                o(self.delta(55), P('s_add_u32 s55, s55, s61'))
            o(VM('buffer_store_dwordx4 %s, v%d, s[32:35], s%d offen offset:%d%s' % (vr(vR + 4 * u, 4), vOUT, 55 if u else 61, u * 64, ' sc1' if cfg.get('out_sc1') else '')))
        o(self.ts(28), self.ts_flush())
        o(LAB('L_END'), P('s_endpgm'))

    def sync_dyn(self, ph, tags, window=None, pre=None, pre_r1=None):
        if pre_r1:
            l2 = self.L('pr2'); l3 = self.L('pr3')
            raw = [P(x.text) for x in self.flat(pre_r1)]
            nd = sum(1 for x in self.flat(pre_r1) if x.kind == 'vm')
            o = [P('s_cmp_lg_u32 s%d, 0' % sRND), P('s_cbranch_scc1 %s' % l2)] + raw + [P('s_waitcnt vmcnt(%d)' % nd), P('s_branch %s' % l3),
                 LAB(l2), P('s_waitcnt vmcnt(0)'), LAB(l3), MARK(tags)]
        else:
            o = self.flat(pre or []) + [W(tags)]
        if self.cfg.get('sts'):
            o += self.ts(48 + 4 * (ph - 1))
        pure = self.L('fp'); done = self.L('fd')
        o += [P('s_add_u32 s52, s%d, %d' % (sTGT, ph)),
              P('v_mov_b32 v%d, s52' % (vTA)), P('v_mov_b32 v%d, 0' % (vTB)),
              P('s_mov_b64 exec, 1'),
              P('s_cmp_eq_u32 s%d, 0' % sMODE), P('s_cbranch_scc1 %s' % pure),
              P('buffer_store_dword v%d, v%d, s[28:31], s%d offen sc1' % (vTA, vTB, sFLGOFF)),
              P('s_branch %s' % done), LAB(pure),
              P('buffer_store_dword v%d, v%d, s[28:31], s%d offen' % (vTA, vTB, sFLGOFF)),
              LAB(done), VM('; flag store counted'),
              P('s_mov_b64 exec, -1')]
        other = self.L('so'); join = self.L('sj'); loop = self.L('sp')
        o += [P('s_cmp_lg_u32 s%d, 0' % sW), P('s_cbranch_scc1 %s' % other),
              P('v_lshlrev_b32 v%d, 2, v%d' % (vTB, vLANE)),
              P('s_mov_b32 s%d, 0' % sTMO),
              LAB(loop),
              P('buffer_load_dword v%d, v%d, s[28:31], s%d offen sc1' % (vTA, vTB, sGFLG)),
              P('s_add_u32 s%d, s%d, 1' % (sTMO, sTMO)),
              P('s_waitcnt vmcnt(0)'),
              P('v_cmp_gt_u32 vcc, s52, v%d' % (vTA)),
              P('s_cbranch_vccz %s' % join),
              P('s_cmp_lt_u32 s%d, 0x100000' % sTMO),
              P('s_cbranch_scc1 %s' % loop),
              P('s_endpgm'),
              LAB(other)]
        if window and not self.cfg.get('nowin'):
            o += window
        o += [LAB(join)]
        if self.cfg.get('sts'):
            o += self.ts(49 + 4 * (ph - 1)) + [WALL(True, True)] + self.ts(50 + 4 * (ph - 1))
        if self.cfg.get('halo_nowait') and ph == 4:
            o += [WALL(True, True)]
        else:
            o += [WALL(True, True)]
        o += [P('s_barrier')]
        return o

    def text(self):
        self.build()
        body = self.p.render()
        body = [l for l in body if not l.strip().startswith('; counted') and not l.strip().startswith('; flag store')]
        hdr = open('interleave_layers__sliding_local_dilated__dense_activation_mish__prompt.s.ref').read().split('\n')
        head = []
        for l in hdr:
            if l.startswith('; Override') or l.startswith('; grid=') or l.startswith('; @launch'):
                continue
            if l.startswith('.amdgcn_target'):
                break
            head.append(l)
        out = head + ['; @launch grid=(256,1,1) block=(256,1,1) lds=%d' % LDS_BYTES,
                      '.amdgcn_target "amdgcn-amd-amdhsa--gfx950"', '.text', '.globl ' + KNAME, '.p2align 8',
                      '.type %s,@function' % KNAME, KNAME + ':']
        out += body
        out += ['.section .rodata,"a"', '.p2align 6', '.amdhsa_kernel ' + KNAME,
                '  .amdhsa_next_free_vgpr 512', '  .amdhsa_next_free_sgpr 102', '  .amdhsa_accum_offset 256',
                '  .amdhsa_group_segment_fixed_size 0', '  .amdhsa_kernarg_size 80', '  .amdhsa_user_sgpr_count 2',
                '  .amdhsa_user_sgpr_kernarg_segment_ptr 1', '  .amdhsa_system_sgpr_workgroup_id_x 1',
                '  .amdhsa_float_denorm_mode_32 3', '.end_amdhsa_kernel', '']
        return '\n'.join(out)


if __name__ == '__main__':
    cfg = {}
    outp = sys.argv[1]
    for a in sys.argv[2:]:
        k, v = a.split('=')
        try:
            cfg[k] = int(v)
        except ValueError:
            cfg[k] = v
    g = Gen(cfg)
    t = g.text()
    open(outp, 'w').write(t)
    print('wrote', outp, len(t), 'bytes;', 'nops padded:', g.p.npad)
```

```python
import sys, math
from asmlib import *

KNAME = 'interleave_layers__sliding_local_dilated__dense_activation_mish__prompt_kernel'

WS_FLG = 0x0000
WS_HFL = 0x1000
WS_TS = 0x2000
WS_ST = 0x10000
WS_HST = 0x80000
WS_HF = 0x90000
WS_XF = 0x100000
WS_OF = 0x800000
WS_AF = 0x1000000
WS_ACT = 0x2000000
ACT_G = 0x92000
WS_SIZE = 0x2A00000
ST_K = 0x20000; XF_K = 0x200000; OF_R = 0x200000; AF_R = 0x800000

L_CSQ = 0
L_CS1 = 384
L_BB1 = 832
L_W = 2048
L_HALO = 100352
L_RING = 116736
L_EX = 67584
L_EXK = L_EX + 9216
L_W1P = [135168, 106496, 77824, 49152]
L_EXB2 = 2048
L_EXB4 = 100352
LDS_BYTES = 163840
W2_PA = [12, 13, 14, 15, 16, 17, 18, 3, 7]
W2_PB = [0, 1, 2, 4, 5, 6, 8, 9, 10, 11]
def w2pos(t):
    return W2_PA[t] if t < 9 else (W2_PB[t - 9] if t < 19 else W2_PA[t - 19])
W2_T_AT = {w2pos(t): t for t in range(19)}

LOG2E = 1.4426950408889634
LN2 = 0.6931471805599453


def f32(x):
    import struct
    return '0x%08x' % struct.unpack('<I', struct.pack('<f', x))[0]


sRND = 3; sG = 4; sM = 5; sW = 6; sMODE = 7
SRD_X = 8; SRD_WQ = 12; SRD_WO = 16; SRD_W1 = 20; SRD_W2 = 24; SRD_WS = 28; SRD_OUT = 32; SRD_DBG = 36; SRD_B1 = 40
sXCC = 44
sWQ_SRC = 45
sW1K = 46
sWO_SRC = 47
sW1_SRC = 48
sW1_M = 49
sB0 = 50; sB1 = 51
sT0 = 52; sT1 = 53; sT2 = 54; sT3 = 55
sFLGOFF = 56
sGFLG = 57
sST = 58
sTH = 59; sCT = 60
sONE = 62
sM2L = 64
sUP = 66
sMA = 68; sMB = 70; sMC = 72; sMD = 74
sNXT = 76; sIT = 76; sTMO = 77; sTGT = 78; sA = 79; sB = 80; sC = 81; sD = 82
sXR0 = 83; sXR1 = 84
sHSRC = 85
sTB = 86
sGBASE = 87
sTS = 88
sTSO = 90
sOF = 94; sAF = 95; sX1 = 96; sS1 = 97; sX2 = 98; sS2 = 99
sTUX = 100; sTUG = 101
dOF = 83; dAF = 84; dX1 = 85; dS1 = 82
sXL0 = 92; sXL1 = 93

vLANE = 0; vL16 = 1
vR = 2
vONES = 10
vWQA = 14
vE1 = 18; vE2 = 19
vW1A = 20
vW2A = 23
vDQ = 35; vDO = 36; vD1 = 37
vCS = 44
vL128 = 45
vDUM = 247
vCCUR = 46; vCPREV = 50; vCPA = 54
vEXV = 58; vEXK = 59; vEXH = 60; vRVP = 61; vRV = 62; vRK = 63
vLN2 = 64
vEXBW = 66; vEXBR = 67
vSTO = 68
vHOF = 69
vHST = 70
vOUT = 71
vAF = 72
NAF = 6
vACC = 104
vT = 168
vTA = 254; vTB = 255
vWOA = 247
vDUMMY = 246
XD = 12
aWO = 96; aWQ = 160
L_HS = 135168
vDX = 240; vDH = 241; vXA = 242; vXB = 243; vHXA = 244; vHXB = 245


class Gen:
    def __init__(self, cfg):
        self.cfg = cfg
        self.p = Prog()
        self.lbl = 0

    def L(self, name):
        self.lbl += 1
        return '%s_%d' % (name, self.lbl)

    def add(self, *a):
        self.p.add(*a)

    def ts(self, idx, rnd=False):
        if not self.cfg.get('ts'):
            return []
        o = [P('s_memrealtime s[92:93]' if self.cfg.get('ts') == 1 else 's_memtime s[92:93]')]
        if rnd:
            o += [P('s_lshl_b32 s91, s%d, 4' % sRND), P('s_add_u32 s91, s91, %d' % idx), P('s_mov_b32 m0, s91'),
                  P('s_waitcnt lgkmcnt(0)'), P('v_writelane_b32 v103, s92, m0')]
        else:
            o += [P('s_waitcnt lgkmcnt(0)'), P('v_writelane_b32 v103, s92, %d' % idx)]
        return o

    def ts_flush(self):
        if not self.cfg.get('ts'):
            return []
        if self.cfg.get('dbgts'):
            o = [P('s_memrealtime s[92:93]'), P('s_waitcnt lgkmcnt(0)'), P('v_readlane_b32 s53, v103, 12'), P('s_nop 4'), P('s_sub_u32 s52, s92, s53'),
                 P('v_writelane_b32 v103, s52, 63')]
            lanes = [1, 2, 10, 27, 28, 63, 6, 9]
            words = [4, 5, 6, 7, 12, 13, 14, 15]
            o += [P('v_readlane_b32 s54, v103, 13')]
            for ln, wd in zip(lanes, words):
                o += [P('v_readlane_b32 s52, v103, %d' % ln), P('s_nop 4')]
                if ln != 63:
                    o += [P('s_sub_u32 s52, s52, s54')]
                o += [P('v_writelane_b32 v252, s52, %d' % wd)]
            o += [P('v_lshlrev_b32 v253, 2, v%d' % vLANE), P('s_cmp_eq_u32 s2, 0'), P('s_cselect_b32 s52, 0, 1'), P('s_or_b32 s52, s52, s%d' % sW),
                  P('s_cmp_eq_u32 s52, 0'), P('s_cselect_b32 s52, 0xf0f0, 0'), P('s_mov_b32 exec_lo, s52'), P('s_mov_b32 exec_hi, 0'),
                  P('s_cbranch_execz L_TSD'),
                  VM('buffer_store_dword v252, v253, s[36:39], 0 offen'), LAB('L_TSD'), P('s_mov_b64 exec, -1')]
            return o
        return [P('v_lshlrev_b32 v252, 2, v%d' % vLANE), VM('buffer_store_dword v103, v252, s[28:31], s90 offen')]

    def dma(self, srd, voff, src_s, src_imm, lds_s, lds_imm, tag=None, st=None):
        st = st if st is not None else sT0
        ops = []
        if lds_s is None:
            ops.append(P('s_mov_b32 m0, %d' % lds_imm))
        else:
            ops.append(P('s_add_u32 m0, s%d, %d' % (lds_s, lds_imm)))
        if src_s is None:
            ops.append(P('s_mov_b32 s%d, %d' % (st, src_imm)))
        else:
            ops.append(P('s_add_u32 s%d, s%d, %d' % (st, src_s, src_imm)))
        if self.cfg.get('nodma') and srd in (SRD_WO, SRD_W1, SRD_W2):
            ops.append(P('s_nop 0'))
            return ops
        nt = ' nt' if (self.cfg.get('nt') and srd in (SRD_W1, SRD_W2)) else ''
        ops.append(VM('buffer_load_dwordx4 v%d, s[%d:%d], s%d offen%s lds' % (voff, srd, srd + 3, st, nt), tag))
        return ops

    def touch(self, srd, unit_s, imm, limit=None, only_r1=False):
        ops = []
        if limit is not None:
            ops += [P('s_add_u32 s55, s%d, %d' % (unit_s, imm[0])), P('s_cmp_lt_u32 s%d, %d' % (unit_s, limit)),
                    P('s_cselect_b32 s55, s55, 0x7ff00000')]
            if imm[1] is not None:
                ops.insert(1, P('s_add_u32 s55, s55, s%d' % imm[1]))
        else:
            ops.append(P('s_add_u32 s55, s%d, %d' % (unit_s, imm)))
        if only_r1:
            ops += [P('s_cmp_eq_u32 s%d, 0' % sRND), P('s_cselect_b32 s55, s55, 0x7ff00000')]
        ops.append(VM('buffer_load_dword v102, v%d, s[%d:%d], s55 offen' % (vL128, srd, srd + 3)))
        return ops

    def touch_w(self, name, only_r1=False):
        srd, size = {'wq': (SRD_WQ, 512 * 3072), 'wo': (SRD_WO, 524288), 'w1': (SRD_W1, 512 * 3584), 'w2': (SRD_W2, 1792 * 1024)}[name]
        return [self.touch(srd, sTUX, k * 0x100000, only_r1=only_r1) for k in range((size + 0xfffff) // 0x100000)]

    def touch_act(self, off, nbytes):
        return [self.touch(SRD_WS, sTUG, (WS_ACT + off, sST), limit=nbytes)]

    def touch_range(self, name, lo, hi, rounds='12'):
        srd = {'wq': SRD_WQ, 'wo': SRD_WO, 'w1': SRD_W1, 'w2': SRD_W2}[name]
        unit = -(-(hi - lo) // (128 * 128)) * 128
        assert unit <= 8192
        nl = unit // 128
        ops = [P('s_lshr_b32 s55, s%d, 13' % sTUX), P('s_mul_i32 s55, s55, %d' % unit), P('s_add_u32 s55, s55, %d' % lo)]
        if rounds != '12':
            ops += [P('s_cmp_eq_u32 s%d, %d' % (sRND, 0 if rounds == '1' else 1)), P('s_cselect_b32 s55, s55, 0x7ff00000')]
        if nl < 64:
            m = (1 << nl) - 1
            ops += [P('s_mov_b32 exec_lo, 0x%x' % (m & 0xffffffff)), P('s_mov_b32 exec_hi, 0x%x' % (m >> 32))]
        ops.append(VM('buffer_load_dword v102, v%d, s[%d:%d], s55 offen' % (vL128, srd, srd + 3)))
        if nl < 64:
            ops.append(P('s_mov_b64 exec, -1'))
        return ops

    def sched_touches(self, phase, first_idx):
        out = []
        for e in str(self.cfg.get('tch', '')).split('+'):
            if not e:
                continue
            f = e.split('.')
            if f[0] != phase:
                continue
            k = int(f[1]); name = f[2]
            if name == 'af2':
                ops = self.touch_act_even(131072, 458752 - 131072, '2')
            elif name in ('of', 'af', 'xf'):
                ops = self.touch_set(name)[0]
            else:
                ops = self.touch_range(name, int(f[3]) * 1024, int(f[4]) * 1024, f[5] if len(f) > 5 else '12')
            out.append((first_idx[k] + 3, ops))
        return out

    def touch_act_even(self, off, n, rounds='12'):
        unit = -(-n // (64 * 128)) * 128
        nl = unit // 128
        assert nl <= 64
        ops = [P('s_lshr_b32 s55, s%d, 13' % sTUG), P('s_mul_i32 s55, s55, %d' % unit), P('s_add_u32 s55, s55, s%d' % sST),
               P('s_add_u32 s55, s55, %d' % (WS_ACT + off))]
        if rounds != '12':
            ops += [P('s_cmp_eq_u32 s%d, %d' % (sRND, 0 if rounds == '1' else 1)), P('s_cselect_b32 s55, s55, 0x7ff00000')]
        if nl < 64:
            m = (1 << nl) - 1
            ops += [P('s_mov_b32 exec_lo, 0x%x' % (m & 0xffffffff)), P('s_mov_b32 exec_hi, 0x%x' % (m >> 32))]
        ops.append(VM('buffer_load_dword v102, v%d, s[28:31], s55 offen' % vL128))
        if nl < 64:
            ops.append(P('s_mov_b64 exec, -1'))
        return ops

    def touch_code(self, lab0, lab1, base, nl=1):
        return [P('s_lshr_b32 s55, s%d, 13' % sTUX), P('s_mul_i32 s55, s55, %d' % (nl * 128)),
                P('v_add_u32 v%d, s55, v%d' % (253, vL128)),
                P('v_add_u32 v%d, %s-L_PC, v%d' % (253, lab0, 253)),
                P('v_min_u32 v%d, %s-L_PC, v%d' % (253, lab1, 253)),
                P('s_mov_b64 exec, %d' % ((1 << nl) - 1)),
                VM('global_load_dword v102, v%d, s[%d:%d]' % (253, base, base + 1)),
                P('s_mov_b64 exec, -1')]

    def delta(self, dst, shift=7):
        if not self.cfg.get('split', 0):
            return [P('s_mov_b32 s%d, 0' % dst)]
        return [P('s_xor_b32 s%d, s%d, 4' % (dst, sCT)), P('s_sub_u32 s%d, s%d, s%d' % (dst, dst, sCT)), P('s_lshl_b32 s%d, s%d, %d' % (dst, dst, shift))]

    def touch_mall(self):
        o = [P('s_lshl_b32 s54, s2, 2'), P('s_add_u32 s54, s54, s%d' % sW)]
        for srd, first, n in ((SRD_W1, 0, 224), (SRD_W2, 256, 224), (SRD_WO, 512, 64)):
            o += [P('s_sub_u32 s55, s54, %d' % first), P('s_cmp_lt_u32 s55, %d' % n), P('s_cselect_b32 s55, s55, 0x3ff80'),
                  P('s_lshl_b32 s55, s55, 13'),
                  VM('buffer_load_dword v102, v%d, s[%d:%d], s55 offen' % (vL128, srd, srd + 3))]
        return o

    def touch_set(self, spec, only_r1=False):
        out = []
        for name in spec.split(','):
            if not name:
                continue
            if name == 'of':
                out.append(self.touch_act_even(0, 131072))
            elif name == 'af':
                out.append(self.touch_act_even(131072, 458752 - 131072))
            elif name == 'xf':
                out.append(self.touch_act_even(458752, 139264))
            else:
                out += self.touch_w(name, only_r1)
        return out

    def dma_wq_quarter(self, qd, panels=(0, 1, 2), src=None):
        out = []
        for a in range(2):
            for p in panels:
                rg = 8 * qd + 4 * a
                out.append(self.dma(SRD_WQ, vDQ, src if src is not None else sWQ_SRC, rg * 49152 + p * 1024, sW1K, L_W + p * 32768 + rg * 1024))
        return out

    def dma_wo_slot(self, srd, nk, t, kh, pos):
        js = kh * nk + t
        return self.dma(srd, vDO, sWO_SRC, js * 32768, sW1K, L_W + (2 * pos + kh) * 4096)

    def dma_w1_group(self, a):
        out = []
        for u in range(7):
            out.append(self.dma(SRD_W1, vD1 + u, sW1_SRC, a * 4 * 32 * 3584, sW1_M, L_W1P[a] + u * 1024))
        return out

    def window_loop(self, n0, n1, srd, srcA_s, srcA_imm, srcB, ldsC, ldsD, subs):
        lab = self.L('win'); end = self.L('winend')
        o = [P('s_add_u32 s%d, s%d, %d' % (sIT, sW, n0 - 1)),
             P('s_cmp_ge_u32 s%d, %d' % (sIT, n1)),
             P('s_cbranch_scc1 %s' % end),
             LAB(lab),
             P('s_mul_i32 s%d, s%d, %d' % (sA, sIT, srcB))]
        if srcA_s is not None:
            o.append(P('s_add_u32 s%d, s%d, s%d' % (sA, sA, srcA_s)))
        o.append(P('s_add_u32 s%d, s%d, %d' % (sA, sA, srcA_imm)))
        o.append(P('s_mul_i32 s%d, s%d, %d' % (sB, sIT, ldsD)))
        for (voff, so, lo) in subs:
            o.append(P('s_add_u32 m0, s%d, %d' % (sB, ldsC + lo)))
            o.append(P('s_add_u32 s%d, s%d, %d' % (sT0, sA, so)))
            nt = ' nt' if (self.cfg.get('nt') and srd in (SRD_W1, SRD_W2)) else ''
            if self.cfg.get('nodma'):
                o.append(P('s_nop 0'))
            else:
                o.append(P('buffer_load_dwordx4 v%d, s[%d:%d], s%d offen%s lds' % (voff, srd, srd + 3, sT0, nt)))
        o += [P('s_add_u32 s%d, s%d, 3' % (sIT, sIT)),
              P('s_cmp_lt_u32 s%d, %d' % (sIT, n1)),
              P('s_cbranch_scc1 %s' % lab),
              LAB(end)]
        return o

    def win_wq(self, rg0, rg1):
        return [P('s_lshl_b32 s%d, s%d, 6' % (sC, sM))] + self.window_loop(
            rg0, rg1, SRD_WQ, sC, 0, 49152, L_W, 1024, [(vDQ, p * 1024, p * 32768) for p in range(3)])

    def win_wo(self, srd, nk, t0, t1, dpos=0):
        subs = []
        for kh in range(2):
            for q in range(4):
                subs.append((vDO, kh * nk * 32768 + q * 8192, kh * 4096 + q * 1024))
        return [P('s_lshl_b32 s%d, s%d, 7' % (sC, sCT))] + self.window_loop(
            t0, t1, srd, sC, 0, 32768, L_W + dpos * 8192, 8192, subs)

    def win_w1(self, j0, j1):
        a = j0 // 4
        base = L_W1P[a] - j0 * 7168
        for j in range(j0, j1):
            assert L_W1P[j // 4] + (j % 4) * 7168 == base + j * 7168
        return [P('s_mul_i32 s%d, s%d, 224' % (sC, sM))] + self.window_loop(
            j0, j1, SRD_W1, sC, 0, 32 * 3584, base, 7168, [(vD1 + u, 0, u * 1024) for u in range(7)])

    def gemm_loop(self, groups, LA, extras):
        out = []
        n = len(groups)
        for k in range(min(LA, n)):
            out += groups[k].get('pre', []) + groups[k]['reads']
        flat = []
        for gi, g in enumerate(groups):
            rq = []
            if gi + LA < n:
                rq = list(groups[gi + LA].get('pre', [])) + list(groups[gi + LA]['reads'])
            nm = len(g['mf'])
            chunks = [[] for _ in range(nm)]
            reads_total = sum(1 for x in rq if x.kind == 'lg')
            per = max(1, -(-reads_total // nm))
            c = 0; cnt = 0
            for x in rq:
                chunks[min(c, nm - 1)].append(x)
                if x.kind == 'lg':
                    cnt += 1
                    if cnt == per:
                        cnt = 0; c += 1
            for k, (text, waits) in enumerate(g['mf']):
                w = list(waits)
                if k == 0:
                    w += [x.tag for x in g['reads']]
                flat.append((text, w, g.get('premf', []) if k == 0 else [], chunks[k]))
        extras = sorted(extras, key=lambda e: e[0])
        ei = 0
        for idx, (text, w, premf, chunk) in enumerate(flat):
            if idx == 0:
                out += premf + [W(w)]
            out.append(P(text))
            if idx + 1 < len(flat):
                out += flat[idx + 1][2]
                out.append(W(flat[idx + 1][1]))
            out += chunk
            k = 0
            while ei < len(extras) and extras[ei][0] <= idx and k < self.cfg.get('extra_per', 1):
                out += extras[ei][1]
                ei += 1; k += 1
        while ei < len(extras):
            out += extras[ei][1]; ei += 1
        return out

    @staticmethod
    def flat(ops):
        out = []
        for x in ops:
            if x is None:
                continue
            if isinstance(x, (list, tuple)):
                out += Gen.flat(x)
            else:
                out.append(x)
        return out

    def spread(self, ops, start, step=1, nvec=1):
        out = []; cur = []; nv = 0; at = start
        ops = self.flat(ops)
        for i, x in enumerate(ops):
            cur.append(x)
            t = x.text or ''
            if t.startswith('v_') or t.startswith('buffer_') or t.startswith('ds_'):
                nv += 1
                nxt = (ops[i + 1].text or '') if i + 1 < len(ops) else ''
                glued = (t.startswith('v_cmp') and ' vcc,' in t) or (nxt.startswith('v_cndmask') and nxt.rstrip().endswith('vcc'))
                if nv >= nvec and not glued:
                    out.append((at, cur)); cur = []; nv = 0; at += step
        if cur:
            out.append((at, cur))
        return out

    def afrag(self, n):
        return vAF + (n % NAF) * 4

    def prologue(self):
        cfg = self.cfg
        o = self.add
        o(P('s_cmp_ge_u32 s2, 256'), P('s_cbranch_scc1 L_END'))
        if cfg.get('ts'):
            o(P('v_mov_b32 v103, 0'), self.ts(13))
            if cfg.get('dbgts'):
                o(P('s_memrealtime s[92:93]'), P('s_waitcnt lgkmcnt(0)'), P('v_writelane_b32 v103, s92, 12'))
        o(P('s_load_dwordx16 s[72:87], s[0:1], 0'), P('s_load_dwordx4 s[88:91], s[0:1], 64'))
        if cfg.get('t_code', 1):
            nl = cfg.get('code_nl', 2 if cfg.get('code_staged', 1) else 3)
            o(P('s_getpc_b64 s[50:51]'), LAB('L_PC'),
              P('s_lshr_b32 s52, s2, 3'), P('s_mul_i32 s52, s52, %d' % (4 * nl)),
              P('v_lshrrev_b32 v252, 6, v0'), P('v_mul_u32_u24 v252, %d, v252' % nl), P('v_and_b32 v253, 63, v0'),
              P('v_add3_u32 v252, v252, v253, s52'), P('v_lshlrev_b32 v252, 7, v252'),
              P('v_min_u32 v252, %s-L_PC, v252' % ('L_C2' if cfg.get('code_staged', 1) else 'L_END')),
              P('s_mov_b64 exec, %d' % ((1 << nl) - 1)),
              VM('global_load_dword v102, v252, s[50:51]'),
              P('s_mov_b64 exec, -1'))
        o(P('s_getreg_b32 s%d, hwreg(HW_REG_XCC_ID, 0, 4)' % sXCC))
        o(P('s_and_b32 s52, s2, 7'), P('s_lshr_b32 s53, s2, 3'), P('s_lshr_b32 s54, s53, 4'),
          P('s_lshl_b32 s%d, s52, 1' % sG), P('s_add_u32 s%d, s%d, s54' % (sG, sG)),
          P('s_and_b32 s%d, s53, 15' % sM))
        if cfg.get('cross_groups'):
            o(P('s_lshr_b32 s%d, s2, 4' % sG), P('s_and_b32 s%d, s2, 15' % sM))
        o(P('v_lshrrev_b32 v252, 6, v0'), P('v_and_b32 v%d, 63, v0' % vLANE), P('v_readfirstlane_b32 s%d, v252' % sW))
        I = 250; Gq = 251; RR = 249; I3 = 248; t0 = 252; t1 = 253; t2 = 254; t3 = 255
        o(P('v_lshlrev_b32 v%d, 7, v%d' % (vL128, vLANE)), P('v_lshlrev_b32 v%d, 4, v%d' % (vL16, vLANE)))
        o(P('v_lshrrev_b32 v%d, 2, v%d' % (t0, vLANE)), P('v_lshrrev_b32 v%d, 2, v%d' % (t1, t0)),
          P('v_xor_b32 v%d, v%d, v%d' % (t1, t1, vLANE)), P('v_and_b32 v%d, 3, v%d' % (t1, t1)),
          P('v_lshlrev_b32 v%d, 4, v%d' % (t1, t1)),
          P('v_lshl_add_u32 v%d, v%d, 11, v%d' % (vDX, t0, t1)))
        o(P('v_lshlrev_b32 v%d, 1, v%d' % (t2, t0)), P('v_add_u32 v%d, 16, v%d' % (t3, t2)), P('v_add_u32 v%d, 1, v%d' % (t2, t2)),
          P('v_cmp_gt_u32 vcc, 8, v%d' % t0),
          P('s_lshr_b32 s%d, s%d, 3' % (sTH, sM)), P('s_and_b32 s%d, s%d, 7' % (sCT, sM)),
          P('v_cndmask_b32 v%d, v%d, v%d, vcc' % (t2, t2, t3)),
          P('v_lshl_add_u32 v%d, v%d, 10, v%d' % (vDH, t2, t1)),
          P('s_cmp_eq_u32 s%d, 0' % sG), P('s_cselect_b32 s53, 0x40000000, 0'), P('v_or_b32 v%d, s53, v%d' % (vDH, vDH)))
        o(P('v_lshrrev_b32 v%d, 4, v%d' % (t1, vLANE)), P('v_lshrrev_b32 v%d, 1, v%d' % (t2, vLANE)),
          P('v_xor_b32 v%d, v%d, v%d' % (t1, t1, t2)), P('v_and_b32 v%d, 1, v%d' % (t1, t1)),
          P('v_lshlrev_b32 v%d, 5, v%d' % (t1, t1)), P('v_and_b32 v%d, 1, v%d' % (t2, vLANE)),
          P('v_lshl_add_u32 v%d, v%d, 4, v%d' % (t1, t2, t1)),
          P('v_mul_u32_u24 v%d, 3072, v%d' % (t2, t0)), P('v_add_u32 v%d, v%d, v%d' % (vDQ, t1, t2)))
        o(P('s_mov_b32 s%d, 0' % sRND), P('s_mov_b32 s%d, 0' % sMODE),
          P('s_mul_i32 s%d, s%d, 49152' % (sWQ_SRC, sW)), P('s_lshl_b32 s52, s%d, 6' % sM),
          P('s_add_u32 s%d, s%d, s52' % (sWQ_SRC, sWQ_SRC)),
          P('s_lshl_b32 s%d, s%d, 10' % (sW1K, sW)),
          P('s_lshl_b32 s%d, s%d, 13' % (sWO_SRC, sW)), P('s_and_b32 s52, s%d, %d' % (sCT, 3 if cfg.get('split', 0) else 7)), P('s_lshl_b32 s52, s52, 7'),
          P('s_add_u32 s%d, s%d, s52' % (sWO_SRC, sWO_SRC)),
          P('s_mul_i32 s%d, s%d, %d' % (sW1_SRC, sW, 32 * 3584)), P('s_mul_i32 s52, s%d, 224' % sM),
          P('s_add_u32 s%d, s%d, s52' % (sW1_SRC, sW1_SRC)),
          P('s_mul_i32 s%d, s%d, 7168' % (sW1_M, sW)),
          P('s_lshl_b32 s%d, s%d, 8' % (sGFLG, sG)),
          P('s_lshl_b32 s52, s%d, 2' % sM), P('s_add_u32 s52, s52, s%d' % sW), P('s_lshl_b32 s52, s52, 2'),
          P('s_add_u32 s%d, s%d, s52' % (sFLGOFF, sGFLG)),
          P('s_and_b32 s52, s%d, 1' % sG), P('s_lshl_b32 s52, s52, 4'), P('s_add_u32 s52, s52, s%d' % sM),
          P('s_lshl_b32 s52, s52, 2'), P('s_add_u32 s52, s52, s%d' % sW), P('s_lshl_b32 s%d, s52, 13' % sTUX),
          P('s_mul_i32 s94, s52, 2176'),
          P('s_lshl_b32 s52, s%d, 2' % sM), P('s_add_u32 s52, s52, s%d' % sW), P('s_lshl_b32 s%d, s52, 13' % sTUG),
          P('s_mul_i32 s%d, s%d, %d' % (sST, sG, ACT_G)),
          P('s_andn2_b32 s52, s%d, 1' % sG), P('s_lshl_b32 s52, s52, 17'), P('s_sub_u32 s52, s52, 16384'),
          P('s_max_i32 s52, s52, 0'), P('s_add_u32 s94, s94, s52'),
          P('s_lshl_b32 s52, s%d, 7' % sG), P('s_sub_u32 s53, s52, 32'), P('s_lshl_b32 s97, s53, 10'),
          P('s_cmp_eq_u32 s%d, 0' % sG), P('s_cselect_b32 s97, 0, s97'), P('s_lshl_b32 s53, s%d, 6' % sW), P('s_add_u32 s97, s97, s53'))
        for b in range(2):
            o(P('s_lshl_b32 s53, s%d, 1' % sW), P('s_add_u32 s53, s53, %d' % b), P('s_and_b32 s53, s53, 3'),
              P('s_lshl_b32 s53, s53, 5'), P('s_add_u32 s53, s53, s52'), P('s_lshr_b32 s54, s%d, 1' % sW),
              P('s_add_u32 s53, s53, s54'), P('s_lshl_b32 s%d, s53, 10' % (95 + b)))
        o(P('s_lshl_b32 s98, s%d, 11' % sW))
        o(P('s_waitcnt lgkmcnt(0)'))
        if cfg.get('pts') == 1:
            o(self.ts(14))
        def srd(dst, src, size):
            return [P('s_mov_b32 s%d, s%d' % (dst, src)), P('s_and_b32 s%d, s%d, 0xffff' % (dst + 1, src + 1)),
                    P('s_mov_b32 s%d, 0x%x' % (dst + 2, size)), P('s_mov_b32 s%d, 0x20000' % (dst + 3))]
        o(srd(SRD_X, 72, 2097152), srd(SRD_WQ, 74, 512 * 3072))
        tp = cfg.get('t_pro', 1)
        def tq(q):
            return self.touch_range('wq', q * 393216, (q + 1) * 393216) if tp else []
        if tp:
            o(P('s_mov_b32 exec_lo, 0x1ffff'), P('s_mov_b32 exec_hi, 0'),
              VM('buffer_load_dword v102, v%d, s[8:11], s94 offen' % vL128), P('s_mov_b64 exec, -1'))
        o(tq(0), tq(1))
        allfirst = cfg.get('cold', 'A') == 'A'
        coldD = cfg.get('cold', 'A') in ('D', 'E')
        if allfirst:
            o(tq(2), tq(3))
        if coldD:
            o(tq(2))
        o(srd(SRD_WO, 76, 524288), srd(SRD_W1, 80, 512 * 3584), srd(SRD_B1, 82, 3584), srd(SRD_W2, 84, 1792 * 1024),
          srd(SRD_OUT, 86, 2097152), srd(SRD_DBG, 88, 256), srd(SRD_WS, 90, WS_SIZE))
        o(P('s_mov_b32 s%d, s95' % sXR0), P('s_mov_b32 s%d, s96' % sXR1), P('s_mov_b32 s%d, s97' % sHSRC), P('s_mov_b32 s%d, s98' % sD))
        o(P('s_and_b32 s52, s%d, 1' % sG), P('s_lshl_b32 s52, s52, 3'), P('s_add_u32 s52, s52, s%d' % sM),
          P('s_and_b32 s99, s52, %d' % (15 if cfg.get('rot', 0) else 0)), P('s_lshl_b32 s98, s99, 1'), P('s_add_u32 s98, s98, s%d' % sW),
          P('s_lshl_b32 s95, s%d, 6' % sM), P('s_lshl_b32 s52, s%d, 6' % sW), P('s_sub_u32 s%d, s%d, s52' % (sHSRC, sHSRC)))
        self.tq = (lambda q: []) if (allfirst or coldD) else tq
        self.tq3 = tq(3) if coldD else None
        if cfg.get('t_mall', 0) == 1:
            o(self.touch_mall())
        if cfg.get('prezero'):
            o(P('v_mov_b32 v244, 0'), P('v_mov_b32 v245, 0'), P('v_mov_b32 v246, 0'), P('v_mov_b32 v247, 0'),
              P('s_lshr_b32 s55, s%d, 13' % sTUG), P('s_mul_i32 s55, s55, 9344'), P('s_add_u32 s55, s55, s%d' % sST), P('s_add_u32 s55, s55, %d' % WS_ACT))
            for k in range(9):
                if k % 4 == 0 and k:
                    o(P('s_add_u32 s55, s55, 4096'))
                o(VM('buffer_store_dwordx4 v[244:247], v%d, s[28:31], s55 offen offset:%d sc1' % (vL16, (k % 4) * 1024)))
            o(P('s_mov_b64 exec, 0xff'), VM('buffer_store_dwordx4 v[244:247], v%d, s[28:31], s55 offen offset:1024 sc1' % vL16), P('s_mov_b64 exec, -1'))
        self.tag_init = newtag('init')
        o(P('v_mov_b32 v%d, 0' % t1), P('s_mov_b64 exec, 1'),
          VM('buffer_store_dword v%d, v%d, s[28:31], s%d offen sc1' % (t1, t1, sFLGOFF), self.tag_init),
          P('s_mov_b64 exec, -1'))
        if cfg.get('pts') == 1:
            o(self.ts(15))
        o(P('v_and_b32 v%d, 15, v%d' % (I, vLANE)), P('v_lshrrev_b32 v%d, 4, v%d' % (Gq, vLANE)),
          P('v_lshrrev_b32 v%d, 2, v%d' % (t0, I)), P('v_lshl_add_u32 v%d, v%d, 2, v%d' % (RR, Gq, t0)),
          P('v_and_b32 v%d, 3, v%d' % (I3, I)))
        for k in range(4):
            o(P('v_mov_b32 v%d, 0x3f803f80' % (vONES + k)))
        o(P('v_lshlrev_b32 v%d, 6, v%d' % (t0, RR)), P('v_lshl_add_u32 v%d, v%d, 3, v%d' % (t0, I3, t0)),
          P('v_add_u32 v%d, %d, v%d' % (t0, L_W, t0)),
          P('v_and_b32 v%d, 1, v%d' % (t1, Gq)), P('v_lshlrev_b32 v%d, 5, v%d' % (t1, t1)),
          P('v_add_u32 v%d, v%d, v%d' % (vWQA, t0, t1)),
          P('v_xor_b32 v%d, 32, v%d' % (t2, t1)), P('v_add_u32 v%d, v%d, v%d' % (vWQA + 1, t0, t2)),
          P('v_add_u32 v%d, 0x10000, v%d' % (vWQA + 2, vWQA)), P('v_add_u32 v%d, 0x10000, v%d' % (vWQA + 3, vWQA + 1)))
        o(P('s_and_b32 s53, s%d, 1' % sW), P('s_lshl_b32 s53, s53, 5'), P('v_xor_b32 v%d, s53, v%d' % (t2, t1)),
          P('v_add_u32 v%d, v%d, v%d' % (vE2, t0, t2)),
          P('s_lshr_b32 s53, s%d, 1' % sW), P('s_add_u32 s53, s53, 1'), P('s_lshl_b32 s53, s53, 15'),
          P('v_add_u32 v%d, s53, v%d' % (vE1, vE2)))
        o(P('v_lshrrev_b32 v%d, 1, v%d' % (t0, Gq)), P('v_lshrrev_b32 v%d, 2, v%d' % (t1, I)),
          P('v_xor_b32 v%d, v%d, v%d' % (t0, t0, t1)), P('v_lshlrev_b32 v%d, 4, v%d' % (t0, t0)),
          P('v_lshl_add_u32 v%d, v%d, 6, v%d' % (t0, I, t0)),
          P('v_and_b32 v%d, 1, v%d' % (t1, Gq)), P('v_lshl_add_u32 v%d, v%d, 3, v%d' % (t0, t1, t0)),
          P('v_add_u32 v%d, %d, v%d' % (vHXA, L_HALO, t0)), P('v_xor_b32 v%d, 32, v%d' % (vHXB, vHXA)),
          P('s_lshl_b32 s53, s%d, 11' % sW), P('s_add_u32 s53, s53, %d' % L_RING),
          P('v_add_u32 v%d, s53, v%d' % (vXA, t0)), P('v_xor_b32 v%d, 32, v%d' % (vXB, vXA)))
        o(P('v_cmp_eq_u32 s[%d:%d], 1, v%d' % (sMA, sMA + 1, I3)), P('v_cmp_eq_u32 s[%d:%d], 2, v%d' % (sMB, sMB + 1, I3)),
          P('v_cmp_eq_u32 s[%d:%d], 3, v%d' % (sMC, sMC + 1, I3)), P('v_lshrrev_b32 v%d, 2, v%d' % (t0, I)),
          P('v_cmp_eq_u32 s[%d:%d], v%d, v%d' % (sMD, sMD + 1, t0, Gq)))
        o(P('v_lshlrev_b32 v%d, 4, v%d' % (vCS, Gq)))
        o(P('s_lshl_b32 s%d, s%d, 17' % (sGBASE, sG)),
          P('s_lshl_b32 s52, s%d, 2' % sTH), P('s_add_u32 s%d, s52, s%d' % (sTB, sW)))
        if cfg.get('ts'):
            o(P('s_lshl_b32 s52, s2, 2'), P('s_add_u32 s52, s52, s%d' % sW), P('s_lshl_b32 s52, s52, 8'),
              P('s_add_u32 s%d, s52, %d' % (sTSO, 0x1F80000)))
        o(self.setup2())
        if cfg.get('pts') == 1:
            o(self.ts(29))
        self.xslot = {}; self.wq_q = {}; self.halo_dma = []
        for j in range(16):
            self.xslot[j] = self.x_ring_dma(j)
        for q in range(4):
            self.wq_q[q] = self.wq_rot_quarter(q)
        for a in range(4):
            if not cfg.get('rot', 0):
                self.halo_dma.append(self.dma(SRD_X, vDH, 97, a * 256, sW1K, L_HALO + a * 4096))
                continue
            self.halo_dma.append([P('s_add_u32 m0, s%d, %d' % (sW1K, L_HALO + a * 4096)), P('s_add_u32 s52, s99, s%d' % sW), P('s_add_u32 s52, s52, %d' % (4 * a)),
                                  P('s_and_b32 s52, s52, 15'), P('s_lshl_b32 s52, s52, 6'), P('s_add_u32 s52, s52, s%d' % sHSRC),
                                  VM('buffer_load_dwordx4 v%d, s[8:11], s52 offen lds' % vDH)])
        o(self.xslot[0], self.wq_q[0], self.halo_dma[0], self.xslot[1])
        if cfg.get('pts') == 1:
            o(self.ts(30))

    def setup2(self):
        I = 228; Gq = 229; RR = 230; I3 = 231; t0 = 232; t1 = 233; t2 = 234; t3 = 235; tr = 236
        o = []
        o += [P('v_and_b32 v%d, 15, v%d' % (I, vLANE)), P('v_lshrrev_b32 v%d, 4, v%d' % (Gq, vLANE)),
              P('v_lshrrev_b32 v%d, 2, v%d' % (t0, I)), P('v_lshl_add_u32 v%d, v%d, 2, v%d' % (RR, Gq, t0)),
              P('v_and_b32 v%d, 3, v%d' % (I3, I))]
        o += [P('v_lshrrev_b32 v%d, 3, v%d' % (t0, vLANE)), P('v_lshrrev_b32 v%d, 1, v%d' % (t1, t0)),
              P('v_lshrrev_b32 v%d, 1, v%d' % (t2, vLANE)), P('v_xor_b32 v%d, v%d, v%d' % (t1, t1, t2)),
              P('v_and_b32 v%d, 3, v%d' % (t1, t1)), P('v_lshlrev_b32 v%d, 5, v%d' % (t1, t1)),
              P('v_and_b32 v%d, 1, v%d' % (t2, vLANE)), P('v_lshl_add_u32 v%d, v%d, 4, v%d' % (t1, t2, t1)),
              P('v_lshl_add_u32 v%d, v%d, 10, v%d' % (vDO, t0, t1))]
        if self.cfg.get('split', 0):
            o += [P('s_and_b32 s80, s%d, 4' % sCT), P('s_lshl_b32 s80, s80, 7'), P('s_xor_b32 s81, s80, 512'),
                  P('v_add_u32 v%d, s81, v%d' % (t2, vDO)), P('v_add_u32 v%d, s80, v%d' % (vDO, vDO)),
                  P('v_and_b32 v%d, 64, v%d' % (t1, t1)), P('v_cmp_ne_u32 vcc, 0, v%d' % t1),
                  P('v_cndmask_b32 v%d, v%d, v%d, vcc' % (vDO, vDO, t2))]
        for c in range(448):
            assert (c * 4682) >> 16 == c // 14
        for u in range(7):
            o += [P('v_add_u32 v%d, %d, v%d' % (t0, 64 * u, vLANE)), P('v_mul_u32_u24 v%d, 4682, v%d' % (t1, t0)),
                  P('v_lshrrev_b32 v%d, 16, v%d' % (t1, t1)), P('v_mul_u32_u24 v%d, 14, v%d' % (t2, t1)),
                  P('v_sub_u32 v%d, v%d, v%d' % (t2, t0, t2)), P('v_lshlrev_b32 v%d, 4, v%d' % (t2, t2)),
                  P('v_mul_u32_u24 v%d, 3584, v%d' % (t1, t1)), P('v_add_u32 v%d, v%d, v%d' % (vD1 + u, t1, t2))]
        o += [P('s_lshl_b32 s80, s%d, 7' % sG), P('s_lshl_b32 s81, s%d, 5' % sW), P('s_add_u32 s80, s80, s81'), P('s_add_u32 s80, s80, s%d' % sTH),
              P('s_lshl_b32 s80, s80, 10'), P('s_lshl_b32 s81, s%d, 7' % sCT), P('s_add_u32 s61, s80, s81'),
              P('v_lshlrev_b32 v%d, 11, v%d' % (t1, I)), P('v_lshl_add_u32 v%d, v%d, 3, v%d' % (tr, Gq, t1))]
        self.tag_res = [newtag('res') for _ in range(4)]
        self.res_ops = []
        for fb in range(4):
            pre = (self.delta(55) + [P('s_add_u32 s55, s55, s61')]) if fb >= 2 else []
            self.res_ops.append(pre + [VM('buffer_load_dwordx2 v[%d:%d], v%d, s[8:11], s%d offen offset:%d' % (vR + 2 * fb, vR + 2 * fb + 1, tr, 55 if fb >= 2 else 61, fb * 32), self.tag_res[fb])])
        self.tag_b1 = newtag('b1')
        self.b1_op = [P('v_lshlrev_b32 v%d, 2, v%d' % (237, vLANE)), P('s_mul_i32 s80, s%d, 224' % sM),
                      VM('buffer_load_dword v247, v237, s[40:43], s80 offen', self.tag_b1)]
        o += [P('v_and_b32 v%d, 1, v%d' % (t2, Gq)), P('v_lshlrev_b32 v%d, 5, v%d' % (t2, t2)),
              P('v_lshrrev_b32 v%d, 1, v%d' % (t3, Gq)), P('v_lshl_add_u32 v%d, v%d, 4, v%d' % (t2, t3, t2)),
              P('v_lshl_add_u32 v%d, v%d, 11, v%d' % (vOUT, I, t2))]
        o += [P('s_mov_b32 s%d, 1.0' % sONE), P('s_mov_b32 s%d, 1.0' % (sONE + 1)),
              P('s_mov_b32 s%d, %s' % (sM2L, f32(-2 * LN2))), P('s_mov_b32 s%d, %s' % (sM2L + 1, f32(-2 * LN2))),
              P('v_mov_b32 v%d, %s' % (vLN2, f32(LN2))), P('v_mov_b32 v%d, %s' % (vLN2 + 1, f32(LN2)))]
        o += [P('v_mul_u32_u24 v%d, 224, v%d' % (t0, RR)), P('v_lshl_add_u32 v%d, v%d, 3, v%d' % (vW1A, I3, t0)),
              P('v_add_u32 v%d, 0x10000, v%d' % (vW1A + 1, vW1A)), P('v_add_u32 v%d, 0x20000, v%d' % (vW1A + 2, vW1A))]
        o += [P('v_lshlrev_b32 v%d, 7, v%d' % (t0, RR)), P('v_lshl_add_u32 v%d, v%d, 3, v%d' % (t0, I3, t0)),
              P('s_and_b32 s80, s%d, 1' % sW), P('s_lshl_b32 s80, s80, 12'), P('s_add_u32 s80, s80, %d' % L_W),
              P('v_add_u32 v%d, s80, v%d' % (t0, t0)),
              P('v_lshrrev_b32 v%d, 1, v%d' % (t1, RR)), P('v_and_b32 v%d, 3, v%d' % (t1, t1))]
        for fb in range(4):
            o += [P('v_xor_b32 v%d, %d, v%d' % (t2, fb, t1)), P('v_lshl_add_u32 v%d, v%d, 5, v%d' % (vW2A + fb * 3, t2, t0)),
                  P('v_add_u32 v%d, 0x10000, v%d' % (vW2A + fb * 3 + 1, vW2A + fb * 3)),
                  P('v_add_u32 v%d, 0x20000, v%d' % (vW2A + fb * 3 + 2, vW2A + fb * 3))]
        NEG = f32(-1e30)
        o += [P('v_mov_b32 v%d, %s' % (t3, NEG))]
        for r in range(4):
            o += [P('v_lshl_add_u32 v%d, v%d, 2, %d' % (t0, Gq, r)),
                  P('v_sub_u32 v%d, v%d, v%d' % (t1, I, t0)), P('v_cmp_gt_u32 vcc, 8, v%d' % t1),
                  P('v_cndmask_b32_e64 v%d, v%d, 0, vcc' % (vCCUR + r, t3)),
                  P('v_add_u32 v%d, 9, v%d' % (t1, I)), P('v_cmp_ge_u32 vcc, v%d, v%d' % (t0, t1)),
                  P('v_cndmask_b32_e64 v%d, v%d, 0, vcc' % (vCPREV + r, t3))]
        o += [P('s_and_b32 s80, s%d, 1' % sW), P('s_or_b32 s80, s80, s%d' % sG), P('s_cmp_eq_u32 s80, 0'), P('s_cselect_b64 vcc, -1, 0')]
        for r in range(4):
            o.append(P('v_cndmask_b32 v%d, v%d, v%d, vcc' % (vCPA + r, vCPREV + r, t3)))
        o += [P('v_lshlrev_b32 v%d, 2, v%d' % (t0, Gq)), P('v_add_u32 v%d, 6, v%d' % (t1, I)),
              P('v_cmp_ge_u32 s[%d:%d], v%d, v%d' % (sUP, sUP + 1, t0, t1))]
        o += [P('v_lshlrev_b32 v%d, 5, v%d' % (t0, I)), P('v_lshl_add_u32 v%d, v%d, 3, v%d' % (t0, Gq, t0)),
              P('s_lshl_b32 s80, s%d, 11' % sW), P('s_add_u32 s80, s80, %d' % L_EX), P('v_add_u32 v%d, s80, v%d' % (vEXV, t0))]
        o += [P('s_lshr_b32 s80, s%d, 1' % sW), P('s_add_u32 s81, s80, 3'), P('s_bitcmp1_b32 s%d, 0' % sW),
              P('s_cselect_b32 s80, s81, s80'), P('s_lshl_b32 s80, s80, 10'), P('s_add_u32 s80, s80, %d' % L_EXK),
              P('v_lshlrev_b32 v%d, 3, v%d' % (t1, vLANE)), P('v_add_u32 v%d, s80, v%d' % (vEXK, t1))]
        o += [P('s_and_b32 s80, s%d, 1' % sW), P('s_lshl_b32 s80, s80, 9'),
              P('s_add_u32 s81, s80, %d' % (L_EXK + 2048)), P('v_add_u32 v%d, s81, v%d' % (t2, t1)),
              P('s_add_u32 s81, s80, %d' % (L_EX + 8192)), P('v_add_u32 v%d, s81, v%d' % (t3, t0)),
              P('s_cmp_ge_u32 s%d, 2' % sW), P('s_cselect_b64 vcc, -1, 0'),
              P('v_cndmask_b32 v%d, v%d, v%d, vcc' % (vEXH, t2, t3))]
        o += [P('v_lshlrev_b32 v%d, 5, v%d' % (t0, RR)), P('v_lshl_add_u32 v%d, v%d, 3, v%d' % (t0, I3, t0)),
              P('s_lshl_b32 s80, s%d, 11' % sW), P('s_add_u32 s80, s80, %d' % L_EX), P('v_add_u32 v%d, s80, v%d' % (vRV, t0))]
        o += [P('v_subrev_u32 v%d, 1024, v%d' % (t1, vRV)),
              P('v_add_u32 v%d, %d, v%d' % (t2, L_EX + 8192, t0)),
              P('v_subrev_u32 v%d, 256, v%d' % (t3, t2)),
              P('v_cmp_le_u32 vcc, 8, v%d' % RR), P('v_cndmask_b32 v%d, v%d, v%d, vcc' % (t3, t2, t3)),
              P('s_cmp_eq_u32 s%d, 0' % sW), P('s_cselect_b64 vcc, -1, 0'), P('v_cndmask_b32 v%d, v%d, v%d, vcc' % (t2, t2, t3)),
              P('s_bitcmp1_b32 s%d, 0' % sW), P('s_cselect_b64 vcc, -1, 0'), P('v_cndmask_b32 v%d, v%d, v%d, vcc' % (vRVP, t2, t1))]
        o += [P('v_lshlrev_b32 v%d, 3, v%d' % (t0, vLANE)),
              P('s_lshr_b32 s80, s%d, 1' % sW), P('s_bitcmp1_b32 s%d, 0' % sW), P('s_cselect_b32 s80, s80, 2'),
              P('s_lshl_b32 s80, s80, 10'), P('s_add_u32 s80, s80, %d' % L_EXK), P('v_add_u32 v%d, s80, v%d' % (t0, t0)),
              P('v_subrev_u32 v%d, 64, v%d' % (t1, t0)), P('v_cmp_le_u32 vcc, 8, v%d' % I),
              P('v_cndmask_b32 v%d, v%d, v%d, vcc' % (t1, t0, t1)),
              P('s_cmp_eq_u32 s%d, 0' % sW), P('s_cselect_b64 vcc, -1, 0'), P('v_cndmask_b32 v%d, v%d, v%d, vcc' % (vRK, t0, t1))]
        o += [P('s_lshl_b32 s80, s%d, 12' % sW), P('v_add_u32 v%d, s80, v%d' % (vEXBW, vL16)),
              P('v_xor_b32 v%d, 0x1000, v%d' % (vEXBR, vEXBW))]
        o += [P('s_lshr_b32 s80, s%d, 1' % sCT), P('s_lshl_b32 s80, s80, 8'), P('s_and_b32 s81, s%d, 1' % sCT),
              P('s_lshl_b32 s81, s81, 3'), P('s_add_u32 s80, s80, s81'),
              P('v_lshlrev_b32 v%d, 4, v%d' % (t0, I)), P('v_add_u32 v%d, s80, v%d' % (vSTO, t0))]
        o += [P('s_cmp_eq_u32 s%d, 0' % sTH), P('s_cselect_b32 s81, 8, 0'),
              P('v_subrev_u32 v%d, s81, v%d' % (t0, I)),
              P('v_lshl_add_u32 v%d, v%d, 4, v%d' % (t1, Gq, t0)), P('v_lshlrev_b32 v%d, 4, v%d' % (t1, t1)),
              P('v_lshlrev_b32 v%d, 4, v%d' % (t2, t0)), P('v_add_u32 v%d, s80, v%d' % (t2, t2)),
              P('s_cmp_eq_u32 s%d, 3' % sW), P('s_cselect_b32 s80, 0, 0x40000000'),
              P('s_cmp_eq_u32 s%d, 15' % sG), P('s_cselect_b32 s80, 0x40000000, s80'),
              P('v_mov_b32 v%d, 0x40000000' % t3), P('v_cmp_le_u32 vcc, 8, v%d' % I),
              P('v_cndmask_b32 v%d, v%d, v%d, vcc' % (t1, t3, t1)), P('v_cndmask_b32 v%d, v%d, v%d, vcc' % (t2, t3, t2)),
              P('v_or_b32 v%d, s80, v%d' % (vHOF, t1)), P('v_or_b32 v%d, s80, v%d' % (vHST, t2))]
        return o

    def wq_stash(self, va, vb):
        o = [P('s_lshl_b32 s53, s%d, 10' % sW), P('s_add_u32 s53, s53, %d' % L_W), P('v_add_u32 v%d, s53, v%d' % (va, vL16)),
             P('v_add_u32 v%d, 0x10000, v%d' % (vb, va))]
        for p in range(12):
            for c in range(2):
                a = p * 8192 + c * 4096
                o.append(LG('ds_read_b128 %s, v%d offset:%d' % (ar(aWQ + (2 * p + c) * 4, 4), va if a < 65536 else vb, a & 0xffff)))
        return o

    def wo_stash(self):
        sk = self.L('wos')
        o = [P('s_cmp_lg_u32 s%d, 0' % sRND), P('s_cbranch_scc1 %s' % sk),
             P('s_lshl_b32 s53, s%d, 10' % sW), P('s_add_u32 s53, s53, %d' % L_W), P('v_add_u32 v%d, s53, v%d' % (vTA, vL16))]
        for c in range(16):
            o.append(P('ds_read_b128 %s, v%d offset:%d' % (ar(aWO + 4 * c, 4), vTA, c * 4096)))
        o += [P('s_waitcnt lgkmcnt(0)'), LAB(sk)]
        return o

    def p1_epi_fill(self):
        out = []
        wo = [self.dma_wo_slot(SRD_WO, 8, t, kh, t) for t in range(8) for kh in range(2)]
        a0 = self.dma_w1_group(0)
        gs = self.cfg.get('fill_g', 4)
        a0groups = [a0[0:2], a0[2:4], a0[4:6], a0[6:7]]
        for c0 in range(0, 16, gs):
            sk = self.L('wr1')
            e = [P('s_cmp_lg_u32 s%d, 0' % sRND), P('s_cbranch_scc1 %s ;nopad' % sk)]
            for c in range(c0, c0 + gs):
                e += [P(x.text) for x in wo[c]]
            e += [LAB(sk)]
            out.append(e)
        res = []
        for k, e in enumerate(out):
            res.append(e)
            n_a = 4 // len(out) if len(out) <= 4 else (1 if k % (len(out) // 4) == 0 else 0)
            for q in range(n_a):
                if a0groups:
                    sk = self.L('wr2')
                    blk = [P('s_cmp_eq_u32 s%d, 0' % sRND), P('s_cbranch_scc1 %s ;nopad' % sk)]
                    for d in a0groups.pop(0):
                        blk += [P(x.text) for x in d]
                    res.append(blk + [LAB(sk)])
        out = res
        return out

    def wo_restore(self):
        sk = self.L('wor')
        o = [P('s_cmp_eq_u32 s%d, 0' % sRND), P('s_cbranch_scc1 %s' % sk)]
        for c in range(16):
            o.append(P('ds_write_b128 v%d, %s offset:%d' % (vWOA, ar(aWO + 4 * c, 4), c * 4096)))
        return o + [LAB(sk)]

    def wq_restore(self, positions, va, vb):
        o = []
        for p in positions:
            for c in range(2):
                a = p * 8192 + c * 4096
                o.append([P('s_mov_b64 exec, s[74:75]'),
                          LG('ds_write_b128 v%d, %s offset:%d' % (va if a < 65536 else vb, ar(aWQ + (2 * p + c) * 4, 4), a & 0xffff)),
                          P('s_mov_b64 exec, -1')])
        return o

    def x_ring_dma(self, j):
        if not self.cfg.get('rot', 0):
            return [self.dma(SRD_X, vDX, sXR0 + b, j * 64, sD, L_RING + (j % 5) * 8192 + b * 1024) for b in range(2)]
        out = []
        for b in range(2):
            ops = [P('s_add_u32 m0, s%d, %d' % (sD, L_RING + (j % 5) * 8192 + b * 1024)),
                   P('s_add_u32 s52, s99, %d' % j), P('s_and_b32 s52, s52, 15'), P('s_lshl_b32 s52, s52, 6'),
                   P('s_add_u32 s52, s52, s%d' % (sXR0 + b)),
                   VM('buffer_load_dwordx4 v%d, s[8:11], s52 offen lds' % vDX)]
            out.append(ops)
        return out

    def wq_rot_quarter(self, qd):
        if not self.cfg.get('rot', 0):
            return self.dma_wq_quarter(qd)
        out = []
        for a in range(2):
            for p in range(3):
                rg = 8 * qd + 4 * a
                out.append([P('s_add_u32 m0, s%d, %d' % (sW1K, L_W + p * 32768 + rg * 1024)),
                            P('s_add_u32 s52, s98, %d' % rg), P('s_and_b32 s52, s52, 31'), P('s_mul_i32 s52, s52, 49152'),
                            P('s_add_u32 s52, s52, s95'), P('s_add_u32 s52, s52, %d' % (p * 1024)),
                            VM('buffer_load_dwordx4 v%d, s[12:15], s52 offen lds' % vDQ)])
        return out

    @staticmethod
    def vmtags(ops):
        t = []
        for x in ops:
            if isinstance(x, (list, tuple)):
                t += Gen.vmtags(x)
            elif x is not None and not isinstance(x, str) and x.kind == 'vm':
                t.append(x.tag)
        return t

    def finish_stats(self, s1, s2, pair_kv, pair_q=None, scale=None):
        t = vT + 80
        o = [P('v_mul_f32 v%d, %s, v%d' % (t, f32(1 / 512), s1)),
             P('v_mul_f32 v%d, %s, v%d' % (t + 1, f32(1 / 512), s2)),
             P('v_fma_f32 v%d, -v%d, v%d, v%d' % (t + 1, t, t, t + 1)),
             P('v_max_f32 v%d, 0, v%d' % (t + 1, t + 1)),
             P('v_add_f32 v%d, %s, v%d' % (t + 1, f32(1e-5), t + 1)),
             P('v_rsq_f32 v%d, v%d' % (pair_kv, t + 1))]
        if scale is not None:
            o.append(P('v_mul_f32 v%d, %s, v%d' % (pair_kv, f32(scale), pair_kv)))
        o.append(P('v_mul_f32 v%d, -v%d, v%d' % (pair_kv + 1, t, pair_kv)))
        if pair_q is not None:
            qs = f32(0.25 * LOG2E)
            o += [P('v_mul_f32 v%d, %s, v%d' % (pair_q, qs, pair_kv)), P('v_mul_f32 v%d, %s, v%d' % (pair_q + 1, qs, pair_kv + 1))]
        return o

    def reduce_g2(self, a, b):
        t = vT + 84
        return [P('v_permlane32_swap_b32 v%d, v%d' % (a, b)), P('v_add_f32 v%d, v%d, v%d' % (a, a, b)),
                P('v_mov_b32 v%d, v%d' % (t, a)), P('v_permlane16_swap_b32 v%d, v%d' % (a, t)),
                P('v_add_f32 v%d, v%d, v%d' % (a, a, t)), P('v_mov_b32 v%d, v%d' % (b, a)),
                P('v_permlane32_swap_b32 v%d, v%d' % (a, b))]

    def stats_from_st(self, regs, pair_kv, pair_q=None, scale=None):
        return [P('v_add_f32 v%d, v%d, v%d' % (regs, regs, regs + 2)), P('v_add_f32 v%d, v%d, v%d' % (regs + 1, regs + 1, regs + 3))] + \
            self.reduce_g2(regs, regs + 1) + self.finish_stats(regs, regs + 1, pair_kv, pair_q, scale)

    def accP1(self, blk, tb):
        return vACC + (blk * 2 + tb) * 4
    ACC_H = vACC + 48
    ACC_CS1 = vACC + 52
    ACC_CS2 = vACC + 56
    PKV = [vT + 0, vT + 2]; PQ = [vT + 4, vT + 6]; PH = vT + 8

    def wq_read(self, blk, j, part, dst):
        p = blk // 2; h = blk % 2
        if p < 2:
            return LG('ds_read_b64_tr_b16 v[%d:%d], v%d offset:%d' % (dst + 2 * part, dst + 2 * part + 1, vWQA + h, p * 32768 + j * 2048 + part * 1024))
        return LG('ds_read_b64_tr_b16 v[%d:%d], v%d offset:%d' % (dst + 2 * part, dst + 2 * part + 1, vWQA + 2 + h, j * 2048 + part * 1024))

    def p1a(self):
        o = self.add
        XB = vT + 12
        S1 = vT + 36
        S2 = vT + 48
        def xb(j, b): return XB + (j & 1) * 12 + b * 4
        xr_tags = {}
        def xreads(j):
            ops = []
            for b in range(2):
                ops.append(LG('ds_read_b64 v[%d:%d], v%d offset:%d' % (xb(j, b), xb(j, b) + 1, vXA, (j % 5) * 8192 + b * 1024)))
                ops.append(LG('ds_read_b64 v[%d:%d], v%d offset:%d' % (xb(j, b) + 2, xb(j, b) + 3, vXB, (j % 5) * 8192 + b * 1024)))
            ops.append(LG('ds_read_b64 v[%d:%d], v%d offset:%d' % (xb(j, 2), xb(j, 2) + 1, vHXA, j * 1024)))
            ops.append(LG('ds_read_b64 v[%d:%d], v%d offset:%d' % (xb(j, 2) + 2, xb(j, 2) + 3, vHXB, j * 1024)))
            xr_tags[j] = [x.tag for x in ops]
            return ops
        groups = []
        n = 0
        extras = []
        mfidx = 0
        first_idx = {}
        for j in range(16):
            first_idx[j] = mfidx
            z = (j == 0)
            for blk in range(8):
                dst = self.afrag(n); n += 1
                g = dict(pre=[], reads=[], mf=[])
                if blk == 0:
                    if j % 4 == 0:
                        q = j // 4
                        wt = self.vmtags(self.wq_q[q]) + self.vmtags(self.halo_dma[q])
                        g['pre'] += [W(wt), P('s_barrier')] if not (self.cfg.get('x_nobar') and q > 0) else []
                    if not self.cfg.get('x_nowait'):
                        g['pre'] += [W(self.vmtags(self.xslot[j]))]
                    g['reads'] += xreads(j)
                if blk < 6:
                    g['reads'] += [self.wq_read(blk, j, 0, dst), self.wq_read(blk, j, 1, dst)]
                    for tb in range(2):
                        acc = self.accP1(blk, tb)
                        c = '0' if z else vr(acc, 4)
                        g['mf'].append(('v_mfma_f32_16x16x32_bf16 %s, %s, %s, %s' % (vr(acc, 4), vr(dst, 4), vr(xb(j, tb), 4), c), []))
                    if blk in (1, 3, 5) and not self.cfg.get('x_nostat'):
                        b = blk // 2
                        for (accb, A) in ((S1 + b * 4, vONES), (S2 + b * 4, xb(j, b))):
                            c = '0' if z else vr(accb, 4)
                            g['mf'].append(('v_mfma_f32_16x16x32_bf16 %s, %s, %s, %s' % (vr(accb, 4), vr(A, 4), vr(xb(j, b), 4), c), []))
                else:
                    base = vE1 if blk == 6 else vE2
                    g['reads'] += [LG('ds_read_b64_tr_b16 v[%d:%d], v%d offset:%d' % (dst + 2 * part, dst + 2 * part + 1, base, j * 2048 + part * 1024)) for part in range(2)]
                    if blk == 6:
                        c = '0' if z else vr(self.ACC_H, 4)
                        g['mf'].append(('v_mfma_f32_16x16x32_bf16 %s, %s, %s, %s' % (vr(self.ACC_H, 4), vr(dst, 4), vr(xb(j, 2), 4), c), []))
                        c = '0' if z else vr(self.ACC_CS1, 4)
                        g['mf'].append(('v_mfma_f32_16x16x32_bf16 %s, %s, %s, %s' % (vr(self.ACC_CS1, 4), vr(dst, 4), vr(vONES, 4), c), []))
                    else:
                        c = '0' if z else vr(self.ACC_CS2, 4)
                        g['mf'].append(('v_mfma_f32_16x16x32_bf16 %s, %s, %s, %s' % (vr(self.ACC_CS2, 4), vr(dst, 4), vr(vONES, 4), c), []))
                mfidx += len(g['mf'])
                groups.append(g)
        def at(k, i):
            return first_idx[k] + i
        seq = []
        seq += [(at(0, 0), self.xslot[2][0]), (at(0, 2), self.xslot[2][1])]
        q1 = self.wq_q[1]
        seq += [(at(0, 5), q1[0]), (at(0, 8), q1[1]), (at(0, 11), q1[2]), (at(0, 14), self.xslot[3][0]), (at(0, 16), self.xslot[3][1]),
                (at(0, 19), self.tq(2)), (at(1, 1), q1[3]), (at(1, 4), q1[4]), (at(1, 7), q1[5]), (at(1, 10), self.halo_dma[1]),
                (at(1, 13), self.xslot[4][0]), (at(1, 15), self.xslot[4][1]), (at(1, 18), self.tq(3))]
        for j in range(11):
            for b, d in enumerate(self.xslot[j + 5]):
                seq.append((max(at(j, 2 + 2 * b), at(2, 0) + 2 * b + (j * 4 if j < 2 else 0)), d))
        if self.tq3:
            seq.append((at(self.cfg.get('tq3k', 4), 12), self.tq3))
        q2k = self.cfg.get('q2k', 3); q3k = self.cfg.get('q3k', 7)
        for k, d in enumerate(self.wq_q[2] + [self.halo_dma[2]]):
            seq.append((at(q2k + k // 2, 8 + 5 * (k % 2)), d))
        for k, d in enumerate(self.wq_q[3] + [self.halo_dma[3]]):
            seq.append((at(q3k + k // 2, 8 + 5 * (k % 2)), d))
        extras += seq
        reg = [W(self.tag_init),
               P('s_mul_i32 s53, s%d, s%d' % (sXCC, sXCC)), P('s_lshl_b32 s53, s53, 13'), P('s_lshl_b32 s54, s%d, 5' % sXCC),
               P('s_add_u32 s53, s53, s54'), P('s_add_u32 s53, s53, 1'), P('v_mov_b32 v%d, s53' % vTA),
               P('s_lshr_b32 s53, s%d, 1' % sG), P('s_lshl_b32 s53, s53, 5'), P('s_and_b32 s54, s%d, 1' % sG),
               P('s_lshl_b32 s54, s54, 2'), P('s_add_u32 s54, s53, s54'), P('v_mov_b32 v%d, s54' % vTB),
               P('s_cmp_eq_u32 s%d, 0' % sW), P('s_cselect_b32 s53, 0, 0x40000000'),
               P('v_or_b32 v%d, s53, v%d' % (vTB, vTB)),
               P('s_mov_b64 exec, 1'),
               VM('buffer_atomic_add v%d, v%d, s[36:39], 0 offen' % (vTA, vTB)),
               P('s_mov_b64 exec, -1')]
        extras.append((first_idx[4] + 3, reg))
        groups[8 * 4]['pre'] = [W(self.tag_init)] + groups[8 * 4]['pre']
        if self.cfg.get('t_mall', 0) >= 4:
            extras.append((first_idx[self.cfg.get('t_mall')] + 4, self.touch_mall()))
        for k, x in enumerate(self.res_ops):
            extras.append((first_idx[self.cfg.get('res_k', 9)] + 9 + 3 * k, x))
        extras.append((first_idx[self.cfg.get('res_k', 9) + 1] + 9, self.b1_op))
        extras.append((first_idx[8] + 9, self.mode_load()))
        extras.append((first_idx[11] + 1, self.mode_check()))
        tset = self.touch_set(self.cfg.get('t_p1a', 'of,xf'))
        k0 = self.cfg.get('t_p1a_k', 11)
        post = []
        for k, t in enumerate(tset):
            if k0 + k < 16:
                extras.append((first_idx[k0 + k] + 5, t))
            else:
                post.append(t)
        extras += self.sched_touches('p1a', first_idx)
        if self.cfg.get('code_staged', 1) and self.cfg.get('t_code', 1):
            extras.append((first_idx[self.cfg.get('code_k1', 10)] + 12, self.touch_code('L_C2', 'L_C4', 50)))
        if self.cfg.get('pts') == 2:
            for k, slot in ((1, 14), (4, 15), (8, 29), (12, 30)):
                extras.append((first_idx[k] - 1, self.ts(slot)))
        if self.cfg.get('pts') == 3:
            for k in range(16):
                extras.append((first_idx[k], self.ts(32 + k)))
        o(self.gemm_loop(groups, self.cfg.get('la_p1a', 3), extras))
        for t in post:
            o(t)
        if self.cfg.get('stash', 1):
            st = self.wq_stash(250, 251)
            o(st)
        t0 = 252; t1 = 253
        o(W(self.tag_b1), P('v_lshlrev_b32 v%d, 16, v247' % t0), P('v_and_b32 v%d, 0xffff0000, v247' % t1),
          P('v_mul_f32 v%d, %s, v%d' % (t0, f32(LOG2E), t0)), P('v_mul_f32 v%d, %s, v%d' % (t1, f32(LOG2E), t1)),
          P('v_lshlrev_b32 v%d, 3, v%d' % (vTA, vLANE)),
          P('s_mov_b32 exec_hi, 0x00ffffff'),
          LG('ds_write_b64 v%d, v[%d:%d] offset:%d' % (vTA, t0, t1, L_BB1)),
          P('s_mov_b64 exec, -1'))
        o(P('s_add_u32 s53, s%d, 2' % sW), P('s_lshl_b32 s53, s53, 6'), P('v_add_u32 v%d, s53, v%d' % (vTA, vCS)),
          P('s_and_b32 s53, s%d, 1' % sW), P('s_lshl_b32 s53, s53, 6'), P('v_add_u32 v%d, s53, v%d' % (vTB, vCS)),
          P('s_mov_b32 s52, 0x00010001'), P('s_mov_b32 s53, 0x00010001'), P('s_mov_b64 exec, s[52:53]'),
          LG('ds_write_b128 v%d, %s offset:%d' % (vTA, vr(self.ACC_CS1, 4), L_CSQ)),
          LG('ds_write_b128 v%d, %s offset:%d' % (vTB, vr(self.ACC_CS2, 4), L_CSQ)),
          P('s_mov_b64 exec, -1'))
        for b in range(3):
            s2 = S2 + b * 4
            o(P('v_cndmask_b32_e64 v%d, v%d, v%d, s[%d:%d]' % (s2, s2, s2 + 1, sMA, sMA + 1)),
              P('v_cndmask_b32_e64 v%d, v%d, v%d, s[%d:%d]' % (s2, s2, s2 + 2, sMB, sMB + 1)),
              P('v_cndmask_b32_e64 v%d, v%d, v%d, s[%d:%d]' % (s2, s2, s2 + 3, sMC, sMC + 1)),
              P('v_cndmask_b32_e64 v%d, 0, v%d, s[%d:%d]' % (s2, s2, sMD, sMD + 1)))
            t = s2 + 1
            o(P('v_mov_b32 v%d, v%d' % (t, s2)), P('v_permlane32_swap_b32 v%d, v%d' % (s2, t)),
              P('v_add_f32 v%d, v%d, v%d' % (s2, s2, t)), P('v_mov_b32 v%d, v%d' % (t, s2)),
              P('v_permlane16_swap_b32 v%d, v%d' % (s2, t)), P('v_add_f32 v%d, v%d, v%d' % (s2, s2, t)))
            if b < 2:
                o(self.finish_stats(S1 + b * 4, s2, self.PKV[b], self.PQ[b]))
            else:
                o(self.finish_stats(S1 + b * 4, s2, self.PH))
        o(P('s_mov_b32 s72, s50'), P('s_mov_b32 s73, s51'))
        o(WALL(False, True), P('s_barrier'))

    def p1b(self):
        o = self.add
        cfg = self.cfg
        for b in range(2):
            o(P('s_lshl_b32 s53, s%d, 1' % sW), P('s_add_u32 s53, s53, %d' % b), P('s_lshl_b32 s53, s53, 14'),
              P('s_add_u32 s%d, s53, s%d' % (sB0 + b, sX2)))
        xl = self.x_loads(16, depth=XD)
        pro = cfg.get('x_pro', 4)
        for j in range(pro):
            o(xl[j])
        stt = []
        STR = vT + 12
        for b in range(2):
            t = newtag('st'); stt.append(t)
            o(P('s_lshl_b32 s54, s%d, 11' % sW), P('s_add_u32 s53, s54, s%d' % sS2),
              P('s_add_u32 s53, s53, %d' % (b * 1024)),
              VM('buffer_load_dwordx4 %s, v%d, s[28:31], s53 offen sc1' % (vr(STR + 4 * b, 4), vL16), t))
        groups = []; n = 0; first_idx = {}; mfidx = 0
        for j in range(16):
            first_idx[j] = mfidx
            for blk in range(6):
                dst = self.afrag(n); n += 1
                g = dict(pre=[], reads=[self.wq_read(blk, j, 0, dst), self.wq_read(blk, j, 1, dst)], mf=[])
                for tb in range(2):
                    acc = self.accP1(blk, tb)
                    c = '0' if j == 0 else vr(acc, 4)
                    wt = self.vmtags(xl[j][tb]) if blk == 0 else []
                    g['mf'].append(('v_mfma_f32_16x16x32_bf16 %s, %s, %s, %s' % (vr(acc, 4), vr(dst, 4), ar(((j % XD) * 2 + tb) * 4, 4), c), wt))
                mfidx += 2
                groups.append(g)
        extras = self.x_sched(xl, 16, pro, first_idx, 12, XD, cfg.get('x_rate', 4))
        lastx = extras[-1][0]
        hp = [W(self.halo_store_tags), P('v_mov_b32 v%d, 1' % vTA),
              P('s_cmp_eq_u32 s%d, 3' % sW), P('s_cselect_b32 s53, 0, 0x40000000'),
              P('s_cmp_eq_u32 s%d, 15' % sG), P('s_cselect_b32 s53, 0x40000000, s53'),
              P('s_add_u32 s54, s%d, 1' % sG), P('s_lshr_b32 s52, s54, 1'), P('s_lshl_b32 s52, s52, 5'),
              P('s_and_b32 s54, s54, 1'), P('s_lshl_b32 s54, s54, 2'), P('s_add_u32 s52, s52, s54'),
              P('s_add_u32 s52, s52, 8'), P('s_or_b32 s53, s53, s52'),
              P('v_mov_b32 v%d, s53' % vTB),
              P('s_mov_b64 exec, 1'),
              VM('buffer_atomic_add v%d, v%d, s[36:39], 0 offen' % (vTA, vTB)),
              P('s_mov_b64 exec, -1')]
        extras.append((first_idx[0] + 6, hp))
        st_ops = [W(stt)]
        for b in range(2):
            st_ops += self.stats_from_st(STR + 4 * b, self.PKV[b], self.PQ[b])
        extras += self.spread(st_ops, first_idx[2] + 2, 1)
        HS = vT + 56
        HC = vT + 60; HZ = vT + 61
        spin = self.L('hsp'); hok = self.L('hok')
        tagc = newtag('hc'); htags = [newtag('h') for _ in range(17)]
        hk0 = cfg.get('halo_k0', 7); hk1 = cfg.get('halo_k', 10)
        h0 = [P('v_mov_b32 v%d, 0' % HZ),
              P('s_lshr_b32 s54, s%d, 1' % sG), P('s_lshl_b32 s54, s54, 5'), P('s_and_b32 s53, s%d, 1' % sG),
              P('s_lshl_b32 s53, s53, 2'), P('s_add_u32 s54, s54, s53'), P('s_add_u32 s%d, s54, 8' % sA),
              VM('buffer_load_dword v%d, v%d, s[36:39], s%d offen sc1' % (HC, HZ, sA), tagc)]
        extras.append((max(first_idx[hk0], lastx + 1), h0))
        hl = [W(tagc), P('s_mov_b32 s%d, 0' % sTMO),
              P('s_cmp_eq_u32 s%d, 0' % sG), P('s_cbranch_scc1 %s' % hok),
              LAB(spin),
              P('v_cmp_ne_u32 vcc, 16, v%d' % HC),
              P('s_cbranch_vccz %s' % hok),
              P('buffer_load_dword v%d, v%d, s[36:39], s%d offen sc1' % (HC, HZ, sA)),
              P('s_add_u32 s%d, s%d, 1' % (sTMO, sTMO)),
              P('s_waitcnt vmcnt(0)'),
              P('s_cmp_lt_u32 s%d, 0x100000' % sTMO), P('s_cbranch_scc1 %s' % spin),
              P('s_endpgm'),
              LAB(hok),
              P('s_cmp_eq_u32 s%d, 0' % sG), P('s_cselect_b32 s53, 0x40000000, 0'),
              P('v_or_b32 v%d, s53, v%d' % (HZ, vL16)),
              P('s_lshl_b32 s53, s%d, 10' % sG), P('s_add_u32 s53, s53, %d' % WS_HST),
              VM('buffer_load_dwordx4 %s, v%d, s[28:31], s53 offen sc1' % (vr(HS, 4), HZ), htags[16]),
              P('s_lshl_b32 s53, s%d, 14' % sG), P('s_lshl_b32 s54, s%d, 12' % sW), P('s_add_u32 s53, s53, s54'),
              P('s_add_u32 s%d, s53, %d' % (sA, WS_HF))]
        HB = vT + 40
        for j in range(4):
            hl.append(VM('buffer_load_dwordx4 %s, v%d, s[28:31], s%d offen offset:%d sc1' % (vr(HB + 4 * j, 4), HZ, sA, j * 1024), htags[j]))
        extras.append((max(first_idx[hk1], lastx + 2), hl))
        for k, d in enumerate(self.dma_w1_group(1)):
            extras.append((max(first_idx[hk1], lastx + 2) + 2 + cfg.get('a0_step', 3) * k, d))
        hw = [W(htags[:4]), P('s_lshl_b32 s53, s%d, 12' % sW), P('s_add_u32 s53, s53, %d' % L_HS), P('v_add_u32 v%d, s53, v%d' % (HC, vL16))]
        for j in range(4):
            hw.append(LG('ds_write_b128 v%d, %s offset:%d' % (HC, vr(HB + 4 * j, 4), j * 1024)))
        extras += self.spread(hw, first_idx[15] + 1, 2)
        for k, t in enumerate(self.touch_set(cfg.get('t_p1b', ''))):
            extras.append((first_idx[hk1] + 34 + 6 * k, t))
        extras += self.spread([W(htags[16])] + self.stats_from_st(HS, self.PH), first_idx[15] - 14, 1)
        extras += self.sched_touches('p1b', first_idx)
        o(self.gemm_loop(groups, cfg.get('la', 3), extras))
        o(WALL(False, True), P('s_barrier'), P('v_add_u32 v%d, %d, v%d' % (HC, L_HS, vL16)))
        groups = []
        for j in range(16):
            dst = self.afrag(j); xb = vT + 12 + (j % 6) * 4
            g = dict(pre=[], reads=[LG('ds_read_b128 %s, v%d offset:%d' % (vr(xb, 4), HC, j * 1024))] +
                     [LG('ds_read_b64_tr_b16 v[%d:%d], v%d offset:%d' % (dst + 2 * part, dst + 2 * part + 1, vE1, j * 2048 + part * 1024)) for part in range(2)], mf=[])
            c = '0' if j == 0 else vr(self.ACC_H, 4)
            g['mf'].append(('v_mfma_f32_16x16x32_bf16 %s, %s, %s, %s' % (vr(self.ACC_H, 4), vr(dst, 4), vr(xb, 4), c), []))
            groups.append(g)
        o(self.gemm_loop(groups, 4, []))
        o(P('s_barrier'))

    def x_sched(self, xl, nk, pro, first_idx, nmf, depth, rate):
        extras = []; k = 0; last = -1
        for j in range(pro, nk):
            for b in range(2):
                if j < depth:
                    at = first_idx[k // rate] + 1 + (nmf // rate) * (k % rate); k += 1
                else:
                    at = first_idx[j - depth] + nmf - 1 + b
                at = max(at, last + 1)
                extras.append((at, xl[j][b])); last = at
        return extras

    def x_loads(self, nk, ring=None, depth=None):
        xl = []
        for j in range(nk):
            row = []
            for b in range(2):
                slot = j if depth is None else j % depth
                ops = []
                if j % 4 == 0:
                    ops.append(P('s_add_u32 s%d, s%d, %d' % (sXL0 + b, sB0 + b, j * 1024)))
                if self.cfg.get('noxl'):
                    ops.append(P('s_nop 0'))
                else:
                    ops.append(VM('buffer_load_dwordx4 %s, v%d, s[28:31], s%d offen offset:%d%s' % (ar((slot * 2 + b) * 4, 4), vL16, sXL0 + b, (j % 4) * 1024, '' if self.cfg.get('plainld') else ' sc1')))
                row.append(ops)
            xl.append(row)
        return xl

    def dual_store(self, stores):
        pure = self.L('stp'); done = self.L('std')
        o = [P('s_cmp_eq_u32 s%d, 0' % sMODE), P('s_cbranch_scc1 %s' % pure)]
        o += [P(s + ' sc1') for s in stores]
        o += [P('s_branch %s' % done), LAB(pure)]
        o += [P(s) for s in stores]
        o += [LAB(done)]
        cnt = [VM('; counted store') for _ in stores]
        return o + cnt, [c.tag for c in cnt]

    def p1_epi(self, dmas):
        o = []
        CS = vT + 12
        CSH = vT + 36
        Q = vT + 40
        K = vT + 48
        V = vT + 56
        HP = vT + 64
        TT = vT + 66
        cst = []
        for b in range(6):
            x = LG('ds_read_b128 %s, v%d offset:%d' % (vr(CS + 4 * b, 4), vCS, L_CSQ + b * 64)); cst.append(x.tag); o.append(x)
        o += [P('s_add_u32 s53, s%d, 2' % sW), P('s_lshl_b32 s53, s53, 6'), P('v_add_u32 v%d, s53, v%d' % (TT, vCS))]
        x = LG('ds_read_b128 %s, v%d offset:%d' % (vr(CSH, 4), TT, L_CSQ)); csh = x.tag; o.append(x)

        def ln(acc, cs, pair, dst):
            r = []
            for hh in range(2):
                t = TT + 2 * hh
                r.append(P('v_pk_mul_f32 %s, %s, %s op_sel:[0,1] op_sel_hi:[1,1]' % (vr(t, 2), vr(cs + 2 * hh, 2), vr(pair, 2))))
            for hh in range(2):
                t = TT + 2 * hh
                r.append(P('v_pk_fma_f32 %s, %s, %s, %s op_sel_hi:[1,0,1]' % (vr(t, 2), vr(acc + 2 * hh, 2), vr(pair, 2), vr(t, 2))))
            for hh in range(2):
                t = TT + 2 * hh
                r.append(P('v_cvt_pk_bf16_f32 v%d, v%d, v%d' % (dst + hh, t, t + 1)))
            return r
        wtags = []
        for blk in (4, 5, 2, 3, 0, 1):
            o.append(W(cst[blk]))
            for tb in range(2):
                h = blk % 2
                dst = (Q, K, V)[blk // 2] + (tb * 2 + h) * 2
                pair = self.PQ[tb] if blk < 2 else self.PKV[tb]
                o += ln(self.accP1(blk, tb), CS + 4 * blk, pair, dst)
                if blk >= 4:
                    x = LG('ds_write_b64 v%d, %s offset:%d' % (vEXV, vr(dst, 2), tb * 1024 + h * 512)); o.append(x)
                elif blk >= 2 and tb == 1:
                    x = LG('ds_write_b64 v%d, %s offset:%d' % (vEXK, vr(dst, 2), h * 512)); o.append(x)
            if blk == 3:
                o.append(W(csh))
                o += ln(self.ACC_H, CSH, self.PH, HP)
                o.append(LG('ds_write_b64 v%d, %s' % (vEXH, vr(HP, 2))))
        o += [WALL(False, True), P('s_barrier')]
        KP = vT + 70
        VV = vT + 12
        SC = vACC
        SP = vACC + 16
        PB = vACC + 32
        LL = vT + 24
        OO = vACC + 48
        MX = vT + 74
        rk = []; rv = []
        for h in range(2):
            x = LG('ds_read_b64 %s, v%d offset:%d' % (vr(KP + 2 * h, 2), vRK, h * 512)); rk.append(x.tag); o.append(x)
        for h in range(2):
            x = LG('ds_read_b64_tr_b16 %s, v%d offset:%d' % (vr(VV + 6 * h, 2), vRVP, h * 512)); rv.append(x.tag); o.append(x)
            for tb in range(2):
                x = LG('ds_read_b64_tr_b16 %s, v%d offset:%d' % (vr(VV + 6 * h + 2 + 2 * tb, 2), vRV, tb * 1024 + h * 512)); rv.append(x.tag); o.append(x)
        insts = [(tb, h) for tb in range(2) for h in range(2)]
        for n, (tb, h) in enumerate(insts):
            q = Q + (tb * 2 + h) * 2
            o.append(P('v_mfma_f32_16x16x16_bf16 %s, %s, %s, %s' % (vr(SC + 4 * n, 4), vr(K + (tb * 2 + h) * 2, 2), vr(q, 2), vr(vCCUR, 4))))
        for n, (tb, h) in enumerate(insts):
            q = Q + (tb * 2 + h) * 2
            if tb == 0:
                o.append(W(rk[h]))
                o.append(P('v_mfma_f32_16x16x16_bf16 %s, %s, %s, %s' % (vr(SP + 4 * n, 4), vr(KP + 2 * h, 2), vr(q, 2), vr(vCPA, 4))))
            else:
                o.append(P('v_mfma_f32_16x16x16_bf16 %s, %s, %s, %s' % (vr(SP + 4 * n, 4), vr(K + h * 2, 2), vr(q, 2), vr(vCPREV, 4))))
        for n in range(4):
            for r in range(4):
                o.append(P('v_max_f32 v%d, v%d, v%d' % (SC + 4 * n + r, SC + 4 * n + r, SP + 4 * n + r)))
        for n in range(4):
            o.append(P('v_max3_f32 v%d, v%d, v%d, v%d' % (MX + n, SC + 4 * n, SC + 4 * n + 1, SC + 4 * n + 2)))
        for n in range(4):
            o.append(P('v_max_f32 v%d, v%d, v%d' % (MX + n, MX + n, SC + 4 * n + 3)))
        a, b, c, d = MX, MX + 1, MX + 2, MX + 3
        o += [P('v_permlane32_swap_b32 v%d, v%d' % (a, b)), P('v_permlane32_swap_b32 v%d, v%d' % (c, d)),
              P('v_max_f32 v%d, v%d, v%d' % (a, a, b)), P('v_max_f32 v%d, v%d, v%d' % (c, c, d)),
              P('v_permlane16_swap_b32 v%d, v%d' % (a, c)), P('v_max_f32 v%d, v%d, v%d' % (a, a, c)),
              P('v_mov_b32 v%d, v%d' % (c, a)), P('v_permlane16_swap_b32 v%d, v%d' % (a, c)),
              P('v_mov_b32 v%d, v%d' % (b, a)), P('v_mov_b32 v%d, v%d' % (d, c)),
              P('v_permlane32_swap_b32 v%d, v%d' % (a, b)), P('v_permlane32_swap_b32 v%d, v%d' % (c, d))]
        for n in range(4):
            for hh in range(2):
                o.append(P('v_sub_f32 v%d, v%d, v%d' % (SC + 4 * n + 2 * hh, SC + 4 * n + 2 * hh, MX + n)))
                o.append(P('v_sub_f32 v%d, v%d, v%d' % (SC + 4 * n + 2 * hh + 1, SC + 4 * n + 2 * hh + 1, MX + n)))
        for n in range(4):
            for r in range(4):
                o.append(P('v_exp_f32 v%d, v%d' % (SC + 4 * n + r, SC + 4 * n + r)))
        for n in range(4):
            for hh in range(2):
                o.append(P('v_cvt_pk_bf16_f32 v%d, v%d, v%d' % (SP + 4 * n + hh, SC + 4 * n + 2 * hh, SC + 4 * n + 2 * hh + 1)))
        for n in range(4):
            for hh in range(2):
                o.append(P('v_cndmask_b32_e64 v%d, 0, v%d, s[%d:%d]' % (PB + 4 * n + hh, SP + 4 * n + hh, sUP, sUP + 1)))
                o.append(P('v_cndmask_b32_e64 v%d, v%d, 0, s[%d:%d]' % (PB + 4 * n + 2 + hh, SP + 4 * n + hh, sUP, sUP + 1)))
        o.append(W(rv))
        o.append(P('s_barrier'))
        for n, (tb, h) in enumerate(insts):
            o.append(P('v_mfma_f32_16x16x32_bf16 %s, %s, %s, 0' % (vr(LL + 4 * n, 4), vr(vONES, 4), vr(PB + 4 * n, 4))))
            o.append(P('v_mfma_f32_16x16x32_bf16 %s, %s, %s, 0' % (vr(OO + 4 * n, 4), vr(VV + 6 * h + 2 * tb, 4), vr(PB + 4 * n, 4))))
        for n in range(4):
            o.append(P('v_rcp_f32 v%d, v%d' % (LL + 4 * n, LL + 4 * n)))
        OUTR = vT + 40
        for n, (tb, h) in enumerate(insts):
            for hh in range(2):
                o.append(P('v_pk_mul_f32 %s, %s, %s op_sel_hi:[1,0]' % (vr(OO + 4 * n + 2 * hh, 2), vr(OO + 4 * n + 2 * hh, 2), vr(LL + 4 * n, 2))))
        for n, (tb, h) in enumerate(insts):
            for hh in range(2):
                o.append(P('v_cvt_pk_bf16_f32 v%d, v%d, v%d' % (OUTR + (tb * 2 + h) * 2 + hh, OO + 4 * n + 2 * hh, OO + 4 * n + 2 * hh + 1)))
        if dmas:
            k = min(i for i, x in enumerate(o) if x.text == 's_barrier') + 1
            body = interleave(o[k:], dmas, start=0, every=max(1, (len(o) - k) // (len(dmas) + 1)))
            o = o[:k] + body
        o += [P('s_lshl_b32 s54, s%d, 15' % sW), P('s_add_u32 s53, s54, s%d' % sOF), P('s_lshl_b32 s54, s%d, 10' % sM),
              P('s_add_u32 s53, s53, s54'), P('s_add_u32 s54, s53, 16384')]
        return o, ['buffer_store_dwordx4 %s, v%d, s[28:31], s%d offen' % (vr(OUTR + 4 * tb, 4), vL16, 53 + tb) for tb in range(2)]

    def mode_load(self):
        self.tag_mode = newtag('mode')
        return [P('s_lshr_b32 s53, s%d, 1' % sG), P('s_lshl_b32 s53, s53, 5'), P('s_and_b32 s54, s%d, 1' % sG),
                P('s_lshl_b32 s54, s54, 2'), P('s_add_u32 s%d, s53, s54' % sA),
                P('v_mov_b32 v%d, 0' % vTB),
                VM('buffer_load_dword v%d, v%d, s[36:39], s%d offen sc1' % (vTA, vTB, sA), self.tag_mode)]

    def mode_check(self):
        spin = self.L('rsp'); ok = self.L('rok')
        return [W(self.tag_mode), P('s_mov_b32 s%d, 0' % sTMO),
                P('v_readfirstlane_b32 s54, v%d' % vTA),
                P('s_nop 4'),
                P('s_and_b32 s52, s54, 31'), P('s_cmp_eq_u32 s52, 16'), P('s_cbranch_scc1 %s' % ok),
                LAB(spin),
                P('buffer_load_dword v%d, v%d, s[36:39], s%d offen sc1' % (vTA, vTB, sA)),
                P('s_add_u32 s%d, s%d, 1' % (sTMO, sTMO)),
                P('s_waitcnt vmcnt(0)'),
                P('v_readfirstlane_b32 s54, v%d' % vTA),
                P('s_nop 4'),
                P('s_and_b32 s52, s54, 31'), P('s_cmp_eq_u32 s52, 16'), P('s_cbranch_scc1 %s' % ok),
                P('s_cmp_lt_u32 s%d, 0x100000' % sTMO), P('s_cbranch_scc1 %s' % spin),
                P('s_endpgm'),
                LAB(ok),
                P('s_lshr_b32 s52, s54, 5'), P('s_and_b32 s52, s52, 255'), P('s_mul_i32 s52, s52, s52'),
                P('s_lshr_b32 s54, s54, 13'), P('s_lshl_b32 s54, s54, 4'),
                P('s_cmp_lg_u32 s52, s54'), P('s_cselect_b32 s%d, 1, 0' % sMODE)] + \
            ([P('s_mov_b32 s%d, 1' % sMODE)] if self.cfg.get('force_mixed') else []) + self.set_bases()

    def set_bases(self):
        o = [P('s_mul_i32 s52, s%d, %d' % (sG, ACT_G)), P('s_add_u32 s52, s52, %d' % WS_ACT),
             P('s_mul_i32 s53, s%d, %d' % (sG, 8 * 57344)), P('s_lshl_b32 s54, s%d, 13' % sG),
             P('s_cmp_eq_u32 s%d, %d' % (sMODE, 7 if self.cfg.get('noalias') else 0))]
        def sel(dst, pure_off, mixed_base_s, mixed_imm):
            return [P('s_add_u32 s55, s52, %d' % pure_off), P('s_add_u32 s%d, s%d, %d' % (dst, mixed_base_s, mixed_imm)),
                    P('s_cmp_eq_u32 s%d, %d' % (sMODE, 7 if self.cfg.get('noalias') else 0)),
                    P('s_cselect_b32 s%d, s55, s%d' % (dst, dst))]
        o += sel(sOF, 0, sGBASE, WS_OF) + sel(sAF, 0, 53, WS_AF) + sel(sX1, 458752, sGBASE, WS_XF) + \
            sel(sX2, 458752, sGBASE, WS_XF + XF_K) + sel(sS1, 589824, 54, WS_ST) + sel(sS2, 589824, 54, WS_ST + ST_K)
        for d, v in ((dOF, OF_R), (dAF, AF_R), (dX1, 2 * XF_K), (dS1, 2 * ST_K)):
            o.append(P('s_cselect_b32 s%d, 0, %d' % (d, v)))
        return o

    def gemmB(self, nk, srdW, src_base, nblk, depth, resident, refill_tags_out, exb, pre_extras=None, posf=None, tail=None, post=None, inloop=None, tail_lds=False):
        o = []
        o += [P('s_and_b32 s52, s%d, 1' % sW), P('s_mul_i32 s52, s52, %d' % (nk * 1024)),
              P('s_add_u32 s52, s52, s%d' % src_base),
              P('s_mul_i32 s53, s%d, %d' % (sTB, nblk * 1024)), P('s_add_u32 s%d, s52, s53' % sB0),
              P('s_xor_b32 s53, s%d, 1' % sTB), P('s_mul_i32 s53, s53, %d' % (nblk * 1024)), P('s_add_u32 s%d, s52, s53' % sB1)]
        xl = self.x_loads(nk, depth=depth)
        pro = min(nk, self.cfg.get('b_pro', 4))
        for t in range(pro):
            o += xl[t][0] + xl[t][1]
        if nk == 8:
            o += self.wo_stash()
        groups = []; n = 0; first_idx = {}; mfidx = 0
        acc = lambda s, fb: vACC + (s * 4 + fb) * 4
        refills = []
        if nk > resident:
            for t in range(resident, nk):
                for kh in range(2):
                    refills.append(self.dma_wo_slot(srdW, nk, t, kh, posf(t)))
        for t in range(nk):
            first_idx[t] = mfidx
            pos = posf(t) if posf else t
            for fb in range(4):
                dst = self.afrag(n); n += 1
                g = dict(pre=[], reads=[], mf=[])
                if fb == 0 and t == resident:
                    g['pre'] += [W(self.vmtags(refills)), P('s_barrier')]
                for part in range(2):
                    a = pos * 8192 + part * 2048
                    win = a >> 16
                    g['reads'].append(LG('ds_read_b64_tr_b16 v[%d:%d], v%d offset:%d' % (dst + 2 * part, dst + 2 * part + 1, vW2A + fb * 3 + win, a & 0xffff)))
                for s in range(2):
                    c = '0' if t == 0 else vr(acc(s, fb), 4)
                    wt = self.vmtags(xl[t][s]) if fb == 0 else []
                    g['mf'].append(('v_mfma_f32_16x16x32_bf16 %s, %s, %s, %s' % (vr(acc(s, fb), 4), vr(dst, 4), ar(((t % depth) * 2 + s) * 4, 4), c), wt))
                mfidx += 2
                groups.append(g)
        extras = []
        last = -1
        for t in range(pro, nk):
            if t < depth:
                at = first_idx[min(nk - 1, (t - pro) // 2)] + 1 + 4 * ((t - pro) % 2)
            else:
                at = first_idx[t - depth] + 7
            at = max(at, last + 1)
            extras.append((at, xl[t][0])); extras.append((at + 1, xl[t][1]))
            last = at + 1
        if inloop:
            for k, d in enumerate(inloop):
                extras.append((last + 2 + self.cfg.get('a2_step', 5) * k, d))
        if refills:
            nfree = nk - resident
            bar_at = first_idx[nfree] - 1
            extras.append((bar_at, [P('s_barrier')]))
            for k, d in enumerate(refills):
                extras.append((first_idx[nfree + k // 3] + 1 + 2 * (k % 3), d))
        if tail and tail_lds:
            extras.append((first_idx[resident] - 1, [P('s_barrier')]))
            nt_ = nk - resident
            for k, d in enumerate(tail):
                extras.append((first_idx[resident] + 1 + k * (8 * nt_ - 4) // len(tail), d))
        elif tail:
            allb = [t_ for row in xl for blk in row for t_ in self.vmtags(blk)]
            extras.append((first_idx[resident] - 1, [W(allb), P('s_barrier')]))
            nt_ = nk - resident
            t0_ = self.cfg.get('tail_k0', 0)
            for k, d in enumerate(tail):
                kk = t0_ + k * (nt_ - t0_) // len(tail)
                sk = self.L('tsk')
                extras.append((first_idx[resident + kk] + 1 + 2 * (k % 3),
                               [P('s_cmp_lg_u32 s%d, 0' % sRND), P('s_cbranch_scc1 %s ;nopad' % sk)] + d + [LAB(sk)]))
        if pre_extras and False:
            for k, t in enumerate(pre_extras):
                extras.append((first_idx[min(nk - 1, self.cfg.get('t_p4_k', 16) + 2 * k)] + 4, t))
        extras += self.sched_touches('p4' if nk == 28 else 'p2', first_idx)
        if nk == 28 and self.cfg.get('wbl2'):
            allb2 = [t_ for row in xl for blk in row for t_ in self.vmtags(blk)] + self.vmtags(refills)
            sk = self.L('wb')
            extras.append((first_idx[self.cfg.get('wbl2')] + 2,
                           [W(allb2), P('s_cmp_eq_u32 s%d, 0' % sTUX), P('s_cselect_b32 s52, s%d, 0' % sRND), P('s_cmp_eq_u32 s52, 1'),
                            P('s_cbranch_scc0 %s ;nopad' % sk), P('buffer_wbl2 sc1'), LAB(sk)]))
        if nk == 28 and self.cfg.get('code_staged', 1) and self.cfg.get('t_code', 1):
            extras.append((first_idx[16] + 3, self.touch_code('L_C5', 'L_END', 72)))
        o += self.gemm_loop(groups, self.cfg.get('la', 3), extras)
        o.append(P('s_barrier'))
        o += [P('v_add_u32 v%d, %d, v%d' % (vTA, exb, vEXBW)), P('v_add_u32 v%d, %d, v%d' % (vTB, exb, vEXBR))]
        if post and tail_lds:
            o += self.flat(post)
        elif post:
            sk = self.L('psk')
            o += [P('s_cmp_lg_u32 s%d, 0' % sRND), P('s_cbranch_scc1 %s ;nopad' % sk)] + self.flat(post) + [LAB(sk)]
        for fb in range(4):
            o.append(LG('ds_write_b128 v%d, %s offset:%d' % (vTA, vr(acc(1, fb), 4), fb * 1024)))
        o += [WALL(False, True), P('s_barrier')]
        PT = vT
        rt = []
        for fb in range(4):
            x = LG('ds_read_b128 %s, v%d offset:%d' % (vr(PT + 4 * fb, 4), vTB, fb * 1024)); rt.append(x.tag); o.append(x)
        U = vT + 16
        for fb in range(4):
            for hh in range(2):
                r = vR + fb * 2 + hh
                o += [P('v_lshlrev_b32 v%d, 16, v%d' % (U + fb * 4 + hh * 2, r)), P('v_and_b32 v%d, 0xffff0000, v%d' % (U + fb * 4 + hh * 2 + 1, r))]
        for fb in range(4):
            for hh in range(2):
                a = acc(0, fb) + 2 * hh
                o.append(P('v_pk_add_f32 %s, %s, %s' % (vr(a, 2), vr(a, 2), vr(U + fb * 4 + 2 * hh, 2))))
        for fb in range(4):
            o.append(W(rt[fb]))
            for hh in range(2):
                a = acc(0, fb) + 2 * hh
                o.append(P('v_pk_add_f32 %s, %s, %s' % (vr(a, 2), vr(a, 2), vr(PT + fb * 4 + 2 * hh, 2))))
        for fb in range(4):
            for hh in range(2):
                a = acc(0, fb) + 2 * hh
                o.append(P('v_cvt_pk_bf16_f32 v%d, v%d, v%d' % (vR + fb * 2 + hh, a, a + 1)))
        return o

    def sw4(self):
        return self.touch_set(self.cfg.get('t_p4', ''), only_r1=True)

    def row_stats(self):
        s1 = vT + 32; s2 = vT + 33; s1b = vT + 34; s2b = vT + 35
        o = [P('v_mov_b32 v%d, 0' % r) for r in (s1, s2, s1b, s2b)]
        for k in range(0, 8, 2):
            o += [P('v_dot2c_f32_bf16 v%d, v%d, v%d' % (s1, vR + k, vONES)), P('v_dot2c_f32_bf16 v%d, v%d, v%d' % (s2, vR + k, vR + k)),
                  P('v_dot2c_f32_bf16 v%d, v%d, v%d' % (s1b, vR + k + 1, vONES)), P('v_dot2c_f32_bf16 v%d, v%d, v%d' % (s2b, vR + k + 1, vR + k + 1))]
        o += [P('v_add_f32 v%d, v%d, v%d' % (s1, s1, s1b)), P('v_add_f32 v%d, v%d, v%d' % (s2, s2, s2b))]
        o += self.reduce_g2(s1, s2)
        return o

    def x_stores(self, sx, ss):
        return [P('s_mul_i32 s53, s%d, 16384' % sTB), P('s_add_u32 s53, s53, s%d' % sx), P('s_lshl_b32 s54, s%d, 11' % sCT),
                P('s_add_u32 s53, s53, s54'),
                P('s_lshl_b32 s54, s%d, 10' % sTB), P('s_add_u32 s54, s54, s%d' % ss)]

    def x_store_frags(self):
        ds, tags = self.dual_store(['buffer_store_dwordx4 %s, v%d, s[28:31], s53 offen' % (vr(vR, 4), vL16),
                                    'buffer_store_dwordx4 %s, v%d, s[28:31], s55 offen offset:1024' % (vr(vR + 4, 4), vL16)])
        return self.delta(55, 11) + [P('s_add_u32 s55, s55, s53')] + ds, tags

    def x_store_stats(self):
        ds, tags = self.dual_store(['buffer_store_dwordx2 %s, v%d, s[28:31], s54 offen' % (vr(vT + 32, 2), vSTO)])
        return [P('s_mov_b64 exec, 0xffff')] + ds + [P('s_mov_b64 exec, -1')], tags

    def p3(self, extras_w2):
        o = []
        cfg = self.cfg
        for b in range(2):
            o += [P('s_lshl_b32 s53, s%d, 1' % sW), P('s_add_u32 s53, s53, %d' % b), P('s_lshl_b32 s53, s53, 14'),
                  P('s_add_u32 s%d, s53, s%d' % (sB0 + b, sX1))]
        xl = self.x_loads(16, depth=XD)
        pro = cfg.get('x_pro', 4)
        for j in range(pro):
            o += xl[j][0] + xl[j][1]
        stt = []
        STR = vT + 12
        PA = [vT + 0, vT + 2]
        for b in range(2):
            t = newtag('st'); stt.append(t)
            o += [P('s_lshl_b32 s54, s%d, 11' % sW), P('s_add_u32 s53, s54, s%d' % sS1),
                  P('s_add_u32 s53, s53, %d' % (b * 1024)),
                  VM('buffer_load_dwordx4 %s, v%d, s[28:31], s53 offen sc1' % (vr(STR + 4 * b, 4), vL16), t)]
        acc = lambda fb, tb: vACC + (fb * 2 + tb) * 4
        a3 = self.dma_w1_group(3)
        groups = []; n = 0; first_idx = {}; mfidx = 0
        for j in range(16):
            first_idx[j] = mfidx
            base = L_W1P[j // 4] + (j % 4) * 7168
            for fb in range(7):
                dst = self.afrag(n); n += 1
                g = dict(pre=[], reads=[], mf=[])
                if j == 12 and fb == 0:
                    g['pre'] += [W(self.vmtags(a3)), P('s_barrier')]
                for part in range(2):
                    a = base + part * 3584 + fb * 32
                    win = a >> 16
                    g['reads'].append(LG('ds_read_b64_tr_b16 v[%d:%d], v%d offset:%d' % (dst + 2 * part, dst + 2 * part + 1, vW1A + win, a & 0xffff)))
                for tb in range(2):
                    c = '0' if j == 0 else vr(acc(fb, tb), 4)
                    wt = self.vmtags(xl[j][tb]) if fb == 0 else []
                    g['mf'].append(('v_mfma_f32_16x16x32_bf16 %s, %s, %s, %s' % (vr(acc(fb, tb), 4), vr(dst, 4), ar(((j % XD) * 2 + tb) * 4, 4), c), wt))
                mfidx += 2
                groups.append(g)
        extras = self.x_sched(xl, 16, pro, first_idx, 14, XD, cfg.get('x_rate', 4))
        at = extras[-1][0] + 2
        for d in a3:
            extras.append((at, d)); at += 4
        st_ops = [W(stt)]
        for b in range(2):
            st_ops += self.stats_from_st(STR + 4 * b, PA[b], scale=LOG2E)
        extras += self.spread(st_ops, first_idx[2] + 2, 1)
        at = max(at, first_idx[9])
        for d in extras_w2:
            extras.append((at, d)); at += cfg.get('w2e_step', 7)
        for k, t in enumerate(self.touch_set(cfg.get('t_p3', 'af'), only_r1=True)):
            extras.append((first_idx[min(15, cfg.get('t_p3_k', 9) + 2 * k)] + 4, t))
        extras += self.sched_touches('p3', first_idx)
        if cfg.get('code_staged', 1) and cfg.get('t_code', 1):
            extras.append((first_idx[10] + 6, self.touch_code('L_C4', 'L_C5', 72)))
        o += self.gemm_loop(groups, cfg.get('la', 3), extras)
        o.append(P('s_barrier'))
        return o, PA

    def cs_w1(self):
        o = []
        A0 = vT + 40; A1 = vT + 44
        ad = vT + 48
        o += [P('s_lshl_b32 s53, s%d, 5' % sW), P('s_add_u32 s54, s%d, 4' % sW), P('s_min_u32 s54, s54, 6'), P('s_lshl_b32 s54, s54, 5')]
        for win in range(3):
            o += [P('v_add_u32 v%d, s53, v%d' % (ad + win, vW1A + win)), P('v_add_u32 v%d, s54, v%d' % (ad + 3 + win, vW1A + win))]
        groups = []; n = 0
        for j in range(16):
            base = L_W1P[j // 4] + (j % 4) * 7168
            for e in range(2):
                dst = self.afrag(n); n += 1
                g = dict(pre=[], reads=[], mf=[])
                for part in range(2):
                    a = base + part * 3584
                    g['reads'].append(LG('ds_read_b64_tr_b16 v[%d:%d], v%d offset:%d' % (dst + 2 * part, dst + 2 * part + 1, ad + 3 * e + (a >> 16), a & 0xffff)))
                accr = A0 if e == 0 else A1
                c = '0' if j == 0 else vr(accr, 4)
                g['mf'].append(('v_mfma_f32_16x16x32_bf16 %s, %s, %s, %s' % (vr(accr, 4), vr(dst, 4), vr(vONES, 4), c), []))
                groups.append(g)
        o += self.gemm_loop(groups, 3, [])
        o += [P('s_lshl_b32 s53, s53, 1'), P('s_lshl_b32 s54, s54, 1'),
              P('v_add_u32 v%d, s53, v%d' % (ad, vCS)), P('v_add_u32 v%d, s54, v%d' % (ad + 1, vCS)),
              P('s_mov_b32 s52, 0x00010001'), P('s_mov_b32 s53, 0x00010001'), P('s_mov_b64 exec, s[52:53]'),
              LG('ds_write_b128 v%d, %s offset:%d' % (ad, vr(A0, 4), L_CS1)),
              LG('ds_write_b128 v%d, %s offset:%d' % (ad + 1, vr(A1, 4), L_CS1)),
              P('s_mov_b64 exec, -1'), WALL(False, True), P('s_barrier')]
        return o

    def p3_epi(self, PA, dmas):
        o = []
        acc = lambda fb, tb: vACC + (fb * 2 + tb) * 4
        CS = vT + 12; BB = vT + 40
        PK = vT + 68
        cst = []
        for fb in range(7):
            x = LG('ds_read_b128 %s, v%d offset:%d' % (vr(CS + 4 * fb, 4), vCS, L_CS1 + fb * 64)); y = LG('ds_read_b128 %s, v%d offset:%d' % (vr(BB + 4 * fb, 4), vCS, L_BB1 + fb * 64))
            cst.append([x.tag, y.tag]); o += [x, y]
        T = vT + 68
        OUTR = lambda tb, fb: vAF + tb * 16 + fb * 2
        body = []
        for fb in range(7):
            body.append(W(cst[fb]))
            prs = [(tb, hh) for tb in range(2) for hh in range(2)]
            E = [T + 2 * k for k in range(4)]; U = [T + 8 + 2 * k for k in range(4)]
            for k, (tb, hh) in enumerate(prs):
                body.append(P('v_pk_fma_f32 %s, %s, %s, %s op_sel:[0,1,0] op_sel_hi:[1,1,1]' % (vr(E[k], 2), vr(CS + 4 * fb + 2 * hh, 2), vr(PA[tb], 2), vr(BB + 4 * fb + 2 * hh, 2))))
            for k, (tb, hh) in enumerate(prs):
                body.append(P('v_pk_fma_f32 %s, %s, %s, %s op_sel_hi:[1,0,1]' % (vr(E[k], 2), vr(acc(fb, tb) + 2 * hh, 2), vr(PA[tb], 2), vr(E[k], 2))))
            for k in range(4):
                body += [P('v_exp_f32 v%d, v%d' % (U[k], E[k])), P('v_exp_f32 v%d, v%d' % (U[k] + 1, E[k] + 1))]
            for k in range(4):
                body.append(P('v_pk_add_f32 %s, %s, s[%d:%d]' % (vr(U[k], 2), vr(U[k], 2), sONE, sONE + 1)))
            for k in range(4):
                body.append(P('v_pk_fma_f32 %s, %s, %s, s[%d:%d]' % (vr(U[k], 2), vr(U[k], 2), vr(U[k], 2), sONE, sONE + 1)))
            for k in range(4):
                body += [P('v_rcp_f32 v%d, v%d' % (U[k], U[k])), P('v_rcp_f32 v%d, v%d' % (U[k] + 1, U[k] + 1))]
            for k in range(4):
                body.append(P('v_pk_fma_f32 %s, %s, s[%d:%d], %s' % (vr(U[k], 2), vr(U[k], 2), sM2L, sM2L + 1, vr(vLN2, 2))))
            for k in range(4):
                body.append(P('v_pk_mul_f32 %s, %s, %s' % (vr(E[k], 2), vr(E[k], 2), vr(U[k], 2))))
            for k, (tb, hh) in enumerate(prs):
                body.append(P('v_cvt_pk_bf16_f32 v%d, v%d, v%d' % (OUTR(tb, fb) + hh, E[k], E[k] + 1)))
        if dmas:
            frac = self.cfg.get('p3e_frac', 100)
            body = interleave(body, dmas, start=4, every=max(1, ((len(body) - 8) * frac // 100) // (len(dmas) + 1)))
        o += body
        o += [P('s_lshr_b32 s52, s%d, 1' % sM), P('s_mul_i32 s52, s52, 7168'), P('s_add_u32 s52, s52, s%d' % sAF),
              P('s_mul_i32 s53, s%d, %d' % (sW, 2 * 57344)), P('s_add_u32 s52, s52, s53'),
              P('s_add_u32 s53, s52, 57344'), P('s_add_u32 s54, s52, 4096'), P('s_add_u32 s55, s53, 4096')]
        def variant(odd, fl):
            r = []
            for tb in range(2):
                b0 = 52 + tb; b1 = 54 + tb
                if not odd:
                    for u in range(3):
                        r.append(P('buffer_store_dwordx4 %s, v%d, s[28:31], s%d offen offset:%d%s' % (vr(OUTR(tb, 2 * u), 4), vL16, b0, u * 1024, fl)))
                    r.append(P('buffer_store_dwordx2 %s, v%d, s[28:31], s%d offen offset:%d%s' % (vr(OUTR(tb, 6), 2), vL16, b0, 3072, fl)))
                else:
                    r.append(P('buffer_store_dwordx2 %s, v%d, s[28:31], s%d offen offset:%d%s' % (vr(OUTR(tb, 0), 2), vL16, b0, 3072 + 8, fl)))
                    for u in range(3):
                        r.append(P('buffer_store_dwordx4 %s, v%d, s[28:31], s%d offen offset:%d%s' % (vr(OUTR(tb, 2 * u + 1), 4), vL16, b1, u * 1024, fl)))
            return r
        l_odd = self.L('odd'); l_e1 = self.L('e1'); l_o1 = self.L('o1'); done = self.L('dn')
        sel = sMODE
        if self.cfg.get('af_sc1_r1'):
            sel = sIT
            o += [P('s_xor_b32 s%d, s%d, 1' % (sIT, sRND)), P('s_or_b32 s%d, s%d, s%d' % (sIT, sIT, sMODE))]
        o += [P('s_bitcmp1_b32 s%d, 0' % sM), P('s_cbranch_scc1 %s' % l_odd),
              P('s_cmp_eq_u32 s%d, 0' % sel), P('s_cbranch_scc1 %s' % l_e1)] + variant(False, ' sc1') + [P('s_branch %s' % done), LAB(l_e1)] + \
            variant(False, '') + [P('s_branch %s' % done), LAB(l_odd),
              P('s_cmp_eq_u32 s%d, 0' % sel), P('s_cbranch_scc1 %s' % l_o1)] + variant(True, ' sc1') + [P('s_branch %s' % done), LAB(l_o1)] + \
            variant(True, '') + [LAB(done)]
        cnt = [VM('; counted store') for _ in range(8)]
        return o + cnt, [c.tag for c in cnt]

    def build(self):
        cfg = self.cfg
        stop = cfg.get('stop', 99)
        o = self.add
        self.prologue()
        o(self.ts(0))
        self.p1a()
        o(self.ts(1))
        o(W(self.tag_res))
        if cfg.get('a0_early', 1):
            o(self.dma_w1_group(0))
        o(LAB('L_P1EPI'))
        wo = [self.dma_wo_slot(SRD_WO, 8, t, kh, t) for t in range(8) for kh in range(2)]
        w1a0 = self.dma_w1_group(0)
        o(P('s_cmp_eq_u32 s%d, 1' % sRND), P('s_cselect_b64 s[70:71], -1, 0'),
          P('s_lshl_b32 s53, s%d, 10' % sW), P('s_add_u32 s53, s53, %d' % L_W), P('v_add_u32 v%d, s53, v%d' % (vWOA, vL16)))
        epi, stores = self.p1_epi(self.p1_epi_fill())
        o(epi)
        ds, tags = self.dual_store(stores)
        o(ds)
        o(self.wo_restore())
        o(self.ts(2, True))
        o(P('s_lshl_b32 s%d, s%d, 2' % (sTGT, sRND)))
        o(self.sync_dyn(1, tags, pre_r1=self.dma_w1_group(1)) if cfg.get('a1_tail', 1) else self.sync_dyn(1, tags, pre=self.dma_w1_group(1)))
        o(self.ts(3, True))
        if stop == 1:
            o(P('s_branch L_END'))
        o(LAB('L_C2'))
        o(self.gemmB(8, SRD_WO, sOF, 16, 8, 8, None, L_EXB2, inloop=self.dma_w1_group(2) if cfg.get('a2_p2', 1) else None))
        o(self.ts(4, True))
        o(self.x_stores(sX1, sS1))
        ds, tags = self.x_store_frags(); o(ds)
        o(self.row_stats())
        ds, tags2 = self.x_store_stats(); o(ds)
        tags = tags + tags2
        o(self.sync_dyn(2, tags, pre=None if cfg.get('a2_p2', 1) else self.dma_w1_group(2)))
        o(self.ts(5, True))
        if stop == 2:
            o(P('s_branch L_END'))
        w2_early = [self.dma_wo_slot(SRD_W2, 28, W2_T_AT[p], kh, p) for p in range(5) for kh in range(2)]
        body, PA = self.p3(w2_early)
        o(body)
        skip = self.L('cs1')
        o(P('s_cmp_lg_u32 s%d, 0' % sRND), P('s_cbranch_scc1 %s' % skip))
        o(self.cs_w1())
        o(LAB(skip))
        o(self.ts(6, True))
        n_epi = cfg.get('w2_epi_p', 15)
        w2_epi = [self.dma_wo_slot(SRD_W2, 28, W2_T_AT[p], kh, p) for p in range(5, n_epi) for kh in range(2)]
        epi, tags = self.p3_epi(PA, w2_epi)
        o(epi)
        o(self.ts(7, True))
        o(self.sync_dyn(3, tags, pre=[self.dma_wo_slot(SRD_W2, 28, W2_T_AT[p], kh, p) for p in range(n_epi, 19) for kh in range(2)]))
        o(self.ts(8, True))
        if stop == 3:
            o(P('s_branch L_END'))
        o(LAB('L_C4'))
        if cfg.get('stash', 1):
            VA, VB = vT + 60, vT + 61
            o(P('s_cmp_eq_u32 s%d, 0' % sRND), P('s_cselect_b64 s[74:75], -1, 0'))
            o(P('s_lshl_b32 s53, s%d, 10' % sW), P('s_add_u32 s53, s53, %d' % L_W), P('v_add_u32 v%d, s53, v%d' % (VA, vL16)),
              P('v_add_u32 v%d, 0x10000, v%d' % (VB, VA)))
            wq_tail = self.wq_restore([0, 1, 2, 4, 5, 6, 8, 9, 10, 11], VA, VB)
            wq_post = self.wq_restore([3, 7], VA, VB)
            o(self.gemmB(28, SRD_W2, sAF, 56, XD, 19, None, L_EXB4, posf=w2pos, tail=wq_tail, post=wq_post, tail_lds=True))
        else:
            wq_tail = self.dma_wq_quarter(0, src=None) + self.dma_wq_quarter(1, src=None) + self.dma_wq_quarter(2, src=None) + self.dma_wq_quarter(3, panels=(2,), src=None)
            wq_post = self.dma_wq_quarter(3, panels=(0, 1), src=None)
            o(self.gemmB(28, SRD_W2, sAF, 56, XD, 19, None, L_EXB4, pre_extras=self.sw4(), posf=w2pos, tail=wq_tail, post=wq_post))
        o(self.ts(9, True))
        o(LAB('L_C5'))
        o(P('s_cmp_lg_u32 s%d, 0' % sRND), P('s_cbranch_scc1 L_FINAL'))
        o(self.x_stores(sX2, sS2))
        ds, tags = self.x_store_frags(); o(ds)
        o(self.row_stats())
        ds, tags2 = self.x_store_stats(); o(ds)
        tags = tags + tags2
        ht = [newtag('hs') for _ in range(3)]
        o(P('s_add_u32 s52, s%d, 1' % sG), P('s_lshl_b32 s53, s52, 14'), P('s_lshl_b32 s54, s%d, 11' % sCT),
          P('s_add_u32 s53, s53, s54'), P('s_add_u32 s53, s53, %d' % WS_HF),
          P('s_lshl_b32 s54, s52, 10'), P('s_add_u32 s54, s54, %d' % WS_HST),
          VM('buffer_store_dwordx4 %s, v%d, s[28:31], s53 offen sc1' % (vr(vR, 4), vHOF), ht[0]),
          self.delta(55, 11), P('s_add_u32 s55, s55, s53'),
          VM('buffer_store_dwordx4 %s, v%d, s[28:31], s55 offen offset:1024 sc1' % (vr(vR + 4, 4), vHOF), ht[1]),
          VM('buffer_store_dwordx2 %s, v%d, s[28:31], s54 offen sc1' % (vr(vT + 32, 2), vHST), ht[2]))
        self.halo_store_tags = ht
        o(self.sync_dyn(4, tags))
        o(self.ts(10))
        if stop == 4:
            o(P('s_branch L_END'))
        o(P('s_mov_b32 s%d, 1' % sRND), P('s_add_u32 s%d, s%d, s%d' % (sOF, sOF, dOF)), P('s_add_u32 s%d, s%d, s%d' % (sAF, sAF, dAF)),
          P('s_add_u32 s%d, s%d, s%d' % (sX1, sX1, dX1)), P('s_add_u32 s%d, s%d, s%d' % (sS1, sS1, dS1)))
        self.p1b()
        o(self.ts(27))
        o(WALL(False, True))
        o(P('s_branch L_P1EPI'))
        o(LAB('L_FINAL'))
        for u in range(2):
            o(P('v_permlane16_swap_b32 v%d, v%d' % (vR + 4 * u, vR + 4 * u + 2)), P('v_permlane16_swap_b32 v%d, v%d' % (vR + 4 * u + 1, vR + 4 * u + 3)))
        for u in range(2):
            if u == 1:
                o(self.delta(55), P('s_add_u32 s55, s55, s61'))
            o(VM('buffer_store_dwordx4 %s, v%d, s[32:35], s%d offen offset:%d%s' % (vr(vR + 4 * u, 4), vOUT, 55 if u else 61, u * 64, ' sc1' if cfg.get('out_sc1') else '')))
        o(self.ts(28), self.ts_flush())
        o(LAB('L_END'), P('s_endpgm'))

    def sync_dyn(self, ph, tags, window=None, pre=None, pre_r1=None):
        prep = [P('s_add_u32 s%d, s%d, %d' % (sNXT, sTGT, ph)), P('v_mov_b32 v%d, s%d' % (vTA, sNXT)), P('v_mov_b32 v%d, 0' % vTB),
                P('v_lshlrev_b32 v250, 2, v%d' % vLANE)]
        if pre_r1:
            l2 = self.L('pr2'); l3 = self.L('pr3')
            raw = [P(x.text) for x in self.flat(pre_r1)]
            nd = sum(1 for x in self.flat(pre_r1) if x.kind == 'vm')
            o = prep + [P('s_cmp_lg_u32 s%d, 0' % sRND), P('s_cbranch_scc1 %s' % l2)] + raw + [P('s_waitcnt vmcnt(%d)' % nd), P('s_branch %s' % l3),
                 LAB(l2), P('s_waitcnt vmcnt(0)'), LAB(l3), MARK(tags)]
        else:
            o = prep + self.flat(pre or []) + [W(tags)]
        if self.cfg.get('sts'):
            o += self.ts(48 + 4 * (ph - 1))
        pure = self.L('fp'); done = self.L('fd')
        o += [P('s_mov_b64 exec, 1'),
              P('s_cmp_eq_u32 s%d, 0' % sMODE), P('s_cbranch_scc1 %s ;nopad' % pure),
              P('buffer_store_dword v%d, v%d, s[28:31], s%d offen sc1' % (vTA, vTB, sFLGOFF)),
              P('s_branch %s ;nopad' % done), LAB(pure),
              P('buffer_store_dword v%d, v%d, s[28:31], s%d offen' % (vTA, vTB, sFLGOFF)),
              LAB(done), VM('; flag store counted'),
              P('s_mov_b64 exec, -1')]
        other = self.L('so'); join = self.L('sj'); loop = self.L('sp')
        PA_, PB_ = 248, 249
        o += [P('s_cmp_lg_u32 s%d, 0' % sW), P('s_cbranch_scc1 %s ;nopad' % other),
              P('s_mov_b32 s%d, 0' % sTMO)]
        if self.cfg.get('poll2', 1):
            o += [P('buffer_load_dword v%d, v%d, s[28:31], s%d offen sc1' % (PA_, 250, sGFLG)),
                  LAB(loop),
                  P('buffer_load_dword v%d, v%d, s[28:31], s%d offen sc1' % (PB_, 250, sGFLG)),
                  P('s_waitcnt vmcnt(1)'),
                  P('v_cmp_gt_u32 vcc, s%d, v%d' % (sNXT, PA_)),
                  P('s_add_u32 s%d, s%d, 1' % (sTMO, sTMO)),
                  P('s_cbranch_vccz %s ;nopad' % join),
                  P('buffer_load_dword v%d, v%d, s[28:31], s%d offen sc1' % (PA_, 250, sGFLG)),
                  P('s_waitcnt vmcnt(1)'),
                  P('v_cmp_gt_u32 vcc, s%d, v%d' % (sNXT, PB_)),
                  P('s_cmp_lt_u32 s%d, 0x80000' % sTMO),
                  P('s_cbranch_vccz %s ;nopad' % join),
                  P('s_cbranch_scc1 %s' % loop),
                  P('s_endpgm'),
                  LAB(other)]
        else:
            o += [LAB(loop),
                  P('buffer_load_dword v%d, v%d, s[28:31], s%d offen sc1' % (PA_, 250, sGFLG)),
                  P('s_add_u32 s%d, s%d, 1' % (sTMO, sTMO)),
                  P('s_waitcnt vmcnt(0)'),
                  P('v_cmp_gt_u32 vcc, s%d, v%d' % (sNXT, PA_)),
                  P('s_cbranch_vccz %s' % join),
                  P('s_cmp_lt_u32 s%d, 0x100000' % sTMO),
                  P('s_cbranch_scc1 %s' % loop),
                  P('s_endpgm'),
                  LAB(other)]
        if window and not self.cfg.get('nowin'):
            o += window
        o += [LAB(join)]
        if self.cfg.get('sts'):
            o += self.ts(49 + 4 * (ph - 1)) + [WALL(True, True)] + self.ts(50 + 4 * (ph - 1))
        if self.cfg.get('halo_nowait') and ph == 4:
            o += [WALL(True, True)]
        else:
            o += [WALL(True, True)]
        o += [P('s_barrier')]
        return o

    def text(self):
        self.build()
        body = self.p.render()
        body = [l for l in body if not l.strip().startswith('; counted') and not l.strip().startswith('; flag store')]
        hdr = open('interleave_layers__sliding_local_dilated__dense_activation_mish__prompt.s.ref').read().split('\n')
        head = []
        for l in hdr:
            if l.startswith('; Override') or l.startswith('; grid=') or l.startswith('; @launch'):
                continue
            if l.startswith('.amdgcn_target'):
                break
            head.append(l)
        out = head + ['; @launch grid=(256,1,1) block=(256,1,1) lds=%d' % LDS_BYTES,
                      '.amdgcn_target "amdgcn-amd-amdhsa--gfx950"', '.text', '.globl ' + KNAME, '.p2align 8',
                      '.type %s,@function' % KNAME, KNAME + ':']
        out += body
        out += ['.section .rodata,"a"', '.p2align 6', '.amdhsa_kernel ' + KNAME,
                '  .amdhsa_next_free_vgpr 512', '  .amdhsa_next_free_sgpr 102', '  .amdhsa_accum_offset 256',
                '  .amdhsa_group_segment_fixed_size 0', '  .amdhsa_kernarg_size 80', '  .amdhsa_user_sgpr_count 2',
                '  .amdhsa_user_sgpr_kernarg_segment_ptr 1', '  .amdhsa_system_sgpr_workgroup_id_x 1',
                '  .amdhsa_float_denorm_mode_32 3', '.end_amdhsa_kernel', '']
        return '\n'.join(out)


if __name__ == '__main__':
    cfg = {}
    outp = sys.argv[1]
    for a in sys.argv[2:]:
        k, v = a.split('=')
        try:
            cfg[k] = int(v)
        except ValueError:
            cfg[k] = v
    g = Gen(cfg)
    t = g.text()
    open(outp, 'w').write(t)
    print('wrote', outp, len(t), 'bytes;', 'nops padded:', g.p.npad)
```

```python
import sys, math
from asmlib import *

KNAME = 'interleave_layers__sliding_local_dilated__dense_activation_mish__prompt_kernel'

WS_FLG = 0x0000
WS_HFL = 0x1000
WS_TS = 0x2000
WS_ST = 0x10000
WS_HST = 0x80000
WS_HF = 0x90000
WS_XF = 0x100000
WS_OF = 0x800000
WS_AF = 0x1000000
WS_ACT = 0x2000000
ACT_G = 0x92000
WS_SIZE = 0x2A00000
ST_K = 0x20000; XF_K = 0x200000; OF_R = 0x200000; AF_R = 0x800000

L_CSQ = 0
L_CS1 = 384
L_BB1 = 832
L_W = 2048
L_HALO = 100352
L_RING = 116736
L_EX = 67584
L_EXK = L_EX + 9216
L_W1P = [135168, 106496, 77824, 49152]
L_EXB2 = 2048
L_EXB4 = 100352
LDS_BYTES = 163840
W2_PA = [12, 13, 14, 15, 16, 17, 18, 3, 7]
W2_PB = [0, 1, 2, 4, 5, 6, 8, 9, 10, 11]
def w2pos(t):
    return W2_PA[t] if t < 9 else (W2_PB[t - 9] if t < 19 else W2_PA[t - 19])
W2_T_AT = {w2pos(t): t for t in range(19)}

LOG2E = 1.4426950408889634
LN2 = 0.6931471805599453


def f32(x):
    import struct
    return '0x%08x' % struct.unpack('<I', struct.pack('<f', x))[0]


sRND = 3; sG = 4; sM = 5; sW = 6; sMODE = 7
SRD_X = 8; SRD_WQ = 12; SRD_WO = 16; SRD_W1 = 20; SRD_W2 = 24; SRD_WS = 28; SRD_OUT = 32; SRD_DBG = 36; SRD_B1 = 40
sXCC = 44
sWQ_SRC = 45
sW1K = 46
sWO_SRC = 47
sW1_SRC = 48
sW1_M = 49
sB0 = 50; sB1 = 51
sT0 = 52; sT1 = 53; sT2 = 54; sT3 = 55
sFLGOFF = 56
sGFLG = 57
sST = 58
sTH = 59; sCT = 60
sONE = 62
sM2L = 64
sUP = 66
sMA = 68; sMB = 70; sMC = 72; sMD = 74
sNXT = 76; sIT = 76; sTMO = 77; sTGT = 78; sA = 79; sB = 80; sC = 81; sD = 82
sXR0 = 83; sXR1 = 84
sHSRC = 85
sTB = 86
sGBASE = 87
sTS = 88
sTSO = 90
sOF = 94; sAF = 95; sX1 = 96; sS1 = 97; sX2 = 98; sS2 = 99
sTUX = 100; sTUG = 101
dOF = 83; dAF = 84; dX1 = 85; dS1 = 82
sXL0 = 92; sXL1 = 93

vLANE = 0; vL16 = 1
vR = 2
vONES = 10
vWQA = 14
vE1 = 18; vE2 = 19
vW1A = 20
vW2A = 23
vDQ = 35; vDO = 36; vD1 = 37
vCS = 44
vL128 = 45
vDUM = 247
vCCUR = 46; vCPREV = 50; vCPA = 54
vEXV = 58; vEXK = 59; vEXH = 60; vRVP = 61; vRV = 62; vRK = 63
vLN2 = 64
vEXBW = 66; vEXBR = 67
vSTO = 68
vHOF = 69
vHST = 70
vOUT = 71
vAF = 72
NAF = 6
vACC = 104
vT = 168
vTA = 254; vTB = 255
vWOA = 247
vDUMMY = 246
XD = 12
aWO = 96; aWQ = 160
L_HS = 135168
vDX = 240; vDH = 241; vXA = 242; vXB = 243; vHXA = 244; vHXB = 245


class Gen:
    def __init__(self, cfg):
        self.cfg = cfg
        self.p = Prog()
        self.lbl = 0

    def L(self, name):
        self.lbl += 1
        return '%s_%d' % (name, self.lbl)

    def add(self, *a):
        self.p.add(*a)

    def ts(self, idx, rnd=False):
        if not self.cfg.get('ts'):
            return []
        o = [P('s_memrealtime s[92:93]' if self.cfg.get('ts') == 1 else 's_memtime s[92:93]')]
        if rnd:
            o += [P('s_lshl_b32 s91, s%d, 4' % sRND), P('s_add_u32 s91, s91, %d' % idx), P('s_mov_b32 m0, s91'),
                  P('s_waitcnt lgkmcnt(0)'), P('v_writelane_b32 v103, s92, m0')]
        else:
            o += [P('s_waitcnt lgkmcnt(0)'), P('v_writelane_b32 v103, s92, %d' % idx)]
        return o

    def ts_flush(self):
        if not self.cfg.get('ts'):
            return []
        if self.cfg.get('dbgts'):
            o = [P('s_memrealtime s[92:93]'), P('s_waitcnt lgkmcnt(0)'), P('v_readlane_b32 s53, v103, 12'), P('s_nop 4'), P('s_sub_u32 s52, s92, s53'),
                 P('v_writelane_b32 v103, s52, 63')]
            lanes = [1, 2, 10, 27, 28, 63, 6, 9]
            words = [4, 5, 6, 7, 12, 13, 14, 15]
            o += [P('v_readlane_b32 s54, v103, 13')]
            for ln, wd in zip(lanes, words):
                o += [P('v_readlane_b32 s52, v103, %d' % ln), P('s_nop 4')]
                if ln != 63:
                    o += [P('s_sub_u32 s52, s52, s54')]
                o += [P('v_writelane_b32 v252, s52, %d' % wd)]
            o += [P('v_lshlrev_b32 v253, 2, v%d' % vLANE), P('s_cmp_eq_u32 s2, 0'), P('s_cselect_b32 s52, 0, 1'), P('s_or_b32 s52, s52, s%d' % sW),
                  P('s_cmp_eq_u32 s52, 0'), P('s_cselect_b32 s52, 0xf0f0, 0'), P('s_mov_b32 exec_lo, s52'), P('s_mov_b32 exec_hi, 0'),
                  P('s_cbranch_execz L_TSD'),
                  VM('buffer_store_dword v252, v253, s[36:39], 0 offen'), LAB('L_TSD'), P('s_mov_b64 exec, -1')]
            return o
        return [P('v_lshlrev_b32 v252, 2, v%d' % vLANE), VM('buffer_store_dword v103, v252, s[28:31], s90 offen')]

    def dma(self, srd, voff, src_s, src_imm, lds_s, lds_imm, tag=None, st=None):
        st = st if st is not None else sT0
        ops = []
        if lds_s is None:
            ops.append(P('s_mov_b32 m0, %d' % lds_imm))
        else:
            ops.append(P('s_add_u32 m0, s%d, %d' % (lds_s, lds_imm)))
        if src_s is None:
            ops.append(P('s_mov_b32 s%d, %d' % (st, src_imm)))
        else:
            ops.append(P('s_add_u32 s%d, s%d, %d' % (st, src_s, src_imm)))
        if self.cfg.get('nodma') and srd in (SRD_WO, SRD_W1, SRD_W2):
            ops.append(P('s_nop 0'))
            return ops
        nt = ' nt' if (self.cfg.get('nt') and srd in (SRD_W1, SRD_W2)) else ''
        ops.append(VM('buffer_load_dwordx4 v%d, s[%d:%d], s%d offen%s lds' % (voff, srd, srd + 3, st, nt), tag))
        return ops

    def touch(self, srd, unit_s, imm, limit=None, only_r1=False):
        ops = []
        if limit is not None:
            ops += [P('s_add_u32 s55, s%d, %d' % (unit_s, imm[0])), P('s_cmp_lt_u32 s%d, %d' % (unit_s, limit)),
                    P('s_cselect_b32 s55, s55, 0x7ff00000')]
            if imm[1] is not None:
                ops.insert(1, P('s_add_u32 s55, s55, s%d' % imm[1]))
        else:
            ops.append(P('s_add_u32 s55, s%d, %d' % (unit_s, imm)))
        if only_r1:
            ops += [P('s_cmp_eq_u32 s%d, 0' % sRND), P('s_cselect_b32 s55, s55, 0x7ff00000')]
        ops.append(VM('buffer_load_dword v102, v%d, s[%d:%d], s55 offen' % (vL128, srd, srd + 3)))
        return ops

    def touch_w(self, name, only_r1=False):
        srd, size = {'wq': (SRD_WQ, 512 * 3072), 'wo': (SRD_WO, 524288), 'w1': (SRD_W1, 512 * 3584), 'w2': (SRD_W2, 1792 * 1024)}[name]
        return [self.touch(srd, sTUX, k * 0x100000, only_r1=only_r1) for k in range((size + 0xfffff) // 0x100000)]

    def touch_act(self, off, nbytes):
        return [self.touch(SRD_WS, sTUG, (WS_ACT + off, sST), limit=nbytes)]

    def touch_range(self, name, lo, hi, rounds='12'):
        srd = {'wq': SRD_WQ, 'wo': SRD_WO, 'w1': SRD_W1, 'w2': SRD_W2}[name]
        unit = -(-(hi - lo) // (128 * 128)) * 128
        assert unit <= 8192
        nl = unit // 128
        ops = [P('s_lshr_b32 s55, s%d, 13' % sTUX), P('s_mul_i32 s55, s55, %d' % unit), P('s_add_u32 s55, s55, %d' % lo)]
        if rounds != '12':
            ops += [P('s_cmp_eq_u32 s%d, %d' % (sRND, 0 if rounds == '1' else 1)), P('s_cselect_b32 s55, s55, 0x7ff00000')]
        if nl < 64:
            m = (1 << nl) - 1
            ops += [P('s_mov_b32 exec_lo, 0x%x' % (m & 0xffffffff)), P('s_mov_b32 exec_hi, 0x%x' % (m >> 32))]
        ops.append(VM('buffer_load_dword v102, v%d, s[%d:%d], s55 offen' % (vL128, srd, srd + 3)))
        if nl < 64:
            ops.append(P('s_mov_b64 exec, -1'))
        return ops

    def sched_touches(self, phase, first_idx):
        out = []
        for e in str(self.cfg.get('tch', '')).split('+'):
            if not e:
                continue
            f = e.split('.')
            if f[0] != phase:
                continue
            k = int(f[1]); name = f[2]
            if name == 'af1':
                ops = self.touch_act_even(131072, 458752 - 131072, '1')
            elif name == 'af2':
                ops = self.touch_act_even(131072, 458752 - 131072, '2')
            elif name in ('of', 'af', 'xf'):
                ops = self.touch_set(name)[0]
            else:
                ops = self.touch_range(name, int(f[3]) * 1024, int(f[4]) * 1024, f[5] if len(f) > 5 else '12')
            out.append((first_idx[k] + 3, ops))
        return out

    def touch_act_even(self, off, n, rounds='12'):
        unit = -(-n // (64 * 128)) * 128
        nl = unit // 128
        assert nl <= 64
        ops = [P('s_lshr_b32 s55, s%d, 13' % sTUG), P('s_mul_i32 s55, s55, %d' % unit), P('s_add_u32 s55, s55, s%d' % sST),
               P('s_add_u32 s55, s55, %d' % (WS_ACT + off))]
        if rounds != '12':
            ops += [P('s_cmp_eq_u32 s%d, %d' % (sRND, 0 if rounds == '1' else 1)), P('s_cselect_b32 s55, s55, 0x7ff00000')]
        if nl < 64:
            m = (1 << nl) - 1
            ops += [P('s_mov_b32 exec_lo, 0x%x' % (m & 0xffffffff)), P('s_mov_b32 exec_hi, 0x%x' % (m >> 32))]
        ops.append(VM('buffer_load_dword v102, v%d, s[28:31], s55 offen' % vL128))
        if nl < 64:
            ops.append(P('s_mov_b64 exec, -1'))
        return ops

    def touch_code(self, lab0, lab1, base, nl=1):
        return [P('s_lshr_b32 s55, s%d, 13' % sTUX), P('s_mul_i32 s55, s55, %d' % (nl * 128)),
                P('v_add_u32 v%d, s55, v%d' % (253, vL128)),
                P('v_add_u32 v%d, %s-L_PC, v%d' % (253, lab0, 253)),
                P('v_min_u32 v%d, %s-L_PC, v%d' % (253, lab1, 253)),
                P('s_mov_b64 exec, %d' % ((1 << nl) - 1)),
                VM('global_load_dword v102, v%d, s[%d:%d]' % (253, base, base + 1)),
                P('s_mov_b64 exec, -1')]

    def delta(self, dst, shift=7):
        if not self.cfg.get('split', 0):
            return [P('s_mov_b32 s%d, 0' % dst)]
        return [P('s_xor_b32 s%d, s%d, 4' % (dst, sCT)), P('s_sub_u32 s%d, s%d, s%d' % (dst, dst, sCT)), P('s_lshl_b32 s%d, s%d, %d' % (dst, dst, shift))]

    def touch_mall(self):
        o = [P('s_lshl_b32 s54, s2, 2'), P('s_add_u32 s54, s54, s%d' % sW)]
        for srd, first, n in ((SRD_W1, 0, 224), (SRD_W2, 256, 224), (SRD_WO, 512, 64)):
            o += [P('s_sub_u32 s55, s54, %d' % first), P('s_cmp_lt_u32 s55, %d' % n), P('s_cselect_b32 s55, s55, 0x3ff80'),
                  P('s_lshl_b32 s55, s55, 13'),
                  VM('buffer_load_dword v102, v%d, s[%d:%d], s55 offen' % (vL128, srd, srd + 3))]
        return o

    def touch_set(self, spec, only_r1=False):
        out = []
        for name in spec.split(','):
            if not name:
                continue
            if name == 'of':
                out.append(self.touch_act_even(0, 131072))
            elif name == 'af':
                out.append(self.touch_act_even(131072, 458752 - 131072))
            elif name == 'xf':
                out.append(self.touch_act_even(458752, 139264))
            else:
                out += self.touch_w(name, only_r1)
        return out

    def dma_wq_quarter(self, qd, panels=(0, 1, 2), src=None):
        out = []
        for a in range(2):
            for p in panels:
                rg = 8 * qd + 4 * a
                out.append(self.dma(SRD_WQ, vDQ, src if src is not None else sWQ_SRC, rg * 49152 + p * 1024, sW1K, L_W + p * 32768 + rg * 1024))
        return out

    def dma_wo_slot(self, srd, nk, t, kh, pos):
        js = kh * nk + t
        return self.dma(srd, vDO, sWO_SRC, js * 32768, sW1K, L_W + (2 * pos + kh) * 4096)

    def dma_w1_group(self, a):
        out = []
        for u in range(7):
            out.append(self.dma(SRD_W1, vD1 + u, sW1_SRC, a * 4 * 32 * 3584, sW1_M, L_W1P[a] + u * 1024))
        return out

    def window_loop(self, n0, n1, srd, srcA_s, srcA_imm, srcB, ldsC, ldsD, subs):
        lab = self.L('win'); end = self.L('winend')
        o = [P('s_add_u32 s%d, s%d, %d' % (sIT, sW, n0 - 1)),
             P('s_cmp_ge_u32 s%d, %d' % (sIT, n1)),
             P('s_cbranch_scc1 %s' % end),
             LAB(lab),
             P('s_mul_i32 s%d, s%d, %d' % (sA, sIT, srcB))]
        if srcA_s is not None:
            o.append(P('s_add_u32 s%d, s%d, s%d' % (sA, sA, srcA_s)))
        o.append(P('s_add_u32 s%d, s%d, %d' % (sA, sA, srcA_imm)))
        o.append(P('s_mul_i32 s%d, s%d, %d' % (sB, sIT, ldsD)))
        for (voff, so, lo) in subs:
            o.append(P('s_add_u32 m0, s%d, %d' % (sB, ldsC + lo)))
            o.append(P('s_add_u32 s%d, s%d, %d' % (sT0, sA, so)))
            nt = ' nt' if (self.cfg.get('nt') and srd in (SRD_W1, SRD_W2)) else ''
            if self.cfg.get('nodma'):
                o.append(P('s_nop 0'))
            else:
                o.append(P('buffer_load_dwordx4 v%d, s[%d:%d], s%d offen%s lds' % (voff, srd, srd + 3, sT0, nt)))
        o += [P('s_add_u32 s%d, s%d, 3' % (sIT, sIT)),
              P('s_cmp_lt_u32 s%d, %d' % (sIT, n1)),
              P('s_cbranch_scc1 %s' % lab),
              LAB(end)]
        return o

    def win_wq(self, rg0, rg1):
        return [P('s_lshl_b32 s%d, s%d, 6' % (sC, sM))] + self.window_loop(
            rg0, rg1, SRD_WQ, sC, 0, 49152, L_W, 1024, [(vDQ, p * 1024, p * 32768) for p in range(3)])

    def win_wo(self, srd, nk, t0, t1, dpos=0):
        subs = []
        for kh in range(2):
            for q in range(4):
                subs.append((vDO, kh * nk * 32768 + q * 8192, kh * 4096 + q * 1024))
        return [P('s_lshl_b32 s%d, s%d, 7' % (sC, sCT))] + self.window_loop(
            t0, t1, srd, sC, 0, 32768, L_W + dpos * 8192, 8192, subs)

    def win_w1(self, j0, j1):
        a = j0 // 4
        base = L_W1P[a] - j0 * 7168
        for j in range(j0, j1):
            assert L_W1P[j // 4] + (j % 4) * 7168 == base + j * 7168
        return [P('s_mul_i32 s%d, s%d, 224' % (sC, sM))] + self.window_loop(
            j0, j1, SRD_W1, sC, 0, 32 * 3584, base, 7168, [(vD1 + u, 0, u * 1024) for u in range(7)])

    def gemm_loop(self, groups, LA, extras):
        out = []
        n = len(groups)
        for k in range(min(LA, n)):
            out += groups[k].get('pre', []) + groups[k]['reads']
        flat = []
        for gi, g in enumerate(groups):
            rq = []
            if gi + LA < n:
                rq = list(groups[gi + LA].get('pre', [])) + list(groups[gi + LA]['reads'])
            nm = len(g['mf'])
            chunks = [[] for _ in range(nm)]
            reads_total = sum(1 for x in rq if x.kind == 'lg')
            per = max(1, -(-reads_total // nm))
            c = 0; cnt = 0
            for x in rq:
                chunks[min(c, nm - 1)].append(x)
                if x.kind == 'lg':
                    cnt += 1
                    if cnt == per:
                        cnt = 0; c += 1
            for k, (text, waits) in enumerate(g['mf']):
                w = list(waits)
                if k == 0:
                    w += [x.tag for x in g['reads']]
                flat.append((text, w, g.get('premf', []) if k == 0 else [], chunks[k]))
        extras = sorted(extras, key=lambda e: e[0])
        ei = 0
        for idx, (text, w, premf, chunk) in enumerate(flat):
            if idx == 0:
                out += premf + [W(w)]
            out.append(P(text))
            if idx + 1 < len(flat):
                out += flat[idx + 1][2]
                out.append(W(flat[idx + 1][1]))
            out += chunk
            k = 0
            while ei < len(extras) and extras[ei][0] <= idx and k < self.cfg.get('extra_per', 1):
                out += extras[ei][1]
                ei += 1; k += 1
        while ei < len(extras):
            out += extras[ei][1]; ei += 1
        return out

    @staticmethod
    def flat(ops):
        out = []
        for x in ops:
            if x is None:
                continue
            if isinstance(x, (list, tuple)):
                out += Gen.flat(x)
            else:
                out.append(x)
        return out

    def spread(self, ops, start, step=1, nvec=1):
        out = []; cur = []; nv = 0; at = start
        ops = self.flat(ops)
        for i, x in enumerate(ops):
            cur.append(x)
            t = x.text or ''
            if t.startswith('v_') or t.startswith('buffer_') or t.startswith('ds_'):
                nv += 1
                nxt = (ops[i + 1].text or '') if i + 1 < len(ops) else ''
                glued = (t.startswith('v_cmp') and ' vcc,' in t) or (nxt.startswith('v_cndmask') and nxt.rstrip().endswith('vcc'))
                if nv >= nvec and not glued:
                    out.append((at, cur)); cur = []; nv = 0; at += step
        if cur:
            out.append((at, cur))
        return out

    def afrag(self, n):
        return vAF + (n % NAF) * 4

    def prologue(self):
        cfg = self.cfg
        o = self.add
        o(P('s_cmp_ge_u32 s2, 256'), P('s_cbranch_scc1 L_END'))
        if cfg.get('ts'):
            o(P('v_mov_b32 v103, 0'), self.ts(13))
            if cfg.get('dbgts'):
                o(P('s_memrealtime s[92:93]'), P('s_waitcnt lgkmcnt(0)'), P('v_writelane_b32 v103, s92, 12'))
        o(P('s_load_dwordx16 s[72:87], s[0:1], 0'), P('s_load_dwordx4 s[88:91], s[0:1], 64'))
        if cfg.get('t_code', 1):
            nl = cfg.get('code_nl', 2 if cfg.get('code_staged', 1) else 3)
            o(P('s_getpc_b64 s[50:51]'), LAB('L_PC'),
              P('s_lshr_b32 s52, s2, 3'), P('s_mul_i32 s52, s52, %d' % (4 * nl)),
              P('v_lshrrev_b32 v252, 6, v0'), P('v_mul_u32_u24 v252, %d, v252' % nl), P('v_and_b32 v253, 63, v0'),
              P('v_add3_u32 v252, v252, v253, s52'), P('v_lshlrev_b32 v252, 7, v252'),
              P('v_min_u32 v252, %s-L_PC, v252' % ('L_C2' if cfg.get('code_staged', 1) else 'L_END')),
              P('s_mov_b64 exec, %d' % ((1 << nl) - 1)),
              VM('global_load_dword v102, v252, s[50:51]'),
              P('s_mov_b64 exec, -1'))
        o(P('s_getreg_b32 s%d, hwreg(HW_REG_XCC_ID, 0, 4)' % sXCC))
        o(P('s_and_b32 s52, s2, 7'), P('s_lshr_b32 s53, s2, 3'), P('s_lshr_b32 s54, s53, 4'),
          P('s_lshl_b32 s%d, s52, 1' % sG), P('s_add_u32 s%d, s%d, s54' % (sG, sG)),
          P('s_and_b32 s%d, s53, 15' % sM))
        if cfg.get('cross_groups'):
            o(P('s_lshr_b32 s%d, s2, 4' % sG), P('s_and_b32 s%d, s2, 15' % sM))
        o(P('v_lshrrev_b32 v252, 6, v0'), P('v_and_b32 v%d, 63, v0' % vLANE), P('v_readfirstlane_b32 s%d, v252' % sW))
        I = 250; Gq = 251; RR = 249; I3 = 248; t0 = 252; t1 = 253; t2 = 254; t3 = 255
        o(P('v_lshlrev_b32 v%d, 7, v%d' % (vL128, vLANE)), P('v_lshlrev_b32 v%d, 4, v%d' % (vL16, vLANE)))
        o(P('v_lshrrev_b32 v%d, 2, v%d' % (t0, vLANE)), P('v_lshrrev_b32 v%d, 2, v%d' % (t1, t0)),
          P('v_xor_b32 v%d, v%d, v%d' % (t1, t1, vLANE)), P('v_and_b32 v%d, 3, v%d' % (t1, t1)),
          P('v_lshlrev_b32 v%d, 4, v%d' % (t1, t1)),
          P('v_lshl_add_u32 v%d, v%d, 11, v%d' % (vDX, t0, t1)))
        o(P('v_lshlrev_b32 v%d, 1, v%d' % (t2, t0)), P('v_add_u32 v%d, 16, v%d' % (t3, t2)), P('v_add_u32 v%d, 1, v%d' % (t2, t2)),
          P('v_cmp_gt_u32 vcc, 8, v%d' % t0),
          P('s_lshr_b32 s%d, s%d, 3' % (sTH, sM)), P('s_and_b32 s%d, s%d, 7' % (sCT, sM)),
          P('v_cndmask_b32 v%d, v%d, v%d, vcc' % (t2, t2, t3)),
          P('v_lshl_add_u32 v%d, v%d, 10, v%d' % (vDH, t2, t1)),
          P('s_cmp_eq_u32 s%d, 0' % sG), P('s_cselect_b32 s53, 0x40000000, 0'), P('v_or_b32 v%d, s53, v%d' % (vDH, vDH)))
        o(P('v_lshrrev_b32 v%d, 4, v%d' % (t1, vLANE)), P('v_lshrrev_b32 v%d, 1, v%d' % (t2, vLANE)),
          P('v_xor_b32 v%d, v%d, v%d' % (t1, t1, t2)), P('v_and_b32 v%d, 1, v%d' % (t1, t1)),
          P('v_lshlrev_b32 v%d, 5, v%d' % (t1, t1)), P('v_and_b32 v%d, 1, v%d' % (t2, vLANE)),
          P('v_lshl_add_u32 v%d, v%d, 4, v%d' % (t1, t2, t1)),
          P('v_mul_u32_u24 v%d, 3072, v%d' % (t2, t0)), P('v_add_u32 v%d, v%d, v%d' % (vDQ, t1, t2)))
        o(P('s_mov_b32 s%d, 0' % sRND), P('s_mov_b32 s%d, 0' % sMODE),
          P('s_mul_i32 s%d, s%d, 49152' % (sWQ_SRC, sW)), P('s_lshl_b32 s52, s%d, 6' % sM),
          P('s_add_u32 s%d, s%d, s52' % (sWQ_SRC, sWQ_SRC)),
          P('s_lshl_b32 s%d, s%d, 10' % (sW1K, sW)),
          P('s_lshl_b32 s%d, s%d, 13' % (sWO_SRC, sW)), P('s_and_b32 s52, s%d, %d' % (sCT, 3 if cfg.get('split', 0) else 7)), P('s_lshl_b32 s52, s52, 7'),
          P('s_add_u32 s%d, s%d, s52' % (sWO_SRC, sWO_SRC)),
          P('s_mul_i32 s%d, s%d, %d' % (sW1_SRC, sW, 32 * 3584)), P('s_mul_i32 s52, s%d, 224' % sM),
          P('s_add_u32 s%d, s%d, s52' % (sW1_SRC, sW1_SRC)),
          P('s_mul_i32 s%d, s%d, 7168' % (sW1_M, sW)),
          P('s_lshl_b32 s%d, s%d, 8' % (sGFLG, sG)),
          P('s_lshl_b32 s52, s%d, 2' % sM), P('s_add_u32 s52, s52, s%d' % sW), P('s_lshl_b32 s52, s52, 2'),
          P('s_add_u32 s%d, s%d, s52' % (sFLGOFF, sGFLG)),
          P('s_and_b32 s52, s%d, 1' % sG), P('s_lshl_b32 s52, s52, 4'), P('s_add_u32 s52, s52, s%d' % sM),
          P('s_lshl_b32 s52, s52, 2'), P('s_add_u32 s52, s52, s%d' % sW), P('s_lshl_b32 s%d, s52, 13' % sTUX),
          P('s_mul_i32 s94, s52, 2176'),
          P('s_lshl_b32 s52, s%d, 2' % sM), P('s_add_u32 s52, s52, s%d' % sW), P('s_lshl_b32 s%d, s52, 13' % sTUG),
          P('s_mul_i32 s%d, s%d, %d' % (sST, sG, ACT_G)),
          P('s_andn2_b32 s52, s%d, 1' % sG), P('s_lshl_b32 s52, s52, 17'), P('s_sub_u32 s52, s52, 16384'),
          P('s_max_i32 s52, s52, 0'), P('s_add_u32 s94, s94, s52'),
          P('s_lshl_b32 s52, s%d, 7' % sG), P('s_sub_u32 s53, s52, 32'), P('s_lshl_b32 s97, s53, 10'),
          P('s_cmp_eq_u32 s%d, 0' % sG), P('s_cselect_b32 s97, 0, s97'), P('s_lshl_b32 s53, s%d, 6' % sW), P('s_add_u32 s97, s97, s53'))
        for b in range(2):
            o(P('s_lshl_b32 s53, s%d, 1' % sW), P('s_add_u32 s53, s53, %d' % b), P('s_and_b32 s53, s53, 3'),
              P('s_lshl_b32 s53, s53, 5'), P('s_add_u32 s53, s53, s52'), P('s_lshr_b32 s54, s%d, 1' % sW),
              P('s_add_u32 s53, s53, s54'), P('s_lshl_b32 s%d, s53, 10' % (95 + b)))
        o(P('s_lshl_b32 s98, s%d, 11' % sW))
        o(P('s_waitcnt lgkmcnt(0)'))
        if cfg.get('pts') == 1:
            o(self.ts(14))
        def srd(dst, src, size):
            return [P('s_mov_b32 s%d, s%d' % (dst, src)), P('s_and_b32 s%d, s%d, 0xffff' % (dst + 1, src + 1)),
                    P('s_mov_b32 s%d, 0x%x' % (dst + 2, size)), P('s_mov_b32 s%d, 0x20000' % (dst + 3))]
        o(srd(SRD_X, 72, 2097152), srd(SRD_WQ, 74, 512 * 3072))
        tp = cfg.get('t_pro', 1)
        def tq(q):
            return self.touch_range('wq', q * 393216, (q + 1) * 393216) if tp else []
        if tp:
            o(P('s_mov_b32 exec_lo, 0x1ffff'), P('s_mov_b32 exec_hi, 0'),
              VM('buffer_load_dword v102, v%d, s[8:11], s94 offen' % vL128), P('s_mov_b64 exec, -1'))
        o(tq(0), tq(1))
        allfirst = cfg.get('cold', 'A') == 'A'
        coldD = cfg.get('cold', 'A') in ('D', 'E')
        if allfirst:
            o(tq(2), tq(3))
        if coldD:
            o(tq(2))
        o(srd(SRD_WO, 76, 524288), srd(SRD_W1, 80, 512 * 3584), srd(SRD_B1, 82, 3584), srd(SRD_W2, 84, 1792 * 1024),
          srd(SRD_OUT, 86, 2097152), srd(SRD_DBG, 88, 256), srd(SRD_WS, 90, WS_SIZE))
        o(P('s_mov_b32 s%d, s95' % sXR0), P('s_mov_b32 s%d, s96' % sXR1), P('s_mov_b32 s%d, s97' % sHSRC), P('s_mov_b32 s%d, s98' % sD))
        o(P('s_and_b32 s52, s%d, 1' % sG), P('s_lshl_b32 s52, s52, 3'), P('s_add_u32 s52, s52, s%d' % sM),
          P('s_and_b32 s99, s52, %d' % (15 if cfg.get('rot', 0) else 0)), P('s_lshl_b32 s98, s99, 1'), P('s_add_u32 s98, s98, s%d' % sW),
          P('s_lshl_b32 s95, s%d, 6' % sM), P('s_lshl_b32 s52, s%d, 6' % sW), P('s_sub_u32 s%d, s%d, s52' % (sHSRC, sHSRC)))
        self.tq = (lambda q: []) if (allfirst or coldD) else tq
        self.tq3 = tq(3) if coldD else None
        if cfg.get('t_mall', 0) == 1:
            o(self.touch_mall())
        if cfg.get('prezero'):
            o(P('v_mov_b32 v244, 0'), P('v_mov_b32 v245, 0'), P('v_mov_b32 v246, 0'), P('v_mov_b32 v247, 0'),
              P('s_lshr_b32 s55, s%d, 13' % sTUG), P('s_mul_i32 s55, s55, 9344'), P('s_add_u32 s55, s55, s%d' % sST), P('s_add_u32 s55, s55, %d' % WS_ACT))
            for k in range(9):
                if k % 4 == 0 and k:
                    o(P('s_add_u32 s55, s55, 4096'))
                o(VM('buffer_store_dwordx4 v[244:247], v%d, s[28:31], s55 offen offset:%d sc1' % (vL16, (k % 4) * 1024)))
            o(P('s_mov_b64 exec, 0xff'), VM('buffer_store_dwordx4 v[244:247], v%d, s[28:31], s55 offen offset:1024 sc1' % vL16), P('s_mov_b64 exec, -1'))
        self.tag_init = newtag('init')
        o(P('v_mov_b32 v%d, 0' % t1), P('s_mov_b64 exec, 1'),
          VM('buffer_store_dword v%d, v%d, s[28:31], s%d offen sc1' % (t1, t1, sFLGOFF), self.tag_init),
          P('s_mov_b64 exec, -1'))
        if cfg.get('pts') == 1:
            o(self.ts(15))
        o(P('v_and_b32 v%d, 15, v%d' % (I, vLANE)), P('v_lshrrev_b32 v%d, 4, v%d' % (Gq, vLANE)),
          P('v_lshrrev_b32 v%d, 2, v%d' % (t0, I)), P('v_lshl_add_u32 v%d, v%d, 2, v%d' % (RR, Gq, t0)),
          P('v_and_b32 v%d, 3, v%d' % (I3, I)))
        for k in range(4):
            o(P('v_mov_b32 v%d, 0x3f803f80' % (vONES + k)))
        o(P('v_lshlrev_b32 v%d, 6, v%d' % (t0, RR)), P('v_lshl_add_u32 v%d, v%d, 3, v%d' % (t0, I3, t0)),
          P('v_add_u32 v%d, %d, v%d' % (t0, L_W, t0)),
          P('v_and_b32 v%d, 1, v%d' % (t1, Gq)), P('v_lshlrev_b32 v%d, 5, v%d' % (t1, t1)),
          P('v_add_u32 v%d, v%d, v%d' % (vWQA, t0, t1)),
          P('v_xor_b32 v%d, 32, v%d' % (t2, t1)), P('v_add_u32 v%d, v%d, v%d' % (vWQA + 1, t0, t2)),
          P('v_add_u32 v%d, 0x10000, v%d' % (vWQA + 2, vWQA)), P('v_add_u32 v%d, 0x10000, v%d' % (vWQA + 3, vWQA + 1)))
        o(P('s_and_b32 s53, s%d, 1' % sW), P('s_lshl_b32 s53, s53, 5'), P('v_xor_b32 v%d, s53, v%d' % (t2, t1)),
          P('v_add_u32 v%d, v%d, v%d' % (vE2, t0, t2)),
          P('s_lshr_b32 s53, s%d, 1' % sW), P('s_add_u32 s53, s53, 1'), P('s_lshl_b32 s53, s53, 15'),
          P('v_add_u32 v%d, s53, v%d' % (vE1, vE2)))
        o(P('v_lshrrev_b32 v%d, 1, v%d' % (t0, Gq)), P('v_lshrrev_b32 v%d, 2, v%d' % (t1, I)),
          P('v_xor_b32 v%d, v%d, v%d' % (t0, t0, t1)), P('v_lshlrev_b32 v%d, 4, v%d' % (t0, t0)),
          P('v_lshl_add_u32 v%d, v%d, 6, v%d' % (t0, I, t0)),
          P('v_and_b32 v%d, 1, v%d' % (t1, Gq)), P('v_lshl_add_u32 v%d, v%d, 3, v%d' % (t0, t1, t0)),
          P('v_add_u32 v%d, %d, v%d' % (vHXA, L_HALO, t0)), P('v_xor_b32 v%d, 32, v%d' % (vHXB, vHXA)),
          P('s_lshl_b32 s53, s%d, 11' % sW), P('s_add_u32 s53, s53, %d' % L_RING),
          P('v_add_u32 v%d, s53, v%d' % (vXA, t0)), P('v_xor_b32 v%d, 32, v%d' % (vXB, vXA)))
        o(P('v_cmp_eq_u32 s[%d:%d], 1, v%d' % (sMA, sMA + 1, I3)), P('v_cmp_eq_u32 s[%d:%d], 2, v%d' % (sMB, sMB + 1, I3)),
          P('v_cmp_eq_u32 s[%d:%d], 3, v%d' % (sMC, sMC + 1, I3)), P('v_lshrrev_b32 v%d, 2, v%d' % (t0, I)),
          P('v_cmp_eq_u32 s[%d:%d], v%d, v%d' % (sMD, sMD + 1, t0, Gq)))
        o(P('v_lshlrev_b32 v%d, 4, v%d' % (vCS, Gq)))
        o(P('s_lshl_b32 s%d, s%d, 17' % (sGBASE, sG)),
          P('s_lshl_b32 s52, s%d, 2' % sTH), P('s_add_u32 s%d, s52, s%d' % (sTB, sW)))
        if cfg.get('ts'):
            o(P('s_lshl_b32 s52, s2, 2'), P('s_add_u32 s52, s52, s%d' % sW), P('s_lshl_b32 s52, s52, 8'),
              P('s_add_u32 s%d, s52, %d' % (sTSO, 0x1F80000)))
        o(self.setup2())
        if cfg.get('pts') == 1:
            o(self.ts(29))
        self.xslot = {}; self.wq_q = {}; self.halo_dma = []
        for j in range(16):
            self.xslot[j] = self.x_ring_dma(j)
        for q in range(4):
            self.wq_q[q] = self.wq_rot_quarter(q)
        for a in range(4):
            if not cfg.get('rot', 0):
                self.halo_dma.append(self.dma(SRD_X, vDH, 97, a * 256, sW1K, L_HALO + a * 4096))
                continue
            self.halo_dma.append([P('s_add_u32 m0, s%d, %d' % (sW1K, L_HALO + a * 4096)), P('s_add_u32 s52, s99, s%d' % sW), P('s_add_u32 s52, s52, %d' % (4 * a)),
                                  P('s_and_b32 s52, s52, 15'), P('s_lshl_b32 s52, s52, 6'), P('s_add_u32 s52, s52, s%d' % sHSRC),
                                  VM('buffer_load_dwordx4 v%d, s[8:11], s52 offen lds' % vDH)])
        o(self.xslot[0], self.wq_q[0], self.halo_dma[0], self.xslot[1])
        if cfg.get('pts') == 1:
            o(self.ts(30))

    def setup2(self):
        I = 228; Gq = 229; RR = 230; I3 = 231; t0 = 232; t1 = 233; t2 = 234; t3 = 235; tr = 236
        o = []
        o += [P('v_and_b32 v%d, 15, v%d' % (I, vLANE)), P('v_lshrrev_b32 v%d, 4, v%d' % (Gq, vLANE)),
              P('v_lshrrev_b32 v%d, 2, v%d' % (t0, I)), P('v_lshl_add_u32 v%d, v%d, 2, v%d' % (RR, Gq, t0)),
              P('v_and_b32 v%d, 3, v%d' % (I3, I))]
        o += [P('v_lshrrev_b32 v%d, 3, v%d' % (t0, vLANE)), P('v_lshrrev_b32 v%d, 1, v%d' % (t1, t0)),
              P('v_lshrrev_b32 v%d, 1, v%d' % (t2, vLANE)), P('v_xor_b32 v%d, v%d, v%d' % (t1, t1, t2)),
              P('v_and_b32 v%d, 3, v%d' % (t1, t1)), P('v_lshlrev_b32 v%d, 5, v%d' % (t1, t1)),
              P('v_and_b32 v%d, 1, v%d' % (t2, vLANE)), P('v_lshl_add_u32 v%d, v%d, 4, v%d' % (t1, t2, t1)),
              P('v_lshl_add_u32 v%d, v%d, 10, v%d' % (vDO, t0, t1))]
        if self.cfg.get('split', 0):
            o += [P('s_and_b32 s80, s%d, 4' % sCT), P('s_lshl_b32 s80, s80, 7'), P('s_xor_b32 s81, s80, 512'),
                  P('v_add_u32 v%d, s81, v%d' % (t2, vDO)), P('v_add_u32 v%d, s80, v%d' % (vDO, vDO)),
                  P('v_and_b32 v%d, 64, v%d' % (t1, t1)), P('v_cmp_ne_u32 vcc, 0, v%d' % t1),
                  P('v_cndmask_b32 v%d, v%d, v%d, vcc' % (vDO, vDO, t2))]
        for c in range(448):
            assert (c * 4682) >> 16 == c // 14
        for u in range(7):
            o += [P('v_add_u32 v%d, %d, v%d' % (t0, 64 * u, vLANE)), P('v_mul_u32_u24 v%d, 4682, v%d' % (t1, t0)),
                  P('v_lshrrev_b32 v%d, 16, v%d' % (t1, t1)), P('v_mul_u32_u24 v%d, 14, v%d' % (t2, t1)),
                  P('v_sub_u32 v%d, v%d, v%d' % (t2, t0, t2)), P('v_lshlrev_b32 v%d, 4, v%d' % (t2, t2)),
                  P('v_mul_u32_u24 v%d, 3584, v%d' % (t1, t1)), P('v_add_u32 v%d, v%d, v%d' % (vD1 + u, t1, t2))]
        o += [P('s_lshl_b32 s80, s%d, 7' % sG), P('s_lshl_b32 s81, s%d, 5' % sW), P('s_add_u32 s80, s80, s81'), P('s_add_u32 s80, s80, s%d' % sTH),
              P('s_lshl_b32 s80, s80, 10'), P('s_lshl_b32 s81, s%d, 7' % sCT), P('s_add_u32 s61, s80, s81'),
              P('v_lshlrev_b32 v%d, 11, v%d' % (t1, I)), P('v_lshl_add_u32 v%d, v%d, 3, v%d' % (tr, Gq, t1))]
        self.tag_res = [newtag('res') for _ in range(4)]
        self.res_ops = []
        for fb in range(4):
            pre = (self.delta(55) + [P('s_add_u32 s55, s55, s61')]) if fb >= 2 else []
            self.res_ops.append(pre + [VM('buffer_load_dwordx2 v[%d:%d], v%d, s[8:11], s%d offen offset:%d' % (vR + 2 * fb, vR + 2 * fb + 1, tr, 55 if fb >= 2 else 61, fb * 32), self.tag_res[fb])])
        self.tag_b1 = newtag('b1')
        self.b1_op = [P('v_lshlrev_b32 v%d, 2, v%d' % (237, vLANE)), P('s_mul_i32 s80, s%d, 224' % sM),
                      VM('buffer_load_dword v247, v237, s[40:43], s80 offen', self.tag_b1)]
        o += [P('v_and_b32 v%d, 1, v%d' % (t2, Gq)), P('v_lshlrev_b32 v%d, 5, v%d' % (t2, t2)),
              P('v_lshrrev_b32 v%d, 1, v%d' % (t3, Gq)), P('v_lshl_add_u32 v%d, v%d, 4, v%d' % (t2, t3, t2)),
              P('v_lshl_add_u32 v%d, v%d, 11, v%d' % (vOUT, I, t2))]
        o += [P('s_mov_b32 s%d, 1.0' % sONE), P('s_mov_b32 s%d, 1.0' % (sONE + 1)),
              P('s_mov_b32 s%d, %s' % (sM2L, f32(-2 * LN2))), P('s_mov_b32 s%d, %s' % (sM2L + 1, f32(-2 * LN2))),
              P('v_mov_b32 v%d, %s' % (vLN2, f32(LN2))), P('v_mov_b32 v%d, %s' % (vLN2 + 1, f32(LN2)))]
        o += [P('v_mul_u32_u24 v%d, 224, v%d' % (t0, RR)), P('v_lshl_add_u32 v%d, v%d, 3, v%d' % (vW1A, I3, t0)),
              P('v_add_u32 v%d, 0x10000, v%d' % (vW1A + 1, vW1A)), P('v_add_u32 v%d, 0x20000, v%d' % (vW1A + 2, vW1A))]
        o += [P('v_lshlrev_b32 v%d, 7, v%d' % (t0, RR)), P('v_lshl_add_u32 v%d, v%d, 3, v%d' % (t0, I3, t0)),
              P('s_and_b32 s80, s%d, 1' % sW), P('s_lshl_b32 s80, s80, 12'), P('s_add_u32 s80, s80, %d' % L_W),
              P('v_add_u32 v%d, s80, v%d' % (t0, t0)),
              P('v_lshrrev_b32 v%d, 1, v%d' % (t1, RR)), P('v_and_b32 v%d, 3, v%d' % (t1, t1))]
        for fb in range(4):
            o += [P('v_xor_b32 v%d, %d, v%d' % (t2, fb, t1)), P('v_lshl_add_u32 v%d, v%d, 5, v%d' % (vW2A + fb * 3, t2, t0)),
                  P('v_add_u32 v%d, 0x10000, v%d' % (vW2A + fb * 3 + 1, vW2A + fb * 3)),
                  P('v_add_u32 v%d, 0x20000, v%d' % (vW2A + fb * 3 + 2, vW2A + fb * 3))]
        NEG = f32(-1e30)
        o += [P('v_mov_b32 v%d, %s' % (t3, NEG))]
        for r in range(4):
            o += [P('v_lshl_add_u32 v%d, v%d, 2, %d' % (t0, Gq, r)),
                  P('v_sub_u32 v%d, v%d, v%d' % (t1, I, t0)), P('v_cmp_gt_u32 vcc, 8, v%d' % t1),
                  P('v_cndmask_b32_e64 v%d, v%d, 0, vcc' % (vCCUR + r, t3)),
                  P('v_add_u32 v%d, 9, v%d' % (t1, I)), P('v_cmp_ge_u32 vcc, v%d, v%d' % (t0, t1)),
                  P('v_cndmask_b32_e64 v%d, v%d, 0, vcc' % (vCPREV + r, t3))]
        o += [P('s_and_b32 s80, s%d, 1' % sW), P('s_or_b32 s80, s80, s%d' % sG), P('s_cmp_eq_u32 s80, 0'), P('s_cselect_b64 vcc, -1, 0')]
        for r in range(4):
            o.append(P('v_cndmask_b32 v%d, v%d, v%d, vcc' % (vCPA + r, vCPREV + r, t3)))
        o += [P('v_lshlrev_b32 v%d, 2, v%d' % (t0, Gq)), P('v_add_u32 v%d, 6, v%d' % (t1, I)),
              P('v_cmp_ge_u32 s[%d:%d], v%d, v%d' % (sUP, sUP + 1, t0, t1))]
        o += [P('v_lshlrev_b32 v%d, 5, v%d' % (t0, I)), P('v_lshl_add_u32 v%d, v%d, 3, v%d' % (t0, Gq, t0)),
              P('s_lshl_b32 s80, s%d, 11' % sW), P('s_add_u32 s80, s80, %d' % L_EX), P('v_add_u32 v%d, s80, v%d' % (vEXV, t0))]
        o += [P('s_lshr_b32 s80, s%d, 1' % sW), P('s_add_u32 s81, s80, 3'), P('s_bitcmp1_b32 s%d, 0' % sW),
              P('s_cselect_b32 s80, s81, s80'), P('s_lshl_b32 s80, s80, 10'), P('s_add_u32 s80, s80, %d' % L_EXK),
              P('v_lshlrev_b32 v%d, 3, v%d' % (t1, vLANE)), P('v_add_u32 v%d, s80, v%d' % (vEXK, t1))]
        o += [P('s_and_b32 s80, s%d, 1' % sW), P('s_lshl_b32 s80, s80, 9'),
              P('s_add_u32 s81, s80, %d' % (L_EXK + 2048)), P('v_add_u32 v%d, s81, v%d' % (t2, t1)),
              P('s_add_u32 s81, s80, %d' % (L_EX + 8192)), P('v_add_u32 v%d, s81, v%d' % (t3, t0)),
              P('s_cmp_ge_u32 s%d, 2' % sW), P('s_cselect_b64 vcc, -1, 0'),
              P('v_cndmask_b32 v%d, v%d, v%d, vcc' % (vEXH, t2, t3))]
        o += [P('v_lshlrev_b32 v%d, 5, v%d' % (t0, RR)), P('v_lshl_add_u32 v%d, v%d, 3, v%d' % (t0, I3, t0)),
              P('s_lshl_b32 s80, s%d, 11' % sW), P('s_add_u32 s80, s80, %d' % L_EX), P('v_add_u32 v%d, s80, v%d' % (vRV, t0))]
        o += [P('v_subrev_u32 v%d, 1024, v%d' % (t1, vRV)),
              P('v_add_u32 v%d, %d, v%d' % (t2, L_EX + 8192, t0)),
              P('v_subrev_u32 v%d, 256, v%d' % (t3, t2)),
              P('v_cmp_le_u32 vcc, 8, v%d' % RR), P('v_cndmask_b32 v%d, v%d, v%d, vcc' % (t3, t2, t3)),
              P('s_cmp_eq_u32 s%d, 0' % sW), P('s_cselect_b64 vcc, -1, 0'), P('v_cndmask_b32 v%d, v%d, v%d, vcc' % (t2, t2, t3)),
              P('s_bitcmp1_b32 s%d, 0' % sW), P('s_cselect_b64 vcc, -1, 0'), P('v_cndmask_b32 v%d, v%d, v%d, vcc' % (vRVP, t2, t1))]
        o += [P('v_lshlrev_b32 v%d, 3, v%d' % (t0, vLANE)),
              P('s_lshr_b32 s80, s%d, 1' % sW), P('s_bitcmp1_b32 s%d, 0' % sW), P('s_cselect_b32 s80, s80, 2'),
              P('s_lshl_b32 s80, s80, 10'), P('s_add_u32 s80, s80, %d' % L_EXK), P('v_add_u32 v%d, s80, v%d' % (t0, t0)),
              P('v_subrev_u32 v%d, 64, v%d' % (t1, t0)), P('v_cmp_le_u32 vcc, 8, v%d' % I),
              P('v_cndmask_b32 v%d, v%d, v%d, vcc' % (t1, t0, t1)),
              P('s_cmp_eq_u32 s%d, 0' % sW), P('s_cselect_b64 vcc, -1, 0'), P('v_cndmask_b32 v%d, v%d, v%d, vcc' % (vRK, t0, t1))]
        o += [P('s_lshl_b32 s80, s%d, 12' % sW), P('v_add_u32 v%d, s80, v%d' % (vEXBW, vL16)),
              P('v_xor_b32 v%d, 0x1000, v%d' % (vEXBR, vEXBW))]
        o += [P('s_lshr_b32 s80, s%d, 1' % sCT), P('s_lshl_b32 s80, s80, 8'), P('s_and_b32 s81, s%d, 1' % sCT),
              P('s_lshl_b32 s81, s81, 3'), P('s_add_u32 s80, s80, s81'),
              P('v_lshlrev_b32 v%d, 4, v%d' % (t0, I)), P('v_add_u32 v%d, s80, v%d' % (vSTO, t0))]
        o += [P('s_cmp_eq_u32 s%d, 0' % sTH), P('s_cselect_b32 s81, 8, 0'),
              P('v_subrev_u32 v%d, s81, v%d' % (t0, I)),
              P('v_lshl_add_u32 v%d, v%d, 4, v%d' % (t1, Gq, t0)), P('v_lshlrev_b32 v%d, 4, v%d' % (t1, t1)),
              P('v_lshlrev_b32 v%d, 4, v%d' % (t2, t0)), P('v_add_u32 v%d, s80, v%d' % (t2, t2)),
              P('s_cmp_eq_u32 s%d, 3' % sW), P('s_cselect_b32 s80, 0, 0x40000000'),
              P('s_cmp_eq_u32 s%d, 15' % sG), P('s_cselect_b32 s80, 0x40000000, s80'),
              P('v_mov_b32 v%d, 0x40000000' % t3), P('v_cmp_le_u32 vcc, 8, v%d' % I),
              P('v_cndmask_b32 v%d, v%d, v%d, vcc' % (t1, t3, t1)), P('v_cndmask_b32 v%d, v%d, v%d, vcc' % (t2, t3, t2)),
              P('v_or_b32 v%d, s80, v%d' % (vHOF, t1)), P('v_or_b32 v%d, s80, v%d' % (vHST, t2))]
        return o

    def wq_stash(self, va, vb):
        o = [P('s_lshl_b32 s53, s%d, 10' % sW), P('s_add_u32 s53, s53, %d' % L_W), P('v_add_u32 v%d, s53, v%d' % (va, vL16)),
             P('v_add_u32 v%d, 0x10000, v%d' % (vb, va))]
        for p in range(12):
            for c in range(2):
                a = p * 8192 + c * 4096
                o.append(LG('ds_read_b128 %s, v%d offset:%d' % (ar(aWQ + (2 * p + c) * 4, 4), va if a < 65536 else vb, a & 0xffff)))
        return o

    def wo_stash(self):
        sk = self.L('wos')
        o = [P('s_cmp_lg_u32 s%d, 0' % sRND), P('s_cbranch_scc1 %s' % sk),
             P('s_lshl_b32 s53, s%d, 10' % sW), P('s_add_u32 s53, s53, %d' % L_W), P('v_add_u32 v%d, s53, v%d' % (vTA, vL16))]
        for c in range(16):
            o.append(P('ds_read_b128 %s, v%d offset:%d' % (ar(aWO + 4 * c, 4), vTA, c * 4096)))
        o += [P('s_waitcnt lgkmcnt(0)'), LAB(sk)]
        return o

    def p1_epi_fill(self):
        out = []
        wo = [self.dma_wo_slot(SRD_WO, 8, t, kh, t) for t in range(8) for kh in range(2)]
        a0 = self.dma_w1_group(0)
        gs = self.cfg.get('fill_g', 4)
        a0groups = [a0[0:2], a0[2:4], a0[4:6], a0[6:7]]
        for c0 in range(0, 16, gs):
            sk = self.L('wr1')
            e = [P('s_cmp_lg_u32 s%d, 0' % sRND), P('s_cbranch_scc1 %s ;nopad' % sk)]
            for c in range(c0, c0 + gs):
                e += [P(x.text) for x in wo[c]]
            e += [LAB(sk)]
            out.append(e)
        res = []
        for k, e in enumerate(out):
            res.append(e)
            n_a = 4 // len(out) if len(out) <= 4 else (1 if k % (len(out) // 4) == 0 else 0)
            for q in range(n_a):
                if a0groups:
                    sk = self.L('wr2')
                    blk = [P('s_cmp_eq_u32 s%d, 0' % sRND), P('s_cbranch_scc1 %s ;nopad' % sk)]
                    for d in a0groups.pop(0):
                        blk += [P(x.text) for x in d]
                    res.append(blk + [LAB(sk)])
        out = res
        return out

    def wo_restore(self):
        sk = self.L('wor')
        o = [P('s_cmp_eq_u32 s%d, 0' % sRND), P('s_cbranch_scc1 %s' % sk)]
        for c in range(16):
            o.append(P('ds_write_b128 v%d, %s offset:%d' % (vWOA, ar(aWO + 4 * c, 4), c * 4096)))
        return o + [LAB(sk)]

    def wq_restore(self, positions, va, vb):
        o = []
        for p in positions:
            for c in range(2):
                a = p * 8192 + c * 4096
                o.append([P('s_mov_b64 exec, s[74:75]'),
                          LG('ds_write_b128 v%d, %s offset:%d' % (va if a < 65536 else vb, ar(aWQ + (2 * p + c) * 4, 4), a & 0xffff)),
                          P('s_mov_b64 exec, -1')])
        return o

    def x_ring_dma(self, j):
        if not self.cfg.get('rot', 0):
            return [self.dma(SRD_X, vDX, sXR0 + b, j * 64, sD, L_RING + (j % 5) * 8192 + b * 1024) for b in range(2)]
        out = []
        for b in range(2):
            ops = [P('s_add_u32 m0, s%d, %d' % (sD, L_RING + (j % 5) * 8192 + b * 1024)),
                   P('s_add_u32 s52, s99, %d' % j), P('s_and_b32 s52, s52, 15'), P('s_lshl_b32 s52, s52, 6'),
                   P('s_add_u32 s52, s52, s%d' % (sXR0 + b)),
                   VM('buffer_load_dwordx4 v%d, s[8:11], s52 offen lds' % vDX)]
            out.append(ops)
        return out

    def wq_rot_quarter(self, qd):
        if not self.cfg.get('rot', 0):
            return self.dma_wq_quarter(qd)
        out = []
        for a in range(2):
            for p in range(3):
                rg = 8 * qd + 4 * a
                out.append([P('s_add_u32 m0, s%d, %d' % (sW1K, L_W + p * 32768 + rg * 1024)),
                            P('s_add_u32 s52, s98, %d' % rg), P('s_and_b32 s52, s52, 31'), P('s_mul_i32 s52, s52, 49152'),
                            P('s_add_u32 s52, s52, s95'), P('s_add_u32 s52, s52, %d' % (p * 1024)),
                            VM('buffer_load_dwordx4 v%d, s[12:15], s52 offen lds' % vDQ)])
        return out

    @staticmethod
    def vmtags(ops):
        t = []
        for x in ops:
            if isinstance(x, (list, tuple)):
                t += Gen.vmtags(x)
            elif x is not None and not isinstance(x, str) and x.kind == 'vm':
                t.append(x.tag)
        return t

    def finish_stats(self, s1, s2, pair_kv, pair_q=None, scale=None):
        t = vT + 80
        o = [P('v_mul_f32 v%d, %s, v%d' % (t, f32(1 / 512), s1)),
             P('v_mul_f32 v%d, %s, v%d' % (t + 1, f32(1 / 512), s2)),
             P('v_fma_f32 v%d, -v%d, v%d, v%d' % (t + 1, t, t, t + 1)),
             P('v_max_f32 v%d, 0, v%d' % (t + 1, t + 1)),
             P('v_add_f32 v%d, %s, v%d' % (t + 1, f32(1e-5), t + 1)),
             P('v_rsq_f32 v%d, v%d' % (pair_kv, t + 1))]
        if scale is not None:
            o.append(P('v_mul_f32 v%d, %s, v%d' % (pair_kv, f32(scale), pair_kv)))
        o.append(P('v_mul_f32 v%d, -v%d, v%d' % (pair_kv + 1, t, pair_kv)))
        if pair_q is not None:
            qs = f32(0.25 * LOG2E)
            o += [P('v_mul_f32 v%d, %s, v%d' % (pair_q, qs, pair_kv)), P('v_mul_f32 v%d, %s, v%d' % (pair_q + 1, qs, pair_kv + 1))]
        return o

    def reduce_g2(self, a, b):
        t = vT + 84
        return [P('v_permlane32_swap_b32 v%d, v%d' % (a, b)), P('v_add_f32 v%d, v%d, v%d' % (a, a, b)),
                P('v_mov_b32 v%d, v%d' % (t, a)), P('v_permlane16_swap_b32 v%d, v%d' % (a, t)),
                P('v_add_f32 v%d, v%d, v%d' % (a, a, t)), P('v_mov_b32 v%d, v%d' % (b, a)),
                P('v_permlane32_swap_b32 v%d, v%d' % (a, b))]

    def stats_from_st(self, regs, pair_kv, pair_q=None, scale=None):
        return [P('v_add_f32 v%d, v%d, v%d' % (regs, regs, regs + 2)), P('v_add_f32 v%d, v%d, v%d' % (regs + 1, regs + 1, regs + 3))] + \
            self.reduce_g2(regs, regs + 1) + self.finish_stats(regs, regs + 1, pair_kv, pair_q, scale)

    def accP1(self, blk, tb):
        return vACC + (blk * 2 + tb) * 4
    ACC_H = vACC + 48
    ACC_CS1 = vACC + 52
    ACC_CS2 = vACC + 56
    PKV = [vT + 0, vT + 2]; PQ = [vT + 4, vT + 6]; PH = vT + 8

    def wq_read(self, blk, j, part, dst):
        p = blk // 2; h = blk % 2
        if p < 2:
            return LG('ds_read_b64_tr_b16 v[%d:%d], v%d offset:%d' % (dst + 2 * part, dst + 2 * part + 1, vWQA + h, p * 32768 + j * 2048 + part * 1024))
        return LG('ds_read_b64_tr_b16 v[%d:%d], v%d offset:%d' % (dst + 2 * part, dst + 2 * part + 1, vWQA + 2 + h, j * 2048 + part * 1024))

    def p1a(self):
        o = self.add
        XB = vT + 12
        S1 = vT + 36
        S2 = vT + 48
        def xb(j, b): return XB + (j & 1) * 12 + b * 4
        xr_tags = {}
        def xreads(j):
            ops = []
            for b in range(2):
                ops.append(LG('ds_read_b64 v[%d:%d], v%d offset:%d' % (xb(j, b), xb(j, b) + 1, vXA, (j % 5) * 8192 + b * 1024)))
                ops.append(LG('ds_read_b64 v[%d:%d], v%d offset:%d' % (xb(j, b) + 2, xb(j, b) + 3, vXB, (j % 5) * 8192 + b * 1024)))
            ops.append(LG('ds_read_b64 v[%d:%d], v%d offset:%d' % (xb(j, 2), xb(j, 2) + 1, vHXA, j * 1024)))
            ops.append(LG('ds_read_b64 v[%d:%d], v%d offset:%d' % (xb(j, 2) + 2, xb(j, 2) + 3, vHXB, j * 1024)))
            xr_tags[j] = [x.tag for x in ops]
            return ops
        groups = []
        n = 0
        extras = []
        mfidx = 0
        first_idx = {}
        for j in range(16):
            first_idx[j] = mfidx
            z = (j == 0)
            for blk in range(8):
                dst = self.afrag(n); n += 1
                g = dict(pre=[], reads=[], mf=[])
                if blk == 0:
                    if j % 4 == 0:
                        q = j // 4
                        wt = self.vmtags(self.wq_q[q]) + self.vmtags(self.halo_dma[q])
                        g['pre'] += [W(wt), P('s_barrier')] if not (self.cfg.get('x_nobar') and q > 0) else []
                    if not self.cfg.get('x_nowait'):
                        g['pre'] += [W(self.vmtags(self.xslot[j]))]
                    g['reads'] += xreads(j)
                if blk < 6:
                    g['reads'] += [self.wq_read(blk, j, 0, dst), self.wq_read(blk, j, 1, dst)]
                    for tb in range(2):
                        acc = self.accP1(blk, tb)
                        c = '0' if z else vr(acc, 4)
                        g['mf'].append(('v_mfma_f32_16x16x32_bf16 %s, %s, %s, %s' % (vr(acc, 4), vr(dst, 4), vr(xb(j, tb), 4), c), []))
                    if blk in (1, 3, 5) and not self.cfg.get('x_nostat'):
                        b = blk // 2
                        for (accb, A) in ((S1 + b * 4, vONES), (S2 + b * 4, xb(j, b))):
                            c = '0' if z else vr(accb, 4)
                            g['mf'].append(('v_mfma_f32_16x16x32_bf16 %s, %s, %s, %s' % (vr(accb, 4), vr(A, 4), vr(xb(j, b), 4), c), []))
                else:
                    base = vE1 if blk == 6 else vE2
                    g['reads'] += [LG('ds_read_b64_tr_b16 v[%d:%d], v%d offset:%d' % (dst + 2 * part, dst + 2 * part + 1, base, j * 2048 + part * 1024)) for part in range(2)]
                    if blk == 6:
                        c = '0' if z else vr(self.ACC_H, 4)
                        g['mf'].append(('v_mfma_f32_16x16x32_bf16 %s, %s, %s, %s' % (vr(self.ACC_H, 4), vr(dst, 4), vr(xb(j, 2), 4), c), []))
                        c = '0' if z else vr(self.ACC_CS1, 4)
                        g['mf'].append(('v_mfma_f32_16x16x32_bf16 %s, %s, %s, %s' % (vr(self.ACC_CS1, 4), vr(dst, 4), vr(vONES, 4), c), []))
                    else:
                        c = '0' if z else vr(self.ACC_CS2, 4)
                        g['mf'].append(('v_mfma_f32_16x16x32_bf16 %s, %s, %s, %s' % (vr(self.ACC_CS2, 4), vr(dst, 4), vr(vONES, 4), c), []))
                mfidx += len(g['mf'])
                groups.append(g)
        def at(k, i):
            return first_idx[k] + i
        seq = []
        seq += [(at(0, 0), self.xslot[2][0]), (at(0, 2), self.xslot[2][1])]
        q1 = self.wq_q[1]
        seq += [(at(0, 5), q1[0]), (at(0, 8), q1[1]), (at(0, 11), q1[2]), (at(0, 14), self.xslot[3][0]), (at(0, 16), self.xslot[3][1]),
                (at(0, 19), self.tq(2)), (at(1, 1), q1[3]), (at(1, 4), q1[4]), (at(1, 7), q1[5]), (at(1, 10), self.halo_dma[1]),
                (at(1, 13), self.xslot[4][0]), (at(1, 15), self.xslot[4][1]), (at(1, 18), self.tq(3))]
        for j in range(11):
            for b, d in enumerate(self.xslot[j + 5]):
                seq.append((max(at(j, 2 + 2 * b), at(2, 0) + 2 * b + (j * 4 if j < 2 else 0)), d))
        if self.tq3:
            seq.append((at(self.cfg.get('tq3k', 4), 12), self.tq3))
        q2k = self.cfg.get('q2k', 3); q3k = self.cfg.get('q3k', 7)
        for k, d in enumerate(self.wq_q[2] + [self.halo_dma[2]]):
            seq.append((at(q2k + k // 2, 8 + 5 * (k % 2)), d))
        for k, d in enumerate(self.wq_q[3] + [self.halo_dma[3]]):
            seq.append((at(q3k + k // 2, 8 + 5 * (k % 2)), d))
        extras += seq
        reg = [W(self.tag_init),
               P('s_mul_i32 s53, s%d, s%d' % (sXCC, sXCC)), P('s_lshl_b32 s53, s53, 13'), P('s_lshl_b32 s54, s%d, 5' % sXCC),
               P('s_add_u32 s53, s53, s54'), P('s_add_u32 s53, s53, 1'), P('v_mov_b32 v%d, s53' % vTA),
               P('s_lshr_b32 s53, s%d, 1' % sG), P('s_lshl_b32 s53, s53, 5'), P('s_and_b32 s54, s%d, 1' % sG),
               P('s_lshl_b32 s54, s54, 2'), P('s_add_u32 s54, s53, s54'), P('v_mov_b32 v%d, s54' % vTB),
               P('s_cmp_eq_u32 s%d, 0' % sW), P('s_cselect_b32 s53, 0, 0x40000000'),
               P('v_or_b32 v%d, s53, v%d' % (vTB, vTB)),
               P('s_mov_b64 exec, 1'),
               VM('buffer_atomic_add v%d, v%d, s[36:39], 0 offen' % (vTA, vTB)),
               P('s_mov_b64 exec, -1')]
        extras.append((first_idx[4] + 3, reg))
        groups[8 * 4]['pre'] = [W(self.tag_init)] + groups[8 * 4]['pre']
        if self.cfg.get('t_mall', 0) >= 4:
            extras.append((first_idx[self.cfg.get('t_mall')] + 4, self.touch_mall()))
        for k, x in enumerate(self.res_ops):
            extras.append((first_idx[self.cfg.get('res_k', 9)] + 9 + 3 * k, x))
        extras.append((first_idx[self.cfg.get('res_k', 9) + 1] + 9, self.b1_op))
        extras.append((first_idx[8] + 9, self.mode_load()))
        extras.append((first_idx[11] + 1, self.mode_check()))
        tset = self.touch_set(self.cfg.get('t_p1a', 'of,xf'))
        k0 = self.cfg.get('t_p1a_k', 11)
        post = []
        for k, t in enumerate(tset):
            if k0 + k < 16:
                extras.append((first_idx[k0 + k] + 5, t))
            else:
                post.append(t)
        extras += self.sched_touches('p1a', first_idx)
        if self.cfg.get('code_staged', 1) and self.cfg.get('t_code', 1):
            extras.append((first_idx[self.cfg.get('code_k1', 10)] + 12, self.touch_code('L_C2', 'L_C4', 50)))
        if self.cfg.get('pts') == 2:
            for k, slot in ((1, 14), (4, 15), (8, 29), (12, 30)):
                extras.append((first_idx[k] - 1, self.ts(slot)))
        if self.cfg.get('pts') == 3:
            for k in range(16):
                extras.append((first_idx[k], self.ts(32 + k)))
        o(self.gemm_loop(groups, self.cfg.get('la_p1a', 3), extras))
        for t in post:
            o(t)
        if self.cfg.get('stash', 1):
            st = self.wq_stash(250, 251)
            o(st)
        t0 = 252; t1 = 253
        o(W(self.tag_b1), P('v_lshlrev_b32 v%d, 16, v247' % t0), P('v_and_b32 v%d, 0xffff0000, v247' % t1),
          P('v_mul_f32 v%d, %s, v%d' % (t0, f32(LOG2E), t0)), P('v_mul_f32 v%d, %s, v%d' % (t1, f32(LOG2E), t1)),
          P('v_lshlrev_b32 v%d, 3, v%d' % (vTA, vLANE)),
          P('s_mov_b32 exec_hi, 0x00ffffff'),
          LG('ds_write_b64 v%d, v[%d:%d] offset:%d' % (vTA, t0, t1, L_BB1)),
          P('s_mov_b64 exec, -1'))
        o(P('s_add_u32 s53, s%d, 2' % sW), P('s_lshl_b32 s53, s53, 6'), P('v_add_u32 v%d, s53, v%d' % (vTA, vCS)),
          P('s_and_b32 s53, s%d, 1' % sW), P('s_lshl_b32 s53, s53, 6'), P('v_add_u32 v%d, s53, v%d' % (vTB, vCS)),
          P('s_mov_b32 s52, 0x00010001'), P('s_mov_b32 s53, 0x00010001'), P('s_mov_b64 exec, s[52:53]'),
          LG('ds_write_b128 v%d, %s offset:%d' % (vTA, vr(self.ACC_CS1, 4), L_CSQ)),
          LG('ds_write_b128 v%d, %s offset:%d' % (vTB, vr(self.ACC_CS2, 4), L_CSQ)),
          P('s_mov_b64 exec, -1'))
        for b in range(3):
            s2 = S2 + b * 4
            o(P('v_cndmask_b32_e64 v%d, v%d, v%d, s[%d:%d]' % (s2, s2, s2 + 1, sMA, sMA + 1)),
              P('v_cndmask_b32_e64 v%d, v%d, v%d, s[%d:%d]' % (s2, s2, s2 + 2, sMB, sMB + 1)),
              P('v_cndmask_b32_e64 v%d, v%d, v%d, s[%d:%d]' % (s2, s2, s2 + 3, sMC, sMC + 1)),
              P('v_cndmask_b32_e64 v%d, 0, v%d, s[%d:%d]' % (s2, s2, sMD, sMD + 1)))
            t = s2 + 1
            o(P('v_mov_b32 v%d, v%d' % (t, s2)), P('v_permlane32_swap_b32 v%d, v%d' % (s2, t)),
              P('v_add_f32 v%d, v%d, v%d' % (s2, s2, t)), P('v_mov_b32 v%d, v%d' % (t, s2)),
              P('v_permlane16_swap_b32 v%d, v%d' % (s2, t)), P('v_add_f32 v%d, v%d, v%d' % (s2, s2, t)))
            if b < 2:
                o(self.finish_stats(S1 + b * 4, s2, self.PKV[b], self.PQ[b]))
            else:
                o(self.finish_stats(S1 + b * 4, s2, self.PH))
        o(P('s_mov_b32 s72, s50'), P('s_mov_b32 s73, s51'))
        o(WALL(False, True), P('s_barrier'))

    def p1b(self):
        o = self.add
        cfg = self.cfg
        for b in range(2):
            o(P('s_lshl_b32 s53, s%d, 1' % sW), P('s_add_u32 s53, s53, %d' % b), P('s_lshl_b32 s53, s53, 14'),
              P('s_add_u32 s%d, s53, s%d' % (sB0 + b, sX2)))
        xl = self.x_loads(16, depth=XD)
        pro = cfg.get('x_pro', 4)
        for j in range(pro):
            o(xl[j])
        stt = []
        STR = vT + 12
        for b in range(2):
            t = newtag('st'); stt.append(t)
            o(P('s_lshl_b32 s54, s%d, 11' % sW), P('s_add_u32 s53, s54, s%d' % sS2),
              P('s_add_u32 s53, s53, %d' % (b * 1024)),
              VM('buffer_load_dwordx4 %s, v%d, s[28:31], s53 offen sc1' % (vr(STR + 4 * b, 4), vL16), t))
        groups = []; n = 0; first_idx = {}; mfidx = 0
        for j in range(16):
            first_idx[j] = mfidx
            for blk in range(6):
                dst = self.afrag(n); n += 1
                g = dict(pre=[], reads=[self.wq_read(blk, j, 0, dst), self.wq_read(blk, j, 1, dst)], mf=[])
                for tb in range(2):
                    acc = self.accP1(blk, tb)
                    c = '0' if j == 0 else vr(acc, 4)
                    wt = self.vmtags(xl[j][tb]) if blk == 0 else []
                    g['mf'].append(('v_mfma_f32_16x16x32_bf16 %s, %s, %s, %s' % (vr(acc, 4), vr(dst, 4), ar(((j % XD) * 2 + tb) * 4, 4), c), wt))
                mfidx += 2
                groups.append(g)
        extras = self.x_sched(xl, 16, pro, first_idx, 12, XD, cfg.get('x_rate', 4))
        lastx = extras[-1][0]
        hp = [W(self.halo_store_tags), P('v_mov_b32 v%d, 1' % vTA),
              P('s_cmp_eq_u32 s%d, 3' % sW), P('s_cselect_b32 s53, 0, 0x40000000'),
              P('s_cmp_eq_u32 s%d, 15' % sG), P('s_cselect_b32 s53, 0x40000000, s53'),
              P('s_add_u32 s54, s%d, 1' % sG), P('s_lshr_b32 s52, s54, 1'), P('s_lshl_b32 s52, s52, 5'),
              P('s_and_b32 s54, s54, 1'), P('s_lshl_b32 s54, s54, 2'), P('s_add_u32 s52, s52, s54'),
              P('s_add_u32 s52, s52, 8'), P('s_or_b32 s53, s53, s52'),
              P('v_mov_b32 v%d, s53' % vTB),
              P('s_mov_b64 exec, 1'),
              VM('buffer_atomic_add v%d, v%d, s[36:39], 0 offen' % (vTA, vTB)),
              P('s_mov_b64 exec, -1')]
        extras.append((first_idx[0] + 6, hp))
        st_ops = [W(stt)]
        for b in range(2):
            st_ops += self.stats_from_st(STR + 4 * b, self.PKV[b], self.PQ[b])
        extras += self.spread(st_ops, first_idx[2] + 2, 1)
        HS = vT + 56
        HC = vT + 60; HZ = vT + 61
        spin = self.L('hsp'); hok = self.L('hok')
        tagc = newtag('hc'); htags = [newtag('h') for _ in range(17)]
        hk0 = cfg.get('halo_k0', 7); hk1 = cfg.get('halo_k', 10)
        h0 = [P('v_mov_b32 v%d, 0' % HZ),
              P('s_lshr_b32 s54, s%d, 1' % sG), P('s_lshl_b32 s54, s54, 5'), P('s_and_b32 s53, s%d, 1' % sG),
              P('s_lshl_b32 s53, s53, 2'), P('s_add_u32 s54, s54, s53'), P('s_add_u32 s%d, s54, 8' % sA),
              VM('buffer_load_dword v%d, v%d, s[36:39], s%d offen sc1' % (HC, HZ, sA), tagc)]
        extras.append((max(first_idx[hk0], lastx + 1), h0))
        hl = [W(tagc), P('s_mov_b32 s%d, 0' % sTMO),
              P('s_cmp_eq_u32 s%d, 0' % sG), P('s_cbranch_scc1 %s' % hok),
              LAB(spin),
              P('v_cmp_ne_u32 vcc, 16, v%d' % HC),
              P('s_cbranch_vccz %s' % hok),
              P('buffer_load_dword v%d, v%d, s[36:39], s%d offen sc1' % (HC, HZ, sA)),
              P('s_add_u32 s%d, s%d, 1' % (sTMO, sTMO)),
              P('s_waitcnt vmcnt(0)'),
              P('s_cmp_lt_u32 s%d, 0x100000' % sTMO), P('s_cbranch_scc1 %s' % spin),
              P('s_endpgm'),
              LAB(hok),
              P('s_cmp_eq_u32 s%d, 0' % sG), P('s_cselect_b32 s53, 0x40000000, 0'),
              P('v_or_b32 v%d, s53, v%d' % (HZ, vL16)),
              P('s_lshl_b32 s53, s%d, 10' % sG), P('s_add_u32 s53, s53, %d' % WS_HST),
              VM('buffer_load_dwordx4 %s, v%d, s[28:31], s53 offen sc1' % (vr(HS, 4), HZ), htags[16]),
              P('s_lshl_b32 s53, s%d, 14' % sG), P('s_lshl_b32 s54, s%d, 12' % sW), P('s_add_u32 s53, s53, s54'),
              P('s_add_u32 s%d, s53, %d' % (sA, WS_HF))]
        HB = vT + 40
        for j in range(4):
            hl.append(VM('buffer_load_dwordx4 %s, v%d, s[28:31], s%d offen offset:%d sc1' % (vr(HB + 4 * j, 4), HZ, sA, j * 1024), htags[j]))
        extras.append((max(first_idx[hk1], lastx + 2), hl))
        for k, d in enumerate(self.dma_w1_group(1)):
            extras.append((max(first_idx[hk1], lastx + 2) + 2 + cfg.get('a0_step', 3) * k, d))
        hw = [W(htags[:4]), P('s_lshl_b32 s53, s%d, 12' % sW), P('s_add_u32 s53, s53, %d' % L_HS), P('v_add_u32 v%d, s53, v%d' % (HC, vL16))]
        for j in range(4):
            hw.append(LG('ds_write_b128 v%d, %s offset:%d' % (HC, vr(HB + 4 * j, 4), j * 1024)))
        extras += self.spread(hw, first_idx[15] + 1, 2)
        for k, t in enumerate(self.touch_set(cfg.get('t_p1b', ''))):
            extras.append((first_idx[hk1] + 34 + 6 * k, t))
        extras += self.spread([W(htags[16])] + self.stats_from_st(HS, self.PH), first_idx[15] - 14, 1)
        extras += self.sched_touches('p1b', first_idx)
        o(self.gemm_loop(groups, cfg.get('la', 3), extras))
        o(WALL(False, True), P('s_barrier'), P('v_add_u32 v%d, %d, v%d' % (HC, L_HS, vL16)))
        groups = []
        for j in range(16):
            dst = self.afrag(j); xb = vT + 12 + (j % 6) * 4
            g = dict(pre=[], reads=[LG('ds_read_b128 %s, v%d offset:%d' % (vr(xb, 4), HC, j * 1024))] +
                     [LG('ds_read_b64_tr_b16 v[%d:%d], v%d offset:%d' % (dst + 2 * part, dst + 2 * part + 1, vE1, j * 2048 + part * 1024)) for part in range(2)], mf=[])
            c = '0' if j == 0 else vr(self.ACC_H, 4)
            g['mf'].append(('v_mfma_f32_16x16x32_bf16 %s, %s, %s, %s' % (vr(self.ACC_H, 4), vr(dst, 4), vr(xb, 4), c), []))
            groups.append(g)
        o(self.gemm_loop(groups, 4, []))
        o(P('s_barrier'))

    def x_sched(self, xl, nk, pro, first_idx, nmf, depth, rate):
        extras = []; k = 0; last = -1
        for j in range(pro, nk):
            for b in range(2):
                if j < depth:
                    at = first_idx[k // rate] + 1 + (nmf // rate) * (k % rate); k += 1
                else:
                    at = first_idx[j - depth] + nmf - 1 + b
                at = max(at, last + 1)
                extras.append((at, xl[j][b])); last = at
        return extras

    def x_loads(self, nk, ring=None, depth=None):
        xl = []
        for j in range(nk):
            row = []
            for b in range(2):
                slot = j if depth is None else j % depth
                ops = []
                if j % 4 == 0:
                    ops.append(P('s_add_u32 s%d, s%d, %d' % (sXL0 + b, sB0 + b, j * 1024)))
                if self.cfg.get('noxl'):
                    ops.append(P('s_nop 0'))
                else:
                    ops.append(VM('buffer_load_dwordx4 %s, v%d, s[28:31], s%d offen offset:%d%s' % (ar((slot * 2 + b) * 4, 4), vL16, sXL0 + b, (j % 4) * 1024, '' if self.cfg.get('plainld') else ' sc1')))
                row.append(ops)
            xl.append(row)
        return xl

    def dual_store(self, stores):
        pure = self.L('stp'); done = self.L('std')
        o = [P('s_cmp_eq_u32 s%d, 0' % sMODE), P('s_cbranch_scc1 %s' % pure)]
        o += [P(s + ' sc1') for s in stores]
        o += [P('s_branch %s' % done), LAB(pure)]
        o += [P(s) for s in stores]
        o += [LAB(done)]
        cnt = [VM('; counted store') for _ in stores]
        return o + cnt, [c.tag for c in cnt]

    def p1_epi(self, dmas):
        o = []
        CS = vT + 12
        CSH = vT + 36
        Q = vT + 40
        K = vT + 48
        V = vT + 56
        HP = vT + 64
        TT = vT + 66
        cst = []
        for b in range(6):
            x = LG('ds_read_b128 %s, v%d offset:%d' % (vr(CS + 4 * b, 4), vCS, L_CSQ + b * 64)); cst.append(x.tag); o.append(x)
        o += [P('s_add_u32 s53, s%d, 2' % sW), P('s_lshl_b32 s53, s53, 6'), P('v_add_u32 v%d, s53, v%d' % (TT, vCS))]
        x = LG('ds_read_b128 %s, v%d offset:%d' % (vr(CSH, 4), TT, L_CSQ)); csh = x.tag; o.append(x)

        def ln(acc, cs, pair, dst):
            r = []
            for hh in range(2):
                t = TT + 2 * hh
                r.append(P('v_pk_mul_f32 %s, %s, %s op_sel:[0,1] op_sel_hi:[1,1]' % (vr(t, 2), vr(cs + 2 * hh, 2), vr(pair, 2))))
            for hh in range(2):
                t = TT + 2 * hh
                r.append(P('v_pk_fma_f32 %s, %s, %s, %s op_sel_hi:[1,0,1]' % (vr(t, 2), vr(acc + 2 * hh, 2), vr(pair, 2), vr(t, 2))))
            for hh in range(2):
                t = TT + 2 * hh
                r.append(P('v_cvt_pk_bf16_f32 v%d, v%d, v%d' % (dst + hh, t, t + 1)))
            return r
        wtags = []
        for blk in (4, 5, 2, 3, 0, 1):
            o.append(W(cst[blk]))
            for tb in range(2):
                h = blk % 2
                dst = (Q, K, V)[blk // 2] + (tb * 2 + h) * 2
                pair = self.PQ[tb] if blk < 2 else self.PKV[tb]
                o += ln(self.accP1(blk, tb), CS + 4 * blk, pair, dst)
                if blk >= 4:
                    x = LG('ds_write_b64 v%d, %s offset:%d' % (vEXV, vr(dst, 2), tb * 1024 + h * 512)); o.append(x)
                elif blk >= 2 and tb == 1:
                    x = LG('ds_write_b64 v%d, %s offset:%d' % (vEXK, vr(dst, 2), h * 512)); o.append(x)
            if blk == 3:
                o.append(W(csh))
                o += ln(self.ACC_H, CSH, self.PH, HP)
                o.append(LG('ds_write_b64 v%d, %s' % (vEXH, vr(HP, 2))))
        o += [WALL(False, True), P('s_barrier')]
        KP = vT + 70
        VV = vT + 12
        SC = vACC
        SP = vACC + 16
        PB = vACC + 32
        LL = vT + 24
        OO = vACC + 48
        MX = vT + 74
        rk = []; rv = []
        for h in range(2):
            x = LG('ds_read_b64 %s, v%d offset:%d' % (vr(KP + 2 * h, 2), vRK, h * 512)); rk.append(x.tag); o.append(x)
        for h in range(2):
            x = LG('ds_read_b64_tr_b16 %s, v%d offset:%d' % (vr(VV + 6 * h, 2), vRVP, h * 512)); rv.append(x.tag); o.append(x)
            for tb in range(2):
                x = LG('ds_read_b64_tr_b16 %s, v%d offset:%d' % (vr(VV + 6 * h + 2 + 2 * tb, 2), vRV, tb * 1024 + h * 512)); rv.append(x.tag); o.append(x)
        insts = [(tb, h) for tb in range(2) for h in range(2)]
        for n, (tb, h) in enumerate(insts):
            q = Q + (tb * 2 + h) * 2
            o.append(P('v_mfma_f32_16x16x16_bf16 %s, %s, %s, %s' % (vr(SC + 4 * n, 4), vr(K + (tb * 2 + h) * 2, 2), vr(q, 2), vr(vCCUR, 4))))
        for n, (tb, h) in enumerate(insts):
            q = Q + (tb * 2 + h) * 2
            if tb == 0:
                o.append(W(rk[h]))
                o.append(P('v_mfma_f32_16x16x16_bf16 %s, %s, %s, %s' % (vr(SP + 4 * n, 4), vr(KP + 2 * h, 2), vr(q, 2), vr(vCPA, 4))))
            else:
                o.append(P('v_mfma_f32_16x16x16_bf16 %s, %s, %s, %s' % (vr(SP + 4 * n, 4), vr(K + h * 2, 2), vr(q, 2), vr(vCPREV, 4))))
        for n in range(4):
            for r in range(4):
                o.append(P('v_max_f32 v%d, v%d, v%d' % (SC + 4 * n + r, SC + 4 * n + r, SP + 4 * n + r)))
        for n in range(4):
            o.append(P('v_max3_f32 v%d, v%d, v%d, v%d' % (MX + n, SC + 4 * n, SC + 4 * n + 1, SC + 4 * n + 2)))
        for n in range(4):
            o.append(P('v_max_f32 v%d, v%d, v%d' % (MX + n, MX + n, SC + 4 * n + 3)))
        a, b, c, d = MX, MX + 1, MX + 2, MX + 3
        o += [P('v_permlane32_swap_b32 v%d, v%d' % (a, b)), P('v_permlane32_swap_b32 v%d, v%d' % (c, d)),
              P('v_max_f32 v%d, v%d, v%d' % (a, a, b)), P('v_max_f32 v%d, v%d, v%d' % (c, c, d)),
              P('v_permlane16_swap_b32 v%d, v%d' % (a, c)), P('v_max_f32 v%d, v%d, v%d' % (a, a, c)),
              P('v_mov_b32 v%d, v%d' % (c, a)), P('v_permlane16_swap_b32 v%d, v%d' % (a, c)),
              P('v_mov_b32 v%d, v%d' % (b, a)), P('v_mov_b32 v%d, v%d' % (d, c)),
              P('v_permlane32_swap_b32 v%d, v%d' % (a, b)), P('v_permlane32_swap_b32 v%d, v%d' % (c, d))]
        for n in range(4):
            for hh in range(2):
                o.append(P('v_sub_f32 v%d, v%d, v%d' % (SC + 4 * n + 2 * hh, SC + 4 * n + 2 * hh, MX + n)))
                o.append(P('v_sub_f32 v%d, v%d, v%d' % (SC + 4 * n + 2 * hh + 1, SC + 4 * n + 2 * hh + 1, MX + n)))
        for n in range(4):
            for r in range(4):
                o.append(P('v_exp_f32 v%d, v%d' % (SC + 4 * n + r, SC + 4 * n + r)))
        for n in range(4):
            for hh in range(2):
                o.append(P('v_cvt_pk_bf16_f32 v%d, v%d, v%d' % (SP + 4 * n + hh, SC + 4 * n + 2 * hh, SC + 4 * n + 2 * hh + 1)))
        for n in range(4):
            for hh in range(2):
                o.append(P('v_cndmask_b32_e64 v%d, 0, v%d, s[%d:%d]' % (PB + 4 * n + hh, SP + 4 * n + hh, sUP, sUP + 1)))
                o.append(P('v_cndmask_b32_e64 v%d, v%d, 0, s[%d:%d]' % (PB + 4 * n + 2 + hh, SP + 4 * n + hh, sUP, sUP + 1)))
        o.append(W(rv))
        o.append(P('s_barrier'))
        for n, (tb, h) in enumerate(insts):
            o.append(P('v_mfma_f32_16x16x32_bf16 %s, %s, %s, 0' % (vr(LL + 4 * n, 4), vr(vONES, 4), vr(PB + 4 * n, 4))))
            o.append(P('v_mfma_f32_16x16x32_bf16 %s, %s, %s, 0' % (vr(OO + 4 * n, 4), vr(VV + 6 * h + 2 * tb, 4), vr(PB + 4 * n, 4))))
        for n in range(4):
            o.append(P('v_rcp_f32 v%d, v%d' % (LL + 4 * n, LL + 4 * n)))
        OUTR = vT + 40
        for n, (tb, h) in enumerate(insts):
            for hh in range(2):
                o.append(P('v_pk_mul_f32 %s, %s, %s op_sel_hi:[1,0]' % (vr(OO + 4 * n + 2 * hh, 2), vr(OO + 4 * n + 2 * hh, 2), vr(LL + 4 * n, 2))))
        for n, (tb, h) in enumerate(insts):
            for hh in range(2):
                o.append(P('v_cvt_pk_bf16_f32 v%d, v%d, v%d' % (OUTR + (tb * 2 + h) * 2 + hh, OO + 4 * n + 2 * hh, OO + 4 * n + 2 * hh + 1)))
        if dmas:
            k = min(i for i, x in enumerate(o) if x.text == 's_barrier') + 1
            body = interleave(o[k:], dmas, start=0, every=max(1, (len(o) - k) // (len(dmas) + 1)))
            o = o[:k] + body
        o += [P('s_lshl_b32 s54, s%d, 15' % sW), P('s_add_u32 s53, s54, s%d' % sOF), P('s_lshl_b32 s54, s%d, 10' % sM),
              P('s_add_u32 s53, s53, s54'), P('s_add_u32 s54, s53, 16384')]
        return o, ['buffer_store_dwordx4 %s, v%d, s[28:31], s%d offen' % (vr(OUTR + 4 * tb, 4), vL16, 53 + tb) for tb in range(2)]

    def mode_load(self):
        self.tag_mode = newtag('mode')
        return [P('s_lshr_b32 s53, s%d, 1' % sG), P('s_lshl_b32 s53, s53, 5'), P('s_and_b32 s54, s%d, 1' % sG),
                P('s_lshl_b32 s54, s54, 2'), P('s_add_u32 s%d, s53, s54' % sA),
                P('v_mov_b32 v%d, 0' % vTB),
                VM('buffer_load_dword v%d, v%d, s[36:39], s%d offen sc1' % (vTA, vTB, sA), self.tag_mode)]

    def mode_check(self):
        spin = self.L('rsp'); ok = self.L('rok')
        return [W(self.tag_mode), P('s_mov_b32 s%d, 0' % sTMO),
                P('v_readfirstlane_b32 s54, v%d' % vTA),
                P('s_nop 4'),
                P('s_and_b32 s52, s54, 31'), P('s_cmp_eq_u32 s52, 16'), P('s_cbranch_scc1 %s' % ok),
                LAB(spin),
                P('buffer_load_dword v%d, v%d, s[36:39], s%d offen sc1' % (vTA, vTB, sA)),
                P('s_add_u32 s%d, s%d, 1' % (sTMO, sTMO)),
                P('s_waitcnt vmcnt(0)'),
                P('v_readfirstlane_b32 s54, v%d' % vTA),
                P('s_nop 4'),
                P('s_and_b32 s52, s54, 31'), P('s_cmp_eq_u32 s52, 16'), P('s_cbranch_scc1 %s' % ok),
                P('s_cmp_lt_u32 s%d, 0x100000' % sTMO), P('s_cbranch_scc1 %s' % spin),
                P('s_endpgm'),
                LAB(ok),
                P('s_lshr_b32 s52, s54, 5'), P('s_and_b32 s52, s52, 255'), P('s_mul_i32 s52, s52, s52'),
                P('s_lshr_b32 s54, s54, 13'), P('s_lshl_b32 s54, s54, 4'),
                P('s_cmp_lg_u32 s52, s54'), P('s_cselect_b32 s%d, 1, 0' % sMODE)] + \
            ([P('s_mov_b32 s%d, 1' % sMODE)] if self.cfg.get('force_mixed') else []) + self.set_bases()

    def set_bases(self):
        o = [P('s_mul_i32 s52, s%d, %d' % (sG, ACT_G)), P('s_add_u32 s52, s52, %d' % WS_ACT),
             P('s_mul_i32 s53, s%d, %d' % (sG, 8 * 57344)), P('s_lshl_b32 s54, s%d, 13' % sG),
             P('s_cmp_eq_u32 s%d, %d' % (sMODE, 7 if self.cfg.get('noalias') else 0))]
        def sel(dst, pure_off, mixed_base_s, mixed_imm):
            return [P('s_add_u32 s55, s52, %d' % pure_off), P('s_add_u32 s%d, s%d, %d' % (dst, mixed_base_s, mixed_imm)),
                    P('s_cmp_eq_u32 s%d, %d' % (sMODE, 7 if self.cfg.get('noalias') else 0)),
                    P('s_cselect_b32 s%d, s55, s%d' % (dst, dst))]
        o += sel(sOF, 0, sGBASE, WS_OF) + sel(sAF, 0, 53, WS_AF) + sel(sX1, 458752, sGBASE, WS_XF) + \
            sel(sX2, 458752, sGBASE, WS_XF + XF_K) + sel(sS1, 589824, 54, WS_ST) + sel(sS2, 589824, 54, WS_ST + ST_K)
        for d, v in ((dOF, OF_R), (dAF, AF_R), (dX1, 2 * XF_K), (dS1, 2 * ST_K)):
            o.append(P('s_cselect_b32 s%d, 0, %d' % (d, v)))
        return o

    def gemmB(self, nk, srdW, src_base, nblk, depth, resident, refill_tags_out, exb, pre_extras=None, posf=None, tail=None, post=None, inloop=None, tail_lds=False):
        o = []
        o += [P('s_and_b32 s52, s%d, 1' % sW), P('s_mul_i32 s52, s52, %d' % (nk * 1024)),
              P('s_add_u32 s52, s52, s%d' % src_base),
              P('s_mul_i32 s53, s%d, %d' % (sTB, nblk * 1024)), P('s_add_u32 s%d, s52, s53' % sB0),
              P('s_xor_b32 s53, s%d, 1' % sTB), P('s_mul_i32 s53, s53, %d' % (nblk * 1024)), P('s_add_u32 s%d, s52, s53' % sB1)]
        xl = self.x_loads(nk, depth=depth)
        pro = min(nk, self.cfg.get('b_pro', 4))
        for t in range(pro):
            o += xl[t][0] + xl[t][1]
        if nk == 8:
            o += self.wo_stash()
        groups = []; n = 0; first_idx = {}; mfidx = 0
        acc = lambda s, fb: vACC + (s * 4 + fb) * 4
        refills = []
        if nk > resident:
            for t in range(resident, nk):
                for kh in range(2):
                    refills.append(self.dma_wo_slot(srdW, nk, t, kh, posf(t)))
        for t in range(nk):
            first_idx[t] = mfidx
            pos = posf(t) if posf else t
            for fb in range(4):
                dst = self.afrag(n); n += 1
                g = dict(pre=[], reads=[], mf=[])
                jit = self.cfg.get('jit', 0)
                if refills and jit and fb == 0 and t >= resident and (t - resident) % jit == 0:
                    lo = 2 * (t - resident)
                    g['pre'] += [W(self.vmtags(refills[lo:lo + 2 * jit])), P('s_barrier')]
                elif not jit and fb == 0 and t == resident:
                    g['pre'] += [W(self.vmtags(refills)), P('s_barrier')]
                for part in range(2):
                    a = pos * 8192 + part * 2048
                    win = a >> 16
                    g['reads'].append(LG('ds_read_b64_tr_b16 v[%d:%d], v%d offset:%d' % (dst + 2 * part, dst + 2 * part + 1, vW2A + fb * 3 + win, a & 0xffff)))
                for s in range(2):
                    c = '0' if t == 0 else vr(acc(s, fb), 4)
                    wt = self.vmtags(xl[t][s]) if fb == 0 else []
                    g['mf'].append(('v_mfma_f32_16x16x32_bf16 %s, %s, %s, %s' % (vr(acc(s, fb), 4), vr(dst, 4), ar(((t % depth) * 2 + s) * 4, 4), c), wt))
                mfidx += 2
                groups.append(g)
        extras = []
        last = -1
        for t in range(pro, nk):
            if t < depth:
                at = first_idx[min(nk - 1, (t - pro) // 2)] + 1 + 4 * ((t - pro) % 2)
            else:
                at = first_idx[t - depth] + 7
            at = max(at, last + 1)
            extras.append((at, xl[t][0])); extras.append((at + 1, xl[t][1]))
            last = at + 1
        if inloop:
            for k, d in enumerate(inloop):
                extras.append((last + 2 + self.cfg.get('a2_step', 5) * k, d))
        if refills:
            nfree = nk - resident
            bar_at = first_idx[nfree] - 1
            extras.append((bar_at, [P('s_barrier')]))
            rp = self.cfg.get('ref_per', 3)
            for k, d in enumerate(refills):
                extras.append((first_idx[nfree + self.cfg.get('ref_k0', 0) + k // rp] + 1 + 2 * (k % rp), d))
        if tail and tail_lds:
            extras.append((first_idx[resident] - 1, [P('s_barrier')]))
            nt_ = nk - resident
            for k, d in enumerate(tail):
                extras.append((first_idx[resident] + 1 + k * (8 * nt_ - 4) // len(tail), d))
        elif tail:
            allb = [t_ for row in xl for blk in row for t_ in self.vmtags(blk)]
            extras.append((first_idx[resident] - 1, [W(allb), P('s_barrier')]))
            nt_ = nk - resident
            t0_ = self.cfg.get('tail_k0', 0)
            for k, d in enumerate(tail):
                kk = t0_ + k * (nt_ - t0_) // len(tail)
                sk = self.L('tsk')
                extras.append((first_idx[resident + kk] + 1 + 2 * (k % 3),
                               [P('s_cmp_lg_u32 s%d, 0' % sRND), P('s_cbranch_scc1 %s ;nopad' % sk)] + d + [LAB(sk)]))
        if pre_extras and False:
            for k, t in enumerate(pre_extras):
                extras.append((first_idx[min(nk - 1, self.cfg.get('t_p4_k', 16) + 2 * k)] + 4, t))
        extras += self.sched_touches('p4' if nk == 28 else 'p2', first_idx)
        if nk == 28 and self.cfg.get('wbl2'):
            allb2 = [t_ for row in xl for blk in row for t_ in self.vmtags(blk)] + self.vmtags(refills)
            sk = self.L('wb')
            extras.append((first_idx[self.cfg.get('wbl2')] + 2,
                           [W(allb2), P('s_cmp_eq_u32 s%d, 0' % sTUX), P('s_cselect_b32 s52, s%d, 0' % sRND), P('s_cmp_eq_u32 s52, 1'),
                            P('s_cbranch_scc0 %s ;nopad' % sk), P('buffer_wbl2 sc1'), LAB(sk)]))
        if nk == 28 and self.cfg.get('code_staged', 1) and self.cfg.get('t_code', 1):
            extras.append((first_idx[16] + 3, self.touch_code('L_C5', 'L_END', 72)))
        o += self.gemm_loop(groups, self.cfg.get('la', 3), extras)
        o.append(P('s_barrier'))
        o += [P('v_add_u32 v%d, %d, v%d' % (vTA, exb, vEXBW)), P('v_add_u32 v%d, %d, v%d' % (vTB, exb, vEXBR))]
        if post and tail_lds:
            o += self.flat(post)
        elif post:
            sk = self.L('psk')
            o += [P('s_cmp_lg_u32 s%d, 0' % sRND), P('s_cbranch_scc1 %s ;nopad' % sk)] + self.flat(post) + [LAB(sk)]
        for fb in range(4):
            o.append(LG('ds_write_b128 v%d, %s offset:%d' % (vTA, vr(acc(1, fb), 4), fb * 1024)))
        o += [WALL(False, True), P('s_barrier')]
        PT = vT
        rt = []
        for fb in range(4):
            x = LG('ds_read_b128 %s, v%d offset:%d' % (vr(PT + 4 * fb, 4), vTB, fb * 1024)); rt.append(x.tag); o.append(x)
        U = vT + 16
        for fb in range(4):
            for hh in range(2):
                r = vR + fb * 2 + hh
                o += [P('v_lshlrev_b32 v%d, 16, v%d' % (U + fb * 4 + hh * 2, r)), P('v_and_b32 v%d, 0xffff0000, v%d' % (U + fb * 4 + hh * 2 + 1, r))]
        for fb in range(4):
            for hh in range(2):
                a = acc(0, fb) + 2 * hh
                o.append(P('v_pk_add_f32 %s, %s, %s' % (vr(a, 2), vr(a, 2), vr(U + fb * 4 + 2 * hh, 2))))
        for fb in range(4):
            o.append(W(rt[fb]))
            for hh in range(2):
                a = acc(0, fb) + 2 * hh
                o.append(P('v_pk_add_f32 %s, %s, %s' % (vr(a, 2), vr(a, 2), vr(PT + fb * 4 + 2 * hh, 2))))
        for fb in range(4):
            for hh in range(2):
                a = acc(0, fb) + 2 * hh
                o.append(P('v_cvt_pk_bf16_f32 v%d, v%d, v%d' % (vR + fb * 2 + hh, a, a + 1)))
        return o

    def sw4(self):
        return self.touch_set(self.cfg.get('t_p4', ''), only_r1=True)

    def row_stats(self):
        s1 = vT + 32; s2 = vT + 33; s1b = vT + 34; s2b = vT + 35
        o = [P('v_mov_b32 v%d, 0' % r) for r in (s1, s2, s1b, s2b)]
        for k in range(0, 8, 2):
            o += [P('v_dot2c_f32_bf16 v%d, v%d, v%d' % (s1, vR + k, vONES)), P('v_dot2c_f32_bf16 v%d, v%d, v%d' % (s2, vR + k, vR + k)),
                  P('v_dot2c_f32_bf16 v%d, v%d, v%d' % (s1b, vR + k + 1, vONES)), P('v_dot2c_f32_bf16 v%d, v%d, v%d' % (s2b, vR + k + 1, vR + k + 1))]
        o += [P('v_add_f32 v%d, v%d, v%d' % (s1, s1, s1b)), P('v_add_f32 v%d, v%d, v%d' % (s2, s2, s2b))]
        o += self.reduce_g2(s1, s2)
        return o

    def x_stores(self, sx, ss):
        return [P('s_mul_i32 s53, s%d, 16384' % sTB), P('s_add_u32 s53, s53, s%d' % sx), P('s_lshl_b32 s54, s%d, 11' % sCT),
                P('s_add_u32 s53, s53, s54'),
                P('s_lshl_b32 s54, s%d, 10' % sTB), P('s_add_u32 s54, s54, s%d' % ss)]

    def x_store_frags(self):
        ds, tags = self.dual_store(['buffer_store_dwordx4 %s, v%d, s[28:31], s53 offen' % (vr(vR, 4), vL16),
                                    'buffer_store_dwordx4 %s, v%d, s[28:31], s55 offen offset:1024' % (vr(vR + 4, 4), vL16)])
        return self.delta(55, 11) + [P('s_add_u32 s55, s55, s53')] + ds, tags

    def x_store_stats(self):
        ds, tags = self.dual_store(['buffer_store_dwordx2 %s, v%d, s[28:31], s54 offen' % (vr(vT + 32, 2), vSTO)])
        return [P('s_mov_b64 exec, 0xffff')] + ds + [P('s_mov_b64 exec, -1')], tags

    def p3(self, extras_w2):
        o = []
        cfg = self.cfg
        for b in range(2):
            o += [P('s_lshl_b32 s53, s%d, 1' % sW), P('s_add_u32 s53, s53, %d' % b), P('s_lshl_b32 s53, s53, 14'),
                  P('s_add_u32 s%d, s53, s%d' % (sB0 + b, sX1))]
        xl = self.x_loads(16, depth=XD)
        pro = cfg.get('x_pro', 4)
        for j in range(pro):
            o += xl[j][0] + xl[j][1]
        stt = []
        STR = vT + 12
        PA = [vT + 0, vT + 2]
        for b in range(2):
            t = newtag('st'); stt.append(t)
            o += [P('s_lshl_b32 s54, s%d, 11' % sW), P('s_add_u32 s53, s54, s%d' % sS1),
                  P('s_add_u32 s53, s53, %d' % (b * 1024)),
                  VM('buffer_load_dwordx4 %s, v%d, s[28:31], s53 offen sc1' % (vr(STR + 4 * b, 4), vL16), t)]
        acc = lambda fb, tb: vACC + (fb * 2 + tb) * 4
        a3 = self.dma_w1_group(3)
        groups = []; n = 0; first_idx = {}; mfidx = 0
        for j in range(16):
            first_idx[j] = mfidx
            base = L_W1P[j // 4] + (j % 4) * 7168
            for fb in range(7):
                dst = self.afrag(n); n += 1
                g = dict(pre=[], reads=[], mf=[])
                if j == 12 and fb == 0:
                    g['pre'] += [W(self.vmtags(a3)), P('s_barrier')]
                for part in range(2):
                    a = base + part * 3584 + fb * 32
                    win = a >> 16
                    g['reads'].append(LG('ds_read_b64_tr_b16 v[%d:%d], v%d offset:%d' % (dst + 2 * part, dst + 2 * part + 1, vW1A + win, a & 0xffff)))
                for tb in range(2):
                    c = '0' if j == 0 else vr(acc(fb, tb), 4)
                    wt = self.vmtags(xl[j][tb]) if fb == 0 else []
                    g['mf'].append(('v_mfma_f32_16x16x32_bf16 %s, %s, %s, %s' % (vr(acc(fb, tb), 4), vr(dst, 4), ar(((j % XD) * 2 + tb) * 4, 4), c), wt))
                mfidx += 2
                groups.append(g)
        extras = self.x_sched(xl, 16, pro, first_idx, 14, XD, cfg.get('x_rate', 4))
        if cfg.get('p3_jit'):
            k0 = cfg.get('p3_jit')
            for k, d in enumerate(a3):
                extras.append((first_idx[k0 + k] + 9, d))
            for k, d in enumerate(extras_w2):
                extras.append((first_idx[min(15, cfg.get('p3_w2k', 6) + k)] + 5, d))
            extras_w2 = []; a3 = []
        at = extras[-1][0] + 2
        for d in a3:
            extras.append((at, d)); at += 4
        st_ops = [W(stt)]
        for b in range(2):
            st_ops += self.stats_from_st(STR + 4 * b, PA[b], scale=LOG2E)
        extras += self.spread(st_ops, first_idx[2] + 2, 1)
        at = max(at, first_idx[9])
        for d in extras_w2:
            extras.append((at, d)); at += cfg.get('w2e_step', 7)
        for k, t in enumerate(self.touch_set(cfg.get('t_p3', 'af'), only_r1=True)):
            extras.append((first_idx[min(15, cfg.get('t_p3_k', 9) + 2 * k)] + 4, t))
        extras += self.sched_touches('p3', first_idx)
        if cfg.get('code_staged', 1) and cfg.get('t_code', 1):
            extras.append((first_idx[10] + 6, self.touch_code('L_C4', 'L_C5', 72)))
        o += self.gemm_loop(groups, cfg.get('la', 3), extras)
        o.append(P('s_barrier'))
        return o, PA

    def cs_w1(self):
        o = []
        A0 = vT + 40; A1 = vT + 44
        ad = vT + 48
        o += [P('s_lshl_b32 s53, s%d, 5' % sW), P('s_add_u32 s54, s%d, 4' % sW), P('s_min_u32 s54, s54, 6'), P('s_lshl_b32 s54, s54, 5')]
        for win in range(3):
            o += [P('v_add_u32 v%d, s53, v%d' % (ad + win, vW1A + win)), P('v_add_u32 v%d, s54, v%d' % (ad + 3 + win, vW1A + win))]
        groups = []; n = 0
        for j in range(16):
            base = L_W1P[j // 4] + (j % 4) * 7168
            for e in range(2):
                dst = self.afrag(n); n += 1
                g = dict(pre=[], reads=[], mf=[])
                for part in range(2):
                    a = base + part * 3584
                    g['reads'].append(LG('ds_read_b64_tr_b16 v[%d:%d], v%d offset:%d' % (dst + 2 * part, dst + 2 * part + 1, ad + 3 * e + (a >> 16), a & 0xffff)))
                accr = A0 if e == 0 else A1
                c = '0' if j == 0 else vr(accr, 4)
                g['mf'].append(('v_mfma_f32_16x16x32_bf16 %s, %s, %s, %s' % (vr(accr, 4), vr(dst, 4), vr(vONES, 4), c), []))
                groups.append(g)
        o += self.gemm_loop(groups, 3, [])
        o += [P('s_lshl_b32 s53, s53, 1'), P('s_lshl_b32 s54, s54, 1'),
              P('v_add_u32 v%d, s53, v%d' % (ad, vCS)), P('v_add_u32 v%d, s54, v%d' % (ad + 1, vCS)),
              P('s_mov_b32 s52, 0x00010001'), P('s_mov_b32 s53, 0x00010001'), P('s_mov_b64 exec, s[52:53]'),
              LG('ds_write_b128 v%d, %s offset:%d' % (ad, vr(A0, 4), L_CS1)),
              LG('ds_write_b128 v%d, %s offset:%d' % (ad + 1, vr(A1, 4), L_CS1)),
              P('s_mov_b64 exec, -1'), WALL(False, True), P('s_barrier')]
        return o

    def p3_epi(self, PA, dmas):
        o = []
        acc = lambda fb, tb: vACC + (fb * 2 + tb) * 4
        CS = vT + 12; BB = vT + 40
        PK = vT + 68
        cst = []
        for fb in range(7):
            x = LG('ds_read_b128 %s, v%d offset:%d' % (vr(CS + 4 * fb, 4), vCS, L_CS1 + fb * 64)); y = LG('ds_read_b128 %s, v%d offset:%d' % (vr(BB + 4 * fb, 4), vCS, L_BB1 + fb * 64))
            cst.append([x.tag, y.tag]); o += [x, y]
        T = vT + 68
        OUTR = lambda tb, fb: vAF + tb * 16 + fb * 2
        body = []
        for fb in range(7):
            body.append(W(cst[fb]))
            prs = [(tb, hh) for tb in range(2) for hh in range(2)]
            E = [T + 2 * k for k in range(4)]; U = [T + 8 + 2 * k for k in range(4)]
            for k, (tb, hh) in enumerate(prs):
                body.append(P('v_pk_fma_f32 %s, %s, %s, %s op_sel:[0,1,0] op_sel_hi:[1,1,1]' % (vr(E[k], 2), vr(CS + 4 * fb + 2 * hh, 2), vr(PA[tb], 2), vr(BB + 4 * fb + 2 * hh, 2))))
            for k, (tb, hh) in enumerate(prs):
                body.append(P('v_pk_fma_f32 %s, %s, %s, %s op_sel_hi:[1,0,1]' % (vr(E[k], 2), vr(acc(fb, tb) + 2 * hh, 2), vr(PA[tb], 2), vr(E[k], 2))))
            for k in range(4):
                body += [P('v_exp_f32 v%d, v%d' % (U[k], E[k])), P('v_exp_f32 v%d, v%d' % (U[k] + 1, E[k] + 1))]
            for k in range(4):
                body.append(P('v_pk_add_f32 %s, %s, s[%d:%d]' % (vr(U[k], 2), vr(U[k], 2), sONE, sONE + 1)))
            for k in range(4):
                body.append(P('v_pk_fma_f32 %s, %s, %s, s[%d:%d]' % (vr(U[k], 2), vr(U[k], 2), vr(U[k], 2), sONE, sONE + 1)))
            for k in range(4):
                body += [P('v_rcp_f32 v%d, v%d' % (U[k], U[k])), P('v_rcp_f32 v%d, v%d' % (U[k] + 1, U[k] + 1))]
            for k in range(4):
                body.append(P('v_pk_fma_f32 %s, %s, s[%d:%d], %s' % (vr(U[k], 2), vr(U[k], 2), sM2L, sM2L + 1, vr(vLN2, 2))))
            for k in range(4):
                body.append(P('v_pk_mul_f32 %s, %s, %s' % (vr(E[k], 2), vr(E[k], 2), vr(U[k], 2))))
            for k, (tb, hh) in enumerate(prs):
                body.append(P('v_cvt_pk_bf16_f32 v%d, v%d, v%d' % (OUTR(tb, fb) + hh, E[k], E[k] + 1)))
        if dmas:
            frac = self.cfg.get('p3e_frac', 100)
            body = interleave(body, dmas, start=4, every=max(1, ((len(body) - 8) * frac // 100) // (len(dmas) + 1)))
        o += body
        o += [P('s_lshr_b32 s52, s%d, 1' % sM), P('s_mul_i32 s52, s52, 7168'), P('s_add_u32 s52, s52, s%d' % sAF),
              P('s_mul_i32 s53, s%d, %d' % (sW, 2 * 57344)), P('s_add_u32 s52, s52, s53'),
              P('s_add_u32 s53, s52, 57344'), P('s_add_u32 s54, s52, 4096'), P('s_add_u32 s55, s53, 4096')]
        def variant(odd, fl):
            r = []
            for tb in range(2):
                b0 = 52 + tb; b1 = 54 + tb
                if not odd:
                    for u in range(3):
                        r.append(P('buffer_store_dwordx4 %s, v%d, s[28:31], s%d offen offset:%d%s' % (vr(OUTR(tb, 2 * u), 4), vL16, b0, u * 1024, fl)))
                    r.append(P('buffer_store_dwordx2 %s, v%d, s[28:31], s%d offen offset:%d%s' % (vr(OUTR(tb, 6), 2), vL16, b0, 3072, fl)))
                else:
                    r.append(P('buffer_store_dwordx2 %s, v%d, s[28:31], s%d offen offset:%d%s' % (vr(OUTR(tb, 0), 2), vL16, b0, 3072 + 8, fl)))
                    for u in range(3):
                        r.append(P('buffer_store_dwordx4 %s, v%d, s[28:31], s%d offen offset:%d%s' % (vr(OUTR(tb, 2 * u + 1), 4), vL16, b1, u * 1024, fl)))
            return r
        l_odd = self.L('odd'); l_e1 = self.L('e1'); l_o1 = self.L('o1'); done = self.L('dn')
        sel = sMODE
        if self.cfg.get('af_sc1_r1'):
            sel = sIT
            o += [P('s_xor_b32 s%d, s%d, 1' % (sIT, sRND)), P('s_or_b32 s%d, s%d, s%d' % (sIT, sIT, sMODE))]
        o += [P('s_bitcmp1_b32 s%d, 0' % sM), P('s_cbranch_scc1 %s' % l_odd),
              P('s_cmp_eq_u32 s%d, 0' % sel), P('s_cbranch_scc1 %s' % l_e1)] + variant(False, ' sc1') + [P('s_branch %s' % done), LAB(l_e1)] + \
            variant(False, '') + [P('s_branch %s' % done), LAB(l_odd),
              P('s_cmp_eq_u32 s%d, 0' % sel), P('s_cbranch_scc1 %s' % l_o1)] + variant(True, ' sc1') + [P('s_branch %s' % done), LAB(l_o1)] + \
            variant(True, '') + [LAB(done)]
        cnt = [VM('; counted store') for _ in range(8)]
        return o + cnt, [c.tag for c in cnt]

    def build(self):
        cfg = self.cfg
        stop = cfg.get('stop', 99)
        o = self.add
        self.prologue()
        o(self.ts(0))
        self.p1a()
        o(self.ts(1))
        o(W(self.tag_res))
        if cfg.get('a0_early', 1):
            o(self.dma_w1_group(0))
        o(LAB('L_P1EPI'))
        wo = [self.dma_wo_slot(SRD_WO, 8, t, kh, t) for t in range(8) for kh in range(2)]
        w1a0 = self.dma_w1_group(0)
        o(P('s_cmp_eq_u32 s%d, 1' % sRND), P('s_cselect_b64 s[70:71], -1, 0'),
          P('s_lshl_b32 s53, s%d, 10' % sW), P('s_add_u32 s53, s53, %d' % L_W), P('v_add_u32 v%d, s53, v%d' % (vWOA, vL16)))
        epi, stores = self.p1_epi(self.p1_epi_fill())
        o(epi)
        ds, tags = self.dual_store(stores)
        o(ds)
        o(self.wo_restore())
        o(self.ts(2, True))
        o(P('s_lshl_b32 s%d, s%d, 2' % (sTGT, sRND)))
        o(self.sync_dyn(1, tags, pre_r1=self.dma_w1_group(1)) if cfg.get('a1_tail', 1) else self.sync_dyn(1, tags, pre=self.dma_w1_group(1)))
        o(self.ts(3, True))
        if stop == 1:
            o(P('s_branch L_END'))
        o(LAB('L_C2'))
        o(self.gemmB(8, SRD_WO, sOF, 16, 8, 8, None, L_EXB2, inloop=self.dma_w1_group(2) if cfg.get('a2_p2', 1) else None))
        o(self.ts(4, True))
        o(self.x_stores(sX1, sS1))
        ds, tags = self.x_store_frags(); o(ds)
        o(self.row_stats())
        ds, tags2 = self.x_store_stats(); o(ds)
        tags = tags + tags2
        o(self.sync_dyn(2, tags, pre=None if cfg.get('a2_p2', 1) else self.dma_w1_group(2)))
        o(self.ts(5, True))
        if stop == 2:
            o(P('s_branch L_END'))
        w2_early = [self.dma_wo_slot(SRD_W2, 28, W2_T_AT[p], kh, p) for p in range(5) for kh in range(2)]
        body, PA = self.p3(w2_early)
        o(body)
        skip = self.L('cs1')
        o(P('s_cmp_lg_u32 s%d, 0' % sRND), P('s_cbranch_scc1 %s' % skip))
        o(self.cs_w1())
        o(LAB(skip))
        o(self.ts(6, True))
        n_epi = cfg.get('w2_epi_p', 15)
        w2_epi = [self.dma_wo_slot(SRD_W2, 28, W2_T_AT[p], kh, p) for p in range(5, n_epi) for kh in range(2)]
        epi, tags = self.p3_epi(PA, w2_epi)
        o(epi)
        o(self.ts(7, True))
        o(self.sync_dyn(3, tags, pre=[self.dma_wo_slot(SRD_W2, 28, W2_T_AT[p], kh, p) for p in range(n_epi, 19) for kh in range(2)]))
        o(self.ts(8, True))
        if stop == 3:
            o(P('s_branch L_END'))
        o(LAB('L_C4'))
        if cfg.get('stash', 1):
            VA, VB = vT + 60, vT + 61
            o(P('s_cmp_eq_u32 s%d, 0' % sRND), P('s_cselect_b64 s[74:75], -1, 0'))
            o(P('s_lshl_b32 s53, s%d, 10' % sW), P('s_add_u32 s53, s53, %d' % L_W), P('v_add_u32 v%d, s53, v%d' % (VA, vL16)),
              P('v_add_u32 v%d, 0x10000, v%d' % (VB, VA)))
            wq_tail = self.wq_restore([0, 1, 2, 4, 5, 6, 8, 9, 10, 11], VA, VB)
            wq_post = self.wq_restore([3, 7], VA, VB)
            o(self.gemmB(28, SRD_W2, sAF, 56, cfg.get('p4d', XD), 19, None, L_EXB4, posf=w2pos, tail=wq_tail, post=wq_post, tail_lds=True))
        else:
            wq_tail = self.dma_wq_quarter(0, src=None) + self.dma_wq_quarter(1, src=None) + self.dma_wq_quarter(2, src=None) + self.dma_wq_quarter(3, panels=(2,), src=None)
            wq_post = self.dma_wq_quarter(3, panels=(0, 1), src=None)
            o(self.gemmB(28, SRD_W2, sAF, 56, cfg.get('p4d', XD), 19, None, L_EXB4, pre_extras=self.sw4(), posf=w2pos, tail=wq_tail, post=wq_post))
        o(self.ts(9, True))
        o(LAB('L_C5'))
        o(P('s_cmp_lg_u32 s%d, 0' % sRND), P('s_cbranch_scc1 L_FINAL'))
        o(self.x_stores(sX2, sS2))
        ds, tags = self.x_store_frags(); o(ds)
        o(self.row_stats())
        ds, tags2 = self.x_store_stats(); o(ds)
        tags = tags + tags2
        ht = [newtag('hs') for _ in range(3)]
        o(P('s_add_u32 s52, s%d, 1' % sG), P('s_lshl_b32 s53, s52, 14'), P('s_lshl_b32 s54, s%d, 11' % sCT),
          P('s_add_u32 s53, s53, s54'), P('s_add_u32 s53, s53, %d' % WS_HF),
          P('s_lshl_b32 s54, s52, 10'), P('s_add_u32 s54, s54, %d' % WS_HST),
          VM('buffer_store_dwordx4 %s, v%d, s[28:31], s53 offen sc1' % (vr(vR, 4), vHOF), ht[0]),
          self.delta(55, 11), P('s_add_u32 s55, s55, s53'),
          VM('buffer_store_dwordx4 %s, v%d, s[28:31], s55 offen offset:1024 sc1' % (vr(vR + 4, 4), vHOF), ht[1]),
          VM('buffer_store_dwordx2 %s, v%d, s[28:31], s54 offen sc1' % (vr(vT + 32, 2), vHST), ht[2]))
        self.halo_store_tags = ht
        o(self.sync_dyn(4, tags))
        o(self.ts(10))
        if stop == 4:
            o(P('s_branch L_END'))
        o(P('s_mov_b32 s%d, 1' % sRND), P('s_add_u32 s%d, s%d, s%d' % (sOF, sOF, dOF)), P('s_add_u32 s%d, s%d, s%d' % (sAF, sAF, dAF)),
          P('s_add_u32 s%d, s%d, s%d' % (sX1, sX1, dX1)), P('s_add_u32 s%d, s%d, s%d' % (sS1, sS1, dS1)))
        self.p1b()
        o(self.ts(27))
        o(WALL(False, True))
        o(P('s_branch L_P1EPI'))
        o(LAB('L_FINAL'))
        for u in range(2):
            o(P('v_permlane16_swap_b32 v%d, v%d' % (vR + 4 * u, vR + 4 * u + 2)), P('v_permlane16_swap_b32 v%d, v%d' % (vR + 4 * u + 1, vR + 4 * u + 3)))
        for u in range(2):
            if u == 1:
                o(self.delta(55), P('s_add_u32 s55, s55, s61'))
            o(VM('buffer_store_dwordx4 %s, v%d, s[32:35], s%d offen offset:%d%s' % (vr(vR + 4 * u, 4), vOUT, 55 if u else 61, u * 64, ' sc1' if cfg.get('out_sc1') else '')))
        o(self.ts(28), self.ts_flush())
        o(LAB('L_END'), P('s_endpgm'))

    def sync_dyn(self, ph, tags, window=None, pre=None, pre_r1=None):
        prep = [P('s_add_u32 s%d, s%d, %d' % (sNXT, sTGT, ph)), P('v_mov_b32 v%d, s%d' % (vTA, sNXT)), P('v_mov_b32 v%d, 0' % vTB),
                P('v_lshlrev_b32 v250, 2, v%d' % vLANE)]
        if pre_r1:
            l2 = self.L('pr2'); l3 = self.L('pr3')
            raw = [P(x.text) for x in self.flat(pre_r1)]
            nd = sum(1 for x in self.flat(pre_r1) if x.kind == 'vm')
            o = prep + [P('s_cmp_lg_u32 s%d, 0' % sRND), P('s_cbranch_scc1 %s' % l2)] + raw + [P('s_waitcnt vmcnt(%d)' % nd), P('s_branch %s' % l3),
                 LAB(l2), P('s_waitcnt vmcnt(0)'), LAB(l3), MARK(tags)]
        else:
            o = prep + self.flat(pre or []) + [W(tags)]
        if self.cfg.get('sts'):
            o += self.ts(48 + 4 * (ph - 1))
        pure = self.L('fp'); done = self.L('fd')
        o += [P('s_mov_b64 exec, 1'),
              P('s_cmp_eq_u32 s%d, 0' % sMODE), P('s_cbranch_scc1 %s ;nopad' % pure),
              P('buffer_store_dword v%d, v%d, s[28:31], s%d offen sc1' % (vTA, vTB, sFLGOFF)),
              P('s_branch %s ;nopad' % done), LAB(pure),
              P('buffer_store_dword v%d, v%d, s[28:31], s%d offen' % (vTA, vTB, sFLGOFF)),
              LAB(done), VM('; flag store counted'),
              P('s_mov_b64 exec, -1')]
        other = self.L('so'); join = self.L('sj'); loop = self.L('sp')
        PA_, PB_ = 248, 249
        o += [P('s_cmp_lg_u32 s%d, 0' % sW), P('s_cbranch_scc1 %s ;nopad' % other),
              P('s_mov_b32 s%d, 0' % sTMO)]
        if self.cfg.get('poll2', 1):
            o += [P('buffer_load_dword v%d, v%d, s[28:31], s%d offen sc1' % (PA_, 250, sGFLG)),
                  LAB(loop),
                  P('buffer_load_dword v%d, v%d, s[28:31], s%d offen sc1' % (PB_, 250, sGFLG)),
                  P('s_waitcnt vmcnt(1)'),
                  P('v_cmp_gt_u32 vcc, s%d, v%d' % (sNXT, PA_)),
                  P('s_add_u32 s%d, s%d, 1' % (sTMO, sTMO)),
                  P('s_cbranch_vccz %s ;nopad' % join),
                  P('buffer_load_dword v%d, v%d, s[28:31], s%d offen sc1' % (PA_, 250, sGFLG)),
                  P('s_waitcnt vmcnt(1)'),
                  P('v_cmp_gt_u32 vcc, s%d, v%d' % (sNXT, PB_)),
                  P('s_cmp_lt_u32 s%d, 0x80000' % sTMO),
                  P('s_cbranch_vccz %s ;nopad' % join),
                  P('s_cbranch_scc1 %s' % loop),
                  P('s_endpgm'),
                  LAB(other)]
        else:
            o += [LAB(loop),
                  P('buffer_load_dword v%d, v%d, s[28:31], s%d offen sc1' % (PA_, 250, sGFLG)),
                  P('s_add_u32 s%d, s%d, 1' % (sTMO, sTMO)),
                  P('s_waitcnt vmcnt(0)'),
                  P('v_cmp_gt_u32 vcc, s%d, v%d' % (sNXT, PA_)),
                  P('s_cbranch_vccz %s' % join),
                  P('s_cmp_lt_u32 s%d, 0x100000' % sTMO),
                  P('s_cbranch_scc1 %s' % loop),
                  P('s_endpgm'),
                  LAB(other)]
        if window and not self.cfg.get('nowin'):
            o += window
        o += [LAB(join)]
        if self.cfg.get('sts'):
            o += self.ts(49 + 4 * (ph - 1)) + [WALL(True, True)] + self.ts(50 + 4 * (ph - 1))
        if self.cfg.get('halo_nowait') and ph == 4:
            o += [WALL(True, True)]
        else:
            o += [WALL(True, True)]
        o += [P('s_barrier')]
        return o

    def text(self):
        self.build()
        body = self.p.render()
        body = [l for l in body if not l.strip().startswith('; counted') and not l.strip().startswith('; flag store')]
        hdr = open('interleave_layers__sliding_local_dilated__dense_activation_mish__prompt.s.ref').read().split('\n')
        head = []
        for l in hdr:
            if l.startswith('; Override') or l.startswith('; grid=') or l.startswith('; @launch'):
                continue
            if l.startswith('.amdgcn_target'):
                break
            head.append(l)
        out = head + ['; @launch grid=(256,1,1) block=(256,1,1) lds=%d' % LDS_BYTES,
                      '.amdgcn_target "amdgcn-amd-amdhsa--gfx950"', '.text', '.globl ' + KNAME, '.p2align 8',
                      '.type %s,@function' % KNAME, KNAME + ':']
        out += body
        out += ['.section .rodata,"a"', '.p2align 6', '.amdhsa_kernel ' + KNAME,
                '  .amdhsa_next_free_vgpr 512', '  .amdhsa_next_free_sgpr 102', '  .amdhsa_accum_offset 256',
                '  .amdhsa_group_segment_fixed_size 0', '  .amdhsa_kernarg_size 80', '  .amdhsa_user_sgpr_count 2',
                '  .amdhsa_user_sgpr_kernarg_segment_ptr 1', '  .amdhsa_system_sgpr_workgroup_id_x 1',
                '  .amdhsa_float_denorm_mode_32 3', '.end_amdhsa_kernel', '']
        return '\n'.join(out)


if __name__ == '__main__':
    cfg = {}
    outp = sys.argv[1]
    for a in sys.argv[2:]:
        k, v = a.split('=')
        try:
            cfg[k] = int(v)
        except ValueError:
            cfg[k] = v
    g = Gen(cfg)
    t = g.text()
    open(outp, 'w').write(t)
    print('wrote', outp, len(t), 'bytes;', 'nops padded:', g.p.npad)
```

```python
import re

TRANS = ('v_exp_f32', 'v_log_f32', 'v_rcp_f32', 'v_rsq_f32', 'v_sqrt_f32', 'v_sin_f32', 'v_cos_f32')


class Op:
    __slots__ = ('text', 'kind', 'tag', 'waits', 'comment')

    def __init__(self, text, kind='p', tag=None, waits=None):
        self.text = text
        self.kind = kind
        self.tag = tag
        self.waits = waits


_tagctr = [0]


def newtag(prefix='t'):
    _tagctr[0] += 1
    return '%s%d' % (prefix, _tagctr[0])


def P(text):
    return Op(text, 'p')


def VM(text, tag=None):
    return Op(text, 'vm', tag or newtag('vm'))


def LG(text, tag=None):
    return Op(text, 'lg', tag or newtag('lg'))


def W(*tags):
    flat = []
    for t in tags:
        if t is None:
            continue
        if isinstance(t, (list, tuple)):
            flat.extend(t)
        else:
            flat.append(t)
    return Op(None, 'w', waits=flat)


def WALL(vm=True, lg=True):
    return Op(None, 'wall', waits=(vm, lg))


def MARK(*tags):
    flat = []
    for t in tags:
        flat.extend(t) if isinstance(t, (list, tuple)) else flat.append(t)
    return Op(None, 'mark', waits=flat)


def LAB(name):
    return Op(name + ':', 'lab')


def vr(a, n=1, k='v'):
    return '%s%d' % (k, a) if n == 1 else '%s[%d:%d]' % (k, a, a + n - 1)


def ar(a, n=1):
    return vr(a, n, 'a')


def sr(a, n=1):
    return vr(a, n, 's')


_reg_re = re.compile(r'^(-|\|)?\|?([vas])(\d+)\|?$')
_rng_re = re.compile(r'^(-)?([vas])\[(\d+):(\d+)\]$')


def regs_of(opnd):
    o = opnd.strip()
    if o.startswith('abs(') or o.startswith('neg('):
        o = o[4:-1]
    m = _reg_re.match(o)
    if m:
        return {(m.group(2), int(m.group(3)))}
    m = _rng_re.match(o)
    if m:
        return {(m.group(2), i) for i in range(int(m.group(3)), int(m.group(4)) + 1)}
    if o == 'vcc':
        return {('s', 'vcc_lo'), ('s', 'vcc_hi')}
    if o in ('vcc_lo', 'vcc_hi'):
        return {('s', o)}
    if o == 'm0':
        return {('s', 'm0')}
    if o == 'exec':
        return {('s', 'exec_lo'), ('s', 'exec_hi')}
    return set()


def split_ops(text):
    t = text.split(';')[0].strip()
    parts = t.split(None, 1)
    mn = parts[0]
    if len(parts) == 1:
        return mn, []
    rest = parts[1]
    ops = []
    depth = 0
    cur = ''
    for ch in rest:
        if ch in '[(':
            depth += 1
        elif ch in '])':
            depth -= 1
        if ch == ',' and depth == 0:
            ops.append(cur.strip())
            cur = ''
        else:
            cur += ch
    ops.append(cur.strip())
    last = ops[-1].split()
    if last:
        ops[-1] = last[0]
        mods = last[1:]
    else:
        mods = []
    return mn, ops, mods


class Info:
    __slots__ = ('mn', 'cls', 'wr', 'rd', 'mfA', 'mfB', 'mfC', 'trans', 'dot', 'dpp', 'perm', 'rlane', 'lds_dma',
                 'store_data', 'states', 'branch', 'wide_store', 'cmask', 'region')

    def __init__(self):
        self.wr = set(); self.rd = set()
        self.mfA = self.mfB = self.mfC = set()
        self.trans = self.dot = self.dpp = self.perm = self.rlane = self.lds_dma = False
        self.store_data = set(); self.states = 1; self.branch = False; self.wide_store = False
        self.cls = 'other'; self.cmask = set(); self.region = None


def analyze(text):
    r = split_ops(text)
    inf = Info()
    mn = r[0]
    inf.mn = mn
    ops = r[1] if len(r) > 1 else []
    mods = r[2] if len(r) > 2 else []
    R = [regs_of(o) for o in ops]
    base = re.sub(r'_(e32|e64|dpp|sdwa)$', '', mn)
    if mn == 's_nop':
        inf.cls = 'salu'
        inf.states = int(ops[0], 0) + 1
        return inf
    if mn.startswith('s_cbranch') or mn == 's_branch' or mn.startswith('s_setpc') or mn == 's_endpgm':
        inf.cls = 'salu'; inf.branch = True
        return inf
    if mn.startswith('v_mfma'):
        inf.cls = 'mfma'
        inf.wr = R[0]; inf.mfA = R[1]; inf.mfB = R[2]; inf.mfC = R[3]
        inf.rd = R[1] | R[2] | R[3]
        return inf
    if mn.startswith('v_'):
        inf.cls = 'valu'
        inf.trans = base in TRANS
        inf.dot = base.startswith('v_dot')
        inf.dpp = mn.endswith('_dpp') or any(m.startswith('row_') or m.startswith('quad_perm') for m in mods)
        if base.startswith('v_permlane'):
            inf.perm = True
            inf.wr = R[0] | R[1]; inf.rd = R[0] | R[1]
            return inf
        if base in ('v_readfirstlane_b32', 'v_readlane_b32'):
            inf.rlane = True
            inf.wr = R[0]; inf.rd = set().union(*R[1:])
            return inf
        if base.startswith('v_cmp'):
            inf.wr = R[0]; inf.rd = set().union(*R[1:])
            return inf
        if base == 'v_cndmask_b32':
            inf.wr = R[0]; inf.rd = R[1] | R[2]
            inf.cmask = R[3] if len(R) > 3 else regs_of('vcc')
            inf.rd |= inf.cmask
            return inf
        if base in ('v_add_co_u32', 'v_sub_co_u32', 'v_addc_co_u32', 'v_subb_co_u32'):
            inf.wr = R[0] | R[1]; inf.rd = set().union(*R[2:])
            return inf
        inf.wr = R[0]
        inf.rd = set().union(*R[1:]) if len(R) > 1 else set()
        if base in ('v_fmac_f32', 'v_dot2c_f32_bf16', 'v_fmac_f16', 'v_pk_fmac_f16'):
            inf.rd |= R[0]
        return inf
    if mn.startswith('ds_'):
        inf.cls = 'ds'
        if mn.startswith('ds_read') or mn.startswith('ds_bpermute') or mn.startswith('ds_permute') or mn.startswith('ds_swizzle'):
            inf.wr = R[0]; inf.rd = set().union(*R[1:])
        else:
            inf.rd = set().union(*R)
            inf.store_data = set().union(*R[1:]) if len(R) > 1 else set()
        return inf
    if mn.startswith('buffer_') or mn.startswith('global_'):
        inf.cls = 'vmem'
        lds = 'lds' in mods or (ops and ops[-1] == 'lds')
        if mn.startswith('buffer_load') and lds:
            inf.lds_dma = True
            inf.rd = set().union(*R) | {('s', 'm0')}
        elif 'load' in mn:
            inf.wr = R[0]; inf.rd = set().union(*R[1:])
        elif 'atomic' in mn:
            inf.rd = set().union(*R)
            if 'sc0' in mods:
                inf.wr = R[0]
        else:
            inf.rd = set().union(*R)
            inf.store_data = R[0] if mn.startswith('buffer') else R[1]
            inf.wide_store = mn.endswith('x4') or mn.endswith('x3')
        return inf
    if mn.startswith('s_'):
        inf.cls = 'salu'
        if mn.startswith('s_cmp') or mn in ('s_waitcnt', 's_barrier', 's_sleep', 's_setprio', 's_bitcmp0_b32', 's_bitcmp1_b32'):
            inf.rd = set().union(*R) if R else set()
        else:
            inf.wr = R[0] if R else set()
            inf.rd = set().union(*R[1:]) if len(R) > 1 else set()
        return inf
    raise ValueError('cannot analyze: ' + text)


def _isv(regs):
    return {r for r in regs if r[0] in 'va'}


def _iss(regs):
    return {r for r in regs if r[0] == 's'}


def mfma_passes(mn):
    if '32x32' in mn:
        return 8
    return 4


def need_states(prod, cons):
    n = 0
    if prod.cls == 'valu':
        wv = _isv(prod.wr); ws_ = _iss(prod.wr)
        if cons.cls == 'mfma' and (wv & cons.rd):
            n = max(n, 2)
        if cons.cls == 'valu':
            if prod.trans and not cons.trans and (wv & cons.rd):
                n = max(n, 1)
            if prod.trans and cons.trans and (wv & cons.rd):
                n = max(n, 1)
            if cons.perm and (wv & cons.rd):
                n = max(n, 2)
            if cons.dpp and (wv & cons.rd):
                n = max(n, 2)
            if cons.rlane and (wv & cons.rd):
                n = max(n, 1)
            if ws_ & cons.rd:
                n = max(n, 4 if cons.rlane else 2)
            if prod.dot and (wv & (cons.rd | cons.wr)) and not (cons.dot and cons.mn == prod.mn and not (wv & (cons.rd - cons.wr))):
                n = max(n, 3)
        if prod.dot and cons.cls in ('ds', 'vmem', 'mfma') and (wv & cons.rd):
            n = max(n, 3)
        if cons.cls == 'vmem' and (ws_ & cons.rd):
            n = max(n, 5)
        if cons.cls == 'salu' and (ws_ & cons.rd):
            n = max(n, 4)
    if prod.cls == 'mfma':
        p = mfma_passes(prod.mn)
        d = prod.wr
        big = 8 if p == 4 else 12
        ovl = 6 if p == 4 else 10
        if cons.cls == 'mfma':
            if d & (cons.mfA | cons.mfB):
                n = max(n, big)
            if d & cons.mfC:
                if not (cons.mfC == d and mfma_passes(cons.mn) == p):
                    n = max(n, ovl)
            if (d & cons.wr) and not (d & cons.mfC):
                n = max(n, big)
        elif cons.cls in ('valu', 'ds', 'vmem'):
            if d & (cons.rd | cons.wr):
                n = max(n, big)
        if cons.cls == 'valu' and (prod.mfC & cons.wr):
            n = max(n, 3 if p == 4 else 7)
        if cons.cls in ('ds', 'vmem') and (prod.mfC & cons.wr):
            n = max(n, 3 if p == 4 else 7)
    if prod.cls == 'salu' and ('s', 'm0') in prod.wr and cons.lds_dma:
        n = max(n, 1)
    if prod.cls == 'vmem' and prod.wide_store and (prod.store_data & cons.wr):
        n = max(n, 2)
    if prod.cls == 'ds' and prod.store_data and (prod.store_data & cons.wr) and cons.cls == 'valu':
        n = max(n, 1)
    return n


class Prog:
    def __init__(self):
        self.ops = []

    def add(self, *items):
        for it in items:
            if it is None:
                continue
            if isinstance(it, (list, tuple)):
                self.add(*it)
            elif isinstance(it, str):
                self.ops.append(P(it))
            else:
                self.ops.append(it)

    def resolve(self):
        out = []
        vm_idx = {}; lg_idx = {}
        vm_n = 0; lg_n = 0
        vm_done = -1; lg_done = -1
        for op in self.ops:
            if op.kind == 'vm':
                vm_idx[op.tag] = vm_n; vm_n += 1
                out.append(op.text)
            elif op.kind == 'lg':
                lg_idx[op.tag] = lg_n; lg_n += 1
                out.append(op.text)
            elif op.kind == 'w':
                nv = None; nl = None
                for t in op.waits:
                    if t in vm_idx:
                        i = vm_idx[t]
                        if i > vm_done:
                            c = vm_n - 1 - i
                            nv = c if nv is None else min(nv, c)
                    elif t in lg_idx:
                        i = lg_idx[t]
                        if i > lg_done:
                            c = lg_n - 1 - i
                            nl = c if nl is None else min(nl, c)
                    else:
                        raise KeyError('wait on unknown tag %s' % t)
                parts = []
                if nv is not None:
                    nv = min(nv, 63)
                    parts.append('vmcnt(%d)' % nv)
                    vm_done = max(vm_done, vm_n - 1 - nv)
                if nl is not None:
                    nl = min(nl, 15)
                    parts.append('lgkmcnt(%d)' % nl)
                    lg_done = max(lg_done, lg_n - 1 - nl)
                if parts:
                    out.append('s_waitcnt ' + ' '.join(parts))
            elif op.kind == 'mark':
                for t in op.waits:
                    vm_done = max(vm_done, vm_idx[t])
            elif op.kind == 'wall':
                vm, lg = op.waits
                parts = []
                if vm:
                    parts.append('vmcnt(0)'); vm_done = vm_n - 1
                if lg:
                    parts.append('lgkmcnt(0)'); lg_done = lg_n - 1
                out.append('s_waitcnt ' + ' '.join(parts))
            elif op.kind == 'reset':
                vm_done = min(vm_done, op.waits[0]) if op.waits else vm_done
                out.append('; merge')
            else:
                out.append(op.text)
        return out

    def hazard_pad(self, lines):
        out = []
        hist = []
        npad = 0
        skip_to = None
        for ln in lines:
            s = ln.strip()
            if skip_to is not None and s == skip_to + ':':
                skip_to = None
            if not s or s.startswith(';') or s.endswith(':') or s.startswith('.'):
                out.append(ln)
                continue
            inf = analyze(s)
            need = 0
            dist = 0
            for prev in reversed(hist):
                if dist >= 13:
                    break
                if inf.branch and 'nopad' in s:
                    req = 0
                elif inf.branch:
                    req = 0
                    if prev.cls == 'mfma':
                        req = 8 if mfma_passes(prev.mn) == 4 else 12
                    elif prev.cls == 'valu':
                        req = 5 if _iss(prev.wr) else (3 if prev.dot else 2)
                    elif prev.cls == 'vmem' and prev.wide_store:
                        req = 2
                else:
                    req = need_states(prev, inf)
                if req > dist:
                    need = max(need, req - dist)
                dist += prev.states if (prev.region is None or prev.region == skip_to) else 0
            while need > 0:
                k = min(need, 16)
                nop = 's_nop %d' % (k - 1)
                out.append('  ' + nop)
                ninf = analyze(nop)
                ninf.region = skip_to
                hist.append(ninf)
                need -= k
                npad += 1
            out.append(ln)
            inf.region = skip_to
            hist.append(inf)
            if inf.branch and 'nopad' in s and skip_to is None:
                skip_to = s.split(';')[0].split()[1]
            if len(hist) > 32:
                hist = hist[-32:]
        self.npad = npad
        return out

    def render(self):
        lines = self.resolve()
        lines = [(l if (l.endswith(':') or l.startswith('.') or l.startswith(';')) else '  ' + l) for l in lines]
        return self.hazard_pad(lines)


def interleave(main, extra, start=0, every=1, per=1):
    out = []
    extra = list(extra)
    for i, op in enumerate(main):
        out.append(op)
        if i >= start and (i - start) % every == every - 1:
            for _ in range(per):
                if extra:
                    out.append(extra.pop(0))
    out.extend(extra)
    return out
```

```python
import sys, math
from asmlib import *

KNAME = 'interleave_layers__sliding_local_dilated__dense_activation_mish__prompt_kernel'

WS_FLG = 0x0000
WS_HFL = 0x1000
WS_TS = 0x2000
WS_ST = 0x10000
WS_HST = 0x80000
WS_HF = 0x90000
WS_XF = 0x100000
WS_OF = 0x800000
WS_AF = 0x1000000
WS_ACT = 0x2000000
ACT_G = 0x92000
WS_SIZE = 0x2A00000
ST_K = 0x20000; XF_K = 0x200000; OF_R = 0x200000; AF_R = 0x800000

L_CSQ = 0
L_CS1 = 384
L_BB1 = 832
L_W = 2048
L_HALO = 100352
L_RING = 116736
L_EX = 67584
L_EXK = L_EX + 9216
L_W1P = [135168, 106496, 77824, 49152]
L_EXB2 = 2048
L_EXB4 = 100352
LDS_BYTES = 163840
W2_PA = [12, 13, 14, 15, 16, 17, 18, 3, 7]
W2_PB = [0, 1, 2, 4, 5, 6, 8, 9, 10, 11]
def w2pos(t):
    return W2_PA[t] if t < 9 else (W2_PB[t - 9] if t < 19 else W2_PA[t - 19])
W2_T_AT = {w2pos(t): t for t in range(19)}

LOG2E = 1.4426950408889634
LN2 = 0.6931471805599453


def f32(x):
    import struct
    return '0x%08x' % struct.unpack('<I', struct.pack('<f', x))[0]


sRND = 3; sG = 4; sM = 5; sW = 6; sMODE = 7
SRD_X = 8; SRD_WQ = 12; SRD_WO = 16; SRD_W1 = 20; SRD_W2 = 24; SRD_WS = 28; SRD_OUT = 32; SRD_DBG = 36; SRD_B1 = 40
sXCC = 44
sWQ_SRC = 45
sW1K = 46
sWO_SRC = 47
sW1_SRC = 48
sW1_M = 49
sB0 = 50; sB1 = 51
sT0 = 52; sT1 = 53; sT2 = 54; sT3 = 55
sFLGOFF = 56
sGFLG = 57
sST = 58
sTH = 59; sCT = 60
sONE = 62
sM2L = 64
sUP = 66
sMA = 68; sMB = 70; sMC = 72; sMD = 74
sNXT = 76; sIT = 76; sTMO = 77; sTGT = 78; sA = 79; sB = 80; sC = 81; sD = 82
sXR0 = 83; sXR1 = 84
sHSRC = 85
sTB = 86
sGBASE = 87
sTS = 88
sTSO = 90
sOF = 94; sAF = 95; sX1 = 96; sS1 = 97; sX2 = 98; sS2 = 99
sTUX = 100; sTUG = 101
dOF = 83; dAF = 84; dX1 = 85; dS1 = 82
sXL0 = 92; sXL1 = 93

vLANE = 0; vL16 = 1
vR = 2
vONES = 10
vWQA = 14
vE1 = 18; vE2 = 19
vW1A = 20
vW2A = 23
vDQ = 35; vDO = 36; vD1 = 37
vCS = 44
vL128 = 45
vDUM = 247
vCCUR = 46; vCPREV = 50; vCPA = 54
vEXV = 58; vEXK = 59; vEXH = 60; vRVP = 61; vRV = 62; vRK = 63
vLN2 = 64
vEXBW = 66; vEXBR = 67
vSTO = 68
vHOF = 69
vHST = 70
vOUT = 71
vAF = 72
NAF = 6
vACC = 104
vT = 168
vTA = 254; vTB = 255
vWOA = 247
vDUMMY = 246
XD = 12
aWO = 96; aWQ = 160
L_HS = 135168
vDX = 240; vDH = 241; vXA = 242; vXB = 243; vHXA = 244; vHXB = 245


class Gen:
    def __init__(self, cfg):
        self.cfg = cfg
        self.p = Prog()
        self.lbl = 0

    def L(self, name):
        self.lbl += 1
        return '%s_%d' % (name, self.lbl)

    def add(self, *a):
        self.p.add(*a)

    def ts(self, idx, rnd=False):
        if not self.cfg.get('ts'):
            return []
        o = [P('s_memrealtime s[92:93]' if self.cfg.get('ts') == 1 else 's_memtime s[92:93]')]
        if rnd:
            o += [P('s_lshl_b32 s91, s%d, 4' % sRND), P('s_add_u32 s91, s91, %d' % idx), P('s_mov_b32 m0, s91'),
                  P('s_waitcnt lgkmcnt(0)'), P('v_writelane_b32 v103, s92, m0')]
        else:
            o += [P('s_waitcnt lgkmcnt(0)'), P('v_writelane_b32 v103, s92, %d' % idx)]
        return o

    def ts_flush(self):
        if not self.cfg.get('ts'):
            return []
        if self.cfg.get('dbgts'):
            o = [P('s_memrealtime s[92:93]'), P('s_waitcnt lgkmcnt(0)'), P('v_readlane_b32 s53, v103, 12'), P('s_nop 4'), P('s_sub_u32 s52, s92, s53'),
                 P('v_writelane_b32 v103, s52, 63')]
            lanes = [1, 2, 10, 27, 28, 63, 6, 9]
            words = [4, 5, 6, 7, 12, 13, 14, 15]
            o += [P('v_readlane_b32 s54, v103, 13')]
            for ln, wd in zip(lanes, words):
                o += [P('v_readlane_b32 s52, v103, %d' % ln), P('s_nop 4')]
                if ln != 63:
                    o += [P('s_sub_u32 s52, s52, s54')]
                o += [P('v_writelane_b32 v252, s52, %d' % wd)]
            o += [P('v_lshlrev_b32 v253, 2, v%d' % vLANE), P('s_cmp_eq_u32 s2, 0'), P('s_cselect_b32 s52, 0, 1'), P('s_or_b32 s52, s52, s%d' % sW),
                  P('s_cmp_eq_u32 s52, 0'), P('s_cselect_b32 s52, 0xf0f0, 0'), P('s_mov_b32 exec_lo, s52'), P('s_mov_b32 exec_hi, 0'),
                  P('s_cbranch_execz L_TSD'),
                  VM('buffer_store_dword v252, v253, s[36:39], 0 offen'), LAB('L_TSD'), P('s_mov_b64 exec, -1')]
            return o
        return [P('v_lshlrev_b32 v252, 2, v%d' % vLANE), VM('buffer_store_dword v103, v252, s[28:31], s90 offen')]

    def dma(self, srd, voff, src_s, src_imm, lds_s, lds_imm, tag=None, st=None):
        st = st if st is not None else sT0
        ops = []
        if lds_s is None:
            ops.append(P('s_mov_b32 m0, %d' % lds_imm))
        else:
            ops.append(P('s_add_u32 m0, s%d, %d' % (lds_s, lds_imm)))
        if src_s is None:
            ops.append(P('s_mov_b32 s%d, %d' % (st, src_imm)))
        else:
            ops.append(P('s_add_u32 s%d, s%d, %d' % (st, src_s, src_imm)))
        if self.cfg.get('nodma') and srd in (SRD_WO, SRD_W1, SRD_W2):
            ops.append(P('s_nop 0'))
            return ops
        nt = ' nt' if (self.cfg.get('nt') and srd in (SRD_W1, SRD_W2)) else ''
        ops.append(VM('buffer_load_dwordx4 v%d, s[%d:%d], s%d offen%s lds' % (voff, srd, srd + 3, st, nt), tag))
        return ops

    def touch(self, srd, unit_s, imm, limit=None, only_r1=False):
        ops = []
        if limit is not None:
            ops += [P('s_add_u32 s55, s%d, %d' % (unit_s, imm[0])), P('s_cmp_lt_u32 s%d, %d' % (unit_s, limit)),
                    P('s_cselect_b32 s55, s55, 0x7ff00000')]
            if imm[1] is not None:
                ops.insert(1, P('s_add_u32 s55, s55, s%d' % imm[1]))
        else:
            ops.append(P('s_add_u32 s55, s%d, %d' % (unit_s, imm)))
        if only_r1:
            ops += [P('s_cmp_eq_u32 s%d, 0' % sRND), P('s_cselect_b32 s55, s55, 0x7ff00000')]
        ops.append(VM('buffer_load_dword v102, v%d, s[%d:%d], s55 offen' % (vL128, srd, srd + 3)))
        return ops

    def touch_w(self, name, only_r1=False):
        srd, size = {'wq': (SRD_WQ, 512 * 3072), 'wo': (SRD_WO, 524288), 'w1': (SRD_W1, 512 * 3584), 'w2': (SRD_W2, 1792 * 1024)}[name]
        return [self.touch(srd, sTUX, k * 0x100000, only_r1=only_r1) for k in range((size + 0xfffff) // 0x100000)]

    def touch_act(self, off, nbytes):
        return [self.touch(SRD_WS, sTUG, (WS_ACT + off, sST), limit=nbytes)]

    def touch_range(self, name, lo, hi, rounds='12'):
        srd = {'wq': SRD_WQ, 'wo': SRD_WO, 'w1': SRD_W1, 'w2': SRD_W2}[name]
        unit = -(-(hi - lo) // (128 * 128)) * 128
        assert unit <= 8192
        nl = unit // 128
        ops = [P('s_lshr_b32 s55, s%d, 13' % sTUX), P('s_mul_i32 s55, s55, %d' % unit), P('s_add_u32 s55, s55, %d' % lo)]
        if rounds != '12':
            ops += [P('s_cmp_eq_u32 s%d, %d' % (sRND, 0 if rounds == '1' else 1)), P('s_cselect_b32 s55, s55, 0x7ff00000')]
        if nl < 64:
            m = (1 << nl) - 1
            ops += [P('s_mov_b32 exec_lo, 0x%x' % (m & 0xffffffff)), P('s_mov_b32 exec_hi, 0x%x' % (m >> 32))]
        ops.append(VM('buffer_load_dword v102, v%d, s[%d:%d], s55 offen' % (vL128, srd, srd + 3)))
        if nl < 64:
            ops.append(P('s_mov_b64 exec, -1'))
        return ops

    def sched_touches(self, phase, first_idx):
        out = []
        for e in str(self.cfg.get('tch', '')).split('+'):
            if not e:
                continue
            f = e.split('.')
            if f[0] != phase:
                continue
            k = int(f[1]); name = f[2]
            if name == 'af1':
                ops = self.touch_act_even(131072, 458752 - 131072, '1')
            elif name == 'af2':
                ops = self.touch_act_even(131072, 458752 - 131072, '2')
            elif name in ('of', 'af', 'xf'):
                ops = self.touch_set(name)[0]
            else:
                ops = self.touch_range(name, int(f[3]) * 1024, int(f[4]) * 1024, f[5] if len(f) > 5 else '12')
            out.append((first_idx[k] + 3, ops))
        return out

    def touch_act_even(self, off, n, rounds='12'):
        unit = -(-n // (64 * 128)) * 128
        nl = unit // 128
        assert nl <= 64
        ops = [P('s_lshr_b32 s55, s%d, 13' % sTUG), P('s_mul_i32 s55, s55, %d' % unit), P('s_add_u32 s55, s55, s%d' % sST),
               P('s_add_u32 s55, s55, %d' % (WS_ACT + off))]
        if rounds != '12':
            ops += [P('s_cmp_eq_u32 s%d, %d' % (sRND, 0 if rounds == '1' else 1)), P('s_cselect_b32 s55, s55, 0x7ff00000')]
        if nl < 64:
            m = (1 << nl) - 1
            ops += [P('s_mov_b32 exec_lo, 0x%x' % (m & 0xffffffff)), P('s_mov_b32 exec_hi, 0x%x' % (m >> 32))]
        ops.append(VM('buffer_load_dword v102, v%d, s[28:31], s55 offen' % vL128))
        if nl < 64:
            ops.append(P('s_mov_b64 exec, -1'))
        return ops

    def touch_code(self, lab0, lab1, base, nl=1):
        return [P('s_lshr_b32 s55, s%d, 13' % sTUX), P('s_mul_i32 s55, s55, %d' % (nl * 128)),
                P('v_add_u32 v%d, s55, v%d' % (253, vL128)),
                P('v_add_u32 v%d, %s-L_PC, v%d' % (253, lab0, 253)),
                P('v_min_u32 v%d, %s-L_PC, v%d' % (253, lab1, 253)),
                P('s_mov_b64 exec, %d' % ((1 << nl) - 1)),
                VM('global_load_dword v102, v%d, s[%d:%d]' % (253, base, base + 1)),
                P('s_mov_b64 exec, -1')]

    def delta(self, dst, shift=7):
        if not self.cfg.get('split', 0):
            return [P('s_mov_b32 s%d, 0' % dst)]
        return [P('s_xor_b32 s%d, s%d, 4' % (dst, sCT)), P('s_sub_u32 s%d, s%d, s%d' % (dst, dst, sCT)), P('s_lshl_b32 s%d, s%d, %d' % (dst, dst, shift))]

    def touch_mall(self):
        o = [P('s_lshl_b32 s54, s2, 2'), P('s_add_u32 s54, s54, s%d' % sW)]
        for srd, first, n in ((SRD_W1, 0, 224), (SRD_W2, 256, 224), (SRD_WO, 512, 64)):
            o += [P('s_sub_u32 s55, s54, %d' % first), P('s_cmp_lt_u32 s55, %d' % n), P('s_cselect_b32 s55, s55, 0x3ff80'),
                  P('s_lshl_b32 s55, s55, 13'),
                  VM('buffer_load_dword v102, v%d, s[%d:%d], s55 offen' % (vL128, srd, srd + 3))]
        return o

    def touch_set(self, spec, only_r1=False):
        out = []
        for name in spec.split(','):
            if not name:
                continue
            if name == 'of':
                out.append(self.touch_act_even(0, 131072))
            elif name == 'af':
                out.append(self.touch_act_even(131072, 458752 - 131072))
            elif name == 'xf':
                out.append(self.touch_act_even(458752, 139264))
            else:
                out += self.touch_w(name, only_r1)
        return out

    def dma_wq_quarter(self, qd, panels=(0, 1, 2), src=None):
        out = []
        for a in range(2):
            for p in panels:
                rg = 8 * qd + 4 * a
                out.append(self.dma(SRD_WQ, vDQ, src if src is not None else sWQ_SRC, rg * 49152 + p * 1024, sW1K, L_W + p * 32768 + rg * 1024))
        return out

    def dma_wo_slot(self, srd, nk, t, kh, pos):
        js = kh * nk + t
        return self.dma(srd, vDO, sWO_SRC, js * 32768, sW1K, L_W + (2 * pos + kh) * 4096)

    def dma_w1_group(self, a):
        out = []
        for u in range(7):
            out.append(self.dma(SRD_W1, vD1 + u, sW1_SRC, a * 4 * 32 * 3584, sW1_M, L_W1P[a] + u * 1024))
        return out

    def window_loop(self, n0, n1, srd, srcA_s, srcA_imm, srcB, ldsC, ldsD, subs):
        lab = self.L('win'); end = self.L('winend')
        o = [P('s_add_u32 s%d, s%d, %d' % (sIT, sW, n0 - 1)),
             P('s_cmp_ge_u32 s%d, %d' % (sIT, n1)),
             P('s_cbranch_scc1 %s' % end),
             LAB(lab),
             P('s_mul_i32 s%d, s%d, %d' % (sA, sIT, srcB))]
        if srcA_s is not None:
            o.append(P('s_add_u32 s%d, s%d, s%d' % (sA, sA, srcA_s)))
        o.append(P('s_add_u32 s%d, s%d, %d' % (sA, sA, srcA_imm)))
        o.append(P('s_mul_i32 s%d, s%d, %d' % (sB, sIT, ldsD)))
        for (voff, so, lo) in subs:
            o.append(P('s_add_u32 m0, s%d, %d' % (sB, ldsC + lo)))
            o.append(P('s_add_u32 s%d, s%d, %d' % (sT0, sA, so)))
            nt = ' nt' if (self.cfg.get('nt') and srd in (SRD_W1, SRD_W2)) else ''
            if self.cfg.get('nodma'):
                o.append(P('s_nop 0'))
            else:
                o.append(P('buffer_load_dwordx4 v%d, s[%d:%d], s%d offen%s lds' % (voff, srd, srd + 3, sT0, nt)))
        o += [P('s_add_u32 s%d, s%d, 3' % (sIT, sIT)),
              P('s_cmp_lt_u32 s%d, %d' % (sIT, n1)),
              P('s_cbranch_scc1 %s' % lab),
              LAB(end)]
        return o

    def win_wq(self, rg0, rg1):
        return [P('s_lshl_b32 s%d, s%d, 6' % (sC, sM))] + self.window_loop(
            rg0, rg1, SRD_WQ, sC, 0, 49152, L_W, 1024, [(vDQ, p * 1024, p * 32768) for p in range(3)])

    def win_wo(self, srd, nk, t0, t1, dpos=0):
        subs = []
        for kh in range(2):
            for q in range(4):
                subs.append((vDO, kh * nk * 32768 + q * 8192, kh * 4096 + q * 1024))
        return [P('s_lshl_b32 s%d, s%d, 7' % (sC, sCT))] + self.window_loop(
            t0, t1, srd, sC, 0, 32768, L_W + dpos * 8192, 8192, subs)

    def win_w1(self, j0, j1):
        a = j0 // 4
        base = L_W1P[a] - j0 * 7168
        for j in range(j0, j1):
            assert L_W1P[j // 4] + (j % 4) * 7168 == base + j * 7168
        return [P('s_mul_i32 s%d, s%d, 224' % (sC, sM))] + self.window_loop(
            j0, j1, SRD_W1, sC, 0, 32 * 3584, base, 7168, [(vD1 + u, 0, u * 1024) for u in range(7)])

    def gemm_loop(self, groups, LA, extras):
        out = []
        n = len(groups)
        for k in range(min(LA, n)):
            out += groups[k].get('pre', []) + groups[k]['reads']
        flat = []
        for gi, g in enumerate(groups):
            rq = []
            if gi + LA < n:
                rq = list(groups[gi + LA].get('pre', [])) + list(groups[gi + LA]['reads'])
            nm = len(g['mf'])
            chunks = [[] for _ in range(nm)]
            reads_total = sum(1 for x in rq if x.kind == 'lg')
            per = max(1, -(-reads_total // nm))
            c = 0; cnt = 0
            for x in rq:
                chunks[min(c, nm - 1)].append(x)
                if x.kind == 'lg':
                    cnt += 1
                    if cnt == per:
                        cnt = 0; c += 1
            for k, (text, waits) in enumerate(g['mf']):
                w = list(waits)
                if k == 0:
                    w += [x.tag for x in g['reads']]
                flat.append((text, w, g.get('premf', []) if k == 0 else [], chunks[k]))
        extras = sorted(extras, key=lambda e: e[0])
        ei = 0
        for idx, (text, w, premf, chunk) in enumerate(flat):
            if idx == 0:
                out += premf + [W(w)]
            out.append(P(text))
            if idx + 1 < len(flat):
                out += flat[idx + 1][2]
                out.append(W(flat[idx + 1][1]))
            out += chunk
            k = 0
            while ei < len(extras) and extras[ei][0] <= idx and k < self.cfg.get('extra_per', 1):
                out += extras[ei][1]
                ei += 1; k += 1
        while ei < len(extras):
            out += extras[ei][1]; ei += 1
        return out

    @staticmethod
    def flat(ops):
        out = []
        for x in ops:
            if x is None:
                continue
            if isinstance(x, (list, tuple)):
                out += Gen.flat(x)
            else:
                out.append(x)
        return out

    def spread(self, ops, start, step=1, nvec=1):
        out = []; cur = []; nv = 0; at = start
        ops = self.flat(ops)
        for i, x in enumerate(ops):
            cur.append(x)
            t = x.text or ''
            if t.startswith('v_') or t.startswith('buffer_') or t.startswith('ds_'):
                nv += 1
                nxt = (ops[i + 1].text or '') if i + 1 < len(ops) else ''
                glued = (t.startswith('v_cmp') and ' vcc,' in t) or (nxt.startswith('v_cndmask') and nxt.rstrip().endswith('vcc'))
                if nv >= nvec and not glued:
                    out.append((at, cur)); cur = []; nv = 0; at += step
        if cur:
            out.append((at, cur))
        return out

    def afrag(self, n):
        return vAF + (n % NAF) * 4

    def prologue(self):
        cfg = self.cfg
        o = self.add
        o(P('s_cmp_ge_u32 s2, 256'), P('s_cbranch_scc1 L_END'))
        if cfg.get('ts'):
            o(P('v_mov_b32 v103, 0'), self.ts(13))
            if cfg.get('dbgts'):
                o(P('s_memrealtime s[92:93]'), P('s_waitcnt lgkmcnt(0)'), P('v_writelane_b32 v103, s92, 12'))
        o(P('s_load_dwordx16 s[72:87], s[0:1], 0'), P('s_load_dwordx4 s[88:91], s[0:1], 64'))
        if cfg.get('t_code', 1):
            nl = cfg.get('code_nl', 2 if cfg.get('code_staged', 1) else 3)
            o(P('s_getpc_b64 s[50:51]'), LAB('L_PC'),
              P('s_lshr_b32 s52, s2, 3'), P('s_mul_i32 s52, s52, %d' % (4 * nl)),
              P('v_lshrrev_b32 v252, 6, v0'), P('v_mul_u32_u24 v252, %d, v252' % nl), P('v_and_b32 v253, 63, v0'),
              P('v_add3_u32 v252, v252, v253, s52'), P('v_lshlrev_b32 v252, 7, v252'),
              P('v_min_u32 v252, %s-L_PC, v252' % ('L_C2' if cfg.get('code_staged', 1) else 'L_END')),
              P('s_mov_b64 exec, %d' % ((1 << nl) - 1)),
              VM('global_load_dword v102, v252, s[50:51]'),
              P('s_mov_b64 exec, -1'))
        o(P('s_getreg_b32 s%d, hwreg(HW_REG_XCC_ID, 0, 4)' % sXCC))
        o(P('s_and_b32 s52, s2, 7'), P('s_lshr_b32 s53, s2, 3'), P('s_lshr_b32 s54, s53, 4'),
          P('s_lshl_b32 s%d, s52, 1' % sG), P('s_add_u32 s%d, s%d, s54' % (sG, sG)),
          P('s_and_b32 s%d, s53, 15' % sM))
        if cfg.get('cross_groups'):
            o(P('s_lshr_b32 s%d, s2, 4' % sG), P('s_and_b32 s%d, s2, 15' % sM))
        o(P('v_lshrrev_b32 v252, 6, v0'), P('v_and_b32 v%d, 63, v0' % vLANE), P('v_readfirstlane_b32 s%d, v252' % sW))
        I = 250; Gq = 251; RR = 249; I3 = 248; t0 = 252; t1 = 253; t2 = 254; t3 = 255
        o(P('v_lshlrev_b32 v%d, 7, v%d' % (vL128, vLANE)), P('v_lshlrev_b32 v%d, 4, v%d' % (vL16, vLANE)))
        o(P('v_lshrrev_b32 v%d, 2, v%d' % (t0, vLANE)), P('v_lshrrev_b32 v%d, 2, v%d' % (t1, t0)),
          P('v_xor_b32 v%d, v%d, v%d' % (t1, t1, vLANE)), P('v_and_b32 v%d, 3, v%d' % (t1, t1)),
          P('v_lshlrev_b32 v%d, 4, v%d' % (t1, t1)),
          P('v_lshl_add_u32 v%d, v%d, 11, v%d' % (vDX, t0, t1)))
        o(P('v_lshlrev_b32 v%d, 1, v%d' % (t2, t0)), P('v_add_u32 v%d, 16, v%d' % (t3, t2)), P('v_add_u32 v%d, 1, v%d' % (t2, t2)),
          P('v_cmp_gt_u32 vcc, 8, v%d' % t0),
          P('s_lshr_b32 s%d, s%d, 3' % (sTH, sM)), P('s_and_b32 s%d, s%d, 7' % (sCT, sM)),
          P('v_cndmask_b32 v%d, v%d, v%d, vcc' % (t2, t2, t3)),
          P('v_lshl_add_u32 v%d, v%d, 10, v%d' % (vDH, t2, t1)),
          P('s_cmp_eq_u32 s%d, 0' % sG), P('s_cselect_b32 s53, 0x40000000, 0'), P('v_or_b32 v%d, s53, v%d' % (vDH, vDH)))
        o(P('v_lshrrev_b32 v%d, 4, v%d' % (t1, vLANE)), P('v_lshrrev_b32 v%d, 1, v%d' % (t2, vLANE)),
          P('v_xor_b32 v%d, v%d, v%d' % (t1, t1, t2)), P('v_and_b32 v%d, 1, v%d' % (t1, t1)),
          P('v_lshlrev_b32 v%d, 5, v%d' % (t1, t1)), P('v_and_b32 v%d, 1, v%d' % (t2, vLANE)),
          P('v_lshl_add_u32 v%d, v%d, 4, v%d' % (t1, t2, t1)),
          P('v_mul_u32_u24 v%d, 3072, v%d' % (t2, t0)), P('v_add_u32 v%d, v%d, v%d' % (vDQ, t1, t2)))
        o(P('s_mov_b32 s%d, 0' % sRND), P('s_mov_b32 s%d, 0' % sMODE),
          P('s_mul_i32 s%d, s%d, 49152' % (sWQ_SRC, sW)), P('s_lshl_b32 s52, s%d, 6' % sM),
          P('s_add_u32 s%d, s%d, s52' % (sWQ_SRC, sWQ_SRC)),
          P('s_lshl_b32 s%d, s%d, 10' % (sW1K, sW)),
          P('s_lshl_b32 s%d, s%d, 13' % (sWO_SRC, sW)), P('s_and_b32 s52, s%d, %d' % (sCT, 3 if cfg.get('split', 0) else 7)), P('s_lshl_b32 s52, s52, 7'),
          P('s_add_u32 s%d, s%d, s52' % (sWO_SRC, sWO_SRC)),
          P('s_mul_i32 s%d, s%d, %d' % (sW1_SRC, sW, 32 * 3584)), P('s_mul_i32 s52, s%d, 224' % sM),
          P('s_add_u32 s%d, s%d, s52' % (sW1_SRC, sW1_SRC)),
          P('s_mul_i32 s%d, s%d, 7168' % (sW1_M, sW)),
          P('s_lshl_b32 s%d, s%d, 8' % (sGFLG, sG)),
          P('s_lshl_b32 s52, s%d, 2' % sM), P('s_add_u32 s52, s52, s%d' % sW), P('s_lshl_b32 s52, s52, 2'),
          P('s_add_u32 s%d, s%d, s52' % (sFLGOFF, sGFLG)),
          P('s_and_b32 s52, s%d, 1' % sG), P('s_lshl_b32 s52, s52, 4'), P('s_add_u32 s52, s52, s%d' % sM),
          P('s_lshl_b32 s52, s52, 2'), P('s_add_u32 s52, s52, s%d' % sW), P('s_lshl_b32 s%d, s52, 13' % sTUX),
          P('s_mul_i32 s94, s52, 2176'),
          P('s_lshl_b32 s52, s%d, 2' % sM), P('s_add_u32 s52, s52, s%d' % sW), P('s_lshl_b32 s%d, s52, 13' % sTUG),
          P('s_mul_i32 s%d, s%d, %d' % (sST, sG, ACT_G)),
          P('s_andn2_b32 s52, s%d, 1' % sG), P('s_lshl_b32 s52, s52, 17'), P('s_sub_u32 s52, s52, 16384'),
          P('s_max_i32 s52, s52, 0'), P('s_add_u32 s94, s94, s52'),
          P('s_lshl_b32 s52, s%d, 7' % sG), P('s_sub_u32 s53, s52, 32'), P('s_lshl_b32 s97, s53, 10'),
          P('s_cmp_eq_u32 s%d, 0' % sG), P('s_cselect_b32 s97, 0, s97'), P('s_lshl_b32 s53, s%d, 6' % sW), P('s_add_u32 s97, s97, s53'))
        for b in range(2):
            o(P('s_lshl_b32 s53, s%d, 1' % sW), P('s_add_u32 s53, s53, %d' % b), P('s_and_b32 s53, s53, 3'),
              P('s_lshl_b32 s53, s53, 5'), P('s_add_u32 s53, s53, s52'), P('s_lshr_b32 s54, s%d, 1' % sW),
              P('s_add_u32 s53, s53, s54'), P('s_lshl_b32 s%d, s53, 10' % (95 + b)))
        o(P('s_lshl_b32 s98, s%d, 11' % sW))
        o(P('s_waitcnt lgkmcnt(0)'))
        if cfg.get('pts') == 1:
            o(self.ts(14))
        def srd(dst, src, size):
            return [P('s_mov_b32 s%d, s%d' % (dst, src)), P('s_and_b32 s%d, s%d, 0xffff' % (dst + 1, src + 1)),
                    P('s_mov_b32 s%d, 0x%x' % (dst + 2, size)), P('s_mov_b32 s%d, 0x20000' % (dst + 3))]
        o(srd(SRD_X, 72, 2097152), srd(SRD_WQ, 74, 512 * 3072))
        tp = cfg.get('t_pro', 1)
        def tq(q):
            return self.touch_range('wq', q * 393216, (q + 1) * 393216) if tp else []
        if tp:
            o(P('s_mov_b32 exec_lo, 0x1ffff'), P('s_mov_b32 exec_hi, 0'),
              VM('buffer_load_dword v102, v%d, s[8:11], s94 offen' % vL128), P('s_mov_b64 exec, -1'))
        two = cfg.get('two_stage', 0)
        if two:
            o(P('s_lshl_b32 s55, s2, 2'), P('s_add_u32 s55, s55, s%d' % sW), P('s_mul_i32 s55, s55, 1536'),
              P('s_mov_b32 exec_lo, 0xfff'), P('s_mov_b32 exec_hi, 0'),
              VM('buffer_load_dword v102, v%d, s[12:15], s55 offen' % vL128), P('s_mov_b64 exec, -1'))
            self.late_t = [tq(0), tq(1)]
        else:
            o(tq(0), tq(1))
            self.late_t = []
        allfirst = cfg.get('cold', 'A') == 'A'
        coldD = cfg.get('cold', 'A') in ('D', 'E')
        if allfirst:
            o(tq(2), tq(3))
        if coldD:
            o(tq(2))
        o(srd(SRD_WO, 76, 524288), srd(SRD_W1, 80, 512 * 3584), srd(SRD_B1, 82, 3584), srd(SRD_W2, 84, 1792 * 1024),
          srd(SRD_OUT, 86, 2097152), srd(SRD_DBG, 88, 256), srd(SRD_WS, 90, WS_SIZE))
        o(P('s_mov_b32 s%d, s95' % sXR0), P('s_mov_b32 s%d, s96' % sXR1), P('s_mov_b32 s%d, s97' % sHSRC), P('s_mov_b32 s%d, s98' % sD))
        o(P('s_and_b32 s52, s%d, 1' % sG), P('s_lshl_b32 s52, s52, 3'), P('s_add_u32 s52, s52, s%d' % sM),
          P('s_and_b32 s99, s52, %d' % (15 if cfg.get('rot', 0) else 0)), P('s_lshl_b32 s98, s99, 1'), P('s_add_u32 s98, s98, s%d' % sW),
          P('s_lshl_b32 s95, s%d, 6' % sM), P('s_lshl_b32 s52, s%d, 6' % sW), P('s_sub_u32 s%d, s%d, s52' % (sHSRC, sHSRC)))
        self.tq = (lambda q: []) if (allfirst or coldD) else tq
        self.tq3 = tq(3) if coldD else None
        if cfg.get('t_mall', 0) == 1:
            o(self.touch_mall())
        if cfg.get('prezero'):
            o(P('v_mov_b32 v244, 0'), P('v_mov_b32 v245, 0'), P('v_mov_b32 v246, 0'), P('v_mov_b32 v247, 0'),
              P('s_lshr_b32 s55, s%d, 13' % sTUG), P('s_mul_i32 s55, s55, 9344'), P('s_add_u32 s55, s55, s%d' % sST), P('s_add_u32 s55, s55, %d' % WS_ACT))
            for k in range(9):
                if k % 4 == 0 and k:
                    o(P('s_add_u32 s55, s55, 4096'))
                o(VM('buffer_store_dwordx4 v[244:247], v%d, s[28:31], s55 offen offset:%d sc1' % (vL16, (k % 4) * 1024)))
            o(P('s_mov_b64 exec, 0xff'), VM('buffer_store_dwordx4 v[244:247], v%d, s[28:31], s55 offen offset:1024 sc1' % vL16), P('s_mov_b64 exec, -1'))
        self.tag_init = newtag('init')
        o(P('v_mov_b32 v%d, 0' % t1), P('s_mov_b64 exec, 1'),
          VM('buffer_store_dword v%d, v%d, s[28:31], s%d offen sc1' % (t1, t1, sFLGOFF), self.tag_init),
          P('s_mov_b64 exec, -1'))
        if cfg.get('pts') == 1:
            o(self.ts(15))
        o(P('v_and_b32 v%d, 15, v%d' % (I, vLANE)), P('v_lshrrev_b32 v%d, 4, v%d' % (Gq, vLANE)),
          P('v_lshrrev_b32 v%d, 2, v%d' % (t0, I)), P('v_lshl_add_u32 v%d, v%d, 2, v%d' % (RR, Gq, t0)),
          P('v_and_b32 v%d, 3, v%d' % (I3, I)))
        for k in range(4):
            o(P('v_mov_b32 v%d, 0x3f803f80' % (vONES + k)))
        o(P('v_lshlrev_b32 v%d, 6, v%d' % (t0, RR)), P('v_lshl_add_u32 v%d, v%d, 3, v%d' % (t0, I3, t0)),
          P('v_add_u32 v%d, %d, v%d' % (t0, L_W, t0)),
          P('v_and_b32 v%d, 1, v%d' % (t1, Gq)), P('v_lshlrev_b32 v%d, 5, v%d' % (t1, t1)),
          P('v_add_u32 v%d, v%d, v%d' % (vWQA, t0, t1)),
          P('v_xor_b32 v%d, 32, v%d' % (t2, t1)), P('v_add_u32 v%d, v%d, v%d' % (vWQA + 1, t0, t2)),
          P('v_add_u32 v%d, 0x10000, v%d' % (vWQA + 2, vWQA)), P('v_add_u32 v%d, 0x10000, v%d' % (vWQA + 3, vWQA + 1)))
        o(P('s_and_b32 s53, s%d, 1' % sW), P('s_lshl_b32 s53, s53, 5'), P('v_xor_b32 v%d, s53, v%d' % (t2, t1)),
          P('v_add_u32 v%d, v%d, v%d' % (vE2, t0, t2)),
          P('s_lshr_b32 s53, s%d, 1' % sW), P('s_add_u32 s53, s53, 1'), P('s_lshl_b32 s53, s53, 15'),
          P('v_add_u32 v%d, s53, v%d' % (vE1, vE2)))
        o(P('v_lshrrev_b32 v%d, 1, v%d' % (t0, Gq)), P('v_lshrrev_b32 v%d, 2, v%d' % (t1, I)),
          P('v_xor_b32 v%d, v%d, v%d' % (t0, t0, t1)), P('v_lshlrev_b32 v%d, 4, v%d' % (t0, t0)),
          P('v_lshl_add_u32 v%d, v%d, 6, v%d' % (t0, I, t0)),
          P('v_and_b32 v%d, 1, v%d' % (t1, Gq)), P('v_lshl_add_u32 v%d, v%d, 3, v%d' % (t0, t1, t0)),
          P('v_add_u32 v%d, %d, v%d' % (vHXA, L_HALO, t0)), P('v_xor_b32 v%d, 32, v%d' % (vHXB, vHXA)),
          P('s_lshl_b32 s53, s%d, 11' % sW), P('s_add_u32 s53, s53, %d' % L_RING),
          P('v_add_u32 v%d, s53, v%d' % (vXA, t0)), P('v_xor_b32 v%d, 32, v%d' % (vXB, vXA)))
        o(P('v_cmp_eq_u32 s[%d:%d], 1, v%d' % (sMA, sMA + 1, I3)), P('v_cmp_eq_u32 s[%d:%d], 2, v%d' % (sMB, sMB + 1, I3)),
          P('v_cmp_eq_u32 s[%d:%d], 3, v%d' % (sMC, sMC + 1, I3)), P('v_lshrrev_b32 v%d, 2, v%d' % (t0, I)),
          P('v_cmp_eq_u32 s[%d:%d], v%d, v%d' % (sMD, sMD + 1, t0, Gq)))
        o(P('v_lshlrev_b32 v%d, 4, v%d' % (vCS, Gq)))
        o(P('s_lshl_b32 s%d, s%d, 17' % (sGBASE, sG)),
          P('s_lshl_b32 s52, s%d, 2' % sTH), P('s_add_u32 s%d, s52, s%d' % (sTB, sW)))
        if cfg.get('ts'):
            o(P('s_lshl_b32 s52, s2, 2'), P('s_add_u32 s52, s52, s%d' % sW), P('s_lshl_b32 s52, s52, 8'),
              P('s_add_u32 s%d, s52, %d' % (sTSO, 0x1F80000)))
        su = self.setup2()
        su = self.flat(su)
        cut = len(su) * cfg.get('two_cut', 100) // 100
        while cut < len(su) and not (su[cut - 1].text.startswith('v_') and su[cut].text.startswith('v_') and 'vcc' not in su[cut - 1].text + su[cut].text
                                     and ' s' not in su[cut].text):
            cut += 1
        o(su[:cut], self.late_t, su[cut:])
        if cfg.get('pts') == 1:
            o(self.ts(29))
        self.xslot = {}; self.wq_q = {}; self.halo_dma = []
        for j in range(16):
            self.xslot[j] = self.x_ring_dma(j)
        for q in range(4):
            self.wq_q[q] = self.wq_rot_quarter(q)
        for a in range(4):
            if not cfg.get('rot', 0):
                self.halo_dma.append(self.dma(SRD_X, vDH, 97, a * 256, sW1K, L_HALO + a * 4096))
                continue
            self.halo_dma.append([P('s_add_u32 m0, s%d, %d' % (sW1K, L_HALO + a * 4096)), P('s_add_u32 s52, s99, s%d' % sW), P('s_add_u32 s52, s52, %d' % (4 * a)),
                                  P('s_and_b32 s52, s52, 15'), P('s_lshl_b32 s52, s52, 6'), P('s_add_u32 s52, s52, s%d' % sHSRC),
                                  VM('buffer_load_dwordx4 v%d, s[8:11], s52 offen lds' % vDH)])
        o(self.xslot[0], self.wq_q[0], self.halo_dma[0], self.xslot[1])
        if cfg.get('pts') == 1:
            o(self.ts(30))

    def setup2(self):
        I = 228; Gq = 229; RR = 230; I3 = 231; t0 = 232; t1 = 233; t2 = 234; t3 = 235; tr = 236
        o = []
        o += [P('v_and_b32 v%d, 15, v%d' % (I, vLANE)), P('v_lshrrev_b32 v%d, 4, v%d' % (Gq, vLANE)),
              P('v_lshrrev_b32 v%d, 2, v%d' % (t0, I)), P('v_lshl_add_u32 v%d, v%d, 2, v%d' % (RR, Gq, t0)),
              P('v_and_b32 v%d, 3, v%d' % (I3, I))]
        o += [P('v_lshrrev_b32 v%d, 3, v%d' % (t0, vLANE)), P('v_lshrrev_b32 v%d, 1, v%d' % (t1, t0)),
              P('v_lshrrev_b32 v%d, 1, v%d' % (t2, vLANE)), P('v_xor_b32 v%d, v%d, v%d' % (t1, t1, t2)),
              P('v_and_b32 v%d, 3, v%d' % (t1, t1)), P('v_lshlrev_b32 v%d, 5, v%d' % (t1, t1)),
              P('v_and_b32 v%d, 1, v%d' % (t2, vLANE)), P('v_lshl_add_u32 v%d, v%d, 4, v%d' % (t1, t2, t1)),
              P('v_lshl_add_u32 v%d, v%d, 10, v%d' % (vDO, t0, t1))]
        if self.cfg.get('split', 0):
            o += [P('s_and_b32 s80, s%d, 4' % sCT), P('s_lshl_b32 s80, s80, 7'), P('s_xor_b32 s81, s80, 512'),
                  P('v_add_u32 v%d, s81, v%d' % (t2, vDO)), P('v_add_u32 v%d, s80, v%d' % (vDO, vDO)),
                  P('v_and_b32 v%d, 64, v%d' % (t1, t1)), P('v_cmp_ne_u32 vcc, 0, v%d' % t1),
                  P('v_cndmask_b32 v%d, v%d, v%d, vcc' % (vDO, vDO, t2))]
        for c in range(448):
            assert (c * 4682) >> 16 == c // 14
        for u in range(7):
            o += [P('v_add_u32 v%d, %d, v%d' % (t0, 64 * u, vLANE)), P('v_mul_u32_u24 v%d, 4682, v%d' % (t1, t0)),
                  P('v_lshrrev_b32 v%d, 16, v%d' % (t1, t1)), P('v_mul_u32_u24 v%d, 14, v%d' % (t2, t1)),
                  P('v_sub_u32 v%d, v%d, v%d' % (t2, t0, t2)), P('v_lshlrev_b32 v%d, 4, v%d' % (t2, t2)),
                  P('v_mul_u32_u24 v%d, 3584, v%d' % (t1, t1)), P('v_add_u32 v%d, v%d, v%d' % (vD1 + u, t1, t2))]
        o += [P('s_lshl_b32 s80, s%d, 7' % sG), P('s_lshl_b32 s81, s%d, 5' % sW), P('s_add_u32 s80, s80, s81'), P('s_add_u32 s80, s80, s%d' % sTH),
              P('s_lshl_b32 s80, s80, 10'), P('s_lshl_b32 s81, s%d, 7' % sCT), P('s_add_u32 s61, s80, s81'),
              P('v_lshlrev_b32 v%d, 11, v%d' % (t1, I)), P('v_lshl_add_u32 v%d, v%d, 3, v%d' % (tr, Gq, t1))]
        self.tag_res = [newtag('res') for _ in range(4)]
        self.res_ops = []
        for fb in range(4):
            pre = (self.delta(55) + [P('s_add_u32 s55, s55, s61')]) if fb >= 2 else []
            self.res_ops.append(pre + [VM('buffer_load_dwordx2 v[%d:%d], v%d, s[8:11], s%d offen offset:%d' % (vR + 2 * fb, vR + 2 * fb + 1, tr, 55 if fb >= 2 else 61, fb * 32), self.tag_res[fb])])
        self.tag_b1 = newtag('b1')
        self.b1_op = [P('v_lshlrev_b32 v%d, 2, v%d' % (237, vLANE)), P('s_mul_i32 s80, s%d, 224' % sM),
                      VM('buffer_load_dword v247, v237, s[40:43], s80 offen', self.tag_b1)]
        o += [P('v_and_b32 v%d, 1, v%d' % (t2, Gq)), P('v_lshlrev_b32 v%d, 5, v%d' % (t2, t2)),
              P('v_lshrrev_b32 v%d, 1, v%d' % (t3, Gq)), P('v_lshl_add_u32 v%d, v%d, 4, v%d' % (t2, t3, t2)),
              P('v_lshl_add_u32 v%d, v%d, 11, v%d' % (vOUT, I, t2))]
        o += [P('s_mov_b32 s%d, 1.0' % sONE), P('s_mov_b32 s%d, 1.0' % (sONE + 1)),
              P('s_mov_b32 s%d, %s' % (sM2L, f32(-2 * LN2))), P('s_mov_b32 s%d, %s' % (sM2L + 1, f32(-2 * LN2))),
              P('v_mov_b32 v%d, %s' % (vLN2, f32(LN2))), P('v_mov_b32 v%d, %s' % (vLN2 + 1, f32(LN2)))]
        o += [P('v_mul_u32_u24 v%d, 224, v%d' % (t0, RR)), P('v_lshl_add_u32 v%d, v%d, 3, v%d' % (vW1A, I3, t0)),
              P('v_add_u32 v%d, 0x10000, v%d' % (vW1A + 1, vW1A)), P('v_add_u32 v%d, 0x20000, v%d' % (vW1A + 2, vW1A))]
        o += [P('v_lshlrev_b32 v%d, 7, v%d' % (t0, RR)), P('v_lshl_add_u32 v%d, v%d, 3, v%d' % (t0, I3, t0)),
              P('s_and_b32 s80, s%d, 1' % sW), P('s_lshl_b32 s80, s80, 12'), P('s_add_u32 s80, s80, %d' % L_W),
              P('v_add_u32 v%d, s80, v%d' % (t0, t0)),
              P('v_lshrrev_b32 v%d, 1, v%d' % (t1, RR)), P('v_and_b32 v%d, 3, v%d' % (t1, t1))]
        for fb in range(4):
            o += [P('v_xor_b32 v%d, %d, v%d' % (t2, fb, t1)), P('v_lshl_add_u32 v%d, v%d, 5, v%d' % (vW2A + fb * 3, t2, t0)),
                  P('v_add_u32 v%d, 0x10000, v%d' % (vW2A + fb * 3 + 1, vW2A + fb * 3)),
                  P('v_add_u32 v%d, 0x20000, v%d' % (vW2A + fb * 3 + 2, vW2A + fb * 3))]
        NEG = f32(-1e30)
        o += [P('v_mov_b32 v%d, %s' % (t3, NEG))]
        for r in range(4):
            o += [P('v_lshl_add_u32 v%d, v%d, 2, %d' % (t0, Gq, r)),
                  P('v_sub_u32 v%d, v%d, v%d' % (t1, I, t0)), P('v_cmp_gt_u32 vcc, 8, v%d' % t1),
                  P('v_cndmask_b32_e64 v%d, v%d, 0, vcc' % (vCCUR + r, t3)),
                  P('v_add_u32 v%d, 9, v%d' % (t1, I)), P('v_cmp_ge_u32 vcc, v%d, v%d' % (t0, t1)),
                  P('v_cndmask_b32_e64 v%d, v%d, 0, vcc' % (vCPREV + r, t3))]
        o += [P('s_and_b32 s80, s%d, 1' % sW), P('s_or_b32 s80, s80, s%d' % sG), P('s_cmp_eq_u32 s80, 0'), P('s_cselect_b64 vcc, -1, 0')]
        for r in range(4):
            o.append(P('v_cndmask_b32 v%d, v%d, v%d, vcc' % (vCPA + r, vCPREV + r, t3)))
        o += [P('v_lshlrev_b32 v%d, 2, v%d' % (t0, Gq)), P('v_add_u32 v%d, 6, v%d' % (t1, I)),
              P('v_cmp_ge_u32 s[%d:%d], v%d, v%d' % (sUP, sUP + 1, t0, t1))]
        o += [P('v_lshlrev_b32 v%d, 5, v%d' % (t0, I)), P('v_lshl_add_u32 v%d, v%d, 3, v%d' % (t0, Gq, t0)),
              P('s_lshl_b32 s80, s%d, 11' % sW), P('s_add_u32 s80, s80, %d' % L_EX), P('v_add_u32 v%d, s80, v%d' % (vEXV, t0))]
        o += [P('s_lshr_b32 s80, s%d, 1' % sW), P('s_add_u32 s81, s80, 3'), P('s_bitcmp1_b32 s%d, 0' % sW),
              P('s_cselect_b32 s80, s81, s80'), P('s_lshl_b32 s80, s80, 10'), P('s_add_u32 s80, s80, %d' % L_EXK),
              P('v_lshlrev_b32 v%d, 3, v%d' % (t1, vLANE)), P('v_add_u32 v%d, s80, v%d' % (vEXK, t1))]
        o += [P('s_and_b32 s80, s%d, 1' % sW), P('s_lshl_b32 s80, s80, 9'),
              P('s_add_u32 s81, s80, %d' % (L_EXK + 2048)), P('v_add_u32 v%d, s81, v%d' % (t2, t1)),
              P('s_add_u32 s81, s80, %d' % (L_EX + 8192)), P('v_add_u32 v%d, s81, v%d' % (t3, t0)),
              P('s_cmp_ge_u32 s%d, 2' % sW), P('s_cselect_b64 vcc, -1, 0'),
              P('v_cndmask_b32 v%d, v%d, v%d, vcc' % (vEXH, t2, t3))]
        o += [P('v_lshlrev_b32 v%d, 5, v%d' % (t0, RR)), P('v_lshl_add_u32 v%d, v%d, 3, v%d' % (t0, I3, t0)),
              P('s_lshl_b32 s80, s%d, 11' % sW), P('s_add_u32 s80, s80, %d' % L_EX), P('v_add_u32 v%d, s80, v%d' % (vRV, t0))]
        o += [P('v_subrev_u32 v%d, 1024, v%d' % (t1, vRV)),
              P('v_add_u32 v%d, %d, v%d' % (t2, L_EX + 8192, t0)),
              P('v_subrev_u32 v%d, 256, v%d' % (t3, t2)),
              P('v_cmp_le_u32 vcc, 8, v%d' % RR), P('v_cndmask_b32 v%d, v%d, v%d, vcc' % (t3, t2, t3)),
              P('s_cmp_eq_u32 s%d, 0' % sW), P('s_cselect_b64 vcc, -1, 0'), P('v_cndmask_b32 v%d, v%d, v%d, vcc' % (t2, t2, t3)),
              P('s_bitcmp1_b32 s%d, 0' % sW), P('s_cselect_b64 vcc, -1, 0'), P('v_cndmask_b32 v%d, v%d, v%d, vcc' % (vRVP, t2, t1))]
        o += [P('v_lshlrev_b32 v%d, 3, v%d' % (t0, vLANE)),
              P('s_lshr_b32 s80, s%d, 1' % sW), P('s_bitcmp1_b32 s%d, 0' % sW), P('s_cselect_b32 s80, s80, 2'),
              P('s_lshl_b32 s80, s80, 10'), P('s_add_u32 s80, s80, %d' % L_EXK), P('v_add_u32 v%d, s80, v%d' % (t0, t0)),
              P('v_subrev_u32 v%d, 64, v%d' % (t1, t0)), P('v_cmp_le_u32 vcc, 8, v%d' % I),
              P('v_cndmask_b32 v%d, v%d, v%d, vcc' % (t1, t0, t1)),
              P('s_cmp_eq_u32 s%d, 0' % sW), P('s_cselect_b64 vcc, -1, 0'), P('v_cndmask_b32 v%d, v%d, v%d, vcc' % (vRK, t0, t1))]
        o += [P('s_lshl_b32 s80, s%d, 12' % sW), P('v_add_u32 v%d, s80, v%d' % (vEXBW, vL16)),
              P('v_xor_b32 v%d, 0x1000, v%d' % (vEXBR, vEXBW))]
        o += [P('s_lshr_b32 s80, s%d, 1' % sCT), P('s_lshl_b32 s80, s80, 8'), P('s_and_b32 s81, s%d, 1' % sCT),
              P('s_lshl_b32 s81, s81, 3'), P('s_add_u32 s80, s80, s81'),
              P('v_lshlrev_b32 v%d, 4, v%d' % (t0, I)), P('v_add_u32 v%d, s80, v%d' % (vSTO, t0))]
        o += [P('s_cmp_eq_u32 s%d, 0' % sTH), P('s_cselect_b32 s81, 8, 0'),
              P('v_subrev_u32 v%d, s81, v%d' % (t0, I)),
              P('v_lshl_add_u32 v%d, v%d, 4, v%d' % (t1, Gq, t0)), P('v_lshlrev_b32 v%d, 4, v%d' % (t1, t1)),
              P('v_lshlrev_b32 v%d, 4, v%d' % (t2, t0)), P('v_add_u32 v%d, s80, v%d' % (t2, t2)),
              P('s_cmp_eq_u32 s%d, 3' % sW), P('s_cselect_b32 s80, 0, 0x40000000'),
              P('s_cmp_eq_u32 s%d, 15' % sG), P('s_cselect_b32 s80, 0x40000000, s80'),
              P('v_mov_b32 v%d, 0x40000000' % t3), P('v_cmp_le_u32 vcc, 8, v%d' % I),
              P('v_cndmask_b32 v%d, v%d, v%d, vcc' % (t1, t3, t1)), P('v_cndmask_b32 v%d, v%d, v%d, vcc' % (t2, t3, t2)),
              P('v_or_b32 v%d, s80, v%d' % (vHOF, t1)), P('v_or_b32 v%d, s80, v%d' % (vHST, t2))]
        return o

    def wq_stash(self, va, vb):
        o = [P('s_lshl_b32 s53, s%d, 10' % sW), P('s_add_u32 s53, s53, %d' % L_W), P('v_add_u32 v%d, s53, v%d' % (va, vL16)),
             P('v_add_u32 v%d, 0x10000, v%d' % (vb, va))]
        for p in range(12):
            for c in range(2):
                a = p * 8192 + c * 4096
                o.append(LG('ds_read_b128 %s, v%d offset:%d' % (ar(aWQ + (2 * p + c) * 4, 4), va if a < 65536 else vb, a & 0xffff)))
        return o

    def wo_stash(self):
        sk = self.L('wos')
        o = [P('s_cmp_lg_u32 s%d, 0' % sRND), P('s_cbranch_scc1 %s' % sk),
             P('s_lshl_b32 s53, s%d, 10' % sW), P('s_add_u32 s53, s53, %d' % L_W), P('v_add_u32 v%d, s53, v%d' % (vTA, vL16))]
        for c in range(16):
            o.append(P('ds_read_b128 %s, v%d offset:%d' % (ar(aWO + 4 * c, 4), vTA, c * 4096)))
        o += [P('s_waitcnt lgkmcnt(0)'), LAB(sk)]
        return o

    def p1_epi_fill(self):
        out = []
        wo = [self.dma_wo_slot(SRD_WO, 8, t, kh, t) for t in range(8) for kh in range(2)]
        a0 = self.dma_w1_group(0)
        gs = self.cfg.get('fill_g', 4)
        a0groups = [a0[0:2], a0[2:4], a0[4:6], a0[6:7]]
        for c0 in range(0, 16, gs):
            sk = self.L('wr1')
            e = [P('s_cmp_lg_u32 s%d, 0' % sRND), P('s_cbranch_scc1 %s ;nopad' % sk)]
            for c in range(c0, c0 + gs):
                e += [P(x.text) for x in wo[c]]
            e += [LAB(sk)]
            out.append(e)
        res = []
        for k, e in enumerate(out):
            res.append(e)
            n_a = 4 // len(out) if len(out) <= 4 else (1 if k % (len(out) // 4) == 0 else 0)
            for q in range(n_a):
                if a0groups:
                    sk = self.L('wr2')
                    blk = [P('s_cmp_eq_u32 s%d, 0' % sRND), P('s_cbranch_scc1 %s ;nopad' % sk)]
                    for d in a0groups.pop(0):
                        blk += [P(x.text) for x in d]
                    res.append(blk + [LAB(sk)])
        out = res
        return out

    def wo_restore(self):
        sk = self.L('wor')
        o = [P('s_cmp_eq_u32 s%d, 0' % sRND), P('s_cbranch_scc1 %s' % sk)]
        for c in range(16):
            o.append(P('ds_write_b128 v%d, %s offset:%d' % (vWOA, ar(aWO + 4 * c, 4), c * 4096)))
        return o + [LAB(sk)]

    def wq_restore(self, positions, va, vb):
        o = []
        for p in positions:
            for c in range(2):
                a = p * 8192 + c * 4096
                o.append([P('s_mov_b64 exec, s[74:75]'),
                          LG('ds_write_b128 v%d, %s offset:%d' % (va if a < 65536 else vb, ar(aWQ + (2 * p + c) * 4, 4), a & 0xffff)),
                          P('s_mov_b64 exec, -1')])
        return o

    def x_ring_dma(self, j):
        if not self.cfg.get('rot', 0):
            return [self.dma(SRD_X, vDX, sXR0 + b, j * 64, sD, L_RING + (j % 5) * 8192 + b * 1024) for b in range(2)]
        out = []
        for b in range(2):
            ops = [P('s_add_u32 m0, s%d, %d' % (sD, L_RING + (j % 5) * 8192 + b * 1024)),
                   P('s_add_u32 s52, s99, %d' % j), P('s_and_b32 s52, s52, 15'), P('s_lshl_b32 s52, s52, 6'),
                   P('s_add_u32 s52, s52, s%d' % (sXR0 + b)),
                   VM('buffer_load_dwordx4 v%d, s[8:11], s52 offen lds' % vDX)]
            out.append(ops)
        return out

    def wq_rot_quarter(self, qd):
        if not self.cfg.get('rot', 0):
            return self.dma_wq_quarter(qd)
        out = []
        for a in range(2):
            for p in range(3):
                rg = 8 * qd + 4 * a
                out.append([P('s_add_u32 m0, s%d, %d' % (sW1K, L_W + p * 32768 + rg * 1024)),
                            P('s_add_u32 s52, s98, %d' % rg), P('s_and_b32 s52, s52, 31'), P('s_mul_i32 s52, s52, 49152'),
                            P('s_add_u32 s52, s52, s95'), P('s_add_u32 s52, s52, %d' % (p * 1024)),
                            VM('buffer_load_dwordx4 v%d, s[12:15], s52 offen lds' % vDQ)])
        return out

    @staticmethod
    def vmtags(ops):
        t = []
        for x in ops:
            if isinstance(x, (list, tuple)):
                t += Gen.vmtags(x)
            elif x is not None and not isinstance(x, str) and x.kind == 'vm':
                t.append(x.tag)
        return t

    def finish_stats(self, s1, s2, pair_kv, pair_q=None, scale=None):
        t = vT + 80
        o = [P('v_mul_f32 v%d, %s, v%d' % (t, f32(1 / 512), s1)),
             P('v_mul_f32 v%d, %s, v%d' % (t + 1, f32(1 / 512), s2)),
             P('v_fma_f32 v%d, -v%d, v%d, v%d' % (t + 1, t, t, t + 1)),
             P('v_max_f32 v%d, 0, v%d' % (t + 1, t + 1)),
             P('v_add_f32 v%d, %s, v%d' % (t + 1, f32(1e-5), t + 1)),
             P('v_rsq_f32 v%d, v%d' % (pair_kv, t + 1))]
        if scale is not None:
            o.append(P('v_mul_f32 v%d, %s, v%d' % (pair_kv, f32(scale), pair_kv)))
        o.append(P('v_mul_f32 v%d, -v%d, v%d' % (pair_kv + 1, t, pair_kv)))
        if pair_q is not None:
            qs = f32(0.25 * LOG2E)
            o += [P('v_mul_f32 v%d, %s, v%d' % (pair_q, qs, pair_kv)), P('v_mul_f32 v%d, %s, v%d' % (pair_q + 1, qs, pair_kv + 1))]
        return o

    def reduce_g2(self, a, b):
        t = vT + 84
        return [P('v_permlane32_swap_b32 v%d, v%d' % (a, b)), P('v_add_f32 v%d, v%d, v%d' % (a, a, b)),
                P('v_mov_b32 v%d, v%d' % (t, a)), P('v_permlane16_swap_b32 v%d, v%d' % (a, t)),
                P('v_add_f32 v%d, v%d, v%d' % (a, a, t)), P('v_mov_b32 v%d, v%d' % (b, a)),
                P('v_permlane32_swap_b32 v%d, v%d' % (a, b))]

    def stats_from_st(self, regs, pair_kv, pair_q=None, scale=None):
        return [P('v_add_f32 v%d, v%d, v%d' % (regs, regs, regs + 2)), P('v_add_f32 v%d, v%d, v%d' % (regs + 1, regs + 1, regs + 3))] + \
            self.reduce_g2(regs, regs + 1) + self.finish_stats(regs, regs + 1, pair_kv, pair_q, scale)

    def accP1(self, blk, tb):
        return vACC + (blk * 2 + tb) * 4
    ACC_H = vACC + 48
    ACC_CS1 = vACC + 52
    ACC_CS2 = vACC + 56
    PKV = [vT + 0, vT + 2]; PQ = [vT + 4, vT + 6]; PH = vT + 8

    def wq_read(self, blk, j, part, dst):
        p = blk // 2; h = blk % 2
        if p < 2:
            return LG('ds_read_b64_tr_b16 v[%d:%d], v%d offset:%d' % (dst + 2 * part, dst + 2 * part + 1, vWQA + h, p * 32768 + j * 2048 + part * 1024))
        return LG('ds_read_b64_tr_b16 v[%d:%d], v%d offset:%d' % (dst + 2 * part, dst + 2 * part + 1, vWQA + 2 + h, j * 2048 + part * 1024))

    def p1a(self):
        o = self.add
        XB = vT + 12
        S1 = vT + 36
        S2 = vT + 48
        def xb(j, b): return XB + (j & 1) * 12 + b * 4
        xr_tags = {}
        def xreads(j):
            ops = []
            for b in range(2):
                ops.append(LG('ds_read_b64 v[%d:%d], v%d offset:%d' % (xb(j, b), xb(j, b) + 1, vXA, (j % 5) * 8192 + b * 1024)))
                ops.append(LG('ds_read_b64 v[%d:%d], v%d offset:%d' % (xb(j, b) + 2, xb(j, b) + 3, vXB, (j % 5) * 8192 + b * 1024)))
            ops.append(LG('ds_read_b64 v[%d:%d], v%d offset:%d' % (xb(j, 2), xb(j, 2) + 1, vHXA, j * 1024)))
            ops.append(LG('ds_read_b64 v[%d:%d], v%d offset:%d' % (xb(j, 2) + 2, xb(j, 2) + 3, vHXB, j * 1024)))
            xr_tags[j] = [x.tag for x in ops]
            return ops
        groups = []
        n = 0
        extras = []
        mfidx = 0
        first_idx = {}
        for j in range(16):
            first_idx[j] = mfidx
            z = (j == 0)
            for blk in range(8):
                dst = self.afrag(n); n += 1
                g = dict(pre=[], reads=[], mf=[])
                if blk == 0:
                    if j % 4 == 0:
                        q = j // 4
                        wt = self.vmtags(self.wq_q[q]) + self.vmtags(self.halo_dma[q])
                        g['pre'] += [W(wt), P('s_barrier')] if not (self.cfg.get('x_nobar') and q > 0) else []
                    if not self.cfg.get('x_nowait'):
                        g['pre'] += [W(self.vmtags(self.xslot[j]))]
                    g['reads'] += xreads(j)
                if blk < 6:
                    g['reads'] += [self.wq_read(blk, j, 0, dst), self.wq_read(blk, j, 1, dst)]
                    for tb in range(2):
                        acc = self.accP1(blk, tb)
                        c = '0' if z else vr(acc, 4)
                        g['mf'].append(('v_mfma_f32_16x16x32_bf16 %s, %s, %s, %s' % (vr(acc, 4), vr(dst, 4), vr(xb(j, tb), 4), c), []))
                    if blk in (1, 3, 5) and not self.cfg.get('x_nostat'):
                        b = blk // 2
                        for (accb, A) in ((S1 + b * 4, vONES), (S2 + b * 4, xb(j, b))):
                            c = '0' if z else vr(accb, 4)
                            g['mf'].append(('v_mfma_f32_16x16x32_bf16 %s, %s, %s, %s' % (vr(accb, 4), vr(A, 4), vr(xb(j, b), 4), c), []))
                else:
                    base = vE1 if blk == 6 else vE2
                    g['reads'] += [LG('ds_read_b64_tr_b16 v[%d:%d], v%d offset:%d' % (dst + 2 * part, dst + 2 * part + 1, base, j * 2048 + part * 1024)) for part in range(2)]
                    if blk == 6:
                        c = '0' if z else vr(self.ACC_H, 4)
                        g['mf'].append(('v_mfma_f32_16x16x32_bf16 %s, %s, %s, %s' % (vr(self.ACC_H, 4), vr(dst, 4), vr(xb(j, 2), 4), c), []))
                        c = '0' if z else vr(self.ACC_CS1, 4)
                        g['mf'].append(('v_mfma_f32_16x16x32_bf16 %s, %s, %s, %s' % (vr(self.ACC_CS1, 4), vr(dst, 4), vr(vONES, 4), c), []))
                    else:
                        c = '0' if z else vr(self.ACC_CS2, 4)
                        g['mf'].append(('v_mfma_f32_16x16x32_bf16 %s, %s, %s, %s' % (vr(self.ACC_CS2, 4), vr(dst, 4), vr(vONES, 4), c), []))
                mfidx += len(g['mf'])
                groups.append(g)
        def at(k, i):
            return first_idx[k] + i
        seq = []
        seq += [(at(0, 0), self.xslot[2][0]), (at(0, 2), self.xslot[2][1])]
        q1 = self.wq_q[1]
        seq += [(at(0, 5), q1[0]), (at(0, 8), q1[1]), (at(0, 11), q1[2]), (at(0, 14), self.xslot[3][0]), (at(0, 16), self.xslot[3][1]),
                (at(0, 19), self.tq(2)), (at(1, 1), q1[3]), (at(1, 4), q1[4]), (at(1, 7), q1[5]), (at(1, 10), self.halo_dma[1]),
                (at(1, 13), self.xslot[4][0]), (at(1, 15), self.xslot[4][1]), (at(1, 18), self.tq(3))]
        for j in range(11):
            for b, d in enumerate(self.xslot[j + 5]):
                seq.append((max(at(j, 2 + 2 * b), at(2, 0) + 2 * b + (j * 4 if j < 2 else 0)), d))
        if self.tq3:
            seq.append((at(self.cfg.get('tq3k', 4), 12), self.tq3))
        q2k = self.cfg.get('q2k', 3); q3k = self.cfg.get('q3k', 7)
        for k, d in enumerate(self.wq_q[2] + [self.halo_dma[2]]):
            seq.append((at(q2k + k // 2, 8 + 5 * (k % 2)), d))
        for k, d in enumerate(self.wq_q[3] + [self.halo_dma[3]]):
            seq.append((at(q3k + k // 2, 8 + 5 * (k % 2)), d))
        extras += seq
        reg = [W(self.tag_init),
               P('s_mul_i32 s53, s%d, s%d' % (sXCC, sXCC)), P('s_lshl_b32 s53, s53, 13'), P('s_lshl_b32 s54, s%d, 5' % sXCC),
               P('s_add_u32 s53, s53, s54'), P('s_add_u32 s53, s53, 1'), P('v_mov_b32 v%d, s53' % vTA),
               P('s_lshr_b32 s53, s%d, 1' % sG), P('s_lshl_b32 s53, s53, 5'), P('s_and_b32 s54, s%d, 1' % sG),
               P('s_lshl_b32 s54, s54, 2'), P('s_add_u32 s54, s53, s54'), P('v_mov_b32 v%d, s54' % vTB),
               P('s_cmp_eq_u32 s%d, 0' % sW), P('s_cselect_b32 s53, 0, 0x40000000'),
               P('v_or_b32 v%d, s53, v%d' % (vTB, vTB)),
               P('s_mov_b64 exec, 1'),
               VM('buffer_atomic_add v%d, v%d, s[36:39], 0 offen' % (vTA, vTB)),
               P('s_mov_b64 exec, -1')]
        extras.append((first_idx[4] + 3, reg))
        groups[8 * 4]['pre'] = [W(self.tag_init)] + groups[8 * 4]['pre']
        if self.cfg.get('t_mall', 0) >= 4:
            extras.append((first_idx[self.cfg.get('t_mall')] + 4, self.touch_mall()))
        for k, x in enumerate(self.res_ops):
            extras.append((first_idx[self.cfg.get('res_k', 9)] + 9 + 3 * k, x))
        extras.append((first_idx[self.cfg.get('res_k', 9) + 1] + 9, self.b1_op))
        extras.append((first_idx[8] + 9, self.mode_load()))
        extras.append((first_idx[11] + 1, self.mode_check()))
        tset = self.touch_set(self.cfg.get('t_p1a', 'of,xf'))
        k0 = self.cfg.get('t_p1a_k', 11)
        post = []
        for k, t in enumerate(tset):
            if k0 + k < 16:
                extras.append((first_idx[k0 + k] + 5, t))
            else:
                post.append(t)
        extras += self.sched_touches('p1a', first_idx)
        if self.cfg.get('code_staged', 1) and self.cfg.get('t_code', 1):
            extras.append((first_idx[self.cfg.get('code_k1', 10)] + 12, self.touch_code('L_C2', 'L_C4', 50)))
        if self.cfg.get('pts') == 2:
            for k, slot in ((1, 14), (4, 15), (8, 29), (12, 30)):
                extras.append((first_idx[k] - 1, self.ts(slot)))
        if self.cfg.get('pts') == 3:
            for k in range(16):
                extras.append((first_idx[k], self.ts(32 + k)))
        o(self.gemm_loop(groups, self.cfg.get('la_p1a', 3), extras))
        for t in post:
            o(t)
        if self.cfg.get('stash', 1):
            st = self.wq_stash(250, 251)
            o(st)
        t0 = 252; t1 = 253
        o(W(self.tag_b1), P('v_lshlrev_b32 v%d, 16, v247' % t0), P('v_and_b32 v%d, 0xffff0000, v247' % t1),
          P('v_mul_f32 v%d, %s, v%d' % (t0, f32(LOG2E), t0)), P('v_mul_f32 v%d, %s, v%d' % (t1, f32(LOG2E), t1)),
          P('v_lshlrev_b32 v%d, 3, v%d' % (vTA, vLANE)),
          P('s_mov_b32 exec_hi, 0x00ffffff'),
          LG('ds_write_b64 v%d, v[%d:%d] offset:%d' % (vTA, t0, t1, L_BB1)),
          P('s_mov_b64 exec, -1'))
        o(P('s_add_u32 s53, s%d, 2' % sW), P('s_lshl_b32 s53, s53, 6'), P('v_add_u32 v%d, s53, v%d' % (vTA, vCS)),
          P('s_and_b32 s53, s%d, 1' % sW), P('s_lshl_b32 s53, s53, 6'), P('v_add_u32 v%d, s53, v%d' % (vTB, vCS)),
          P('s_mov_b32 s52, 0x00010001'), P('s_mov_b32 s53, 0x00010001'), P('s_mov_b64 exec, s[52:53]'),
          LG('ds_write_b128 v%d, %s offset:%d' % (vTA, vr(self.ACC_CS1, 4), L_CSQ)),
          LG('ds_write_b128 v%d, %s offset:%d' % (vTB, vr(self.ACC_CS2, 4), L_CSQ)),
          P('s_mov_b64 exec, -1'))
        for b in range(3):
            s2 = S2 + b * 4
            o(P('v_cndmask_b32_e64 v%d, v%d, v%d, s[%d:%d]' % (s2, s2, s2 + 1, sMA, sMA + 1)),
              P('v_cndmask_b32_e64 v%d, v%d, v%d, s[%d:%d]' % (s2, s2, s2 + 2, sMB, sMB + 1)),
              P('v_cndmask_b32_e64 v%d, v%d, v%d, s[%d:%d]' % (s2, s2, s2 + 3, sMC, sMC + 1)),
              P('v_cndmask_b32_e64 v%d, 0, v%d, s[%d:%d]' % (s2, s2, sMD, sMD + 1)))
            t = s2 + 1
            o(P('v_mov_b32 v%d, v%d' % (t, s2)), P('v_permlane32_swap_b32 v%d, v%d' % (s2, t)),
              P('v_add_f32 v%d, v%d, v%d' % (s2, s2, t)), P('v_mov_b32 v%d, v%d' % (t, s2)),
              P('v_permlane16_swap_b32 v%d, v%d' % (s2, t)), P('v_add_f32 v%d, v%d, v%d' % (s2, s2, t)))
            if b < 2:
                o(self.finish_stats(S1 + b * 4, s2, self.PKV[b], self.PQ[b]))
            else:
                o(self.finish_stats(S1 + b * 4, s2, self.PH))
        o(P('s_mov_b32 s72, s50'), P('s_mov_b32 s73, s51'))
        o(WALL(False, True), P('s_barrier'))

    def p1b(self):
        o = self.add
        cfg = self.cfg
        for b in range(2):
            o(P('s_lshl_b32 s53, s%d, 1' % sW), P('s_add_u32 s53, s53, %d' % b), P('s_lshl_b32 s53, s53, 14'),
              P('s_add_u32 s%d, s53, s%d' % (sB0 + b, sX2)))
        xl = self.x_loads(16, depth=XD)
        pro = cfg.get('x_pro', 4)
        for j in range(pro):
            o(xl[j])
        stt = []
        STR = vT + 12
        for b in range(2):
            t = newtag('st'); stt.append(t)
            o(P('s_lshl_b32 s54, s%d, 11' % sW), P('s_add_u32 s53, s54, s%d' % sS2),
              P('s_add_u32 s53, s53, %d' % (b * 1024)),
              VM('buffer_load_dwordx4 %s, v%d, s[28:31], s53 offen sc1' % (vr(STR + 4 * b, 4), vL16), t))
        groups = []; n = 0; first_idx = {}; mfidx = 0
        for j in range(16):
            first_idx[j] = mfidx
            for blk in range(6):
                dst = self.afrag(n); n += 1
                g = dict(pre=[], reads=[self.wq_read(blk, j, 0, dst), self.wq_read(blk, j, 1, dst)], mf=[])
                for tb in range(2):
                    acc = self.accP1(blk, tb)
                    c = '0' if j == 0 else vr(acc, 4)
                    wt = self.vmtags(xl[j][tb]) if blk == 0 else []
                    g['mf'].append(('v_mfma_f32_16x16x32_bf16 %s, %s, %s, %s' % (vr(acc, 4), vr(dst, 4), ar(((j % XD) * 2 + tb) * 4, 4), c), wt))
                mfidx += 2
                groups.append(g)
        extras = self.x_sched(xl, 16, pro, first_idx, 12, XD, cfg.get('x_rate', 4))
        lastx = extras[-1][0]
        hp = [W(self.halo_store_tags), P('v_mov_b32 v%d, 1' % vTA),
              P('s_cmp_eq_u32 s%d, 3' % sW), P('s_cselect_b32 s53, 0, 0x40000000'),
              P('s_cmp_eq_u32 s%d, 15' % sG), P('s_cselect_b32 s53, 0x40000000, s53'),
              P('s_add_u32 s54, s%d, 1' % sG), P('s_lshr_b32 s52, s54, 1'), P('s_lshl_b32 s52, s52, 5'),
              P('s_and_b32 s54, s54, 1'), P('s_lshl_b32 s54, s54, 2'), P('s_add_u32 s52, s52, s54'),
              P('s_add_u32 s52, s52, 8'), P('s_or_b32 s53, s53, s52'),
              P('v_mov_b32 v%d, s53' % vTB),
              P('s_mov_b64 exec, 1'),
              VM('buffer_atomic_add v%d, v%d, s[36:39], 0 offen' % (vTA, vTB)),
              P('s_mov_b64 exec, -1')]
        extras.append((first_idx[0] + 6, hp))
        st_ops = [W(stt)]
        for b in range(2):
            st_ops += self.stats_from_st(STR + 4 * b, self.PKV[b], self.PQ[b])
        extras += self.spread(st_ops, first_idx[2] + 2, 1)
        HS = vT + 56
        HC = vT + 60; HZ = vT + 61
        spin = self.L('hsp'); hok = self.L('hok')
        tagc = newtag('hc'); htags = [newtag('h') for _ in range(17)]
        hk0 = cfg.get('halo_k0', 7); hk1 = cfg.get('halo_k', 10)
        h0 = [P('v_mov_b32 v%d, 0' % HZ),
              P('s_lshr_b32 s54, s%d, 1' % sG), P('s_lshl_b32 s54, s54, 5'), P('s_and_b32 s53, s%d, 1' % sG),
              P('s_lshl_b32 s53, s53, 2'), P('s_add_u32 s54, s54, s53'), P('s_add_u32 s%d, s54, 8' % sA),
              VM('buffer_load_dword v%d, v%d, s[36:39], s%d offen sc1' % (HC, HZ, sA), tagc)]
        extras.append((max(first_idx[hk0], lastx + 1), h0))
        hl = [W(tagc), P('s_mov_b32 s%d, 0' % sTMO),
              P('s_cmp_eq_u32 s%d, 0' % sG), P('s_cbranch_scc1 %s' % hok),
              LAB(spin),
              P('v_cmp_ne_u32 vcc, 16, v%d' % HC),
              P('s_cbranch_vccz %s' % hok),
              P('buffer_load_dword v%d, v%d, s[36:39], s%d offen sc1' % (HC, HZ, sA)),
              P('s_add_u32 s%d, s%d, 1' % (sTMO, sTMO)),
              P('s_waitcnt vmcnt(0)'),
              P('s_cmp_lt_u32 s%d, 0x100000' % sTMO), P('s_cbranch_scc1 %s' % spin),
              P('s_endpgm'),
              LAB(hok),
              P('s_cmp_eq_u32 s%d, 0' % sG), P('s_cselect_b32 s53, 0x40000000, 0'),
              P('v_or_b32 v%d, s53, v%d' % (HZ, vL16)),
              P('s_lshl_b32 s53, s%d, 10' % sG), P('s_add_u32 s53, s53, %d' % WS_HST),
              VM('buffer_load_dwordx4 %s, v%d, s[28:31], s53 offen sc1' % (vr(HS, 4), HZ), htags[16]),
              P('s_lshl_b32 s53, s%d, 14' % sG), P('s_lshl_b32 s54, s%d, 12' % sW), P('s_add_u32 s53, s53, s54'),
              P('s_add_u32 s%d, s53, %d' % (sA, WS_HF))]
        HB = vT + 40
        for j in range(4):
            hl.append(VM('buffer_load_dwordx4 %s, v%d, s[28:31], s%d offen offset:%d sc1' % (vr(HB + 4 * j, 4), HZ, sA, j * 1024), htags[j]))
        extras.append((max(first_idx[hk1], lastx + 2), hl))
        for k, d in enumerate(self.dma_w1_group(1)):
            extras.append((max(first_idx[hk1], lastx + 2) + 2 + cfg.get('a0_step', 3) * k, d))
        hw = [W(htags[:4]), P('s_lshl_b32 s53, s%d, 12' % sW), P('s_add_u32 s53, s53, %d' % L_HS), P('v_add_u32 v%d, s53, v%d' % (HC, vL16))]
        for j in range(4):
            hw.append(LG('ds_write_b128 v%d, %s offset:%d' % (HC, vr(HB + 4 * j, 4), j * 1024)))
        extras += self.spread(hw, first_idx[15] + 1, 2)
        for k, t in enumerate(self.touch_set(cfg.get('t_p1b', ''))):
            extras.append((first_idx[hk1] + 34 + 6 * k, t))
        extras += self.spread([W(htags[16])] + self.stats_from_st(HS, self.PH), first_idx[15] - 14, 1)
        extras += self.sched_touches('p1b', first_idx)
        o(self.gemm_loop(groups, cfg.get('la', 3), extras))
        o(WALL(False, True), P('s_barrier'), P('v_add_u32 v%d, %d, v%d' % (HC, L_HS, vL16)))
        groups = []
        for j in range(16):
            dst = self.afrag(j); xb = vT + 12 + (j % 6) * 4
            g = dict(pre=[], reads=[LG('ds_read_b128 %s, v%d offset:%d' % (vr(xb, 4), HC, j * 1024))] +
                     [LG('ds_read_b64_tr_b16 v[%d:%d], v%d offset:%d' % (dst + 2 * part, dst + 2 * part + 1, vE1, j * 2048 + part * 1024)) for part in range(2)], mf=[])
            c = '0' if j == 0 else vr(self.ACC_H, 4)
            g['mf'].append(('v_mfma_f32_16x16x32_bf16 %s, %s, %s, %s' % (vr(self.ACC_H, 4), vr(dst, 4), vr(xb, 4), c), []))
            groups.append(g)
        o(self.gemm_loop(groups, 4, []))
        o(P('s_barrier'))

    def x_sched(self, xl, nk, pro, first_idx, nmf, depth, rate):
        extras = []; k = 0; last = -1
        for j in range(pro, nk):
            for b in range(2):
                if j < depth:
                    at = first_idx[k // rate] + 1 + (nmf // rate) * (k % rate); k += 1
                else:
                    at = first_idx[j - depth] + nmf - 1 + b
                at = max(at, last + 1)
                extras.append((at, xl[j][b])); last = at
        return extras

    def x_loads(self, nk, ring=None, depth=None):
        xl = []
        for j in range(nk):
            row = []
            for b in range(2):
                slot = j if depth is None else j % depth
                ops = []
                if j % 4 == 0:
                    ops.append(P('s_add_u32 s%d, s%d, %d' % (sXL0 + b, sB0 + b, j * 1024)))
                if self.cfg.get('noxl'):
                    ops.append(P('s_nop 0'))
                else:
                    ops.append(VM('buffer_load_dwordx4 %s, v%d, s[28:31], s%d offen offset:%d%s' % (ar((slot * 2 + b) * 4, 4), vL16, sXL0 + b, (j % 4) * 1024, '' if self.cfg.get('plainld') else ' sc1')))
                row.append(ops)
            xl.append(row)
        return xl

    def dual_store(self, stores):
        pure = self.L('stp'); done = self.L('std')
        o = [P('s_cmp_eq_u32 s%d, 0' % sMODE), P('s_cbranch_scc1 %s' % pure)]
        o += [P(s + ' sc1') for s in stores]
        o += [P('s_branch %s' % done), LAB(pure)]
        o += [P(s) for s in stores]
        o += [LAB(done)]
        cnt = [VM('; counted store') for _ in stores]
        return o + cnt, [c.tag for c in cnt]

    def p1_epi(self, dmas):
        o = []
        CS = vT + 12
        CSH = vT + 36
        Q = vT + 40
        K = vT + 48
        V = vT + 56
        HP = vT + 64
        TT = vT + 66
        cst = []
        for b in range(6):
            x = LG('ds_read_b128 %s, v%d offset:%d' % (vr(CS + 4 * b, 4), vCS, L_CSQ + b * 64)); cst.append(x.tag); o.append(x)
        o += [P('s_add_u32 s53, s%d, 2' % sW), P('s_lshl_b32 s53, s53, 6'), P('v_add_u32 v%d, s53, v%d' % (TT, vCS))]
        x = LG('ds_read_b128 %s, v%d offset:%d' % (vr(CSH, 4), TT, L_CSQ)); csh = x.tag; o.append(x)

        def ln(acc, cs, pair, dst):
            r = []
            for hh in range(2):
                t = TT + 2 * hh
                r.append(P('v_pk_mul_f32 %s, %s, %s op_sel:[0,1] op_sel_hi:[1,1]' % (vr(t, 2), vr(cs + 2 * hh, 2), vr(pair, 2))))
            for hh in range(2):
                t = TT + 2 * hh
                r.append(P('v_pk_fma_f32 %s, %s, %s, %s op_sel_hi:[1,0,1]' % (vr(t, 2), vr(acc + 2 * hh, 2), vr(pair, 2), vr(t, 2))))
            for hh in range(2):
                t = TT + 2 * hh
                r.append(P('v_cvt_pk_bf16_f32 v%d, v%d, v%d' % (dst + hh, t, t + 1)))
            return r
        wtags = []
        qln = []
        for blk in (4, 5, 2, 3, 0, 1):
            if blk == 0:
                o_main = o; o = qln
            o.append(W(cst[blk]))
            for tb in range(2):
                h = blk % 2
                dst = (Q, K, V)[blk // 2] + (tb * 2 + h) * 2
                pair = self.PQ[tb] if blk < 2 else self.PKV[tb]
                o += ln(self.accP1(blk, tb), CS + 4 * blk, pair, dst)
                if blk >= 4:
                    x = LG('ds_write_b64 v%d, %s offset:%d' % (vEXV, vr(dst, 2), tb * 1024 + h * 512)); o.append(x)
                elif blk >= 2 and tb == 1:
                    x = LG('ds_write_b64 v%d, %s offset:%d' % (vEXK, vr(dst, 2), h * 512)); o.append(x)
            if blk == 3:
                o.append(W(csh))
                o += ln(self.ACC_H, CSH, self.PH, HP)
                o.append(LG('ds_write_b64 v%d, %s' % (vEXH, vr(HP, 2))))
        o = o_main
        o += [WALL(False, True), P('s_barrier')]
        KP = vT + 70
        VV = vT + 20
        SC = vACC
        SP = vACC + 16
        PB = vACC + 32
        LLs = [vT + 32, vT + 36, vT + 56, vT + 60]
        OO = vACC + 48
        MX = vT + 74
        rk = []; rv = []
        for h in range(2):
            x = LG('ds_read_b64 %s, v%d offset:%d' % (vr(KP + 2 * h, 2), vRK, h * 512)); rk.append(x.tag); o.append(x)
        for h in range(2):
            x = LG('ds_read_b64_tr_b16 %s, v%d offset:%d' % (vr(VV + 6 * h, 2), vRVP, h * 512)); rv.append(x.tag); o.append(x)
            for tb in range(2):
                x = LG('ds_read_b64_tr_b16 %s, v%d offset:%d' % (vr(VV + 6 * h + 2 + 2 * tb, 2), vRV, tb * 1024 + h * 512)); rv.append(x.tag); o.append(x)
        o += [x for x in qln if x.kind != 'w']
        insts = [(tb, h) for tb in range(2) for h in range(2)]
        for n, (tb, h) in enumerate(insts):
            q = Q + (tb * 2 + h) * 2
            o.append(P('v_mfma_f32_16x16x16_bf16 %s, %s, %s, %s' % (vr(SC + 4 * n, 4), vr(K + (tb * 2 + h) * 2, 2), vr(q, 2), vr(vCCUR, 4))))
        for n, (tb, h) in enumerate(insts):
            q = Q + (tb * 2 + h) * 2
            if tb == 0:
                o.append(W(rk[h]))
                o.append(P('v_mfma_f32_16x16x16_bf16 %s, %s, %s, %s' % (vr(SP + 4 * n, 4), vr(KP + 2 * h, 2), vr(q, 2), vr(vCPA, 4))))
            else:
                o.append(P('v_mfma_f32_16x16x16_bf16 %s, %s, %s, %s' % (vr(SP + 4 * n, 4), vr(K + h * 2, 2), vr(q, 2), vr(vCPREV, 4))))
        for n in range(4):
            for r in range(4):
                o.append(P('v_max_f32 v%d, v%d, v%d' % (SC + 4 * n + r, SC + 4 * n + r, SP + 4 * n + r)))
        for n in range(4):
            o.append(P('v_max3_f32 v%d, v%d, v%d, v%d' % (MX + n, SC + 4 * n, SC + 4 * n + 1, SC + 4 * n + 2)))
        for n in range(4):
            o.append(P('v_max_f32 v%d, v%d, v%d' % (MX + n, MX + n, SC + 4 * n + 3)))
        a, b, c, d = MX, MX + 1, MX + 2, MX + 3
        o += [P('v_permlane32_swap_b32 v%d, v%d' % (a, b)), P('v_permlane32_swap_b32 v%d, v%d' % (c, d)),
              P('v_max_f32 v%d, v%d, v%d' % (a, a, b)), P('v_max_f32 v%d, v%d, v%d' % (c, c, d)),
              P('v_permlane16_swap_b32 v%d, v%d' % (a, c)), P('v_max_f32 v%d, v%d, v%d' % (a, a, c)),
              P('v_mov_b32 v%d, v%d' % (c, a)), P('v_permlane16_swap_b32 v%d, v%d' % (a, c)),
              P('v_mov_b32 v%d, v%d' % (b, a)), P('v_mov_b32 v%d, v%d' % (d, c)),
              P('v_permlane32_swap_b32 v%d, v%d' % (a, b)), P('v_permlane32_swap_b32 v%d, v%d' % (c, d))]
        for n in range(4):
            for hh in range(2):
                pr = MX + (n & ~1)
                sel = 'op_sel_hi:[1,0]' if n % 2 == 0 else 'op_sel:[0,1] op_sel_hi:[1,1]'
                o.append(P('v_pk_add_f32 %s, %s, %s %s neg_lo:[0,1] neg_hi:[0,1]' % (vr(SC + 4 * n + 2 * hh, 2), vr(SC + 4 * n + 2 * hh, 2), vr(pr, 2), sel)))
        for n in range(4):
            for r in range(4):
                o.append(P('v_exp_f32 v%d, v%d' % (SC + 4 * n + r, SC + 4 * n + r)))
        for n in range(4):
            for hh in range(2):
                o.append(P('v_cvt_pk_bf16_f32 v%d, v%d, v%d' % (SP + 4 * n + hh, SC + 4 * n + 2 * hh, SC + 4 * n + 2 * hh + 1)))
        for n in range(4):
            for hh in range(2):
                o.append(P('v_cndmask_b32_e64 v%d, 0, v%d, s[%d:%d]' % (PB + 4 * n + hh, SP + 4 * n + hh, sUP, sUP + 1)))
                o.append(P('v_cndmask_b32_e64 v%d, v%d, 0, s[%d:%d]' % (PB + 4 * n + 2 + hh, SP + 4 * n + hh, sUP, sUP + 1)))
        o.append(W(rv))
        for n, (tb, h) in enumerate(insts):
            o.append(P('v_mfma_f32_16x16x32_bf16 %s, %s, %s, 0' % (vr(LLs[n], 4), vr(vONES, 4), vr(PB + 4 * n, 4))))
            o.append(P('v_mfma_f32_16x16x32_bf16 %s, %s, %s, 0' % (vr(OO + 4 * n, 4), vr(VV + 6 * h + 2 * tb, 4), vr(PB + 4 * n, 4))))
        for n in range(4):
            o.append(P('v_rcp_f32 v%d, v%d' % (LLs[n], LLs[n])))
        OUTR = vT + 40
        for n, (tb, h) in enumerate(insts):
            for hh in range(2):
                o.append(P('v_pk_mul_f32 %s, %s, %s op_sel_hi:[1,0]' % (vr(OO + 4 * n + 2 * hh, 2), vr(OO + 4 * n + 2 * hh, 2), vr(LLs[n], 2))))
        for n, (tb, h) in enumerate(insts):
            for hh in range(2):
                o.append(P('v_cvt_pk_bf16_f32 v%d, v%d, v%d' % (OUTR + (tb * 2 + h) * 2 + hh, OO + 4 * n + 2 * hh, OO + 4 * n + 2 * hh + 1)))
        if dmas:
            k = min(i for i, x in enumerate(o) if x.text == 's_barrier') + 1
            body = interleave(o[k:], dmas, start=0, every=max(1, (len(o) - k) // (len(dmas) + 1)))
            o = o[:k] + body
        o += [P('s_lshl_b32 s54, s%d, 15' % sW), P('s_add_u32 s53, s54, s%d' % sOF), P('s_lshl_b32 s54, s%d, 10' % sM),
              P('s_add_u32 s53, s53, s54'), P('s_add_u32 s54, s53, 16384')]
        return o, ['buffer_store_dwordx4 %s, v%d, s[28:31], s%d offen' % (vr(OUTR + 4 * tb, 4), vL16, 53 + tb) for tb in range(2)]

    def mode_load(self):
        self.tag_mode = newtag('mode')
        return [P('s_lshr_b32 s53, s%d, 1' % sG), P('s_lshl_b32 s53, s53, 5'), P('s_and_b32 s54, s%d, 1' % sG),
                P('s_lshl_b32 s54, s54, 2'), P('s_add_u32 s%d, s53, s54' % sA),
                P('v_mov_b32 v%d, 0' % vTB),
                VM('buffer_load_dword v%d, v%d, s[36:39], s%d offen sc1' % (vTA, vTB, sA), self.tag_mode)]

    def mode_check(self):
        spin = self.L('rsp'); ok = self.L('rok')
        return [W(self.tag_mode), P('s_mov_b32 s%d, 0' % sTMO),
                P('v_readfirstlane_b32 s54, v%d' % vTA),
                P('s_nop 4'),
                P('s_and_b32 s52, s54, 31'), P('s_cmp_eq_u32 s52, 16'), P('s_cbranch_scc1 %s' % ok),
                LAB(spin),
                P('buffer_load_dword v%d, v%d, s[36:39], s%d offen sc1' % (vTA, vTB, sA)),
                P('s_add_u32 s%d, s%d, 1' % (sTMO, sTMO)),
                P('s_waitcnt vmcnt(0)'),
                P('v_readfirstlane_b32 s54, v%d' % vTA),
                P('s_nop 4'),
                P('s_and_b32 s52, s54, 31'), P('s_cmp_eq_u32 s52, 16'), P('s_cbranch_scc1 %s' % ok),
                P('s_cmp_lt_u32 s%d, 0x100000' % sTMO), P('s_cbranch_scc1 %s' % spin),
                P('s_endpgm'),
                LAB(ok),
                P('s_lshr_b32 s52, s54, 5'), P('s_and_b32 s52, s52, 255'), P('s_mul_i32 s52, s52, s52'),
                P('s_lshr_b32 s54, s54, 13'), P('s_lshl_b32 s54, s54, 4'),
                P('s_cmp_lg_u32 s52, s54'), P('s_cselect_b32 s%d, 1, 0' % sMODE)] + \
            ([P('s_mov_b32 s%d, 1' % sMODE)] if self.cfg.get('force_mixed') else []) + self.set_bases()

    def set_bases(self):
        o = [P('s_mul_i32 s52, s%d, %d' % (sG, ACT_G)), P('s_add_u32 s52, s52, %d' % WS_ACT),
             P('s_mul_i32 s53, s%d, %d' % (sG, 8 * 57344)), P('s_lshl_b32 s54, s%d, 13' % sG),
             P('s_cmp_eq_u32 s%d, %d' % (sMODE, 7 if self.cfg.get('noalias') else 0))]
        def sel(dst, pure_off, mixed_base_s, mixed_imm):
            return [P('s_add_u32 s55, s52, %d' % pure_off), P('s_add_u32 s%d, s%d, %d' % (dst, mixed_base_s, mixed_imm)),
                    P('s_cmp_eq_u32 s%d, %d' % (sMODE, 7 if self.cfg.get('noalias') else 0)),
                    P('s_cselect_b32 s%d, s55, s%d' % (dst, dst))]
        o += sel(sOF, 0, sGBASE, WS_OF) + sel(sAF, 0, 53, WS_AF) + sel(sX1, 458752, sGBASE, WS_XF) + \
            sel(sX2, 458752, sGBASE, WS_XF + XF_K) + sel(sS1, 589824, 54, WS_ST) + sel(sS2, 589824, 54, WS_ST + ST_K)
        for d, v in ((dOF, OF_R), (dAF, AF_R), (dX1, 2 * XF_K), (dS1, 2 * ST_K)):
            o.append(P('s_cselect_b32 s%d, 0, %d' % (d, v)))
        return o

    def gemmB(self, nk, srdW, src_base, nblk, depth, resident, refill_tags_out, exb, pre_extras=None, posf=None, tail=None, post=None, inloop=None, tail_lds=False):
        o = []
        o += [P('s_and_b32 s52, s%d, 1' % sW), P('s_mul_i32 s52, s52, %d' % (nk * 1024)),
              P('s_add_u32 s52, s52, s%d' % src_base),
              P('s_mul_i32 s53, s%d, %d' % (sTB, nblk * 1024)), P('s_add_u32 s%d, s52, s53' % sB0),
              P('s_xor_b32 s53, s%d, 1' % sTB), P('s_mul_i32 s53, s53, %d' % (nblk * 1024)), P('s_add_u32 s%d, s52, s53' % sB1)]
        xl = self.x_loads(nk, depth=depth)
        pro = min(nk, self.cfg.get('b_pro', 4))
        for t in range(pro):
            o += xl[t][0] + xl[t][1]
        stash_ex = []
        if nk == 8 and self.cfg.get('wo_inloop', 1):
            o += [P('s_lshl_b32 s53, s%d, 10' % sW), P('s_add_u32 s53, s53, %d' % L_W), P('v_add_u32 v%d, s53, v%d' % (vT + 62, vL16))]
            stash_ex = [[LG('ds_read_b128 %s, v%d offset:%d' % (ar(aWO + 4 * c, 4), vT + 62, c * 4096))] for c in range(16)]
        elif nk == 8:
            o += self.wo_stash()
        groups = []; n = 0; first_idx = {}; mfidx = 0
        acc = lambda s, fb: vACC + (s * 4 + fb) * 4
        refills = []
        if nk > resident:
            for t in range(resident, nk):
                for kh in range(2):
                    refills.append(self.dma_wo_slot(srdW, nk, t, kh, posf(t)))
        for t in range(nk):
            first_idx[t] = mfidx
            pos = posf(t) if posf else t
            for fb in range(4):
                dst = self.afrag(n); n += 1
                g = dict(pre=[], reads=[], mf=[])
                jit = self.cfg.get('jit', 0)
                if refills and jit and fb == 0 and t >= resident and (t - resident) % jit == 0:
                    lo = 2 * (t - resident)
                    g['pre'] += [W(self.vmtags(refills[lo:lo + 2 * jit])), P('s_barrier')]
                elif not jit and fb == 0 and t == resident:
                    g['pre'] += [W(self.vmtags(refills)), P('s_barrier')]
                for part in range(2):
                    a = pos * 8192 + part * 2048
                    win = a >> 16
                    g['reads'].append(LG('ds_read_b64_tr_b16 v[%d:%d], v%d offset:%d' % (dst + 2 * part, dst + 2 * part + 1, vW2A + fb * 3 + win, a & 0xffff)))
                for s in range(2):
                    c = '0' if t == 0 else vr(acc(s, fb), 4)
                    wt = self.vmtags(xl[t][s]) if fb == 0 else []
                    g['mf'].append(('v_mfma_f32_16x16x32_bf16 %s, %s, %s, %s' % (vr(acc(s, fb), 4), vr(dst, 4), ar(((t % depth) * 2 + s) * 4, 4), c), wt))
                mfidx += 2
                groups.append(g)
        extras = []
        last = -1
        for t in range(pro, nk):
            if t < depth:
                at = first_idx[min(nk - 1, (t - pro) // 2)] + 1 + 4 * ((t - pro) % 2)
            else:
                at = first_idx[t - depth] + 7
            at = max(at, last + 1)
            extras.append((at, xl[t][0])); extras.append((at + 1, xl[t][1]))
            last = at + 1
        for k, d in enumerate(stash_ex):
            extras.append((4 + 3 * k, d))
        if inloop:
            for k, d in enumerate(inloop):
                extras.append((last + 2 + self.cfg.get('a2_step', 5) * k, d))
        if refills:
            nfree = nk - resident
            bar_at = first_idx[nfree] - 1
            extras.append((bar_at, [P('s_barrier')]))
            rp = self.cfg.get('ref_per', 3)
            for k, d in enumerate(refills):
                extras.append((first_idx[nfree + self.cfg.get('ref_k0', 0) + k // rp] + 1 + 2 * (k % rp), d))
        if tail and tail_lds:
            extras.append((first_idx[resident] - 1, [P('s_barrier')]))
            nt_ = nk - resident
            for k, d in enumerate(tail):
                extras.append((first_idx[resident] + 1 + k * (8 * nt_ - 4) // len(tail), d))
        elif tail:
            allb = [t_ for row in xl for blk in row for t_ in self.vmtags(blk)]
            extras.append((first_idx[resident] - 1, [W(allb), P('s_barrier')]))
            nt_ = nk - resident
            t0_ = self.cfg.get('tail_k0', 0)
            for k, d in enumerate(tail):
                kk = t0_ + k * (nt_ - t0_) // len(tail)
                sk = self.L('tsk')
                extras.append((first_idx[resident + kk] + 1 + 2 * (k % 3),
                               [P('s_cmp_lg_u32 s%d, 0' % sRND), P('s_cbranch_scc1 %s ;nopad' % sk)] + d + [LAB(sk)]))
        if pre_extras and False:
            for k, t in enumerate(pre_extras):
                extras.append((first_idx[min(nk - 1, self.cfg.get('t_p4_k', 16) + 2 * k)] + 4, t))
        extras += self.sched_touches('p4' if nk == 28 else 'p2', first_idx)
        if nk == 28 and self.cfg.get('wbl2'):
            allb2 = [t_ for row in xl for blk in row for t_ in self.vmtags(blk)] + self.vmtags(refills)
            sk = self.L('wb')
            extras.append((first_idx[self.cfg.get('wbl2')] + 2,
                           [W(allb2), P('s_cmp_eq_u32 s%d, 0' % sTUX), P('s_cselect_b32 s52, s%d, 0' % sRND), P('s_cmp_eq_u32 s52, 1'),
                            P('s_cbranch_scc0 %s ;nopad' % sk), P('buffer_wbl2 sc1'), LAB(sk)]))
        if nk == 28 and self.cfg.get('code_staged', 1) and self.cfg.get('t_code', 1):
            extras.append((first_idx[16] + 3, self.touch_code('L_C5', 'L_END', 72)))
        o += self.gemm_loop(groups, self.cfg.get('la', 3), extras)
        o.append(P('s_barrier'))
        o += [P('v_add_u32 v%d, %d, v%d' % (vTA, exb, vEXBW)), P('v_add_u32 v%d, %d, v%d' % (vTB, exb, vEXBR))]
        if post and tail_lds:
            o += self.flat(post)
        elif post:
            sk = self.L('psk')
            o += [P('s_cmp_lg_u32 s%d, 0' % sRND), P('s_cbranch_scc1 %s ;nopad' % sk)] + self.flat(post) + [LAB(sk)]
        for fb in range(4):
            o.append(LG('ds_write_b128 v%d, %s offset:%d' % (vTA, vr(acc(1, fb), 4), fb * 1024)))
        o += [WALL(False, True), P('s_barrier')]
        PT = vT
        rt = []
        for fb in range(4):
            x = LG('ds_read_b128 %s, v%d offset:%d' % (vr(PT + 4 * fb, 4), vTB, fb * 1024)); rt.append(x.tag); o.append(x)
        U = vT + 16
        for fb in range(4):
            for hh in range(2):
                r = vR + fb * 2 + hh
                o += [P('v_lshlrev_b32 v%d, 16, v%d' % (U + fb * 4 + hh * 2, r)), P('v_and_b32 v%d, 0xffff0000, v%d' % (U + fb * 4 + hh * 2 + 1, r))]
        for fb in range(4):
            for hh in range(2):
                a = acc(0, fb) + 2 * hh
                o.append(P('v_pk_add_f32 %s, %s, %s' % (vr(a, 2), vr(a, 2), vr(U + fb * 4 + 2 * hh, 2))))
        for fb in range(4):
            o.append(W(rt[fb]))
            for hh in range(2):
                a = acc(0, fb) + 2 * hh
                o.append(P('v_pk_add_f32 %s, %s, %s' % (vr(a, 2), vr(a, 2), vr(PT + fb * 4 + 2 * hh, 2))))
        for fb in range(4):
            for hh in range(2):
                a = acc(0, fb) + 2 * hh
                o.append(P('v_cvt_pk_bf16_f32 v%d, v%d, v%d' % (vR + fb * 2 + hh, a, a + 1)))
        return o

    def sw4(self):
        return self.touch_set(self.cfg.get('t_p4', ''), only_r1=True)

    def row_stats(self):
        s1 = vT + 32; s2 = vT + 33; s1b = vT + 34; s2b = vT + 35
        o = [P('v_mov_b32 v%d, 0' % r) for r in (s1, s2, s1b, s2b)]
        for k in range(0, 8, 2):
            o += [P('v_dot2c_f32_bf16 v%d, v%d, v%d' % (s1, vR + k, vONES)), P('v_dot2c_f32_bf16 v%d, v%d, v%d' % (s2, vR + k, vR + k)),
                  P('v_dot2c_f32_bf16 v%d, v%d, v%d' % (s1b, vR + k + 1, vONES)), P('v_dot2c_f32_bf16 v%d, v%d, v%d' % (s2b, vR + k + 1, vR + k + 1))]
        o += [P('v_add_f32 v%d, v%d, v%d' % (s1, s1, s1b)), P('v_add_f32 v%d, v%d, v%d' % (s2, s2, s2b))]
        o += self.reduce_g2(s1, s2)
        return o

    def x_stores(self, sx, ss):
        return [P('s_mul_i32 s53, s%d, 16384' % sTB), P('s_add_u32 s53, s53, s%d' % sx), P('s_lshl_b32 s54, s%d, 11' % sCT),
                P('s_add_u32 s53, s53, s54'),
                P('s_lshl_b32 s54, s%d, 10' % sTB), P('s_add_u32 s54, s54, s%d' % ss)]

    def x_store_frags(self):
        ds, tags = self.dual_store(['buffer_store_dwordx4 %s, v%d, s[28:31], s53 offen' % (vr(vR, 4), vL16),
                                    'buffer_store_dwordx4 %s, v%d, s[28:31], s55 offen offset:1024' % (vr(vR + 4, 4), vL16)])
        return self.delta(55, 11) + [P('s_add_u32 s55, s55, s53')] + ds, tags

    def x_store_stats(self):
        ds, tags = self.dual_store(['buffer_store_dwordx2 %s, v%d, s[28:31], s54 offen' % (vr(vT + 32, 2), vSTO)])
        return [P('s_mov_b64 exec, 0xffff')] + ds + [P('s_mov_b64 exec, -1')], tags

    def p3(self, extras_w2):
        o = []
        cfg = self.cfg
        for b in range(2):
            o += [P('s_lshl_b32 s53, s%d, 1' % sW), P('s_add_u32 s53, s53, %d' % b), P('s_lshl_b32 s53, s53, 14'),
                  P('s_add_u32 s%d, s53, s%d' % (sB0 + b, sX1))]
        xl = self.x_loads(16, depth=XD)
        pro = cfg.get('x_pro', 4)
        for j in range(pro):
            o += xl[j][0] + xl[j][1]
        stt = []
        STR = vT + 12
        PA = [vT + 0, vT + 2]
        for b in range(2):
            t = newtag('st'); stt.append(t)
            o += [P('s_lshl_b32 s54, s%d, 11' % sW), P('s_add_u32 s53, s54, s%d' % sS1),
                  P('s_add_u32 s53, s53, %d' % (b * 1024)),
                  VM('buffer_load_dwordx4 %s, v%d, s[28:31], s53 offen sc1' % (vr(STR + 4 * b, 4), vL16), t)]
        acc = lambda fb, tb: vACC + (fb * 2 + tb) * 4
        a3 = self.dma_w1_group(3)
        groups = []; n = 0; first_idx = {}; mfidx = 0
        for j in range(16):
            first_idx[j] = mfidx
            base = L_W1P[j // 4] + (j % 4) * 7168
            for fb in range(7):
                dst = self.afrag(n); n += 1
                g = dict(pre=[], reads=[], mf=[])
                if j == 12 and fb == 0:
                    g['pre'] += [W(self.vmtags(a3)), P('s_barrier')]
                for part in range(2):
                    a = base + part * 3584 + fb * 32
                    win = a >> 16
                    g['reads'].append(LG('ds_read_b64_tr_b16 v[%d:%d], v%d offset:%d' % (dst + 2 * part, dst + 2 * part + 1, vW1A + win, a & 0xffff)))
                for tb in range(2):
                    c = '0' if j == 0 else vr(acc(fb, tb), 4)
                    wt = self.vmtags(xl[j][tb]) if fb == 0 else []
                    g['mf'].append(('v_mfma_f32_16x16x32_bf16 %s, %s, %s, %s' % (vr(acc(fb, tb), 4), vr(dst, 4), ar(((j % XD) * 2 + tb) * 4, 4), c), wt))
                mfidx += 2
                groups.append(g)
        extras = self.x_sched(xl, 16, pro, first_idx, 14, XD, cfg.get('x_rate', 4))
        if cfg.get('p3_jit'):
            k0 = cfg.get('p3_jit')
            for k, d in enumerate(a3):
                extras.append((first_idx[k0 + k] + 9, d))
            for k, d in enumerate(extras_w2):
                extras.append((first_idx[min(15, cfg.get('p3_w2k', 6) + k)] + 5, d))
            extras_w2 = []; a3 = []
        at = extras[-1][0] + 2
        for d in a3:
            extras.append((at, d)); at += 4
        st_ops = [W(stt)]
        for b in range(2):
            st_ops += self.stats_from_st(STR + 4 * b, PA[b], scale=LOG2E)
        extras += self.spread(st_ops, first_idx[2] + 2, 1)
        at = max(at, first_idx[9])
        for d in extras_w2:
            extras.append((at, d)); at += cfg.get('w2e_step', 7)
        for k, t in enumerate(self.touch_set(cfg.get('t_p3', 'af'), only_r1=True)):
            extras.append((first_idx[min(15, cfg.get('t_p3_k', 9) + 2 * k)] + 4, t))
        extras += self.sched_touches('p3', first_idx)
        if cfg.get('code_staged', 1) and cfg.get('t_code', 1):
            extras.append((first_idx[10] + 6, self.touch_code('L_C4', 'L_C5', 72)))
        o += self.gemm_loop(groups, cfg.get('la', 3), extras)
        o.append(P('s_barrier'))
        return o, PA

    def cs_w1(self):
        o = []
        A0 = vT + 40; A1 = vT + 44
        ad = vT + 48
        o += [P('s_lshl_b32 s53, s%d, 5' % sW), P('s_add_u32 s54, s%d, 4' % sW), P('s_min_u32 s54, s54, 6'), P('s_lshl_b32 s54, s54, 5')]
        for win in range(3):
            o += [P('v_add_u32 v%d, s53, v%d' % (ad + win, vW1A + win)), P('v_add_u32 v%d, s54, v%d' % (ad + 3 + win, vW1A + win))]
        groups = []; n = 0
        for j in range(16):
            base = L_W1P[j // 4] + (j % 4) * 7168
            for e in range(2):
                dst = self.afrag(n); n += 1
                g = dict(pre=[], reads=[], mf=[])
                for part in range(2):
                    a = base + part * 3584
                    g['reads'].append(LG('ds_read_b64_tr_b16 v[%d:%d], v%d offset:%d' % (dst + 2 * part, dst + 2 * part + 1, ad + 3 * e + (a >> 16), a & 0xffff)))
                accr = A0 if e == 0 else A1
                c = '0' if j == 0 else vr(accr, 4)
                g['mf'].append(('v_mfma_f32_16x16x32_bf16 %s, %s, %s, %s' % (vr(accr, 4), vr(dst, 4), vr(vONES, 4), c), []))
                groups.append(g)
        o += self.gemm_loop(groups, 3, [])
        o += [P('s_lshl_b32 s53, s53, 1'), P('s_lshl_b32 s54, s54, 1'),
              P('v_add_u32 v%d, s53, v%d' % (ad, vCS)), P('v_add_u32 v%d, s54, v%d' % (ad + 1, vCS)),
              P('s_mov_b32 s52, 0x00010001'), P('s_mov_b32 s53, 0x00010001'), P('s_mov_b64 exec, s[52:53]'),
              LG('ds_write_b128 v%d, %s offset:%d' % (ad, vr(A0, 4), L_CS1)),
              LG('ds_write_b128 v%d, %s offset:%d' % (ad + 1, vr(A1, 4), L_CS1)),
              P('s_mov_b64 exec, -1'), WALL(False, True), P('s_barrier')]
        return o

    def p3_epi(self, PA, dmas):
        o = []
        acc = lambda fb, tb: vACC + (fb * 2 + tb) * 4
        CS = vT + 12; BB = vT + 40
        PK = vT + 68
        cst = []
        for fb in range(7):
            x = LG('ds_read_b128 %s, v%d offset:%d' % (vr(CS + 4 * fb, 4), vCS, L_CS1 + fb * 64)); y = LG('ds_read_b128 %s, v%d offset:%d' % (vr(BB + 4 * fb, 4), vCS, L_BB1 + fb * 64))
            cst.append([x.tag, y.tag]); o += [x, y]
        T = vT + 68
        OUTR = lambda tb, fb: vAF + tb * 16 + fb * 2
        body = []
        for fb in range(7):
            body.append(W(cst[fb]))
            prs = [(tb, hh) for tb in range(2) for hh in range(2)]
            E = [T + 2 * k for k in range(4)]; U = [T + 8 + 2 * k for k in range(4)]
            for k, (tb, hh) in enumerate(prs):
                body.append(P('v_pk_fma_f32 %s, %s, %s, %s op_sel:[0,1,0] op_sel_hi:[1,1,1]' % (vr(E[k], 2), vr(CS + 4 * fb + 2 * hh, 2), vr(PA[tb], 2), vr(BB + 4 * fb + 2 * hh, 2))))
            for k, (tb, hh) in enumerate(prs):
                body.append(P('v_pk_fma_f32 %s, %s, %s, %s op_sel_hi:[1,0,1]' % (vr(E[k], 2), vr(acc(fb, tb) + 2 * hh, 2), vr(PA[tb], 2), vr(E[k], 2))))
            for k in range(4):
                body += [P('v_exp_f32 v%d, v%d' % (U[k], E[k])), P('v_exp_f32 v%d, v%d' % (U[k] + 1, E[k] + 1))]
            for k in range(4):
                body.append(P('v_pk_add_f32 %s, %s, s[%d:%d]' % (vr(U[k], 2), vr(U[k], 2), sONE, sONE + 1)))
            for k in range(4):
                body.append(P('v_pk_fma_f32 %s, %s, %s, s[%d:%d]' % (vr(U[k], 2), vr(U[k], 2), vr(U[k], 2), sONE, sONE + 1)))
            for k in range(4):
                body += [P('v_rcp_f32 v%d, v%d' % (U[k], U[k])), P('v_rcp_f32 v%d, v%d' % (U[k] + 1, U[k] + 1))]
            for k in range(4):
                body.append(P('v_pk_fma_f32 %s, %s, s[%d:%d], %s' % (vr(U[k], 2), vr(U[k], 2), sM2L, sM2L + 1, vr(vLN2, 2))))
            for k in range(4):
                body.append(P('v_pk_mul_f32 %s, %s, %s' % (vr(E[k], 2), vr(E[k], 2), vr(U[k], 2))))
            for k, (tb, hh) in enumerate(prs):
                body.append(P('v_cvt_pk_bf16_f32 v%d, v%d, v%d' % (OUTR(tb, fb) + hh, E[k], E[k] + 1)))
        if dmas:
            frac = self.cfg.get('p3e_frac', 100)
            body = interleave(body, dmas, start=4, every=max(1, ((len(body) - 8) * frac // 100) // (len(dmas) + 1)))
        o += body
        o += [P('s_lshr_b32 s52, s%d, 1' % sM), P('s_mul_i32 s52, s52, 7168'), P('s_add_u32 s52, s52, s%d' % sAF),
              P('s_mul_i32 s53, s%d, %d' % (sW, 2 * 57344)), P('s_add_u32 s52, s52, s53'),
              P('s_add_u32 s53, s52, 57344'), P('s_add_u32 s54, s52, 4096'), P('s_add_u32 s55, s53, 4096')]
        def variant(odd, fl):
            r = []
            for tb in range(2):
                b0 = 52 + tb; b1 = 54 + tb
                if not odd:
                    for u in range(3):
                        r.append(P('buffer_store_dwordx4 %s, v%d, s[28:31], s%d offen offset:%d%s' % (vr(OUTR(tb, 2 * u), 4), vL16, b0, u * 1024, fl)))
                    r.append(P('buffer_store_dwordx2 %s, v%d, s[28:31], s%d offen offset:%d%s' % (vr(OUTR(tb, 6), 2), vL16, b0, 3072, fl)))
                else:
                    r.append(P('buffer_store_dwordx2 %s, v%d, s[28:31], s%d offen offset:%d%s' % (vr(OUTR(tb, 0), 2), vL16, b0, 3072 + 8, fl)))
                    for u in range(3):
                        r.append(P('buffer_store_dwordx4 %s, v%d, s[28:31], s%d offen offset:%d%s' % (vr(OUTR(tb, 2 * u + 1), 4), vL16, b1, u * 1024, fl)))
            return r
        l_odd = self.L('odd'); l_e1 = self.L('e1'); l_o1 = self.L('o1'); done = self.L('dn')
        sel = sMODE
        if self.cfg.get('af_sc1_r1'):
            sel = sIT
            o += [P('s_xor_b32 s%d, s%d, 1' % (sIT, sRND)), P('s_or_b32 s%d, s%d, s%d' % (sIT, sIT, sMODE))]
        o += [P('s_bitcmp1_b32 s%d, 0' % sM), P('s_cbranch_scc1 %s' % l_odd),
              P('s_cmp_eq_u32 s%d, 0' % sel), P('s_cbranch_scc1 %s' % l_e1)] + variant(False, ' sc1') + [P('s_branch %s' % done), LAB(l_e1)] + \
            variant(False, '') + [P('s_branch %s' % done), LAB(l_odd),
              P('s_cmp_eq_u32 s%d, 0' % sel), P('s_cbranch_scc1 %s' % l_o1)] + variant(True, ' sc1') + [P('s_branch %s' % done), LAB(l_o1)] + \
            variant(True, '') + [LAB(done)]
        cnt = [VM('; counted store') for _ in range(8)]
        return o + cnt, [c.tag for c in cnt]

    def build(self):
        cfg = self.cfg
        stop = cfg.get('stop', 99)
        o = self.add
        self.prologue()
        o(self.ts(0))
        self.p1a()
        o(self.ts(1))
        o(W(self.tag_res))
        if cfg.get('a0_early', 1):
            o(self.dma_w1_group(0))
        o(LAB('L_P1EPI'))
        wo = [self.dma_wo_slot(SRD_WO, 8, t, kh, t) for t in range(8) for kh in range(2)]
        w1a0 = self.dma_w1_group(0)
        o(P('s_cmp_eq_u32 s%d, 1' % sRND), P('s_cselect_b64 s[70:71], -1, 0'),
          P('s_lshl_b32 s53, s%d, 10' % sW), P('s_add_u32 s53, s53, %d' % L_W), P('v_add_u32 v%d, s53, v%d' % (vWOA, vL16)))
        epi, stores = self.p1_epi(self.p1_epi_fill())
        o(epi)
        ds, tags = self.dual_store(stores)
        o(ds)
        o(self.wo_restore())
        o(self.ts(2, True))
        o(P('s_lshl_b32 s%d, s%d, 2' % (sTGT, sRND)))
        o(self.sync_dyn(1, tags, pre_r1=self.dma_w1_group(1)) if cfg.get('a1_tail', 1) else self.sync_dyn(1, tags, pre=self.dma_w1_group(1)))
        o(self.ts(3, True))
        if stop == 1:
            o(P('s_branch L_END'))
        o(LAB('L_C2'))
        o(self.gemmB(8, SRD_WO, sOF, 16, 8, 8, None, L_EXB2, inloop=self.dma_w1_group(2) if cfg.get('a2_p2', 1) else None))
        o(self.ts(4, True))
        o(self.x_stores(sX1, sS1))
        ds, tags = self.x_store_frags(); o(ds)
        o(self.row_stats())
        ds, tags2 = self.x_store_stats(); o(ds)
        tags = tags + tags2
        o(self.sync_dyn(2, tags, pre=None if cfg.get('a2_p2', 1) else self.dma_w1_group(2)))
        o(self.ts(5, True))
        if stop == 2:
            o(P('s_branch L_END'))
        w2_early = [self.dma_wo_slot(SRD_W2, 28, W2_T_AT[p], kh, p) for p in range(5) for kh in range(2)]
        body, PA = self.p3(w2_early)
        o(body)
        skip = self.L('cs1')
        o(P('s_cmp_lg_u32 s%d, 0' % sRND), P('s_cbranch_scc1 %s' % skip))
        o(self.cs_w1())
        o(LAB(skip))
        o(self.ts(6, True))
        n_epi = cfg.get('w2_epi_p', 15)
        w2_epi = [self.dma_wo_slot(SRD_W2, 28, W2_T_AT[p], kh, p) for p in range(5, n_epi) for kh in range(2)]
        epi, tags = self.p3_epi(PA, w2_epi)
        o(epi)
        o(self.ts(7, True))
        o(self.sync_dyn(3, tags, pre=[self.dma_wo_slot(SRD_W2, 28, W2_T_AT[p], kh, p) for p in range(n_epi, 19) for kh in range(2)]))
        o(self.ts(8, True))
        if stop == 3:
            o(P('s_branch L_END'))
        o(LAB('L_C4'))
        if cfg.get('stash', 1):
            VA, VB = vT + 60, vT + 61
            o(P('s_cmp_eq_u32 s%d, 0' % sRND), P('s_cselect_b64 s[74:75], -1, 0'))
            o(P('s_lshl_b32 s53, s%d, 10' % sW), P('s_add_u32 s53, s53, %d' % L_W), P('v_add_u32 v%d, s53, v%d' % (VA, vL16)),
              P('v_add_u32 v%d, 0x10000, v%d' % (VB, VA)))
            wq_tail = self.wq_restore([0, 1, 2, 4, 5, 6, 8, 9, 10, 11], VA, VB)
            wq_post = self.wq_restore([3, 7], VA, VB)
            o(self.gemmB(28, SRD_W2, sAF, 56, cfg.get('p4d', XD), 19, None, L_EXB4, posf=w2pos, tail=wq_tail, post=wq_post, tail_lds=True))
        else:
            wq_tail = self.dma_wq_quarter(0, src=None) + self.dma_wq_quarter(1, src=None) + self.dma_wq_quarter(2, src=None) + self.dma_wq_quarter(3, panels=(2,), src=None)
            wq_post = self.dma_wq_quarter(3, panels=(0, 1), src=None)
            o(self.gemmB(28, SRD_W2, sAF, 56, cfg.get('p4d', XD), 19, None, L_EXB4, pre_extras=self.sw4(), posf=w2pos, tail=wq_tail, post=wq_post))
        o(self.ts(9, True))
        o(LAB('L_C5'))
        o(P('s_cmp_lg_u32 s%d, 0' % sRND), P('s_cbranch_scc1 L_FINAL'))
        o(self.x_stores(sX2, sS2))
        ds, tags = self.x_store_frags(); o(ds)
        o(self.row_stats())
        ds, tags2 = self.x_store_stats(); o(ds)
        tags = tags + tags2
        ht = [newtag('hs') for _ in range(3)]
        o(P('s_add_u32 s52, s%d, 1' % sG), P('s_lshl_b32 s53, s52, 14'), P('s_lshl_b32 s54, s%d, 11' % sCT),
          P('s_add_u32 s53, s53, s54'), P('s_add_u32 s53, s53, %d' % WS_HF),
          P('s_lshl_b32 s54, s52, 10'), P('s_add_u32 s54, s54, %d' % WS_HST),
          VM('buffer_store_dwordx4 %s, v%d, s[28:31], s53 offen sc1' % (vr(vR, 4), vHOF), ht[0]),
          self.delta(55, 11), P('s_add_u32 s55, s55, s53'),
          VM('buffer_store_dwordx4 %s, v%d, s[28:31], s55 offen offset:1024 sc1' % (vr(vR + 4, 4), vHOF), ht[1]),
          VM('buffer_store_dwordx2 %s, v%d, s[28:31], s54 offen sc1' % (vr(vT + 32, 2), vHST), ht[2]))
        self.halo_store_tags = ht
        o(self.sync_dyn(4, tags))
        o(self.ts(10))
        if stop == 4:
            o(P('s_branch L_END'))
        o(P('s_mov_b32 s%d, 1' % sRND), P('s_add_u32 s%d, s%d, s%d' % (sOF, sOF, dOF)), P('s_add_u32 s%d, s%d, s%d' % (sAF, sAF, dAF)),
          P('s_add_u32 s%d, s%d, s%d' % (sX1, sX1, dX1)), P('s_add_u32 s%d, s%d, s%d' % (sS1, sS1, dS1)))
        self.p1b()
        o(self.ts(27))
        o(WALL(False, True))
        o(P('s_branch L_P1EPI'))
        o(LAB('L_FINAL'))
        for u in range(2):
            o(P('v_permlane16_swap_b32 v%d, v%d' % (vR + 4 * u, vR + 4 * u + 2)), P('v_permlane16_swap_b32 v%d, v%d' % (vR + 4 * u + 1, vR + 4 * u + 3)))
        for u in range(2):
            if u == 1:
                o(self.delta(55), P('s_add_u32 s55, s55, s61'))
            o(VM('buffer_store_dwordx4 %s, v%d, s[32:35], s%d offen offset:%d%s' % (vr(vR + 4 * u, 4), vOUT, 55 if u else 61, u * 64, ' sc1' if cfg.get('out_sc1') else '')))
        o(self.ts(28), self.ts_flush())
        o(LAB('L_END'), P('s_endpgm'))

    def sync_dyn(self, ph, tags, window=None, pre=None, pre_r1=None):
        prep = [P('s_add_u32 s%d, s%d, %d' % (sNXT, sTGT, ph)), P('v_mov_b32 v%d, s%d' % (vTA, sNXT)), P('v_mov_b32 v%d, 0' % vTB),
                P('v_lshlrev_b32 v250, 2, v%d' % vLANE)]
        if pre_r1:
            l2 = self.L('pr2'); l3 = self.L('pr3')
            raw = [P(x.text) for x in self.flat(pre_r1)]
            nd = sum(1 for x in self.flat(pre_r1) if x.kind == 'vm')
            o = prep + [P('s_cmp_lg_u32 s%d, 0' % sRND), P('s_cbranch_scc1 %s' % l2)] + raw + [P('s_waitcnt vmcnt(%d)' % nd), P('s_branch %s' % l3),
                 LAB(l2), P('s_waitcnt vmcnt(0)'), LAB(l3), MARK(tags)]
        else:
            o = prep + self.flat(pre or []) + [W(tags)]
        if self.cfg.get('sts'):
            o += self.ts(48 + 4 * (ph - 1))
        pure = self.L('fp'); done = self.L('fd')
        o += [P('s_mov_b64 exec, 1'),
              P('s_cmp_eq_u32 s%d, 0' % sMODE), P('s_cbranch_scc1 %s ;nopad' % pure),
              P('buffer_store_dword v%d, v%d, s[28:31], s%d offen sc1' % (vTA, vTB, sFLGOFF)),
              P('s_branch %s ;nopad' % done), LAB(pure),
              P('buffer_store_dword v%d, v%d, s[28:31], s%d offen' % (vTA, vTB, sFLGOFF)),
              LAB(done), VM('; flag store counted'),
              P('s_mov_b64 exec, -1')]
        other = self.L('so'); join = self.L('sj'); loop = self.L('sp')
        PA_, PB_ = 248, 249
        o += [P('s_cmp_lg_u32 s%d, 0' % sW), P('s_cbranch_scc1 %s ;nopad' % other),
              P('s_mov_b32 s%d, 0' % sTMO)]
        if self.cfg.get('poll2', 1):
            o += [P('buffer_load_dword v%d, v%d, s[28:31], s%d offen sc1' % (PA_, 250, sGFLG)),
                  LAB(loop),
                  P('buffer_load_dword v%d, v%d, s[28:31], s%d offen sc1' % (PB_, 250, sGFLG)),
                  P('s_waitcnt vmcnt(1)'),
                  P('v_cmp_gt_u32 vcc, s%d, v%d' % (sNXT, PA_)),
                  P('s_add_u32 s%d, s%d, 1' % (sTMO, sTMO)),
                  P('s_cbranch_vccz %s ;nopad' % join),
                  P('buffer_load_dword v%d, v%d, s[28:31], s%d offen sc1' % (PA_, 250, sGFLG)),
                  P('s_waitcnt vmcnt(1)'),
                  P('v_cmp_gt_u32 vcc, s%d, v%d' % (sNXT, PB_)),
                  P('s_cmp_lt_u32 s%d, 0x80000' % sTMO),
                  P('s_cbranch_vccz %s ;nopad' % join),
                  P('s_cbranch_scc1 %s' % loop),
                  P('s_endpgm'),
                  LAB(other)]
        else:
            o += [LAB(loop),
                  P('buffer_load_dword v%d, v%d, s[28:31], s%d offen sc1' % (PA_, 250, sGFLG)),
                  P('s_add_u32 s%d, s%d, 1' % (sTMO, sTMO)),
                  P('s_waitcnt vmcnt(0)'),
                  P('v_cmp_gt_u32 vcc, s%d, v%d' % (sNXT, PA_)),
                  P('s_cbranch_vccz %s' % join),
                  P('s_cmp_lt_u32 s%d, 0x100000' % sTMO),
                  P('s_cbranch_scc1 %s' % loop),
                  P('s_endpgm'),
                  LAB(other)]
        if window and not self.cfg.get('nowin'):
            o += window
        o += [LAB(join)]
        if self.cfg.get('sts'):
            o += self.ts(49 + 4 * (ph - 1)) + [WALL(True, True)] + self.ts(50 + 4 * (ph - 1))
        if self.cfg.get('halo_nowait') and ph == 4:
            o += [WALL(True, True)]
        else:
            o += [WALL(True, True)]
        o += [P('s_barrier')]
        return o

    def text(self):
        self.build()
        body = self.p.render()
        body = [l for l in body if not l.strip().startswith('; counted') and not l.strip().startswith('; flag store')]
        hdr = open('interleave_layers__sliding_local_dilated__dense_activation_mish__prompt.s.ref').read().split('\n')
        head = []
        for l in hdr:
            if l.startswith('; Override') or l.startswith('; grid=') or l.startswith('; @launch'):
                continue
            if l.startswith('.amdgcn_target'):
                break
            head.append(l)
        out = head + ['; @launch grid=(256,1,1) block=(256,1,1) lds=%d' % LDS_BYTES,
                      '.amdgcn_target "amdgcn-amd-amdhsa--gfx950"', '.text', '.globl ' + KNAME, '.p2align 8',
                      '.type %s,@function' % KNAME, KNAME + ':']
        out += body
        out += ['.section .rodata,"a"', '.p2align 6', '.amdhsa_kernel ' + KNAME,
                '  .amdhsa_next_free_vgpr 512', '  .amdhsa_next_free_sgpr 102', '  .amdhsa_accum_offset 256',
                '  .amdhsa_group_segment_fixed_size 0', '  .amdhsa_kernarg_size 80', '  .amdhsa_user_sgpr_count 2',
                '  .amdhsa_user_sgpr_kernarg_segment_ptr 1', '  .amdhsa_system_sgpr_workgroup_id_x 1',
                '  .amdhsa_float_denorm_mode_32 3', '.end_amdhsa_kernel', '']
        return '\n'.join(out)


if __name__ == '__main__':
    cfg = {}
    outp = sys.argv[1]
    for a in sys.argv[2:]:
        k, v = a.split('=')
        try:
            cfg[k] = int(v)
        except ValueError:
            cfg[k] = v
    g = Gen(cfg)
    t = g.text()
    open(outp, 'w').write(t)
    print('wrote', outp, len(t), 'bytes;', 'nops padded:', g.p.npad)
```

```python
import sys, math
from asmlib import *

KNAME = 'interleave_layers__sliding_local_dilated__dense_activation_mish__prompt_kernel'

WS_FLG = 0x0000
WS_HFL = 0x1000
WS_TS = 0x2000
WS_ST = 0x10000
WS_HST = 0x80000
WS_HF = 0x90000
WS_XF = 0x100000
WS_OF = 0x800000
WS_AF = 0x1000000
WS_ACT = 0x2000000
ACT_G = 0x92000
WS_SIZE = 0x2A00000
ST_K = 0x20000; XF_K = 0x200000; OF_R = 0x200000; AF_R = 0x800000

L_CSQ = 0
L_CS1 = 384
L_BB1 = 832
L_W = 2048
L_HALO = 100352
L_RING = 116736
L_EX = 67584
L_EXK = L_EX + 9216
L_W1P = [135168, 106496, 77824, 49152]
L_EXB2 = 2048
L_EXB4 = 100352
LDS_BYTES = 163840
W2_PA = [12, 13, 14, 15, 16, 17, 18, 3, 7]
W2_PB = [0, 1, 2, 4, 5, 6, 8, 9, 10, 11]
def w2pos(t):
    return W2_PA[t] if t < 9 else (W2_PB[t - 9] if t < 19 else W2_PA[t - 19])
W2_T_AT = {w2pos(t): t for t in range(19)}

LOG2E = 1.4426950408889634
LN2 = 0.6931471805599453


def f32(x):
    import struct
    return '0x%08x' % struct.unpack('<I', struct.pack('<f', x))[0]


sRND = 3; sG = 4; sM = 5; sW = 6; sMODE = 7
SRD_X = 8; SRD_WQ = 12; SRD_WO = 16; SRD_W1 = 20; SRD_W2 = 24; SRD_WS = 28; SRD_OUT = 32; SRD_DBG = 36; SRD_B1 = 40
sXCC = 44
sWQ_SRC = 45
sW1K = 46
sWO_SRC = 47
sW1_SRC = 48
sW1_M = 49
sB0 = 50; sB1 = 51
sT0 = 52; sT1 = 53; sT2 = 54; sT3 = 55
sFLGOFF = 56
sGFLG = 57
sST = 58
sTH = 59; sCT = 60
sONE = 62
sM2L = 64
sUP = 66
sMA = 68; sMB = 70; sMC = 72; sMD = 74
sNXT = 76; sIT = 76; sTMO = 77; sTGT = 78; sA = 79; sB = 80; sC = 81; sD = 82
sXR0 = 83; sXR1 = 84
sHSRC = 85
sTB = 86
sGBASE = 87
sTS = 88
sTSO = 90
sOF = 94; sAF = 95; sX1 = 96; sS1 = 97; sX2 = 98; sS2 = 99
sTUX = 100; sTUG = 101
dOF = 83; dAF = 84; dX1 = 85; dS1 = 82
sXL0 = 92; sXL1 = 93

vLANE = 0; vL16 = 1
vR = 2
vONES = 10
vWQA = 14
vE1 = 18; vE2 = 19
vW1A = 20
vW2A = 23
vDQ = 35; vDO = 36; vD1 = 37
vCS = 44
vL128 = 45
vDUM = 247
vCCUR = 46; vCPREV = 50; vCPA = 54
vEXV = 58; vEXK = 59; vEXH = 60; vRVP = 61; vRV = 62; vRK = 63
vLN2 = 64
vEXBW = 66; vEXBR = 67
vSTO = 68
vHOF = 69
vHST = 70
vOUT = 71
vAF = 72
NAF = 6
vACC = 104
vT = 168
vTA = 254; vTB = 255
vWOA = 247
vDUMMY = 246
XD = 12
aWO = 96; aWQ = 160
L_HS = 135168
vDX = 240; vDH = 241; vXA = 242; vXB = 243; vHXA = 244; vHXB = 245


class Gen:
    def __init__(self, cfg):
        self.cfg = cfg
        self.p = Prog()
        self.lbl = 0

    def L(self, name):
        self.lbl += 1
        return '%s_%d' % (name, self.lbl)

    def add(self, *a):
        self.p.add(*a)

    def ts(self, idx, rnd=False):
        if not self.cfg.get('ts'):
            return []
        if 32 <= idx < 52 and self.cfg.get('pts') == 4:
            return [P('s_memtime s[80:81]'), P('s_waitcnt lgkmcnt(0)'), P('v_writelane_b32 v103, s80, %d' % idx)]
        o = [P('s_memrealtime s[92:93]' if self.cfg.get('ts') == 1 else 's_memtime s[92:93]')]
        if rnd:
            o += [P('s_lshl_b32 s91, s%d, 4' % sRND), P('s_add_u32 s91, s91, %d' % idx), P('s_mov_b32 m0, s91'),
                  P('s_waitcnt lgkmcnt(0)'), P('v_writelane_b32 v103, s92, m0')]
        else:
            o += [P('s_waitcnt lgkmcnt(0)'), P('v_writelane_b32 v103, s92, %d' % idx)]
        return o

    def ts_flush(self):
        if not self.cfg.get('ts'):
            return []
        if self.cfg.get('dbgts'):
            o = [P('s_memrealtime s[92:93]'), P('s_waitcnt lgkmcnt(0)'), P('v_readlane_b32 s53, v103, 12'), P('s_nop 4'), P('s_sub_u32 s52, s92, s53'),
                 P('v_writelane_b32 v103, s52, 63')]
            lanes = [1, 2, 10, 27, 28, 63, 6, 9]
            words = [4, 5, 6, 7, 12, 13, 14, 15]
            o += [P('v_readlane_b32 s54, v103, 13')]
            for ln, wd in zip(lanes, words):
                o += [P('v_readlane_b32 s52, v103, %d' % ln), P('s_nop 4')]
                if ln != 63:
                    o += [P('s_sub_u32 s52, s52, s54')]
                o += [P('v_writelane_b32 v252, s52, %d' % wd)]
            o += [P('v_lshlrev_b32 v253, 2, v%d' % vLANE), P('s_cmp_eq_u32 s2, 0'), P('s_cselect_b32 s52, 0, 1'), P('s_or_b32 s52, s52, s%d' % sW),
                  P('s_cmp_eq_u32 s52, 0'), P('s_cselect_b32 s52, 0xf0f0, 0'), P('s_mov_b32 exec_lo, s52'), P('s_mov_b32 exec_hi, 0'),
                  P('s_cbranch_execz L_TSD'),
                  VM('buffer_store_dword v252, v253, s[36:39], 0 offen'), LAB('L_TSD'), P('s_mov_b64 exec, -1')]
            return o
        return [P('v_lshlrev_b32 v252, 2, v%d' % vLANE), VM('buffer_store_dword v103, v252, s[28:31], s90 offen')]

    def dma(self, srd, voff, src_s, src_imm, lds_s, lds_imm, tag=None, st=None):
        st = st if st is not None else sT0
        ops = []
        if lds_s is None:
            ops.append(P('s_mov_b32 m0, %d' % lds_imm))
        else:
            ops.append(P('s_add_u32 m0, s%d, %d' % (lds_s, lds_imm)))
        if src_s is None:
            ops.append(P('s_mov_b32 s%d, %d' % (st, src_imm)))
        else:
            ops.append(P('s_add_u32 s%d, s%d, %d' % (st, src_s, src_imm)))
        if self.cfg.get('nodma') and srd in (SRD_WO, SRD_W1, SRD_W2):
            ops.append(P('s_nop 0'))
            return ops
        nt = ' nt' if (self.cfg.get('nt') and srd in (SRD_W1, SRD_W2)) else ''
        ops.append(VM('buffer_load_dwordx4 v%d, s[%d:%d], s%d offen%s lds' % (voff, srd, srd + 3, st, nt), tag))
        return ops

    def touch(self, srd, unit_s, imm, limit=None, only_r1=False):
        ops = []
        if limit is not None:
            ops += [P('s_add_u32 s55, s%d, %d' % (unit_s, imm[0])), P('s_cmp_lt_u32 s%d, %d' % (unit_s, limit)),
                    P('s_cselect_b32 s55, s55, 0x7ff00000')]
            if imm[1] is not None:
                ops.insert(1, P('s_add_u32 s55, s55, s%d' % imm[1]))
        else:
            ops.append(P('s_add_u32 s55, s%d, %d' % (unit_s, imm)))
        if only_r1:
            ops += [P('s_cmp_eq_u32 s%d, 0' % sRND), P('s_cselect_b32 s55, s55, 0x7ff00000')]
        ops.append(VM('buffer_load_dword v102, v%d, s[%d:%d], s55 offen' % (vL128, srd, srd + 3)))
        return ops

    def touch_w(self, name, only_r1=False):
        srd, size = {'wq': (SRD_WQ, 512 * 3072), 'wo': (SRD_WO, 524288), 'w1': (SRD_W1, 512 * 3584), 'w2': (SRD_W2, 1792 * 1024)}[name]
        return [self.touch(srd, sTUX, k * 0x100000, only_r1=only_r1) for k in range((size + 0xfffff) // 0x100000)]

    def touch_act(self, off, nbytes):
        return [self.touch(SRD_WS, sTUG, (WS_ACT + off, sST), limit=nbytes)]

    def touch_range(self, name, lo, hi, rounds='12'):
        srd = {'wq': SRD_WQ, 'wo': SRD_WO, 'w1': SRD_W1, 'w2': SRD_W2}[name]
        unit = -(-(hi - lo) // (128 * 128)) * 128
        assert unit <= 8192
        nl = unit // 128
        ops = [P('s_lshr_b32 s55, s%d, 13' % sTUX), P('s_mul_i32 s55, s55, %d' % unit), P('s_add_u32 s55, s55, %d' % lo)]
        if rounds != '12':
            ops += [P('s_cmp_eq_u32 s%d, %d' % (sRND, 0 if rounds == '1' else 1)), P('s_cselect_b32 s55, s55, 0x7ff00000')]
        if nl < 64:
            m = (1 << nl) - 1
            ops += [P('s_mov_b32 exec_lo, 0x%x' % (m & 0xffffffff)), P('s_mov_b32 exec_hi, 0x%x' % (m >> 32))]
        ops.append(VM('buffer_load_dword v102, v%d, s[%d:%d], s55 offen' % (vL128, srd, srd + 3)))
        if nl < 64:
            ops.append(P('s_mov_b64 exec, -1'))
        return ops

    def sched_touches(self, phase, first_idx):
        out = []
        for e in str(self.cfg.get('tch', '')).split('+'):
            if not e:
                continue
            f = e.split('.')
            if f[0] != phase:
                continue
            k = int(f[1]); name = f[2]
            if name == 'af1':
                ops = self.touch_act_even(131072, 458752 - 131072, '1')
            elif name == 'af2':
                ops = self.touch_act_even(131072, 458752 - 131072, '2')
            elif name in ('of', 'af', 'xf'):
                ops = self.touch_set(name)[0]
            else:
                ops = self.touch_range(name, int(f[3]) * 1024, int(f[4]) * 1024, f[5] if len(f) > 5 else '12')
            out.append((first_idx[k] + 3, ops))
        return out

    def touch_act_even(self, off, n, rounds='12'):
        unit = -(-n // (64 * 128)) * 128
        nl = unit // 128
        assert nl <= 64
        ops = [P('s_lshr_b32 s55, s%d, 13' % sTUG), P('s_mul_i32 s55, s55, %d' % unit), P('s_add_u32 s55, s55, s%d' % sST),
               P('s_add_u32 s55, s55, %d' % (WS_ACT + off))]
        if rounds != '12':
            ops += [P('s_cmp_eq_u32 s%d, %d' % (sRND, 0 if rounds == '1' else 1)), P('s_cselect_b32 s55, s55, 0x7ff00000')]
        if nl < 64:
            m = (1 << nl) - 1
            ops += [P('s_mov_b32 exec_lo, 0x%x' % (m & 0xffffffff)), P('s_mov_b32 exec_hi, 0x%x' % (m >> 32))]
        ops.append(VM('buffer_load_dword v102, v%d, s[28:31], s55 offen' % vL128))
        if nl < 64:
            ops.append(P('s_mov_b64 exec, -1'))
        return ops

    def touch_code(self, lab0, lab1, base, nl=1):
        return [P('s_lshr_b32 s55, s%d, 13' % sTUX), P('s_mul_i32 s55, s55, %d' % (nl * 128)),
                P('v_add_u32 v%d, s55, v%d' % (253, vL128)),
                P('v_add_u32 v%d, %s-L_PC, v%d' % (253, lab0, 253)),
                P('v_min_u32 v%d, %s-L_PC, v%d' % (253, lab1, 253)),
                P('s_mov_b64 exec, %d' % ((1 << nl) - 1)),
                VM('global_load_dword v102, v%d, s[%d:%d]' % (253, base, base + 1)),
                P('s_mov_b64 exec, -1')]

    def delta(self, dst, shift=7):
        if not self.cfg.get('split', 0):
            return [P('s_mov_b32 s%d, 0' % dst)]
        return [P('s_xor_b32 s%d, s%d, 4' % (dst, sCT)), P('s_sub_u32 s%d, s%d, s%d' % (dst, dst, sCT)), P('s_lshl_b32 s%d, s%d, %d' % (dst, dst, shift))]

    def touch_mall(self):
        o = [P('s_lshl_b32 s54, s2, 2'), P('s_add_u32 s54, s54, s%d' % sW)]
        for srd, first, n in ((SRD_W1, 0, 224), (SRD_W2, 256, 224), (SRD_WO, 512, 64)):
            o += [P('s_sub_u32 s55, s54, %d' % first), P('s_cmp_lt_u32 s55, %d' % n), P('s_cselect_b32 s55, s55, 0x3ff80'),
                  P('s_lshl_b32 s55, s55, 13'),
                  VM('buffer_load_dword v102, v%d, s[%d:%d], s55 offen' % (vL128, srd, srd + 3))]
        return o

    def touch_set(self, spec, only_r1=False):
        out = []
        for name in spec.split(','):
            if not name:
                continue
            if name == 'of':
                out.append(self.touch_act_even(0, 131072))
            elif name == 'af':
                out.append(self.touch_act_even(131072, 458752 - 131072))
            elif name == 'xf':
                out.append(self.touch_act_even(458752, 139264))
            else:
                out += self.touch_w(name, only_r1)
        return out

    def dma_wq_quarter(self, qd, panels=(0, 1, 2), src=None):
        out = []
        for a in range(2):
            for p in panels:
                rg = 8 * qd + 4 * a
                out.append(self.dma(SRD_WQ, vDQ, src if src is not None else sWQ_SRC, rg * 49152 + p * 1024, sW1K, L_W + p * 32768 + rg * 1024))
        return out

    def dma_wo_slot(self, srd, nk, t, kh, pos):
        js = kh * nk + t
        return self.dma(srd, vDO, sWO_SRC, js * 32768, sW1K, L_W + (2 * pos + kh) * 4096)

    def dma_w1_group(self, a):
        out = []
        for u in range(7):
            out.append(self.dma(SRD_W1, vD1 + u, sW1_SRC, a * 4 * 32 * 3584, sW1_M, L_W1P[a] + u * 1024))
        return out

    def window_loop(self, n0, n1, srd, srcA_s, srcA_imm, srcB, ldsC, ldsD, subs):
        lab = self.L('win'); end = self.L('winend')
        o = [P('s_add_u32 s%d, s%d, %d' % (sIT, sW, n0 - 1)),
             P('s_cmp_ge_u32 s%d, %d' % (sIT, n1)),
             P('s_cbranch_scc1 %s' % end),
             LAB(lab),
             P('s_mul_i32 s%d, s%d, %d' % (sA, sIT, srcB))]
        if srcA_s is not None:
            o.append(P('s_add_u32 s%d, s%d, s%d' % (sA, sA, srcA_s)))
        o.append(P('s_add_u32 s%d, s%d, %d' % (sA, sA, srcA_imm)))
        o.append(P('s_mul_i32 s%d, s%d, %d' % (sB, sIT, ldsD)))
        for (voff, so, lo) in subs:
            o.append(P('s_add_u32 m0, s%d, %d' % (sB, ldsC + lo)))
            o.append(P('s_add_u32 s%d, s%d, %d' % (sT0, sA, so)))
            nt = ' nt' if (self.cfg.get('nt') and srd in (SRD_W1, SRD_W2)) else ''
            if self.cfg.get('nodma'):
                o.append(P('s_nop 0'))
            else:
                o.append(P('buffer_load_dwordx4 v%d, s[%d:%d], s%d offen%s lds' % (voff, srd, srd + 3, sT0, nt)))
        o += [P('s_add_u32 s%d, s%d, 3' % (sIT, sIT)),
              P('s_cmp_lt_u32 s%d, %d' % (sIT, n1)),
              P('s_cbranch_scc1 %s' % lab),
              LAB(end)]
        return o

    def win_wq(self, rg0, rg1):
        return [P('s_lshl_b32 s%d, s%d, 6' % (sC, sM))] + self.window_loop(
            rg0, rg1, SRD_WQ, sC, 0, 49152, L_W, 1024, [(vDQ, p * 1024, p * 32768) for p in range(3)])

    def win_wo(self, srd, nk, t0, t1, dpos=0):
        subs = []
        for kh in range(2):
            for q in range(4):
                subs.append((vDO, kh * nk * 32768 + q * 8192, kh * 4096 + q * 1024))
        return [P('s_lshl_b32 s%d, s%d, 7' % (sC, sCT))] + self.window_loop(
            t0, t1, srd, sC, 0, 32768, L_W + dpos * 8192, 8192, subs)

    def win_w1(self, j0, j1):
        a = j0 // 4
        base = L_W1P[a] - j0 * 7168
        for j in range(j0, j1):
            assert L_W1P[j // 4] + (j % 4) * 7168 == base + j * 7168
        return [P('s_mul_i32 s%d, s%d, 224' % (sC, sM))] + self.window_loop(
            j0, j1, SRD_W1, sC, 0, 32 * 3584, base, 7168, [(vD1 + u, 0, u * 1024) for u in range(7)])

    def gemm_loop(self, groups, LA, extras):
        out = []
        n = len(groups)
        for k in range(min(LA, n)):
            out += groups[k].get('pre', []) + groups[k]['reads']
        flat = []
        for gi, g in enumerate(groups):
            rq = []
            if gi + LA < n:
                rq = list(groups[gi + LA].get('pre', [])) + list(groups[gi + LA]['reads'])
            nm = len(g['mf'])
            chunks = [[] for _ in range(nm)]
            reads_total = sum(1 for x in rq if x.kind == 'lg')
            per = max(1, -(-reads_total // nm))
            c = 0; cnt = 0
            for x in rq:
                chunks[min(c, nm - 1)].append(x)
                if x.kind == 'lg':
                    cnt += 1
                    if cnt == per:
                        cnt = 0; c += 1
            for k, (text, waits) in enumerate(g['mf']):
                w = list(waits)
                if k == 0:
                    w += [x.tag for x in g['reads']]
                flat.append((text, w, g.get('premf', []) if k == 0 else [], chunks[k]))
        extras = sorted(extras, key=lambda e: e[0])
        ei = 0
        for idx, (text, w, premf, chunk) in enumerate(flat):
            if idx == 0:
                out += premf + [W(w)]
            out.append(P(text))
            if idx + 1 < len(flat):
                out += flat[idx + 1][2]
                out.append(W(flat[idx + 1][1]))
            out += chunk
            k = 0
            while ei < len(extras) and extras[ei][0] <= idx and k < self.cfg.get('extra_per', 1):
                out += extras[ei][1]
                ei += 1; k += 1
        while ei < len(extras):
            out += extras[ei][1]; ei += 1
        return out

    @staticmethod
    def flat(ops):
        out = []
        for x in ops:
            if x is None:
                continue
            if isinstance(x, (list, tuple)):
                out += Gen.flat(x)
            else:
                out.append(x)
        return out

    def spread(self, ops, start, step=1, nvec=1):
        out = []; cur = []; nv = 0; at = start
        ops = self.flat(ops)
        for i, x in enumerate(ops):
            cur.append(x)
            t = x.text or ''
            if t.startswith('v_') or t.startswith('buffer_') or t.startswith('ds_'):
                nv += 1
                nxt = (ops[i + 1].text or '') if i + 1 < len(ops) else ''
                glued = (t.startswith('v_cmp') and ' vcc,' in t) or (nxt.startswith('v_cndmask') and nxt.rstrip().endswith('vcc'))
                if nv >= nvec and not glued:
                    out.append((at, cur)); cur = []; nv = 0; at += step
        if cur:
            out.append((at, cur))
        return out

    def afrag(self, n):
        return vAF + (n % NAF) * 4

    def prologue(self):
        cfg = self.cfg
        o = self.add
        o(P('s_cmp_ge_u32 s2, 256'), P('s_cbranch_scc1 L_END'))
        if cfg.get('ts'):
            o(P('v_mov_b32 v103, 0'), self.ts(13))
            if cfg.get('dbgts'):
                o(P('s_memrealtime s[92:93]'), P('s_waitcnt lgkmcnt(0)'), P('v_writelane_b32 v103, s92, 12'))
        o(P('s_load_dwordx16 s[72:87], s[0:1], 0'), P('s_load_dwordx4 s[88:91], s[0:1], 64'))
        if cfg.get('t_code', 1):
            nl = cfg.get('code_nl', 2 if cfg.get('code_staged', 1) else 3)
            o(P('s_getpc_b64 s[50:51]'), LAB('L_PC'),
              P('s_lshr_b32 s52, s2, 3'), P('s_mul_i32 s52, s52, %d' % (4 * nl)),
              P('v_lshrrev_b32 v252, 6, v0'), P('v_mul_u32_u24 v252, %d, v252' % nl), P('v_and_b32 v253, 63, v0'),
              P('v_add3_u32 v252, v252, v253, s52'), P('v_lshlrev_b32 v252, 7, v252'),
              P('v_min_u32 v252, %s-L_PC, v252' % ('L_C2' if cfg.get('code_staged', 1) else 'L_END')),
              P('s_mov_b64 exec, %d' % ((1 << nl) - 1)),
              VM('global_load_dword v102, v252, s[50:51]'),
              P('s_mov_b64 exec, -1'))
        o(P('s_getreg_b32 s%d, hwreg(HW_REG_XCC_ID, 0, 4)' % sXCC))
        o(P('s_and_b32 s52, s2, 7'), P('s_lshr_b32 s53, s2, 3'), P('s_lshr_b32 s54, s53, 4'),
          P('s_lshl_b32 s%d, s52, 1' % sG), P('s_add_u32 s%d, s%d, s54' % (sG, sG)),
          P('s_and_b32 s%d, s53, 15' % sM))
        if cfg.get('cross_groups'):
            o(P('s_lshr_b32 s%d, s2, 4' % sG), P('s_and_b32 s%d, s2, 15' % sM))
        o(P('v_lshrrev_b32 v252, 6, v0'), P('v_and_b32 v%d, 63, v0' % vLANE), P('v_readfirstlane_b32 s%d, v252' % sW))
        I = 250; Gq = 251; RR = 249; I3 = 248; t0 = 252; t1 = 253; t2 = 254; t3 = 255
        o(P('v_lshlrev_b32 v%d, 7, v%d' % (vL128, vLANE)), P('v_lshlrev_b32 v%d, 4, v%d' % (vL16, vLANE)))
        o(P('v_lshrrev_b32 v%d, 2, v%d' % (t0, vLANE)), P('v_lshrrev_b32 v%d, 2, v%d' % (t1, t0)),
          P('v_xor_b32 v%d, v%d, v%d' % (t1, t1, vLANE)), P('v_and_b32 v%d, 3, v%d' % (t1, t1)),
          P('v_lshlrev_b32 v%d, 4, v%d' % (t1, t1)),
          P('v_lshl_add_u32 v%d, v%d, 11, v%d' % (vDX, t0, t1)))
        o(P('v_lshlrev_b32 v%d, 1, v%d' % (t2, t0)), P('v_add_u32 v%d, 16, v%d' % (t3, t2)), P('v_add_u32 v%d, 1, v%d' % (t2, t2)),
          P('v_cmp_gt_u32 vcc, 8, v%d' % t0),
          P('s_lshr_b32 s%d, s%d, 3' % (sTH, sM)), P('s_and_b32 s%d, s%d, 7' % (sCT, sM)),
          P('v_cndmask_b32 v%d, v%d, v%d, vcc' % (t2, t2, t3)),
          P('v_lshl_add_u32 v%d, v%d, 10, v%d' % (vDH, t2, t1)),
          P('s_cmp_eq_u32 s%d, 0' % sG), P('s_cselect_b32 s53, 0x40000000, 0'), P('v_or_b32 v%d, s53, v%d' % (vDH, vDH)))
        o(P('v_lshrrev_b32 v%d, 4, v%d' % (t1, vLANE)), P('v_lshrrev_b32 v%d, 1, v%d' % (t2, vLANE)),
          P('v_xor_b32 v%d, v%d, v%d' % (t1, t1, t2)), P('v_and_b32 v%d, 1, v%d' % (t1, t1)),
          P('v_lshlrev_b32 v%d, 5, v%d' % (t1, t1)), P('v_and_b32 v%d, 1, v%d' % (t2, vLANE)),
          P('v_lshl_add_u32 v%d, v%d, 4, v%d' % (t1, t2, t1)),
          P('v_mul_u32_u24 v%d, 3072, v%d' % (t2, t0)), P('v_add_u32 v%d, v%d, v%d' % (vDQ, t1, t2)))
        o(P('s_mov_b32 s%d, 0' % sRND), P('s_mov_b32 s%d, 0' % sMODE),
          P('s_mul_i32 s%d, s%d, 49152' % (sWQ_SRC, sW)), P('s_lshl_b32 s52, s%d, 6' % sM),
          P('s_add_u32 s%d, s%d, s52' % (sWQ_SRC, sWQ_SRC)),
          P('s_lshl_b32 s%d, s%d, 10' % (sW1K, sW)),
          P('s_lshl_b32 s%d, s%d, 13' % (sWO_SRC, sW)), P('s_and_b32 s52, s%d, %d' % (sCT, 3 if cfg.get('split', 0) else 7)), P('s_lshl_b32 s52, s52, 7'),
          P('s_add_u32 s%d, s%d, s52' % (sWO_SRC, sWO_SRC)),
          P('s_mul_i32 s%d, s%d, %d' % (sW1_SRC, sW, 32 * 3584)), P('s_mul_i32 s52, s%d, 224' % sM),
          P('s_add_u32 s%d, s%d, s52' % (sW1_SRC, sW1_SRC)),
          P('s_mul_i32 s%d, s%d, 7168' % (sW1_M, sW)),
          P('s_lshl_b32 s%d, s%d, 8' % (sGFLG, sG)),
          P('s_lshl_b32 s52, s%d, 2' % sM), P('s_add_u32 s52, s52, s%d' % sW), P('s_lshl_b32 s52, s52, 2'),
          P('s_add_u32 s%d, s%d, s52' % (sFLGOFF, sGFLG)),
          P('s_and_b32 s52, s%d, 1' % sG), P('s_lshl_b32 s52, s52, 4'), P('s_add_u32 s52, s52, s%d' % sM),
          P('s_lshl_b32 s52, s52, 2'), P('s_add_u32 s52, s52, s%d' % sW), P('s_lshl_b32 s%d, s52, 13' % sTUX),
          P('s_mul_i32 s94, s52, 2176'),
          P('s_lshl_b32 s52, s%d, 2' % sM), P('s_add_u32 s52, s52, s%d' % sW), P('s_lshl_b32 s%d, s52, 13' % sTUG),
          P('s_mul_i32 s%d, s%d, %d' % (sST, sG, ACT_G)),
          P('s_andn2_b32 s52, s%d, 1' % sG), P('s_lshl_b32 s52, s52, 17'), P('s_sub_u32 s52, s52, 16384'),
          P('s_max_i32 s52, s52, 0'), P('s_add_u32 s94, s94, s52'),
          P('s_lshl_b32 s52, s%d, 7' % sG), P('s_sub_u32 s53, s52, 32'), P('s_lshl_b32 s97, s53, 10'),
          P('s_cmp_eq_u32 s%d, 0' % sG), P('s_cselect_b32 s97, 0, s97'), P('s_lshl_b32 s53, s%d, 6' % sW), P('s_add_u32 s97, s97, s53'))
        for b in range(2):
            o(P('s_lshl_b32 s53, s%d, 1' % sW), P('s_add_u32 s53, s53, %d' % b), P('s_and_b32 s53, s53, 3'),
              P('s_lshl_b32 s53, s53, 5'), P('s_add_u32 s53, s53, s52'), P('s_lshr_b32 s54, s%d, 1' % sW),
              P('s_add_u32 s53, s53, s54'), P('s_lshl_b32 s%d, s53, 10' % (95 + b)))
        o(P('s_lshl_b32 s98, s%d, 11' % sW))
        o(P('s_waitcnt lgkmcnt(0)'))
        if cfg.get('pts') == 1:
            o(self.ts(14))
        def srd(dst, src, size):
            return [P('s_mov_b32 s%d, s%d' % (dst, src)), P('s_and_b32 s%d, s%d, 0xffff' % (dst + 1, src + 1)),
                    P('s_mov_b32 s%d, 0x%x' % (dst + 2, size)), P('s_mov_b32 s%d, 0x20000' % (dst + 3))]
        o(srd(SRD_X, 72, 2097152), srd(SRD_WQ, 74, 512 * 3072))
        tp = cfg.get('t_pro', 1)
        def tq(q):
            return self.touch_range('wq', q * 393216, (q + 1) * 393216) if tp else []
        if tp:
            o(P('s_mov_b32 exec_lo, 0x1ffff'), P('s_mov_b32 exec_hi, 0'),
              VM('buffer_load_dword v102, v%d, s[8:11], s94 offen' % vL128), P('s_mov_b64 exec, -1'))
        two = cfg.get('two_stage', 0)
        if two:
            o(P('s_lshl_b32 s55, s2, 2'), P('s_add_u32 s55, s55, s%d' % sW), P('s_mul_i32 s55, s55, 1536'),
              P('s_mov_b32 exec_lo, 0xfff'), P('s_mov_b32 exec_hi, 0'),
              VM('buffer_load_dword v102, v%d, s[12:15], s55 offen' % vL128), P('s_mov_b64 exec, -1'))
            self.late_t = [tq(0), tq(1)]
        else:
            o(tq(0), tq(1))
            self.late_t = []
        allfirst = cfg.get('cold', 'A') == 'A'
        coldD = cfg.get('cold', 'A') in ('D', 'E')
        if allfirst:
            o(tq(2), tq(3))
        if coldD:
            o(tq(2))
        o(srd(SRD_WO, 76, 524288), srd(SRD_W1, 80, 512 * 3584), srd(SRD_B1, 82, 3584), srd(SRD_W2, 84, 1792 * 1024),
          srd(SRD_OUT, 86, 2097152), srd(SRD_DBG, 88, 256), srd(SRD_WS, 90, WS_SIZE))
        o(P('s_mov_b32 s%d, s95' % sXR0), P('s_mov_b32 s%d, s96' % sXR1), P('s_mov_b32 s%d, s97' % sHSRC), P('s_mov_b32 s%d, s98' % sD))
        o(P('s_and_b32 s52, s%d, 1' % sG), P('s_lshl_b32 s52, s52, 3'), P('s_add_u32 s52, s52, s%d' % sM),
          P('s_and_b32 s99, s52, %d' % (15 if cfg.get('rot', 0) else 0)), P('s_lshl_b32 s98, s99, 1'), P('s_add_u32 s98, s98, s%d' % sW),
          P('s_lshl_b32 s95, s%d, 6' % sM), P('s_lshl_b32 s52, s%d, 6' % sW), P('s_sub_u32 s%d, s%d, s52' % (sHSRC, sHSRC)))
        self.tq = (lambda q: []) if (allfirst or coldD) else tq
        self.tq3 = tq(3) if coldD else None
        if cfg.get('t_mall', 0) == 1:
            o(self.touch_mall())
        if cfg.get('prezero'):
            o(P('v_mov_b32 v244, 0'), P('v_mov_b32 v245, 0'), P('v_mov_b32 v246, 0'), P('v_mov_b32 v247, 0'),
              P('s_lshr_b32 s55, s%d, 13' % sTUG), P('s_mul_i32 s55, s55, 9344'), P('s_add_u32 s55, s55, s%d' % sST), P('s_add_u32 s55, s55, %d' % WS_ACT))
            for k in range(9):
                if k % 4 == 0 and k:
                    o(P('s_add_u32 s55, s55, 4096'))
                o(VM('buffer_store_dwordx4 v[244:247], v%d, s[28:31], s55 offen offset:%d sc1' % (vL16, (k % 4) * 1024)))
            o(P('s_mov_b64 exec, 0xff'), VM('buffer_store_dwordx4 v[244:247], v%d, s[28:31], s55 offen offset:1024 sc1' % vL16), P('s_mov_b64 exec, -1'))
        self.tag_init = newtag('init')
        o(P('v_mov_b32 v%d, 0' % t1), P('s_mov_b64 exec, 1'),
          VM('buffer_store_dword v%d, v%d, s[28:31], s%d offen sc1' % (t1, t1, sFLGOFF), self.tag_init),
          P('s_mov_b64 exec, -1'))
        if cfg.get('pts') == 1:
            o(self.ts(15))
        o(P('v_and_b32 v%d, 15, v%d' % (I, vLANE)), P('v_lshrrev_b32 v%d, 4, v%d' % (Gq, vLANE)),
          P('v_lshrrev_b32 v%d, 2, v%d' % (t0, I)), P('v_lshl_add_u32 v%d, v%d, 2, v%d' % (RR, Gq, t0)),
          P('v_and_b32 v%d, 3, v%d' % (I3, I)))
        for k in range(4):
            o(P('v_mov_b32 v%d, 0x3f803f80' % (vONES + k)))
        o(P('v_lshlrev_b32 v%d, 6, v%d' % (t0, RR)), P('v_lshl_add_u32 v%d, v%d, 3, v%d' % (t0, I3, t0)),
          P('v_add_u32 v%d, %d, v%d' % (t0, L_W, t0)),
          P('v_and_b32 v%d, 1, v%d' % (t1, Gq)), P('v_lshlrev_b32 v%d, 5, v%d' % (t1, t1)),
          P('v_add_u32 v%d, v%d, v%d' % (vWQA, t0, t1)),
          P('v_xor_b32 v%d, 32, v%d' % (t2, t1)), P('v_add_u32 v%d, v%d, v%d' % (vWQA + 1, t0, t2)),
          P('v_add_u32 v%d, 0x10000, v%d' % (vWQA + 2, vWQA)), P('v_add_u32 v%d, 0x10000, v%d' % (vWQA + 3, vWQA + 1)))
        o(P('s_and_b32 s53, s%d, 1' % sW), P('s_lshl_b32 s53, s53, 5'), P('v_xor_b32 v%d, s53, v%d' % (t2, t1)),
          P('v_add_u32 v%d, v%d, v%d' % (vE2, t0, t2)),
          P('s_lshr_b32 s53, s%d, 1' % sW), P('s_add_u32 s53, s53, 1'), P('s_lshl_b32 s53, s53, 15'),
          P('v_add_u32 v%d, s53, v%d' % (vE1, vE2)))
        o(P('v_lshrrev_b32 v%d, 1, v%d' % (t0, Gq)), P('v_lshrrev_b32 v%d, 2, v%d' % (t1, I)),
          P('v_xor_b32 v%d, v%d, v%d' % (t0, t0, t1)), P('v_lshlrev_b32 v%d, 4, v%d' % (t0, t0)),
          P('v_lshl_add_u32 v%d, v%d, 6, v%d' % (t0, I, t0)),
          P('v_and_b32 v%d, 1, v%d' % (t1, Gq)), P('v_lshl_add_u32 v%d, v%d, 3, v%d' % (t0, t1, t0)),
          P('v_add_u32 v%d, %d, v%d' % (vHXA, L_HALO, t0)), P('v_xor_b32 v%d, 32, v%d' % (vHXB, vHXA)),
          P('s_lshl_b32 s53, s%d, 11' % sW), P('s_add_u32 s53, s53, %d' % L_RING),
          P('v_add_u32 v%d, s53, v%d' % (vXA, t0)), P('v_xor_b32 v%d, 32, v%d' % (vXB, vXA)))
        o(P('v_cmp_eq_u32 s[%d:%d], 1, v%d' % (sMA, sMA + 1, I3)), P('v_cmp_eq_u32 s[%d:%d], 2, v%d' % (sMB, sMB + 1, I3)),
          P('v_cmp_eq_u32 s[%d:%d], 3, v%d' % (sMC, sMC + 1, I3)), P('v_lshrrev_b32 v%d, 2, v%d' % (t0, I)),
          P('v_cmp_eq_u32 s[%d:%d], v%d, v%d' % (sMD, sMD + 1, t0, Gq)))
        o(P('v_lshlrev_b32 v%d, 4, v%d' % (vCS, Gq)))
        o(P('s_lshl_b32 s%d, s%d, 17' % (sGBASE, sG)),
          P('s_lshl_b32 s52, s%d, 2' % sTH), P('s_add_u32 s%d, s52, s%d' % (sTB, sW)))
        if cfg.get('ts'):
            o(P('s_lshl_b32 s52, s2, 2'), P('s_add_u32 s52, s52, s%d' % sW), P('s_lshl_b32 s52, s52, 8'),
              P('s_add_u32 s%d, s52, %d' % (sTSO, 0x1F80000)))
        su = self.setup2()
        su = self.flat(su)
        cut = len(su) * cfg.get('two_cut', 100) // 100
        while cut < len(su) and not (su[cut - 1].text.startswith('v_') and su[cut].text.startswith('v_') and 'vcc' not in su[cut - 1].text + su[cut].text
                                     and ' s' not in su[cut].text):
            cut += 1
        o(su[:cut], self.late_t, su[cut:])
        if cfg.get('pts') == 1:
            o(self.ts(29))
        self.xslot = {}; self.wq_q = {}; self.halo_dma = []
        for j in range(16):
            self.xslot[j] = self.x_ring_dma(j)
        for q in range(4):
            self.wq_q[q] = self.wq_rot_quarter(q)
        for a in range(4):
            if not cfg.get('rot', 0):
                self.halo_dma.append(self.dma(SRD_X, vDH, 97, a * 256, sW1K, L_HALO + a * 4096))
                continue
            self.halo_dma.append([P('s_add_u32 m0, s%d, %d' % (sW1K, L_HALO + a * 4096)), P('s_add_u32 s52, s99, s%d' % sW), P('s_add_u32 s52, s52, %d' % (4 * a)),
                                  P('s_and_b32 s52, s52, 15'), P('s_lshl_b32 s52, s52, 6'), P('s_add_u32 s52, s52, s%d' % sHSRC),
                                  VM('buffer_load_dwordx4 v%d, s[8:11], s52 offen lds' % vDH)])
        o(self.xslot[0], self.wq_q[0], self.halo_dma[0], self.xslot[1])
        if cfg.get('pts') == 1:
            o(self.ts(30))

    def setup2(self):
        I = 228; Gq = 229; RR = 230; I3 = 231; t0 = 232; t1 = 233; t2 = 234; t3 = 235; tr = 236
        o = []
        o += [P('v_and_b32 v%d, 15, v%d' % (I, vLANE)), P('v_lshrrev_b32 v%d, 4, v%d' % (Gq, vLANE)),
              P('v_lshrrev_b32 v%d, 2, v%d' % (t0, I)), P('v_lshl_add_u32 v%d, v%d, 2, v%d' % (RR, Gq, t0)),
              P('v_and_b32 v%d, 3, v%d' % (I3, I))]
        o += [P('v_lshrrev_b32 v%d, 3, v%d' % (t0, vLANE)), P('v_lshrrev_b32 v%d, 1, v%d' % (t1, t0)),
              P('v_lshrrev_b32 v%d, 1, v%d' % (t2, vLANE)), P('v_xor_b32 v%d, v%d, v%d' % (t1, t1, t2)),
              P('v_and_b32 v%d, 3, v%d' % (t1, t1)), P('v_lshlrev_b32 v%d, 5, v%d' % (t1, t1)),
              P('v_and_b32 v%d, 1, v%d' % (t2, vLANE)), P('v_lshl_add_u32 v%d, v%d, 4, v%d' % (t1, t2, t1)),
              P('v_lshl_add_u32 v%d, v%d, 10, v%d' % (vDO, t0, t1))]
        if self.cfg.get('split', 0):
            o += [P('s_and_b32 s80, s%d, 4' % sCT), P('s_lshl_b32 s80, s80, 7'), P('s_xor_b32 s81, s80, 512'),
                  P('v_add_u32 v%d, s81, v%d' % (t2, vDO)), P('v_add_u32 v%d, s80, v%d' % (vDO, vDO)),
                  P('v_and_b32 v%d, 64, v%d' % (t1, t1)), P('v_cmp_ne_u32 vcc, 0, v%d' % t1),
                  P('v_cndmask_b32 v%d, v%d, v%d, vcc' % (vDO, vDO, t2))]
        for c in range(448):
            assert (c * 4682) >> 16 == c // 14
        for u in range(7):
            o += [P('v_add_u32 v%d, %d, v%d' % (t0, 64 * u, vLANE)), P('v_mul_u32_u24 v%d, 4682, v%d' % (t1, t0)),
                  P('v_lshrrev_b32 v%d, 16, v%d' % (t1, t1)), P('v_mul_u32_u24 v%d, 14, v%d' % (t2, t1)),
                  P('v_sub_u32 v%d, v%d, v%d' % (t2, t0, t2)), P('v_lshlrev_b32 v%d, 4, v%d' % (t2, t2)),
                  P('v_mul_u32_u24 v%d, 3584, v%d' % (t1, t1)), P('v_add_u32 v%d, v%d, v%d' % (vD1 + u, t1, t2))]
        o += [P('s_lshl_b32 s80, s%d, 7' % sG), P('s_lshl_b32 s81, s%d, 5' % sW), P('s_add_u32 s80, s80, s81'), P('s_add_u32 s80, s80, s%d' % sTH),
              P('s_lshl_b32 s80, s80, 10'), P('s_lshl_b32 s81, s%d, 7' % sCT), P('s_add_u32 s61, s80, s81'),
              P('v_lshlrev_b32 v%d, 11, v%d' % (t1, I)), P('v_lshl_add_u32 v%d, v%d, 3, v%d' % (tr, Gq, t1))]
        self.tag_res = [newtag('res') for _ in range(4)]
        self.res_ops = []
        for fb in range(4):
            pre = (self.delta(55) + [P('s_add_u32 s55, s55, s61')]) if fb >= 2 else []
            self.res_ops.append(pre + [VM('buffer_load_dwordx2 v[%d:%d], v%d, s[8:11], s%d offen offset:%d' % (vR + 2 * fb, vR + 2 * fb + 1, tr, 55 if fb >= 2 else 61, fb * 32), self.tag_res[fb])])
        self.tag_b1 = newtag('b1')
        self.b1_op = [P('v_lshlrev_b32 v%d, 2, v%d' % (237, vLANE)), P('s_mul_i32 s80, s%d, 224' % sM),
                      VM('buffer_load_dword v247, v237, s[40:43], s80 offen', self.tag_b1)]
        o += [P('v_and_b32 v%d, 1, v%d' % (t2, Gq)), P('v_lshlrev_b32 v%d, 5, v%d' % (t2, t2)),
              P('v_lshrrev_b32 v%d, 1, v%d' % (t3, Gq)), P('v_lshl_add_u32 v%d, v%d, 4, v%d' % (t2, t3, t2)),
              P('v_lshl_add_u32 v%d, v%d, 11, v%d' % (vOUT, I, t2))]
        o += [P('s_mov_b32 s%d, 1.0' % sONE), P('s_mov_b32 s%d, 1.0' % (sONE + 1)),
              P('s_mov_b32 s%d, %s' % (sM2L, f32(-2 * LN2))), P('s_mov_b32 s%d, %s' % (sM2L + 1, f32(-2 * LN2))),
              P('v_mov_b32 v%d, %s' % (vLN2, f32(LN2))), P('v_mov_b32 v%d, %s' % (vLN2 + 1, f32(LN2)))]
        o += [P('v_mul_u32_u24 v%d, 224, v%d' % (t0, RR)), P('v_lshl_add_u32 v%d, v%d, 3, v%d' % (vW1A, I3, t0)),
              P('v_add_u32 v%d, 0x10000, v%d' % (vW1A + 1, vW1A)), P('v_add_u32 v%d, 0x20000, v%d' % (vW1A + 2, vW1A))]
        o += [P('v_lshlrev_b32 v%d, 7, v%d' % (t0, RR)), P('v_lshl_add_u32 v%d, v%d, 3, v%d' % (t0, I3, t0)),
              P('s_and_b32 s80, s%d, %d' % (sW, 0 if self.cfg.get('pA', 0) else 1)), P('s_lshl_b32 s80, s80, 12'), P('s_add_u32 s80, s80, %d' % L_W),
              P('v_add_u32 v%d, s80, v%d' % (t0, t0)),
              P('v_lshrrev_b32 v%d, 1, v%d' % (t1, RR)), P('v_and_b32 v%d, 3, v%d' % (t1, t1))]
        for fb in range(4):
            o += [P('v_xor_b32 v%d, %d, v%d' % (t2, fb, t1)), P('v_lshl_add_u32 v%d, v%d, 5, v%d' % (vW2A + fb * 3, t2, t0)),
                  P('v_add_u32 v%d, 0x10000, v%d' % (vW2A + fb * 3 + 1, vW2A + fb * 3)),
                  P('v_add_u32 v%d, 0x20000, v%d' % (vW2A + fb * 3 + 2, vW2A + fb * 3))]
        NEG = f32(-1e30)
        o += [P('v_mov_b32 v%d, %s' % (t3, NEG))]
        for r in range(4):
            o += [P('v_lshl_add_u32 v%d, v%d, 2, %d' % (t0, Gq, r)),
                  P('v_sub_u32 v%d, v%d, v%d' % (t1, I, t0)), P('v_cmp_gt_u32 vcc, 8, v%d' % t1),
                  P('v_cndmask_b32_e64 v%d, v%d, 0, vcc' % (vCCUR + r, t3)),
                  P('v_add_u32 v%d, 9, v%d' % (t1, I)), P('v_cmp_ge_u32 vcc, v%d, v%d' % (t0, t1)),
                  P('v_cndmask_b32_e64 v%d, v%d, 0, vcc' % (vCPREV + r, t3))]
        o += [P('s_and_b32 s80, s%d, 1' % sW), P('s_or_b32 s80, s80, s%d' % sG), P('s_cmp_eq_u32 s80, 0'), P('s_cselect_b64 vcc, -1, 0')]
        for r in range(4):
            o.append(P('v_cndmask_b32 v%d, v%d, v%d, vcc' % (vCPA + r, vCPREV + r, t3)))
        o += [P('v_lshlrev_b32 v%d, 2, v%d' % (t0, Gq)), P('v_add_u32 v%d, 6, v%d' % (t1, I)),
              P('v_cmp_ge_u32 s[%d:%d], v%d, v%d' % (sUP, sUP + 1, t0, t1))]
        o += [P('v_lshlrev_b32 v%d, 5, v%d' % (t0, I)), P('v_lshl_add_u32 v%d, v%d, 3, v%d' % (t0, Gq, t0)),
              P('s_lshl_b32 s80, s%d, 11' % sW), P('s_add_u32 s80, s80, %d' % L_EX), P('v_add_u32 v%d, s80, v%d' % (vEXV, t0))]
        o += [P('s_lshr_b32 s80, s%d, 1' % sW), P('s_add_u32 s81, s80, 3'), P('s_bitcmp1_b32 s%d, 0' % sW),
              P('s_cselect_b32 s80, s81, s80'), P('s_lshl_b32 s80, s80, 10'), P('s_add_u32 s80, s80, %d' % L_EXK),
              P('v_lshlrev_b32 v%d, 3, v%d' % (t1, vLANE)), P('v_add_u32 v%d, s80, v%d' % (vEXK, t1))]
        o += [P('s_and_b32 s80, s%d, 1' % sW), P('s_lshl_b32 s80, s80, 9'),
              P('s_add_u32 s81, s80, %d' % (L_EXK + 2048)), P('v_add_u32 v%d, s81, v%d' % (t2, t1)),
              P('s_add_u32 s81, s80, %d' % (L_EX + 8192)), P('v_add_u32 v%d, s81, v%d' % (t3, t0)),
              P('s_cmp_ge_u32 s%d, 2' % sW), P('s_cselect_b64 vcc, -1, 0'),
              P('v_cndmask_b32 v%d, v%d, v%d, vcc' % (vEXH, t2, t3))]
        o += [P('v_lshlrev_b32 v%d, 5, v%d' % (t0, RR)), P('v_lshl_add_u32 v%d, v%d, 3, v%d' % (t0, I3, t0)),
              P('s_lshl_b32 s80, s%d, 11' % sW), P('s_add_u32 s80, s80, %d' % L_EX), P('v_add_u32 v%d, s80, v%d' % (vRV, t0))]
        o += [P('v_subrev_u32 v%d, 1024, v%d' % (t1, vRV)),
              P('v_add_u32 v%d, %d, v%d' % (t2, L_EX + 8192, t0)),
              P('v_subrev_u32 v%d, 256, v%d' % (t3, t2)),
              P('v_cmp_le_u32 vcc, 8, v%d' % RR), P('v_cndmask_b32 v%d, v%d, v%d, vcc' % (t3, t2, t3)),
              P('s_cmp_eq_u32 s%d, 0' % sW), P('s_cselect_b64 vcc, -1, 0'), P('v_cndmask_b32 v%d, v%d, v%d, vcc' % (t2, t2, t3)),
              P('s_bitcmp1_b32 s%d, 0' % sW), P('s_cselect_b64 vcc, -1, 0'), P('v_cndmask_b32 v%d, v%d, v%d, vcc' % (vRVP, t2, t1))]
        o += [P('v_lshlrev_b32 v%d, 3, v%d' % (t0, vLANE)),
              P('s_lshr_b32 s80, s%d, 1' % sW), P('s_bitcmp1_b32 s%d, 0' % sW), P('s_cselect_b32 s80, s80, 2'),
              P('s_lshl_b32 s80, s80, 10'), P('s_add_u32 s80, s80, %d' % L_EXK), P('v_add_u32 v%d, s80, v%d' % (t0, t0)),
              P('v_subrev_u32 v%d, 64, v%d' % (t1, t0)), P('v_cmp_le_u32 vcc, 8, v%d' % I),
              P('v_cndmask_b32 v%d, v%d, v%d, vcc' % (t1, t0, t1)),
              P('s_cmp_eq_u32 s%d, 0' % sW), P('s_cselect_b64 vcc, -1, 0'), P('v_cndmask_b32 v%d, v%d, v%d, vcc' % (vRK, t0, t1))]
        o += [P('s_lshl_b32 s80, s%d, 12' % sW), P('v_add_u32 v%d, s80, v%d' % (vEXBW, vL16)),
              P('v_xor_b32 v%d, 0x1000, v%d' % (vEXBR, vEXBW))]
        o += [P('s_lshr_b32 s80, s%d, 1' % sCT), P('s_lshl_b32 s80, s80, 8'), P('s_and_b32 s81, s%d, 1' % sCT),
              P('s_lshl_b32 s81, s81, 3'), P('s_add_u32 s80, s80, s81'),
              P('v_lshlrev_b32 v%d, 4, v%d' % (t0, I)), P('v_add_u32 v%d, s80, v%d' % (vSTO, t0))]
        o += [P('s_cmp_eq_u32 s%d, 0' % sTH), P('s_cselect_b32 s81, 8, 0'),
              P('v_subrev_u32 v%d, s81, v%d' % (t0, I)),
              P('v_lshl_add_u32 v%d, v%d, 4, v%d' % (t1, Gq, t0)), P('v_lshlrev_b32 v%d, 4, v%d' % (t1, t1)),
              P('v_lshlrev_b32 v%d, 4, v%d' % (t2, t0)), P('v_add_u32 v%d, s80, v%d' % (t2, t2)),
              P('s_cmp_eq_u32 s%d, 3' % sW), P('s_cselect_b32 s80, 0, 0x40000000'),
              P('s_cmp_eq_u32 s%d, 15' % sG), P('s_cselect_b32 s80, 0x40000000, s80'),
              P('v_mov_b32 v%d, 0x40000000' % t3), P('v_cmp_le_u32 vcc, 8, v%d' % I),
              P('v_cndmask_b32 v%d, v%d, v%d, vcc' % (t1, t3, t1)), P('v_cndmask_b32 v%d, v%d, v%d, vcc' % (t2, t3, t2)),
              P('v_or_b32 v%d, s80, v%d' % (vHOF, t1)), P('v_or_b32 v%d, s80, v%d' % (vHST, t2))]
        return o

    def wq_stash(self, va, vb):
        o = [P('s_lshl_b32 s53, s%d, 10' % sW), P('s_add_u32 s53, s53, %d' % L_W), P('v_add_u32 v%d, s53, v%d' % (va, vL16)),
             P('v_add_u32 v%d, 0x10000, v%d' % (vb, va))]
        for p in range(12):
            for c in range(2):
                a = p * 8192 + c * 4096
                o.append(LG('ds_read_b128 %s, v%d offset:%d' % (ar(aWQ + (2 * p + c) * 4, 4), va if a < 65536 else vb, a & 0xffff)))
        return o

    def wo_stash(self):
        sk = self.L('wos')
        o = [P('s_cmp_lg_u32 s%d, 0' % sRND), P('s_cbranch_scc1 %s' % sk),
             P('s_lshl_b32 s53, s%d, 10' % sW), P('s_add_u32 s53, s53, %d' % L_W), P('v_add_u32 v%d, s53, v%d' % (vTA, vL16))]
        for c in range(16):
            o.append(P('ds_read_b128 %s, v%d offset:%d' % (ar(aWO + 4 * c, 4), vTA, c * 4096)))
        o += [P('s_waitcnt lgkmcnt(0)'), LAB(sk)]
        return o

    def p1_epi_fill(self):
        out = []
        wo = [self.dma_wo_slot(SRD_WO, 8, t, kh, t) for t in range(8) for kh in range(2)]
        a0 = self.dma_w1_group(0)
        gs = self.cfg.get('fill_g', 4)
        a0groups = [a0[0:2], a0[2:4], a0[4:6], a0[6:7]]
        for c0 in range(0, 16, gs):
            sk = self.L('wr1')
            e = [P('s_cmp_lg_u32 s%d, 0' % sRND), P('s_cbranch_scc1 %s ;nopad' % sk)]
            for c in range(c0, c0 + gs):
                e += [P(x.text) for x in wo[c]]
            e += [LAB(sk)]
            out.append(e)
        res = []
        for k, e in enumerate(out):
            res.append(e)
            n_a = 4 // len(out) if len(out) <= 4 else (1 if k % (len(out) // 4) == 0 else 0)
            for q in range(n_a):
                if a0groups:
                    sk = self.L('wr2')
                    blk = [P('s_cmp_eq_u32 s%d, 0' % sRND), P('s_cbranch_scc1 %s ;nopad' % sk)]
                    for d in a0groups.pop(0):
                        blk += [P(x.text) for x in d]
                    res.append(blk + [LAB(sk)])
        out = res
        return out

    def wo_restore(self):
        sk = self.L('wor')
        o = [P('s_cmp_eq_u32 s%d, 0' % sRND), P('s_cbranch_scc1 %s' % sk)]
        for c in range(16):
            o.append(P('ds_write_b128 v%d, %s offset:%d' % (vWOA, ar(aWO + 4 * c, 4), c * 4096)))
        return o + [LAB(sk)]

    def wq_restore(self, positions, va, vb):
        o = []
        for p in positions:
            for c in range(2):
                a = p * 8192 + c * 4096
                o.append([P('s_mov_b64 exec, s[74:75]'),
                          LG('ds_write_b128 v%d, %s offset:%d' % (va if a < 65536 else vb, ar(aWQ + (2 * p + c) * 4, 4), a & 0xffff)),
                          P('s_mov_b64 exec, -1')])
        return o

    def x_ring_dma(self, j):
        if not self.cfg.get('rot', 0):
            return [self.dma(SRD_X, vDX, sXR0 + b, j * 64, sD, L_RING + (j % 5) * 8192 + b * 1024) for b in range(2)]
        out = []
        for b in range(2):
            ops = [P('s_add_u32 m0, s%d, %d' % (sD, L_RING + (j % 5) * 8192 + b * 1024)),
                   P('s_add_u32 s52, s99, %d' % j), P('s_and_b32 s52, s52, 15'), P('s_lshl_b32 s52, s52, 6'),
                   P('s_add_u32 s52, s52, s%d' % (sXR0 + b)),
                   VM('buffer_load_dwordx4 v%d, s[8:11], s52 offen lds' % vDX)]
            out.append(ops)
        return out

    def wq_rot_quarter(self, qd):
        if not self.cfg.get('rot', 0):
            return self.dma_wq_quarter(qd)
        out = []
        for a in range(2):
            for p in range(3):
                rg = 8 * qd + 4 * a
                out.append([P('s_add_u32 m0, s%d, %d' % (sW1K, L_W + p * 32768 + rg * 1024)),
                            P('s_add_u32 s52, s98, %d' % rg), P('s_and_b32 s52, s52, 31'), P('s_mul_i32 s52, s52, 49152'),
                            P('s_add_u32 s52, s52, s95'), P('s_add_u32 s52, s52, %d' % (p * 1024)),
                            VM('buffer_load_dwordx4 v%d, s[12:15], s52 offen lds' % vDQ)])
        return out

    @staticmethod
    def vmtags(ops):
        t = []
        for x in ops:
            if isinstance(x, (list, tuple)):
                t += Gen.vmtags(x)
            elif x is not None and not isinstance(x, str) and x.kind == 'vm':
                t.append(x.tag)
        return t

    def finish_stats(self, s1, s2, pair_kv, pair_q=None, scale=None):
        t = vT + 80
        o = [P('v_mul_f32 v%d, %s, v%d' % (t, f32(1 / 512), s1)),
             P('v_mul_f32 v%d, %s, v%d' % (t + 1, f32(1 / 512), s2)),
             P('v_fma_f32 v%d, -v%d, v%d, v%d' % (t + 1, t, t, t + 1)),
             P('v_max_f32 v%d, 0, v%d' % (t + 1, t + 1)),
             P('v_add_f32 v%d, %s, v%d' % (t + 1, f32(1e-5), t + 1)),
             P('v_rsq_f32 v%d, v%d' % (pair_kv, t + 1))]
        if scale is not None:
            o.append(P('v_mul_f32 v%d, %s, v%d' % (pair_kv, f32(scale), pair_kv)))
        o.append(P('v_mul_f32 v%d, -v%d, v%d' % (pair_kv + 1, t, pair_kv)))
        if pair_q is not None:
            qs = f32(0.25 * LOG2E)
            o += [P('v_mul_f32 v%d, %s, v%d' % (pair_q, qs, pair_kv)), P('v_mul_f32 v%d, %s, v%d' % (pair_q + 1, qs, pair_kv + 1))]
        return o

    def reduce_g2(self, a, b):
        t = vT + 84
        return [P('v_permlane32_swap_b32 v%d, v%d' % (a, b)), P('v_add_f32 v%d, v%d, v%d' % (a, a, b)),
                P('v_mov_b32 v%d, v%d' % (t, a)), P('v_permlane16_swap_b32 v%d, v%d' % (a, t)),
                P('v_add_f32 v%d, v%d, v%d' % (a, a, t)), P('v_mov_b32 v%d, v%d' % (b, a)),
                P('v_permlane32_swap_b32 v%d, v%d' % (a, b))]

    def stats_from_st(self, regs, pair_kv, pair_q=None, scale=None):
        return [P('v_add_f32 v%d, v%d, v%d' % (regs, regs, regs + 2)), P('v_add_f32 v%d, v%d, v%d' % (regs + 1, regs + 1, regs + 3))] + \
            self.reduce_g2(regs, regs + 1) + self.finish_stats(regs, regs + 1, pair_kv, pair_q, scale)

    def accP1(self, blk, tb):
        return vACC + (blk * 2 + tb) * 4
    ACC_H = vACC + 48
    ACC_CS1 = vACC + 52
    ACC_CS2 = vACC + 56
    PKV = [vT + 0, vT + 2]; PQ = [vT + 4, vT + 6]; PH = vT + 8

    def wq_read(self, blk, j, part, dst):
        p = blk // 2; h = blk % 2
        if p < 2:
            return LG('ds_read_b64_tr_b16 v[%d:%d], v%d offset:%d' % (dst + 2 * part, dst + 2 * part + 1, vWQA + h, p * 32768 + j * 2048 + part * 1024))
        return LG('ds_read_b64_tr_b16 v[%d:%d], v%d offset:%d' % (dst + 2 * part, dst + 2 * part + 1, vWQA + 2 + h, j * 2048 + part * 1024))

    def p1a(self):
        o = self.add
        XB = vT + 12
        S1 = vT + 36
        S2 = vT + 48
        def xb(j, b): return XB + (j & 1) * 12 + b * 4
        xr_tags = {}
        def xreads(j):
            ops = []
            for b in range(2):
                ops.append(LG('ds_read_b64 v[%d:%d], v%d offset:%d' % (xb(j, b), xb(j, b) + 1, vXA, (j % 5) * 8192 + b * 1024)))
                ops.append(LG('ds_read_b64 v[%d:%d], v%d offset:%d' % (xb(j, b) + 2, xb(j, b) + 3, vXB, (j % 5) * 8192 + b * 1024)))
            ops.append(LG('ds_read_b64 v[%d:%d], v%d offset:%d' % (xb(j, 2), xb(j, 2) + 1, vHXA, j * 1024)))
            ops.append(LG('ds_read_b64 v[%d:%d], v%d offset:%d' % (xb(j, 2) + 2, xb(j, 2) + 3, vHXB, j * 1024)))
            xr_tags[j] = [x.tag for x in ops]
            return ops
        groups = []
        n = 0
        extras = []
        mfidx = 0
        first_idx = {}
        for j in range(16):
            first_idx[j] = mfidx
            z = (j == 0)
            for blk in range(8):
                dst = self.afrag(n); n += 1
                g = dict(pre=[], reads=[], mf=[])
                if blk == 0:
                    if j % 4 == 0:
                        q = j // 4
                        wt = self.vmtags(self.wq_q[q]) + self.vmtags(self.halo_dma[q])
                        g['pre'] += [W(wt), P('s_barrier')] if not (self.cfg.get('x_nobar') and q > 0) else []
                    if not self.cfg.get('x_nowait'):
                        g['pre'] += [W(self.vmtags(self.xslot[j]))]
                    g['reads'] += xreads(j)
                if blk < 6:
                    g['reads'] += [self.wq_read(blk, j, 0, dst), self.wq_read(blk, j, 1, dst)]
                    for tb in range(2):
                        acc = self.accP1(blk, tb)
                        c = '0' if z else vr(acc, 4)
                        g['mf'].append(('v_mfma_f32_16x16x32_bf16 %s, %s, %s, %s' % (vr(acc, 4), vr(dst, 4), vr(xb(j, tb), 4), c), []))
                    if blk in (1, 3, 5) and not self.cfg.get('x_nostat'):
                        b = blk // 2
                        for (accb, A) in ((S1 + b * 4, vONES), (S2 + b * 4, xb(j, b))):
                            c = '0' if z else vr(accb, 4)
                            g['mf'].append(('v_mfma_f32_16x16x32_bf16 %s, %s, %s, %s' % (vr(accb, 4), vr(A, 4), vr(xb(j, b), 4), c), []))
                else:
                    base = vE1 if blk == 6 else vE2
                    g['reads'] += [LG('ds_read_b64_tr_b16 v[%d:%d], v%d offset:%d' % (dst + 2 * part, dst + 2 * part + 1, base, j * 2048 + part * 1024)) for part in range(2)]
                    if blk == 6:
                        c = '0' if z else vr(self.ACC_H, 4)
                        g['mf'].append(('v_mfma_f32_16x16x32_bf16 %s, %s, %s, %s' % (vr(self.ACC_H, 4), vr(dst, 4), vr(xb(j, 2), 4), c), []))
                        c = '0' if z else vr(self.ACC_CS1, 4)
                        g['mf'].append(('v_mfma_f32_16x16x32_bf16 %s, %s, %s, %s' % (vr(self.ACC_CS1, 4), vr(dst, 4), vr(vONES, 4), c), []))
                    else:
                        c = '0' if z else vr(self.ACC_CS2, 4)
                        g['mf'].append(('v_mfma_f32_16x16x32_bf16 %s, %s, %s, %s' % (vr(self.ACC_CS2, 4), vr(dst, 4), vr(vONES, 4), c), []))
                mfidx += len(g['mf'])
                groups.append(g)
        def at(k, i):
            return first_idx[k] + i
        seq = []
        seq += [(at(0, 0), self.xslot[2][0]), (at(0, 2), self.xslot[2][1])]
        q1 = self.wq_q[1]
        seq += [(at(0, 5), q1[0]), (at(0, 8), q1[1]), (at(0, 11), q1[2]), (at(0, 14), self.xslot[3][0]), (at(0, 16), self.xslot[3][1]),
                (at(0, 19), self.tq(2)), (at(1, 1), q1[3]), (at(1, 4), q1[4]), (at(1, 7), q1[5]), (at(1, 10), self.halo_dma[1]),
                (at(1, 13), self.xslot[4][0]), (at(1, 15), self.xslot[4][1]), (at(1, 18), self.tq(3))]
        for j in range(11):
            for b, d in enumerate(self.xslot[j + 5]):
                seq.append((max(at(j, 2 + 2 * b), at(2, 0) + 2 * b + (j * 4 if j < 2 else 0)), d))
        if self.tq3:
            seq.append((at(self.cfg.get('tq3k', 4), 12), self.tq3))
        q2k = self.cfg.get('q2k', 3); q3k = self.cfg.get('q3k', 7)
        for k, d in enumerate(self.wq_q[2] + [self.halo_dma[2]]):
            seq.append((at(q2k + k // 2, 8 + 5 * (k % 2)), d))
        for k, d in enumerate(self.wq_q[3] + [self.halo_dma[3]]):
            seq.append((at(q3k + k // 2, 8 + 5 * (k % 2)), d))
        extras += seq
        reg = [W(self.tag_init),
               P('s_mul_i32 s53, s%d, s%d' % (sXCC, sXCC)), P('s_lshl_b32 s53, s53, 13'), P('s_lshl_b32 s54, s%d, 5' % sXCC),
               P('s_add_u32 s53, s53, s54'), P('s_add_u32 s53, s53, 1'), P('v_mov_b32 v%d, s53' % vTA),
               P('s_lshr_b32 s53, s%d, 1' % sG), P('s_lshl_b32 s53, s53, 5'), P('s_and_b32 s54, s%d, 1' % sG),
               P('s_lshl_b32 s54, s54, 2'), P('s_add_u32 s54, s53, s54'), P('v_mov_b32 v%d, s54' % vTB),
               P('s_cmp_eq_u32 s%d, 0' % sW), P('s_cselect_b32 s53, 0, 0x40000000'),
               P('v_or_b32 v%d, s53, v%d' % (vTB, vTB)),
               P('s_mov_b64 exec, 1'),
               VM('buffer_atomic_add v%d, v%d, s[36:39], 0 offen' % (vTA, vTB)),
               P('s_mov_b64 exec, -1')]
        extras.append((first_idx[4] + 3, reg))
        groups[8 * 4]['pre'] = [W(self.tag_init)] + groups[8 * 4]['pre']
        if self.cfg.get('t_mall', 0) >= 4:
            extras.append((first_idx[self.cfg.get('t_mall')] + 4, self.touch_mall()))
        for k, x in enumerate(self.res_ops):
            extras.append((first_idx[self.cfg.get('res_k', 9)] + 9 + 3 * k, x))
        extras.append((first_idx[self.cfg.get('res_k', 9) + 1] + 9, self.b1_op))
        extras.append((first_idx[8] + 9, self.mode_load()))
        extras.append((first_idx[11] + 1, self.mode_check()))
        tset = self.touch_set(self.cfg.get('t_p1a', 'of,xf'))
        k0 = self.cfg.get('t_p1a_k', 11)
        post = []
        for k, t in enumerate(tset):
            if k0 + k < 16:
                extras.append((first_idx[k0 + k] + 5, t))
            else:
                post.append(t)
        extras += self.sched_touches('p1a', first_idx)
        if self.cfg.get('code_staged', 1) and self.cfg.get('t_code', 1):
            extras.append((first_idx[self.cfg.get('code_k1', 10)] + 12, self.touch_code('L_C2', 'L_C4', 50)))
        if self.cfg.get('pts') == 2:
            for k, slot in ((1, 14), (4, 15), (8, 29), (12, 30)):
                extras.append((first_idx[k] - 1, self.ts(slot)))
        if self.cfg.get('pts') == 3:
            for k in range(16):
                extras.append((first_idx[k], self.ts(32 + k)))
        o(self.gemm_loop(groups, self.cfg.get('la_p1a', 3), extras))
        for t in post:
            o(t)
        if self.cfg.get('stash', 1):
            st = self.wq_stash(250, 251)
            o(st)
        t0 = 252; t1 = 253
        o(W(self.tag_b1), P('v_lshlrev_b32 v%d, 16, v247' % t0), P('v_and_b32 v%d, 0xffff0000, v247' % t1),
          P('v_mul_f32 v%d, %s, v%d' % (t0, f32(LOG2E), t0)), P('v_mul_f32 v%d, %s, v%d' % (t1, f32(LOG2E), t1)),
          P('v_lshlrev_b32 v%d, 3, v%d' % (vTA, vLANE)),
          P('s_mov_b32 exec_hi, 0x00ffffff'),
          LG('ds_write_b64 v%d, v[%d:%d] offset:%d' % (vTA, t0, t1, L_BB1)),
          P('s_mov_b64 exec, -1'))
        o(P('s_add_u32 s53, s%d, 2' % sW), P('s_lshl_b32 s53, s53, 6'), P('v_add_u32 v%d, s53, v%d' % (vTA, vCS)),
          P('s_and_b32 s53, s%d, 1' % sW), P('s_lshl_b32 s53, s53, 6'), P('v_add_u32 v%d, s53, v%d' % (vTB, vCS)),
          P('s_mov_b32 s52, 0x00010001'), P('s_mov_b32 s53, 0x00010001'), P('s_mov_b64 exec, s[52:53]'),
          LG('ds_write_b128 v%d, %s offset:%d' % (vTA, vr(self.ACC_CS1, 4), L_CSQ)),
          LG('ds_write_b128 v%d, %s offset:%d' % (vTB, vr(self.ACC_CS2, 4), L_CSQ)),
          P('s_mov_b64 exec, -1'))
        for b in range(3):
            s2 = S2 + b * 4
            o(P('v_cndmask_b32_e64 v%d, v%d, v%d, s[%d:%d]' % (s2, s2, s2 + 1, sMA, sMA + 1)),
              P('v_cndmask_b32_e64 v%d, v%d, v%d, s[%d:%d]' % (s2, s2, s2 + 2, sMB, sMB + 1)),
              P('v_cndmask_b32_e64 v%d, v%d, v%d, s[%d:%d]' % (s2, s2, s2 + 3, sMC, sMC + 1)),
              P('v_cndmask_b32_e64 v%d, 0, v%d, s[%d:%d]' % (s2, s2, sMD, sMD + 1)))
            t = s2 + 1
            o(P('v_mov_b32 v%d, v%d' % (t, s2)), P('v_permlane32_swap_b32 v%d, v%d' % (s2, t)),
              P('v_add_f32 v%d, v%d, v%d' % (s2, s2, t)), P('v_mov_b32 v%d, v%d' % (t, s2)),
              P('v_permlane16_swap_b32 v%d, v%d' % (s2, t)), P('v_add_f32 v%d, v%d, v%d' % (s2, s2, t)))
            if b < 2:
                o(self.finish_stats(S1 + b * 4, s2, self.PKV[b], self.PQ[b]))
            else:
                o(self.finish_stats(S1 + b * 4, s2, self.PH))
        o(P('s_mov_b32 s72, s50'), P('s_mov_b32 s73, s51'))
        o(WALL(False, True), P('s_barrier'))

    def p1b(self):
        o = self.add
        cfg = self.cfg
        for b in range(2):
            o(P('s_lshl_b32 s53, s%d, 1' % sW), P('s_add_u32 s53, s53, %d' % b), P('s_lshl_b32 s53, s53, 14'),
              P('s_add_u32 s%d, s53, s%d' % (sB0 + b, sX2)))
        xl = self.x_loads(16, depth=XD)
        pro = cfg.get('x_pro', 4)
        for j in range(pro):
            o(xl[j])
        stt = []
        STR = vT + 12
        for b in range(2):
            t = newtag('st'); stt.append(t)
            o(P('s_lshl_b32 s54, s%d, 11' % sW), P('s_add_u32 s53, s54, s%d' % sS2),
              P('s_add_u32 s53, s53, %d' % (b * 1024)),
              VM('buffer_load_dwordx4 %s, v%d, s[28:31], s53 offen sc1' % (vr(STR + 4 * b, 4), vL16), t))
        groups = []; n = 0; first_idx = {}; mfidx = 0
        for j in range(16):
            first_idx[j] = mfidx
            for blk in range(6):
                dst = self.afrag(n); n += 1
                g = dict(pre=[], reads=[self.wq_read(blk, j, 0, dst), self.wq_read(blk, j, 1, dst)], mf=[])
                for tb in range(2):
                    acc = self.accP1(blk, tb)
                    c = '0' if j == 0 else vr(acc, 4)
                    wt = self.vmtags(xl[j][tb]) if blk == 0 else []
                    g['mf'].append(('v_mfma_f32_16x16x32_bf16 %s, %s, %s, %s' % (vr(acc, 4), vr(dst, 4), ar(((j % XD) * 2 + tb) * 4, 4), c), wt))
                mfidx += 2
                groups.append(g)
        extras = self.x_sched(xl, 16, pro, first_idx, 12, XD, cfg.get('x_rate1', 4))
        lastx = extras[-1][0]
        hp = [W(self.halo_store_tags), P('v_mov_b32 v%d, 1' % vTA),
              P('s_cmp_eq_u32 s%d, 3' % sW), P('s_cselect_b32 s53, 0, 0x40000000'),
              P('s_cmp_eq_u32 s%d, 15' % sG), P('s_cselect_b32 s53, 0x40000000, s53'),
              P('s_add_u32 s54, s%d, 1' % sG), P('s_lshr_b32 s52, s54, 1'), P('s_lshl_b32 s52, s52, 5'),
              P('s_and_b32 s54, s54, 1'), P('s_lshl_b32 s54, s54, 2'), P('s_add_u32 s52, s52, s54'),
              P('s_add_u32 s52, s52, 8'), P('s_or_b32 s53, s53, s52'),
              P('v_mov_b32 v%d, s53' % vTB),
              P('s_mov_b64 exec, 1'),
              VM('buffer_atomic_add v%d, v%d, s[36:39], 0 offen' % (vTA, vTB)),
              P('s_mov_b64 exec, -1')]
        extras.append((first_idx[0] + 6, hp))
        st_ops = [W(stt)]
        for b in range(2):
            st_ops += self.stats_from_st(STR + 4 * b, self.PKV[b], self.PQ[b])
        extras += self.spread(st_ops, first_idx[2] + 2, 1)
        HS = vT + 56
        HC = vT + 60; HZ = vT + 61
        spin = self.L('hsp'); hok = self.L('hok')
        tagc = newtag('hc'); htags = [newtag('h') for _ in range(17)]
        hk0 = cfg.get('halo_k0', 7); hk1 = cfg.get('halo_k', 10)
        h0 = [P('v_mov_b32 v%d, 0' % HZ),
              P('s_lshr_b32 s54, s%d, 1' % sG), P('s_lshl_b32 s54, s54, 5'), P('s_and_b32 s53, s%d, 1' % sG),
              P('s_lshl_b32 s53, s53, 2'), P('s_add_u32 s54, s54, s53'), P('s_add_u32 s%d, s54, 8' % sA),
              VM('buffer_load_dword v%d, v%d, s[36:39], s%d offen sc1' % (HC, HZ, sA), tagc)]
        extras.append((max(first_idx[hk0], lastx + 1), h0))
        hl = [W(tagc), P('s_mov_b32 s%d, 0' % sTMO),
              P('s_cmp_eq_u32 s%d, 0' % sG), P('s_cbranch_scc1 %s' % hok),
              LAB(spin),
              P('v_cmp_ne_u32 vcc, 16, v%d' % HC),
              P('s_cbranch_vccz %s' % hok),
              P('buffer_load_dword v%d, v%d, s[36:39], s%d offen sc1' % (HC, HZ, sA)),
              P('s_add_u32 s%d, s%d, 1' % (sTMO, sTMO)),
              P('s_waitcnt vmcnt(0)'),
              P('s_cmp_lt_u32 s%d, 0x100000' % sTMO), P('s_cbranch_scc1 %s' % spin),
              P('s_endpgm'),
              LAB(hok),
              P('s_cmp_eq_u32 s%d, 0' % sG), P('s_cselect_b32 s53, 0x40000000, 0'),
              P('v_or_b32 v%d, s53, v%d' % (HZ, vL16)),
              P('s_lshl_b32 s53, s%d, 10' % sG), P('s_add_u32 s53, s53, %d' % WS_HST),
              VM('buffer_load_dwordx4 %s, v%d, s[28:31], s53 offen sc1' % (vr(HS, 4), HZ), htags[16]),
              P('s_lshl_b32 s53, s%d, 14' % sG), P('s_lshl_b32 s54, s%d, 12' % sW), P('s_add_u32 s53, s53, s54'),
              P('s_add_u32 s%d, s53, %d' % (sA, WS_HF))]
        HB = vT + 40
        for j in range(4):
            hl.append(VM('buffer_load_dwordx4 %s, v%d, s[28:31], s%d offen offset:%d sc1' % (vr(HB + 4 * j, 4), HZ, sA, j * 1024), htags[j]))
        extras.append((max(first_idx[hk1], lastx + 2), hl))
        for k, d in enumerate(self.dma_w1_group(1)):
            extras.append((max(first_idx[hk1], lastx + 2) + 2 + cfg.get('a0_step', 3) * k, d))
        hw = [W(htags[:4]), P('s_lshl_b32 s53, s%d, 12' % sW), P('s_add_u32 s53, s53, %d' % L_HS), P('v_add_u32 v%d, s53, v%d' % (HC, vL16))]
        for j in range(4):
            hw.append(LG('ds_write_b128 v%d, %s offset:%d' % (HC, vr(HB + 4 * j, 4), j * 1024)))
        extras += self.spread(hw, first_idx[15] + 1, 2)
        for k, t in enumerate(self.touch_set(cfg.get('t_p1b', ''))):
            extras.append((first_idx[hk1] + 34 + 6 * k, t))
        extras += self.spread([W(htags[16])] + self.stats_from_st(HS, self.PH), first_idx[15] - 14, 1)
        extras += self.sched_touches('p1b', first_idx)
        if cfg.get('pts') == 4:
            for k in range(16):
                extras.append((first_idx[k], self.ts(32 + k)))
        o(self.gemm_loop(groups, cfg.get('la', 3), extras))
        if cfg.get('pts') == 4:
            o(self.ts(48))
        o(WALL(False, True), P('s_barrier'), P('v_add_u32 v%d, %d, v%d' % (HC, L_HS, vL16)))
        if cfg.get('pts') == 4:
            o(self.ts(49))
        groups = []
        for j in range(16):
            dst = vAF + (j % 7) * 4 if cfg.get('la_h', 4) == 5 else self.afrag(j); xb = vT + 12 + (j % 7) * 4
            g = dict(pre=[], reads=[LG('ds_read_b128 %s, v%d offset:%d' % (vr(xb, 4), HC, j * 1024))] +
                     [LG('ds_read_b64_tr_b16 v[%d:%d], v%d offset:%d' % (dst + 2 * part, dst + 2 * part + 1, vE1, j * 2048 + part * 1024)) for part in range(2)], mf=[])
            c = '0' if j == 0 else vr(self.ACC_H, 4)
            g['mf'].append(('v_mfma_f32_16x16x32_bf16 %s, %s, %s, %s' % (vr(self.ACC_H, 4), vr(dst, 4), vr(xb, 4), c), []))
            groups.append(g)
        o(self.gemm_loop(groups, cfg.get('la_h', 4), []))
        o(P('s_barrier'))

    def x_sched(self, xl, nk, pro, first_idx, nmf, depth, rate):
        extras = []; k = 0; last = -1
        for j in range(pro, nk):
            for b in range(2):
                if j < depth:
                    at = first_idx[k // rate] + 1 + (nmf // rate) * (k % rate); k += 1
                else:
                    at = first_idx[j - depth] + nmf - 1 + b
                at = max(at, last + 1)
                extras.append((at, xl[j][b])); last = at
        return extras

    def x_loads(self, nk, ring=None, depth=None):
        xl = []
        for j in range(nk):
            row = []
            for b in range(2):
                slot = j if depth is None else j % depth
                ops = []
                if j % 4 == 0:
                    ops.append(P('s_add_u32 s%d, s%d, %d' % (sXL0 + b, sB0 + b, j * 1024)))
                if self.cfg.get('noxl'):
                    ops.append(P('s_nop 0'))
                else:
                    ops.append(VM('buffer_load_dwordx4 %s, v%d, s[28:31], s%d offen offset:%d%s' % (ar((slot * 2 + b) * 4, 4), vL16, sXL0 + b, (j % 4) * 1024, '' if self.cfg.get('plainld') else ' sc1')))
                row.append(ops)
            xl.append(row)
        return xl

    def dual_store(self, stores):
        pure = self.L('stp'); done = self.L('std')
        o = [P('s_cmp_eq_u32 s%d, 0' % sMODE), P('s_cbranch_scc1 %s' % pure)]
        o += [P(s + ' sc1') for s in stores]
        o += [P('s_branch %s' % done), LAB(pure)]
        o += [P(s) for s in stores]
        o += [LAB(done)]
        cnt = [VM('; counted store') for _ in stores]
        return o + cnt, [c.tag for c in cnt]

    def p1_epi(self, dmas):
        o = []
        CS = vT + 12
        CSH = vT + 36
        Q = vT + 40
        K = vT + 48
        V = vT + 56
        HP = vT + 64
        TT = vT + 66
        cst = []
        for b in range(6):
            x = LG('ds_read_b128 %s, v%d offset:%d' % (vr(CS + 4 * b, 4), vCS, L_CSQ + b * 64)); cst.append(x.tag); o.append(x)
        o += [P('s_add_u32 s53, s%d, 2' % sW), P('s_lshl_b32 s53, s53, 6'), P('v_add_u32 v%d, s53, v%d' % (TT, vCS))]
        x = LG('ds_read_b128 %s, v%d offset:%d' % (vr(CSH, 4), TT, L_CSQ)); csh = x.tag; o.append(x)

        def ln(acc, cs, pair, dst):
            r = []
            for hh in range(2):
                t = TT + 2 * hh
                r.append(P('v_pk_mul_f32 %s, %s, %s op_sel:[0,1] op_sel_hi:[1,1]' % (vr(t, 2), vr(cs + 2 * hh, 2), vr(pair, 2))))
            for hh in range(2):
                t = TT + 2 * hh
                r.append(P('v_pk_fma_f32 %s, %s, %s, %s op_sel_hi:[1,0,1]' % (vr(t, 2), vr(acc + 2 * hh, 2), vr(pair, 2), vr(t, 2))))
            for hh in range(2):
                t = TT + 2 * hh
                r.append(P('v_cvt_pk_bf16_f32 v%d, v%d, v%d' % (dst + hh, t, t + 1)))
            return r
        wtags = []
        qln = []
        for blk in (4, 5, 2, 3, 0, 1):
            if blk == 0:
                o_main = o; o = qln
            o.append(W(cst[blk]))
            for tb in range(2):
                h = blk % 2
                dst = (Q, K, V)[blk // 2] + (tb * 2 + h) * 2
                pair = self.PQ[tb] if blk < 2 else self.PKV[tb]
                o += ln(self.accP1(blk, tb), CS + 4 * blk, pair, dst)
                if blk >= 4:
                    x = LG('ds_write_b64 v%d, %s offset:%d' % (vEXV, vr(dst, 2), tb * 1024 + h * 512)); o.append(x)
                elif blk >= 2 and tb == 1:
                    x = LG('ds_write_b64 v%d, %s offset:%d' % (vEXK, vr(dst, 2), h * 512)); o.append(x)
            if blk == 3:
                o.append(W(csh))
                o += ln(self.ACC_H, CSH, self.PH, HP)
                o.append(LG('ds_write_b64 v%d, %s' % (vEXH, vr(HP, 2))))
        o = o_main
        o += [WALL(False, True), P('s_barrier')]
        KP = vT + 70
        VV = vT + 20
        SC = vACC
        SP = vACC + 16
        PB = vACC + 32
        LLs = [vT + 32, vT + 36, vT + 56, vT + 60]
        OO = vACC + 48
        MX = vT + 74
        rk = []; rv = []
        for h in range(2):
            x = LG('ds_read_b64 %s, v%d offset:%d' % (vr(KP + 2 * h, 2), vRK, h * 512)); rk.append(x.tag); o.append(x)
        for h in range(2):
            x = LG('ds_read_b64_tr_b16 %s, v%d offset:%d' % (vr(VV + 6 * h, 2), vRVP, h * 512)); rv.append(x.tag); o.append(x)
            for tb in range(2):
                x = LG('ds_read_b64_tr_b16 %s, v%d offset:%d' % (vr(VV + 6 * h + 2 + 2 * tb, 2), vRV, tb * 1024 + h * 512)); rv.append(x.tag); o.append(x)
        o += [x for x in qln if x.kind != 'w']
        insts = [(tb, h) for tb in range(2) for h in range(2)]
        for n, (tb, h) in enumerate(insts):
            q = Q + (tb * 2 + h) * 2
            o.append(P('v_mfma_f32_16x16x16_bf16 %s, %s, %s, %s' % (vr(SC + 4 * n, 4), vr(K + (tb * 2 + h) * 2, 2), vr(q, 2), vr(vCCUR, 4))))
        for n, (tb, h) in enumerate(insts):
            q = Q + (tb * 2 + h) * 2
            if tb == 0:
                o.append(W(rk[h]))
                o.append(P('v_mfma_f32_16x16x16_bf16 %s, %s, %s, %s' % (vr(SP + 4 * n, 4), vr(KP + 2 * h, 2), vr(q, 2), vr(vCPA, 4))))
            else:
                o.append(P('v_mfma_f32_16x16x16_bf16 %s, %s, %s, %s' % (vr(SP + 4 * n, 4), vr(K + h * 2, 2), vr(q, 2), vr(vCPREV, 4))))
        for n in range(4):
            for r in range(4):
                o.append(P('v_max_f32 v%d, v%d, v%d' % (SC + 4 * n + r, SC + 4 * n + r, SP + 4 * n + r)))
        for n in range(4):
            o.append(P('v_max3_f32 v%d, v%d, v%d, v%d' % (MX + n, SC + 4 * n, SC + 4 * n + 1, SC + 4 * n + 2)))
        for n in range(4):
            o.append(P('v_max_f32 v%d, v%d, v%d' % (MX + n, MX + n, SC + 4 * n + 3)))
        a, b, c, d = MX, MX + 1, MX + 2, MX + 3
        o += [P('v_permlane32_swap_b32 v%d, v%d' % (a, b)), P('v_permlane32_swap_b32 v%d, v%d' % (c, d)),
              P('v_max_f32 v%d, v%d, v%d' % (a, a, b)), P('v_max_f32 v%d, v%d, v%d' % (c, c, d)),
              P('v_permlane16_swap_b32 v%d, v%d' % (a, c)), P('v_max_f32 v%d, v%d, v%d' % (a, a, c)),
              P('v_mov_b32 v%d, v%d' % (c, a)), P('v_permlane16_swap_b32 v%d, v%d' % (a, c)),
              P('v_mov_b32 v%d, v%d' % (b, a)), P('v_mov_b32 v%d, v%d' % (d, c)),
              P('v_permlane32_swap_b32 v%d, v%d' % (a, b)), P('v_permlane32_swap_b32 v%d, v%d' % (c, d))]
        for n in range(4):
            for hh in range(2):
                pr = MX + (n & ~1)
                sel = 'op_sel_hi:[1,0]' if n % 2 == 0 else 'op_sel:[0,1] op_sel_hi:[1,1]'
                o.append(P('v_pk_add_f32 %s, %s, %s %s neg_lo:[0,1] neg_hi:[0,1]' % (vr(SC + 4 * n + 2 * hh, 2), vr(SC + 4 * n + 2 * hh, 2), vr(pr, 2), sel)))
        for n in range(4):
            for r in range(4):
                o.append(P('v_exp_f32 v%d, v%d' % (SC + 4 * n + r, SC + 4 * n + r)))
        for n in range(4):
            for hh in range(2):
                o.append(P('v_cvt_pk_bf16_f32 v%d, v%d, v%d' % (SP + 4 * n + hh, SC + 4 * n + 2 * hh, SC + 4 * n + 2 * hh + 1)))
        for n in range(4):
            for hh in range(2):
                o.append(P('v_cndmask_b32_e64 v%d, 0, v%d, s[%d:%d]' % (PB + 4 * n + hh, SP + 4 * n + hh, sUP, sUP + 1)))
                o.append(P('v_cndmask_b32_e64 v%d, v%d, 0, s[%d:%d]' % (PB + 4 * n + 2 + hh, SP + 4 * n + hh, sUP, sUP + 1)))
        o.append(W(rv))
        for n, (tb, h) in enumerate(insts):
            o.append(P('v_mfma_f32_16x16x32_bf16 %s, %s, %s, 0' % (vr(LLs[n], 4), vr(vONES, 4), vr(PB + 4 * n, 4))))
            o.append(P('v_mfma_f32_16x16x32_bf16 %s, %s, %s, 0' % (vr(OO + 4 * n, 4), vr(VV + 6 * h + 2 * tb, 4), vr(PB + 4 * n, 4))))
        for n in range(4):
            o.append(P('v_rcp_f32 v%d, v%d' % (LLs[n], LLs[n])))
        OUTR = vT + 40
        for n, (tb, h) in enumerate(insts):
            for hh in range(2):
                o.append(P('v_pk_mul_f32 %s, %s, %s op_sel_hi:[1,0]' % (vr(OO + 4 * n + 2 * hh, 2), vr(OO + 4 * n + 2 * hh, 2), vr(LLs[n], 2))))
        for n, (tb, h) in enumerate(insts):
            for hh in range(2):
                o.append(P('v_cvt_pk_bf16_f32 v%d, v%d, v%d' % (OUTR + (tb * 2 + h) * 2 + hh, OO + 4 * n + 2 * hh, OO + 4 * n + 2 * hh + 1)))
        if dmas:
            k = min(i for i, x in enumerate(o) if x.text == 's_barrier') + 1
            body = interleave(o[k:], dmas, start=0, every=max(1, (len(o) - k) // (len(dmas) + 1)))
            o = o[:k] + body
        o += [P('s_lshl_b32 s54, s%d, 15' % sW), P('s_add_u32 s53, s54, s%d' % sOF), P('s_lshl_b32 s54, s%d, 10' % sM),
              P('s_add_u32 s53, s53, s54'), P('s_add_u32 s54, s53, 16384')]
        return o, ['buffer_store_dwordx4 %s, v%d, s[28:31], s%d offen' % (vr(OUTR + 4 * tb, 4), vL16, 53 + tb) for tb in range(2)]

    def mode_load(self):
        self.tag_mode = newtag('mode')
        return [P('s_lshr_b32 s53, s%d, 1' % sG), P('s_lshl_b32 s53, s53, 5'), P('s_and_b32 s54, s%d, 1' % sG),
                P('s_lshl_b32 s54, s54, 2'), P('s_add_u32 s%d, s53, s54' % sA),
                P('v_mov_b32 v%d, 0' % vTB),
                VM('buffer_load_dword v%d, v%d, s[36:39], s%d offen sc1' % (vTA, vTB, sA), self.tag_mode)]

    def mode_check(self):
        spin = self.L('rsp'); ok = self.L('rok')
        return [W(self.tag_mode), P('s_mov_b32 s%d, 0' % sTMO),
                P('v_readfirstlane_b32 s54, v%d' % vTA),
                P('s_nop 4'),
                P('s_and_b32 s52, s54, 31'), P('s_cmp_eq_u32 s52, 16'), P('s_cbranch_scc1 %s' % ok),
                LAB(spin),
                P('buffer_load_dword v%d, v%d, s[36:39], s%d offen sc1' % (vTA, vTB, sA)),
                P('s_add_u32 s%d, s%d, 1' % (sTMO, sTMO)),
                P('s_waitcnt vmcnt(0)'),
                P('v_readfirstlane_b32 s54, v%d' % vTA),
                P('s_nop 4'),
                P('s_and_b32 s52, s54, 31'), P('s_cmp_eq_u32 s52, 16'), P('s_cbranch_scc1 %s' % ok),
                P('s_cmp_lt_u32 s%d, 0x100000' % sTMO), P('s_cbranch_scc1 %s' % spin),
                P('s_endpgm'),
                LAB(ok),
                P('s_lshr_b32 s52, s54, 5'), P('s_and_b32 s52, s52, 255'), P('s_mul_i32 s52, s52, s52'),
                P('s_lshr_b32 s54, s54, 13'), P('s_lshl_b32 s54, s54, 4'),
                P('s_cmp_lg_u32 s52, s54'), P('s_cselect_b32 s%d, 1, 0' % sMODE)] + \
            ([P('s_mov_b32 s%d, 1' % sMODE)] if self.cfg.get('force_mixed') else []) + self.set_bases()

    def set_bases(self):
        o = [P('s_mul_i32 s52, s%d, %d' % (sG, ACT_G)), P('s_add_u32 s52, s52, %d' % WS_ACT),
             P('s_mul_i32 s53, s%d, %d' % (sG, 8 * 57344)), P('s_lshl_b32 s54, s%d, 13' % sG),
             P('s_cmp_eq_u32 s%d, %d' % (sMODE, 7 if self.cfg.get('noalias') else 0))]
        def sel(dst, pure_off, mixed_base_s, mixed_imm):
            return [P('s_add_u32 s55, s52, %d' % pure_off), P('s_add_u32 s%d, s%d, %d' % (dst, mixed_base_s, mixed_imm)),
                    P('s_cmp_eq_u32 s%d, %d' % (sMODE, 7 if self.cfg.get('noalias') else 0)),
                    P('s_cselect_b32 s%d, s55, s%d' % (dst, dst))]
        o += sel(sOF, 0, sGBASE, WS_OF) + sel(sAF, 0, 53, WS_AF) + sel(sX1, 458752, sGBASE, WS_XF) + \
            sel(sX2, 458752, sGBASE, WS_XF + XF_K) + sel(sS1, 589824, 54, WS_ST) + sel(sS2, 589824, 54, WS_ST + ST_K)
        for d, v in ((dOF, OF_R), (dAF, AF_R), (dX1, 2 * XF_K), (dS1, 2 * ST_K)):
            o.append(P('s_cselect_b32 s%d, 0, %d' % (d, v)))
        return o

    def gemmB(self, nk, srdW, src_base, nblk, depth, resident, refill_tags_out, exb, pre_extras=None, posf=None, tail=None, post=None, inloop=None, tail_lds=False):
        o = []
        o += [P('s_and_b32 s52, s%d, 1' % sW), P('s_mul_i32 s52, s52, %d' % (nk * 1024)),
              P('s_add_u32 s52, s52, s%d' % src_base),
              P('s_mul_i32 s53, s%d, %d' % (sTB, nblk * 1024)), P('s_add_u32 s%d, s52, s53' % sB0),
              P('s_xor_b32 s53, s%d, 1' % sTB), P('s_mul_i32 s53, s53, %d' % (nblk * 1024)), P('s_add_u32 s%d, s52, s53' % sB1)]
        xl = self.x_loads(nk, depth=depth)
        pro = min(nk, self.cfg.get('b_pro', 4))
        for t in range(pro):
            o += xl[t][0] + xl[t][1]
        stash_ex = []
        if nk == 8 and self.cfg.get('wo_inloop', 1):
            o += [P('s_lshl_b32 s53, s%d, 10' % sW), P('s_add_u32 s53, s53, %d' % L_W), P('v_add_u32 v%d, s53, v%d' % (vT + 62, vL16))]
            stash_ex = [[LG('ds_read_b128 %s, v%d offset:%d' % (ar(aWO + 4 * c, 4), vT + 62, c * 4096))] for c in range(16)]
        elif nk == 8:
            o += self.wo_stash()
        groups = []; n = 0; first_idx = {}; mfidx = 0
        acc = lambda s, fb: vACC + (s * 4 + fb) * 4
        refills = []
        if nk > resident:
            for t in range(resident, nk):
                for kh in range(2):
                    refills.append(self.dma_wo_slot(srdW, nk, t, kh, posf(t)))
        for t in range(nk):
            first_idx[t] = mfidx
            pos = posf(t) if posf else t
            for fb in range(4):
                dst = self.afrag(n); n += 1
                g = dict(pre=[], reads=[], mf=[])
                jit = self.cfg.get('jit', 0)
                if refills and jit and fb == 0 and t >= resident and (t - resident) % jit == 0:
                    lo = 2 * (t - resident)
                    g['pre'] += [W(self.vmtags(refills[lo:lo + 2 * jit])), P('s_barrier')]
                elif not jit and fb == 0 and t == resident:
                    g['pre'] += [W(self.vmtags(refills)), P('s_barrier')]
                for part in range(2):
                    a = pos * 8192 + part * 2048
                    win = a >> 16
                    g['reads'].append(LG('ds_read_b64_tr_b16 v[%d:%d], v%d offset:%d' % (dst + 2 * part, dst + 2 * part + 1, vW2A + fb * 3 + win, a & 0xffff)))
                for s in range(2):
                    c = '0' if t == 0 else vr(acc(s, fb), 4)
                    wt = self.vmtags(xl[t][s]) if fb == 0 else []
                    g['mf'].append(('v_mfma_f32_16x16x32_bf16 %s, %s, %s, %s' % (vr(acc(s, fb), 4), vr(dst, 4), ar(((t % depth) * 2 + s) * 4, 4), c), wt))
                mfidx += 2
                groups.append(g)
        extras = []
        last = -1
        for t in range(pro, nk):
            if t < depth:
                at = first_idx[min(nk - 1, (t - pro) // 2)] + 1 + 4 * ((t - pro) % 2)
            else:
                at = first_idx[t - depth] + 7
            at = max(at, last + 1)
            extras.append((at, xl[t][0])); extras.append((at + 1, xl[t][1]))
            last = at + 1
        for k, d in enumerate(stash_ex):
            extras.append((4 + 3 * k, d))
        if inloop:
            for k, d in enumerate(inloop):
                extras.append((last + 2 + self.cfg.get('a2_step', 5) * k, d))
        if refills:
            nfree = nk - resident
            bar_at = first_idx[nfree] - 1
            extras.append((bar_at, [P('s_barrier')]))
            rp = self.cfg.get('ref_per', 3)
            for k, d in enumerate(refills):
                extras.append((first_idx[nfree + self.cfg.get('ref_k0', 0) + k // rp] + 1 + 2 * (k % rp), d))
        if tail and tail_lds:
            extras.append((first_idx[resident] - 1, [P('s_barrier')]))
            nt_ = nk - resident
            for k, d in enumerate(tail):
                extras.append((first_idx[resident] + 1 + k * (8 * nt_ - 4) // len(tail), d))
        elif tail:
            allb = [t_ for row in xl for blk in row for t_ in self.vmtags(blk)]
            extras.append((first_idx[resident] - 1, [W(allb), P('s_barrier')]))
            nt_ = nk - resident
            t0_ = self.cfg.get('tail_k0', 0)
            for k, d in enumerate(tail):
                kk = t0_ + k * (nt_ - t0_) // len(tail)
                sk = self.L('tsk')
                extras.append((first_idx[resident + kk] + 1 + 2 * (k % 3),
                               [P('s_cmp_lg_u32 s%d, 0' % sRND), P('s_cbranch_scc1 %s ;nopad' % sk)] + d + [LAB(sk)]))
        if pre_extras and False:
            for k, t in enumerate(pre_extras):
                extras.append((first_idx[min(nk - 1, self.cfg.get('t_p4_k', 16) + 2 * k)] + 4, t))
        extras += self.sched_touches('p4' if nk == 28 else 'p2', first_idx)
        if nk == 28 and self.cfg.get('wbl2'):
            allb2 = [t_ for row in xl for blk in row for t_ in self.vmtags(blk)] + self.vmtags(refills)
            sk = self.L('wb')
            extras.append((first_idx[self.cfg.get('wbl2')] + 2,
                           [W(allb2), P('s_cmp_eq_u32 s%d, 0' % sTUX), P('s_cselect_b32 s52, s%d, 0' % sRND), P('s_cmp_eq_u32 s52, 1'),
                            P('s_cbranch_scc0 %s ;nopad' % sk), P('buffer_wbl2 sc1'), LAB(sk)]))
        if nk == 28 and self.cfg.get('code_staged', 1) and self.cfg.get('t_code', 1):
            extras.append((first_idx[16] + 3, self.touch_code('L_C5', 'L_END', 72)))
        o += self.gemm_loop(groups, self.cfg.get('la', 3), extras)
        o.append(P('s_barrier'))
        o += [P('v_add_u32 v%d, %d, v%d' % (vTA, exb, vEXBW)), P('v_add_u32 v%d, %d, v%d' % (vTB, exb, vEXBR))]
        if post and tail_lds:
            o += self.flat(post)
        elif post:
            sk = self.L('psk')
            o += [P('s_cmp_lg_u32 s%d, 0' % sRND), P('s_cbranch_scc1 %s ;nopad' % sk)] + self.flat(post) + [LAB(sk)]
        for fb in range(4):
            o.append(LG('ds_write_b128 v%d, %s offset:%d' % (vTA, vr(acc(1, fb), 4), fb * 1024)))
        o += [WALL(False, True), P('s_barrier')]
        PT = vT
        rt = []
        for fb in range(4):
            x = LG('ds_read_b128 %s, v%d offset:%d' % (vr(PT + 4 * fb, 4), vTB, fb * 1024)); rt.append(x.tag); o.append(x)
        U = vT + 16
        for fb in range(4):
            for hh in range(2):
                r = vR + fb * 2 + hh
                o += [P('v_lshlrev_b32 v%d, 16, v%d' % (U + fb * 4 + hh * 2, r)), P('v_and_b32 v%d, 0xffff0000, v%d' % (U + fb * 4 + hh * 2 + 1, r))]
        for fb in range(4):
            for hh in range(2):
                a = acc(0, fb) + 2 * hh
                o.append(P('v_pk_add_f32 %s, %s, %s' % (vr(a, 2), vr(a, 2), vr(U + fb * 4 + 2 * hh, 2))))
        for fb in range(4):
            o.append(W(rt[fb]))
            for hh in range(2):
                a = acc(0, fb) + 2 * hh
                o.append(P('v_pk_add_f32 %s, %s, %s' % (vr(a, 2), vr(a, 2), vr(PT + fb * 4 + 2 * hh, 2))))
        for fb in range(4):
            for hh in range(2):
                a = acc(0, fb) + 2 * hh
                o.append(P('v_cvt_pk_bf16_f32 v%d, v%d, v%d' % (vR + fb * 2 + hh, a, a + 1)))
        return o

    def gemmA2(self, src_base, inloop):
        cfg = self.cfg
        o = [P('s_mul_i32 s53, s%d, 16384' % sTB), P('s_add_u32 s%d, s53, s%d' % (sB0, src_base))]
        base = vT + 64
        o += [P('s_and_b32 s53, s%d, 1' % sW), P('s_lshl_b32 s53, s53, 12')]
        for fb in range(4):
            o.append(P('v_subrev_u32 v%d, s53, v%d' % (base + fb, vW2A + fb * 3)))
        loads = []
        for j in range(16):
            ops = []
            if j % 4 == 0:
                ops.append(P('s_add_u32 s%d, s%d, %d' % (sXL0, sB0, j * 1024)))
            ops.append(VM('buffer_load_dwordx4 %s, v%d, s[28:31], s%d offen offset:%d sc1' % (ar(j * 4, 4), vL16, sXL0, (j % 4) * 1024)))
            loads.append(ops)
        pro = cfg.get('p2_pro', 10)
        for j in range(pro):
            o += loads[j]
        o += [P('s_lshl_b32 s53, s%d, 10' % sW), P('s_add_u32 s53, s53, %d' % L_W), P('v_add_u32 v%d, s53, v%d' % (vT + 62, vL16))]
        stash_ex = [[LG('ds_read_b128 %s, v%d offset:%d' % (ar(aWO + 4 * c, 4), vT + 62, c * 4096))] for c in range(16)]
        acc = lambda fb: vACC + fb * 4
        groups = []; n = 0
        for j in range(16):
            for fb in range(4):
                dst = self.afrag(n); n += 1
                a0 = (j % 8) * 8192 + (j // 8) * 4096
                g = dict(pre=[], reads=[LG('ds_read_b64_tr_b16 v[%d:%d], v%d offset:%d' % (dst + 2 * part, dst + 2 * part + 1, base + fb, a0 + part * 2048)) for part in range(2)], mf=[])
                c = '0' if j == 0 else vr(acc(fb), 4)
                g['mf'].append(('v_mfma_f32_16x16x32_bf16 %s, %s, %s, %s' % (vr(acc(fb), 4), vr(dst, 4), ar(j * 4, 4), c), self.vmtags(loads[j]) if fb == 0 else []))
                groups.append(g)
        extras = []
        for k, j in enumerate(range(pro, 16)):
            extras.append((1 + 3 * k, loads[j]))
        last = 1 + 3 * (16 - pro)
        for k, d in enumerate(stash_ex):
            extras.append((6 + 3 * k, d))
        for k, d in enumerate(inloop or []):
            extras.append((last + 2 + cfg.get('a2_step', 5) * k, d))
        o += self.gemm_loop(groups, cfg.get('la2', 4), extras)
        U = vT + 16
        for fb in range(4):
            for hh in range(2):
                r = vR + fb * 2 + hh
                o += [P('v_lshlrev_b32 v%d, 16, v%d' % (U + fb * 4 + hh * 2, r)), P('v_and_b32 v%d, 0xffff0000, v%d' % (U + fb * 4 + hh * 2 + 1, r))]
        for fb in range(4):
            for hh in range(2):
                a = acc(fb) + 2 * hh
                o.append(P('v_pk_add_f32 %s, %s, %s' % (vr(a, 2), vr(a, 2), vr(U + fb * 4 + 2 * hh, 2))))
        for fb in range(4):
            for hh in range(2):
                a = acc(fb) + 2 * hh
                o.append(P('v_cvt_pk_bf16_f32 v%d, v%d, v%d' % (vR + fb * 2 + hh, a, a + 1)))
        return o

    def gemmA(self, nk, srdW, src_base, nblk, depth, resident, posf, inloop=None, tail=None, post=None, stash=False):
        cfg = self.cfg
        NR = cfg.get('nafA', 9); LA = cfg.get('laA', 7)
        ring = lambda n: vACC + 16 + (n % NR) * 4
        acc = lambda fb: vACC + fb * 4
        assert 16 + 4 * NR <= 64
        o = [P('s_mul_i32 s53, s%d, %d' % (sTB, nblk * 1024)), P('s_add_u32 s%d, s53, s%d' % (sB0, src_base)),
             P('s_add_u32 s%d, s%d, %d' % (sB1, sB0, nk * 1024))]
        xl = self.x_loads(nk, depth=depth)
        pro = min(nk, cfg.get('b_pro', 4) if nk > 8 else cfg.get('p2_pro', 5))
        for t in range(pro):
            o += xl[t][0] + xl[t][1]
        stash_ex = []
        if stash:
            o += [P('s_lshl_b32 s53, s%d, 10' % sW), P('s_add_u32 s53, s53, %d' % L_W), P('v_add_u32 v%d, s53, v%d' % (vT + 62, vL16))]
            stash_ex = [[LG('ds_read_b128 %s, v%d offset:%d' % (ar(aWO + 4 * c, 4), vT + 62, c * 4096))] for c in range(16)]
        refills = []
        if nk > resident:
            for t in range(resident, nk):
                for kh in range(2):
                    refills.append(self.dma_wo_slot(srdW, nk, t, kh, posf(t)))
        groups = []; n = 0; first_idx = {}; mfidx = 0
        jit = cfg.get('jit', 0)
        for t in range(nk):
            first_idx[t] = mfidx
            pos = posf(t) if posf else t
            for s_ in range(2):
                for fb in range(4):
                    dst = ring(n); n += 1
                    g = dict(pre=[], reads=[], mf=[])
                    if refills and s_ == 0 and fb == 0 and t >= resident:
                        if jit and (t - resident) % jit == 0:
                            lo = 2 * (t - resident)
                            g['pre'] += [W(self.vmtags(refills[lo:lo + 2 * jit])), P('s_barrier')]
                        elif not jit and t == resident:
                            g['pre'] += [W(self.vmtags(refills)), P('s_barrier')]
                    for part in range(2):
                        a = pos * 8192 + s_ * 4096 + part * 2048
                        g['reads'].append(LG('ds_read_b64_tr_b16 v[%d:%d], v%d offset:%d' % (dst + 2 * part, dst + 2 * part + 1, vW2A + fb * 3 + (a >> 16), a & 0xffff)))
                    c = '0' if (t == 0 and s_ == 0) else vr(acc(fb), 4)
                    wt = self.vmtags(xl[t][s_]) if fb == 0 else []
                    g['mf'].append(('v_mfma_f32_16x16x32_bf16 %s, %s, %s, %s' % (vr(acc(fb), 4), vr(dst, 4), ar(((t % depth) * 2 + s_) * 4, 4), c), wt))
                    mfidx += 1
                    groups.append(g)
        extras = []
        last = -1
        for t in range(pro, nk):
            if t < depth:
                at = first_idx[min(nk - 1, (t - pro) // 2)] + 1 + 4 * ((t - pro) % 2)
            else:
                at = first_idx[t - depth] + 7
            at = max(at, last + 1)
            extras.append((at, xl[t][0])); extras.append((at + 1, xl[t][1]))
            last = at + 1
        for k, d in enumerate(stash_ex):
            extras.append((6 + 3 * k, d))
        for k, d in enumerate(inloop or []):
            extras.append((last + 2 + cfg.get('a2_step', 5) * k, d))
        if refills:
            nfree = nk - resident
            extras.append((first_idx[nfree] - 1, [P('s_barrier')]))
            rp = cfg.get('ref_per', 3)
            for k, d in enumerate(refills):
                extras.append((first_idx[nfree + cfg.get('ref_k0', 0) + k // rp] + 1 + 2 * (k % rp), d))
        if tail:
            extras.append((first_idx[resident] - 1, [P('s_barrier')]))
            nt_ = nk - resident
            for k, d in enumerate(tail):
                extras.append((first_idx[resident] + 1 + k * (8 * nt_ - 4) // len(tail), d))
        o += self.gemm_loop(groups, LA, extras)
        if post:
            o.append(P('s_barrier'))
            o += self.flat(post)
        U = vT + 16
        pre = []
        for fb in range(4):
            for hh in range(2):
                r = vR + fb * 2 + hh
                pre += [P('v_lshlrev_b32 v%d, 16, v%d' % (U + fb * 4 + hh * 2, r)), P('v_and_b32 v%d, 0xffff0000, v%d' % (U + fb * 4 + hh * 2 + 1, r))]
        o += pre
        for fb in range(4):
            for hh in range(2):
                a = acc(fb) + 2 * hh
                o.append(P('v_pk_add_f32 %s, %s, %s' % (vr(a, 2), vr(a, 2), vr(U + fb * 4 + 2 * hh, 2))))
        for fb in range(4):
            for hh in range(2):
                a = acc(fb) + 2 * hh
                o.append(P('v_cvt_pk_bf16_f32 v%d, v%d, v%d' % (vR + fb * 2 + hh, a, a + 1)))
        return o

    def sw4(self):
        return self.touch_set(self.cfg.get('t_p4', ''), only_r1=True)

    def row_stats(self):
        s1 = vT + 32; s2 = vT + 33; s1b = vT + 34; s2b = vT + 35
        o = [P('v_mov_b32 v%d, 0' % r) for r in (s1, s2, s1b, s2b)]
        for k in range(0, 8, 2):
            o += [P('v_dot2c_f32_bf16 v%d, v%d, v%d' % (s1, vR + k, vONES)), P('v_dot2c_f32_bf16 v%d, v%d, v%d' % (s2, vR + k, vR + k)),
                  P('v_dot2c_f32_bf16 v%d, v%d, v%d' % (s1b, vR + k + 1, vONES)), P('v_dot2c_f32_bf16 v%d, v%d, v%d' % (s2b, vR + k + 1, vR + k + 1))]
        o += [P('v_add_f32 v%d, v%d, v%d' % (s1, s1, s1b)), P('v_add_f32 v%d, v%d, v%d' % (s2, s2, s2b))]
        o += self.reduce_g2(s1, s2)
        return o

    def x_stores(self, sx, ss):
        return [P('s_mul_i32 s53, s%d, 16384' % sTB), P('s_add_u32 s53, s53, s%d' % sx), P('s_lshl_b32 s54, s%d, 11' % sCT),
                P('s_add_u32 s53, s53, s54'),
                P('s_lshl_b32 s54, s%d, 10' % sTB), P('s_add_u32 s54, s54, s%d' % ss)]

    def x_store_frags(self):
        ds, tags = self.dual_store(['buffer_store_dwordx4 %s, v%d, s[28:31], s53 offen' % (vr(vR, 4), vL16),
                                    'buffer_store_dwordx4 %s, v%d, s[28:31], s55 offen offset:1024' % (vr(vR + 4, 4), vL16)])
        return self.delta(55, 11) + [P('s_add_u32 s55, s55, s53')] + ds, tags

    def x_store_stats(self):
        ds, tags = self.dual_store(['buffer_store_dwordx2 %s, v%d, s[28:31], s54 offen' % (vr(vT + 32, 2), vSTO)])
        return [P('s_mov_b64 exec, 0xffff')] + ds + [P('s_mov_b64 exec, -1')], tags

    def p3(self, extras_w2):
        o = []
        cfg = self.cfg
        for b in range(2):
            o += [P('s_lshl_b32 s53, s%d, 1' % sW), P('s_add_u32 s53, s53, %d' % b), P('s_lshl_b32 s53, s53, 14'),
                  P('s_add_u32 s%d, s53, s%d' % (sB0 + b, sX1))]
        xl = self.x_loads(16, depth=XD)
        pro = cfg.get('x_pro', 4)
        for j in range(pro):
            o += xl[j][0] + xl[j][1]
        stt = []
        STR = vT + 12
        PA = [vT + 0, vT + 2]
        for b in range(2):
            t = newtag('st'); stt.append(t)
            o += [P('s_lshl_b32 s54, s%d, 11' % sW), P('s_add_u32 s53, s54, s%d' % sS1),
                  P('s_add_u32 s53, s53, %d' % (b * 1024)),
                  VM('buffer_load_dwordx4 %s, v%d, s[28:31], s53 offen sc1' % (vr(STR + 4 * b, 4), vL16), t)]
        acc = lambda fb, tb: vACC + (fb * 2 + tb) * 4
        a3 = self.dma_w1_group(3)
        groups = []; n = 0; first_idx = {}; mfidx = 0
        for j in range(16):
            first_idx[j] = mfidx
            base = L_W1P[j // 4] + (j % 4) * 7168
            for fb in range(7):
                dst = self.afrag(n); n += 1
                g = dict(pre=[], reads=[], mf=[])
                if j == 12 and fb == 0:
                    g['pre'] += [W(self.vmtags(a3)), P('s_barrier')]
                for part in range(2):
                    a = base + part * 3584 + fb * 32
                    win = a >> 16
                    g['reads'].append(LG('ds_read_b64_tr_b16 v[%d:%d], v%d offset:%d' % (dst + 2 * part, dst + 2 * part + 1, vW1A + win, a & 0xffff)))
                for tb in range(2):
                    c = '0' if j == 0 else vr(acc(fb, tb), 4)
                    wt = self.vmtags(xl[j][tb]) if fb == 0 else []
                    g['mf'].append(('v_mfma_f32_16x16x32_bf16 %s, %s, %s, %s' % (vr(acc(fb, tb), 4), vr(dst, 4), ar(((j % XD) * 2 + tb) * 4, 4), c), wt))
                mfidx += 2
                groups.append(g)
        extras = self.x_sched(xl, 16, pro, first_idx, 14, XD, cfg.get('x_rate', 4))
        if cfg.get('p3_jit'):
            k0 = cfg.get('p3_jit')
            for k, d in enumerate(a3):
                extras.append((first_idx[k0 + k] + 9, d))
            for k, d in enumerate(extras_w2):
                extras.append((first_idx[min(15, cfg.get('p3_w2k', 6) + k)] + 5, d))
            extras_w2 = []; a3 = []
        at = extras[-1][0] + 2
        for d in a3:
            extras.append((at, d)); at += 4
        st_ops = [W(stt)]
        for b in range(2):
            st_ops += self.stats_from_st(STR + 4 * b, PA[b], scale=LOG2E)
        extras += self.spread(st_ops, first_idx[2] + 2, 1)
        at = max(at, first_idx[9])
        for d in extras_w2:
            extras.append((at, d)); at += cfg.get('w2e_step', 7)
        for k, t in enumerate(self.touch_set(cfg.get('t_p3', 'af'), only_r1=True)):
            extras.append((first_idx[min(15, cfg.get('t_p3_k', 9) + 2 * k)] + 4, t))
        extras += self.sched_touches('p3', first_idx)
        if cfg.get('code_staged', 1) and cfg.get('t_code', 1):
            extras.append((first_idx[10] + 6, self.touch_code('L_C4', 'L_C5', 72)))
        o += self.gemm_loop(groups, cfg.get('la', 3), extras)
        o.append(P('s_barrier'))
        return o, PA

    def cs_w1(self):
        o = []
        A0 = vT + 40; A1 = vT + 44
        ad = vT + 48
        o += [P('s_lshl_b32 s53, s%d, 5' % sW), P('s_add_u32 s54, s%d, 4' % sW), P('s_min_u32 s54, s54, 6'), P('s_lshl_b32 s54, s54, 5')]
        for win in range(3):
            o += [P('v_add_u32 v%d, s53, v%d' % (ad + win, vW1A + win)), P('v_add_u32 v%d, s54, v%d' % (ad + 3 + win, vW1A + win))]
        groups = []; n = 0
        for j in range(16):
            base = L_W1P[j // 4] + (j % 4) * 7168
            for e in range(2):
                dst = self.afrag(n); n += 1
                g = dict(pre=[], reads=[], mf=[])
                for part in range(2):
                    a = base + part * 3584
                    g['reads'].append(LG('ds_read_b64_tr_b16 v[%d:%d], v%d offset:%d' % (dst + 2 * part, dst + 2 * part + 1, ad + 3 * e + (a >> 16), a & 0xffff)))
                accr = A0 if e == 0 else A1
                c = '0' if j == 0 else vr(accr, 4)
                g['mf'].append(('v_mfma_f32_16x16x32_bf16 %s, %s, %s, %s' % (vr(accr, 4), vr(dst, 4), vr(vONES, 4), c), []))
                groups.append(g)
        o += self.gemm_loop(groups, 3, [])
        o += [P('s_lshl_b32 s53, s53, 1'), P('s_lshl_b32 s54, s54, 1'),
              P('v_add_u32 v%d, s53, v%d' % (ad, vCS)), P('v_add_u32 v%d, s54, v%d' % (ad + 1, vCS)),
              P('s_mov_b32 s52, 0x00010001'), P('s_mov_b32 s53, 0x00010001'), P('s_mov_b64 exec, s[52:53]'),
              LG('ds_write_b128 v%d, %s offset:%d' % (ad, vr(A0, 4), L_CS1)),
              LG('ds_write_b128 v%d, %s offset:%d' % (ad + 1, vr(A1, 4), L_CS1)),
              P('s_mov_b64 exec, -1'), WALL(False, True), P('s_barrier')]
        return o

    def p3_epi(self, PA, dmas):
        o = []
        acc = lambda fb, tb: vACC + (fb * 2 + tb) * 4
        CS = vT + 12; BB = vT + 40
        PK = vT + 68
        cst = []
        for fb in range(7):
            x = LG('ds_read_b128 %s, v%d offset:%d' % (vr(CS + 4 * fb, 4), vCS, L_CS1 + fb * 64)); y = LG('ds_read_b128 %s, v%d offset:%d' % (vr(BB + 4 * fb, 4), vCS, L_BB1 + fb * 64))
            cst.append([x.tag, y.tag]); o += [x, y]
        T = vT + 68
        OUTR = lambda tb, fb: vAF + tb * 16 + fb * 2
        body = []
        for fb in range(7):
            body.append(W(cst[fb]))
            prs = [(tb, hh) for tb in range(2) for hh in range(2)]
            E = [T + 2 * k for k in range(4)]; U = [T + 8 + 2 * k for k in range(4)]
            for k, (tb, hh) in enumerate(prs):
                body.append(P('v_pk_fma_f32 %s, %s, %s, %s op_sel:[0,1,0] op_sel_hi:[1,1,1]' % (vr(E[k], 2), vr(CS + 4 * fb + 2 * hh, 2), vr(PA[tb], 2), vr(BB + 4 * fb + 2 * hh, 2))))
            for k, (tb, hh) in enumerate(prs):
                body.append(P('v_pk_fma_f32 %s, %s, %s, %s op_sel_hi:[1,0,1]' % (vr(E[k], 2), vr(acc(fb, tb) + 2 * hh, 2), vr(PA[tb], 2), vr(E[k], 2))))
            for k in range(4):
                body += [P('v_exp_f32 v%d, v%d' % (U[k], E[k])), P('v_exp_f32 v%d, v%d' % (U[k] + 1, E[k] + 1))]
            for k in range(4):
                body.append(P('v_pk_add_f32 %s, %s, s[%d:%d]' % (vr(U[k], 2), vr(U[k], 2), sONE, sONE + 1)))
            for k in range(4):
                body.append(P('v_pk_fma_f32 %s, %s, %s, s[%d:%d]' % (vr(U[k], 2), vr(U[k], 2), vr(U[k], 2), sONE, sONE + 1)))
            for k in range(4):
                body += [P('v_rcp_f32 v%d, v%d' % (U[k], U[k])), P('v_rcp_f32 v%d, v%d' % (U[k] + 1, U[k] + 1))]
            for k in range(4):
                body.append(P('v_pk_fma_f32 %s, %s, s[%d:%d], %s' % (vr(U[k], 2), vr(U[k], 2), sM2L, sM2L + 1, vr(vLN2, 2))))
            for k in range(4):
                body.append(P('v_pk_mul_f32 %s, %s, %s' % (vr(E[k], 2), vr(E[k], 2), vr(U[k], 2))))
            for k, (tb, hh) in enumerate(prs):
                body.append(P('v_cvt_pk_bf16_f32 v%d, v%d, v%d' % (OUTR(tb, fb) + hh, E[k], E[k] + 1)))
        if dmas:
            frac = self.cfg.get('p3e_frac', 100)
            body = interleave(body, dmas, start=4, every=max(1, ((len(body) - 8) * frac // 100) // (len(dmas) + 1)))
        o += body
        o += [P('s_lshr_b32 s52, s%d, 1' % sM), P('s_mul_i32 s52, s52, 7168'), P('s_add_u32 s52, s52, s%d' % sAF),
              P('s_mul_i32 s53, s%d, %d' % (sW, 2 * 57344)), P('s_add_u32 s52, s52, s53'),
              P('s_add_u32 s53, s52, 57344'), P('s_add_u32 s54, s52, 4096'), P('s_add_u32 s55, s53, 4096')]
        def variant(odd, fl):
            r = []
            for tb in range(2):
                b0 = 52 + tb; b1 = 54 + tb
                if not odd:
                    for u in range(3):
                        r.append(P('buffer_store_dwordx4 %s, v%d, s[28:31], s%d offen offset:%d%s' % (vr(OUTR(tb, 2 * u), 4), vL16, b0, u * 1024, fl)))
                    r.append(P('buffer_store_dwordx2 %s, v%d, s[28:31], s%d offen offset:%d%s' % (vr(OUTR(tb, 6), 2), vL16, b0, 3072, fl)))
                else:
                    r.append(P('buffer_store_dwordx2 %s, v%d, s[28:31], s%d offen offset:%d%s' % (vr(OUTR(tb, 0), 2), vL16, b0, 3072 + 8, fl)))
                    for u in range(3):
                        r.append(P('buffer_store_dwordx4 %s, v%d, s[28:31], s%d offen offset:%d%s' % (vr(OUTR(tb, 2 * u + 1), 4), vL16, b1, u * 1024, fl)))
            return r
        l_odd = self.L('odd'); l_e1 = self.L('e1'); l_o1 = self.L('o1'); done = self.L('dn')
        sel = sMODE
        if self.cfg.get('af_sc1_r1'):
            sel = sIT
            o += [P('s_xor_b32 s%d, s%d, 1' % (sIT, sRND)), P('s_or_b32 s%d, s%d, s%d' % (sIT, sIT, sMODE))]
        o += [P('s_bitcmp1_b32 s%d, 0' % sM), P('s_cbranch_scc1 %s' % l_odd),
              P('s_cmp_eq_u32 s%d, 0' % sel), P('s_cbranch_scc1 %s' % l_e1)] + variant(False, ' sc1') + [P('s_branch %s' % done), LAB(l_e1)] + \
            variant(False, '') + [P('s_branch %s' % done), LAB(l_odd),
              P('s_cmp_eq_u32 s%d, 0' % sel), P('s_cbranch_scc1 %s' % l_o1)] + variant(True, ' sc1') + [P('s_branch %s' % done), LAB(l_o1)] + \
            variant(True, '') + [LAB(done)]
        cnt = [VM('; counted store') for _ in range(8)]
        return o + cnt, [c.tag for c in cnt]

    def build(self):
        cfg = self.cfg
        stop = cfg.get('stop', 99)
        o = self.add
        self.prologue()
        o(self.ts(0))
        self.p1a()
        o(self.ts(1))
        o(W(self.tag_res))
        if cfg.get('a0_early', 1):
            o(self.dma_w1_group(0))
        o(LAB('L_P1EPI'))
        wo = [self.dma_wo_slot(SRD_WO, 8, t, kh, t) for t in range(8) for kh in range(2)]
        w1a0 = self.dma_w1_group(0)
        o(P('s_cmp_eq_u32 s%d, 1' % sRND), P('s_cselect_b64 s[70:71], -1, 0'),
          P('s_lshl_b32 s53, s%d, 10' % sW), P('s_add_u32 s53, s53, %d' % L_W), P('v_add_u32 v%d, s53, v%d' % (vWOA, vL16)))
        epi, stores = self.p1_epi(self.p1_epi_fill())
        o(epi)
        ds, tags = self.dual_store(stores)
        o(ds)
        o(self.wo_restore())
        o(self.ts(2, True))
        o(P('s_lshl_b32 s%d, s%d, 2' % (sTGT, sRND)))
        o(self.sync_dyn(1, tags, pre_r1=self.dma_w1_group(1)) if cfg.get('a1_tail', 1) else self.sync_dyn(1, tags, pre=self.dma_w1_group(1)))
        o(self.ts(3, True))
        if stop == 1:
            o(P('s_branch L_END'))
        o(LAB('L_C2'))
        if cfg.get('pA', 0):
            o(self.gemmA(8, SRD_WO, sOF, 16, 8, 8, None, inloop=self.dma_w1_group(2), stash=True))
        elif cfg.get('p2a', 1):
            o(self.gemmA2(sOF, self.dma_w1_group(2)))
        else:
            o(self.gemmB(8, SRD_WO, sOF, 16, 8, 8, None, L_EXB2, inloop=self.dma_w1_group(2) if cfg.get('a2_p2', 1) else None))
        o(self.ts(4, True))
        o(self.x_stores(sX1, sS1))
        ds, tags = self.x_store_frags(); o(ds)
        o(self.row_stats())
        ds, tags2 = self.x_store_stats(); o(ds)
        tags = tags + tags2
        o(self.sync_dyn(2, tags, pre=None if cfg.get('a2_p2', 1) else self.dma_w1_group(2)))
        o(self.ts(5, True))
        if stop == 2:
            o(P('s_branch L_END'))
        w2_early = [self.dma_wo_slot(SRD_W2, 28, W2_T_AT[p], kh, p) for p in range(5) for kh in range(2)]
        body, PA = self.p3(w2_early)
        o(body)
        skip = self.L('cs1')
        o(P('s_cmp_lg_u32 s%d, 0' % sRND), P('s_cbranch_scc1 %s' % skip))
        o(self.cs_w1())
        o(LAB(skip))
        o(self.ts(6, True))
        n_epi = cfg.get('w2_epi_p', 15)
        w2_epi = [self.dma_wo_slot(SRD_W2, 28, W2_T_AT[p], kh, p) for p in range(5, n_epi) for kh in range(2)]
        epi, tags = self.p3_epi(PA, w2_epi)
        o(epi)
        o(self.ts(7, True))
        o(self.sync_dyn(3, tags, pre=[self.dma_wo_slot(SRD_W2, 28, W2_T_AT[p], kh, p) for p in range(n_epi, 19) for kh in range(2)]))
        o(self.ts(8, True))
        if stop == 3:
            o(P('s_branch L_END'))
        o(LAB('L_C4'))
        if cfg.get('stash', 1):
            VA, VB = vT + 60, vT + 61
            o(P('s_cmp_eq_u32 s%d, 0' % sRND), P('s_cselect_b64 s[74:75], -1, 0'))
            o(P('s_lshl_b32 s53, s%d, 10' % sW), P('s_add_u32 s53, s53, %d' % L_W), P('v_add_u32 v%d, s53, v%d' % (VA, vL16)),
              P('v_add_u32 v%d, 0x10000, v%d' % (VB, VA)))
            wq_tail = self.wq_restore([0, 1, 2, 4, 5, 6, 8, 9, 10, 11], VA, VB)
            wq_post = self.wq_restore([3, 7], VA, VB)
            if cfg.get('pA', 0):
                o(self.gemmA(28, SRD_W2, sAF, 56, cfg.get('p4d', XD), 19, w2pos, tail=wq_tail, post=wq_post))
            else:
                o(self.gemmB(28, SRD_W2, sAF, 56, cfg.get('p4d', XD), 19, None, L_EXB4, posf=w2pos, tail=wq_tail, post=wq_post, tail_lds=True))
        else:
            wq_tail = self.dma_wq_quarter(0, src=None) + self.dma_wq_quarter(1, src=None) + self.dma_wq_quarter(2, src=None) + self.dma_wq_quarter(3, panels=(2,), src=None)
            wq_post = self.dma_wq_quarter(3, panels=(0, 1), src=None)
            o(self.gemmB(28, SRD_W2, sAF, 56, cfg.get('p4d', XD), 19, None, L_EXB4, pre_extras=self.sw4(), posf=w2pos, tail=wq_tail, post=wq_post))
        o(self.ts(9, True))
        o(LAB('L_C5'))
        o(P('s_cmp_lg_u32 s%d, 0' % sRND), P('s_cbranch_scc1 L_FINAL'))
        o(self.x_stores(sX2, sS2))
        ds, tags = self.x_store_frags(); o(ds)
        o(self.row_stats())
        ds, tags2 = self.x_store_stats(); o(ds)
        tags = tags + tags2
        ht = [newtag('hs') for _ in range(3)]
        o(P('s_add_u32 s52, s%d, 1' % sG), P('s_lshl_b32 s53, s52, 14'), P('s_lshl_b32 s54, s%d, 11' % sCT),
          P('s_add_u32 s53, s53, s54'), P('s_add_u32 s53, s53, %d' % WS_HF),
          P('s_lshl_b32 s54, s52, 10'), P('s_add_u32 s54, s54, %d' % WS_HST),
          VM('buffer_store_dwordx4 %s, v%d, s[28:31], s53 offen sc1' % (vr(vR, 4), vHOF), ht[0]),
          self.delta(55, 11), P('s_add_u32 s55, s55, s53'),
          VM('buffer_store_dwordx4 %s, v%d, s[28:31], s55 offen offset:1024 sc1' % (vr(vR + 4, 4), vHOF), ht[1]),
          VM('buffer_store_dwordx2 %s, v%d, s[28:31], s54 offen sc1' % (vr(vT + 32, 2), vHST), ht[2]))
        self.halo_store_tags = ht
        o(self.sync_dyn(4, tags))
        o(self.ts(10))
        if stop == 4:
            o(P('s_branch L_END'))
        o(P('s_mov_b32 s%d, 1' % sRND), P('s_add_u32 s%d, s%d, s%d' % (sOF, sOF, dOF)), P('s_add_u32 s%d, s%d, s%d' % (sAF, sAF, dAF)),
          P('s_add_u32 s%d, s%d, s%d' % (sX1, sX1, dX1)), P('s_add_u32 s%d, s%d, s%d' % (sS1, sS1, dS1)))
        self.p1b()
        o(self.ts(27))
        o(WALL(False, True))
        o(P('s_branch L_P1EPI'))
        o(LAB('L_FINAL'))
        for u in range(2):
            o(P('v_permlane16_swap_b32 v%d, v%d' % (vR + 4 * u, vR + 4 * u + 2)), P('v_permlane16_swap_b32 v%d, v%d' % (vR + 4 * u + 1, vR + 4 * u + 3)))
        for u in range(2):
            if u == 1:
                o(self.delta(55), P('s_add_u32 s55, s55, s61'))
            o(VM('buffer_store_dwordx4 %s, v%d, s[32:35], s%d offen offset:%d%s' % (vr(vR + 4 * u, 4), vOUT, 55 if u else 61, u * 64, ' sc1' if cfg.get('out_sc1') else '')))
        o(self.ts(28), self.ts_flush())
        o(LAB('L_END'), P('s_endpgm'))

    def sync_dyn(self, ph, tags, window=None, pre=None, pre_r1=None):
        prep = [P('s_add_u32 s%d, s%d, %d' % (sNXT, sTGT, ph)), P('v_mov_b32 v%d, s%d' % (vTA, sNXT)), P('v_mov_b32 v%d, 0' % vTB),
                P('v_lshlrev_b32 v250, 2, v%d' % vLANE)]
        if pre_r1:
            l2 = self.L('pr2'); l3 = self.L('pr3')
            raw = [P(x.text) for x in self.flat(pre_r1)]
            nd = sum(1 for x in self.flat(pre_r1) if x.kind == 'vm')
            o = prep + [P('s_cmp_lg_u32 s%d, 0' % sRND), P('s_cbranch_scc1 %s' % l2)] + raw + [P('s_waitcnt vmcnt(%d)' % nd), P('s_branch %s' % l3),
                 LAB(l2), P('s_waitcnt vmcnt(0)'), LAB(l3), MARK(tags)]
        else:
            o = prep + self.flat(pre or []) + [W(tags)]
        if self.cfg.get('sts'):
            o += self.ts(48 + 4 * (ph - 1))
        pure = self.L('fp'); done = self.L('fd')
        o += [P('s_mov_b64 exec, 1'),
              P('s_cmp_eq_u32 s%d, 0' % sMODE), P('s_cbranch_scc1 %s ;nopad' % pure),
              P('buffer_store_dword v%d, v%d, s[28:31], s%d offen sc1' % (vTA, vTB, sFLGOFF)),
              P('s_branch %s ;nopad' % done), LAB(pure),
              P('buffer_store_dword v%d, v%d, s[28:31], s%d offen' % (vTA, vTB, sFLGOFF)),
              LAB(done), VM('; flag store counted'),
              P('s_mov_b64 exec, -1')]
        other = self.L('so'); join = self.L('sj'); loop = self.L('sp')
        PA_, PB_ = 248, 249
        o += [P('s_cmp_lg_u32 s%d, 0' % sW), P('s_cbranch_scc1 %s ;nopad' % other),
              P('s_mov_b32 s%d, 0' % sTMO)]
        if self.cfg.get('poll2', 1):
            o += [P('buffer_load_dword v%d, v%d, s[28:31], s%d offen sc1' % (PA_, 250, sGFLG)),
                  LAB(loop),
                  P('buffer_load_dword v%d, v%d, s[28:31], s%d offen sc1' % (PB_, 250, sGFLG)),
                  P('s_waitcnt vmcnt(1)'),
                  P('v_cmp_gt_u32 vcc, s%d, v%d' % (sNXT, PA_)),
                  P('s_add_u32 s%d, s%d, 1' % (sTMO, sTMO)),
                  P('s_cbranch_vccz %s ;nopad' % join),
                  P('buffer_load_dword v%d, v%d, s[28:31], s%d offen sc1' % (PA_, 250, sGFLG)),
                  P('s_waitcnt vmcnt(1)'),
                  P('v_cmp_gt_u32 vcc, s%d, v%d' % (sNXT, PB_)),
                  P('s_cmp_lt_u32 s%d, 0x80000' % sTMO),
                  P('s_cbranch_vccz %s ;nopad' % join),
                  P('s_cbranch_scc1 %s' % loop),
                  P('s_endpgm'),
                  LAB(other)]
        else:
            o += [LAB(loop),
                  P('buffer_load_dword v%d, v%d, s[28:31], s%d offen sc1' % (PA_, 250, sGFLG)),
                  P('s_add_u32 s%d, s%d, 1' % (sTMO, sTMO)),
                  P('s_waitcnt vmcnt(0)'),
                  P('v_cmp_gt_u32 vcc, s%d, v%d' % (sNXT, PA_)),
                  P('s_cbranch_vccz %s' % join),
                  P('s_cmp_lt_u32 s%d, 0x100000' % sTMO),
                  P('s_cbranch_scc1 %s' % loop),
                  P('s_endpgm'),
                  LAB(other)]
        if window and not self.cfg.get('nowin'):
            o += window
        o += [LAB(join)]
        if self.cfg.get('sts'):
            o += self.ts(49 + 4 * (ph - 1)) + [WALL(True, True)] + self.ts(50 + 4 * (ph - 1))
        if self.cfg.get('halo_nowait') and ph == 4:
            o += [WALL(True, True)]
        else:
            o += [WALL(True, True)]
        o += [P('s_barrier')]
        return o

    def text(self):
        self.build()
        body = self.p.render()
        body = [l for l in body if not l.strip().startswith('; counted') and not l.strip().startswith('; flag store')]
        hdr = open('interleave_layers__sliding_local_dilated__dense_activation_mish__prompt.s.ref').read().split('\n')
        head = []
        for l in hdr:
            if l.startswith('; Override') or l.startswith('; grid=') or l.startswith('; @launch'):
                continue
            if l.startswith('.amdgcn_target'):
                break
            head.append(l)
        out = head + ['; @launch grid=(256,1,1) block=(256,1,1) lds=%d' % LDS_BYTES,
                      '.amdgcn_target "amdgcn-amd-amdhsa--gfx950"', '.text', '.globl ' + KNAME, '.p2align 8',
                      '.type %s,@function' % KNAME, KNAME + ':']
        out += body
        out += ['.section .rodata,"a"', '.p2align 6', '.amdhsa_kernel ' + KNAME,
                '  .amdhsa_next_free_vgpr 512', '  .amdhsa_next_free_sgpr 102', '  .amdhsa_accum_offset 256',
                '  .amdhsa_group_segment_fixed_size 0', '  .amdhsa_kernarg_size 80', '  .amdhsa_user_sgpr_count 2',
                '  .amdhsa_user_sgpr_kernarg_segment_ptr 1', '  .amdhsa_system_sgpr_workgroup_id_x 1',
                '  .amdhsa_float_denorm_mode_32 3', '.end_amdhsa_kernel', '']
        return '\n'.join(out)


if __name__ == '__main__':
    cfg = {}
    outp = sys.argv[1]
    for a in sys.argv[2:]:
        k, v = a.split('=')
        try:
            cfg[k] = int(v)
        except ValueError:
            cfg[k] = v
    g = Gen(cfg)
    t = g.text()
    open(outp, 'w').write(t)
    print('wrote', outp, len(t), 'bytes;', 'nops padded:', g.p.npad)
```
